```python
import torch

def _softmax(x, axis=-1):
    return torch.softmax(x, dim=axis)
def _gelu(x):
    return torch.nn.functional.gelu(x, approximate="tanh")
def _silu(x):
    return torch.nn.functional.silu(x)
def _sigmoid(x):
    return torch.sigmoid(x)
def _layernorm(x, axis=-1, eps=1e-5):
    m = x.mean(dim=axis, keepdim=True)
    v = x.var(dim=axis, keepdim=True, unbiased=False)
    return (x - m) / torch.sqrt(v + eps)
def _scatter_add(tgt, idx, src, axis=0):
    return tgt.clone().index_add_(axis, idx, src)
def _segment_sum(src, seg, n):
    out = torch.zeros((n,) + src.shape[1:], dtype=src.dtype)
    return out.index_add_(0, seg, src)
def _pad(x, pw):
    flat = tuple(v for pair in reversed(pw) for v in pair)
    return torch.nn.functional.pad(x, flat)

kernel_name = 'standalone__deep_cross_xdeepfm__recsys'

def setup_inputs():

    _w = (lambda a: (lambda t: t.to(torch.bfloat16) if t.is_floating_point() else t)(torch.as_tensor(a)))
    B, F, D, L = 4096, 26, 16, 6
    V = min(1000, 100000)
    Din = F * D
    return {
        "idx": _w((lambda lo, hi, *s: torch.randint(lo, hi, s))(0, V, B, F).to(torch.int64)),
        "table": _w((lambda *s: torch.randn(*s, dtype=torch.bfloat16) * 0.8)(V, D)),
        "ws_cin": _w((lambda *s: torch.randn(*s, dtype=torch.bfloat16) * 0.4)(L, F, F, F) * (1.0 / F)),
        "w_cin_out": _w((lambda *s: torch.randn(*s, dtype=torch.bfloat16) * 0.4)(L * F) * ((L * F) ** -0.5)),
        "w_dnn1": _w((lambda *s: torch.randn(*s, dtype=torch.bfloat16) * 0.8)(Din, Din) * (Din ** -0.5)),
        "b_dnn1": _w((lambda *s: torch.randn(*s, dtype=torch.bfloat16) * 3.2)(Din) * 0.1),
        "w_dnn2": _w((lambda *s: torch.randn(*s, dtype=torch.bfloat16) * 0.4)(Din) * (Din ** -0.5)),
        "b_out": _w((lambda *s: torch.randn(*s, dtype=torch.bfloat16) * 0.4)(1)),
    }

def reference(idx, table, ws_cin, w_cin_out, w_dnn1, b_dnn1, w_dnn2, b_out):
    x0 = table[idx]
    B = x0.shape[0]
    L = ws_cin.shape[0]
    xk = x0
    pooled = []
    for l in range(L):
        xk = torch.einsum('bid,bjd,hij->bhd', xk, x0, ws_cin[l])
        pooled.append(xk.sum(axis=-1))
    p_plus = torch.stack(pooled, axis=1).reshape(B, -1)
    logit_cin = p_plus @ w_cin_out
    h = x0.reshape(B, -1)
    h = _gelu(h @ w_dnn1 + b_dnn1)
    logit_dnn = h @ w_dnn2
    return logit_cin + logit_dnn + b_out
```

```python
import re

def vr(base, n=1):
    return f'v{base}' if n == 1 else f'v[{base}:{base+n-1}]'
def sr(base, n=1):
    return f's{base}' if n == 1 else f's[{base}:{base+n-1}]'
def R(base, n=1):
    return list(range(base, base + n))

class Asm:
    def __init__(self):
        self.lines = []
        self.slot = 0
        self.lds = []
        self.vm = []
        self.valu_w = {}
        self.trans_w = {}
        self.mfma_w = {}
        self.mfma_c = {}
        self.sgpr_valu_w = {}
        self.store_src = {}
        self.opsel_w = {}
        self.m0_w = -100
        self.exec_valu_w = -100
        self.cond = None
        self.count = {}
        self.uid = 0
    def raw(self, text, slots=1, kind='other'):
        self.lines.append('    ' + text)
        self.slot += slots
        self.count[kind] = self.count.get(kind, 0) + 1
    def comment(self, t):
        self.lines.append('    ; ' + t)
    def label(self, name):
        self.lines.append(name + ':')
    def nop(self, n):
        while n > 0:
            k = min(n, 16)
            self.raw(f's_nop {k-1}', slots=k, kind='nop')
            n -= k
    def _need(self, prod_slot, states):
        gap = self.slot - prod_slot
        return max(0, states - gap)
    def _wait_regs(self, regs):
        regs = set(regs)
        lg = None; vmc = None
        for i in range(len(self.lds) - 1, -1, -1):
            if self.lds[i]['dst'] & regs:
                lg = sum(1 for o in self.lds[i+1:] if not o['maybe'])
                self.lds = self.lds[i+1:]
                break
        for i in range(len(self.vm) - 1, -1, -1):
            if self.vm[i]['dst'] & regs:
                vmc = sum(1 for o in self.vm[i+1:] if not o['maybe'])
                self.vm = self.vm[i+1:]
                break
        self._emit_wait(vmc, lg)
    def _emit_wait(self, vmc, lg):
        parts = []
        if vmc is not None: parts.append(f'vmcnt({min(vmc,63)})')
        if lg is not None: parts.append(f'lgkmcnt({min(lg,15)})')
        if parts:
            self.raw('s_waitcnt ' + ' '.join(parts), kind='wait')
    def wait_lds_all(self):
        if self.lds:
            self.lds = []
            self._emit_wait(None, 0)
    def wait_vm_tag(self, tag):
        for i in range(len(self.vm) - 1, -1, -1):
            if self.vm[i]['tag'] == tag:
                vmc = sum(1 for o in self.vm[i+1:] if not o['maybe'])
                self.vm = self.vm[i+1:]
                self._emit_wait(vmc, None)
                return
    def wait_vm_all(self):
        if self.vm:
            self.vm = []
            self._emit_wait(0, None)
    def barrier(self):
        self.wait_lds_all()
        self.raw('s_barrier', kind='barrier')
    def _haz_read_common(self, reads, writes, is_valu):
        n = 0
        for r in list(reads) + list(writes):
            if r in self.mfma_w:
                s, p, _, _ = self.mfma_w[r]
                n = max(n, self._need(s, {2: 5, 4: 8, 8: 12, 16: 20}[p]))
        if is_valu:
            for r in writes:
                if r in self.mfma_c:
                    s, p = self.mfma_c[r]
                    n = max(n, self._need(s, {2: 1, 4: 3, 8: 7, 16: 15}[p]))
                if r in self.store_src:
                    n = max(n, self._need(self.store_src[r], 2))
        return n
    def valu(self, text, reads=(), writes=(), sreads=(), swrites=(), trans=False, dpp=False, permlane=False,
             readlane=False, opsel=False, exec_write=False):
        self._wait_regs(list(reads) + list(writes))
        n = self._haz_read_common(reads, writes, True)
        for r in reads:
            if not trans and r in self.trans_w: n = max(n, self._need(self.trans_w[r], 1))
            if r in self.opsel_w: n = max(n, self._need(self.opsel_w[r], 1))
            if r in self.valu_w:
                if dpp or permlane: n = max(n, self._need(self.valu_w[r], 2))
                if readlane: n = max(n, self._need(self.valu_w[r], 1))
        for r in writes:
            if r in self.opsel_w: n = max(n, self._need(self.opsel_w[r], 1))
        for s in sreads:
            if s in self.sgpr_valu_w: n = max(n, self._need(self.sgpr_valu_w[s], 2))
        self.nop(n)
        self.raw(text, kind='valu')
        for r in writes:
            self.valu_w[r] = self.slot
            self.mfma_w.pop(r, None)
            if trans: self.trans_w[r] = self.slot
            else: self.trans_w.pop(r, None)
            if opsel: self.opsel_w[r] = self.slot
            else: self.opsel_w.pop(r, None)
        for s in swrites:
            self.sgpr_valu_w[s] = self.slot
    def salu(self, text, sreads=(), swrites=(), m0=False):
        n = 0
        for s in sreads:
            if s in self.sgpr_valu_w: n = max(n, self._need(self.sgpr_valu_w[s], 1))
        self.nop(n)
        self.raw(text, kind='salu')
        for s in swrites: self.sgpr_valu_w.pop(s, None)
        if m0: self.m0_w = self.slot
    def mfma(self, op, D, A, B, C, passes, dn):
        Dr = R(D, dn); Ar = R(A, 4); Br = R(B, 4); Cr = R(C, dn) if C is not None else []
        self._wait_regs(Dr + Ar + Br + Cr)
        n = 0
        for r in Ar + Br + Cr:
            if r in self.valu_w: n = max(n, self._need(self.valu_w[r], 2))
        for r in Ar + Br:
            if r in self.mfma_w:
                s, p, _, _ = self.mfma_w[r]
                n = max(n, self._need(s, {2: 5, 4: 8, 8: 12, 16: 20}[p]))
        for r in Cr:
            if r in self.mfma_w:
                s, p, db, ddn = self.mfma_w[r]
                if db == C and ddn == dn and p == passes:
                    n = max(n, self._need(s, 2 if p == 2 else 0))
                else:
                    n = max(n, self._need(s, {2: 4, 4: 6, 8: 10, 16: 18}[p]))
        if C is None or C != D:
            for r in Dr:
                if r in self.mfma_w:
                    s, p, _, _ = self.mfma_w[r]
                    n = max(n, self._need(s, {2: 5, 4: 8, 8: 12, 16: 20}[p]))
        self.nop(n)
        c = vr(C, dn) if C is not None else '0'
        self.raw(f'{op} {vr(D,dn)}, {vr(A,4)}, {vr(B,4)}, {c}', kind='mfma' + str(passes))
        for r in Dr:
            self.mfma_w[r] = (self.slot, passes, D, dn)
            self.valu_w.pop(r, None)
        for r in Cr:
            self.mfma_c[r] = (self.slot, passes)
    def ds(self, text, reads=(), dst=()):
        self._wait_regs(list(reads) + list(dst))
        n = self._haz_read_common(reads, dst, False)
        self.nop(n)
        self.raw(text, kind='ds')
        self.uid += 1
        self.lds.append(dict(dst=set(dst), maybe=self.cond is not None, id=self.uid))
        for r in dst:
            self.valu_w.pop(r, None); self.mfma_w.pop(r, None)
        if len(self.lds) > 15 + 8:
            pass
    def vmem(self, text, reads=(), dst=(), sreads=(), tag=None, dma=False, wide_store=()):
        self._wait_regs(list(reads) + list(dst))
        n = self._haz_read_common(reads, dst, False)
        for s in sreads:
            if s in self.sgpr_valu_w: n = max(n, self._need(self.sgpr_valu_w[s], 5))
        if dma: n = max(n, self._need(self.m0_w, 1))
        self.nop(n)
        self.raw(text, kind='vmem')
        self.uid += 1
        self.vm.append(dict(dst=set(dst), tag=tag, maybe=self.cond is not None, id=self.uid))
        for r in dst:
            self.valu_w.pop(r, None); self.mfma_w.pop(r, None)
        for r in wide_store: self.store_src[r] = self.slot
    def cond_begin(self, branch_text, label):
        assert self.cond is None
        self.raw(branch_text, kind='branch')
        self.cond = dict(label=label, slot=self.slot, lds=[dict(o) for o in self.lds], vm=[dict(o) for o in self.vm],
                         snap={k: dict(getattr(self, k)) for k in ('valu_w','trans_w','mfma_w','mfma_c','sgpr_valu_w','store_src','opsel_w')})
    def cond_end(self):
        c = self.cond; self.cond = None
        self.label(c['label'])
        d = self.slot - c['slot']
        entry = c['slot']
        for k in ('valu_w','trans_w','sgpr_valu_w','store_src','opsel_w'):
            cur = getattr(self, k); old = c['snap'][k]
            new = {}
            for r, s in cur.items():
                new[r] = s - d if s > entry else s
            for r, s in old.items():
                new[r] = max(new.get(r, -10**9), s)
            setattr(self, k, new)
        for k in ('mfma_w','mfma_c'):
            cur = getattr(self, k); old = c['snap'][k]
            new = {}
            for r, t in cur.items():
                new[r] = ((t[0] - d,) + tuple(t[1:])) if t[0] > entry else t
            for r, t in old.items():
                if r not in new or new[r][0] < t[0]: new[r] = t
            setattr(self, k, new)
        self.slot = entry
        idl = set(o['id'] for o in c['lds']); idv = set(o['id'] for o in c['vm'])
        self.lds = c['lds'] + [o for o in self.lds if o['id'] not in idl]
        self.vm = c['vm'] + [o for o in self.vm if o['id'] not in idv]
    def text(self):
        return '\n'.join(self.lines) + '\n'
```

```python
import sys
sys.path.insert(0, 'gen')
from asmfw import *

NAME = 'standalone__deep_cross_xdeepfm__recsys'
AIMG = [0, 44032]
W1B = [88064, 114688]
X0S = 141312
V5F = 154880
PD = 158976
POOLW = 161024
MAXB = 161664
LDS_TOTAL = 161824
S_IDX, S_TAB, S_WC, S_WCO, S_W1, S_B1, S_W2, S_BO, S_OUT = [24 + 4 * i for i in range(9)]
S_WAVE = 60; S_T0 = 61; S_T1 = 62; S_T2 = 63
S_MSK4 = 64
S_M16 = 66
S_MG = 68
S_C = 70
S_EW = [71, 72, 73, 74, 75]
S_K7FFF = 76; S_K8000 = 77
S_W1M0 = 78
S_MV = [80, 82]
S_HI = 84
S_G1 = 86
S_T3 = 88; S_T4 = 89
S_DBG = 92
V_TID = 0; V_LANE = 1
V_T = list(range(2, 12))
V_AADDR = 12; V_E = 13; V_EX = 14; V_ACC = 15
P16 = 16
XQ = 32
V_SH = 39
D = 40
ZB = [56, 60, 64]
ZL = 68
AB = [72, 76, 80, 84]
RAW = [88, 108]
ABS = 128
SRC = 148
DST = 153
DACC = 160
DA = 176
DB = 192
PW = 196
V_W1OFF = 158; V_DAADDR = 159
V_DBADDR = 212; V_PWADDR = 213; V_MAXACC = 214; V_TRADDR = 215
W2R = 216
G = 224
PB = 240
NV = 256

def gen(debug=None):
    a = Asm()
    V = a.valu; S = a.salu
    t = V_T
    S('s_cmp_ge_u32 s2, 256')
    a.raw('s_cbranch_scc1 L_end', kind='branch')
    a.raw('s_load_dwordx16 s[4:19], s[0:1], 0')
    a.raw('s_load_dwordx2 s[20:21], s[0:1], 64')
    if debug: a.raw('s_load_dwordx2 s[22:23], s[0:1], 80')
    V(f'v_and_b32 v{V_LANE}, 63, v0', [0], [V_LANE])
    V(f'v_lshrrev_b32 v{t[0]}, 6, v0', [0], [t[0]])
    V(f'v_readfirstlane_b32 s{S_WAVE}, v{t[0]}', [t[0]], [], swrites=[S_WAVE], readlane=True)
    S(f's_mov_b32 s{S_K7FFF}, 0x7fff7fff'); S(f's_mov_b32 s{S_K8000}, 0x80008000')
    S(f's_mov_b64 s[{S_M16}:{S_M16+1}], 0xffff')
    S(f's_mov_b32 s{S_MG}, -1'); S(f's_mov_b32 s{S_MG+1}, 0x3ff')
    S(f's_mov_b32 s{S_HI}, 0'); S(f's_mov_b32 s{S_HI+1}, -1')
    S(f's_mov_b32 s{S_G1}, 0xffff0000'); S(f's_mov_b32 s{S_G1+1}, 0')
    V(f'v_cmp_le_u32 vcc, 53, v{V_LANE}', [V_LANE], [], swrites=['vcc'])
    V(f'v_cndmask_b32 v{t[1]}, 0, 1, vcc', [], [t[1]], sreads=['vcc'])
    V(f'v_mul_u32_u24 v{t[2]}, 53, v{t[1]}', [t[1]], [t[2]])
    V(f'v_sub_u32 v{t[2]}, v{V_LANE}, v{t[2]}', [V_LANE, t[2]], [t[2]])
    V(f'v_add_u32 v{t[3]}, 11, v{V_LANE}', [V_LANE], [t[3]])
    V(f'v_lshrrev_b32 v{t[4]}, 1, v{t[2]}', [t[2]], [t[4]])
    V(f'v_min_u32 v{t[4]}, 25, v{t[4]}', [t[4]], [t[4]])
    V(f'v_lshlrev_b32 v{t[4]}, 2, v{t[4]}', [t[4]], [t[4]])
    V(f'v_mad_u32_u24 v{t[4]}, v{t[1]}, 52, v{t[4]}', [t[1], t[4]], [t[4]])
    V(f'v_mad_u32_u24 v{t[4]}, v{t[1]}, 52, v{t[4]}', [t[1], t[4]], [t[4]])
    V(f'v_lshrrev_b32 v{t[5]}, 1, v{t[3]}', [t[3]], [t[5]])
    V(f'v_min_u32 v{t[5]}, 25, v{t[5]}', [t[5]], [t[5]])
    V(f'v_lshlrev_b32 v{t[5]}, 2, v{t[5]}', [t[5]], [t[5]])
    V(f'v_add_u32 v{t[5]}, 104, v{t[5]}', [t[5]], [t[5]])
    V(f'v_and_b32 v{t[2]}, 1, v{t[2]}', [t[2]], [t[2]])
    V(f'v_lshlrev_b32 v{t[2]}, 4, v{t[2]}', [t[2]], [t[2]])
    V(f'v_and_b32 v{t[3]}, 1, v{t[3]}', [t[3]], [t[3]])
    V(f'v_lshlrev_b32 v{t[3]}, 4, v{t[3]}', [t[3]], [t[3]])
    S(f's_mov_b32 s{S_T0}, 24386')
    HS = RAW[1]
    HS = ABS
    for r in range(5):
        V(f'v_add_u32 v{DST+r}, {512*r}, v0', [0], [DST+r])
        V(f'v_mul_u32_u24 v{HS+r}, s{S_T0}, v{DST+r}', [DST+r], [HS+r])
        V(f'v_lshrrev_b32 v{HS+r}, 20, v{HS+r}', [HS+r], [HS+r])
        V(f'v_lshlrev_b32 v{SRC+r}, 4, v{DST+r}', [DST+r], [SRC+r])
        V(f'v_mul_u32_u24 v{t[6]}, 12, v{HS+r}', [HS+r], [t[6]])
        V(f'v_sub_u32 v{SRC+r}, v{SRC+r}, v{t[6]}', [SRC+r, t[6]], [SRC+r])
    V(f'v_cmp_gt_u32 s[{S_MSK4}:{S_MSK4+1}], 188, v0'.replace('188,', 's%d,' % S_T1) if False else f'v_cmp_gt_u32 vcc, 188, v0', [0], [], swrites=['vcc'])
    S(f's_mov_b64 s[{S_MSK4}:{S_MSK4+1}], vcc', sreads=['vcc'])
    V(f'v_mov_b32 v{t[6]}, 0x7f000000', [], [t[6]])
    V(f'v_cndmask_b32 v{SRC+4}, v{t[6]}, v{SRC+4}, vcc', [t[6], SRC+4], [SRC+4], sreads=['vcc'])
    a.raw('s_waitcnt lgkmcnt(0)', kind='wait')
    sizes = [425984, 32000, 210912, 312, 346112, 832, 832, 2, 8192]
    for i, (sb, sz) in enumerate(zip([S_IDX, S_TAB, S_WC, S_WCO, S_W1, S_B1, S_W2, S_BO, S_OUT], sizes)):
        S(f's_mov_b32 s{sb}, s{4+2*i}'); S(f's_and_b32 s{sb+1}, s{5+2*i}, 0xffff')
        S(f's_mov_b32 s{sb+2}, {sz}'); S(f's_mov_b32 s{sb+3}, 0x00020000')
        if i == 0:
            S(f's_lshl_b32 s{S_T0}, s2, 3'); S(f's_add_u32 s{S_T0}, s{S_T0}, s{S_WAVE}', sreads=[S_WAVE])
            S(f's_mul_i32 s{S_T0}, s{S_T0}, 208')
            a.vmem(f'buffer_load_dword v{t[7]}, v{t[4]}, s[{S_IDX}:{S_IDX+3}], s{S_T0} offen', [t[4]], [t[7]])
            a.vmem(f'buffer_load_dword v{t[8]}, v{t[5]}, s[{S_IDX}:{S_IDX+3}], s{S_T0} offen', [t[5]], [t[8]])
    if debug:
        S(f's_mov_b32 s{S_DBG}, s22'); S(f's_and_b32 s{S_DBG+1}, s23, 0xffff'); S(f's_mov_b32 s{S_DBG+2}, 0x10000000'); S(f's_mov_b32 s{S_DBG+3}, 0x00020000')
    def raw_loads(l):
        S(f's_mov_b32 s{S_T2}, {l*35152}')
        for r in range(5):
            b = RAW[l & 1] + 4 * r
            a.vmem(f'buffer_load_dwordx4 {vr(b,4)}, v{SRC+r}, s[{S_WC}:{S_WC+3}], s{S_T2} offen', [SRC+r], R(b, 4))
    S(f's_lshr_b32 s{S_T3}, s2, 3'); S(f's_and_b32 s{S_T3}, s{S_T3}, 31')
    V(f'v_lshlrev_b32 v{t[9]}, 4, v{V_LANE}', [V_LANE], [t[9]])
    S(f's_lshl_b32 s{S_T4}, s{S_T3}, 10')
    a.vmem(f'buffer_load_dwordx4 {vr(G,4)}, v{t[9]}, s[{S_TAB}:{S_TAB+3}], s{S_T4} offen', [t[9]], R(G, 4))
    raw_loads(0)
    V(f'v_lshrrev_b32 v{t[0]}, 4, v0', [0], [t[0]])
    V(f'v_and_b32 v{t[1]}, 15, v0', [0], [t[1]])
    V(f'v_mad_u32_u24 v{t[0]}, v{t[0]}, 13, v{t[1]}', [t[0], t[1]], [t[0]])
    V(f'v_lshlrev_b32 v{t[0]}, 1, v{t[0]}', [t[0]], [t[0]])
    V(f'v_cmp_gt_u32 vcc, 13, v{t[1]}', [t[1]], [], swrites=['vcc'])
    V(f'v_cndmask_b32 v{t[0]}, v{t[6]}, v{t[0]}, vcc', [t[6], t[0]], [t[0]], sreads=['vcc'])
    a.vmem(f'buffer_load_ushort v{PW}, v{t[0]}, s[{S_WCO}:{S_WCO+3}], 0 offen', [t[0]], [PW])
    raw_loads(1)
    S(f's_mul_i32 s{S_W1M0}, s{S_WAVE}, 3328', sreads=[S_WAVE])
    S(f's_lshl_b32 s{S_T0}, s{S_WAVE}, 4'); S(f's_and_b32 s{S_T0}, s{S_T0}, 32')
    V(f'v_xor_b32 v{V_W1OFF}, s{S_T0}, v{t[9]}', [t[9]], [V_W1OFF])
    V(f'v_add_u32 v{V_W1OFF}, s{S_W1M0}, v{V_W1OFF}', [V_W1OFF], [V_W1OFF])
    def w1_dma(c):
        S(f's_add_u32 m0, s{S_W1M0}, {W1B[c & 1]}', m0=True)
        S(f's_mov_b32 s{S_T2}, {c*26624}')
        for k in range(4):
            if k == 3: S(f's_mov_b64 exec, s[{S_M16}:{S_M16+1}]')
            a.vmem(f'buffer_load_dwordx4 v{V_W1OFF}, s[{S_W1}:{S_W1+3}], s{S_T2} offen offset:{1024*k} lds', [V_W1OFF], [], tag=f'w1_{c}', dma=True)
        S('s_mov_b64 exec, -1')
    w1_dma(0)
    V(f'v_lshrrev_b32 v{t[0]}, 4, v{V_LANE}', [V_LANE], [t[0]])
    V(f'v_lshlrev_b32 v{t[1]}, 3, v{t[0]}', [t[0]], [t[1]])
    S(f's_lshl_b32 s{S_T0}, s{S_WAVE}, 5')
    for q in range(4):
        a.vmem(f'buffer_load_dwordx2 {vr(DA+2*q,2)}, v{t[1]}, s[{S_B1}:{S_B1+3}], s{S_T0} offen offset:{256*q}', [t[1]], R(DA+2*q, 2))
        a.vmem(f'buffer_load_dwordx2 {vr(W2R+2*q,2)}, v{t[1]}, s[{S_W2}:{S_W2+3}], s{S_T0} offen offset:{256*q}', [t[1]], R(W2R+2*q, 2))
    S(f's_lshl_b32 s{S_T4}, s{S_T3}, 13'); S(f's_lshl_b32 s{S_T0}, s{S_WAVE}, 10'); S(f's_add_u32 s{S_T4}, s{S_T4}, s{S_T0}')
    a.vmem(f'buffer_load_dwordx4 {vr(G+4,4)}, v{t[9]}, s[{S_WC}:{S_WC+3}], s{S_T4} offen', [t[9]], R(G+4, 4))
    S(f's_mul_i32 s{S_T4}, s{S_T3}, 10816'); S(f's_mul_i32 s{S_T0}, s{S_WAVE}, 1352'); S(f's_add_u32 s{S_T4}, s{S_T4}, s{S_T0}')
    a.vmem(f'buffer_load_dwordx4 {vr(G+8,4)}, v{t[9]}, s[{S_W1}:{S_W1+3}], s{S_T4} offen', [t[9]], R(G+8, 4))
    a.vmem(f'buffer_load_dwordx4 {vr(G+12,4)}, v{t[9]}, s[{S_W1}:{S_W1+3}], s{S_T4} offen offset:336', [t[9]], R(G+12, 4))
    for r in range(5):
        hs = HS + r; u = DST + r
        V(f'v_mul_u32_u24 v{t[0]}, 43, v{hs}', [hs], [t[0]])
        V(f'v_sub_u32 v{u}, v{u}, v{t[0]}', [u, t[0]], [u])
        V(f'v_lshlrev_b32 v{u}, 4, v{u}', [u], [u])
        V(f'v_lshrrev_b32 v{t[0]}, 1, v{hs}', [hs], [t[0]])
        V(f'v_cmp_le_u32 vcc, 13, v{t[0]}', [t[0]], [], swrites=['vcc'])
        V(f'v_cndmask_b32 v{t[1]}, 0, 1, vcc', [], [t[1]], sreads=['vcc'])
        V(f'v_mul_u32_u24 v{t[4]}, 13, v{t[1]}', [t[1]], [t[4]])
        V(f'v_sub_u32 v{t[0]}, v{t[0]}, v{t[4]}', [t[0], t[4]], [t[0]])
        V(f'v_and_b32 v{t[4]}, 12, v{t[0]}', [t[0]], [t[4]])
        V(f'v_add_u32 v{t[0]}, v{t[0]}, v{t[4]}', [t[0], t[4]], [t[0]])
        V(f'v_lshl_add_u32 v{t[0]}, v{t[1]}, 2, v{t[0]}', [t[1], t[0]], [t[0]])
        V(f'v_and_b32 v{t[4]}, 1, v{hs}', [hs], [t[4]])
        V(f'v_lshl_add_u32 v{t[0]}, v{t[4]}, 5, v{t[0]}', [t[4], t[0]], [t[0]])
        V(f'v_mul_u32_u24 v{t[0]}, 0x2b0, v{t[0]}', [t[0]], [t[0]])
        V(f'v_add_u32 v{u}, v{u}, v{t[0]}', [u, t[0]], [u])
    V(f'v_mul_u32_u24 v{V_AADDR}, 0x2b0, v{V_LANE}', [V_LANE], [V_AADDR])
    V(f'v_mov_b32 v{ZL+1}, 0', [], [ZL+1]); V(f'v_mov_b32 v{ZL+2}, 0', [], [ZL+2]); V(f'v_mov_b32 v{ZL+3}, 0', [], [ZL+3])
    V(f'v_lshlrev_b32 v{t[0]}, 3, v0', [0], [t[0]])
    V(f'v_add_u32 v{t[0]}, {V5F}, v{t[0]}', [t[0]], [t[0]])
    a.ds(f'ds_write_b64 v{t[0]}, {vr(ZL+2,2)}', [t[0], ZL+2, ZL+3])
    V(f'v_lshl_add_u32 v{t[7]}, v{t[7]}, 5, v{t[2]}', [t[7], t[2]], [t[7]])
    V(f'v_lshl_add_u32 v{t[8]}, v{t[8]}, 5, v{t[3]}', [t[8], t[3]], [t[8]])
    S(f's_mul_i32 s{S_T0}, s{S_WAVE}, 1696'); S(f's_add_u32 s{S_T0}, s{S_T0}, {X0S}')
    S(f's_mov_b32 m0, s{S_T0}', m0=True)
    a.vmem(f'buffer_load_dwordx4 v{t[7]}, s[{S_TAB}:{S_TAB+3}], 0 offen lds', [t[7]], [], tag='gather', dma=True)
    S(f's_add_u32 m0, s{S_T0}, 1024', m0=True)
    S(f's_mov_b64 exec, s[{S_MG}:{S_MG+1}]')
    a.vmem(f'buffer_load_dwordx4 v{t[8]}, s[{S_TAB}:{S_TAB+3}], 0 offen lds', [t[8]], [], tag='gather', dma=True)
    S('s_mov_b64 exec, -1')
    V(f'v_bfe_u32 v{t[0]}, v{V_LANE}, 4, 1', [V_LANE], [t[0]])
    V(f'v_mul_u32_u24 v{t[0]}, 848, v{t[0]}', [t[0]], [t[0]])
    V(f'v_and_b32 v{t[1]}, 15, v{V_LANE}', [V_LANE], [t[1]])
    V(f'v_lshl_add_u32 v{t[0]}, v{t[1]}, 3, v{t[0]}', [t[1], t[0]], [t[0]])
    V(f'v_add_u32 v{V_TRADDR}, s{S_T0}, v{t[0]}', [t[0]], [V_TRADDR])
    V(f'v_mul_u32_u24 v{t[0]}, 848, v{t[1]}', [t[1]], [t[0]])
    V(f'v_lshrrev_b32 v{t[4]}, 4, v{V_LANE}', [V_LANE], [t[4]])
    V(f'v_lshl_add_u32 v{t[0]}, v{t[4]}, 4, v{t[0]}', [t[4], t[0]], [t[0]])
    V(f'v_add_u32 v{V_DBADDR}, {X0S}, v{t[0]}', [t[0]], [V_DBADDR])
    V(f'v_bfe_u32 v{t[0]}, v{V_LANE}, 2, 2', [V_LANE], [t[0]])
    V(f'v_lshl_add_u32 v{t[0]}, v{t[4]}, 3, v{t[0]}', [t[4], t[0]], [t[0]])
    V(f'v_mul_u32_u24 v{t[0]}, 832, v{t[0]}', [t[0]], [t[0]])
    V(f'v_and_b32 v{t[5]}, 3, v{V_LANE}', [V_LANE], [t[5]])
    V(f'v_lshl_add_u32 v{t[0]}, v{t[5]}, 3, v{t[0]}', [t[5], t[0]], [t[0]])
    V(f'v_and_b32 v{t[5]}, 1, v{t[4]}', [t[4]], [t[5]])
    V(f'v_xor_b32 v{t[5]}, s{S_WAVE}, v{t[5]}', [t[5]], [t[5]], sreads=[S_WAVE])
    V(f'v_lshl_add_u32 v{t[0]}, v{t[5]}, 5, v{t[0]}', [t[5], t[0]], [t[0]])
    V(f'v_add_u32 v{V_DAADDR}, {W1B[0]}, v{t[0]}', [t[0]], [V_DAADDR])
    V(f'v_lshrrev_b32 v{t[0]}, 5, v{V_LANE}', [V_LANE], [t[0]])
    V(f'v_lshlrev_b32 v{t[0]}, 6, v{t[0]}', [t[0]], [t[0]])
    V(f'v_add_u32 v{V_PWADDR}, {POOLW}, v{t[0]}', [t[0]], [V_PWADDR])
    V(f'v_mov_b32 v{V_ACC}, 0', [], [V_ACC])

    def max_pass_ops(l, absbase):
        ops = []
        rb = RAW[l & 1]
        for i in range(20):
            ops.append(lambda i=i: V(f'v_and_b32 v{absbase+i}, s{S_K7FFF}, v{rb+i}', [rb+i], [absbase+i]))
            if i == 1:
                ops.append(lambda: V(f'v_pk_max_u16 v{V_MAXACC}, v{absbase}, v{absbase+1}', [absbase, absbase+1], [V_MAXACC]))
            elif i % 2 == 1:
                ops.append(lambda i=i: V(f'v_pk_maximum3_f16 v{V_MAXACC}, v{V_MAXACC}, v{absbase+i-1}, v{absbase+i}', [V_MAXACC, absbase+i-1, absbase+i], [V_MAXACC]))
        m = V_MAXACC
        ops.append(lambda: V(f'v_max_u16_sdwa v{m}, v{m}, v{m} dst_sel:DWORD dst_unused:UNUSED_PAD src0_sel:WORD_1 src1_sel:WORD_0', [m], [m], opsel=True))
        for d in ('row_shr:1 row_mask:0xf', 'row_shr:2 row_mask:0xf', 'row_shr:4 row_mask:0xf', 'row_shr:8 row_mask:0xf', 'row_bcast:15 row_mask:0xa', 'row_bcast:31 row_mask:0xc'):
            ops.append(lambda d=d: V(f'v_max_u32_dpp v{m}, v{m}, v{m} {d} bank_mask:0xf', [m], [m], dpp=True))
        def fin():
            V(f'v_readlane_b32 s{S_T0}, v{m}, 63', [m], [], swrites=[S_T0], readlane=True)
            S(f's_lshl_b32 s{S_T1}, s{S_WAVE}, 2'); S(f's_add_u32 s{S_T1}, s{S_T1}, {MAXB + 32*l}')
            V(f'v_mov_b32 v{t[0]}, s{S_T1}', [], [t[0]])
            V(f'v_mov_b32 v{m}, s{S_T0}', [], [m], sreads=[S_T0])
            a.ds(f'ds_write_b32 v{t[0]}, v{m}', [t[0], m])
        ops.append(fin)
        return ops
    def scale_ops(l):
        def f1():
            V(f'v_mov_b32 v{t[0]}, {MAXB + 32*l}', [], [t[0]])
            a.ds(f'ds_read_b128 {vr(t[2],4)}, v{t[0]}', [t[0]], R(t[2], 4))
            a.ds(f'ds_read_b128 {vr(t[6],4)}, v{t[0]} offset:16', [t[0]], R(t[6], 4))
        def f2():
            V(f'v_max3_u32 v{t[2]}, v{t[2]}, v{t[3]}, v{t[4]}', R(t[2], 3), [t[2]])
            V(f'v_max3_u32 v{t[2]}, v{t[2]}, v{t[5]}, v{t[6]}', [t[2], t[5], t[6]], [t[2]])
            V(f'v_max3_u32 v{t[2]}, v{t[2]}, v{t[7]}, v{t[8]}', [t[2], t[7], t[8]], [t[2]])
            V(f'v_max_u32 v{t[2]}, v{t[2]}, v{t[9]}', [t[2], t[9]], [t[2]])
            V(f'v_readfirstlane_b32 s{S_T0}, v{t[2]}', [t[2]], [], swrites=[S_T0], readlane=True)
            S(f's_lshr_b32 s{S_T0}, s{S_T0}, 7', sreads=[S_T0], swrites=[S_T0])
            S(f's_sub_i32 s{S_T0}, s{S_T0}, 30'); S(f's_max_i32 s{S_T0}, s{S_T0}, 0')
            S(f's_mul_i32 s{S_C}, s{S_T0}, 0x800080')
            S(f's_sub_i32 s{S_EW[l]}, s{S_T0}, 112')
        return [f1, f2]
    def convert_ops(l, absbase):
        ops = []
        rb = RAW[l & 1]
        for r in range(5):
            for i in range(4 * r, 4 * r + 4):
                x = absbase + i
                ops.append(lambda x=x: V(f'v_pk_sub_u16 v{x}, v{x}, s{S_C} clamp', [x], [x]))
            for i in range(4 * r, 4 * r + 4):
                x = absbase + i
                ops.append(lambda x=x: V(f'v_lshlrev_b32 v{x}, 3, v{x}', [x], [x]))
            for i in range(4 * r, 4 * r + 4):
                x = absbase + i
                ops.append(lambda x=x, i=i: V(f'v_bfi_b32 v{x}, s{S_K8000}, v{rb+i}, v{x}', [x, rb+i], [x]))
            def wr(r=r):
                if r == 4: S(f's_mov_b64 exec, s[{S_MSK4}:{S_MSK4+1}]')
                a.ds(f'ds_write_b128 v{DST+r}, {vr(absbase+4*r,4)} offset:{AIMG[l & 1]}', [DST+r] + R(absbase+4*r, 4))
                if r == 4: S('s_mov_b64 exec, -1')
            ops.append(wr)
        return ops

    for op in max_pass_ops(0, ABS): op()
    V(f'v_lshlrev_b32 v{PW}, 16, v{PW}', [PW], [PW])
    V(f'v_lshlrev_b32 v{t[0]}, 2, v0', [0], [t[0]])
    V(f'v_add_u32 v{t[0]}, {POOLW}, v{t[0]}', [t[0]], [t[0]])
    V(f'v_cmp_gt_u32 vcc, 0xa0, v0', [0], [], swrites=['vcc'])
    S('s_mov_b64 exec, vcc', sreads=['vcc'])
    a.ds(f'ds_write_b32 v{t[0]}, v{PW}', [t[0], PW])
    S('s_mov_b64 exec, -1')
    a.barrier()
    for op in scale_ops(0): op()
    for op in convert_ops(0, ABS): op()
    for op in max_pass_ops(1, ABS): op()
    for q in range(4):
        V(f'v_lshlrev_b32 v{DACC+4*q}, 16, v{DA+2*q}', [DA+2*q], [DACC+4*q])
        V(f'v_and_b32 v{DACC+4*q+1}, 0xffff0000, v{DA+2*q}', [DA+2*q], [DACC+4*q+1])
        V(f'v_lshlrev_b32 v{DACC+4*q+2}, 16, v{DA+2*q+1}', [DA+2*q+1], [DACC+4*q+2])
        V(f'v_and_b32 v{DACC+4*q+3}, 0xffff0000, v{DA+2*q+1}', [DA+2*q+1], [DACC+4*q+3])
    a.wait_vm_tag('gather')
    for q in range(7):
        a.ds(f'ds_read_b64_tr_b16 {vr(PB+2*q,2)}, v{V_TRADDR} offset:{128*q}', [V_TRADDR], R(PB+2*q, 2))
    for v in range(13):
        V(f'v_and_b32 v{P16+v}, s{S_K7FFF}, v{PB+v}', [PB+v], [P16+v])
    m = t[0]
    V(f'v_pk_maximum3_f16 v{m}, v{P16}, v{P16+1}, v{P16+2}', R(P16, 3), [m])
    for v in range(3, 13, 2):
        V(f'v_pk_maximum3_f16 v{m}, v{m}, v{P16+v}, v{P16+v+1}', [m, P16+v, P16+v+1], [m])
    V(f'v_max_u16_sdwa v{m}, v{m}, v{m} dst_sel:DWORD dst_unused:UNUSED_PAD src0_sel:WORD_1 src1_sel:WORD_0', [m], [m], opsel=True)
    V(f'v_lshrrev_b32 v{m}, 7, v{m}', [m], [m])
    V(f'v_subrev_u32 v{m}, 21, v{m}', [m], [m])
    V(f'v_max_i32 v{m}, 0, v{m}', [m], [m])
    V(f'v_subrev_u32 v{V_EX}, 112, v{m}', [m], [V_EX])
    V(f'v_mul_u32_u24 v{m}, 0x800080, v{m}', [m], [m])
    for v in range(13):
        V(f'v_pk_sub_u16 v{P16+v}, v{P16+v}, v{m} clamp', [P16+v, m], [P16+v])
    for v in range(13):
        V(f'v_lshlrev_b32 v{P16+v}, 3, v{P16+v}', [P16+v], [P16+v])
    for v in range(13):
        V(f'v_bfi_b32 v{P16+v}, s{S_K8000}, v{PB+v}, v{P16+v}', [P16+v, PB+v], [P16+v])
    V(f'v_mov_b32 v{P16+13}, 0', [], [P16+13])
    for q in range(7):
        V(f'v_alignbit_b32 v{XQ+q}, v{P16+7+q}, v{P16+6+q}, 16', [P16+7+q, P16+6+q], [XQ+q])
        V(f'v_cndmask_b32 v{XQ+q}, v{P16+q}, v{XQ+q}, s[{S_HI}:{S_HI+1}]', [P16+q, XQ+q], [XQ+q])
    V(f'v_lshlrev_b32 v{V_E}, 1, v{V_EX}', [V_EX], [V_E])
    V(f'v_add_u32 v{V_E}, s{S_EW[0]}, v{V_E}', [V_E], [V_E])
    a.wait_vm_tag('w1_0')

    def dnn_ops(c):
        ops = []
        boff = W1B[c & 1] - W1B[0]
        ops.append(lambda: a.ds(f'ds_read_b128 {vr(DB,4)}, v{V_DBADDR} offset:{64*c}', [V_DBADDR], R(DB, 4)))
        for q in range(3):
            ops.append(lambda q=q: a.ds(f'ds_read_b64_tr_b16 {vr(DA+4*q,2)}, v{V_DAADDR} offset:{boff+256*q}', [V_DAADDR], R(DA+4*q, 2)))
            ops.append(lambda q=q: a.ds(f'ds_read_b64_tr_b16 {vr(DA+4*q+2,2)}, v{V_DAADDR} offset:{boff+256*q+3328}', [V_DAADDR], R(DA+4*q+2, 2)))
        def rd4():
            S(f's_cmp_gt_u32 s{S_WAVE}, 1')
            a.cond_begin(f's_cbranch_scc1 L_dr{c}', f'L_dr{c}')
            a.ds(f'ds_read_b64_tr_b16 {vr(DA+12,2)}, v{V_DAADDR} offset:{boff+768}', [V_DAADDR], R(DA+12, 2))
            a.ds(f'ds_read_b64_tr_b16 {vr(DA+14,2)}, v{V_DAADDR} offset:{boff+768+3328}', [V_DAADDR], R(DA+14, 2))
            a.cond_end()
        ops.append(rd4)
        mf = []
        for q in range(3):
            mf.append(lambda q=q: a.mfma('v_mfma_f32_16x16x32_bf16', DACC+4*q, DA+4*q, DB, DACC+4*q, 4, 4))
        def mf4():
            S(f's_cmp_gt_u32 s{S_WAVE}, 1')
            a.cond_begin(f's_cbranch_scc1 L_dm{c}', f'L_dm{c}')
            a.mfma('v_mfma_f32_16x16x32_bf16', DACC+12, DA+12, DB, DACC+12, 4, 4)
            a.cond_end()
        mf.append(mf4)
        return ops, mf
    def dnn_epilogue_ops():
        ops = []
        K1 = -2.0 * 1.4426950408889634 * 0.7978845608028654
        K2 = K1 * 0.044715
        import struct
        fb = lambda x: '0x%08x' % struct.unpack('<I', struct.pack('<f', x))[0]
        acc = DB
        ops.append(lambda: S(f's_mov_b32 s{S_T3}, {fb(K2)}'))
        ops.append(lambda: V(f'v_mov_b32 v{DB+1}, {fb(K1)}', [], [DB+1]))
        ops.append(lambda: V(f'v_mov_b32 v{acc}, 0', [], [acc]))
        def one(q):
            o = []
            xs = [DACC + 4*q + r for r in range(4)]
            ts = [DA + 4*q + r for r in range(4)]
            for x, tt in zip(xs, ts): o.append(lambda x=x, tt=tt: V(f'v_mul_f32 v{tt}, v{x}, v{x}', [x], [tt]))
            for x, tt in zip(xs, ts): o.append(lambda x=x, tt=tt: V(f'v_fma_f32 v{tt}, v{tt}, s{S_T3}, v{DB+1}', [tt, DB+1], [tt]))
            for x, tt in zip(xs, ts): o.append(lambda x=x, tt=tt: V(f'v_mul_f32 v{tt}, v{tt}, v{x}', [tt, x], [tt]))
            for x, tt in zip(xs, ts): o.append(lambda x=x, tt=tt: V(f'v_exp_f32 v{tt}, v{tt}', [tt], [tt], trans=True))
            for x, tt in zip(xs, ts): o.append(lambda x=x, tt=tt: V(f'v_add_f32 v{tt}, 1.0, v{tt}', [tt], [tt]))
            for x, tt in zip(xs, ts): o.append(lambda x=x, tt=tt: V(f'v_rcp_f32 v{tt}, v{tt}', [tt], [tt], trans=True))
            for x, tt in zip(xs, ts): o.append(lambda x=x, tt=tt: V(f'v_mul_f32 v{tt}, v{tt}, v{x}', [tt, x], [tt]))
            o.append(lambda: V(f'v_lshlrev_b32 v{xs[0]}, 16, v{W2R+2*q}', [W2R+2*q], [xs[0]]))
            o.append(lambda: V(f'v_and_b32 v{xs[1]}, 0xffff0000, v{W2R+2*q}', [W2R+2*q], [xs[1]]))
            o.append(lambda: V(f'v_lshlrev_b32 v{xs[2]}, 16, v{W2R+2*q+1}', [W2R+2*q+1], [xs[2]]))
            o.append(lambda: V(f'v_and_b32 v{xs[3]}, 0xffff0000, v{W2R+2*q+1}', [W2R+2*q+1], [xs[3]]))
            for x, tt in zip(xs, ts): o.append(lambda x=x, tt=tt: V(f'v_fmac_f32 v{acc}, v{tt}, v{x}', [acc, tt, x], [acc]))
            return o
        for q in range(3): ops += one(q)
        def q4():
            S(f's_cmp_gt_u32 s{S_WAVE}, 1')
            a.cond_begin('s_cbranch_scc1 L_dq4', 'L_dq4')
            for o in one(3): o()
            a.cond_end()
        ops.append(q4)
        def wr():
            V(f'v_and_b32 v{t[0]}, 15, v{V_LANE}', [V_LANE], [t[0]])
            V(f'v_lshrrev_b32 v{t[1]}, 4, v{V_LANE}', [V_LANE], [t[1]])
            V(f'v_lshl_add_u32 v{t[0]}, v{t[0]}, 5, v{t[1]}', [t[0], t[1]], [t[0]])
            V(f'v_lshlrev_b32 v{t[0]}, 2, v{t[0]}', [t[0]], [t[0]])
            S(f's_lshl_b32 s{S_T0}, s{S_WAVE}, 4'); S(f's_add_u32 s{S_T0}, s{S_T0}, {PD}')
            V(f'v_add_u32 v{t[0]}, s{S_T0}, v{t[0]}', [t[0]], [t[0]])
            a.ds(f'ds_write_b32 v{t[0]}, v{acc}', [t[0], acc])
        ops.append(wr)
        return ops
    W5A = RAW[0]
    V5T = RAW[0] + 4
    def w5_dma():
        V(f'v_lshlrev_b32 v{V5T}, 4, v0', [0], [V5T])
        S(f's_lshl_b32 s{S_T0}, s{S_WAVE}, 10')
        for r in range(5):
            S(f's_add_u32 m0, s{S_T0}, {AIMG[1] + 8192*r}', m0=True)
            S(f's_mov_b32 s{S_T2}, {5*35152 + 8192*r}')
            a.vmem(f'buffer_load_dwordx4 v{V5T}, s[{S_WC}:{S_WC+3}], s{S_T2} offen lds', [V5T], [], tag='w5', dma=True)
        V(f'v_lshrrev_b32 v{V5T+1}, 4, v{V_LANE}', [V_LANE], [V5T+1])
        V(f'v_lshlrev_b32 v{V5T+1}, 4, v{V5T+1}', [V5T+1], [V5T+1])
        a.vmem(f'buffer_load_dwordx4 {vr(W5A,4)}, v{V5T+1}, s[{S_WCO}:{S_WCO+3}], 0 offen offset:260', [V5T+1], R(W5A, 4))
    def v5_ops():
        ops = []
        A1, A2, WA0, WA1, J = V5T, V5T+1, V5T+2, V5T+3, V5T+4
        BT = RAW[1]
        DT = RAW[1] + 8
        TT = RAW[1] + 16
        def setup():
            V(f'v_lshrrev_b32 v{t[4]}, 4, v{V_LANE}', [V_LANE], [t[4]])
            V(f'v_bfe_u32 v{t[0]}, v{V_LANE}, 2, 2', [V_LANE], [t[0]])
            V(f'v_lshl_add_u32 v{t[0]}, v{t[4]}, 3, v{t[0]}', [t[4], t[0]], [t[0]])
            V(f'v_add_u32 v{t[1]}, 4, v{t[0]}', [t[0]], [t[1]])
            V(f'v_min_u32 v{t[0]}, 25, v{t[0]}', [t[0]], [t[0]])
            V(f'v_min_u32 v{t[1]}, 25, v{t[1]}', [t[1]], [t[1]])
            V(f'v_and_b32 v{t[5]}, 3, v{V_LANE}', [V_LANE], [t[5]])
            V(f'v_lshlrev_b32 v{t[5]}, 3, v{t[5]}', [t[5]], [t[5]])
            S(f's_and_b32 s{S_T1}, s{S_WAVE}, 1'); S(f's_lshl_b32 s{S_T1}, s{S_T1}, 1')
            S(f's_mul_i32 s{S_T0}, s{S_WAVE}, 26'); S(f's_sub_u32 s{S_T0}, s{S_T0}, s{S_T1}')
            S(f's_lshl_b32 s{S_T0}, s{S_T0}, 1'); S(f's_add_u32 s{S_T0}, s{S_T0}, {AIMG[1]}')
            V(f'v_add_u32 v{t[5]}, s{S_T0}, v{t[5]}', [t[5]], [t[5]])
            V(f'v_mul_u32_u24 v{A1}, 0x548, v{t[0]}', [t[0]], [A1])
            V(f'v_add_u32 v{A1}, v{A1}, v{t[5]}', [A1, t[5]], [A1])
            V(f'v_mul_u32_u24 v{A2}, 0x548, v{t[1]}', [t[1]], [A2])
            V(f'v_add_u32 v{A2}, v{A2}, v{t[5]}', [A2, t[5]], [A2])
            V(f'v_and_b32 v{J}, 15, v{V_LANE}', [V_LANE], [J])
            V(f'v_subrev_u32 v{J}, s{S_T1}, v{J}', [J], [J])
            for tp, WA in ((0, WA0), (1, WA1)):
                if tp: V(f'v_add_u32 v{J}, 16, v{J}', [J], [J])
                V(f'v_cmp_gt_u32 vcc, 26, v{J}', [J], [], swrites=['vcc'])
                S(f's_and_b32 s{S_MV[tp]}, vcc_lo, -1', sreads=['vcc']); S(f's_mov_b32 s{S_MV[tp]+1}, 0')
                V(f'v_lshrrev_b32 v{t[0]}, 3, v{J}', [J], [t[0]])
                V(f'v_lshlrev_b32 v{t[0]}, 10, v{t[0]}', [t[0]], [t[0]])
                V(f'v_and_b32 v{t[1]}, 7, v{J}', [J], [t[1]])
                V(f'v_lshl_add_u32 v{t[0]}, v{t[1]}, 1, v{t[0]}', [t[1], t[0]], [t[0]])
                V(f'v_lshl_add_u32 v{t[0]}, v{t[4]}, 9, v{t[0]}', [t[4], t[0]], [t[0]])
                V(f'v_add_u32 v{WA}, {V5F}, v{t[0]}', [t[0]], [WA])
        ops.append(setup)
        def round_(rho):
            def rd():
                for tp in range(2):
                    off = rho * 8 * 52 + tp * 32
                    a.ds(f'ds_read_b64_tr_b16 {vr(BT+4*tp,2)}, v{A1} offset:{off}', [A1], R(BT+4*tp, 2))
                    a.ds(f'ds_read_b64_tr_b16 {vr(BT+4*tp+2,2)}, v{A2} offset:{off}', [A2], R(BT+4*tp+2, 2))
            def mf():
                for tp in range(2):
                    a.mfma('v_mfma_f32_16x16x32_bf16', DT+4*tp, W5A, BT+4*tp, None, 4, 4)
            def wr():
                S(f's_add_u32 s{S_T0}, s{S_WAVE}, {8*rho}')
                S(f's_cmp_ge_u32 s{S_T0}, 13'); S(f's_cselect_b32 s{S_T1}, 1, 0')
                S(f's_mul_i32 s{S_T2}, s{S_T1}, 13'); S(f's_sub_u32 s{S_T0}, s{S_T0}, s{S_T2}')
                S(f's_and_b32 s{S_T2}, s{S_T0}, 12'); S(f's_add_u32 s{S_T0}, s{S_T0}, s{S_T2}')
                S(f's_lshl_b32 s{S_T1}, s{S_T1}, 2'); S(f's_add_u32 s{S_T0}, s{S_T0}, s{S_T1}')
                S(f's_lshl_b32 s{S_T0}, s{S_T0}, 4')
                for tp, WA in ((0, WA0), (1, WA1)):
                    d = DT + 4*tp
                    V(f'v_cvt_pk_bf16_f32 v{TT}, v{d}, v{d}', [d], [TT])
                    V(f'v_and_b32 v{TT+1}, 0xffff0000, v{TT}', [TT], [TT+1])
                    V(f'v_sub_f32 v{TT+1}, v{d}, v{TT+1}', [d, TT+1], [TT+1])
                    V(f'v_cvt_pk_bf16_f32 v{TT+1}, v{TT+1}, v{TT+1}', [TT+1], [TT+1])
                    V(f'v_cndmask_b32 v{TT}, v{TT}, v{TT+1}, s[{S_G1}:{S_G1+1}]', [TT, TT+1], [TT])
                    V(f'v_add_u32 v{TT+1}, s{S_T0}, v{WA}', [WA], [TT+1])
                    S(f's_mov_b64 exec, s[{S_MV[tp]}:{S_MV[tp]+1}]')
                    a.ds(f'ds_write_b16 v{TT+1}, v{TT}', [TT+1, TT])
                    S('s_mov_b64 exec, -1')
            return rd, mf, wr
        for rho in range(3):
            ops += list(round_(rho))
        def last():
            S(f's_cmp_gt_u32 s{S_WAVE}, 1')
            a.cond_begin('s_cbranch_scc1 L_v5l', 'L_v5l')
            for o in round_(3): o()
            a.cond_end()
        ops.append(last)
        return ops
    def u5_ops():
        ops = []
        UA = RAW[0]
        def rd():
            V(f'v_lshlrev_b32 v{t[0]}, 4, v{V_LANE}', [V_LANE], [t[0]])
            V(f'v_add_u32 v{t[0]}, {V5F}, v{t[0]}', [t[0]], [t[0]])
            for k in range(4):
                a.ds(f'ds_read_b128 {vr(UA+4*k,4)}, v{t[0]} offset:{1024*k}', [t[0]], R(UA+4*k, 4))
            for q in range(7):
                a.ds(f'ds_read_b64_tr_b16 {vr(PB+2*q,2)}, v{V_TRADDR} offset:{128*q}', [V_TRADDR], R(PB+2*q, 2))
            for k in range(4):
                a.ds(f'ds_read_b128 {vr(G+4*k,4)}, v{V_PWADDR} offset:{128*4+16*k}', [V_PWADDR], R(G+4*k, 4))
        ops.append(rd)
        def z():
            for r in (13, 14, 15): V(f'v_mov_b32 v{PB+r}, 0', [], [PB+r])
        ops.append(z)
        for k in range(4):
            ops.append(lambda k=k: a.mfma('v_mfma_f32_32x32x16_bf16', G, UA+4*k, PB+4*k, G, 8, 16))
        return ops

    def boundary_ops(l):
        ops = []
        s_ = ZB[2]; mx = ZB[2]+1; my = ZB[2]+2
        W = PW if l < 4 else G
        if l < 4:
            ops.append(lambda: V(f'v_max3_f32 v{mx}, |v{D}|, |v{D+1}|, |v{D+2}|', R(D, 3), [mx]))
            for r in range(3, 13, 2):
                ops.append(lambda r=r: V(f'v_max3_f32 v{mx}, |v{D+r}|, |v{D+r+1}|, v{mx}', [D+r, D+r+1, mx], [mx]))
            ops.append(lambda: V(f'v_mov_b32 v{my}, v{mx}', [mx], [my]))
        ops.append(lambda: V(f'v_mul_f32 v{s_}, v{D}, v{W}', [D, W], [s_]))
        ops.append(lambda: V(f'v_fmac_f32 v{s_}, v{D+1}, v{W+1}', [s_, D+1, W+1], [s_]))
        if l < 4:
            ops.append(lambda: V(f'v_permlane32_swap_b32 v{mx}, v{my}', [mx, my], [mx, my], permlane=True))
        ops.append(lambda: V(f'v_fmac_f32 v{s_}, v{D+2}, v{W+2}', [s_, D+2, W+2], [s_]))
        if l < 4:
            ops.append(lambda: V(f'v_max_f32 v{mx}, v{mx}, v{my}', [mx, my], [mx]))
            ops.append(lambda: V(f'v_frexp_exp_i32_f32 v{mx}, v{mx}', [mx], [mx]))
            ops.append(lambda: V(f'v_sub_u32 v{V_SH}, 8, v{mx}', [mx], [V_SH]))
        for r in range(3, 13):
            ops.append(lambda r=r: V(f'v_fmac_f32 v{s_}, v{D+r}, v{W+r}', [s_, D+r, W+r], [s_]))
        if l < 4:
            for r in range(13):
                ops.append(lambda r=r: V(f'v_ldexp_f32 v{D+r}, v{D+r}, v{V_SH}', [D+r, V_SH], [D+r]))
            for q in range(7):
                hi = D + 2*q + 1 if q < 6 else D + 12
                ops.append(lambda q=q, hi=hi: V(f'v_cvt_pk_f16_f32 v{XQ+q}, v{D+2*q}, v{hi}', [D+2*q, hi], [XQ+q]))
        ops.append(lambda: V(f'v_ldexp_f32 v{s_}, v{s_}, v{V_E}', [s_, V_E], [s_]))
        ops.append(lambda: V(f'v_add_f32 v{V_ACC}, v{V_ACC}, v{s_}', [V_ACC, s_], [V_ACC]))
        if l < 4:
            ops.append(lambda: V(f'v_sub_u32 v{V_E}, v{V_E}, v{V_SH}', [V_E, V_SH], [V_E]))
            ops.append(lambda: V(f'v_add3_u32 v{V_E}, v{V_E}, v{V_EX}, s{S_EW[l+1]}', [V_E, V_EX], [V_E]))
        return ops

    def a_read(l, k):
        b = AB[k % 4]
        a.ds(f'ds_read_b128 {vr(b,4)}, v{V_AADDR} offset:{AIMG[l & 1] + 16*k}', [V_AADDR], R(b, 4))
    def z_ops(k):
        ops = []
        zb = ZB[k % 3] if k < 42 else ZL
        for e in range(4):
            q = 4 * k + e
            if q >= 169: break
            i, v = divmod(q, 13)
            o = i & 1
            ops.append(lambda zb=zb, e=e, i=i, v=v, o=o: V(f'v_pk_mul_f16 v{zb+e}, v{XQ+(i>>1)}, v{P16+v} op_sel:[{o},0] op_sel_hi:[{o},1]', [XQ+(i>>1), P16+v], [zb+e]))
        return ops

    SEG = [(0, 14), (14, 29), (29, 43)]
    for l in range(5):
        for sg, (k0, k1) in enumerate(SEG):
            sigma = 3 * l + sg
            a.barrier()
            filler = []
            pre = []
            if sg == 0:
                for k in range(3): a_read(l, k)
            dn_rd, dn_mf = ([], [])
            if sigma <= 12:
                dn_rd, dn_mf = dnn_ops(sigma)
                for o in dn_rd: o()
            if sigma + 1 <= 12: w1_dma(sigma + 1)
            if sg == 0 and l + 2 <= 4 and l >= 0: raw_loads(l + 2)
            if sigma == 12: w5_dma()
            if sg == 0:
                if l < 4: sc = scale_ops(l + 1); sc[0]()
                if l > 0:
                    bo = boundary_ops(l - 1)
                    step = max(1, len(bo) // (len(dn_mf) + 1))
                    mi = 0
                    if dn_mf: dn_mf[0](); mi = 1
                    for n_, o in enumerate(bo):
                        o()
                        if (n_ + 1) % step == 0 and mi < len(dn_mf): dn_mf[mi](); mi += 1
                    while mi < len(dn_mf): dn_mf[mi](); mi += 1
                    dn_mf = []
                if l < 4: sc[1]()
                if l < 4:
                    for k in range(4):
                        a.ds(f'ds_read_b128 {vr(PW+4*k,4)}, v{V_PWADDR} offset:{128*l+16*k}', [V_PWADDR], R(PW+4*k, 4))
                for o in z_ops(0): o()
                if l < 4:
                    cv = convert_ops(l + 1, ABS)
                    conv_pending = cv
            if sg in (0, 1) and l < 4:
                n = len(cv) // 2 + 1
                filler += conv_pending[:n] if sg == 0 else conv_pending[n:]
            if sg == 2 and l + 2 <= 4: filler += max_pass_ops(l + 2, ABS)
            if sigma == 13: filler += v5_ops() + dnn_epilogue_ops()
            if sigma == 14: filler += u5_ops()
            filler = dn_mf + filler
            nk = k1 - k0
            fi = 0
            for k in range(k0, k1):
                if k + 3 < 43: a_read(l, k + 3)
                zo = z_ops(k + 1) if k + 1 < 43 else []
                zb = ZB[k % 3] if k < 42 else ZL
                a.mfma('v_mfma_f32_32x32x16_f16', D, AB[k % 4], zb, D if k > 0 else None, 8, 16)
                for o in zo: o()
                want = (len(filler) * (k - k0 + 1) + nk - 1) // nk
                while fi < want: filler[fi](); fi += 1
            if sigma + 1 <= 12: a.wait_vm_tag(f'w1_{sigma+1}')
            if sigma == 12: a.wait_vm_tag('w5')
    V(f'v_bfe_u32 v{t[5]}, v{V_LANE}, 4, 1', [V_LANE], [t[5]])
    V(f'v_and_b32 v{t[6]}, 15, v{V_LANE}', [V_LANE], [t[6]])
    V(f'v_lshl_add_u32 v{t[5]}, v{t[5]}, 5, v{t[6]}', [t[5], t[6]], [t[5]])
    V(f'v_lshrrev_b32 v{t[6]}, 5, v{V_LANE}', [V_LANE], [t[6]])
    V(f'v_lshl_add_u32 v{t[5]}, v{t[6]}, 4, v{t[5]}', [t[6], t[5]], [t[5]])
    V(f'v_lshlrev_b32 v{t[5]}, 2, v{t[5]}', [t[5]], [t[5]])
    S(f's_lshl_b32 s{S_T0}, s{S_WAVE}, 8'); S(f's_add_u32 s{S_T0}, s{S_T0}, {PD}')
    V(f'v_add_u32 v{t[5]}, s{S_T0}, v{t[5]}', [t[5]], [t[5]])
    a.ds(f'ds_read_b32 v{t[6]}, v{t[5]}', [t[5]], [t[6]])
    V(f'v_mov_b32 v{t[7]}, 0', [], [t[7]])
    a.vmem(f'buffer_load_ushort v{t[8]}, v{t[7]}, s[{S_BO}:{S_BO+3}], 0 offen', [t[7]], [t[8]])
    for o in boundary_ops(4): o()
    A_ = V_ACC
    V(f'v_add_f32 v{A_}, v{A_}, v{t[6]}', [A_, t[6]], [A_])
    for d in (8, 4, 2, 1):
        V(f'v_add_f32_dpp v{A_}, v{A_}, v{A_} row_ror:{d} row_mask:0xf bank_mask:0xf', [A_], [A_], dpp=True)
    V(f'v_mov_b32 v{t[5]}, v{A_}', [A_], [t[5]])
    V(f'v_permlane32_swap_b32 v{A_}, v{t[5]}', [A_, t[5]], [A_, t[5]], permlane=True)
    V(f'v_add_f32 v{A_}, v{A_}, v{t[5]}', [A_, t[5]], [A_])
    V(f'v_lshlrev_b32 v{t[8]}, 16, v{t[8]}', [t[8]], [t[8]])
    V(f'v_add_f32 v{A_}, v{A_}, v{t[8]}', [A_, t[8]], [A_])
    V(f'v_cvt_pk_bf16_f32 v{A_}, v{A_}, v{A_}', [A_], [A_])
    V(f'v_lshrrev_b32 v{t[5]}, 3, v{V_LANE}', [V_LANE], [t[5]])
    S(f's_lshl_b32 s{S_T0}, s2, 5'); S(f's_lshl_b32 s{S_T1}, s{S_WAVE}, 2'); S(f's_add_u32 s{S_T0}, s{S_T0}, s{S_T1}')
    S('s_mov_b64 exec, 0x10001')
    a.vmem(f'buffer_store_short v{A_}, v{t[5]}, s[{S_OUT}:{S_OUT+3}], s{S_T0} offen', [A_, t[5]], [])
    a.label('L_end')
    a.raw('s_endpgm')
    return a

HEADER = open('cdna_kernels/' + NAME + '.s.ref').read().split('; Override launch geometry')[0]
def wrap(a):
    s = HEADER
    s += f'; @launch grid=(256,1,1) block=(512,1,1) lds={LDS_TOTAL}\n'
    s += '.amdgcn_target "amdgcn-amd-amdhsa--gfx950"\n.text\n'
    s += f'.globl {NAME}_kernel\n.p2align 8\n.type {NAME}_kernel,@function\n{NAME}_kernel:\n'
    s += a.text()
    s += f'''.section .rodata,"a"
.p2align 6
.amdhsa_kernel {NAME}_kernel
  .amdhsa_next_free_vgpr {NV}
  .amdhsa_next_free_sgpr 102
  .amdhsa_accum_offset {NV}
  .amdhsa_group_segment_fixed_size 0
  .amdhsa_kernarg_size 88
  .amdhsa_user_sgpr_count 2
  .amdhsa_user_sgpr_kernarg_segment_ptr 1
  .amdhsa_system_sgpr_workgroup_id_x 1
  .amdhsa_float_denorm_mode_32 3
.end_amdhsa_kernel
'''
    return s

if __name__ == '__main__':
    a = gen()
    out = sys.argv[1] if len(sys.argv) > 1 else 'cdna_kernels/' + NAME + '.s'
    open(out, 'w').write(wrap(a))
    print(a.count, 'lines', len(a.lines))
```

```python
import sys, struct
sys.path.insert(0, 'gen')
from asmfw import *

NAME = 'standalone__deep_cross_xdeepfm__recsys'
IMG = 35776; IMG0 = 19136
U = [IMG * i for i in range(4)]
X0S = 143104
V5F = 156672; EWT = 160768; POOLW = 161408; BW = 162048; PD = BW
LDS_TOTAL = 163712
WS_IMG0 = 0
WS_IMG = [None] + [19200 + IMG * i for i in range(4)]
WS_V5F = 19200 + 4 * IMG
WS_EWT = WS_V5F + 4096
WS_SIZE = WS_EWT + 640 + 1024
NP1 = 17; NP2 = 21
S_IDX, S_TAB, S_WC, S_WCO, S_W1, S_B1, S_W2, S_BO, S_OUT, S_DBGF, S_WS = [24 + 4 * i for i in range(11)]
S_WAVE = 68; S_T0 = 69; S_T1 = 70; S_T2 = 71; S_T3 = 72; S_T4 = 73
S_HI = 74; S_C = 76; S_K7FFF = 77; S_K8000 = 78; S_SLICE = 79; S_K2 = 80; S_G = 81; S_HALF = 82
S_MT = 84; S_PID = 86
V_LANE = 1
V_T = list(range(2, 12))
V_STAMP = 12; V_E = 13; V_EX = 14; V_ACC = 15
P16 = 16; V_SH = 30; V_L16 = 31
XQ = 32; V_TRADDR = 39; D = 40
ZB = [56, 60, 64]; ZL = 68
AB = [72, 76, 80, 84]
PW = 88; EW = 102
V_PWADDR = 101; V_DBADDR = 115
DACC = 116; DA = 132; DB = 148
QH = 152
V_AADDR = [159, 160]; V_AADDR0 = 161; V_DAADDR = [162, 163]; V_BWADDR = 164
G = DACC; UA = DA
PBT = 72
NV = 168

def fb(x): return '0x%08x' % struct.unpack('<I', struct.pack('<f', x))[0]

def gen(debug=None, POLL_STEP=6, NPRE=9):
    a = Asm()
    V = a.valu; S = a.salu
    t = V_T
    stamp_n = [0]
    a.stamp_names = []
    def stamp(name=''):
        if not debug: return
        a.wait_lds_all()
        a.raw('s_memtime s[98:99]')
        a.raw('s_waitcnt lgkmcnt(0)', kind='wait')
        a.valu(f'v_writelane_b32 v{V_STAMP}, s98, {stamp_n[0]}', [], [V_STAMP])
        a.stamp_names.append(name)
        stamp_n[0] += 1
    def execn(n):
        if n <= 32: S(f's_mov_b64 exec, 0x{(1<<n)-1:x}')
        else: S(f's_mov_b32 exec_hi, 0x{(1<<(n-32))-1:x}')
    def fullexec(): S('s_mov_b64 exec, -1')
    def rawbar(): a.raw('s_barrier', kind='barrier')
    BIG = t[6]
    def dbg_out():
        if not debug: return
        fullexec()
        stamp('end')
        a.valu(f'v_writelane_b32 v{V_STAMP}, s100, 62', [], [V_STAMP])
        a.raw('s_memrealtime s[98:99]')
        a.raw('s_waitcnt lgkmcnt(0)', kind='wait')
        a.valu(f'v_writelane_b32 v{V_STAMP}, s98, 63', [], [V_STAMP])
        V(f'v_lshlrev_b32 v{t[0]}, 2, v0', [0], [t[0]])
        S(f's_mul_i32 s{S_T0}, s2, 2304'); S(f's_add_u32 s{S_T0}, s{S_T0}, 0x100000')
        a.vmem(f'buffer_store_dword v{V_STAMP}, v{t[0]}, s[{S_WS}:{S_WS+3}], s{S_T0} offen', [V_STAMP, t[0]], [])
    S('s_cmp_ge_u32 s2, 256')
    a.raw('s_cbranch_scc1 L_end', kind='branch')
    if debug:
        a.raw('s_memrealtime s[100:101]')
        stamp('start')
    a.raw('s_load_dwordx16 s[4:19], s[0:1], 0')
    a.raw('s_load_dwordx4 s[20:23], s[0:1], 64')
    a.raw(f's_load_dwordx2 s[{S_WS}:{S_WS+1}], s[0:1], 80')
    V(f'v_and_b32 v{V_LANE}, 63, v0', [0], [V_LANE])
    V(f'v_lshrrev_b32 v{t[0]}, 6, v0', [0], [t[0]])
    V(f'v_readfirstlane_b32 s{S_WAVE}, v{t[0]}', [t[0]], [], swrites=[S_WAVE], readlane=True)
    S(f's_mov_b32 s{S_K7FFF}, 0x7fff7fff'); S(f's_mov_b32 s{S_K8000}, 0x80008000'); S(f's_mov_b32 s{S_HALF}, 0x38003800')
    S(f's_mov_b32 s{S_HI}, 0'); S(f's_mov_b32 s{S_HI+1}, -1')
    V(f'v_lshlrev_b32 v{V_L16}, 4, v{V_LANE}', [V_LANE], [V_L16])
    V(f'v_mov_b32 v{BIG}, 0x7f000000', [], [BIG])
    V(f'v_cmp_le_u32 vcc, 53, v{V_LANE}', [V_LANE], [], swrites=['vcc'])
    V(f'v_cndmask_b32 v{t[1]}, 0, 1, vcc', [], [t[1]], sreads=['vcc'])
    V(f'v_mul_u32_u24 v{t[2]}, 53, v{t[1]}', [t[1]], [t[2]])
    V(f'v_sub_u32 v{t[2]}, v{V_LANE}, v{t[2]}', [V_LANE, t[2]], [t[2]])
    V(f'v_add_u32 v{t[3]}, 11, v{V_LANE}', [V_LANE], [t[3]])
    V(f'v_lshrrev_b32 v{t[4]}, 1, v{t[2]}', [t[2]], [t[4]])
    V(f'v_min_u32 v{t[4]}, 25, v{t[4]}', [t[4]], [t[4]])
    V(f'v_lshlrev_b32 v{t[4]}, 2, v{t[4]}', [t[4]], [t[4]])
    V(f'v_mad_u32_u24 v{t[4]}, v{t[1]}, 52, v{t[4]}', [t[1], t[4]], [t[4]])
    V(f'v_mad_u32_u24 v{t[4]}, v{t[1]}, 52, v{t[4]}', [t[1], t[4]], [t[4]])
    V(f'v_lshrrev_b32 v{t[5]}, 1, v{t[3]}', [t[3]], [t[5]])
    V(f'v_min_u32 v{t[5]}, 25, v{t[5]}', [t[5]], [t[5]])
    V(f'v_lshlrev_b32 v{t[5]}, 2, v{t[5]}', [t[5]], [t[5]])
    V(f'v_add_u32 v{t[5]}, 104, v{t[5]}', [t[5]], [t[5]])
    V(f'v_and_b32 v{t[2]}, 1, v{t[2]}', [t[2]], [t[2]])
    V(f'v_lshlrev_b32 v{t[2]}, 4, v{t[2]}', [t[2]], [t[2]])
    V(f'v_and_b32 v{t[3]}, 1, v{t[3]}', [t[3]], [t[3]])
    V(f'v_lshlrev_b32 v{t[3]}, 4, v{t[3]}', [t[3]], [t[3]])
    S(f's_lshr_b32 s{S_SLICE}, s2, 3')
    S(f's_and_b32 s{S_T0}, s2, 7'); S(f's_cmp_eq_u32 s{S_T0}, 0'); S(f's_cselect_b32 s{S_PID}, s{S_SLICE}, 255')
    S(f's_lshl_b32 s{S_G}, s{S_PID}, 3'); S(f's_add_u32 s{S_G}, s{S_G}, s{S_WAVE}', sreads=[S_WAVE])
    a.raw('s_waitcnt lgkmcnt(0)', kind='wait')
    sizes = [425984, 32000, 210912, 312, 346112, 832, 832, 2, 8192, 256]
    srds = [S_IDX, S_TAB, S_WC, S_WCO, S_W1, S_B1, S_W2, S_BO, S_OUT, S_DBGF]
    for i in range(10):
        sb, sz = srds[i], sizes[i]
        S(f's_mov_b32 s{sb}, s{4+2*i}'); S(f's_and_b32 s{sb+1}, s{5+2*i}, 0xffff')
        S(f's_mov_b32 s{sb+2}, {sz}'); S(f's_mov_b32 s{sb+3}, 0x00020000')
    S(f's_and_b32 s{S_WS+1}, s{S_WS+1}, 0xffff'); S(f's_mov_b32 s{S_WS+2}, {0x1000000 if debug else WS_SIZE}'); S(f's_mov_b32 s{S_WS+3}, 0x00020000')
    S(f's_cmp_eq_u32 s{S_WAVE}, 8')
    a.raw('s_cbranch_scc1 L_loader', kind='branch')
    S(f's_lshl_b32 s{S_T0}, s2, 3'); S(f's_add_u32 s{S_T0}, s{S_T0}, s{S_WAVE}'); S(f's_mul_i32 s{S_T0}, s{S_T0}, 208')
    a.vmem(f'buffer_load_dword v{t[7]}, v{t[4]}, s[{S_IDX}:{S_IDX+3}], s{S_T0} offen', [t[4]], [t[7]])
    a.vmem(f'buffer_load_dword v{t[8]}, v{t[5]}, s[{S_IDX}:{S_IDX+3}], s{S_T0} offen', [t[5]], [t[8]])

    def dpp_max(m):
        for d in ('row_shr:1 row_mask:0xf', 'row_shr:2 row_mask:0xf', 'row_shr:4 row_mask:0xf', 'row_shr:8 row_mask:0xf', 'row_bcast:15 row_mask:0xa', 'row_bcast:31 row_mask:0xc'):
            V(f'v_max_u32_dpp v{m}, v{m}, v{m} {d} bank_mask:0xf', [m], [m], dpp=True)
    def rho_salu(sh, st1, st2, clamp=True):
        S(f's_cmp_ge_u32 s{sh}, 13'); S(f's_cselect_b32 s{st1}, 1, 0')
        S(f's_mul_i32 s{st2}, s{st1}, 13'); S(f's_sub_u32 s{sh}, s{sh}, s{st2}')
        S(f's_lshl_b32 s{st2}, s{st1}, 2')
        S(f's_lshl_b32 s{st1}, s{st1}, 4'); S(f's_add_u32 s{st1}, s{st1}, s{sh}')
        S(f's_add_u32 s{st2}, s{st2}, s{sh}'); S(f's_and_b32 s{sh}, s{sh}, 12'); S(f's_add_u32 s{sh}, s{sh}, s{st2}')
        if clamp: S(f's_min_u32 s{sh}, s{sh}, 25')
    def store_ew(sval, slayer_idx, p9, p10):
        S(f's_lshl_b32 s{slayer_idx}, s{slayer_idx}, 2'); S(f's_add_u32 s{slayer_idx}, s{slayer_idx}, {WS_EWT}')
        V(f'v_mov_b32 v{p9}, s{sval}', [], [p9], sreads=[sval]); V(f'v_mov_b32 v{p10}, s{slayer_idx}', [], [p10])
        S('s_mov_b64 exec, 1')
        a.vmem(f'buffer_store_dword v{p9}, v{p10}, s[{S_WS}:{S_WS+3}], 0 offen sc1', [p9, p10], [])
        fullexec()

    S(f's_cmp_ge_u32 s{S_PID}, {NP2}')
    a.cond_begin('s_cbranch_scc1 L_noprod', 'L_noprod')
    p = [72 + i for i in range(16)]
    S(f's_cmp_ge_u32 s{S_G}, 136'); a.raw('s_cbranch_scc1 L_prodv5', kind='branch')
    S(f's_cmp_ge_u32 s{S_G}, 32'); a.raw('s_cbranch_scc1 L_prodrow', kind='branch')
    S(f's_cmp_ge_u32 s{S_G}, 26'); a.raw('s_cbranch_scc1 L_noprod', kind='branch')
    MF = DACC; IF = DACC + 8; SD = D
    V(f'v_and_b32 v{p[0]}, 31, v{V_LANE}', [V_LANE], [p[0]])
    V(f'v_lshrrev_b32 v{p[1]}, 5, v{V_LANE}', [V_LANE], [p[1]])
    V(f'v_mul_u32_u24 v{p[2]}, 52, v{p[0]}', [p[0]], [p[2]])
    V(f'v_lshl_add_u32 v{p[2]}, v{p[1]}, 4, v{p[2]}', [p[1], p[2]], [p[2]])
    S(f's_mul_i32 s{S_T2}, s{S_G}, 1352')
    a.vmem(f'buffer_load_dwordx4 {vr(MF,4)}, v{p[2]}, s[{S_WC}:{S_WC+3}], s{S_T2} offen', [p[2]], R(MF, 4))
    a.vmem(f'buffer_load_dwordx4 {vr(MF+4,4)}, v{p[2]}, s[{S_WC}:{S_WC+3}], s{S_T2} offen offset:32', [p[2]], R(MF+4, 4))
    V(f'v_lshlrev_b32 v{p[3]}, 3, v{p[1]}', [p[1]], [p[3]])
    V(f'v_sub_u32 v{p[3]}, v{p[0]}, v{p[3]}', [p[0], p[3]], [p[3]])
    V(f'v_and_b32 v{p[4]}, 1, v{p[3]}', [p[3]], [p[4]])
    V(f'v_lshlrev_b32 v{p[4]}, 4, v{p[4]}', [p[4]], [p[4]])
    V(f'v_mov_b32 v{p[5]}, 0x3f80', [], [p[5]])
    V(f'v_lshlrev_b32 v{p[4]}, v{p[4]}, v{p[5]}', [p[4], p[5]], [p[4]])
    V(f'v_ashrrev_i32 v{p[3]}, 1, v{p[3]}', [p[3]], [p[3]])
    for ks in range(2):
        for r in range(4):
            V(f'v_cmp_eq_u32 vcc, {8*ks + r}, v{p[3]}', [p[3]], [], swrites=['vcc'])
            V(f'v_cndmask_b32 v{IF+4*ks+r}, 0, v{p[4]}, vcc', [p[4]], [IF+4*ks+r], sreads=['vcc'])
    V(f'v_lshrrev_b32 v{p[3]}, 1, v{p[0]}', [p[0]], [p[3]])
    V(f'v_and_b32 v{p[4]}, 1, v{p[0]}', [p[0]], [p[4]])
    V(f'v_subrev_u32 v{p[5]}, 1, v{p[3]}', [p[3]], [p[5]])
    V(f'v_mul_i32_i24 v{p[5]}, v{p[5]}, v{p[3]}', [p[5], p[3]], [p[5]])
    V(f'v_lshrrev_b32 v{p[5]}, 1, v{p[5]}', [p[5]], [p[5]])
    V(f'v_mul_u32_u24 v{p[6]}, 12, v{p[3]}', [p[3]], [p[6]])
    V(f'v_sub_u32 v{p[6]}, v{p[6]}, v{p[5]}', [p[6], p[5]], [p[6]])
    V(f'v_mul_u32_u24 v{p[5]}, 92, v{p[4]}', [p[4]], [p[5]])
    V(f'v_add_u32 v{p[6]}, v{p[6]}, v{p[5]}', [p[6], p[5]], [p[6]])
    V(f'v_lshl_add_u32 v{p[6]}, v{p[1]}, 1, v{p[6]}', [p[1], p[6]], [p[6]])
    S(f's_lshl_b32 s{S_T3}, s{S_WAVE}, 10'); S(f's_add_u32 s{S_T3}, s{S_T3}, {U[3] + 27136}')
    V(f'v_lshlrev_b32 v{p[6]}, 2, v{p[6]}', [p[6]], [p[6]])
    V(f'v_add_u32 v{p[6]}, s{S_T3}, v{p[6]}', [p[6]], [p[6]])
    V(f'v_lshlrev_b32 v{p[5]}, 1, v{p[1]}', [p[1]], [p[5]])
    V(f'v_sub_u32 v{p[3]}, v{p[3]}, v{p[5]}', [p[3], p[5]], [p[3]])
    V(f'v_cmp_gt_u32 vcc, 26, v{p[0]}', [p[0]], [], swrites=['vcc'])
    V(f'v_mov_b32 v{p[5]}, 100', [], [p[5]])
    V(f'v_cndmask_b32 v{p[3]}, v{p[5]}, v{p[3]}, vcc', [p[5], p[3]], [p[3]], sreads=['vcc'])
    V(f'v_mov_b32 v{p[7]}, 0', [], [p[7]])
    V(f'v_mov_b32 v{p[8]}, s{S_T3}', [], [p[8]])
    a.ds(f'ds_write_b32 v{p[8]}, v{p[7]} offset:364', [p[8], p[7]])
    a.ds(f'ds_write_b32 v{p[8]}, v{p[7]} offset:732', [p[8], p[7]])
    V(f'v_add_u32 v{p[8]}, s{S_T3}, v{V_L16}', [V_L16], [p[8]])
    V(f'v_cmp_le_u32 vcc, 23, v{V_LANE}', [V_LANE], [], swrites=['vcc'])
    V(f'v_cndmask_b32 v{p[9]}, 0, 1, vcc', [], [p[9]], sreads=['vcc'])
    S(f's_mov_b32 s{S_T0}, s{S_G}')
    rho_salu(S_T0, S_T1, S_T4)
    V(f'v_mul_u32_u24 v{p[9]}, {25*368}, v{p[9]}', [p[9]], [p[9]])
    V(f'v_add_u32 v{p[9]}, v{p[9]}, v{V_L16}', [p[9], V_L16], [p[9]])
    S(f's_mul_i32 s{S_T0}, s{S_T0}, 368')
    a.mfma('v_mfma_f32_32x32x16_bf16', SD, MF, IF, None, 8, 16)
    a.mfma('v_mfma_f32_32x32x16_bf16', SD, MF+4, IF+4, SD, 8, 16)
    a.mfma('v_mfma_f32_32x32x16_bf16', SD, IF, MF, SD, 8, 16)
    a.mfma('v_mfma_f32_32x32x16_bf16', SD, IF+4, MF+4, SD, 8, 16)
    m = p[10]
    V(f'v_max3_f32 v{m}, |v{SD}|, |v{SD+1}|, |v{SD+2}|', R(SD, 3), [m])
    for r in range(3, 15, 2):
        V(f'v_max3_f32 v{m}, |v{SD+r}|, |v{SD+r+1}|, v{m}', [SD+r, SD+r+1, m], [m])
    dpp_max(m)
    V(f'v_frexp_exp_i32_f32 v{m}, v{m}', [m], [m])
    V(f'v_readlane_b32 s{S_T4}, v{m}, 63', [m], [], swrites=[S_T4], readlane=True)
    S(f's_sub_i32 s{S_C}, 15, s{S_T4}', sreads=[S_T4])
    S(f's_sub_i32 s{S_T4}, s{S_T4}, 15')
    for r in range(14): V(f'v_ldexp_f32 v{SD+r}, v{SD+r}, s{S_C}', [SD+r], [SD+r])
    for rp in range(7):
        V(f'v_cvt_pk_f16_f32 v{MF+rp}, v{SD+2*rp}, v{SD+2*rp+1}', [SD+2*rp, SD+2*rp+1], [MF+rp])
    for rp in range(7):
        aa, bb = rp >> 1, rp & 1
        V(f'v_cmp_ge_i32 vcc, {4*aa+bb}, v{p[3]}', [p[3]], [], swrites=['vcc'])
        if aa == 3: S('s_mov_b32 vcc_hi, 0', sreads=['vcc'])
        S('s_mov_b64 exec, vcc', sreads=['vcc'])
        a.ds(f'ds_write_b32 v{p[6]}, v{MF+rp} offset:{4*(4*aa+bb)}', [p[6], MF+rp])
        fullexec()
    a.raw('s_waitcnt lgkmcnt(0)', kind='wait')
    a.ds(f'ds_read_b128 {vr(IF,4)}, v{p[8]}', [p[8]], R(IF, 4))
    execn(46)
    a.vmem(f'buffer_store_dwordx4 {vr(IF,4)}, v{p[9]}, s[{S_WS}:{S_WS+3}], s{S_T0} offen sc1', [p[9]] + R(IF, 4), [], wide_store=R(IF, 4))
    fullexec()
    store_ew(S_T4, S_T1, p[11], p[12])
    a.raw('s_branch L_noprod', kind='branch')
    a.label('L_prodrow')
    PR = DACC; PA = DACC + 8
    S(f's_sub_u32 s{S_T0}, s{S_G}, 32')
    S(f's_mul_i32 s{S_T2}, s{S_T0}, 1352'); S(f's_add_u32 s{S_T2}, s{S_T2}, 35152')
    V(f'v_cmp_le_u32 vcc, 43, v{V_LANE}', [V_LANE], [], swrites=['vcc'])
    V(f'v_cndmask_b32 v{p[0]}, 0, 1, vcc', [], [p[0]], sreads=['vcc'])
    V(f'v_mul_u32_u24 v{p[2]}, 12, v{p[0]}', [p[0]], [p[2]])
    V(f'v_sub_u32 v{p[2]}, v{V_L16}, v{p[2]}', [V_L16, p[2]], [p[2]])
    a.vmem(f'buffer_load_dwordx4 {vr(PR,4)}, v{p[2]}, s[{S_WC}:{S_WC+3}], s{S_T2} offen', [p[2]], R(PR, 4))
    V(f'v_min_u32 v{p[3]}, 21, v{V_LANE}', [V_LANE], [p[3]])
    V(f'v_lshlrev_b32 v{p[4]}, 4, v{p[3]}', [p[3]], [p[4]])
    a.vmem(f'buffer_load_dwordx4 {vr(PR+4,4)}, v{p[4]}, s[{S_WC}:{S_WC+3}], s{S_T2} offen offset:1012', [p[4]], R(PR+4, 4))
    S(f's_mul_i32 s{S_T1}, s{S_T0}, 2521'); S(f's_lshr_b32 s{S_T1}, s{S_T1}, 16')
    S(f's_mul_i32 s{S_T3}, s{S_T1}, 26'); S(f's_sub_u32 s{S_T0}, s{S_T0}, s{S_T3}')
    rho_salu(S_T0, S_T3, S_T4)
    V(f'v_mul_u32_u24 v{p[7]}, {25*688}, v{p[0]}', [p[0]], [p[7]])
    V(f'v_add_u32 v{p[7]}, v{p[7]}, v{V_L16}', [p[7], V_L16], [p[7]])
    V(f'v_add_u32 v{p[8]}, {26*688+336}, v{p[4]}', [p[4]], [p[8]])
    S(f's_mul_i32 s{S_T0}, s{S_T0}, 688'); S(f's_mul_i32 s{S_T2}, s{S_T1}, {IMG}'); S(f's_add_u32 s{S_T2}, s{S_T2}, s{S_T0}'); S(f's_add_u32 s{S_T2}, s{S_T2}, {WS_IMG[1]}')
    S(f's_lshl_b32 s{S_T1}, s{S_T1}, 5'); S(f's_add_u32 s{S_T1}, s{S_T1}, s{S_T3}'); S(f's_add_u32 s{S_T1}, s{S_T1}, 32')
    for i in range(8): V(f'v_and_b32 v{PA+i}, s{S_K7FFF}, v{PR+i}', [PR+i], [PA+i])
    m = p[11]
    V(f'v_pk_maximum3_f16 v{m}, v{PA}, v{PA+1}, v{PA+2}', R(PA, 3), [m])
    V(f'v_pk_maximum3_f16 v{m}, v{m}, v{PA+3}, v{PA+4}', [m, PA+3, PA+4], [m])
    V(f'v_pk_maximum3_f16 v{m}, v{m}, v{PA+5}, v{PA+6}', [m, PA+5, PA+6], [m])
    V(f'v_pk_max_u16 v{m}, v{m}, v{PA+7}', [m, PA+7], [m])
    V(f'v_max_u16_sdwa v{m}, v{m}, v{m} dst_sel:DWORD dst_unused:UNUSED_PAD src0_sel:WORD_1 src1_sel:WORD_0', [m], [m], opsel=True)
    dpp_max(m)
    V(f'v_readlane_b32 s{S_T0}, v{m}, 63', [m], [], swrites=[S_T0], readlane=True)
    S(f's_lshr_b32 s{S_T0}, s{S_T0}, 7', sreads=[S_T0], swrites=[S_T0])
    S(f's_sub_i32 s{S_T0}, s{S_T0}, 30'); S(f's_max_i32 s{S_T0}, s{S_T0}, 0')
    S(f's_mul_i32 s{S_C}, s{S_T0}, 0x800080'); S(f's_sub_i32 s{S_T0}, s{S_T0}, 112')
    for i in range(8): V(f'v_pk_sub_u16 v{PA+i}, v{PA+i}, s{S_C} clamp', [PA+i], [PA+i])
    for i in range(8): V(f'v_lshlrev_b32 v{PA+i}, 3, v{PA+i}', [PA+i], [PA+i])
    for i in range(8): V(f'v_bfi_b32 v{PA+i}, s{S_K8000}, v{PR+i}, v{PA+i}', [PA+i, PR+i], [PA+i])
    a.vmem(f'buffer_store_dwordx4 {vr(PA,4)}, v{p[7]}, s[{S_WS}:{S_WS+3}], s{S_T2} offen sc1', [p[7]] + R(PA, 4), [], wide_store=R(PA, 4))
    execn(22)
    a.vmem(f'buffer_store_dwordx4 {vr(PA+4,4)}, v{p[8]}, s[{S_WS}:{S_WS+3}], s{S_T2} offen sc1', [p[8]] + R(PA+4, 4), [], wide_store=R(PA+4, 4))
    fullexec()
    store_ew(S_T0, S_T1, p[9], p[10])
    a.raw('s_branch L_noprod', kind='branch')
    a.label('L_prodv5')
    S(f's_cmp_ge_u32 s{S_G}, 162'); a.raw('s_cbranch_scc1 L_noprod', kind='branch')
    LA = DACC; LB = DACC + 4; AC = DACC + 8
    S(f's_sub_u32 s{S_T0}, s{S_G}, 136')
    S(f's_mul_i32 s{S_T2}, s{S_T0}, 52'); S(f's_add_u32 s{S_T2}, s{S_T2}, {5*35152}')
    V(f'v_lshrrev_b32 v{p[0]}, 2, v{V_LANE}', [V_LANE], [p[0]])
    V(f'v_and_b32 v{p[1]}, 3, v{V_LANE}', [V_LANE], [p[1]])
    V(f'v_mul_u32_u24 v{p[2]}, 0x548, v{p[0]}', [p[0]], [p[2]])
    V(f'v_lshl_add_u32 v{p[2]}, v{p[1]}, 4, v{p[2]}', [p[1], p[2]], [p[2]])
    a.vmem(f'buffer_load_dwordx4 {vr(LA,4)}, v{p[2]}, s[{S_WC}:{S_WC+3}], s{S_T2} offen', [p[2]], R(LA, 4))
    S(f's_add_u32 s{S_T2}, s{S_T2}, {16*1352}')
    a.vmem(f'buffer_load_dwordx4 {vr(LB,4)}, v{p[2]}, s[{S_WC}:{S_WC+3}], s{S_T2} offen', [p[2]], R(LB, 4))
    V(f'v_lshlrev_b32 v{p[3]}, 1, v{p[0]}', [p[0]], [p[3]])
    a.vmem(f'buffer_load_ushort v{p[4]}, v{p[3]}, s[{S_WCO}:{S_WCO+3}], 0 offen offset:260', [p[3]], [p[4]])
    a.vmem(f'buffer_load_ushort v{p[5]}, v{p[3]}, s[{S_WCO}:{S_WCO+3}], 0 offen offset:292', [p[3]], [p[5]])
    rho_salu(S_T0, S_T1, S_T4, clamp=False)
    S(f's_lshl_b32 s{S_T0}, s{S_T0}, 4'); S(f's_add_u32 s{S_T0}, s{S_T0}, {WS_V5F}')
    V(f'v_lshlrev_b32 v{p[6]}, 10, v{p[1]}', [p[1]], [p[6]])
    V(f'v_cmp_ne_u32 vcc, 3, v{p[1]}', [p[1]], [], swrites=['vcc'])
    for r in (1, 2, 3):
        V(f'v_cndmask_b32 v{LA+r}, 0, v{LA+r}, vcc', [LA+r], [LA+r], sreads=['vcc'])
        V(f'v_cndmask_b32 v{LB+r}, 0, v{LB+r}, vcc', [LB+r], [LB+r], sreads=['vcc'])
    V(f'v_lshlrev_b32 v{p[4]}, 16, v{p[4]}', [p[4]], [p[4]])
    V(f'v_lshlrev_b32 v{p[5]}, 16, v{p[5]}', [p[5]], [p[5]])
    for r in range(4):
        V(f'v_lshlrev_b32 v{p[7]}, 16, v{LA+r}', [LA+r], [p[7]])
        V(f'v_and_b32 v{p[8]}, 0xffff0000, v{LA+r}', [LA+r], [p[8]])
        V(f'v_lshlrev_b32 v{p[9]}, 16, v{LB+r}', [LB+r], [p[9]])
        V(f'v_and_b32 v{p[10]}, 0xffff0000, v{LB+r}', [LB+r], [p[10]])
        V(f'v_mul_f32 v{AC+2*r}, v{p[4]}, v{p[7]}', [p[4], p[7]], [AC+2*r])
        V(f'v_mul_f32 v{AC+2*r+1}, v{p[4]}, v{p[8]}', [p[4], p[8]], [AC+2*r+1])
        V(f'v_fmac_f32 v{AC+2*r}, v{p[5]}, v{p[9]}', [AC+2*r, p[5], p[9]], [AC+2*r])
        V(f'v_fmac_f32 v{AC+2*r+1}, v{p[5]}, v{p[10]}', [AC+2*r+1, p[5], p[10]], [AC+2*r+1])
    for d in (4, 8):
        for e in range(8):
            V(f'v_add_f32_dpp v{AC+e}, v{AC+e}, v{AC+e} row_ror:{d} row_mask:0xf bank_mask:0xf', [AC+e], [AC+e], dpp=True)
    for op in ('v_permlane16_swap_b32', 'v_permlane32_swap_b32'):
        for e in range(8): V(f'v_mov_b32 v{p[7+e]}, v{AC+e}', [AC+e], [p[7+e]])
        for e in range(8): V(f'{op} v{AC+e}, v{p[7+e]}', [AC+e, p[7+e]], [AC+e, p[7+e]], permlane=True)
        for e in range(8): V(f'v_add_f32 v{AC+e}, v{AC+e}, v{p[7+e]}', [AC+e, p[7+e]], [AC+e])
    for r in range(4):
        V(f'v_cvt_pk_bf16_f32 v{LA+r}, v{AC+2*r}, v{AC+2*r+1}', [AC+2*r, AC+2*r+1], [LA+r])
        V(f'v_lshlrev_b32 v{p[7]}, 16, v{LA+r}', [LA+r], [p[7]])
        V(f'v_and_b32 v{p[8]}, 0xffff0000, v{LA+r}', [LA+r], [p[8]])
        V(f'v_sub_f32 v{p[7]}, v{AC+2*r}, v{p[7]}', [AC+2*r, p[7]], [p[7]])
        V(f'v_sub_f32 v{p[8]}, v{AC+2*r+1}, v{p[8]}', [AC+2*r+1, p[8]], [p[8]])
        V(f'v_cvt_pk_bf16_f32 v{LB+r}, v{p[7]}, v{p[8]}', [p[7], p[8]], [LB+r])
    execn(4)
    a.vmem(f'buffer_store_dwordx4 {vr(LA,4)}, v{p[6]}, s[{S_WS}:{S_WS+3}], s{S_T0} offen sc1', [p[6]] + R(LA, 4), [], wide_store=R(LA, 4))
    a.vmem(f'buffer_store_dwordx4 {vr(LB,4)}, v{p[6]}, s[{S_WS}:{S_WS+3}], s{S_T0} offen offset:512 sc1', [p[6]] + R(LB, 4), [], wide_store=R(LB, 4))
    fullexec()
    a.nop(2)
    a.cond_end()
    a.nop(12)
    stamp('prod')
    V(f'v_lshl_add_u32 v{t[7]}, v{t[7]}, 5, v{t[2]}', [t[7], t[2]], [t[7]])
    V(f'v_lshl_add_u32 v{t[8]}, v{t[8]}, 5, v{t[3]}', [t[8], t[3]], [t[8]])
    S(f's_mul_i32 s{S_T3}, s{S_WAVE}, 1696'); S(f's_add_u32 s{S_T3}, s{S_T3}, {X0S}')
    S(f's_mov_b32 m0, s{S_T3}', m0=True)
    a.vmem(f'buffer_load_dwordx4 v{t[7]}, s[{S_TAB}:{S_TAB+3}], 0 offen lds', [t[7]], [], tag='gather', dma=True)
    S(f's_add_u32 m0, s{S_T3}, 1024', m0=True)
    execn(42)
    a.vmem(f'buffer_load_dwordx4 v{t[8]}, s[{S_TAB}:{S_TAB+3}], 0 offen lds', [t[8]], [], tag='gather', dma=True)
    fullexec()
    V(f'v_lshrrev_b32 v{t[0]}, 4, v0', [0], [t[0]])
    V(f'v_and_b32 v{t[1]}, 15, v0', [0], [t[1]])
    V(f'v_mad_u32_u24 v{t[0]}, v{t[0]}, 13, v{t[1]}', [t[0], t[1]], [t[0]])
    V(f'v_lshlrev_b32 v{t[0]}, 1, v{t[0]}', [t[0]], [t[0]])
    V(f'v_cmp_gt_u32 vcc, 13, v{t[1]}', [t[1]], [], swrites=['vcc'])
    V(f'v_cndmask_b32 v{t[0]}, v{BIG}, v{t[0]}, vcc', [BIG, t[0]], [t[0]], sreads=['vcc'])
    S(f's_cmp_gt_u32 s{S_WAVE}, 2')
    a.cond_begin('s_cbranch_scc1 L_nopw', 'L_nopw')
    a.vmem(f'buffer_load_ushort v{PW}, v{t[0]}, s[{S_WCO}:{S_WCO+3}], 0 offen', [t[0]], [PW])
    a.cond_end()
    V(f'v_mov_b32 v{t[7]}, 0', [], [t[7]])
    a.vmem(f'buffer_load_ushort v{V_ACC}, v{t[7]}, s[{S_BO}:{S_BO+3}], 0 offen', [t[7]], [V_ACC])
    V(f'v_and_b32 v{t[0]}, 31, v{V_LANE}', [V_LANE], [t[0]])
    V(f'v_min_u32 v{t[4]}, 25, v{t[0]}', [t[0]], [t[4]])
    V(f'v_lshrrev_b32 v{t[1]}, 5, v{V_LANE}', [V_LANE], [t[1]])
    V(f'v_mad_u32_u24 v{t[4]}, v{t[1]}, 26, v{t[4]}', [t[1], t[4]], [t[4]])
    V(f'v_cmp_gt_u32 vcc, 25, v{t[0]}', [t[0]], [], swrites=['vcc'])
    V(f'v_cmp_eq_u32 s[{S_MT}:{S_MT+1}], 28, v{t[0]}', [t[0]], [], swrites=[S_MT, S_MT+1])
    S(f's_or_b64 vcc, vcc, s[{S_MT}:{S_MT+1}]', sreads=['vcc', S_MT])
    V(f'v_mov_b32 v{t[5]}, 0x40000', [], [t[5]])
    V(f'v_mul_u32_u24 v{V_AADDR[0]}, 0x2b0, v{t[4]}', [t[4]], [V_AADDR[0]])
    V(f'v_cndmask_b32 v{V_AADDR[0]}, v{t[5]}, v{V_AADDR[0]}, vcc', [t[5], V_AADDR[0]], [V_AADDR[0]])
    V(f'v_add_u32 v{V_AADDR[1]}, {U[2]}, v{V_AADDR[0]}', [V_AADDR[0]], [V_AADDR[1]])
    V(f'v_mul_u32_u24 v{V_AADDR0}, 0x170, v{t[4]}', [t[4]], [V_AADDR0])
    V(f'v_cndmask_b32 v{V_AADDR0}, v{t[5]}, v{V_AADDR0}, vcc', [t[5], V_AADDR0], [V_AADDR0])
    V(f'v_lshlrev_b32 v{t[1]}, 6, v{t[1]}', [t[1]], [t[1]])
    V(f'v_add_u32 v{V_PWADDR}, {EWT}, v{t[1]}', [t[1]], [V_PWADDR])
    V(f'v_mov_b32 v{ZL+3}, 0', [], [ZL+3])
    V(f'v_bfe_u32 v{t[0]}, v{V_LANE}, 4, 1', [V_LANE], [t[0]])
    V(f'v_mul_u32_u24 v{t[0]}, 848, v{t[0]}', [t[0]], [t[0]])
    V(f'v_and_b32 v{t[1]}, 15, v{V_LANE}', [V_LANE], [t[1]])
    V(f'v_lshl_add_u32 v{t[0]}, v{t[1]}, 3, v{t[0]}', [t[1], t[0]], [t[0]])
    V(f'v_add_u32 v{V_TRADDR}, s{S_T3}, v{t[0]}', [t[0]], [V_TRADDR])
    V(f'v_mul_u32_u24 v{t[0]}, 848, v{t[1]}', [t[1]], [t[0]])
    V(f'v_lshrrev_b32 v{t[4]}, 4, v{V_LANE}', [V_LANE], [t[4]])
    V(f'v_lshl_add_u32 v{t[0]}, v{t[4]}, 4, v{t[0]}', [t[4], t[0]], [t[0]])
    V(f'v_add_u32 v{V_DBADDR}, {X0S}, v{t[0]}', [t[0]], [V_DBADDR])
    V(f'v_bfe_u32 v{t[0]}, v{V_LANE}, 2, 2', [V_LANE], [t[0]])
    V(f'v_lshl_add_u32 v{t[0]}, v{t[4]}, 3, v{t[0]}', [t[4], t[0]], [t[0]])
    V(f'v_mul_u32_u24 v{t[0]}, 832, v{t[0]}', [t[0]], [t[0]])
    V(f'v_and_b32 v{t[5]}, 3, v{V_LANE}', [V_LANE], [t[5]])
    V(f'v_lshl_add_u32 v{t[0]}, v{t[5]}, 3, v{t[0]}', [t[5], t[0]], [t[0]])
    V(f'v_and_b32 v{t[5]}, 1, v{t[4]}', [t[4]], [t[5]])
    V(f'v_xor_b32 v{t[5]}, s{S_WAVE}, v{t[5]}', [t[5]], [t[5]])
    V(f'v_lshl_add_u32 v{V_DAADDR[0]}, v{t[5]}, 5, v{t[0]}', [t[5], t[0]], [V_DAADDR[0]])
    V(f'v_add_u32 v{V_DAADDR[1]}, {U[2]}, v{V_DAADDR[0]}', [V_DAADDR[0]], [V_DAADDR[1]])
    S(f's_lshl_b32 s{S_T0}, s{S_WAVE}, 5'); S(f's_add_u32 s{S_T0}, s{S_T0}, {BW}')
    V(f'v_lshlrev_b32 v{t[4]}, 3, v{t[4]}', [t[4]], [t[4]])
    V(f'v_add_u32 v{V_BWADDR}, s{S_T0}, v{t[4]}', [t[4]], [V_BWADDR])

    P = POLL_STEP
    CSLOT = [c % 4 for c in range(P + 3)]
    i0slot = (P - 1) % 4; i1slot = P % 4
    free2 = [(P + 1) % 4, (P + 2) % 4]
    for c in range(P + 3, 13): CSLOT.append(free2[(c - (P + 3)) % 2])
    after = {b: [] for b in range(0, 20)}
    for c in range(3, P + 3): after[c - 3].append(('w1', c))
    after[P].append(('img', 0)); after[P].append(('ewt',)); after[P].append(('ipf',))
    after[P + 1].append(('img', 1))
    after[P - 1].insert(0, ('fl', 0, NP1))
    after[12].append(('fl', NP1, NP2))
    for c in range(P + 3, 13): after[c - 1].append(('w1', c))
    ISLOT = [i0slot, i1slot, None, None, None]
    ISLOT[2] = i0slot; ISLOT[3] = CSLOT[11]; ISLOT[4] = CSLOT[12]
    V(f'v_add_u32 v{V_AADDR0}, {U[i0slot]}, v{V_AADDR0}', [V_AADDR0], [V_AADDR0])
    stamp('issued')

    def x0_ops():
        ops = []
        PB = PBT
        def rd():
            for q in range(7):
                a.ds(f'ds_read_b64_tr_b16 {vr(PB+2*q,2)}, v{V_TRADDR} offset:{128*q}', [V_TRADDR], R(PB+2*q, 2))
            S(f's_cmp_gt_u32 s{S_WAVE}, 2')
            a.cond_begin('s_cbranch_scc1 L_nopw2', 'L_nopw2')
            V(f'v_lshlrev_b32 v{PW}, 16, v{PW}', [PW], [PW])
            V(f'v_lshlrev_b32 v{t[0]}, 2, v0', [0], [t[0]])
            V(f'v_add_u32 v{t[0]}, {POOLW}, v{t[0]}', [t[0]], [t[0]])
            V(f'v_cmp_gt_u32 vcc, 0xa0, v0', [0], [], swrites=['vcc'])
            S('s_mov_b64 exec, vcc', sreads=['vcc'])
            a.ds(f'ds_write_b32 v{t[0]}, v{PW}', [t[0], PW])
            fullexec()
            a.cond_end()
            V(f'v_lshlrev_b32 v{V_ACC}, 16, v{V_ACC}', [V_ACC], [V_ACC])
            V(f'v_and_b32 v{t[0]}, 47, v{V_LANE}', [V_LANE], [t[0]])
            V(f'v_cmp_eq_u32 vcc, 0, v{t[0]}', [t[0]], [], swrites=['vcc'])
            V(f'v_cndmask_b32 v{V_ACC}, 0, v{V_ACC}, vcc', [V_ACC], [V_ACC], sreads=['vcc'])
        ops.append(rd)
        def cv():
            for v in range(13): V(f'v_and_b32 v{P16+v}, s{S_K7FFF}, v{PB+v}', [PB+v], [P16+v])
            m = t[0]
            V(f'v_pk_maximum3_f16 v{m}, v{P16}, v{P16+1}, v{P16+2}', R(P16, 3), [m])
            for v in range(3, 13, 2):
                V(f'v_pk_maximum3_f16 v{m}, v{m}, v{P16+v}, v{P16+v+1}', [m, P16+v, P16+v+1], [m])
            V(f'v_max_u16_sdwa v{m}, v{m}, v{m} dst_sel:DWORD dst_unused:UNUSED_PAD src0_sel:WORD_1 src1_sel:WORD_0', [m], [m], opsel=True)
            V(f'v_lshrrev_b32 v{m}, 7, v{m}', [m], [m])
            V(f'v_subrev_u32 v{m}, 21, v{m}', [m], [m])
            V(f'v_max_i32 v{m}, 0, v{m}', [m], [m])
            V(f'v_subrev_u32 v{V_EX}, 112, v{m}', [m], [V_EX])
            V(f'v_mul_u32_u24 v{m}, 0x800080, v{m}', [m], [m])
            for v in range(13): V(f'v_pk_sub_u16 v{P16+v}, v{P16+v}, v{m} clamp', [P16+v, m], [P16+v])
        ops.append(cv)
        def cv2():
            for v in range(13): V(f'v_lshlrev_b32 v{P16+v}, 3, v{P16+v}', [P16+v], [P16+v])
            for v in range(13): V(f'v_bfi_b32 v{P16+v}, s{S_K8000}, v{PB+v}, v{P16+v}', [P16+v, PB+v], [P16+v])
            V(f'v_mov_b32 v{P16+13}, 0', [], [P16+13])
        ops.append(cv2)
        def qq():
            V(f'v_mov_b32 v{t[0]}, 0x05040100', [], [t[0]])
            V(f'v_mov_b32 v{t[1]}, 0x07060302', [], [t[1]])
            V(f'v_cndmask_b32 v{t[0]}, v{t[0]}, v{t[1]}, s[{S_HI}:{S_HI+1}]', [t[0], t[1]], [t[0]])
            for q in range(7):
                V(f'v_perm_b32 v{XQ+q}, v{P16+2*q+1}, v{P16+2*q}, v{t[0]}', [P16+2*q+1, P16+2*q, t[0]], [XQ+q])
            for q in range(7):
                V(f'v_pk_mul_f16 v{QH+q}, v{XQ+q}, s{S_HALF}', [XQ+q], [QH+q])
            V(f'v_lshlrev_b32 v{V_E}, 1, v{V_EX}', [V_EX], [V_E])
        ops.append(qq)
        return ops

    def dnn_ops(c):
        ops = []
        sl = CSLOT[c]; ad = V_DAADDR[sl >> 1]; boff = IMG * (sl & 1)
        ops.append(lambda: a.ds(f'ds_read_b128 {vr(DB,4)}, v{V_DBADDR} offset:{64*c}', [V_DBADDR], R(DB, 4)))
        for q in range(3):
            ops.append(lambda q=q: a.ds(f'ds_read_b64_tr_b16 {vr(DA+4*q,2)}, v{ad} offset:{boff+256*q}', [ad], R(DA+4*q, 2)))
            ops.append(lambda q=q: a.ds(f'ds_read_b64_tr_b16 {vr(DA+4*q+2,2)}, v{ad} offset:{boff+256*q+3328}', [ad], R(DA+4*q+2, 2)))
        def rd4():
            S(f's_cmp_gt_u32 s{S_WAVE}, 1')
            a.cond_begin(f's_cbranch_scc1 L_dr{c}', f'L_dr{c}')
            a.ds(f'ds_read_b64_tr_b16 {vr(DA+12,2)}, v{ad} offset:{boff+768}', [ad], R(DA+12, 2))
            a.ds(f'ds_read_b64_tr_b16 {vr(DA+14,2)}, v{ad} offset:{boff+768+3328}', [ad], R(DA+14, 2))
            a.cond_end()
        ops.append(rd4)
        mf = []
        for q in range(3):
            mf.append(lambda q=q: a.mfma('v_mfma_f32_16x16x32_bf16', DACC+4*q, DA+4*q, DB, DACC+4*q, 4, 4))
        def mf4():
            S(f's_cmp_gt_u32 s{S_WAVE}, 1')
            a.cond_begin(f's_cbranch_scc1 L_dm{c}', f'L_dm{c}')
            a.mfma('v_mfma_f32_16x16x32_bf16', DACC+12, DA+12, DB, DACC+12, 4, 4)
            a.cond_end()
        mf.append(mf4)
        return ops, mf
    def dnn_epilogue_ops():
        ops = []
        K1 = -2.0 * 1.4426950408889634 * 0.7978845608028654
        K2 = K1 * 0.044715
        acc = DB; W2T = DB + 2
        ops.append(lambda: S(f's_mov_b32 s{S_K2}, {fb(K2)}'))
        ops.append(lambda: V(f'v_mov_b32 v{DB+1}, {fb(K1)}', [], [DB+1]))
        ops.append(lambda: V(f'v_mov_b32 v{acc}, 0', [], [acc]))
        def one(q):
            o = []
            xs = [DACC + 4*q + r for r in range(4)]
            ts = [DA + 4*q + r for r in range(4)]
            o.append(lambda: a.ds(f'ds_read_b64 {vr(W2T,2)}, v{V_BWADDR} offset:{832+256*q}', [V_BWADDR], R(W2T, 2)))
            for x, tt in zip(xs, ts): o.append(lambda x=x, tt=tt: V(f'v_mul_f32 v{tt}, v{x}, v{x}', [x], [tt]))
            for x, tt in zip(xs, ts): o.append(lambda x=x, tt=tt: V(f'v_fma_f32 v{tt}, v{tt}, s{S_K2}, v{DB+1}', [tt, DB+1], [tt]))
            for x, tt in zip(xs, ts): o.append(lambda x=x, tt=tt: V(f'v_mul_f32 v{tt}, v{tt}, v{x}', [tt, x], [tt]))
            for x, tt in zip(xs, ts): o.append(lambda x=x, tt=tt: V(f'v_exp_f32 v{tt}, v{tt}', [tt], [tt], trans=True))
            for x, tt in zip(xs, ts): o.append(lambda x=x, tt=tt: V(f'v_add_f32 v{tt}, 1.0, v{tt}', [tt], [tt]))
            for x, tt in zip(xs, ts): o.append(lambda x=x, tt=tt: V(f'v_rcp_f32 v{tt}, v{tt}', [tt], [tt], trans=True))
            for x, tt in zip(xs, ts): o.append(lambda x=x, tt=tt: V(f'v_mul_f32 v{tt}, v{tt}, v{x}', [tt, x], [tt]))
            o.append(lambda: V(f'v_lshlrev_b32 v{xs[0]}, 16, v{W2T}', [W2T], [xs[0]]))
            o.append(lambda: V(f'v_and_b32 v{xs[1]}, 0xffff0000, v{W2T}', [W2T], [xs[1]]))
            o.append(lambda: V(f'v_lshlrev_b32 v{xs[2]}, 16, v{W2T+1}', [W2T+1], [xs[2]]))
            o.append(lambda: V(f'v_and_b32 v{xs[3]}, 0xffff0000, v{W2T+1}', [W2T+1], [xs[3]]))
            for x, tt in zip(xs, ts): o.append(lambda x=x, tt=tt: V(f'v_fmac_f32 v{acc}, v{tt}, v{x}', [acc, tt, x], [acc]))
            return o
        for q in range(3): ops += one(q)
        def q4():
            S(f's_cmp_gt_u32 s{S_WAVE}, 1')
            a.cond_begin('s_cbranch_scc1 L_dq4', 'L_dq4')
            for o in one(3): o()
            a.cond_end()
        ops.append(q4)
        def pd_write():
            for op in ('v_permlane16_swap_b32', 'v_permlane32_swap_b32'):
                V(f'v_mov_b32 v{DB+1}, v{acc}', [acc], [DB+1])
                V(f'{op} v{acc}, v{DB+1}', [acc, DB+1], [acc, DB+1], permlane=True)
                V(f'v_add_f32 v{acc}, v{acc}, v{DB+1}', [acc, DB+1], [acc])
            V(f'v_lshlrev_b32 v{t[0]}, 5, v{V_LANE}', [V_LANE], [t[0]])
            S(f's_lshl_b32 s{S_T0}, s{S_WAVE}, 2'); S(f's_add_u32 s{S_T0}, s{S_T0}, {PD}')
            V(f'v_add_u32 v{t[0]}, s{S_T0}, v{t[0]}', [t[0]], [t[0]])
            execn(16)
            a.ds(f'ds_write_b32 v{t[0]}, v{acc}', [t[0], acc])
            fullexec()
        ops.append(pd_write)
        return ops
    def u5_ops():
        ops = []
        def rd():
            V(f'v_add_u32 v{t[0]}, {V5F}, v{V_L16}', [V_L16], [t[0]])
            for k in range(4):
                a.ds(f'ds_read_b128 {vr(UA+4*k,4)}, v{t[0]} offset:{1024*k}', [t[0]], R(UA+4*k, 4))
            for k in range(4):
                a.ds(f'ds_read_b128 {vr(G+4*k,4)}, v{V_PWADDR} offset:{POOLW-EWT+128*4+16*k}', [V_PWADDR], R(G+4*k, 4))
        ops.append(rd)
        for k in range(4):
            def rb(k=k):
                a.ds(f'ds_read_b64_tr_b16 {vr(DB,2)}, v{V_TRADDR} offset:{256*k}', [V_TRADDR], R(DB, 2))
                if k < 3: a.ds(f'ds_read_b64_tr_b16 {vr(DB+2,2)}, v{V_TRADDR} offset:{256*k+128}', [V_TRADDR], R(DB+2, 2))
            ops.append(rb)
            ops.append(lambda: None); ops.append(lambda: None)
            if k == 3:
                def zz():
                    for r in (1, 2, 3): V(f'v_mov_b32 v{DB+r}, 0', [], [DB+r])
                ops.append(zz)
            ops.append(lambda k=k: a.mfma('v_mfma_f32_32x32x16_bf16', G, UA+4*k, DB, G, 8, 16))
            ops.append(lambda: None)
        return ops

    def boundary_ops(l):
        ops = []
        s_ = ZB[2]; mx = ZB[2]+1; my = ZB[2]+2
        W = PW if l < 4 else G
        for r in range(13):
            ops.append(lambda r=r: V(f'v_ldexp_f32 v{D+r}, v{D+r}, v{EW+r}', [D+r, EW+r], [D+r]))
        if l < 4:
            ops.append(lambda: V(f'v_max3_f32 v{mx}, |v{D}|, |v{D+1}|, |v{D+2}|', R(D, 3), [mx]))
            for r in range(3, 13, 2):
                ops.append(lambda r=r: V(f'v_max3_f32 v{mx}, |v{D+r}|, |v{D+r+1}|, v{mx}', [D+r, D+r+1, mx], [mx]))
            ops.append(lambda: V(f'v_mov_b32 v{my}, v{mx}', [mx], [my]))
        ops.append(lambda: V(f'v_mul_f32 v{s_}, v{D}, v{W}', [D, W], [s_]))
        ops.append(lambda: V(f'v_fmac_f32 v{s_}, v{D+1}, v{W+1}', [s_, D+1, W+1], [s_]))
        if l < 4:
            ops.append(lambda: V(f'v_permlane32_swap_b32 v{mx}, v{my}', [mx, my], [mx, my], permlane=True))
        ops.append(lambda: V(f'v_fmac_f32 v{s_}, v{D+2}, v{W+2}', [s_, D+2, W+2], [s_]))
        if l < 4:
            ops.append(lambda: V(f'v_max_f32 v{mx}, v{mx}, v{my}', [mx, my], [mx]))
            ops.append(lambda: V(f'v_frexp_exp_i32_f32 v{mx}, v{mx}', [mx], [mx]))
            ops.append(lambda: V(f'v_sub_u32 v{V_SH}, 8, v{mx}', [mx], [V_SH]))
        for r in range(3, 13):
            ops.append(lambda r=r: V(f'v_fmac_f32 v{s_}, v{D+r}, v{W+r}', [s_, D+r, W+r], [s_]))
        if l < 4:
            for r in range(13):
                ops.append(lambda r=r: V(f'v_ldexp_f32 v{D+r}, v{D+r}, v{V_SH}', [D+r, V_SH], [D+r]))
            for q in range(7):
                hi = D + 2*q + 1 if q < 6 else D + 12
                ops.append(lambda q=q, hi=hi: V(f'v_cvt_pk_f16_f32 v{XQ+q}, v{D+2*q}, v{hi}', [D+2*q, hi], [XQ+q]))
        ops.append(lambda: V(f'v_ldexp_f32 v{s_}, v{s_}, v{V_E}', [s_, V_E], [s_]))
        ops.append(lambda: V(f'v_add_f32 v{V_ACC}, v{V_ACC}, v{s_}', [V_ACC, s_], [V_ACC]))
        if l < 4:
            ops.append(lambda: V(f'v_sub_u32 v{V_E}, v{V_E}, v{V_SH}', [V_E, V_SH], [V_E]))
            ops.append(lambda: V(f'v_add_u32 v{V_E}, v{V_E}, v{V_EX}', [V_E, V_EX], [V_E]))
        if l == 0:
            ops.append(lambda: V(f'v_mov_b32 v{ZL+1}, 0', [], [ZL+1]))
            ops.append(lambda: V(f'v_mov_b32 v{ZL+2}, 0', [], [ZL+2]))
        return ops

    NK = [23, 43, 43, 43, 43]
    KBASE = [0, 23, 66, 109, 152]
    def a_read(l, k):
        b = AB[(KBASE[l] + k) % 4]
        if l == 0: ad = V_AADDR0; off = 16 * k
        else:
            sl = ISLOT[l]; ad = V_AADDR[sl >> 1]; off = IMG * (sl & 1) + 16 * k
        a.ds(f'ds_read_b128 {vr(b,4)}, v{ad} offset:{off}', [ad], R(b, 4))
    PAIRS0 = [(u, v) for u in range(13) for v in range(u, 13)]
    def zbuf(l, k):
        if k == NK[l] - 1: return ZL
        return ZB[k % 3]
    def z_ops(l, k):
        ops = []
        zb = zbuf(l, k)
        for e in range(4):
            q = 4 * k + e
            if l == 0:
                if q >= 91: break
                i, v = PAIRS0[q]; src = (QH if i == v else XQ) + (i >> 1)
            else:
                if q >= 169: break
                i, v = divmod(q, 13); src = XQ + (i >> 1)
            o = i & 1
            ops.append(lambda zb=zb, e=e, src=src, v=v, o=o: V(f'v_pk_mul_f16 v{zb+e}, v{src}, v{P16+v} op_sel:[{o},0] op_sel_hi:[{o},1]', [src, P16+v], [zb+e]))
        return ops
    def pwrd(l):
        for base, off in ((PW, POOLW - EWT + 128 * l), (EW, 128 * l)):
            if base == PW and l == 4: continue
            for k in range(3):
                a.ds(f'ds_read_b128 {vr(base+4*k,4)}, v{V_PWADDR} offset:{off+16*k}', [V_PWADDR], R(base+4*k, 4))
            a.ds(f'ds_read_b32 v{base+12}, v{V_PWADDR} offset:{off+48}', [V_PWADDR], [base+12])

    x0o = x0_ops()
    for c in range(NPRE):
        a.comment(f'======== DNN step {c}')
        if c == 0: a.wait_vm_all()
        a.barrier()
        if c == 0:
            S(f's_cmp_ge_u32 s{S_PID}, {NP2}')
            a.cond_begin('s_cbranch_scc1 L_noflag', 'L_noflag')
            S(f's_cmp_lg_u32 s{S_WAVE}, 0')
            a.raw('s_cbranch_scc1 L_noflag', kind='branch')
            S(f's_lshl_b32 s{S_T0}, s{S_PID}, 2')
            V(f'v_mov_b32 v{t[0]}, 1', [], [t[0]]); V(f'v_mov_b32 v{t[1]}, s{S_T0}', [], [t[1]])
            S('s_mov_b64 exec, 1')
            a.vmem(f'buffer_store_dword v{t[0]}, v{t[1]}, s[{S_DBGF}:{S_DBGF+3}], 0 offen sc1', [t[0], t[1]], [])
            fullexec()
            a.cond_end()
        if c in (0, 4, P, NPRE - 1): stamp(f'B{c}')
        rd, mf = dnn_ops(c)
        if c == 0:
            BT = D
            for q in range(4):
                a.ds(f'ds_read_b64 {vr(BT+2*q,2)}, v{V_BWADDR} offset:{256*q}', [V_BWADDR], R(BT+2*q, 2))
        for o in rd: o()
        if c == 0:
            for q in range(4):
                V(f'v_lshlrev_b32 v{DACC+4*q}, 16, v{BT+2*q}', [BT+2*q], [DACC+4*q])
                V(f'v_and_b32 v{DACC+4*q+1}, 0xffff0000, v{BT+2*q}', [BT+2*q], [DACC+4*q+1])
                V(f'v_lshlrev_b32 v{DACC+4*q+2}, 16, v{BT+2*q+1}', [BT+2*q+1], [DACC+4*q+2])
                V(f'v_and_b32 v{DACC+4*q+3}, 0xffff0000, v{BT+2*q+1}', [BT+2*q+1], [DACC+4*q+3])
        if c == NPRE - 1:
            for k in range(3): a_read(0, k)
        for o in mf: o()
        if 1 <= c <= 4: x0o[c - 1]()
    rem = list(range(NPRE, 13))
    pos = {}
    cand = [(0, 8), (0, 17), (1, 6), (1, 16), (1, 26)]
    cand = cand[len(cand) - len(rem):] if len(rem) <= len(cand) else None
    for c, pp in zip(rem, cand): pos[pp] = c
    pos[(1, 36)] = 13
    pos[(2, 32)] = 14
    b_img1 = max([c for pp, c in pos.items() if pp <= (0, 19)] + [NPRE - 1])
    b_l0done = min(c for pp, c in pos.items() if pp >= (1, 0))
    after[b_l0done].append(('img', 2))
    after[12].append(('img', 3))
    after[13].append(('img', 4)); after[13].append(('v5f',))
    need = {b: [] for b in range(0, 15)}
    for c in range(13): need[c].append(f'w1_{c}')
    need[0].append('bw')
    need[NPRE - 1] += ['img_0', 'ewt']
    need[b_img1].append('img_1')
    need[13].append('img_2')
    need[14] += ['img_3', 'img_4', 'v5f']
    epi = dnn_epilogue_ops()
    pend_mf = []; fq = []
    last_dnn_pos = max(pp for pp, c in pos.items() if c == 12)
    for l in range(5):
        a.comment(f'======== layer {l}')
        stamp(f'L{l}')
        if l > 0:
            for o in boundary_ops(l - 1): o()
        for o in z_ops(l, 0): o()
        for k in range(NK[l]):
            if (l, k) in pos:
                c = pos[(l, k)]
                if c == 14: a.wait_lds_all()
                rawbar()
                if c <= 12:
                    rd, mf = dnn_ops(c)
                    for o in rd: o()
                    pend_mf += [None, None] + mf
            if k == 6: pwrd(l)
            if (l, k) == (last_dnn_pos[0], last_dnn_pos[1] + 7): fq += epi
            if (l, k) == (4, 4): fq += u5_ops()
            if k + 3 < NK[l]: a_read(l, k + 3)
            elif l < 4: a_read(l + 1, k + 3 - NK[l])
            zo = z_ops(l, k + 1) if k + 1 < NK[l] else []
            a.mfma('v_mfma_f32_32x32x16_f16', D, AB[(KBASE[l] + k) % 4], zbuf(l, k), D if k > 0 else None, 8, 16)
            for o in zo: o()
            if pend_mf:
                o = pend_mf.pop(0)
                if o: o()
            for _ in range(3 if l in (1, 2) else 1):
                if fq: fq.pop(0)()
            if (l, k) == (2, 31): assert not fq
    assert not pend_mf and not fq
    stamp('fin')
    V(f'v_bfe_u32 v{t[5]}, v{V_LANE}, 4, 1', [V_LANE], [t[5]])
    V(f'v_and_b32 v{t[6]}, 15, v{V_LANE}', [V_LANE], [t[6]])
    V(f'v_lshl_add_u32 v{t[5]}, v{t[5]}, 3, v{t[6]}', [t[5], t[6]], [t[5]])
    V(f'v_lshlrev_b32 v{t[5]}, 2, v{t[5]}', [t[5]], [t[5]])
    S(f's_lshl_b32 s{S_T0}, s{S_WAVE}, 6'); S(f's_add_u32 s{S_T0}, s{S_T0}, {PD}')
    V(f'v_add_u32 v{t[5]}, s{S_T0}, v{t[5]}', [t[5]], [t[5]])
    V(f'v_and_b32 v{t[6]}, 40, v{V_LANE}', [V_LANE], [t[6]])
    V(f'v_cmp_eq_u32 vcc, 0, v{t[6]}', [t[6]], [], swrites=['vcc'])
    V(f'v_mov_b32 v{t[6]}, 0x30000', [], [t[6]])
    V(f'v_cndmask_b32 v{t[5]}, v{t[6]}, v{t[5]}, vcc', [t[5], t[6]], [t[5]], sreads=['vcc'])
    a.ds(f'ds_read_b32 v{t[6]}, v{t[5]}', [t[5]], [t[6]])
    for o in boundary_ops(4): o()
    A_ = V_ACC
    V(f'v_add_f32 v{A_}, v{A_}, v{t[6]}', [A_, t[6]], [A_])
    for d in (8, 4, 2, 1):
        V(f'v_add_f32_dpp v{A_}, v{A_}, v{A_} row_ror:{d} row_mask:0xf bank_mask:0xf', [A_], [A_], dpp=True)
    V(f'v_mov_b32 v{t[5]}, v{A_}', [A_], [t[5]])
    V(f'v_permlane32_swap_b32 v{A_}, v{t[5]}', [A_, t[5]], [A_, t[5]], permlane=True)
    V(f'v_add_f32 v{A_}, v{A_}, v{t[5]}', [A_, t[5]], [A_])
    V(f'v_cvt_pk_bf16_f32 v{A_}, v{A_}, v{A_}', [A_], [A_])
    V(f'v_lshrrev_b32 v{t[5]}, 3, v{V_LANE}', [V_LANE], [t[5]])
    S(f's_lshl_b32 s{S_T0}, s2, 5'); S(f's_lshl_b32 s{S_T1}, s{S_WAVE}, 2'); S(f's_add_u32 s{S_T0}, s{S_T0}, s{S_T1}')
    S('s_mov_b64 exec, 0x10001')
    a.vmem(f'buffer_store_short v{A_}, v{t[5]}, s[{S_OUT}:{S_OUT+3}], s{S_T0} offen', [A_, t[5]], [])
    dbg_out()
    a.raw('s_endpgm')

    a.label('L_loader')
    a.lds = []; a.vm = []; a.valu_w = {}; a.mfma_w = {}; a.mfma_c = {}; a.trans_w = {}; a.store_src = {}; a.opsel_w = {}
    stamp_n[0] = 1
    names_c = a.stamp_names; a.stamp_names = []
    LX = 16; LM = 17; LF = 18; LFA = 19; PF = 40
    V(f'v_xor_b32 v{LX}, 32, v{V_L16}', [V_L16], [LX])
    V(f'v_cndmask_b32 v{LM}, v{V_L16}, v{LX}, s[{S_HI}:{S_HI+1}]', [V_L16, LX], [LM])
    V(f'v_lshlrev_b32 v{LFA}, 2, v{V_LANE}', [V_LANE], [LFA])
    def l_w1(c):
        for pc in range(26):
            if pc % 4 == 0:
                S(f's_mov_b32 m0, {U[CSLOT[c]] + 1024*pc}', m0=True)
                S(f's_mov_b32 s{S_T2}, {c*26624 + 1024*pc}')
            q = pc % 13
            vo = V_L16 if q < 6 else (LM if q == 6 else LX)
            a.vmem(f'buffer_load_dwordx4 v{vo}, s[{S_W1}:{S_W1+3}], s{S_T2} offen offset:{1024*(pc%4)} lds', [vo], [], tag=f'w1_{c}', dma=True)
    def l_lin(tag, srd, src, dst, nbytes, sc=''):
        n = (nbytes + 1023) // 1024
        for pc in range(n):
            if pc % 4 == 0:
                S(f's_mov_b32 m0, {dst + 1024*pc}', m0=True)
                S(f's_mov_b32 s{S_T2}, {src + 1024*pc}')
            lanes = min(64, (nbytes - 1024*pc) // 16)
            if lanes < 64: execn(lanes)
            a.vmem(f'buffer_load_dwordx4 v{V_L16}, s[{srd}:{srd+3}], s{S_T2} offen offset:{1024*(pc%4)} {sc} lds', [V_L16], [], tag=tag, dma=True)
            if lanes < 64: fullexec()
    def l_flag(lo, hi):
        mk = ((1 << hi) - 1) & ~((1 << lo) - 1)
        S(f's_mov_b64 exec, 0x{mk:x}')
        a.vmem(f'buffer_load_dword v{LF}, v{LFA}, s[{S_DBGF}:{S_DBGF+3}], 0 offen sc1', [LFA], [LF])
        fullexec()
    def l_poll(lo, hi, lab):
        mk = ((1 << hi) - 1) & ~((1 << lo) - 1)
        S(f's_mov_b64 exec, 0x{mk:x}')
        S(f's_mov_b32 s{S_T0}, 0')
        a._wait_regs([LF])
        a.label(f'L_poll{lab}')
        a.raw(f'v_cmp_ne_u32 vcc, 1, v{LF}', kind='valu')
        a.raw(f's_cbranch_vccz L_polldone{lab}', kind='branch')
        a.raw(f'buffer_load_dword v{LF}, v{LFA}, s[{S_DBGF}:{S_DBGF+3}], 0 offen sc1', kind='vmem')
        S(f's_add_u32 s{S_T0}, s{S_T0}, 1')
        S(f's_cmp_lt_u32 s{S_T0}, 0x40000')
        a.raw('s_waitcnt vmcnt(0)', kind='wait')
        a.raw(f's_cbranch_scc1 L_poll{lab}', kind='branch')
        a.label(f'L_polldone{lab}')
        fullexec()
    def do(act):
        k = act[0]
        if k == 'w1': l_w1(act[1])
        elif k == 'fl': l_flag(act[1], act[2])
        elif k == 'img':
            l = act[1]
            if l == 0: l_poll(0, NP1, 'a'); stamp('polled'); l_lin('img_0', S_WS, WS_IMG0, U[ISLOT[0]], IMG0, 'sc1')
            else: l_lin(f'img_{l}', S_WS, WS_IMG[l], U[ISLOT[l]], IMG, 'sc1')
        elif k == 'ewt': l_lin('ewt', S_WS, WS_EWT, EWT, 640, 'sc1')
        elif k == 'v5f': l_poll(NP1, NP2, 'b'); l_lin('v5f', S_WS, WS_V5F, V5F, 4096, 'sc1')
        elif k == 'ipf':
            S(f's_mul_i32 s{S_T0}, s{S_SLICE}, 4480'); S(f's_add_u32 s{S_T0}, s{S_T0}, {WS_IMG[1]}')
            for q in range(5):
                if q == 4: S(f's_add_u32 s{S_T0}, s{S_T0}, 4096'); execn(24)
                a.vmem(f'buffer_load_dwordx4 {vr(PF+4*q,4)}, v{V_L16}, s[{S_WS}:{S_WS+3}], s{S_T0} offen offset:{1024*(q%4)} sc1', [V_L16], R(PF+4*q, 4))
            fullexec()
    S(f's_lshl_b32 s{S_T4}, s{S_SLICE}, 10')
    a.vmem(f'buffer_load_dwordx4 {vr(PF,4)}, v{V_L16}, s[{S_TAB}:{S_TAB+3}], s{S_T4} offen', [V_L16], R(PF, 4))
    S(f's_mul_i32 s{S_T4}, s{S_SLICE}, 10816')
    for q in range(11):
        if q % 4 == 0 and q: S(f's_add_u32 s{S_T4}, s{S_T4}, 4096')
        a.vmem(f'buffer_load_dwordx4 {vr(PF+4+4*q,4)}, v{V_L16}, s[{S_W1}:{S_W1+3}], s{S_T4} offen offset:{1024*(q%4)}', [V_L16], R(PF+4+4*q, 4))
    l_lin('bw', S_B1, 0, BW, 832); l_lin('bw', S_W2, 0, BW + 832, 832)
    for c in range(3): l_w1(c)
    for b in range(15):
        for tg in need[b]: a.wait_vm_tag(tg)
        stamp(f'lb{b}')
        rawbar()
        for act in after[b]: do(act)
    dbg_out()
    a.label('L_end')
    a.raw('s_endpgm')
    a.stamp_names = (names_c, a.stamp_names)
    return a

HEADER = open('cdna_kernels/' + NAME + '.s.ref').read().split('; Override launch geometry')[0]
def wrap(a):
    s = HEADER
    s += f'; @launch grid=(256,1,1) block=(576,1,1) lds={LDS_TOTAL}\n'
    s += '.amdgcn_target "amdgcn-amd-amdhsa--gfx950"\n.text\n'
    s += f'.globl {NAME}_kernel\n.p2align 8\n.type {NAME}_kernel,@function\n{NAME}_kernel:\n'
    s += a.text()
    s += f'''.section .rodata,"a"
.p2align 6
.amdhsa_kernel {NAME}_kernel
  .amdhsa_next_free_vgpr {NV}
  .amdhsa_next_free_sgpr 102
  .amdhsa_accum_offset {NV}
  .amdhsa_group_segment_fixed_size 0
  .amdhsa_kernarg_size 88
  .amdhsa_user_sgpr_count 2
  .amdhsa_user_sgpr_kernarg_segment_ptr 1
  .amdhsa_system_sgpr_workgroup_id_x 1
  .amdhsa_float_denorm_mode_32 3
.end_amdhsa_kernel
'''
    return s

if __name__ == '__main__':
    import argparse
    ap = argparse.ArgumentParser()
    ap.add_argument('out', nargs='?', default='cdna_kernels/' + NAME + '.s')
    ap.add_argument('--dbg', action='store_true')
    ap.add_argument('--poll', type=int, default=6)
    ap.add_argument('--npre', type=int, default=9)
    args = ap.parse_args()
    a = gen(debug=args.dbg, POLL_STEP=args.poll, NPRE=args.npre)
    open(args.out, 'w').write(wrap(a))
    print(a.count, 'lines', len(a.lines), a.stamp_names)
```

```python
import sys, struct
sys.path.insert(0, 'gen')
from asmfw import *

NAME = 'standalone__deep_cross_xdeepfm__recsys'
IMG = 35776; IMG0 = 19136
U = [IMG * i for i in range(4)]
CH = 7168
CPOS = [5, 6, 0, 1, 2, 3, 4, 7, 8, 9, 10, 5, 6]
TAB = 78848; IDXB = 110848
I0B = 143104 - IMG0
X16 = 143104
V5F = 156672; EWT = 160768; POOLW = 161408; BW = 162048
PDL = V5F
PD = BW
SYNC = 163712
LDS_TOTAL = 163776
WS_IMG0 = 0
WS_IMG = [None] + [19200 + IMG * i for i in range(4)]
WS_V5F = 19200 + 4 * IMG
WS_EWT = WS_V5F + 4096
WS_INB = 0x40000
WS_SIZE = WS_INB + 256 * 1024
NP1 = 17; NP2 = 21
S_IDX, S_TAB, S_WC, S_WCO, S_W1, S_B1, S_W2, S_BO, S_OUT, S_DBGF, S_WS = [24 + 4 * i for i in range(11)]
S_WAVE = 68; S_T0 = 69; S_T1 = 70; S_T2 = 71; S_T3 = 72; S_T4 = 73
S_HI = 74; S_C = 76; S_K7FFF = 77; S_K8000 = 78; S_Q = 79; S_K2 = 80; S_G = 81; S_HALF = 82
S_ROT = 83; S_MT = 84; S_PID = 86; S_CB = 87; S_XT = 88; S_T0L = 89; S_KO = 90; S_KN = 91
SM = [4, 6, 8, 10, 12, 14, 16]
V_LANE = 1
V_T = list(range(2, 12))
V_STAMP = 12; V_E = 13; V_EX = 14; V_ACC = 15
P16 = 16; V_SH = 30; V_L16 = 31
XQ = 32; V_TRADDR = 39; D = 40
ZB = [56, 60, 64]; ZL = 68
AB = [72, 76, 80, 84, 4, 8]; NAB = 6; PFD = 5
PW = 88; EW = 102
V_PWADDR = 101; V_DBADDR = 115
DACC = 116; DA = 132; DB = 148
QH = 152
V_AADDR = [159, 160]; V_AADDR0 = 161; V_DAADDR = 162; V_DBK = 163; V_BWADDR = 164; V_SYNC = 165; V_RDY = 166; V_DONEA = 167
G = DACC; UA = DA
PBT = 148
DA2 = 88; DB2 = 104
NV = 168

import os
PX = int(os.environ.get('PX', '0'))
def fb(x): return '0x%08x' % struct.unpack('<I', struct.pack('<f', x))[0]

def gen(debug=None, PRIO=1, SPLITEPI=1, LPRE=24):
    a = Asm()
    V = a.valu; S = a.salu
    t = V_T
    stamp_n = [0]
    a.stamp_names = []
    def stamp(name=''):
        if not debug: return
        a.wait_lds_all()
        a.raw('s_memtime s[98:99]')
        a.raw('s_waitcnt lgkmcnt(0)', kind='wait')
        a.valu(f'v_writelane_b32 v{V_STAMP}, s98, {stamp_n[0]}', [], [V_STAMP])
        a.stamp_names.append(name)
        stamp_n[0] += 1
    def execn(n):
        if n <= 32: S(f's_mov_b64 exec, 0x{(1<<n)-1:x}')
        else: S(f's_mov_b32 exec_hi, 0x{(1<<(n-32))-1:x}')
    def fullexec(): S('s_mov_b64 exec, -1')
    def rawbar(): a.raw('s_barrier', kind='barrier')
    def dbg_out():
        if not debug: return
        fullexec()
        stamp('end')
        a.valu(f'v_writelane_b32 v{V_STAMP}, s100, 62', [], [V_STAMP])
        a.raw('s_memrealtime s[98:99]')
        a.raw('s_waitcnt lgkmcnt(0)', kind='wait')
        a.valu(f'v_writelane_b32 v{V_STAMP}, s98, 63', [], [V_STAMP])
        V(f'v_lshlrev_b32 v{t[0]}, 2, v0', [0], [t[0]])
        S(f's_mul_i32 s{S_T0}, s2, 2304'); S(f's_add_u32 s{S_T0}, s{S_T0}, 0x100000')
        a.vmem(f'buffer_store_dword v{V_STAMP}, v{t[0]}, s[{S_WS}:{S_WS+3}], s{S_T0} offen', [V_STAMP, t[0]], [])
    S('s_cmp_ge_u32 s2, 256')
    a.raw('s_cbranch_scc1 L_end', kind='branch')
    if debug:
        a.raw('s_memrealtime s[100:101]')
        stamp('start')
    a.raw('s_load_dwordx16 s[4:19], s[0:1], 0')
    a.raw('s_load_dwordx4 s[20:23], s[0:1], 64')
    a.raw(f's_load_dwordx2 s[{S_WS}:{S_WS+1}], s[0:1], 80')
    V(f'v_and_b32 v{V_LANE}, 63, v0', [0], [V_LANE])
    V(f'v_lshrrev_b32 v{t[0]}, 6, v0', [0], [t[0]])
    V(f'v_readfirstlane_b32 s{S_WAVE}, v{t[0]}', [t[0]], [], swrites=[S_WAVE], readlane=True)
    S(f's_mov_b32 s{S_K7FFF}, 0x7fff7fff'); S(f's_mov_b32 s{S_K8000}, 0x80008000'); S(f's_mov_b32 s{S_HALF}, 0x38003800')
    S(f's_mov_b32 s{S_HI}, 0'); S(f's_mov_b32 s{S_HI+1}, -1')
    V(f'v_lshlrev_b32 v{V_L16}, 4, v{V_LANE}', [V_LANE], [V_L16])
    S(f's_lshr_b32 s{S_T0}, s2, 3'); S(f's_and_b32 s{S_Q}, s{S_T0}, 3'); S(f's_lshr_b32 s{S_T1}, s{S_T0}, 2')
    S(f's_lshr_b32 s{S_ROT}, s{S_T1}, 1'); S(f's_add_u32 s{S_ROT}, s{S_ROT}, s{S_T1}')
    S(f's_andn2_b32 s{S_CB}, s2, 0x18')
    if PX < 8:
        S(f's_and_b32 s{S_T1}, s2, 7'); S(f's_cmp_eq_u32 s{S_T1}, {PX}'); S(f's_cselect_b32 s{S_PID}, s{S_T0}, 255')
    else: S(f's_mov_b32 s{S_PID}, s2')
    S(f's_lshl_b32 s{S_G}, s{S_PID}, 3'); S(f's_add_u32 s{S_G}, s{S_G}, s{S_WAVE}', sreads=[S_WAVE])
    S(f's_min_u32 s{S_T0L}, s{S_Q}, 1'); S(f's_mul_i32 s{S_T1}, s{S_Q}, 6'); S(f's_add_u32 s{S_T0L}, s{S_T0L}, s{S_T1}')
    S(f's_cmp_lt_u32 s{S_WAVE}, 4'); S(f's_cselect_b32 s{S_XT}, 1, 0'); S(f's_cmp_lt_u32 s{S_Q}, 2'); S(f's_cselect_b32 s{S_XT}, s{S_XT}, 0')
    a.raw('s_waitcnt lgkmcnt(0)', kind='wait')
    sizes = [425984, 32000, 210912, 312, 346112, 832, 832, 2, 8192, 256]
    srds = [S_IDX, S_TAB, S_WC, S_WCO, S_W1, S_B1, S_W2, S_BO, S_OUT, S_DBGF]
    for i in range(10):
        sb, sz = srds[i], sizes[i]
        S(f's_mov_b32 s{sb}, s{4+2*i}'); S(f's_and_b32 s{sb+1}, s{5+2*i}, 0xffff')
        S(f's_mov_b32 s{sb+2}, {sz}'); S(f's_mov_b32 s{sb+3}, 0x00020000')
    S(f's_and_b32 s{S_WS+1}, s{S_WS+1}, 0xffff'); S(f's_mov_b32 s{S_WS+2}, {0x1000000 if debug else WS_SIZE}'); S(f's_mov_b32 s{S_WS+3}, 0x00020000')
    S(f's_cmp_eq_u32 s{S_WAVE}, 8')
    a.raw('s_cbranch_scc1 L_loader', kind='branch')

    def dpp_max(m):
        for d in ('row_shr:1 row_mask:0xf', 'row_shr:2 row_mask:0xf', 'row_shr:4 row_mask:0xf', 'row_shr:8 row_mask:0xf', 'row_bcast:15 row_mask:0xa', 'row_bcast:31 row_mask:0xc'):
            V(f'v_max_u32_dpp v{m}, v{m}, v{m} {d} bank_mask:0xf', [m], [m], dpp=True)
    def rho_salu(sh, st1, st2, clamp=True):
        S(f's_cmp_ge_u32 s{sh}, 13'); S(f's_cselect_b32 s{st1}, 1, 0')
        S(f's_mul_i32 s{st2}, s{st1}, 13'); S(f's_sub_u32 s{sh}, s{sh}, s{st2}')
        S(f's_lshl_b32 s{st2}, s{st1}, 2')
        S(f's_lshl_b32 s{st1}, s{st1}, 4'); S(f's_add_u32 s{st1}, s{st1}, s{sh}')
        S(f's_add_u32 s{st2}, s{st2}, s{sh}'); S(f's_and_b32 s{sh}, s{sh}, 12'); S(f's_add_u32 s{sh}, s{sh}, s{st2}')
        if clamp: S(f's_add_u32 s{sh}, s{sh}, 1'); S(f's_cmp_eq_u32 s{sh}, 29'); S(f's_cselect_b32 s{sh}, 0, s{sh}')

    S(f's_cmp_ge_u32 s{S_PID}, {NP2}')
    a.cond_begin('s_cbranch_scc1 L_noprod', 'L_noprod')
    p = [72 + i for i in range(16)]
    S(f's_cmp_ge_u32 s{S_G}, 136'); a.raw('s_cbranch_scc1 L_prodv5', kind='branch')
    S(f's_cmp_ge_u32 s{S_G}, 32'); a.raw('s_cbranch_scc1 L_prodrow', kind='branch')
    S(f's_cmp_ge_u32 s{S_G}, 26'); a.raw('s_cbranch_scc1 L_prodfin', kind='branch')
    MF = 116; IF = 124; SD = 40
    V(f'v_and_b32 v{p[0]}, 31, v{V_LANE}', [V_LANE], [p[0]])
    V(f'v_lshrrev_b32 v{p[1]}, 5, v{V_LANE}', [V_LANE], [p[1]])
    V(f'v_mul_u32_u24 v{p[2]}, 52, v{p[0]}', [p[0]], [p[2]])
    V(f'v_lshl_add_u32 v{p[2]}, v{p[1]}, 4, v{p[2]}', [p[1], p[2]], [p[2]])
    S(f's_mul_i32 s{S_T2}, s{S_G}, 1352')
    a.vmem(f'buffer_load_dwordx4 {vr(MF,4)}, v{p[2]}, s[{S_WC}:{S_WC+3}], s{S_T2} offen', [p[2]], R(MF, 4))
    a.vmem(f'buffer_load_dwordx4 {vr(MF+4,4)}, v{p[2]}, s[{S_WC}:{S_WC+3}], s{S_T2} offen offset:32', [p[2]], R(MF+4, 4))
    V(f'v_lshlrev_b32 v{p[3]}, 3, v{p[1]}', [p[1]], [p[3]])
    V(f'v_sub_u32 v{p[3]}, v{p[0]}, v{p[3]}', [p[0], p[3]], [p[3]])
    V(f'v_and_b32 v{p[4]}, 1, v{p[3]}', [p[3]], [p[4]])
    V(f'v_lshlrev_b32 v{p[4]}, 4, v{p[4]}', [p[4]], [p[4]])
    V(f'v_mov_b32 v{p[5]}, 0x3f80', [], [p[5]])
    V(f'v_lshlrev_b32 v{p[4]}, v{p[4]}, v{p[5]}', [p[4], p[5]], [p[4]])
    V(f'v_ashrrev_i32 v{p[3]}, 1, v{p[3]}', [p[3]], [p[3]])
    for ks in range(2):
        for r in range(4):
            V(f'v_cmp_eq_u32 vcc, {8*ks + r}, v{p[3]}', [p[3]], [], swrites=['vcc'])
            V(f'v_cndmask_b32 v{IF+4*ks+r}, 0, v{p[4]}, vcc', [p[4]], [IF+4*ks+r], sreads=['vcc'])
    V(f'v_lshrrev_b32 v{p[3]}, 1, v{p[0]}', [p[0]], [p[3]])
    V(f'v_and_b32 v{p[4]}, 1, v{p[0]}', [p[0]], [p[4]])
    V(f'v_subrev_u32 v{p[5]}, 1, v{p[3]}', [p[3]], [p[5]])
    V(f'v_mul_i32_i24 v{p[5]}, v{p[5]}, v{p[3]}', [p[5], p[3]], [p[5]])
    V(f'v_lshrrev_b32 v{p[5]}, 1, v{p[5]}', [p[5]], [p[5]])
    V(f'v_mul_u32_u24 v{p[6]}, 12, v{p[3]}', [p[3]], [p[6]])
    V(f'v_sub_u32 v{p[6]}, v{p[6]}, v{p[5]}', [p[6], p[5]], [p[6]])
    V(f'v_mul_u32_u24 v{p[5]}, 92, v{p[4]}', [p[4]], [p[5]])
    V(f'v_add_u32 v{p[6]}, v{p[6]}, v{p[5]}', [p[6], p[5]], [p[6]])
    V(f'v_lshl_add_u32 v{p[6]}, v{p[1]}, 1, v{p[6]}', [p[1], p[6]], [p[6]])
    S(f's_lshl_b32 s{S_T3}, s{S_WAVE}, 10'); S(f's_add_u32 s{S_T3}, s{S_T3}, {I0B}')
    V(f'v_lshlrev_b32 v{p[6]}, 2, v{p[6]}', [p[6]], [p[6]])
    V(f'v_add_u32 v{p[6]}, s{S_T3}, v{p[6]}', [p[6]], [p[6]])
    V(f'v_lshlrev_b32 v{p[5]}, 1, v{p[1]}', [p[1]], [p[5]])
    V(f'v_sub_u32 v{p[3]}, v{p[3]}, v{p[5]}', [p[3], p[5]], [p[3]])
    V(f'v_cmp_gt_u32 vcc, 26, v{p[0]}', [p[0]], [], swrites=['vcc'])
    V(f'v_mov_b32 v{p[5]}, 100', [], [p[5]])
    V(f'v_cndmask_b32 v{p[3]}, v{p[5]}, v{p[3]}, vcc', [p[5], p[3]], [p[3]], sreads=['vcc'])
    V(f'v_mov_b32 v{p[7]}, 0', [], [p[7]])
    V(f'v_mov_b32 v{p[8]}, s{S_T3}', [], [p[8]])
    a.ds(f'ds_write_b32 v{p[8]}, v{p[7]} offset:364', [p[8], p[7]])
    a.ds(f'ds_write_b32 v{p[8]}, v{p[7]} offset:732', [p[8], p[7]])
    V(f'v_add_u32 v{p[8]}, s{S_T3}, v{V_L16}', [V_L16], [p[8]])
    V(f'v_cmp_le_u32 vcc, 23, v{V_LANE}', [V_LANE], [], swrites=['vcc'])
    V(f'v_cndmask_b32 v{p[9]}, 0, 1, vcc', [], [p[9]], sreads=['vcc'])
    S(f's_mov_b32 s{S_T0}, s{S_G}')
    rho_salu(S_T0, S_T1, S_T4)
    V(f'v_mul_u32_u24 v{p[9]}, {25*368}, v{p[9]}', [p[9]], [p[9]])
    V(f'v_add_u32 v{p[9]}, v{p[9]}, v{V_L16}', [p[9], V_L16], [p[9]])
    S(f's_mul_i32 s{S_T0}, s{S_T0}, 368')
    a.mfma('v_mfma_f32_32x32x16_bf16', SD, MF, IF, None, 8, 16)
    a.mfma('v_mfma_f32_32x32x16_bf16', SD, MF+4, IF+4, SD, 8, 16)
    a.mfma('v_mfma_f32_32x32x16_bf16', SD, IF, MF, SD, 8, 16)
    a.mfma('v_mfma_f32_32x32x16_bf16', SD, IF+4, MF+4, SD, 8, 16)
    m = p[10]
    V(f'v_max3_f32 v{m}, |v{SD}|, |v{SD+1}|, |v{SD+2}|', R(SD, 3), [m])
    for r in range(3, 15, 2):
        V(f'v_max3_f32 v{m}, |v{SD+r}|, |v{SD+r+1}|, v{m}', [SD+r, SD+r+1, m], [m])
    dpp_max(m)
    V(f'v_frexp_exp_i32_f32 v{m}, v{m}', [m], [m])
    V(f'v_readlane_b32 s{S_T4}, v{m}, 63', [m], [], swrites=[S_T4], readlane=True)
    S(f's_sub_i32 s{S_C}, 15, s{S_T4}', sreads=[S_T4])
    S(f's_sub_i32 s{S_T4}, s{S_T4}, 15')
    for r in range(14): V(f'v_ldexp_f32 v{SD+r}, v{SD+r}, s{S_C}', [SD+r], [SD+r])
    for rp in range(7):
        V(f'v_cvt_pk_f16_f32 v{MF+rp}, v{SD+2*rp}, v{SD+2*rp+1}', [SD+2*rp, SD+2*rp+1], [MF+rp])
    for rp in range(7):
        aa, bb = rp >> 1, rp & 1
        V(f'v_cmp_ge_i32 vcc, {4*aa+bb}, v{p[3]}', [p[3]], [], swrites=['vcc'])
        if aa == 3: S('s_mov_b32 vcc_hi, 0', sreads=['vcc'])
        S('s_mov_b64 exec, vcc', sreads=['vcc'])
        a.ds(f'ds_write_b32 v{p[6]}, v{MF+rp} offset:{4*(4*aa+bb)}', [p[6], MF+rp])
        fullexec()
    a.raw('s_waitcnt lgkmcnt(0)', kind='wait')
    a.ds(f'ds_read_b128 {vr(IF,4)}, v{p[8]}', [p[8]], R(IF, 4))
    execn(46)
    a.vmem(f'buffer_store_dwordx4 {vr(IF,4)}, v{p[9]}, s[{S_WS}:{S_WS+3}], s{S_T0} offen sc1', [p[9]] + R(IF, 4), [], wide_store=R(IF, 4))
    fullexec()
    S(f's_lshl_b32 s{S_T1}, s{S_T1}, 2'); S(f's_add_u32 s{S_T1}, s{S_T1}, {WS_EWT}')
    V(f'v_mov_b32 v{p[11]}, s{S_T4}', [], [p[11]]); V(f'v_mov_b32 v{p[12]}, s{S_T1}', [], [p[12]])
    S('s_mov_b64 exec, 1')
    a.vmem(f'buffer_store_dword v{p[11]}, v{p[12]}, s[{S_WS}:{S_WS+3}], 0 offen sc1', [p[11], p[12]], [])
    a.raw('s_branch L_prodfin', kind='branch')
    a.label('L_prodrow')
    S(f's_sub_u32 s{S_G}, s{S_G}, 32')
    PR = 40; PA = 48
    S(f's_mul_i32 s{S_T2}, s{S_G}, 1352'); S(f's_add_u32 s{S_T2}, s{S_T2}, 35152')
    V(f'v_cmp_le_u32 vcc, 43, v{V_LANE}', [V_LANE], [], swrites=['vcc'])
    V(f'v_cndmask_b32 v{p[0]}, 0, 1, vcc', [], [p[0]], sreads=['vcc'])
    V(f'v_mul_u32_u24 v{p[2]}, 12, v{p[0]}', [p[0]], [p[2]])
    V(f'v_sub_u32 v{p[2]}, v{V_L16}, v{p[2]}', [V_L16, p[2]], [p[2]])
    a.vmem(f'buffer_load_dwordx4 {vr(PR,4)}, v{p[2]}, s[{S_WC}:{S_WC+3}], s{S_T2} offen', [p[2]], R(PR, 4))
    V(f'v_min_u32 v{p[3]}, 21, v{V_LANE}', [V_LANE], [p[3]])
    V(f'v_lshlrev_b32 v{p[4]}, 4, v{p[3]}', [p[3]], [p[4]])
    a.vmem(f'buffer_load_dwordx4 {vr(PR+4,4)}, v{p[4]}, s[{S_WC}:{S_WC+3}], s{S_T2} offen offset:1012', [p[4]], R(PR+4, 4))
    S(f's_mul_i32 s{S_T1}, s{S_G}, 2521'); S(f's_lshr_b32 s{S_T1}, s{S_T1}, 16')
    S(f's_mul_i32 s{S_T3}, s{S_T1}, 26'); S(f's_sub_u32 s{S_T0}, s{S_G}, s{S_T3}')
    rho_salu(S_T0, S_T3, S_T4)
    V(f'v_mul_u32_u24 v{p[7]}, {25*688}, v{p[0]}', [p[0]], [p[7]])
    V(f'v_add_u32 v{p[7]}, v{p[7]}, v{V_L16}', [p[7], V_L16], [p[7]])
    V(f'v_add_u32 v{p[8]}, {26*688+336}, v{p[4]}', [p[4]], [p[8]])
    S(f's_mul_i32 s{S_T0}, s{S_T0}, 688'); S(f's_mul_i32 s{S_T2}, s{S_T1}, {IMG}'); S(f's_add_u32 s{S_T2}, s{S_T2}, s{S_T0}'); S(f's_add_u32 s{S_T2}, s{S_T2}, {WS_IMG[1]}')
    S(f's_lshl_b32 s{S_T1}, s{S_T1}, 5'); S(f's_add_u32 s{S_T1}, s{S_T1}, s{S_T3}'); S(f's_add_u32 s{S_T1}, s{S_T1}, 32')
    for i in range(8): V(f'v_and_b32 v{PA+i}, s{S_K7FFF}, v{PR+i}', [PR+i], [PA+i])
    m = p[11]
    V(f'v_pk_maximum3_f16 v{m}, v{PA}, v{PA+1}, v{PA+2}', R(PA, 3), [m])
    V(f'v_pk_maximum3_f16 v{m}, v{m}, v{PA+3}, v{PA+4}', [m, PA+3, PA+4], [m])
    V(f'v_pk_maximum3_f16 v{m}, v{m}, v{PA+5}, v{PA+6}', [m, PA+5, PA+6], [m])
    V(f'v_pk_max_u16 v{m}, v{m}, v{PA+7}', [m, PA+7], [m])
    V(f'v_max_u16_sdwa v{m}, v{m}, v{m} dst_sel:DWORD dst_unused:UNUSED_PAD src0_sel:WORD_1 src1_sel:WORD_0', [m], [m], opsel=True)
    dpp_max(m)
    V(f'v_readlane_b32 s{S_T0}, v{m}, 63', [m], [], swrites=[S_T0], readlane=True)
    S(f's_lshr_b32 s{S_T0}, s{S_T0}, 7', sreads=[S_T0], swrites=[S_T0])
    S(f's_sub_i32 s{S_T0}, s{S_T0}, 30'); S(f's_max_i32 s{S_T0}, s{S_T0}, 0')
    S(f's_mul_i32 s{S_C}, s{S_T0}, 0x800080'); S(f's_sub_i32 s{S_T0}, s{S_T0}, 112')
    for i in range(8): V(f'v_pk_sub_u16 v{PA+i}, v{PA+i}, s{S_C} clamp', [PA+i], [PA+i])
    for i in range(8): V(f'v_lshlrev_b32 v{PA+i}, 3, v{PA+i}', [PA+i], [PA+i])
    for i in range(8): V(f'v_bfi_b32 v{PA+i}, s{S_K8000}, v{PR+i}, v{PA+i}', [PA+i, PR+i], [PA+i])
    a.vmem(f'buffer_store_dwordx4 {vr(PA,4)}, v{p[7]}, s[{S_WS}:{S_WS+3}], s{S_T2} offen sc1', [p[7]] + R(PA, 4), [], wide_store=R(PA, 4))
    execn(22)
    a.vmem(f'buffer_store_dwordx4 {vr(PA+4,4)}, v{p[8]}, s[{S_WS}:{S_WS+3}], s{S_T2} offen sc1', [p[8]] + R(PA+4, 4), [], wide_store=R(PA+4, 4))
    S(f's_lshl_b32 s{S_T1}, s{S_T1}, 2'); S(f's_add_u32 s{S_T1}, s{S_T1}, {WS_EWT}')
    V(f'v_mov_b32 v{p[9]}, s{S_T0}', [], [p[9]]); V(f'v_mov_b32 v{p[10]}, s{S_T1}', [], [p[10]])
    S('s_mov_b64 exec, 1')
    a.vmem(f'buffer_store_dword v{p[9]}, v{p[10]}, s[{S_WS}:{S_WS+3}], 0 offen sc1', [p[9], p[10]], [])
    S(f's_cmp_lg_u32 s{S_G}, 0'); a.raw('s_cbranch_scc1 L_prodfin', kind='branch')
    a.raw(f's_memrealtime s[{S_MT}:{S_MT+1}]')
    a.raw('s_waitcnt lgkmcnt(0)', kind='wait')
    V(f'v_mov_b32 v{p[12]}, s{S_MT}', [], [p[12]]); V(f'v_mov_b32 v{p[13]}, {WS_EWT + (32+15)*4}', [], [p[13]])
    a.vmem(f'buffer_store_dword v{p[12]}, v{p[13]}, s[{S_WS}:{S_WS+3}], 0 offen sc1', [p[12], p[13]], [])
    a.raw('s_branch L_prodfin', kind='branch')
    a.label('L_prodv5')
    S(f's_cmp_ge_u32 s{S_G}, 162'); a.raw('s_cbranch_scc1 L_prodfin', kind='branch')
    LA = 40; LB = 44; AC = 48
    S(f's_sub_u32 s{S_T0}, s{S_G}, 136')
    S(f's_mul_i32 s{S_T2}, s{S_T0}, 52'); S(f's_add_u32 s{S_T2}, s{S_T2}, {5*35152}')
    V(f'v_lshrrev_b32 v{p[0]}, 2, v{V_LANE}', [V_LANE], [p[0]])
    V(f'v_and_b32 v{p[1]}, 3, v{V_LANE}', [V_LANE], [p[1]])
    V(f'v_mul_u32_u24 v{p[2]}, 0x548, v{p[0]}', [p[0]], [p[2]])
    V(f'v_lshl_add_u32 v{p[2]}, v{p[1]}, 4, v{p[2]}', [p[1], p[2]], [p[2]])
    a.vmem(f'buffer_load_dwordx4 {vr(LA,4)}, v{p[2]}, s[{S_WC}:{S_WC+3}], s{S_T2} offen', [p[2]], R(LA, 4))
    S(f's_add_u32 s{S_T2}, s{S_T2}, {16*1352}')
    a.vmem(f'buffer_load_dwordx4 {vr(LB,4)}, v{p[2]}, s[{S_WC}:{S_WC+3}], s{S_T2} offen', [p[2]], R(LB, 4))
    V(f'v_lshlrev_b32 v{p[3]}, 1, v{p[0]}', [p[0]], [p[3]])
    a.vmem(f'buffer_load_ushort v{p[4]}, v{p[3]}, s[{S_WCO}:{S_WCO+3}], 0 offen offset:260', [p[3]], [p[4]])
    a.vmem(f'buffer_load_ushort v{p[5]}, v{p[3]}, s[{S_WCO}:{S_WCO+3}], 0 offen offset:292', [p[3]], [p[5]])
    rho_salu(S_T0, S_T1, S_T4, clamp=False)
    S(f's_lshl_b32 s{S_T0}, s{S_T0}, 4'); S(f's_add_u32 s{S_T0}, s{S_T0}, {WS_V5F}')
    V(f'v_lshlrev_b32 v{p[6]}, 10, v{p[1]}', [p[1]], [p[6]])
    V(f'v_cmp_ne_u32 vcc, 3, v{p[1]}', [p[1]], [], swrites=['vcc'])
    for r in (1, 2, 3):
        V(f'v_cndmask_b32 v{LA+r}, 0, v{LA+r}, vcc', [LA+r], [LA+r], sreads=['vcc'])
        V(f'v_cndmask_b32 v{LB+r}, 0, v{LB+r}, vcc', [LB+r], [LB+r], sreads=['vcc'])
    V(f'v_lshlrev_b32 v{p[4]}, 16, v{p[4]}', [p[4]], [p[4]])
    V(f'v_lshlrev_b32 v{p[5]}, 16, v{p[5]}', [p[5]], [p[5]])
    for r in range(4):
        V(f'v_lshlrev_b32 v{p[7]}, 16, v{LA+r}', [LA+r], [p[7]])
        V(f'v_and_b32 v{p[8]}, 0xffff0000, v{LA+r}', [LA+r], [p[8]])
        V(f'v_lshlrev_b32 v{p[9]}, 16, v{LB+r}', [LB+r], [p[9]])
        V(f'v_and_b32 v{p[10]}, 0xffff0000, v{LB+r}', [LB+r], [p[10]])
        V(f'v_mul_f32 v{AC+2*r}, v{p[4]}, v{p[7]}', [p[4], p[7]], [AC+2*r])
        V(f'v_mul_f32 v{AC+2*r+1}, v{p[4]}, v{p[8]}', [p[4], p[8]], [AC+2*r+1])
        V(f'v_fmac_f32 v{AC+2*r}, v{p[5]}, v{p[9]}', [AC+2*r, p[5], p[9]], [AC+2*r])
        V(f'v_fmac_f32 v{AC+2*r+1}, v{p[5]}, v{p[10]}', [AC+2*r+1, p[5], p[10]], [AC+2*r+1])
    for d in (4, 8):
        for e in range(8):
            V(f'v_add_f32_dpp v{AC+e}, v{AC+e}, v{AC+e} row_ror:{d} row_mask:0xf bank_mask:0xf', [AC+e], [AC+e], dpp=True)
    for op in ('v_permlane16_swap_b32', 'v_permlane32_swap_b32'):
        for e in range(8): V(f'v_mov_b32 v{p[7+e]}, v{AC+e}', [AC+e], [p[7+e]])
        for e in range(8): V(f'{op} v{AC+e}, v{p[7+e]}', [AC+e, p[7+e]], [AC+e, p[7+e]], permlane=True)
        for e in range(8): V(f'v_add_f32 v{AC+e}, v{AC+e}, v{p[7+e]}', [AC+e, p[7+e]], [AC+e])
    for r in range(4):
        V(f'v_cvt_pk_bf16_f32 v{LA+r}, v{AC+2*r}, v{AC+2*r+1}', [AC+2*r, AC+2*r+1], [LA+r])
        V(f'v_lshlrev_b32 v{p[7]}, 16, v{LA+r}', [LA+r], [p[7]])
        V(f'v_and_b32 v{p[8]}, 0xffff0000, v{LA+r}', [LA+r], [p[8]])
        V(f'v_sub_f32 v{p[7]}, v{AC+2*r}, v{p[7]}', [AC+2*r, p[7]], [p[7]])
        V(f'v_sub_f32 v{p[8]}, v{AC+2*r+1}, v{p[8]}', [AC+2*r+1, p[8]], [p[8]])
        V(f'v_cvt_pk_bf16_f32 v{LB+r}, v{p[7]}, v{p[8]}', [p[7], p[8]], [LB+r])
    execn(4)
    a.vmem(f'buffer_store_dwordx4 {vr(LA,4)}, v{p[6]}, s[{S_WS}:{S_WS+3}], s{S_T0} offen sc1', [p[6]] + R(LA, 4), [], wide_store=R(LA, 4))
    a.vmem(f'buffer_store_dwordx4 {vr(LB,4)}, v{p[6]}, s[{S_WS}:{S_WS+3}], s{S_T0} offen offset:512 sc1', [p[6]] + R(LB, 4), [], wide_store=R(LB, 4))
    a.label('L_prodfin')
    fullexec()
    a.raw('s_waitcnt vmcnt(0) lgkmcnt(0)', kind='wait')
    rawbar()
    S(f's_cmp_lg_u32 s{S_WAVE}, 0')
    a.raw('s_cbranch_scc1 L_noprod', kind='branch')
    S(f's_lshl_b32 s{S_T0}, s{S_PID}, 2')
    V(f'v_mov_b32 v{p[0]}, 1', [], [p[0]]); V(f'v_mov_b32 v{p[1]}, s{S_T0}', [], [p[1]])
    S('s_mov_b64 exec, 1')
    a.vmem(f'buffer_store_dword v{p[0]}, v{p[1]}, s[{S_DBGF}:{S_DBGF+3}], 0 offen sc1', [p[0], p[1]], [])
    fullexec()
    a.nop(2)
    a.cond_end()
    a.nop(12)
    stamp('prod')
    PWT = 136; BIGR = 137
    V(f'v_mov_b32 v{BIGR}, 0x7f000000', [], [BIGR])
    V(f'v_lshrrev_b32 v{t[0]}, 4, v0', [0], [t[0]])
    V(f'v_and_b32 v{t[1]}, 15, v0', [0], [t[1]])
    V(f'v_mad_u32_u24 v{t[0]}, v{t[0]}, 13, v{t[1]}', [t[0], t[1]], [t[0]])
    V(f'v_lshlrev_b32 v{t[0]}, 1, v{t[0]}', [t[0]], [t[0]])
    V(f'v_cmp_gt_u32 vcc, 13, v{t[1]}', [t[1]], [], swrites=['vcc'])
    V(f'v_cndmask_b32 v{t[0]}, v{BIGR}, v{t[0]}, vcc', [BIGR, t[0]], [t[0]], sreads=['vcc'])
    S(f's_cmp_gt_u32 s{S_WAVE}, 2')
    a.cond_begin('s_cbranch_scc1 L_nopw', 'L_nopw')
    a.vmem(f'buffer_load_ushort v{PWT}, v{t[0]}, s[{S_WCO}:{S_WCO+3}], 0 offen', [t[0]], [PWT])
    a.cond_end()
    V(f'v_mov_b32 v{t[2]}, 0', [], [t[2]])
    a.vmem(f'buffer_load_ushort v{V_ACC}, v{t[2]}, s[{S_BO}:{S_BO+3}], 0 offen', [t[2]], [V_ACC])
    def addr_setup():
        V(f'v_and_b32 v{t[0]}, 31, v{V_LANE}', [V_LANE], [t[0]])
        V(f'v_cmp_gt_u32 vcc, 28, v{t[0]}', [t[0]], [], swrites=['vcc'])
        V(f'v_addc_co_u32 v{t[4]}, vcc, 0, v{t[0]}, vcc', [t[0]], [t[4]], sreads=['vcc'], swrites=['vcc'])
        V(f'v_cmp_eq_u32 s[{S_MT}:{S_MT+1}], 28, v{t[0]}', [t[0]], [], swrites=[S_MT, S_MT+1])
        V(f'v_cndmask_b32 v{t[4]}, v{t[4]}, 0, s[{S_MT}:{S_MT+1}]', [t[4]], [t[4]], sreads=[S_MT])
        V(f'v_lshrrev_b32 v{t[1]}, 5, v{V_LANE}', [V_LANE], [t[1]])
        V(f'v_mad_u32_u24 v{t[4]}, v{t[1]}, 26, v{t[4]}', [t[1], t[4]], [t[4]])
        V(f'v_cmp_gt_u32 vcc, 25, v{t[0]}', [t[0]], [], swrites=['vcc'])
        S(f's_or_b64 vcc, vcc, s[{S_MT}:{S_MT+1}]', sreads=['vcc', S_MT])
        V(f'v_mov_b32 v{t[5]}, 0x40000', [], [t[5]])
        V(f'v_cndmask_b32 v{t[5]}, v{t[5]}, 0, vcc', [t[5]], [t[5]])
        S(f's_movk_i32 s{S_T0}, 0x2b0'); S(f's_movk_i32 s{S_T1}, 0x170')
        V(f'v_mad_u32_u24 v{V_AADDR[0]}, v{t[4]}, s{S_T0}, v{t[5]}', [t[4], t[5]], [V_AADDR[0]])
        V(f'v_add_u32 v{V_AADDR[1]}, {U[2]}, v{V_AADDR[0]}', [V_AADDR[0]], [V_AADDR[1]])
        V(f'v_mad_u32_u24 v{V_AADDR0}, v{t[4]}, s{S_T1}, v{t[5]}', [t[4], t[5]], [V_AADDR0])
        V(f'v_add_u32 v{V_AADDR0}, {I0B}, v{V_AADDR0}', [V_AADDR0], [V_AADDR0])
    V(f'v_and_b32 v{t[0]}, 31, v{V_LANE}', [V_LANE], [t[0]])
    V(f'v_lshlrev_b32 v{t[0]}, 2, v{t[0]}', [t[0]], [t[0]])
    S(f's_mul_i32 s{S_T0}, s{S_WAVE}, 1664'); S(f's_add_u32 s{S_T0}, s{S_T0}, {X16}')
    V(f'v_add_u32 v{V_TRADDR}, s{S_T0}, v{t[0]}', [t[0]], [V_TRADDR])
    V(f'v_lshrrev_b32 v{t[4]}, 4, v{V_LANE}', [V_LANE], [t[4]])
    V(f'v_lshrrev_b32 v{t[0]}, 2, v{V_LANE}', [V_LANE], [t[0]])
    V(f'v_mul_u32_u24 v{t[0]}, 224, v{t[0]}', [t[0]], [t[0]])
    V(f'v_and_b32 v{t[5]}, 3, v{V_LANE}', [V_LANE], [t[5]])
    V(f'v_lshl_add_u32 v{t[0]}, v{t[5]}, 3, v{t[0]}', [t[5], t[0]], [t[0]])
    S(f's_lshr_b32 s{S_T0}, s{S_WAVE}, 2'); S(f's_sub_u32 s{S_T0}, 1, s{S_T0}')
    S(f's_lshl_b32 s{S_T1}, s{S_T0}, 5')
    V(f'v_add_u32 v{V_DAADDR}, s{S_T1}, v{t[0]}', [t[0]], [V_DAADDR])
    V(f'v_add_u32 v{V_DBK}, 57344, v{V_DAADDR}', [V_DAADDR], [V_DBK])
    S(f's_lshl_b32 s{S_T2}, s{S_T0L}, 5'); S(f's_add_u32 s{S_T1}, s{S_T1}, s{S_T2}'); S(f's_add_u32 s{S_T1}, s{S_T1}, {BW - 32}')
    V(f'v_lshlrev_b32 v{t[4]}, 3, v{t[4]}', [t[4]], [t[4]])
    V(f'v_add_u32 v{V_BWADDR}, s{S_T1}, v{t[4]}', [t[4]], [V_BWADDR])
    V(f'v_mov_b32 v{V_SYNC}, {SYNC}', [], [V_SYNC])
    S(f's_lshl_b32 s{S_T0}, s{S_WAVE}, 2'); S(f's_add_u32 s{S_T0}, s{S_T0}, {SYNC + 32}')
    V(f'v_mov_b32 v{V_DONEA}, s{S_T0}', [], [V_DONEA])
    a.wait_vm_all()
    S(f's_cmp_gt_u32 s{S_WAVE}, 2')
    a.cond_begin('s_cbranch_scc1 L_nopw2', 'L_nopw2')
    V(f'v_lshlrev_b32 v{PWT}, 16, v{PWT}', [PWT], [PWT])
    V(f'v_lshlrev_b32 v{t[0]}, 2, v0', [0], [t[0]])
    V(f'v_add_u32 v{t[0]}, {POOLW}, v{t[0]}', [t[0]], [t[0]])
    V(f'v_cmp_gt_u32 vcc, 0xa0, v0', [0], [], swrites=['vcc'])
    S('s_mov_b64 exec, vcc', sreads=['vcc'])
    a.ds(f'ds_write_b32 v{t[0]}, v{PWT}', [t[0], PWT])
    fullexec()
    a.cond_end()
    a.barrier()
    S(f's_mov_b32 s{S_KN}, 0')
    stamp('setup')

    chk_n = [0]
    def rdy_fetch(off): a.ds(f'ds_read_b32 v{V_RDY}, v{V_SYNC} offset:{off}', [V_SYNC], [V_RDY])
    def rdy_check(nseq, off, fetched=False):
        if not fetched: rdy_fetch(off)
        i = chk_n[0]; chk_n[0] += 1
        V(f'v_readfirstlane_b32 s{S_T0}, v{V_RDY}', [V_RDY], [], swrites=[S_T0], readlane=True)
        S(f's_cmp_ge_u32 s{S_T0}, {nseq}', sreads=[S_T0])
        a.cond_begin(f's_cbranch_scc1 L_ok{i}', f'L_ok{i}')
        a.raw(f's_mov_b32 s{S_T1}, 0x100000', kind='salu')
        a.label(f'L_sp{i}')
        a.raw('s_sleep 1')
        a.raw(f'ds_read_b32 v{V_RDY}, v{V_SYNC} offset:{off}', kind='ds')
        a.raw(f's_sub_u32 s{S_T1}, s{S_T1}, 1', kind='salu')
        a.raw(f's_cbranch_scc1 L_ok{i}', kind='branch')
        a.raw('s_waitcnt lgkmcnt(0)', kind='wait')
        a.raw(f'v_readfirstlane_b32 s{S_T0}, v{V_RDY}', kind='valu')
        a.raw('s_nop 0', kind='nop')
        a.raw(f's_cmp_ge_u32 s{S_T0}, {nseq}', kind='salu')
        a.raw(f's_cbranch_scc0 L_sp{i}', kind='branch')
        a.cond_end()
    def cnt_check(nseq):
        i = chk_n[0]; chk_n[0] += 1
        S(f's_cmp_ge_u32 s{S_KN}, {nseq}')
        a.cond_begin(f's_cbranch_scc1 L_ok{i}', f'L_ok{i}')
        a.raw(f's_mov_b32 s{S_T1}, 0x100000', kind='salu')
        a.label(f'L_sp{i}')
        a.raw(f'ds_read_b32 v{V_RDY}, v{V_SYNC}', kind='ds')
        a.raw(f's_sub_u32 s{S_T1}, s{S_T1}, 1', kind='salu')
        a.raw(f's_cbranch_scc1 L_ok{i}', kind='branch')
        a.raw('s_waitcnt lgkmcnt(0)', kind='wait')
        a.raw(f'v_readfirstlane_b32 s{S_KN}, v{V_RDY}', kind='valu')
        a.raw('s_nop 0', kind='nop')
        a.raw(f's_cmp_ge_u32 s{S_KN}, {nseq}', kind='salu')
        a.raw(f's_cbranch_scc1 L_ok{i}', kind='branch')
        a.raw('s_sleep 1')
        a.raw(f's_branch L_sp{i}', kind='branch')
        a.cond_end()
    def release(stage):
        V(f'v_mov_b32 v{t[0]}, {stage}', [], [t[0]])
        a.ds(f'ds_write_b32 v{V_DONEA}, v{t[0]}', [V_DONEA, t[0]])

    def x0_ops():
        ops = []
        PB = PBT
        def rd():
            V(f'v_lshlrev_b32 v{V_ACC}, 16, v{V_ACC}', [V_ACC], [V_ACC])
            V(f'v_and_b32 v{t[0]}, 47, v{V_LANE}', [V_LANE], [t[0]])
            V(f'v_cmp_eq_u32 vcc, 0, v{t[0]}', [t[0]], [], swrites=['vcc'])
            V(f'v_cndmask_b32 v{V_ACC}, 0, v{V_ACC}, vcc', [V_ACC], [V_ACC], sreads=['vcc'])
        ops.append(rd)
        m = t[1]
        def c1():
            for v in range(13): V(f'v_and_b32 v{P16+v}, s{S_K7FFF}, v{PB+v}', [PB+v], [P16+v])
        ops.append(c1)
        def c2():
            V(f'v_pk_maximum3_f16 v{m}, v{P16}, v{P16+1}, v{P16+2}', R(P16, 3), [m])
            for v in range(3, 13, 2):
                V(f'v_pk_maximum3_f16 v{m}, v{m}, v{P16+v}, v{P16+v+1}', [m, P16+v, P16+v+1], [m])
            V(f'v_max_u16_sdwa v{m}, v{m}, v{m} dst_sel:DWORD dst_unused:UNUSED_PAD src0_sel:WORD_1 src1_sel:WORD_0', [m], [m], opsel=True)
            V(f'v_lshrrev_b32 v{m}, 7, v{m}', [m], [m])
            V(f'v_subrev_u32 v{m}, 21, v{m}', [m], [m])
            V(f'v_max_i32 v{m}, 0, v{m}', [m], [m])
            V(f'v_subrev_u32 v{V_EX}, 112, v{m}', [m], [V_EX])
            V(f'v_mul_u32_u24 v{m}, 0x800080, v{m}', [m], [m])
        ops.append(c2)
        ops.append(lambda: [V(f'v_pk_sub_u16 v{P16+v}, v{P16+v}, v{m} clamp', [P16+v, m], [P16+v]) for v in range(13)])
        ops.append(lambda: [V(f'v_lshlrev_b32 v{P16+v}, 3, v{P16+v}', [P16+v], [P16+v]) for v in range(13)])
        ops.append(lambda: [V(f'v_bfi_b32 v{P16+v}, s{S_K8000}, v{PB+v}, v{P16+v}', [P16+v, PB+v], [P16+v]) for v in range(13)])
        def qq():
            V(f'v_mov_b32 v{P16+13}, 0', [], [P16+13])
            V(f'v_mov_b32 v{t[2]}, 0x05040100', [], [t[2]])
            V(f'v_mov_b32 v{t[1]}, 0x07060302', [], [t[1]])
            V(f'v_cndmask_b32 v{t[2]}, v{t[2]}, v{t[1]}, s[{S_HI}:{S_HI+1}]', [t[2], t[1]], [t[2]])
            for q in range(7):
                V(f'v_perm_b32 v{XQ+q}, v{P16+2*q+1}, v{P16+2*q}, v{t[2]}', [P16+2*q+1, P16+2*q, t[2]], [XQ+q])
        ops.append(qq)
        def q2():
            V(f'v_lshlrev_b32 v{V_E}, 1, v{V_EX}', [V_EX], [V_E])
            for v in range(13): a.ds(f'ds_write_b32 v{V_TRADDR}, v{PB+v} offset:{128*v}', [V_TRADDR, PB+v])
        ops.append(q2)
        return ops

    DAB = [132, 40, 56]; DBB = [72, 76, 80]; IXR = 84; NDB = 3
    def dnn_reads(i, xt):
        da = DAB[i % NDB]; db = DBB[i % NDB]
        base = CPOS[i] * CH
        a.ds(f'ds_read_b64 {vr(db,2)}, v{IXR+2*i}', [IXR+2*i], R(db, 2))
        a.ds(f'ds_read_b64 {vr(db+2,2)}, v{IXR+2*i+1}', [IXR+2*i+1], R(db+2, 2))
        hi = base >= 57344; ro = 64 if xt else 32
        ad = V_DBK if hi else V_DAADDR; b0 = base - (57344 if hi else 0)
        for q in range(3):
            a.ds(f'ds_read_b64_tr_b16 {vr(da+4*q,2)}, v{ad} offset:{b0+ro+64*q}', [ad], R(da+4*q, 2))
            a.ds(f'ds_read_b64_tr_b16 {vr(da+4*q+2,2)}, v{ad} offset:{b0+ro+64*q+3584}', [ad], R(da+4*q+2, 2))
        if xt:
            a.ds(f'ds_read_b64_tr_b16 {vr(da+12,2)}, v{ad} offset:{b0}', [ad], R(da+12, 2))
            a.ds(f'ds_read_b64_tr_b16 {vr(da+14,2)}, v{ad} offset:{b0+3584}', [ad], R(da+14, 2))
    def dnn_mfma(i, xt):
        da = DAB[i % NDB]; db = DBB[i % NDB]
        for q in range(4 if xt else 3): a.mfma('v_mfma_f32_16x16x32_bf16', DACC+4*q, da+4*q, db, DACC+4*q, 4, 4)
    epi_n = [0]
    def dnn_epilogue():
        e = epi_n[0]; epi_n[0] += 1
        K1 = -2.0 * 1.4426950408889634 * 0.7978845608028654
        K2 = K1 * 0.044715
        acc = DB; W2T = [DB + 2, t[2], t[4], t[6]]
        S(f's_mov_b32 s{S_K2}, {fb(K2)}')
        V(f'v_mov_b32 v{DB+1}, {fb(K1)}', [], [DB+1])
        V(f'v_mov_b32 v{acc}, 0', [], [acc])
        offs = [64, 128, 192, 0]
        for q in range(4):
            a.ds(f'ds_read_b64 {vr(W2T[q],2)}, v{V_BWADDR} offset:{832+offs[q]}', [V_BWADDR], R(W2T[q], 2))
        def grp(qs):
            xs = [DACC + 4*q + r for q in qs for r in range(4)]
            ts = [DA + 4*q + r for q in qs for r in range(4)]
            for x, tt in zip(xs, ts): V(f'v_mul_f32 v{tt}, v{x}, v{x}', [x], [tt])
            for x, tt in zip(xs, ts): V(f'v_fma_f32 v{tt}, v{tt}, s{S_K2}, v{DB+1}', [tt, DB+1], [tt])
            for x, tt in zip(xs, ts): V(f'v_mul_f32 v{tt}, v{tt}, v{x}', [tt, x], [tt])
            for x, tt in zip(xs, ts): V(f'v_exp_f32 v{tt}, v{tt}', [tt], [tt], trans=True)
            for x, tt in zip(xs, ts): V(f'v_add_f32 v{tt}, 1.0, v{tt}', [tt], [tt])
            for x, tt in zip(xs, ts): V(f'v_rcp_f32 v{tt}, v{tt}', [tt], [tt], trans=True)
            for x, tt in zip(xs, ts): V(f'v_mul_f32 v{tt}, v{tt}, v{x}', [tt, x], [tt])
            for q in qs:
                w = W2T[q]; x0_ = DACC + 4*q
                V(f'v_lshlrev_b32 v{x0_}, 16, v{w}', [w], [x0_])
                V(f'v_and_b32 v{x0_+1}, 0xffff0000, v{w}', [w], [x0_+1])
                V(f'v_lshlrev_b32 v{x0_+2}, 16, v{w+1}', [w+1], [x0_+2])
                V(f'v_and_b32 v{x0_+3}, 0xffff0000, v{w+1}', [w+1], [x0_+3])
            for x, tt in zip(xs, ts): V(f'v_fmac_f32 v{acc}, v{tt}, v{x}', [acc, tt, x], [acc])
        grp([0, 1, 2])
        S(f's_cmp_eq_u32 s{S_XT}, 0')
        a.raw(f's_cbranch_scc1 L_dq4_{e}', kind='branch')
        grp([3])
        a.nop(2)
        a.label(f'L_dq4_{e}')
        for op in ('v_permlane16_swap_b32', 'v_permlane32_swap_b32'):
            V(f'v_mov_b32 v{DB+1}, v{acc}', [acc], [DB+1])
            V(f'{op} v{acc}, v{DB+1}', [acc, DB+1], [acc, DB+1], permlane=True)
            V(f'v_add_f32 v{acc}, v{acc}, v{DB+1}', [acc, DB+1], [acc])
        V(f'v_lshlrev_b32 v{t[0]}, 2, v{V_LANE}', [V_LANE], [t[0]])
        S(f's_lshl_b32 s{S_T0}, s{S_WAVE}, 6'); S(f's_add_u32 s{S_T0}, s{S_T0}, {PDL}')
        V(f'v_add_u32 v{t[0]}, s{S_T0}, v{t[0]}', [t[0]], [t[0]])
        V(f'v_mov_b32 v{t[1]}, 1', [], [t[1]])
        execn(16)
        a.ds(f'ds_write_b32 v{t[0]}, v{acc}', [t[0], acc])
        execn(1)
        a.ds(f'ds_add_u32 v{V_SYNC}, v{t[1]} offset:4', [V_SYNC, t[1]])
        fullexec()
        a.wait_lds_all()
    def u5_ops():
        ops = []
        def rd():
            V(f'v_add_u32 v{t[0]}, {V5F}, v{V_L16}', [V_L16], [t[0]])
            for k in range(4):
                a.ds(f'ds_read_b128 {vr(UA+4*k,4)}, v{t[0]} offset:{1024*k}', [t[0]], R(UA+4*k, 4))
            for k in range(4):
                a.ds(f'ds_read_b128 {vr(G+4*k,4)}, v{V_PWADDR} offset:{POOLW-EWT+128*4+16*k}', [V_PWADDR], R(G+4*k, 4))
        ops.append(rd)
        for k in range(4):
            def rb(k=k):
                for e in range(4 if k < 3 else 1):
                    a.ds(f'ds_read_b32 v{DB+e}, v{V_TRADDR} offset:{128*(4*k+e)}', [V_TRADDR], [DB+e])
            ops.append(rb)
            ops += [lambda: None] * 4
            if k == 3:
                def zz():
                    for r in (1, 2, 3): V(f'v_mov_b32 v{DB+r}, 0', [], [DB+r])
                ops.append(zz)
            ops.append(lambda k=k: a.mfma('v_mfma_f32_32x32x16_bf16', G, UA+4*k, DB, G, 8, 16))
            ops.append(lambda: None)
        return ops

    def boundary_ops(l):
        ops = []
        s_ = ZB[2]; mx = ZB[2]+1; my = ZB[2]+2
        W = PW if l < 4 else G
        for r in range(13):
            ops.append(lambda r=r: V(f'v_ldexp_f32 v{D+r}, v{D+r}, v{EW+r}', [D+r, EW+r], [D+r]))
        if l < 4:
            ops.append(lambda: V(f'v_max3_f32 v{mx}, |v{D}|, |v{D+1}|, |v{D+2}|', R(D, 3), [mx]))
            for r in range(3, 13, 2):
                ops.append(lambda r=r: V(f'v_max3_f32 v{mx}, |v{D+r}|, |v{D+r+1}|, v{mx}', [D+r, D+r+1, mx], [mx]))
            ops.append(lambda: V(f'v_mov_b32 v{my}, v{mx}', [mx], [my]))
        ops.append(lambda: V(f'v_mul_f32 v{s_}, v{D}, v{W}', [D, W], [s_]))
        ops.append(lambda: V(f'v_fmac_f32 v{s_}, v{D+1}, v{W+1}', [s_, D+1, W+1], [s_]))
        if l < 4:
            ops.append(lambda: V(f'v_permlane32_swap_b32 v{mx}, v{my}', [mx, my], [mx, my], permlane=True))
        ops.append(lambda: V(f'v_fmac_f32 v{s_}, v{D+2}, v{W+2}', [s_, D+2, W+2], [s_]))
        if l < 4:
            ops.append(lambda: V(f'v_max_f32 v{mx}, v{mx}, v{my}', [mx, my], [mx]))
            ops.append(lambda: V(f'v_frexp_exp_i32_f32 v{mx}, v{mx}', [mx], [mx]))
            ops.append(lambda: V(f'v_sub_u32 v{V_SH}, 8, v{mx}', [mx], [V_SH]))
        for r in range(3, 13):
            ops.append(lambda r=r: V(f'v_fmac_f32 v{s_}, v{D+r}, v{W+r}', [s_, D+r, W+r], [s_]))
        if l < 4:
            for r in range(13):
                ops.append(lambda r=r: V(f'v_ldexp_f32 v{D+r}, v{D+r}, v{V_SH}', [D+r, V_SH], [D+r]))
            for q in range(7):
                hi = D + 2*q + 1 if q < 6 else D + 12
                ops.append(lambda q=q, hi=hi: V(f'v_cvt_pk_f16_f32 v{XQ+q}, v{D+2*q}, v{hi}', [D+2*q, hi], [XQ+q]))
        ops.append(lambda: V(f'v_ldexp_f32 v{s_}, v{s_}, v{V_E}', [s_, V_E], [s_]))
        ops.append(lambda: V(f'v_add_f32 v{V_ACC}, v{V_ACC}, v{s_}', [V_ACC, s_], [V_ACC]))
        if l < 4:
            ops.append(lambda: V(f'v_sub_u32 v{V_E}, v{V_E}, v{V_SH}', [V_E, V_SH], [V_E]))
            ops.append(lambda: V(f'v_add_u32 v{V_E}, v{V_E}, v{V_EX}', [V_E, V_EX], [V_E]))
        if l == 0:
            ops.append(lambda: V(f'v_mov_b32 v{ZL+1}, 0', [], [ZL+1]))
            ops.append(lambda: V(f'v_mov_b32 v{ZL+2}, 0', [], [ZL+2]))
        return ops
    NK = [23, 43, 43, 43, 43]
    ISLOT = [None, 0, 1, 2, 3]
    def a_read(l, k):
        b = AB[k % NAB]
        if l == 0: ad = V_AADDR0; off = 16 * k
        else:
            sl = ISLOT[l]; ad = V_AADDR[sl >> 1]; off = IMG * (sl & 1) + 16 * k
        a.ds(f'ds_read_b128 {vr(b,4)}, v{ad} offset:{off}', [ad], R(b, 4))
    PAIRS0 = [(u, v) for u in range(13) for v in range(u, 13)]
    def zbuf(l, k):
        if k == NK[l] - 1: return ZL
        return ZB[k % 3]
    def z_ops(l, k):
        ops = []
        zb = zbuf(l, k)
        for e in range(4):
            q = 4 * k + e
            if l == 0:
                if q >= 91: break
                i, v = PAIRS0[q]; src = (QH if i == v else XQ) + (i >> 1)
            else:
                if q >= 169: break
                i, v = divmod(q, 13); src = XQ + (i >> 1)
            o = i & 1
            ops.append(lambda zb=zb, e=e, src=src, v=v, o=o: V(f'v_pk_mul_f16 v{zb+e}, v{src}, v{P16+v} op_sel:[{o},0] op_sel_hi:[{o},1]', [src, P16+v], [zb+e]))
        return ops
    def pwrd(l):
        for base, off in ((PW, POOLW - EWT + 128 * l), (EW, 128 * l)):
            if base == PW and l == 4: continue
            for k in range(3):
                a.ds(f'ds_read_b128 {vr(base+4*k,4)}, v{V_PWADDR} offset:{off+16*k}', [V_PWADDR], R(base+4*k, 4))
            a.ds(f'ds_read_b32 v{base+12}, v{V_PWADDR} offset:{off+48}', [V_PWADDR], [base+12])

    cnt_check(1)
    stamp('tab')
    OX = 132
    V(f'v_bfe_u32 v{t[0]}, v{V_LANE}, 4, 1', [V_LANE], [t[0]])
    V(f'v_mul_u32_u24 v{t[0]}, 104, v{t[0]}', [t[0]], [t[0]])
    V(f'v_and_b32 v{t[1]}, 12, v{V_LANE}', [V_LANE], [t[1]])
    V(f'v_add_u32 v{t[0]}, v{t[0]}, v{t[1]}', [t[0], t[1]], [t[0]])
    S(f's_mul_i32 s{S_T0}, s{S_WAVE}, 208'); S(f's_add_u32 s{S_T0}, s{S_T0}, {IDXB}')
    V(f'v_add_u32 v{t[0]}, s{S_T0}, v{t[0]}', [t[0]], [t[0]])
    V(f'v_and_b32 v{t[1]}, 15, v{V_LANE}', [V_LANE], [t[1]])
    V(f'v_mul_u32_u24 v{t[1]}, 104, v{t[1]}', [t[1]], [t[1]])
    S(f's_and_b32 s{S_T0}, s{S_WAVE}, 3'); S(f's_mul_i32 s{S_T0}, s{S_T0}, 1664'); S(f's_add_u32 s{S_T0}, s{S_T0}, {IDXB}')
    S(f's_add_u32 s{S_T2}, s{S_T0}, 104'); S(f's_lshl_b32 s{S_KO}, s{S_ROT}, 3'); S(f's_add_u32 s{S_KO}, s{S_KO}, s{S_T0}')
    for i in range(13):
        tt = t[2 + (i % 4)]
        V(f'v_add_u32 v{tt}, s{S_KO}, v{t[1]}', [t[1]], [tt])
        a.ds(f'ds_read_b64 {vr(IXR+2*i,2)}, v{tt}', [tt], R(IXR+2*i, 2))
        if i < 12:
            S(f's_add_u32 s{S_KO}, s{S_KO}, 8'); S(f's_cmp_eq_u32 s{S_KO}, s{S_T2}'); S(f's_cselect_b32 s{S_KO}, s{S_T0}, s{S_KO}')
    for q in range(7): a.ds(f'ds_read_b32 v{OX+q}, v{t[0]} offset:{16*q}', [t[0]], [OX+q])
    BT = 140
    for q, off in enumerate([64, 128, 192, 0]):
        a.ds(f'ds_read_b64 {vr(BT+2*q,2)}, v{V_BWADDR} offset:{off}', [V_BWADDR], R(BT+2*q, 2))
    V(f'v_and_b32 v{t[6]}, 3, v{V_LANE}', [V_LANE], [t[6]])
    V(f'v_lshlrev_b32 v{t[6]}, 3, v{t[6]}', [t[6]], [t[6]])
    V(f'v_add_u32 v{t[6]}, {TAB}, v{t[6]}', [t[6]], [t[6]])
    V(f'v_lshrrev_b32 v{t[7]}, 4, v{V_LANE}', [V_LANE], [t[7]])
    V(f'v_lshlrev_b32 v{t[7]}, 3, v{t[7]}', [t[7]], [t[7]])
    V(f'v_add_u32 v{t[7]}, {TAB}, v{t[7]}', [t[7]], [t[7]])
    for f in range(26):
        V(f'v_lshl_add_u32 v{IXR+f}, v{IXR+f}, 5, v{t[7]}', [IXR+f, t[7]], [IXR+f])
    for q in range(7):
        V(f'v_min_u32 v{OX+q}, 0x3e7, v{OX+q}', [OX+q], [OX+q])
        V(f'v_lshl_add_u32 v{OX+q}, v{OX+q}, 5, v{t[6]}', [OX+q, t[6]], [OX+q])
        a.ds(f'ds_read_b64_tr_b16 {vr(PBT+2*q,2)}, v{OX+q}', [OX+q], R(PBT+2*q, 2))
    for q in range(4):
        V(f'v_lshlrev_b32 v{DACC+4*q}, 16, v{BT+2*q}', [BT+2*q], [DACC+4*q])
        V(f'v_and_b32 v{DACC+4*q+1}, 0xffff0000, v{BT+2*q}', [BT+2*q], [DACC+4*q+1])
        V(f'v_lshlrev_b32 v{DACC+4*q+2}, 16, v{BT+2*q+1}', [BT+2*q+1], [DACC+4*q+2])
        V(f'v_and_b32 v{DACC+4*q+3}, 0xffff0000, v{BT+2*q+1}', [BT+2*q+1], [DACC+4*q+3])
    stamp('x0')
    a.wait_lds_all()
    import copy
    def dnn_loop(xt):
        x0o = x0_ops()
        CHK = {0: 3, 2: 5, 4: 7, 6: 9, 8: 11, 10: 12, 11: 14}
        def rd(i):
            if i in CHK: cnt_check(CHK[i])
            dnn_reads(i, xt)
        if xt:
            V(f'v_subrev_u32 v{V_DAADDR}, 32, v{V_DAADDR}', [V_DAADDR], [V_DAADDR])
            V(f'v_subrev_u32 v{V_DBK}, 32, v{V_DBK}', [V_DBK], [V_DBK])
        rd(0); rd(1)
        for i in range(13):
            a.comment(f'======== DNN step {i} xt={xt}')
            if i + 2 < 13: rd(i + 2)
            if i < len(x0o): x0o[i]()
            dnn_mfma(i, xt)
            if i in (1, 6, 12): release({1: 1, 6: 2, 12: 3}[i])
        a.wait_lds_all(); a.nop(8)
    S(f's_cmp_eq_u32 s{S_XT}, 0')
    a.raw('s_cbranch_scc1 L_dnn0', kind='branch')
    dnn_loop(1)
    a.raw('s_branch L_dnnend', kind='branch')
    a.label('L_dnn0')
    dnn_loop(0)
    a.label('L_dnnend')
    for q in range(7):
        V(f'v_pk_mul_f16 v{QH+q}, v{XQ+q}, s{S_HALF}', [XQ+q], [QH+q])
    addr_setup()
    V(f'v_lshrrev_b32 v{t[1]}, 5, v{V_LANE}', [V_LANE], [t[1]])
    V(f'v_lshlrev_b32 v{t[1]}, 6, v{t[1]}', [t[1]], [t[1]])
    V(f'v_add_u32 v{V_PWADDR}, {EWT}, v{t[1]}', [t[1]], [V_PWADDR])
    V(f'v_mov_b32 v{ZL+3}, 0', [], [ZL+3])
    stamp('dnn')
    if SPLITEPI:
        S(f's_cmp_ge_u32 s{S_WAVE}, 4')
        a.wait_lds_all(); a.nop(8)
        a.cond_begin('s_cbranch_scc1 L_noepiB', 'L_noepiB')
        dnn_epilogue()
        a.nop(2)
        a.cond_end()
    else: dnn_epilogue()
    for l in range(5):
        a.comment(f'======== layer {l}')
        stamp(f'L{l}')
        rdy_check(l + 1, 8)
        for k in range(PFD): a_read(l, k)
        if l == 4:
            rdy_check(6, 8)
            u5 = u5_ops(); u5[0]()
            fq = u5[1:]
        else: fq = []
        for o in z_ops(l, 0): o()
        for o in z_ops(l, 1): o()
        if PRIO: a.raw('s_setprio 1')
        for k in range(NK[l]):
            if k == NK[l] - 8: pwrd(l)
            zo = z_ops(l, k + 2) if k + 2 < NK[l] else []
            if k % 2 == 0 and k + 1 < NK[l]: a._wait_regs(R(AB[(k + 1) % NAB], 4))
            a.mfma('v_mfma_f32_32x32x16_f16', D, AB[k % NAB], zbuf(l, k), D if k > 0 else None, 8, 16)
            if k + PFD < NK[l]: a_read(l, k + PFD)
            for o in zo: o()
            if PRIO and k == 2: a.raw('s_setprio 2')
            if fq and k >= 4: fq.pop(0)()
        assert not fq
        if l == 0: release(4)
        if l < 4:
            if PRIO: a.raw('s_setprio 0')
            for o in boundary_ops(l): o()
        if l == 0 and SPLITEPI:
            S(f's_cmp_lt_u32 s{S_WAVE}, 4')
            a.wait_lds_all()
            a.cond_begin('s_cbranch_scc1 L_noepiA', 'L_noepiA')
            dnn_epilogue()
            a.nop(2)
            a.cond_end()
    stamp('fin')
    rdy_check(7, 8)
    V(f'v_bfe_u32 v{t[5]}, v{V_LANE}, 4, 1', [V_LANE], [t[5]])
    V(f'v_and_b32 v{t[6]}, 15, v{V_LANE}', [V_LANE], [t[6]])
    V(f'v_lshl_add_u32 v{t[5]}, v{t[6]}, 4, v{t[5]}', [t[5], t[6]], [t[5]])
    V(f'v_lshlrev_b32 v{t[5]}, 2, v{t[5]}', [t[5]], [t[5]])
    S(f's_lshl_b32 s{S_T0}, s{S_WAVE}, 3'); S(f's_add_u32 s{S_T0}, s{S_T0}, {PD}')
    V(f'v_add_u32 v{t[5]}, s{S_T0}, v{t[5]}', [t[5]], [t[5]])
    V(f'v_and_b32 v{t[6]}, 40, v{V_LANE}', [V_LANE], [t[6]])
    V(f'v_cmp_eq_u32 vcc, 0, v{t[6]}', [t[6]], [], swrites=['vcc'])
    V(f'v_mov_b32 v{t[6]}, 0x30000', [], [t[6]])
    V(f'v_cndmask_b32 v{t[5]}, v{t[6]}, v{t[5]}, vcc', [t[5], t[6]], [t[5]], sreads=['vcc'])
    a.ds(f'ds_read_b32 v{t[6]}, v{t[5]}', [t[5]], [t[6]])
    for o in boundary_ops(4): o()
    A_ = V_ACC
    V(f'v_add_f32 v{A_}, v{A_}, v{t[6]}', [A_, t[6]], [A_])
    for d in (8, 4, 2, 1):
        V(f'v_add_f32_dpp v{A_}, v{A_}, v{A_} row_ror:{d} row_mask:0xf bank_mask:0xf', [A_], [A_], dpp=True)
    V(f'v_mov_b32 v{t[5]}, v{A_}', [A_], [t[5]])
    V(f'v_permlane32_swap_b32 v{A_}, v{t[5]}', [A_, t[5]], [A_, t[5]], permlane=True)
    V(f'v_add_f32 v{A_}, v{A_}, v{t[5]}', [A_, t[5]], [A_])
    V(f'v_cvt_pk_bf16_f32 v{A_}, v{A_}, v{A_}', [A_], [A_])
    V(f'v_lshrrev_b32 v{t[5]}, 3, v{V_LANE}', [V_LANE], [t[5]])
    S(f's_lshl_b32 s{S_T0}, s2, 5'); S(f's_lshl_b32 s{S_T1}, s{S_WAVE}, 2'); S(f's_add_u32 s{S_T0}, s{S_T0}, s{S_T1}')
    S('s_mov_b64 exec, 0x10001')
    a.vmem(f'buffer_store_short v{A_}, v{t[5]}, s[{S_OUT}:{S_OUT+3}], s{S_T0} offen', [A_, t[5]], [])
    dbg_out()
    a.raw('s_endpgm')

    a.label('L_loader')
    a.lds = []; a.vm = []; a.valu_w = {}; a.mfma_w = {}; a.mfma_c = {}; a.trans_w = {}; a.store_src = {}; a.opsel_w = {}
    stamp_n[0] = 1
    names_c = a.stamp_names; a.stamp_names = []
    LF = 18; LFA = 19; LSY = 20; LDA = 21; LDV = 22; LT = 23; WO = 32; PF = 40; LN = 24; LG = 64
    S(f's_movk_i32 s{S_T0}, 4682')
    for k in range(7):
        V(f'v_add_u32 v{t[0]}, {64*k}, v{V_LANE}', [V_LANE], [t[0]])
        V(f'v_mul_u32_u24 v{t[1]}, s{S_T0}, v{t[0]}', [t[0]], [t[1]])
        V(f'v_lshrrev_b32 v{t[1]}, 16, v{t[1]}', [t[1]], [t[1]])
        V(f'v_mul_u32_u24 v{t[2]}, {832 - 224}, v{t[1]}', [t[1]], [t[2]])
        V(f'v_lshl_add_u32 v{WO+k}, v{t[0]}, 4, v{t[2]}', [t[0], t[2]], [WO+k])
    V(f'v_lshlrev_b32 v{LFA}, 2, v{V_LANE}', [V_LANE], [LFA])
    V(f'v_mov_b32 v{LSY}, {SYNC}', [], [LSY])
    V(f'v_add_u32 v{LDA}, {SYNC}, v{LFA}', [LFA], [LDA])
    V(f'v_mov_b32 v{LT}, 0', [], [LT])
    execn(16)
    a.ds(f'ds_write_b32 v{LDA}, v{LT}', [LDA, LT])
    fullexec()
    V(f'v_and_b32 v{LDA}, 28, v{LFA}', [LFA], [LDA])
    V(f'v_add_u32 v{LDA}, {SYNC + 32}, v{LDA}', [LDA], [LDA])
    S(f's_mul_i32 s{S_KO}, s{S_ROT}, 26624'); S(f's_lshl_b32 s{S_T0}, s{S_T0L}, 5'); S(f's_add_u32 s{S_KO}, s{S_KO}, s{S_T0}')
    S(f's_add_u32 s{S_T3}, s{S_T0}, {13*26624}')
    def l_w1(i):
        for k in range(7):
            S(f's_mov_b32 m0, {CPOS[i]*CH + 1024*k}', m0=True)
            a.vmem(f'buffer_load_dwordx4 v{WO+k}, s[{S_W1}:{S_W1+3}], s{S_KO} offen lds', [WO+k], [], tag=('c', i), dma=True)
        S(f's_add_u32 s{S_KO}, s{S_KO}, 26624'); S(f's_cmp_eq_u32 s{S_KO}, s{S_T3}'); S(f's_cselect_b32 s{S_T1}, {13*26624}, 0'); S(f's_sub_u32 s{S_KO}, s{S_KO}, s{S_T1}')
    def l_lin(tag, srd, src, dst, nbytes, sc=''):
        n = (nbytes + 1023) // 1024
        for pc in range(n):
            if pc % 4 == 0:
                S(f's_mov_b32 m0, {dst + 1024*pc}', m0=True)
                S(f's_mov_b32 s{S_T2}, {src + 1024*pc}')
            lanes = min(64, (nbytes - 1024*pc) // 16)
            if lanes < 64: execn(lanes)
            a.vmem(f'buffer_load_dwordx4 v{V_L16}, s[{srd}:{srd+3}], s{S_T2} offen offset:{1024*(pc%4)} {sc} lds', [V_L16], [], tag=tag, dma=True)
            if lanes < 64: fullexec()
    def publish(n, off):
        a.raw(f'v_mov_b32 v{LT}, {n}', kind='valu')
        a.raw(f'ds_write_b32 v{LSY}, v{LT} offset:{off}', kind='ds')
    def l_flag(lo, hi):
        mk = ((1 << hi) - 1) & ~((1 << lo) - 1)
        S(f's_mov_b64 exec, 0x{mk:x}')
        a.vmem(f'buffer_load_dword v{LF}, v{LFA}, s[{S_DBGF}:{S_DBGF+3}], 0 offen sc1', [LFA], [LF])
        fullexec()
    def l_poll(lo, hi, lab, pre=None):
        mk = ((1 << hi) - 1) & ~((1 << lo) - 1)
        a._wait_regs([LF])
        S(f's_mov_b64 exec, 0x{mk:x}')
        S(f's_mov_b32 s{S_T0}, 0')
        a.label(f'L_poll{lab}')
        a.raw(f'v_cmp_ne_u32 vcc, 1, v{LF}', kind='valu')
        a.raw(f's_cbranch_vccz L_polldone{lab}', kind='branch')
        a.raw(f'buffer_load_dword v{LF}, v{LFA}, s[{S_DBGF}:{S_DBGF+3}], 0 offen sc1', kind='vmem')
        S(f's_add_u32 s{S_T0}, s{S_T0}, 1')
        S(f's_cmp_lt_u32 s{S_T0}, 0x40000')
        a.raw('s_waitcnt vmcnt(0)', kind='wait')
        if pre: publish(pre, 0)
        a.raw(f's_cbranch_scc1 L_poll{lab}', kind='branch')
        a.label(f'L_polldone{lab}')
        fullexec()
    def l_wait_lds(addr, off, stage, lab):
        a.raw(f's_mov_b32 s{S_T1}, 0x100000', kind='salu')
        a.label(f'L_dw{lab}')
        a.raw(f'ds_read_b32 v{LDV}, v{addr} offset:{off}', kind='ds')
        a.raw(f's_sub_u32 s{S_T1}, s{S_T1}, 1', kind='salu')
        a.raw(f's_cbranch_scc1 L_dn{lab}', kind='branch')
        a.raw('s_waitcnt lgkmcnt(0)', kind='wait')
        a.raw(f'v_cmp_gt_u32 vcc, {stage}, v{LDV}', kind='valu')
        a.raw(f's_cbranch_vccz L_dn{lab}', kind='branch')
        a.raw('s_sleep 1')
        a.raw(f's_branch L_dw{lab}', kind='branch')
        a.label(f'L_dn{lab}')
    for aa in range(4):
        S(f's_add_u32 s{S_T0}, s{S_Q}, {aa}'); S(f's_and_b32 s{S_T0}, s{S_T0}, 3'); S(f's_lshl_b32 s{S_T0}, s{S_T0}, 3'); S(f's_or_b32 s{S_T0}, s{S_T0}, s{S_CB}')
        S(f's_mul_i32 s{S_T0}, s{S_T0}, 1664')
        S(f's_mov_b32 m0, {IDXB + 1664*aa}', m0=True)
        a.vmem(f'buffer_load_dwordx4 v{V_L16}, s[{S_IDX}:{S_IDX+3}], s{S_T0} offen lds', [V_L16], [], tag='tab', dma=True)
        execn(40)
        a.vmem(f'buffer_load_dwordx4 v{V_L16}, s[{S_IDX}:{S_IDX+3}], s{S_T0} offen offset:1024 lds', [V_L16], [], tag='tab', dma=True)
        fullexec()
    a.raw('s_waitcnt lgkmcnt(0)', kind='wait')
    S(f's_cmp_ge_u32 s{S_PID}, {NP2}')
    a.raw('s_cbranch_scc1 L_lnobp', kind='branch')
    rawbar()
    a.label('L_lnobp')
    l_lin('tab', S_TAB, 0, TAB, 32000)
    rawbar()
    l_lin('tab', S_B1, 0, BW, 832); l_lin('tab', S_W2, 0, BW + 832, 832)
    for i in range(11):
        l_w1(i)
        if i == 3: a.wait_vm_tag('tab'); publish(1, 0)
        if i >= 5 and i % 2 == 1:
            a.wait_vm_tag(('c', i - 4)); publish(i - 2, 0)
    stamp('w1iss')
    for i in (7, 9, 10):
        a.wait_vm_tag(('c', i)); publish(i + 2, 0)
    l_flag(0, NP1)
    l_wait_lds(LDA, 0, 1, 'a')
    l_w1(11); l_w1(12)
    l_poll(0, NP1, 'a', pre=14); stamp('polled')
    l_lin(('i', 0), S_WS, WS_IMG0, I0B, IMG0, 'sc1')
    l_lin(('i', 0), S_WS, WS_EWT, EWT, 640, 'sc1')
    a.wait_vm_tag(('c', 12)); publish(14, 0)
    V(f'v_mov_b32 v{t[0]}, {WS_EWT + (32+15)*4}', [], [t[0]])
    a.vmem(f'buffer_load_dword v{LN}, v{t[0]}, s[{S_WS}:{S_WS+3}], 0 offen sc1', [t[0]], [LN])
    S(f's_lshr_b32 s{S_T0}, s2, 3'); S(f's_mul_i32 s{S_T0}, s{S_T0}, 4480'); S(f's_add_u32 s{S_T0}, s{S_T0}, {WS_IMG[1]}')
    for q in range(5):
        if q == 4: S(f's_add_u32 s{S_T0}, s{S_T0}, 4096'); execn(24)
        a.vmem(f'buffer_load_dwordx4 {vr(PF+4*q,4)}, v{V_L16}, s[{S_WS}:{S_WS+3}], s{S_T0} offen offset:{1024*(q%4)} sc1', [V_L16], R(PF+4*q, 4))
    fullexec()
    a.wait_vm_tag(('i', 0)); publish(1, 8)
    l_wait_lds(LDA, 0, 2, 'b')
    l_lin(('i', 1), S_WS, WS_IMG[1], U[0], IMG, 'sc1')
    l_wait_lds(LDA, 0, 3, 'c'); stamp('dnndone')
    l_lin(('i', 2), S_WS, WS_IMG[2], U[1], IMG, 'sc1')
    a.wait_vm_tag(('i', 1)); publish(2, 8); stamp('i1')
    l_lin(('i', 3), S_WS, WS_IMG[3], U[2], IMG, 'sc1')
    a.wait_vm_tag(('i', 2)); publish(3, 8)
    l_flag(NP1, NP2)
    l_wait_lds(LSY, 4, 8, 'd')
    V(f'v_lshlrev_b32 v{t[0]}, 3, v{V_LANE}', [V_LANE], [t[0]])
    V(f'v_add_u32 v{t[0]}, {PDL}, v{t[0]}', [t[0]], [t[0]])
    a.ds(f'ds_read_b64 {vr(LG+4,2)}, v{t[0]}', [t[0]], R(LG+4, 2))
    V(f'v_bfe_u32 v{t[1]}, v{V_LANE}, 3, 2', [V_LANE], [t[1]])
    V(f'v_add_u32 v{t[1]}, s{S_Q}, v{t[1]}', [t[1]], [t[1]])
    V(f'v_and_b32 v{t[1]}, 3, v{t[1]}', [t[1]], [t[1]])
    V(f'v_lshlrev_b32 v{t[1]}, 13, v{t[1]}', [t[1]], [t[1]])
    V(f'v_lshrrev_b32 v{t[2]}, 5, v{V_LANE}', [V_LANE], [t[2]])
    V(f'v_lshl_add_u32 v{t[1]}, v{t[2]}, 7, v{t[1]}', [t[2], t[1]], [t[1]])
    V(f'v_and_b32 v{t[2]}, 7, v{V_LANE}', [V_LANE], [t[2]])
    V(f'v_lshl_add_u32 v{t[1]}, v{t[2]}, 4, v{t[1]}', [t[2], t[1]], [t[1]])
    S(f's_lshl_b32 s{S_T0}, s{S_CB}, 10'); S(f's_lshl_b32 s{S_T1}, s{S_Q}, 8'); S(f's_add_u32 s{S_T0}, s{S_T0}, s{S_T1}'); S(f's_add_u32 s{S_T0}, s{S_T0}, {WS_INB}')
    V(f'v_mov_b32 v{LG}, v{LG+4}', [LG+4], [LG]); V(f'v_mov_b32 v{LG+1}, v{LN}', [LN], [LG+1])
    V(f'v_mov_b32 v{LG+2}, v{LG+5}', [LG+5], [LG+2]); V(f'v_mov_b32 v{LG+3}, v{LN}', [LN], [LG+3])
    a.vmem(f'buffer_store_dwordx4 {vr(LG,4)}, v{t[1]}, s[{S_WS}:{S_WS+3}], s{S_T0} offen sc1', [t[1]] + R(LG, 4), [], wide_store=R(LG, 4))
    a.wait_vm_tag(('i', 3)); publish(4, 8)
    l_wait_lds(LDA, 0, 4, 'e')
    l_lin(('i', 4), S_WS, WS_IMG[4], U[3], IMG, 'sc1')
    l_poll(NP1, NP2, 'b')
    l_lin('v5f', S_WS, WS_V5F, V5F, 4096, 'sc1')
    a.wait_vm_tag(('i', 4)); publish(5, 8)
    a.wait_vm_all(); publish(6, 8); stamp('i5')
    S(f's_lshl_b32 s{S_T2}, s2, 10'); S(f's_add_u32 s{S_T2}, s{S_T2}, {WS_INB}')
    S(f's_mov_b32 s{S_T0}, 0')
    a.label('L_inb')
    a.raw(f'buffer_load_dwordx4 {vr(LG+8,4)}, v{V_L16}, s[{S_WS}:{S_WS+3}], s{S_T2} offen sc1', kind='vmem')
    S(f's_add_u32 s{S_T0}, s{S_T0}, 1')
    a.raw('s_waitcnt vmcnt(0)', kind='wait')
    a.raw(f'v_cmp_ne_u32 vcc, v{LN}, v{LG+9}', kind='valu')
    a.raw(f'v_cmp_ne_u32 s[{S_MT}:{S_MT+1}], v{LN}, v{LG+11}', kind='valu')
    a.raw('s_nop 1', kind='nop')
    a.raw(f's_or_b64 vcc, vcc, s[{S_MT}:{S_MT+1}]', kind='salu')
    a.raw('s_cbranch_vccz L_inbok', kind='branch')
    S(f's_cmp_lt_u32 s{S_T0}, 0x40000')
    a.raw('s_cbranch_scc1 L_inb', kind='branch')
    a.label('L_inbok')
    V(f'v_mov_b32 v{LG+9}, v{LG+10}', [LG+10], [LG+9])
    V(f'v_lshlrev_b32 v{t[0]}, 3, v{V_LANE}', [V_LANE], [t[0]])
    V(f'v_add_u32 v{t[0]}, {PD}, v{t[0]}', [t[0]], [t[0]])
    a.ds(f'ds_write_b64 v{t[0]}, {vr(LG+8,2)}', [t[0], LG+8, LG+9])
    publish(7, 8)
    dbg_out()
    a.label('L_end')
    a.raw('s_endpgm')
    a.stamp_names = (names_c, a.stamp_names)
    return a

HEADER = open('cdna_kernels/' + NAME + '.s.ref').read().split('; Override launch geometry')[0]
def wrap(a):
    s = HEADER
    s += f'; @launch grid=(256,1,1) block=(576,1,1) lds={LDS_TOTAL}\n'
    s += '.amdgcn_target "amdgcn-amd-amdhsa--gfx950"\n.text\n'
    s += f'.globl {NAME}_kernel\n.p2align 8\n.type {NAME}_kernel,@function\n{NAME}_kernel:\n'
    s += a.text()
    s += f'''.section .rodata,"a"
.p2align 6
.amdhsa_kernel {NAME}_kernel
  .amdhsa_next_free_vgpr {NV}
  .amdhsa_next_free_sgpr 102
  .amdhsa_accum_offset {NV}
  .amdhsa_group_segment_fixed_size 0
  .amdhsa_kernarg_size 88
  .amdhsa_user_sgpr_count 2
  .amdhsa_user_sgpr_kernarg_segment_ptr 1
  .amdhsa_system_sgpr_workgroup_id_x 1
  .amdhsa_float_denorm_mode_32 3
.end_amdhsa_kernel
'''
    return s

if __name__ == '__main__':
    import argparse
    ap = argparse.ArgumentParser()
    ap.add_argument('out', nargs='?', default='cdna_kernels/' + NAME + '.s')
    ap.add_argument('--dbg', type=int, default=0)
    ap.add_argument('--prio', type=int, default=1)
    ap.add_argument('--splitepi', type=int, default=1)
    args = ap.parse_args()
    a = gen(debug=args.dbg, PRIO=args.prio, SPLITEPI=args.splitepi)
    open(args.out, 'w').write(wrap(a))
    print(a.count, 'lines', len(a.lines), a.stamp_names)
```

```python
import sys, struct
sys.path.insert(0, 'gen')
from asmfw import *

NAME = 'standalone__deep_cross_xdeepfm__recsys'
IMG = 35776; IMG0 = 19136
U = [IMG * i for i in range(4)]
CH = 7168
CPOS = [5, 6, 0, 1, 2, 3, 4, 7, 8, 9, 10, 5, 6]
TAB = 78848; IDXB = 110848
I0B = 143104 - IMG0
X16 = 143104
V5F = 156672; EWT = 160768; POOLW = 161408; BW = 162048
PDL = V5F
PD = BW
SYNC = 163712
LDS_TOTAL = 163776
WS_IMG0 = 0
WS_IMG = [None] + [19200 + IMG * i for i in range(4)]
WS_V5F = 19200 + 4 * IMG
WS_EWT = WS_V5F + 4096
WS_INB = 0x40000
WS_SIZE = WS_INB + 256 * 1024
NP1 = 17; NP2 = 21
S_IDX, S_TAB, S_WC, S_WCO, S_W1, S_B1, S_W2, S_BO, S_OUT, S_DBGF, S_WS = [24 + 4 * i for i in range(11)]
S_WAVE = 68; S_T0 = 69; S_T1 = 70; S_T2 = 71; S_T3 = 72; S_T4 = 73
S_HI = 74; S_C = 76; S_K7FFF = 77; S_K8000 = 78; S_Q = 79; S_K2 = 80; S_G = 81; S_HALF = 82
S_ROT = 83; S_MT = 84; S_PID = 86; S_CB = 87; S_XT = 88; S_T0L = 89; S_KO = 90; S_KN = 91
SM = [4, 6, 8, 10, 12, 14, 16]
V_LANE = 1
V_T = list(range(2, 12))
V_STAMP = 12; V_E = 13; V_EX = 14; V_ACC = 15
P16 = 16; V_SH = 30; V_L16 = 31
XQ = 32; V_TRADDR = 39; D = 40
ZB = [56, 60, 64]; ZL = 68
AB = [72, 76, 80, 84, 4, 8]; NAB = 6; PFD = 5
PW = 88; EW = 102
V_PWADDR = 101; V_DBADDR = 115
DACC = 116; DA = 132; DB = 148
QH = 152
V_AADDR = [159, 160]; V_AADDR0 = 161; V_DAADDR = 162; V_DBK = 163; V_BWADDR = 164; V_SYNC = 165; V_RDY = 166; V_DONEA = 167
G = DACC; UA = DA
PBT = 148
DA2 = 88; DB2 = 104
NV = 168

import os
PX = int(os.environ.get('PX', '0'))
NL = int(os.environ.get('NL', '5'))
def fb(x): return '0x%08x' % struct.unpack('<I', struct.pack('<f', x))[0]

def gen(debug=None, PRIO=1, SPLITEPI=1, LPRE=24):
    a = Asm()
    V = a.valu; S = a.salu
    t = V_T
    stamp_n = [0]
    a.stamp_names = []
    def stamp(name=''):
        if not debug: return
        a.wait_lds_all()
        a.raw('s_memtime s[98:99]')
        a.raw('s_waitcnt lgkmcnt(0)', kind='wait')
        a.valu(f'v_writelane_b32 v{V_STAMP}, s98, {stamp_n[0]}', [], [V_STAMP])
        a.stamp_names.append(name)
        stamp_n[0] += 1
    def execn(n):
        if n <= 32: S(f's_mov_b64 exec, 0x{(1<<n)-1:x}')
        else: S(f's_mov_b32 exec_hi, 0x{(1<<(n-32))-1:x}')
    def fullexec(): S('s_mov_b64 exec, -1')
    def rawbar(): a.raw('s_barrier', kind='barrier')
    def dbg_out():
        if not debug: return
        fullexec()
        stamp('end')
        a.valu(f'v_writelane_b32 v{V_STAMP}, s100, 62', [], [V_STAMP])
        a.raw('s_memrealtime s[98:99]')
        a.raw('s_waitcnt lgkmcnt(0)', kind='wait')
        a.valu(f'v_writelane_b32 v{V_STAMP}, s98, 63', [], [V_STAMP])
        V(f'v_lshlrev_b32 v{t[0]}, 2, v0', [0], [t[0]])
        S(f's_mul_i32 s{S_T0}, s2, 2304'); S(f's_add_u32 s{S_T0}, s{S_T0}, 0x100000')
        a.vmem(f'buffer_store_dword v{V_STAMP}, v{t[0]}, s[{S_WS}:{S_WS+3}], s{S_T0} offen', [V_STAMP, t[0]], [])
    S('s_cmp_ge_u32 s2, 256')
    a.raw('s_cbranch_scc1 L_end', kind='branch')
    if debug:
        a.raw('s_memrealtime s[100:101]')
        stamp('start')
    a.raw('s_load_dwordx16 s[4:19], s[0:1], 0')
    a.raw('s_load_dwordx4 s[20:23], s[0:1], 64')
    a.raw(f's_load_dwordx2 s[{S_WS}:{S_WS+1}], s[0:1], 80')
    V(f'v_and_b32 v{V_LANE}, 63, v0', [0], [V_LANE])
    V(f'v_lshrrev_b32 v{t[0]}, 6, v0', [0], [t[0]])
    V(f'v_readfirstlane_b32 s{S_WAVE}, v{t[0]}', [t[0]], [], swrites=[S_WAVE], readlane=True)
    S(f's_mov_b32 s{S_K7FFF}, 0x7fff7fff'); S(f's_mov_b32 s{S_K8000}, 0x80008000'); S(f's_mov_b32 s{S_HALF}, 0x38003800')
    S(f's_mov_b32 s{S_HI}, 0'); S(f's_mov_b32 s{S_HI+1}, -1')
    V(f'v_lshlrev_b32 v{V_L16}, 4, v{V_LANE}', [V_LANE], [V_L16])
    S(f's_lshr_b32 s{S_T0}, s2, 3'); S(f's_and_b32 s{S_Q}, s{S_T0}, 3'); S(f's_lshr_b32 s{S_T1}, s{S_T0}, 2')
    S(f's_lshr_b32 s{S_ROT}, s{S_T1}, 1'); S(f's_add_u32 s{S_ROT}, s{S_ROT}, s{S_T1}')
    S(f's_andn2_b32 s{S_CB}, s2, 0x18')
    if PX < 8:
        S(f's_and_b32 s{S_T1}, s2, 7'); S(f's_cmp_eq_u32 s{S_T1}, {PX}'); S(f's_cselect_b32 s{S_PID}, s{S_T0}, 255')
    else: S(f's_mov_b32 s{S_PID}, s2')
    S(f's_lshl_b32 s{S_G}, s{S_PID}, 3'); S(f's_add_u32 s{S_G}, s{S_G}, s{S_WAVE}', sreads=[S_WAVE])
    S(f's_min_u32 s{S_T0L}, s{S_Q}, 1'); S(f's_mul_i32 s{S_T1}, s{S_Q}, 6'); S(f's_add_u32 s{S_T0L}, s{S_T0L}, s{S_T1}')
    S(f's_cmp_lt_u32 s{S_WAVE}, 4'); S(f's_cselect_b32 s{S_XT}, 1, 0'); S(f's_cmp_lt_u32 s{S_Q}, 2'); S(f's_cselect_b32 s{S_XT}, s{S_XT}, 0')
    a.raw('s_waitcnt lgkmcnt(0)', kind='wait')
    sizes = [425984, 32000, 210912, 312, 346112, 832, 832, 2, 8192, 256]
    srds = [S_IDX, S_TAB, S_WC, S_WCO, S_W1, S_B1, S_W2, S_BO, S_OUT, S_DBGF]
    for i in range(10):
        sb, sz = srds[i], sizes[i]
        S(f's_mov_b32 s{sb}, s{4+2*i}'); S(f's_and_b32 s{sb+1}, s{5+2*i}, 0xffff')
        S(f's_mov_b32 s{sb+2}, {sz}'); S(f's_mov_b32 s{sb+3}, 0x00020000')
    S(f's_and_b32 s{S_WS+1}, s{S_WS+1}, 0xffff'); S(f's_mov_b32 s{S_WS+2}, {0x1000000 if debug else WS_SIZE}'); S(f's_mov_b32 s{S_WS+3}, 0x00020000')
    S(f's_cmp_eq_u32 s{S_WAVE}, 8')
    a.raw('s_cbranch_scc1 L_loader', kind='branch')

    def dpp_max(m):
        for d in ('row_shr:1 row_mask:0xf', 'row_shr:2 row_mask:0xf', 'row_shr:4 row_mask:0xf', 'row_shr:8 row_mask:0xf', 'row_bcast:15 row_mask:0xa', 'row_bcast:31 row_mask:0xc'):
            V(f'v_max_u32_dpp v{m}, v{m}, v{m} {d} bank_mask:0xf', [m], [m], dpp=True)
    def rho_salu(sh, st1, st2, clamp=True):
        S(f's_cmp_ge_u32 s{sh}, 13'); S(f's_cselect_b32 s{st1}, 1, 0')
        S(f's_mul_i32 s{st2}, s{st1}, 13'); S(f's_sub_u32 s{sh}, s{sh}, s{st2}')
        S(f's_lshl_b32 s{st2}, s{st1}, 2')
        S(f's_lshl_b32 s{st1}, s{st1}, 4'); S(f's_add_u32 s{st1}, s{st1}, s{sh}')
        S(f's_add_u32 s{st2}, s{st2}, s{sh}'); S(f's_and_b32 s{sh}, s{sh}, 12'); S(f's_add_u32 s{sh}, s{sh}, s{st2}')
        if clamp: S(f's_add_u32 s{sh}, s{sh}, 1'); S(f's_cmp_eq_u32 s{sh}, 29'); S(f's_cselect_b32 s{sh}, 0, s{sh}')

    S(f's_cmp_ge_u32 s{S_PID}, {NP2}')
    a.cond_begin('s_cbranch_scc1 L_noprod', 'L_noprod')
    p = [72 + i for i in range(16)]
    S(f's_cmp_ge_u32 s{S_G}, 136'); a.raw('s_cbranch_scc1 L_prodv5', kind='branch')
    S(f's_cmp_ge_u32 s{S_G}, 32'); a.raw('s_cbranch_scc1 L_prodrow', kind='branch')
    S(f's_cmp_ge_u32 s{S_G}, 26'); a.raw('s_cbranch_scc1 L_prodfin', kind='branch')
    MF = 116; IF = 124; SD = 40
    V(f'v_and_b32 v{p[0]}, 31, v{V_LANE}', [V_LANE], [p[0]])
    V(f'v_lshrrev_b32 v{p[1]}, 5, v{V_LANE}', [V_LANE], [p[1]])
    V(f'v_mul_u32_u24 v{p[2]}, 52, v{p[0]}', [p[0]], [p[2]])
    V(f'v_lshl_add_u32 v{p[2]}, v{p[1]}, 4, v{p[2]}', [p[1], p[2]], [p[2]])
    S(f's_mul_i32 s{S_T2}, s{S_G}, 1352')
    a.vmem(f'buffer_load_dwordx4 {vr(MF,4)}, v{p[2]}, s[{S_WC}:{S_WC+3}], s{S_T2} offen', [p[2]], R(MF, 4))
    a.vmem(f'buffer_load_dwordx4 {vr(MF+4,4)}, v{p[2]}, s[{S_WC}:{S_WC+3}], s{S_T2} offen offset:32', [p[2]], R(MF+4, 4))
    V(f'v_lshlrev_b32 v{p[3]}, 3, v{p[1]}', [p[1]], [p[3]])
    V(f'v_sub_u32 v{p[3]}, v{p[0]}, v{p[3]}', [p[0], p[3]], [p[3]])
    V(f'v_and_b32 v{p[4]}, 1, v{p[3]}', [p[3]], [p[4]])
    V(f'v_lshlrev_b32 v{p[4]}, 4, v{p[4]}', [p[4]], [p[4]])
    V(f'v_mov_b32 v{p[5]}, 0x3f80', [], [p[5]])
    V(f'v_lshlrev_b32 v{p[4]}, v{p[4]}, v{p[5]}', [p[4], p[5]], [p[4]])
    V(f'v_ashrrev_i32 v{p[3]}, 1, v{p[3]}', [p[3]], [p[3]])
    for ks in range(2):
        for r in range(4):
            V(f'v_cmp_eq_u32 vcc, {8*ks + r}, v{p[3]}', [p[3]], [], swrites=['vcc'])
            V(f'v_cndmask_b32 v{IF+4*ks+r}, 0, v{p[4]}, vcc', [p[4]], [IF+4*ks+r], sreads=['vcc'])
    V(f'v_lshrrev_b32 v{p[3]}, 1, v{p[0]}', [p[0]], [p[3]])
    V(f'v_and_b32 v{p[4]}, 1, v{p[0]}', [p[0]], [p[4]])
    V(f'v_subrev_u32 v{p[5]}, 1, v{p[3]}', [p[3]], [p[5]])
    V(f'v_mul_i32_i24 v{p[5]}, v{p[5]}, v{p[3]}', [p[5], p[3]], [p[5]])
    V(f'v_lshrrev_b32 v{p[5]}, 1, v{p[5]}', [p[5]], [p[5]])
    V(f'v_mul_u32_u24 v{p[6]}, 12, v{p[3]}', [p[3]], [p[6]])
    V(f'v_sub_u32 v{p[6]}, v{p[6]}, v{p[5]}', [p[6], p[5]], [p[6]])
    V(f'v_mul_u32_u24 v{p[5]}, 92, v{p[4]}', [p[4]], [p[5]])
    V(f'v_add_u32 v{p[6]}, v{p[6]}, v{p[5]}', [p[6], p[5]], [p[6]])
    V(f'v_lshl_add_u32 v{p[6]}, v{p[1]}, 1, v{p[6]}', [p[1], p[6]], [p[6]])
    S(f's_lshl_b32 s{S_T3}, s{S_WAVE}, 10'); S(f's_add_u32 s{S_T3}, s{S_T3}, {I0B}')
    V(f'v_lshlrev_b32 v{p[6]}, 2, v{p[6]}', [p[6]], [p[6]])
    V(f'v_add_u32 v{p[6]}, s{S_T3}, v{p[6]}', [p[6]], [p[6]])
    V(f'v_lshlrev_b32 v{p[5]}, 1, v{p[1]}', [p[1]], [p[5]])
    V(f'v_sub_u32 v{p[3]}, v{p[3]}, v{p[5]}', [p[3], p[5]], [p[3]])
    V(f'v_cmp_gt_u32 vcc, 26, v{p[0]}', [p[0]], [], swrites=['vcc'])
    V(f'v_mov_b32 v{p[5]}, 100', [], [p[5]])
    V(f'v_cndmask_b32 v{p[3]}, v{p[5]}, v{p[3]}, vcc', [p[5], p[3]], [p[3]], sreads=['vcc'])
    V(f'v_mov_b32 v{p[7]}, 0', [], [p[7]])
    V(f'v_mov_b32 v{p[8]}, s{S_T3}', [], [p[8]])
    a.ds(f'ds_write_b32 v{p[8]}, v{p[7]} offset:364', [p[8], p[7]])
    a.ds(f'ds_write_b32 v{p[8]}, v{p[7]} offset:732', [p[8], p[7]])
    V(f'v_add_u32 v{p[8]}, s{S_T3}, v{V_L16}', [V_L16], [p[8]])
    V(f'v_cmp_le_u32 vcc, 23, v{V_LANE}', [V_LANE], [], swrites=['vcc'])
    V(f'v_cndmask_b32 v{p[9]}, 0, 1, vcc', [], [p[9]], sreads=['vcc'])
    S(f's_mov_b32 s{S_T0}, s{S_G}')
    rho_salu(S_T0, S_T1, S_T4)
    V(f'v_mul_u32_u24 v{p[9]}, {25*368}, v{p[9]}', [p[9]], [p[9]])
    V(f'v_add_u32 v{p[9]}, v{p[9]}, v{V_L16}', [p[9], V_L16], [p[9]])
    S(f's_mul_i32 s{S_T0}, s{S_T0}, 368')
    a.mfma('v_mfma_f32_32x32x16_bf16', SD, MF, IF, None, 8, 16)
    a.mfma('v_mfma_f32_32x32x16_bf16', SD, MF+4, IF+4, SD, 8, 16)
    a.mfma('v_mfma_f32_32x32x16_bf16', SD, IF, MF, SD, 8, 16)
    a.mfma('v_mfma_f32_32x32x16_bf16', SD, IF+4, MF+4, SD, 8, 16)
    m = p[10]
    V(f'v_max3_f32 v{m}, |v{SD}|, |v{SD+1}|, |v{SD+2}|', R(SD, 3), [m])
    for r in range(3, 15, 2):
        V(f'v_max3_f32 v{m}, |v{SD+r}|, |v{SD+r+1}|, v{m}', [SD+r, SD+r+1, m], [m])
    dpp_max(m)
    V(f'v_frexp_exp_i32_f32 v{m}, v{m}', [m], [m])
    V(f'v_readlane_b32 s{S_T4}, v{m}, 63', [m], [], swrites=[S_T4], readlane=True)
    S(f's_sub_i32 s{S_C}, 15, s{S_T4}', sreads=[S_T4])
    S(f's_sub_i32 s{S_T4}, s{S_T4}, 15')
    for r in range(14): V(f'v_ldexp_f32 v{SD+r}, v{SD+r}, s{S_C}', [SD+r], [SD+r])
    for rp in range(7):
        V(f'v_cvt_pk_f16_f32 v{MF+rp}, v{SD+2*rp}, v{SD+2*rp+1}', [SD+2*rp, SD+2*rp+1], [MF+rp])
    for rp in range(7):
        aa, bb = rp >> 1, rp & 1
        V(f'v_cmp_ge_i32 vcc, {4*aa+bb}, v{p[3]}', [p[3]], [], swrites=['vcc'])
        if aa == 3: S('s_mov_b32 vcc_hi, 0', sreads=['vcc'])
        S('s_mov_b64 exec, vcc', sreads=['vcc'])
        a.ds(f'ds_write_b32 v{p[6]}, v{MF+rp} offset:{4*(4*aa+bb)}', [p[6], MF+rp])
        fullexec()
    a.raw('s_waitcnt lgkmcnt(0)', kind='wait')
    a.ds(f'ds_read_b128 {vr(IF,4)}, v{p[8]}', [p[8]], R(IF, 4))
    execn(46)
    a.vmem(f'buffer_store_dwordx4 {vr(IF,4)}, v{p[9]}, s[{S_WS}:{S_WS+3}], s{S_T0} offen sc1', [p[9]] + R(IF, 4), [], wide_store=R(IF, 4))
    fullexec()
    S(f's_lshl_b32 s{S_T1}, s{S_T1}, 2'); S(f's_add_u32 s{S_T1}, s{S_T1}, {WS_EWT}')
    V(f'v_mov_b32 v{p[11]}, s{S_T4}', [], [p[11]]); V(f'v_mov_b32 v{p[12]}, s{S_T1}', [], [p[12]])
    S('s_mov_b64 exec, 1')
    a.vmem(f'buffer_store_dword v{p[11]}, v{p[12]}, s[{S_WS}:{S_WS+3}], 0 offen sc1', [p[11], p[12]], [])
    a.raw('s_branch L_prodfin', kind='branch')
    a.label('L_prodrow')
    S(f's_sub_u32 s{S_G}, s{S_G}, 32')
    PR = 40; PA = 48
    S(f's_mul_i32 s{S_T2}, s{S_G}, 1352'); S(f's_add_u32 s{S_T2}, s{S_T2}, 35152')
    V(f'v_cmp_le_u32 vcc, 43, v{V_LANE}', [V_LANE], [], swrites=['vcc'])
    V(f'v_cndmask_b32 v{p[0]}, 0, 1, vcc', [], [p[0]], sreads=['vcc'])
    V(f'v_mul_u32_u24 v{p[2]}, 12, v{p[0]}', [p[0]], [p[2]])
    V(f'v_sub_u32 v{p[2]}, v{V_L16}, v{p[2]}', [V_L16, p[2]], [p[2]])
    a.vmem(f'buffer_load_dwordx4 {vr(PR,4)}, v{p[2]}, s[{S_WC}:{S_WC+3}], s{S_T2} offen', [p[2]], R(PR, 4))
    V(f'v_min_u32 v{p[3]}, 21, v{V_LANE}', [V_LANE], [p[3]])
    V(f'v_lshlrev_b32 v{p[4]}, 4, v{p[3]}', [p[3]], [p[4]])
    a.vmem(f'buffer_load_dwordx4 {vr(PR+4,4)}, v{p[4]}, s[{S_WC}:{S_WC+3}], s{S_T2} offen offset:1012', [p[4]], R(PR+4, 4))
    S(f's_mul_i32 s{S_T1}, s{S_G}, 2521'); S(f's_lshr_b32 s{S_T1}, s{S_T1}, 16')
    S(f's_mul_i32 s{S_T3}, s{S_T1}, 26'); S(f's_sub_u32 s{S_T0}, s{S_G}, s{S_T3}')
    rho_salu(S_T0, S_T3, S_T4)
    V(f'v_mul_u32_u24 v{p[7]}, {25*688}, v{p[0]}', [p[0]], [p[7]])
    V(f'v_add_u32 v{p[7]}, v{p[7]}, v{V_L16}', [p[7], V_L16], [p[7]])
    V(f'v_add_u32 v{p[8]}, {26*688+336}, v{p[4]}', [p[4]], [p[8]])
    S(f's_mul_i32 s{S_T0}, s{S_T0}, 688'); S(f's_mul_i32 s{S_T2}, s{S_T1}, {IMG}'); S(f's_add_u32 s{S_T2}, s{S_T2}, s{S_T0}'); S(f's_add_u32 s{S_T2}, s{S_T2}, {WS_IMG[1]}')
    S(f's_lshl_b32 s{S_T1}, s{S_T1}, 5'); S(f's_add_u32 s{S_T1}, s{S_T1}, s{S_T3}'); S(f's_add_u32 s{S_T1}, s{S_T1}, 32')
    for i in range(8): V(f'v_and_b32 v{PA+i}, s{S_K7FFF}, v{PR+i}', [PR+i], [PA+i])
    m = p[11]
    V(f'v_pk_maximum3_f16 v{m}, v{PA}, v{PA+1}, v{PA+2}', R(PA, 3), [m])
    V(f'v_pk_maximum3_f16 v{m}, v{m}, v{PA+3}, v{PA+4}', [m, PA+3, PA+4], [m])
    V(f'v_pk_maximum3_f16 v{m}, v{m}, v{PA+5}, v{PA+6}', [m, PA+5, PA+6], [m])
    V(f'v_pk_max_u16 v{m}, v{m}, v{PA+7}', [m, PA+7], [m])
    V(f'v_max_u16_sdwa v{m}, v{m}, v{m} dst_sel:DWORD dst_unused:UNUSED_PAD src0_sel:WORD_1 src1_sel:WORD_0', [m], [m], opsel=True)
    dpp_max(m)
    V(f'v_readlane_b32 s{S_T0}, v{m}, 63', [m], [], swrites=[S_T0], readlane=True)
    S(f's_lshr_b32 s{S_T0}, s{S_T0}, 7', sreads=[S_T0], swrites=[S_T0])
    S(f's_sub_i32 s{S_T0}, s{S_T0}, 30'); S(f's_max_i32 s{S_T0}, s{S_T0}, 0')
    S(f's_mul_i32 s{S_C}, s{S_T0}, 0x800080'); S(f's_sub_i32 s{S_T0}, s{S_T0}, 112')
    for i in range(8): V(f'v_pk_sub_u16 v{PA+i}, v{PA+i}, s{S_C} clamp', [PA+i], [PA+i])
    for i in range(8): V(f'v_lshlrev_b32 v{PA+i}, 3, v{PA+i}', [PA+i], [PA+i])
    for i in range(8): V(f'v_bfi_b32 v{PA+i}, s{S_K8000}, v{PR+i}, v{PA+i}', [PA+i, PR+i], [PA+i])
    a.vmem(f'buffer_store_dwordx4 {vr(PA,4)}, v{p[7]}, s[{S_WS}:{S_WS+3}], s{S_T2} offen sc1', [p[7]] + R(PA, 4), [], wide_store=R(PA, 4))
    execn(22)
    a.vmem(f'buffer_store_dwordx4 {vr(PA+4,4)}, v{p[8]}, s[{S_WS}:{S_WS+3}], s{S_T2} offen sc1', [p[8]] + R(PA+4, 4), [], wide_store=R(PA+4, 4))
    S(f's_lshl_b32 s{S_T1}, s{S_T1}, 2'); S(f's_add_u32 s{S_T1}, s{S_T1}, {WS_EWT}')
    V(f'v_mov_b32 v{p[9]}, s{S_T0}', [], [p[9]]); V(f'v_mov_b32 v{p[10]}, s{S_T1}', [], [p[10]])
    S('s_mov_b64 exec, 1')
    a.vmem(f'buffer_store_dword v{p[9]}, v{p[10]}, s[{S_WS}:{S_WS+3}], 0 offen sc1', [p[9], p[10]], [])
    S(f's_cmp_lg_u32 s{S_G}, 0'); a.raw('s_cbranch_scc1 L_prodfin', kind='branch')
    a.raw(f's_memrealtime s[{S_MT}:{S_MT+1}]')
    a.raw('s_waitcnt lgkmcnt(0)', kind='wait')
    V(f'v_mov_b32 v{p[12]}, s{S_MT}', [], [p[12]]); V(f'v_mov_b32 v{p[13]}, {WS_EWT + (32+15)*4}', [], [p[13]])
    a.vmem(f'buffer_store_dword v{p[12]}, v{p[13]}, s[{S_WS}:{S_WS+3}], 0 offen sc1', [p[12], p[13]], [])
    a.raw('s_branch L_prodfin', kind='branch')
    a.label('L_prodv5')
    S(f's_cmp_ge_u32 s{S_G}, 162'); a.raw('s_cbranch_scc1 L_prodfin', kind='branch')
    LA = 40; LB = 44; AC = 48
    S(f's_sub_u32 s{S_T0}, s{S_G}, 136')
    S(f's_mul_i32 s{S_T2}, s{S_T0}, 52'); S(f's_add_u32 s{S_T2}, s{S_T2}, {5*35152}')
    V(f'v_lshrrev_b32 v{p[0]}, 2, v{V_LANE}', [V_LANE], [p[0]])
    V(f'v_and_b32 v{p[1]}, 3, v{V_LANE}', [V_LANE], [p[1]])
    V(f'v_mul_u32_u24 v{p[2]}, 0x548, v{p[0]}', [p[0]], [p[2]])
    V(f'v_lshl_add_u32 v{p[2]}, v{p[1]}, 4, v{p[2]}', [p[1], p[2]], [p[2]])
    a.vmem(f'buffer_load_dwordx4 {vr(LA,4)}, v{p[2]}, s[{S_WC}:{S_WC+3}], s{S_T2} offen', [p[2]], R(LA, 4))
    S(f's_add_u32 s{S_T2}, s{S_T2}, {16*1352}')
    a.vmem(f'buffer_load_dwordx4 {vr(LB,4)}, v{p[2]}, s[{S_WC}:{S_WC+3}], s{S_T2} offen', [p[2]], R(LB, 4))
    V(f'v_lshlrev_b32 v{p[3]}, 1, v{p[0]}', [p[0]], [p[3]])
    a.vmem(f'buffer_load_ushort v{p[4]}, v{p[3]}, s[{S_WCO}:{S_WCO+3}], 0 offen offset:260', [p[3]], [p[4]])
    a.vmem(f'buffer_load_ushort v{p[5]}, v{p[3]}, s[{S_WCO}:{S_WCO+3}], 0 offen offset:292', [p[3]], [p[5]])
    rho_salu(S_T0, S_T1, S_T4, clamp=False)
    S(f's_lshl_b32 s{S_T0}, s{S_T0}, 4'); S(f's_add_u32 s{S_T0}, s{S_T0}, {WS_V5F}')
    V(f'v_lshlrev_b32 v{p[6]}, 10, v{p[1]}', [p[1]], [p[6]])
    V(f'v_cmp_ne_u32 vcc, 3, v{p[1]}', [p[1]], [], swrites=['vcc'])
    for r in (1, 2, 3):
        V(f'v_cndmask_b32 v{LA+r}, 0, v{LA+r}, vcc', [LA+r], [LA+r], sreads=['vcc'])
        V(f'v_cndmask_b32 v{LB+r}, 0, v{LB+r}, vcc', [LB+r], [LB+r], sreads=['vcc'])
    V(f'v_lshlrev_b32 v{p[4]}, 16, v{p[4]}', [p[4]], [p[4]])
    V(f'v_lshlrev_b32 v{p[5]}, 16, v{p[5]}', [p[5]], [p[5]])
    for r in range(4):
        V(f'v_lshlrev_b32 v{p[7]}, 16, v{LA+r}', [LA+r], [p[7]])
        V(f'v_and_b32 v{p[8]}, 0xffff0000, v{LA+r}', [LA+r], [p[8]])
        V(f'v_lshlrev_b32 v{p[9]}, 16, v{LB+r}', [LB+r], [p[9]])
        V(f'v_and_b32 v{p[10]}, 0xffff0000, v{LB+r}', [LB+r], [p[10]])
        V(f'v_mul_f32 v{AC+2*r}, v{p[4]}, v{p[7]}', [p[4], p[7]], [AC+2*r])
        V(f'v_mul_f32 v{AC+2*r+1}, v{p[4]}, v{p[8]}', [p[4], p[8]], [AC+2*r+1])
        V(f'v_fmac_f32 v{AC+2*r}, v{p[5]}, v{p[9]}', [AC+2*r, p[5], p[9]], [AC+2*r])
        V(f'v_fmac_f32 v{AC+2*r+1}, v{p[5]}, v{p[10]}', [AC+2*r+1, p[5], p[10]], [AC+2*r+1])
    for d in (4, 8):
        for e in range(8):
            V(f'v_add_f32_dpp v{AC+e}, v{AC+e}, v{AC+e} row_ror:{d} row_mask:0xf bank_mask:0xf', [AC+e], [AC+e], dpp=True)
    for op in ('v_permlane16_swap_b32', 'v_permlane32_swap_b32'):
        for e in range(8): V(f'v_mov_b32 v{p[7+e]}, v{AC+e}', [AC+e], [p[7+e]])
        for e in range(8): V(f'{op} v{AC+e}, v{p[7+e]}', [AC+e, p[7+e]], [AC+e, p[7+e]], permlane=True)
        for e in range(8): V(f'v_add_f32 v{AC+e}, v{AC+e}, v{p[7+e]}', [AC+e, p[7+e]], [AC+e])
    for r in range(4):
        V(f'v_cvt_pk_bf16_f32 v{LA+r}, v{AC+2*r}, v{AC+2*r+1}', [AC+2*r, AC+2*r+1], [LA+r])
        V(f'v_lshlrev_b32 v{p[7]}, 16, v{LA+r}', [LA+r], [p[7]])
        V(f'v_and_b32 v{p[8]}, 0xffff0000, v{LA+r}', [LA+r], [p[8]])
        V(f'v_sub_f32 v{p[7]}, v{AC+2*r}, v{p[7]}', [AC+2*r, p[7]], [p[7]])
        V(f'v_sub_f32 v{p[8]}, v{AC+2*r+1}, v{p[8]}', [AC+2*r+1, p[8]], [p[8]])
        V(f'v_cvt_pk_bf16_f32 v{LB+r}, v{p[7]}, v{p[8]}', [p[7], p[8]], [LB+r])
    execn(4)
    a.vmem(f'buffer_store_dwordx4 {vr(LA,4)}, v{p[6]}, s[{S_WS}:{S_WS+3}], s{S_T0} offen sc1', [p[6]] + R(LA, 4), [], wide_store=R(LA, 4))
    a.vmem(f'buffer_store_dwordx4 {vr(LB,4)}, v{p[6]}, s[{S_WS}:{S_WS+3}], s{S_T0} offen offset:512 sc1', [p[6]] + R(LB, 4), [], wide_store=R(LB, 4))
    a.label('L_prodfin')
    fullexec()
    a.raw('s_waitcnt vmcnt(0) lgkmcnt(0)', kind='wait')
    rawbar()
    S(f's_cmp_lg_u32 s{S_WAVE}, 0')
    a.raw('s_cbranch_scc1 L_noprod', kind='branch')
    S(f's_lshl_b32 s{S_T0}, s{S_PID}, 2')
    V(f'v_mov_b32 v{p[0]}, 1', [], [p[0]]); V(f'v_mov_b32 v{p[1]}, s{S_T0}', [], [p[1]])
    S('s_mov_b64 exec, 1')
    a.vmem(f'buffer_store_dword v{p[0]}, v{p[1]}, s[{S_DBGF}:{S_DBGF+3}], 0 offen sc1', [p[0], p[1]], [])
    fullexec()
    a.nop(2)
    a.cond_end()
    a.nop(12)
    stamp('prod')
    PWT = 136; BIGR = 137
    V(f'v_mov_b32 v{BIGR}, 0x7f000000', [], [BIGR])
    V(f'v_lshrrev_b32 v{t[0]}, 4, v0', [0], [t[0]])
    V(f'v_and_b32 v{t[1]}, 15, v0', [0], [t[1]])
    V(f'v_mad_u32_u24 v{t[0]}, v{t[0]}, 13, v{t[1]}', [t[0], t[1]], [t[0]])
    V(f'v_lshlrev_b32 v{t[0]}, 1, v{t[0]}', [t[0]], [t[0]])
    V(f'v_cmp_gt_u32 vcc, 13, v{t[1]}', [t[1]], [], swrites=['vcc'])
    V(f'v_cndmask_b32 v{t[0]}, v{BIGR}, v{t[0]}, vcc', [BIGR, t[0]], [t[0]], sreads=['vcc'])
    S(f's_cmp_gt_u32 s{S_WAVE}, 2')
    a.cond_begin('s_cbranch_scc1 L_nopw', 'L_nopw')
    a.vmem(f'buffer_load_ushort v{PWT}, v{t[0]}, s[{S_WCO}:{S_WCO+3}], 0 offen', [t[0]], [PWT])
    a.cond_end()
    V(f'v_mov_b32 v{t[2]}, 0', [], [t[2]])
    a.vmem(f'buffer_load_ushort v{V_ACC}, v{t[2]}, s[{S_BO}:{S_BO+3}], 0 offen', [t[2]], [V_ACC])
    def addr_setup():
        V(f'v_and_b32 v{t[0]}, 31, v{V_LANE}', [V_LANE], [t[0]])
        V(f'v_cmp_gt_u32 vcc, 28, v{t[0]}', [t[0]], [], swrites=['vcc'])
        V(f'v_addc_co_u32 v{t[4]}, vcc, 0, v{t[0]}, vcc', [t[0]], [t[4]], sreads=['vcc'], swrites=['vcc'])
        V(f'v_cmp_eq_u32 s[{S_MT}:{S_MT+1}], 28, v{t[0]}', [t[0]], [], swrites=[S_MT, S_MT+1])
        V(f'v_cndmask_b32 v{t[4]}, v{t[4]}, 0, s[{S_MT}:{S_MT+1}]', [t[4]], [t[4]], sreads=[S_MT])
        V(f'v_lshrrev_b32 v{t[1]}, 5, v{V_LANE}', [V_LANE], [t[1]])
        V(f'v_mad_u32_u24 v{t[4]}, v{t[1]}, 26, v{t[4]}', [t[1], t[4]], [t[4]])
        V(f'v_cmp_gt_u32 vcc, 25, v{t[0]}', [t[0]], [], swrites=['vcc'])
        S(f's_or_b64 vcc, vcc, s[{S_MT}:{S_MT+1}]', sreads=['vcc', S_MT])
        V(f'v_mov_b32 v{t[5]}, 0x40000', [], [t[5]])
        V(f'v_cndmask_b32 v{t[5]}, v{t[5]}, 0, vcc', [t[5]], [t[5]])
        S(f's_movk_i32 s{S_T0}, 0x2b0'); S(f's_movk_i32 s{S_T1}, 0x170')
        V(f'v_mad_u32_u24 v{V_AADDR[0]}, v{t[4]}, s{S_T0}, v{t[5]}', [t[4], t[5]], [V_AADDR[0]])
        V(f'v_add_u32 v{V_AADDR[1]}, {U[2]}, v{V_AADDR[0]}', [V_AADDR[0]], [V_AADDR[1]])
        V(f'v_mad_u32_u24 v{V_AADDR0}, v{t[4]}, s{S_T1}, v{t[5]}', [t[4], t[5]], [V_AADDR0])
        V(f'v_add_u32 v{V_AADDR0}, {I0B}, v{V_AADDR0}', [V_AADDR0], [V_AADDR0])
    V(f'v_and_b32 v{t[0]}, 31, v{V_LANE}', [V_LANE], [t[0]])
    V(f'v_lshlrev_b32 v{t[0]}, 2, v{t[0]}', [t[0]], [t[0]])
    S(f's_mul_i32 s{S_T0}, s{S_WAVE}, 1664'); S(f's_add_u32 s{S_T0}, s{S_T0}, {X16}')
    V(f'v_add_u32 v{V_TRADDR}, s{S_T0}, v{t[0]}', [t[0]], [V_TRADDR])
    V(f'v_lshrrev_b32 v{t[4]}, 4, v{V_LANE}', [V_LANE], [t[4]])
    V(f'v_lshrrev_b32 v{t[0]}, 2, v{V_LANE}', [V_LANE], [t[0]])
    V(f'v_mul_u32_u24 v{t[0]}, 224, v{t[0]}', [t[0]], [t[0]])
    V(f'v_and_b32 v{t[5]}, 3, v{V_LANE}', [V_LANE], [t[5]])
    V(f'v_lshl_add_u32 v{t[0]}, v{t[5]}, 3, v{t[0]}', [t[5], t[0]], [t[0]])
    S(f's_lshr_b32 s{S_T0}, s{S_WAVE}, 2'); S(f's_sub_u32 s{S_T0}, 1, s{S_T0}')
    S(f's_lshl_b32 s{S_T1}, s{S_T0}, 5')
    V(f'v_add_u32 v{V_DAADDR}, s{S_T1}, v{t[0]}', [t[0]], [V_DAADDR])
    V(f'v_add_u32 v{V_DBK}, 57344, v{V_DAADDR}', [V_DAADDR], [V_DBK])
    S(f's_lshl_b32 s{S_T2}, s{S_T0L}, 5'); S(f's_add_u32 s{S_T1}, s{S_T1}, s{S_T2}'); S(f's_add_u32 s{S_T1}, s{S_T1}, {BW - 32}')
    V(f'v_lshlrev_b32 v{t[4]}, 3, v{t[4]}', [t[4]], [t[4]])
    V(f'v_add_u32 v{V_BWADDR}, s{S_T1}, v{t[4]}', [t[4]], [V_BWADDR])
    V(f'v_mov_b32 v{V_SYNC}, {SYNC}', [], [V_SYNC])
    S(f's_lshl_b32 s{S_T0}, s{S_WAVE}, 2'); S(f's_add_u32 s{S_T0}, s{S_T0}, {SYNC + 32}')
    V(f'v_mov_b32 v{V_DONEA}, s{S_T0}', [], [V_DONEA])
    a.wait_vm_all()
    S(f's_cmp_gt_u32 s{S_WAVE}, 2')
    a.cond_begin('s_cbranch_scc1 L_nopw2', 'L_nopw2')
    V(f'v_lshlrev_b32 v{PWT}, 16, v{PWT}', [PWT], [PWT])
    V(f'v_lshlrev_b32 v{t[0]}, 2, v0', [0], [t[0]])
    V(f'v_add_u32 v{t[0]}, {POOLW}, v{t[0]}', [t[0]], [t[0]])
    V(f'v_cmp_gt_u32 vcc, 0xa0, v0', [0], [], swrites=['vcc'])
    S('s_mov_b64 exec, vcc', sreads=['vcc'])
    a.ds(f'ds_write_b32 v{t[0]}, v{PWT}', [t[0], PWT])
    fullexec()
    a.cond_end()
    a.barrier()
    S(f's_mov_b32 s{S_KN}, 0')
    stamp('setup')

    chk_n = [0]
    def rdy_fetch(off): a.ds(f'ds_read_b32 v{V_RDY}, v{V_SYNC} offset:{off}', [V_SYNC], [V_RDY])
    def rdy_check(nseq, off, fetched=False):
        if not fetched: rdy_fetch(off)
        i = chk_n[0]; chk_n[0] += 1
        V(f'v_readfirstlane_b32 s{S_T0}, v{V_RDY}', [V_RDY], [], swrites=[S_T0], readlane=True)
        S(f's_cmp_ge_u32 s{S_T0}, {nseq}', sreads=[S_T0])
        a.cond_begin(f's_cbranch_scc1 L_ok{i}', f'L_ok{i}')
        a.raw(f's_mov_b32 s{S_T1}, 0x100000', kind='salu')
        a.label(f'L_sp{i}')
        a.raw('s_sleep 1')
        a.raw(f'ds_read_b32 v{V_RDY}, v{V_SYNC} offset:{off}', kind='ds')
        a.raw(f's_sub_u32 s{S_T1}, s{S_T1}, 1', kind='salu')
        a.raw(f's_cbranch_scc1 L_ok{i}', kind='branch')
        a.raw('s_waitcnt lgkmcnt(0)', kind='wait')
        a.raw(f'v_readfirstlane_b32 s{S_T0}, v{V_RDY}', kind='valu')
        a.raw('s_nop 0', kind='nop')
        a.raw(f's_cmp_ge_u32 s{S_T0}, {nseq}', kind='salu')
        a.raw(f's_cbranch_scc0 L_sp{i}', kind='branch')
        a.cond_end()
    def cnt_check(nseq):
        i = chk_n[0]; chk_n[0] += 1
        S(f's_cmp_ge_u32 s{S_KN}, {nseq}')
        a.cond_begin(f's_cbranch_scc1 L_ok{i}', f'L_ok{i}')
        a.raw(f's_mov_b32 s{S_T1}, 0x100000', kind='salu')
        a.label(f'L_sp{i}')
        a.raw(f'ds_read_b32 v{V_RDY}, v{V_SYNC}', kind='ds')
        a.raw(f's_sub_u32 s{S_T1}, s{S_T1}, 1', kind='salu')
        a.raw(f's_cbranch_scc1 L_ok{i}', kind='branch')
        a.raw('s_waitcnt lgkmcnt(0)', kind='wait')
        a.raw(f'v_readfirstlane_b32 s{S_KN}, v{V_RDY}', kind='valu')
        a.raw('s_nop 0', kind='nop')
        a.raw(f's_cmp_ge_u32 s{S_KN}, {nseq}', kind='salu')
        a.raw(f's_cbranch_scc1 L_ok{i}', kind='branch')
        a.raw('s_sleep 1')
        a.raw(f's_branch L_sp{i}', kind='branch')
        a.cond_end()
    def release(stage):
        V(f'v_mov_b32 v{t[0]}, {stage}', [], [t[0]])
        a.ds(f'ds_write_b32 v{V_DONEA}, v{t[0]}', [V_DONEA, t[0]])

    def x0_ops():
        ops = []
        PB = PBT
        def rd():
            V(f'v_lshlrev_b32 v{V_ACC}, 16, v{V_ACC}', [V_ACC], [V_ACC])
            V(f'v_and_b32 v{t[0]}, 47, v{V_LANE}', [V_LANE], [t[0]])
            V(f'v_cmp_eq_u32 vcc, 0, v{t[0]}', [t[0]], [], swrites=['vcc'])
            V(f'v_cndmask_b32 v{V_ACC}, 0, v{V_ACC}, vcc', [V_ACC], [V_ACC], sreads=['vcc'])
        ops.append(rd)
        m = t[1]
        def c1():
            for v in range(13): V(f'v_and_b32 v{P16+v}, s{S_K7FFF}, v{PB+v}', [PB+v], [P16+v])
        ops.append(c1)
        def c2():
            V(f'v_pk_maximum3_f16 v{m}, v{P16}, v{P16+1}, v{P16+2}', R(P16, 3), [m])
            for v in range(3, 13, 2):
                V(f'v_pk_maximum3_f16 v{m}, v{m}, v{P16+v}, v{P16+v+1}', [m, P16+v, P16+v+1], [m])
            V(f'v_max_u16_sdwa v{m}, v{m}, v{m} dst_sel:DWORD dst_unused:UNUSED_PAD src0_sel:WORD_1 src1_sel:WORD_0', [m], [m], opsel=True)
            V(f'v_lshrrev_b32 v{m}, 7, v{m}', [m], [m])
            V(f'v_subrev_u32 v{m}, 21, v{m}', [m], [m])
            V(f'v_max_i32 v{m}, 0, v{m}', [m], [m])
            V(f'v_subrev_u32 v{V_EX}, 112, v{m}', [m], [V_EX])
            V(f'v_mul_u32_u24 v{m}, 0x800080, v{m}', [m], [m])
        ops.append(c2)
        ops.append(lambda: [V(f'v_pk_sub_u16 v{P16+v}, v{P16+v}, v{m} clamp', [P16+v, m], [P16+v]) for v in range(13)])
        ops.append(lambda: [V(f'v_lshlrev_b32 v{P16+v}, 3, v{P16+v}', [P16+v], [P16+v]) for v in range(13)])
        ops.append(lambda: [V(f'v_bfi_b32 v{P16+v}, s{S_K8000}, v{PB+v}, v{P16+v}', [P16+v, PB+v], [P16+v]) for v in range(13)])
        def qq():
            V(f'v_mov_b32 v{P16+13}, 0', [], [P16+13])
            V(f'v_mov_b32 v{t[2]}, 0x05040100', [], [t[2]])
            V(f'v_mov_b32 v{t[1]}, 0x07060302', [], [t[1]])
            V(f'v_cndmask_b32 v{t[2]}, v{t[2]}, v{t[1]}, s[{S_HI}:{S_HI+1}]', [t[2], t[1]], [t[2]])
            for q in range(7):
                V(f'v_perm_b32 v{XQ+q}, v{P16+2*q+1}, v{P16+2*q}, v{t[2]}', [P16+2*q+1, P16+2*q, t[2]], [XQ+q])
        ops.append(qq)
        def q2():
            V(f'v_lshlrev_b32 v{V_E}, 1, v{V_EX}', [V_EX], [V_E])
            for v in range(13): a.ds(f'ds_write_b32 v{V_TRADDR}, v{PB+v} offset:{128*v}', [V_TRADDR, PB+v])
        ops.append(q2)
        return ops

    DAB = [132, 40, 56]; DBB = [72, 76, 80]; IXR = 84; NDB = 3
    def dnn_reads(i, xt):
        da = DAB[i % NDB]; db = DBB[i % NDB]
        base = CPOS[i] * CH
        a.ds(f'ds_read_b64 {vr(db,2)}, v{IXR+2*i}', [IXR+2*i], R(db, 2))
        a.ds(f'ds_read_b64 {vr(db+2,2)}, v{IXR+2*i+1}', [IXR+2*i+1], R(db+2, 2))
        hi = base >= 57344; ro = 64 if xt else 32
        ad = V_DBK if hi else V_DAADDR; b0 = base - (57344 if hi else 0)
        for q in range(3):
            a.ds(f'ds_read_b64_tr_b16 {vr(da+4*q,2)}, v{ad} offset:{b0+ro+64*q}', [ad], R(da+4*q, 2))
            a.ds(f'ds_read_b64_tr_b16 {vr(da+4*q+2,2)}, v{ad} offset:{b0+ro+64*q+3584}', [ad], R(da+4*q+2, 2))
        if xt:
            a.ds(f'ds_read_b64_tr_b16 {vr(da+12,2)}, v{ad} offset:{b0}', [ad], R(da+12, 2))
            a.ds(f'ds_read_b64_tr_b16 {vr(da+14,2)}, v{ad} offset:{b0+3584}', [ad], R(da+14, 2))
    def dnn_mfma(i, xt):
        da = DAB[i % NDB]; db = DBB[i % NDB]
        for q in range(4 if xt else 3): a.mfma('v_mfma_f32_16x16x32_bf16', DACC+4*q, da+4*q, db, DACC+4*q, 4, 4)
    epi_n = [0]
    def dnn_epilogue():
        e = epi_n[0]; epi_n[0] += 1
        K1 = -2.0 * 1.4426950408889634 * 0.7978845608028654
        K2 = K1 * 0.044715
        acc = DB; W2T = [DB + 2, t[2], t[4], t[6]]
        S(f's_mov_b32 s{S_K2}, {fb(K2)}')
        V(f'v_mov_b32 v{DB+1}, {fb(K1)}', [], [DB+1])
        V(f'v_mov_b32 v{acc}, 0', [], [acc])
        offs = [64, 128, 192, 0]
        for q in range(4):
            a.ds(f'ds_read_b64 {vr(W2T[q],2)}, v{V_BWADDR} offset:{832+offs[q]}', [V_BWADDR], R(W2T[q], 2))
        def grp(qs):
            xs = [DACC + 4*q + r for q in qs for r in range(4)]
            ts = [DA + 4*q + r for q in qs for r in range(4)]
            for x, tt in zip(xs, ts): V(f'v_mul_f32 v{tt}, v{x}, v{x}', [x], [tt])
            for x, tt in zip(xs, ts): V(f'v_fma_f32 v{tt}, v{tt}, s{S_K2}, v{DB+1}', [tt, DB+1], [tt])
            for x, tt in zip(xs, ts): V(f'v_mul_f32 v{tt}, v{tt}, v{x}', [tt, x], [tt])
            for x, tt in zip(xs, ts): V(f'v_exp_f32 v{tt}, v{tt}', [tt], [tt], trans=True)
            for x, tt in zip(xs, ts): V(f'v_add_f32 v{tt}, 1.0, v{tt}', [tt], [tt])
            for x, tt in zip(xs, ts): V(f'v_rcp_f32 v{tt}, v{tt}', [tt], [tt], trans=True)
            for x, tt in zip(xs, ts): V(f'v_mul_f32 v{tt}, v{tt}, v{x}', [tt, x], [tt])
            for q in qs:
                w = W2T[q]; x0_ = DACC + 4*q
                V(f'v_lshlrev_b32 v{x0_}, 16, v{w}', [w], [x0_])
                V(f'v_and_b32 v{x0_+1}, 0xffff0000, v{w}', [w], [x0_+1])
                V(f'v_lshlrev_b32 v{x0_+2}, 16, v{w+1}', [w+1], [x0_+2])
                V(f'v_and_b32 v{x0_+3}, 0xffff0000, v{w+1}', [w+1], [x0_+3])
            for x, tt in zip(xs, ts): V(f'v_fmac_f32 v{acc}, v{tt}, v{x}', [acc, tt, x], [acc])
        grp([0, 1, 2])
        S(f's_cmp_eq_u32 s{S_XT}, 0')
        a.raw(f's_cbranch_scc1 L_dq4_{e}', kind='branch')
        grp([3])
        a.nop(2)
        a.label(f'L_dq4_{e}')
        for op in ('v_permlane16_swap_b32', 'v_permlane32_swap_b32'):
            V(f'v_mov_b32 v{DB+1}, v{acc}', [acc], [DB+1])
            V(f'{op} v{acc}, v{DB+1}', [acc, DB+1], [acc, DB+1], permlane=True)
            V(f'v_add_f32 v{acc}, v{acc}, v{DB+1}', [acc, DB+1], [acc])
        V(f'v_lshlrev_b32 v{t[0]}, 2, v{V_LANE}', [V_LANE], [t[0]])
        S(f's_lshl_b32 s{S_T0}, s{S_WAVE}, 6'); S(f's_add_u32 s{S_T0}, s{S_T0}, {PDL}')
        V(f'v_add_u32 v{t[0]}, s{S_T0}, v{t[0]}', [t[0]], [t[0]])
        V(f'v_mov_b32 v{t[1]}, 1', [], [t[1]])
        execn(16)
        a.ds(f'ds_write_b32 v{t[0]}, v{acc}', [t[0], acc])
        execn(1)
        a.ds(f'ds_add_u32 v{V_SYNC}, v{t[1]} offset:4', [V_SYNC, t[1]])
        fullexec()
        a.wait_lds_all()
    def u5_ops():
        ops = []
        def rd():
            V(f'v_add_u32 v{t[0]}, {V5F}, v{V_L16}', [V_L16], [t[0]])
            for k in range(4):
                a.ds(f'ds_read_b128 {vr(UA+4*k,4)}, v{t[0]} offset:{1024*k}', [t[0]], R(UA+4*k, 4))
            for k in range(4):
                a.ds(f'ds_read_b128 {vr(G+4*k,4)}, v{V_PWADDR} offset:{POOLW-EWT+128*4+16*k}', [V_PWADDR], R(G+4*k, 4))
        ops.append(rd)
        for k in range(4):
            def rb(k=k):
                for e in range(4 if k < 3 else 1):
                    a.ds(f'ds_read_b32 v{DB+e}, v{V_TRADDR} offset:{128*(4*k+e)}', [V_TRADDR], [DB+e])
            ops.append(rb)
            ops += [lambda: None] * 4
            if k == 3:
                def zz():
                    for r in (1, 2, 3): V(f'v_mov_b32 v{DB+r}, 0', [], [DB+r])
                ops.append(zz)
            ops.append(lambda k=k: a.mfma('v_mfma_f32_32x32x16_bf16', G, UA+4*k, DB, G, 8, 16))
            ops.append(lambda: None)
        return ops

    def boundary_ops(l):
        ops = []
        s_ = ZB[2]; mx = ZB[2]+1; my = ZB[2]+2
        W = PW if l < 4 else G
        for r in range(13):
            ops.append(lambda r=r: V(f'v_ldexp_f32 v{D+r}, v{D+r}, v{EW+r}', [D+r, EW+r], [D+r]))
        if l < 4:
            ops.append(lambda: V(f'v_max3_f32 v{mx}, |v{D}|, |v{D+1}|, |v{D+2}|', R(D, 3), [mx]))
            for r in range(3, 13, 2):
                ops.append(lambda r=r: V(f'v_max3_f32 v{mx}, |v{D+r}|, |v{D+r+1}|, v{mx}', [D+r, D+r+1, mx], [mx]))
            ops.append(lambda: V(f'v_mov_b32 v{my}, v{mx}', [mx], [my]))
        ops.append(lambda: V(f'v_mul_f32 v{s_}, v{D}, v{W}', [D, W], [s_]))
        ops.append(lambda: V(f'v_fmac_f32 v{s_}, v{D+1}, v{W+1}', [s_, D+1, W+1], [s_]))
        if l < 4:
            ops.append(lambda: V(f'v_permlane32_swap_b32 v{mx}, v{my}', [mx, my], [mx, my], permlane=True))
        ops.append(lambda: V(f'v_fmac_f32 v{s_}, v{D+2}, v{W+2}', [s_, D+2, W+2], [s_]))
        if l < 4:
            ops.append(lambda: V(f'v_max_f32 v{mx}, v{mx}, v{my}', [mx, my], [mx]))
            ops.append(lambda: V(f'v_frexp_exp_i32_f32 v{mx}, v{mx}', [mx], [mx]))
            ops.append(lambda: V(f'v_sub_u32 v{V_SH}, 8, v{mx}', [mx], [V_SH]))
        for r in range(3, 13):
            ops.append(lambda r=r: V(f'v_fmac_f32 v{s_}, v{D+r}, v{W+r}', [s_, D+r, W+r], [s_]))
        if l < 4:
            for r in range(13):
                ops.append(lambda r=r: V(f'v_ldexp_f32 v{D+r}, v{D+r}, v{V_SH}', [D+r, V_SH], [D+r]))
            for q in range(7):
                hi = D + 2*q + 1 if q < 6 else D + 12
                ops.append(lambda q=q, hi=hi: V(f'v_cvt_pk_f16_f32 v{XQ+q}, v{D+2*q}, v{hi}', [D+2*q, hi], [XQ+q]))
        ops.append(lambda: V(f'v_ldexp_f32 v{s_}, v{s_}, v{V_E}', [s_, V_E], [s_]))
        ops.append(lambda: V(f'v_add_f32 v{V_ACC}, v{V_ACC}, v{s_}', [V_ACC, s_], [V_ACC]))
        if l < 4:
            ops.append(lambda: V(f'v_sub_u32 v{V_E}, v{V_E}, v{V_SH}', [V_E, V_SH], [V_E]))
            ops.append(lambda: V(f'v_add_u32 v{V_E}, v{V_E}, v{V_EX}', [V_E, V_EX], [V_E]))
        if l == 0:
            ops.append(lambda: V(f'v_mov_b32 v{ZL+1}, 0', [], [ZL+1]))
            ops.append(lambda: V(f'v_mov_b32 v{ZL+2}, 0', [], [ZL+2]))
        return ops
    NK = [23, 43, 43, 43, 43]
    ISLOT = [None, 0, 1, 2, 3]
    def a_read(l, k):
        b = AB[k % NAB]
        if l == 0: ad = V_AADDR0; off = 16 * k
        else:
            sl = ISLOT[l]; ad = V_AADDR[sl >> 1]; off = IMG * (sl & 1) + 16 * k
        a.ds(f'ds_read_b128 {vr(b,4)}, v{ad} offset:{off}', [ad], R(b, 4))
    PAIRS0 = [(u, v) for u in range(13) for v in range(u, 13)]
    def zbuf(l, k):
        if k == NK[l] - 1: return ZL
        return ZB[k % 3]
    def z_ops(l, k):
        ops = []
        zb = zbuf(l, k)
        for e in range(4):
            q = 4 * k + e
            if l == 0:
                if q >= 91: break
                i, v = PAIRS0[q]; src = (QH if i == v else XQ) + (i >> 1)
            else:
                if q >= 169: break
                i, v = divmod(q, 13); src = XQ + (i >> 1)
            o = i & 1
            ops.append(lambda zb=zb, e=e, src=src, v=v, o=o: V(f'v_pk_mul_f16 v{zb+e}, v{src}, v{P16+v} op_sel:[{o},0] op_sel_hi:[{o},1]', [src, P16+v], [zb+e]))
        return ops
    def pwrd(l):
        for base, off in ((PW, POOLW - EWT + 128 * l), (EW, 128 * l)):
            if base == PW and l == 4: continue
            for k in range(3):
                a.ds(f'ds_read_b128 {vr(base+4*k,4)}, v{V_PWADDR} offset:{off+16*k}', [V_PWADDR], R(base+4*k, 4))
            a.ds(f'ds_read_b32 v{base+12}, v{V_PWADDR} offset:{off+48}', [V_PWADDR], [base+12])

    cnt_check(1)
    stamp('tab')
    OX = 132
    V(f'v_bfe_u32 v{t[0]}, v{V_LANE}, 4, 1', [V_LANE], [t[0]])
    V(f'v_mul_u32_u24 v{t[0]}, 104, v{t[0]}', [t[0]], [t[0]])
    V(f'v_and_b32 v{t[1]}, 12, v{V_LANE}', [V_LANE], [t[1]])
    V(f'v_add_u32 v{t[0]}, v{t[0]}, v{t[1]}', [t[0], t[1]], [t[0]])
    S(f's_mul_i32 s{S_T0}, s{S_WAVE}, 208'); S(f's_add_u32 s{S_T0}, s{S_T0}, {IDXB}')
    V(f'v_add_u32 v{t[0]}, s{S_T0}, v{t[0]}', [t[0]], [t[0]])
    V(f'v_and_b32 v{t[1]}, 15, v{V_LANE}', [V_LANE], [t[1]])
    V(f'v_mul_u32_u24 v{t[1]}, 104, v{t[1]}', [t[1]], [t[1]])
    S(f's_and_b32 s{S_T0}, s{S_WAVE}, 3'); S(f's_mul_i32 s{S_T0}, s{S_T0}, 1664'); S(f's_add_u32 s{S_T0}, s{S_T0}, {IDXB}')
    S(f's_add_u32 s{S_T2}, s{S_T0}, 104'); S(f's_lshl_b32 s{S_KO}, s{S_ROT}, 3'); S(f's_add_u32 s{S_KO}, s{S_KO}, s{S_T0}')
    for i in range(13):
        tt = t[2 + (i % 4)]
        V(f'v_add_u32 v{tt}, s{S_KO}, v{t[1]}', [t[1]], [tt])
        a.ds(f'ds_read_b64 {vr(IXR+2*i,2)}, v{tt}', [tt], R(IXR+2*i, 2))
        if i < 12:
            S(f's_add_u32 s{S_KO}, s{S_KO}, 8'); S(f's_cmp_eq_u32 s{S_KO}, s{S_T2}'); S(f's_cselect_b32 s{S_KO}, s{S_T0}, s{S_KO}')
    for q in range(7): a.ds(f'ds_read_b32 v{OX+q}, v{t[0]} offset:{16*q}', [t[0]], [OX+q])
    BT = 140
    for q, off in enumerate([64, 128, 192, 0]):
        a.ds(f'ds_read_b64 {vr(BT+2*q,2)}, v{V_BWADDR} offset:{off}', [V_BWADDR], R(BT+2*q, 2))
    V(f'v_and_b32 v{t[6]}, 3, v{V_LANE}', [V_LANE], [t[6]])
    V(f'v_lshlrev_b32 v{t[6]}, 3, v{t[6]}', [t[6]], [t[6]])
    V(f'v_add_u32 v{t[6]}, {TAB}, v{t[6]}', [t[6]], [t[6]])
    V(f'v_lshrrev_b32 v{t[7]}, 4, v{V_LANE}', [V_LANE], [t[7]])
    V(f'v_lshlrev_b32 v{t[7]}, 3, v{t[7]}', [t[7]], [t[7]])
    V(f'v_add_u32 v{t[7]}, {TAB}, v{t[7]}', [t[7]], [t[7]])
    for f in range(26):
        V(f'v_lshl_add_u32 v{IXR+f}, v{IXR+f}, 5, v{t[7]}', [IXR+f, t[7]], [IXR+f])
    for q in range(7):
        V(f'v_min_u32 v{OX+q}, 0x3e7, v{OX+q}', [OX+q], [OX+q])
        V(f'v_lshl_add_u32 v{OX+q}, v{OX+q}, 5, v{t[6]}', [OX+q, t[6]], [OX+q])
        a.ds(f'ds_read_b64_tr_b16 {vr(PBT+2*q,2)}, v{OX+q}', [OX+q], R(PBT+2*q, 2))
    for q in range(4):
        V(f'v_lshlrev_b32 v{DACC+4*q}, 16, v{BT+2*q}', [BT+2*q], [DACC+4*q])
        V(f'v_and_b32 v{DACC+4*q+1}, 0xffff0000, v{BT+2*q}', [BT+2*q], [DACC+4*q+1])
        V(f'v_lshlrev_b32 v{DACC+4*q+2}, 16, v{BT+2*q+1}', [BT+2*q+1], [DACC+4*q+2])
        V(f'v_and_b32 v{DACC+4*q+3}, 0xffff0000, v{BT+2*q+1}', [BT+2*q+1], [DACC+4*q+3])
    stamp('x0')
    a.wait_lds_all()
    import copy
    def dnn_loop(xt):
        x0o = x0_ops()
        CHK = {0: 3, 2: 5, 4: 7, 6: 9, 8: 11, 10: 12, 11: 14}
        def rd(i):
            if i in CHK: cnt_check(CHK[i])
            dnn_reads(i, xt)
        if xt:
            V(f'v_subrev_u32 v{V_DAADDR}, 32, v{V_DAADDR}', [V_DAADDR], [V_DAADDR])
            V(f'v_subrev_u32 v{V_DBK}, 32, v{V_DBK}', [V_DBK], [V_DBK])
        rd(0); rd(1)
        for i in range(13):
            a.comment(f'======== DNN step {i} xt={xt}')
            if i + 2 < 13: rd(i + 2)
            if i < len(x0o): x0o[i]()
            dnn_mfma(i, xt)
            if i in (1, 6, 12): release({1: 1, 6: 2, 12: 3}[i])
        a.wait_lds_all(); a.nop(8)
    S(f's_cmp_eq_u32 s{S_XT}, 0')
    a.raw('s_cbranch_scc1 L_dnn0', kind='branch')
    dnn_loop(1)
    a.raw('s_branch L_dnnend', kind='branch')
    a.label('L_dnn0')
    dnn_loop(0)
    a.label('L_dnnend')
    for q in range(7):
        V(f'v_pk_mul_f16 v{QH+q}, v{XQ+q}, s{S_HALF}', [XQ+q], [QH+q])
    addr_setup()
    V(f'v_lshrrev_b32 v{t[1]}, 5, v{V_LANE}', [V_LANE], [t[1]])
    V(f'v_lshlrev_b32 v{t[1]}, 6, v{t[1]}', [t[1]], [t[1]])
    V(f'v_add_u32 v{V_PWADDR}, {EWT}, v{t[1]}', [t[1]], [V_PWADDR])
    V(f'v_mov_b32 v{ZL+3}, 0', [], [ZL+3])
    stamp('dnn')
    if SPLITEPI:
        S(f's_cmp_ge_u32 s{S_WAVE}, 4')
        a.wait_lds_all(); a.nop(8)
        a.cond_begin('s_cbranch_scc1 L_noepiB', 'L_noepiB')
        dnn_epilogue()
        a.nop(2)
        a.cond_end()
    else: dnn_epilogue()
    for l in range(NL):
        a.comment(f'======== layer {l}')
        stamp(f'L{l}')
        rdy_check(l + 1, 8)
        for k in range(PFD): a_read(l, k)
        if l == 4:
            rdy_check(6, 8)
            u5 = u5_ops(); u5[0]()
            fq = u5[1:]
        else: fq = []
        for o in z_ops(l, 0): o()
        for o in z_ops(l, 1): o()
        if PRIO: a.raw('s_setprio 1')
        for k in range(NK[l]):
            if k == NK[l] - 8: pwrd(l)
            zo = z_ops(l, k + 2) if k + 2 < NK[l] else []
            if k % 2 == 0 and k + 1 < NK[l]: a._wait_regs(R(AB[(k + 1) % NAB], 4))
            a.mfma('v_mfma_f32_32x32x16_f16', D, AB[k % NAB], zbuf(l, k), D if k > 0 else None, 8, 16)
            if k + PFD < NK[l]: a_read(l, k + PFD)
            for o in zo: o()
            if PRIO and k == 2: a.raw('s_setprio 2')
            if fq and k >= 4: fq.pop(0)()
        assert not fq
        if l == 0: release(4)
        if l < 4:
            if PRIO: a.raw('s_setprio 0')
            for o in boundary_ops(l): o()
        if l == 0 and SPLITEPI:
            S(f's_cmp_lt_u32 s{S_WAVE}, 4')
            a.wait_lds_all()
            a.cond_begin('s_cbranch_scc1 L_noepiA', 'L_noepiA')
            dnn_epilogue()
            a.nop(2)
            a.cond_end()
    stamp('fin')
    rdy_check(7, 8)
    V(f'v_bfe_u32 v{t[5]}, v{V_LANE}, 4, 1', [V_LANE], [t[5]])
    V(f'v_and_b32 v{t[6]}, 15, v{V_LANE}', [V_LANE], [t[6]])
    V(f'v_lshl_add_u32 v{t[5]}, v{t[6]}, 4, v{t[5]}', [t[5], t[6]], [t[5]])
    V(f'v_lshlrev_b32 v{t[5]}, 2, v{t[5]}', [t[5]], [t[5]])
    S(f's_lshl_b32 s{S_T0}, s{S_WAVE}, 3'); S(f's_add_u32 s{S_T0}, s{S_T0}, {PD}')
    V(f'v_add_u32 v{t[5]}, s{S_T0}, v{t[5]}', [t[5]], [t[5]])
    V(f'v_and_b32 v{t[6]}, 40, v{V_LANE}', [V_LANE], [t[6]])
    V(f'v_cmp_eq_u32 vcc, 0, v{t[6]}', [t[6]], [], swrites=['vcc'])
    V(f'v_mov_b32 v{t[6]}, 0x30000', [], [t[6]])
    V(f'v_cndmask_b32 v{t[5]}, v{t[6]}, v{t[5]}, vcc', [t[5], t[6]], [t[5]], sreads=['vcc'])
    a.ds(f'ds_read_b32 v{t[6]}, v{t[5]}', [t[5]], [t[6]])
    if NL == 5:
        for o in boundary_ops(4): o()
    A_ = V_ACC
    V(f'v_add_f32 v{A_}, v{A_}, v{t[6]}', [A_, t[6]], [A_])
    for d in (8, 4, 2, 1):
        V(f'v_add_f32_dpp v{A_}, v{A_}, v{A_} row_ror:{d} row_mask:0xf bank_mask:0xf', [A_], [A_], dpp=True)
    V(f'v_mov_b32 v{t[5]}, v{A_}', [A_], [t[5]])
    V(f'v_permlane32_swap_b32 v{A_}, v{t[5]}', [A_, t[5]], [A_, t[5]], permlane=True)
    V(f'v_add_f32 v{A_}, v{A_}, v{t[5]}', [A_, t[5]], [A_])
    V(f'v_cvt_pk_bf16_f32 v{A_}, v{A_}, v{A_}', [A_], [A_])
    V(f'v_lshrrev_b32 v{t[5]}, 3, v{V_LANE}', [V_LANE], [t[5]])
    S(f's_lshl_b32 s{S_T0}, s2, 5'); S(f's_lshl_b32 s{S_T1}, s{S_WAVE}, 2'); S(f's_add_u32 s{S_T0}, s{S_T0}, s{S_T1}')
    S('s_mov_b64 exec, 0x10001')
    a.vmem(f'buffer_store_short v{A_}, v{t[5]}, s[{S_OUT}:{S_OUT+3}], s{S_T0} offen', [A_, t[5]], [])
    dbg_out()
    a.raw('s_endpgm')

    a.label('L_loader')
    a.lds = []; a.vm = []; a.valu_w = {}; a.mfma_w = {}; a.mfma_c = {}; a.trans_w = {}; a.store_src = {}; a.opsel_w = {}
    stamp_n[0] = 1
    names_c = a.stamp_names; a.stamp_names = []
    LF = 18; LFA = 19; LSY = 20; LDA = 21; LDV = 22; LT = 23; WO = 32; PF = 40; LN = 24; LG = 64
    S(f's_movk_i32 s{S_T0}, 4682')
    for k in range(7):
        V(f'v_add_u32 v{t[0]}, {64*k}, v{V_LANE}', [V_LANE], [t[0]])
        V(f'v_mul_u32_u24 v{t[1]}, s{S_T0}, v{t[0]}', [t[0]], [t[1]])
        V(f'v_lshrrev_b32 v{t[1]}, 16, v{t[1]}', [t[1]], [t[1]])
        V(f'v_mul_u32_u24 v{t[2]}, {832 - 224}, v{t[1]}', [t[1]], [t[2]])
        V(f'v_lshl_add_u32 v{WO+k}, v{t[0]}, 4, v{t[2]}', [t[0], t[2]], [WO+k])
    V(f'v_lshlrev_b32 v{LFA}, 2, v{V_LANE}', [V_LANE], [LFA])
    V(f'v_mov_b32 v{LSY}, {SYNC}', [], [LSY])
    V(f'v_add_u32 v{LDA}, {SYNC}, v{LFA}', [LFA], [LDA])
    V(f'v_mov_b32 v{LT}, 0', [], [LT])
    execn(16)
    a.ds(f'ds_write_b32 v{LDA}, v{LT}', [LDA, LT])
    fullexec()
    V(f'v_and_b32 v{LDA}, 28, v{LFA}', [LFA], [LDA])
    V(f'v_add_u32 v{LDA}, {SYNC + 32}, v{LDA}', [LDA], [LDA])
    S(f's_mul_i32 s{S_KO}, s{S_ROT}, 26624'); S(f's_lshl_b32 s{S_T0}, s{S_T0L}, 5'); S(f's_add_u32 s{S_KO}, s{S_KO}, s{S_T0}')
    S(f's_add_u32 s{S_T3}, s{S_T0}, {13*26624}')
    def l_w1(i):
        for k in range(7):
            S(f's_mov_b32 m0, {CPOS[i]*CH + 1024*k}', m0=True)
            a.vmem(f'buffer_load_dwordx4 v{WO+k}, s[{S_W1}:{S_W1+3}], s{S_KO} offen lds', [WO+k], [], tag=('c', i), dma=True)
        S(f's_add_u32 s{S_KO}, s{S_KO}, 26624'); S(f's_cmp_eq_u32 s{S_KO}, s{S_T3}'); S(f's_cselect_b32 s{S_T1}, {13*26624}, 0'); S(f's_sub_u32 s{S_KO}, s{S_KO}, s{S_T1}')
    def l_lin(tag, srd, src, dst, nbytes, sc=''):
        n = (nbytes + 1023) // 1024
        for pc in range(n):
            if pc % 4 == 0:
                S(f's_mov_b32 m0, {dst + 1024*pc}', m0=True)
                S(f's_mov_b32 s{S_T2}, {src + 1024*pc}')
            lanes = min(64, (nbytes - 1024*pc) // 16)
            if lanes < 64: execn(lanes)
            a.vmem(f'buffer_load_dwordx4 v{V_L16}, s[{srd}:{srd+3}], s{S_T2} offen offset:{1024*(pc%4)} {sc} lds', [V_L16], [], tag=tag, dma=True)
            if lanes < 64: fullexec()
    def publish(n, off):
        a.raw(f'v_mov_b32 v{LT}, {n}', kind='valu')
        a.raw(f'ds_write_b32 v{LSY}, v{LT} offset:{off}', kind='ds')
    def l_flag(lo, hi):
        mk = ((1 << hi) - 1) & ~((1 << lo) - 1)
        S(f's_mov_b64 exec, 0x{mk:x}')
        a.vmem(f'buffer_load_dword v{LF}, v{LFA}, s[{S_DBGF}:{S_DBGF+3}], 0 offen sc1', [LFA], [LF])
        fullexec()
    def l_poll(lo, hi, lab, pre=None):
        mk = ((1 << hi) - 1) & ~((1 << lo) - 1)
        a._wait_regs([LF])
        S(f's_mov_b64 exec, 0x{mk:x}')
        S(f's_mov_b32 s{S_T0}, 0')
        a.label(f'L_poll{lab}')
        a.raw(f'v_cmp_ne_u32 vcc, 1, v{LF}', kind='valu')
        a.raw(f's_cbranch_vccz L_polldone{lab}', kind='branch')
        a.raw(f'buffer_load_dword v{LF}, v{LFA}, s[{S_DBGF}:{S_DBGF+3}], 0 offen sc1', kind='vmem')
        S(f's_add_u32 s{S_T0}, s{S_T0}, 1')
        S(f's_cmp_lt_u32 s{S_T0}, 0x40000')
        a.raw('s_waitcnt vmcnt(0)', kind='wait')
        if pre: publish(pre, 0)
        a.raw(f's_cbranch_scc1 L_poll{lab}', kind='branch')
        a.label(f'L_polldone{lab}')
        fullexec()
    def l_wait_lds(addr, off, stage, lab):
        a.raw(f's_mov_b32 s{S_T1}, 0x100000', kind='salu')
        a.label(f'L_dw{lab}')
        a.raw(f'ds_read_b32 v{LDV}, v{addr} offset:{off}', kind='ds')
        a.raw(f's_sub_u32 s{S_T1}, s{S_T1}, 1', kind='salu')
        a.raw(f's_cbranch_scc1 L_dn{lab}', kind='branch')
        a.raw('s_waitcnt lgkmcnt(0)', kind='wait')
        a.raw(f'v_cmp_gt_u32 vcc, {stage}, v{LDV}', kind='valu')
        a.raw(f's_cbranch_vccz L_dn{lab}', kind='branch')
        a.raw('s_sleep 1')
        a.raw(f's_branch L_dw{lab}', kind='branch')
        a.label(f'L_dn{lab}')
    for aa in range(4):
        S(f's_add_u32 s{S_T0}, s{S_Q}, {aa}'); S(f's_and_b32 s{S_T0}, s{S_T0}, 3'); S(f's_lshl_b32 s{S_T0}, s{S_T0}, 3'); S(f's_or_b32 s{S_T0}, s{S_T0}, s{S_CB}')
        S(f's_mul_i32 s{S_T0}, s{S_T0}, 1664')
        S(f's_mov_b32 m0, {IDXB + 1664*aa}', m0=True)
        a.vmem(f'buffer_load_dwordx4 v{V_L16}, s[{S_IDX}:{S_IDX+3}], s{S_T0} offen lds', [V_L16], [], tag='tab', dma=True)
        execn(40)
        a.vmem(f'buffer_load_dwordx4 v{V_L16}, s[{S_IDX}:{S_IDX+3}], s{S_T0} offen offset:1024 lds', [V_L16], [], tag='tab', dma=True)
        fullexec()
    a.raw('s_waitcnt lgkmcnt(0)', kind='wait')
    S(f's_cmp_ge_u32 s{S_PID}, {NP2}')
    a.raw('s_cbranch_scc1 L_lnobp', kind='branch')
    rawbar()
    a.label('L_lnobp')
    l_lin('tab', S_TAB, 0, TAB, 32000)
    rawbar()
    l_lin('tab', S_B1, 0, BW, 832); l_lin('tab', S_W2, 0, BW + 832, 832)
    for i in range(11):
        l_w1(i)
        if i == 3: a.wait_vm_tag('tab'); publish(1, 0)
        if i >= 5 and i % 2 == 1:
            a.wait_vm_tag(('c', i - 4)); publish(i - 2, 0)
    stamp('w1iss')
    for i in (7, 9, 10):
        a.wait_vm_tag(('c', i)); publish(i + 2, 0)
    l_flag(0, NP1)
    l_wait_lds(LDA, 0, 1, 'a')
    l_w1(11); l_w1(12)
    l_poll(0, NP1, 'a', pre=14); stamp('polled')
    l_lin(('i', 0), S_WS, WS_IMG0, I0B, IMG0, 'sc1')
    l_lin(('i', 0), S_WS, WS_EWT, EWT, 640, 'sc1')
    a.wait_vm_tag(('c', 12)); publish(14, 0)
    V(f'v_mov_b32 v{t[0]}, {WS_EWT + (32+15)*4}', [], [t[0]])
    a.vmem(f'buffer_load_dword v{LN}, v{t[0]}, s[{S_WS}:{S_WS+3}], 0 offen sc1', [t[0]], [LN])
    S(f's_lshr_b32 s{S_T0}, s2, 3'); S(f's_mul_i32 s{S_T0}, s{S_T0}, 4480'); S(f's_add_u32 s{S_T0}, s{S_T0}, {WS_IMG[1]}')
    for q in range(5):
        if q == 4: S(f's_add_u32 s{S_T0}, s{S_T0}, 4096'); execn(24)
        a.vmem(f'buffer_load_dwordx4 {vr(PF+4*q,4)}, v{V_L16}, s[{S_WS}:{S_WS+3}], s{S_T0} offen offset:{1024*(q%4)} sc1', [V_L16], R(PF+4*q, 4))
    fullexec()
    a.wait_vm_tag(('i', 0)); publish(1, 8)
    l_wait_lds(LDA, 0, 2, 'b')
    l_lin(('i', 1), S_WS, WS_IMG[1], U[0], IMG, 'sc1')
    l_wait_lds(LDA, 0, 3, 'c'); stamp('dnndone')
    l_lin(('i', 2), S_WS, WS_IMG[2], U[1], IMG, 'sc1')
    a.wait_vm_tag(('i', 1)); publish(2, 8); stamp('i1')
    l_lin(('i', 3), S_WS, WS_IMG[3], U[2], IMG, 'sc1')
    a.wait_vm_tag(('i', 2)); publish(3, 8)
    l_flag(NP1, NP2)
    l_wait_lds(LSY, 4, 8, 'd')
    V(f'v_lshlrev_b32 v{t[0]}, 3, v{V_LANE}', [V_LANE], [t[0]])
    V(f'v_add_u32 v{t[0]}, {PDL}, v{t[0]}', [t[0]], [t[0]])
    a.ds(f'ds_read_b64 {vr(LG+4,2)}, v{t[0]}', [t[0]], R(LG+4, 2))
    V(f'v_bfe_u32 v{t[1]}, v{V_LANE}, 3, 2', [V_LANE], [t[1]])
    V(f'v_add_u32 v{t[1]}, s{S_Q}, v{t[1]}', [t[1]], [t[1]])
    V(f'v_and_b32 v{t[1]}, 3, v{t[1]}', [t[1]], [t[1]])
    V(f'v_lshlrev_b32 v{t[1]}, 13, v{t[1]}', [t[1]], [t[1]])
    V(f'v_lshrrev_b32 v{t[2]}, 5, v{V_LANE}', [V_LANE], [t[2]])
    V(f'v_lshl_add_u32 v{t[1]}, v{t[2]}, 7, v{t[1]}', [t[2], t[1]], [t[1]])
    V(f'v_and_b32 v{t[2]}, 7, v{V_LANE}', [V_LANE], [t[2]])
    V(f'v_lshl_add_u32 v{t[1]}, v{t[2]}, 4, v{t[1]}', [t[2], t[1]], [t[1]])
    S(f's_lshl_b32 s{S_T0}, s{S_CB}, 10'); S(f's_lshl_b32 s{S_T1}, s{S_Q}, 8'); S(f's_add_u32 s{S_T0}, s{S_T0}, s{S_T1}'); S(f's_add_u32 s{S_T0}, s{S_T0}, {WS_INB}')
    V(f'v_mov_b32 v{LG}, v{LG+4}', [LG+4], [LG]); V(f'v_mov_b32 v{LG+1}, v{LN}', [LN], [LG+1])
    V(f'v_mov_b32 v{LG+2}, v{LG+5}', [LG+5], [LG+2]); V(f'v_mov_b32 v{LG+3}, v{LN}', [LN], [LG+3])
    a.vmem(f'buffer_store_dwordx4 {vr(LG,4)}, v{t[1]}, s[{S_WS}:{S_WS+3}], s{S_T0} offen sc1', [t[1]] + R(LG, 4), [], wide_store=R(LG, 4))
    a.wait_vm_tag(('i', 3)); publish(4, 8)
    l_wait_lds(LDA, 0, 4, 'e')
    l_lin(('i', 4), S_WS, WS_IMG[4], U[3], IMG, 'sc1')
    l_poll(NP1, NP2, 'b')
    l_lin('v5f', S_WS, WS_V5F, V5F, 4096, 'sc1')
    a.wait_vm_tag(('i', 4)); publish(5, 8)
    a.wait_vm_all(); publish(6, 8); stamp('i5')
    S(f's_lshl_b32 s{S_T2}, s2, 10'); S(f's_add_u32 s{S_T2}, s{S_T2}, {WS_INB}')
    S(f's_mov_b32 s{S_T0}, 0')
    a.label('L_inb')
    a.raw(f'buffer_load_dwordx4 {vr(LG+8,4)}, v{V_L16}, s[{S_WS}:{S_WS+3}], s{S_T2} offen sc1', kind='vmem')
    S(f's_add_u32 s{S_T0}, s{S_T0}, 1')
    a.raw('s_waitcnt vmcnt(0)', kind='wait')
    a.raw(f'v_cmp_ne_u32 vcc, v{LN}, v{LG+9}', kind='valu')
    a.raw(f'v_cmp_ne_u32 s[{S_MT}:{S_MT+1}], v{LN}, v{LG+11}', kind='valu')
    a.raw('s_nop 1', kind='nop')
    a.raw(f's_or_b64 vcc, vcc, s[{S_MT}:{S_MT+1}]', kind='salu')
    a.raw('s_cbranch_vccz L_inbok', kind='branch')
    S(f's_cmp_lt_u32 s{S_T0}, 0x40000')
    a.raw('s_cbranch_scc1 L_inb', kind='branch')
    a.label('L_inbok')
    V(f'v_mov_b32 v{LG+9}, v{LG+10}', [LG+10], [LG+9])
    V(f'v_lshlrev_b32 v{t[0]}, 3, v{V_LANE}', [V_LANE], [t[0]])
    V(f'v_add_u32 v{t[0]}, {PD}, v{t[0]}', [t[0]], [t[0]])
    a.ds(f'ds_write_b64 v{t[0]}, {vr(LG+8,2)}', [t[0], LG+8, LG+9])
    publish(7, 8)
    dbg_out()
    a.label('L_end')
    a.raw('s_endpgm')
    a.stamp_names = (names_c, a.stamp_names)
    return a

HEADER = open('cdna_kernels/' + NAME + '.s.ref').read().split('; Override launch geometry')[0]
def wrap(a):
    s = HEADER
    s += f'; @launch grid=(256,1,1) block=(576,1,1) lds={LDS_TOTAL}\n'
    s += '.amdgcn_target "amdgcn-amd-amdhsa--gfx950"\n.text\n'
    s += f'.globl {NAME}_kernel\n.p2align 8\n.type {NAME}_kernel,@function\n{NAME}_kernel:\n'
    s += a.text()
    s += f'''.section .rodata,"a"
.p2align 6
.amdhsa_kernel {NAME}_kernel
  .amdhsa_next_free_vgpr {NV}
  .amdhsa_next_free_sgpr 102
  .amdhsa_accum_offset {NV}
  .amdhsa_group_segment_fixed_size 0
  .amdhsa_kernarg_size 88
  .amdhsa_user_sgpr_count 2
  .amdhsa_user_sgpr_kernarg_segment_ptr 1
  .amdhsa_system_sgpr_workgroup_id_x 1
  .amdhsa_float_denorm_mode_32 3
.end_amdhsa_kernel
'''
    return s

if __name__ == '__main__':
    import argparse
    ap = argparse.ArgumentParser()
    ap.add_argument('out', nargs='?', default='cdna_kernels/' + NAME + '.s')
    ap.add_argument('--dbg', type=int, default=0)
    ap.add_argument('--prio', type=int, default=1)
    ap.add_argument('--splitepi', type=int, default=1)
    args = ap.parse_args()
    a = gen(debug=args.dbg, PRIO=args.prio, SPLITEPI=args.splitepi)
    open(args.out, 'w').write(wrap(a))
    print(a.count, 'lines', len(a.lines), a.stamp_names)
```

```python
import sys, struct
sys.path.insert(0, 'gen')
from asmfw import *

NAME = 'standalone__deep_cross_xdeepfm__recsys'
IMG = 35776; IMG0 = 19136
U = [IMG * i for i in range(4)]
CH = 7168
CPOS = [5, 6, 0, 1, 2, 3, 4, 7, 8, 9, 10, 5, 6]
TAB = 78848; IDXB = 110848
I0B = 143104 - IMG0
X16 = 143104
V5F = 156672; EWT = 160768; POOLW = 161408; BW = 162048
PDL = V5F
PD = BW
SYNC = 163712
LDS_TOTAL = 163776
WS_IMG0 = 0
WS_IMG = [None] + [19200 + IMG * i for i in range(4)]
WS_V5F = 19200 + 4 * IMG
WS_EWT = WS_V5F + 4096
WS_INB = 0x40000
WS_SIZE = WS_INB + 256 * 1024
NP1 = 17; NP2 = 21
S_IDX, S_TAB, S_WC, S_WCO, S_W1, S_B1, S_W2, S_BO, S_OUT, S_DBGF, S_WS = [24 + 4 * i for i in range(11)]
S_WAVE = 68; S_T0 = 69; S_T1 = 70; S_T2 = 71; S_T3 = 72; S_T4 = 73
S_HI = 74; S_C = 76; S_K7FFF = 77; S_K8000 = 78; S_Q = 79; S_K2 = 80; S_G = 81; S_HALF = 82
S_ROT = 83; S_MT = 84; S_PID = 86; S_CB = 87; S_XT = 88; S_T0L = 89; S_KO = 90; S_KN = 91
SM = [4, 6, 8, 10, 12, 14, 16]
V_LANE = 1
V_T = list(range(2, 12))
V_STAMP = 12; V_E = 13; V_EX = 14; V_ACC = 15
P16 = 16; V_SH = 30; V_L16 = 31
XQ = 32; V_TRADDR = 39; D = 40
ZB = [56, 60, 64]; ZL = 68
AB = [72, 76, 80, 84, 4, 8]; NAB = 6; PFD = 5
PW = 88; EW = 102
V_PWADDR = 101; V_DBADDR = 115
DACC = 116; DA = 132; DB = 148
QH = 152
V_AADDR = [159, 160]; V_AADDR0 = 161; V_DAADDR = 162; V_DBK = 163; V_BWADDR = 164; V_SYNC = 165; V_RDY = 166; V_DONEA = 167
G = DACC; UA = DA
PBT = 148
DA2 = 88; DB2 = 104
NV = 168

import os
PX = int(os.environ.get('PX', '0'))
NL = int(os.environ.get('NL', '5'))
REP = int(os.environ.get('REP', '0'))
def fb(x): return '0x%08x' % struct.unpack('<I', struct.pack('<f', x))[0]

def gen(debug=None, PRIO=1, SPLITEPI=1, LPRE=24):
    a = Asm()
    V = a.valu; S = a.salu
    t = V_T
    stamp_n = [0]
    a.stamp_names = []
    def stamp(name=''):
        if not debug: return
        a.wait_lds_all()
        a.raw('s_memtime s[98:99]')
        a.raw('s_waitcnt lgkmcnt(0)', kind='wait')
        a.valu(f'v_writelane_b32 v{V_STAMP}, s98, {stamp_n[0]}', [], [V_STAMP])
        a.stamp_names.append(name)
        stamp_n[0] += 1
    def execn(n):
        if n <= 32: S(f's_mov_b64 exec, 0x{(1<<n)-1:x}')
        else: S(f's_mov_b32 exec_hi, 0x{(1<<(n-32))-1:x}')
    def fullexec(): S('s_mov_b64 exec, -1')
    def rawbar(): a.raw('s_barrier', kind='barrier')
    def dbg_out():
        if not debug: return
        fullexec()
        stamp('end')
        a.valu(f'v_writelane_b32 v{V_STAMP}, s100, 62', [], [V_STAMP])
        a.raw('s_memrealtime s[98:99]')
        a.raw('s_waitcnt lgkmcnt(0)', kind='wait')
        a.valu(f'v_writelane_b32 v{V_STAMP}, s98, 63', [], [V_STAMP])
        V(f'v_lshlrev_b32 v{t[0]}, 2, v0', [0], [t[0]])
        S(f's_mul_i32 s{S_T0}, s2, 2304'); S(f's_add_u32 s{S_T0}, s{S_T0}, 0x100000')
        a.vmem(f'buffer_store_dword v{V_STAMP}, v{t[0]}, s[{S_WS}:{S_WS+3}], s{S_T0} offen', [V_STAMP, t[0]], [])
    S('s_cmp_ge_u32 s2, 256')
    a.raw('s_cbranch_scc1 L_end', kind='branch')
    if debug:
        a.raw('s_memrealtime s[100:101]')
        stamp('start')
    if REP:
        a.raw('s_memtime s[92:93]'); a.raw('s_memrealtime s[94:95]')
    a.raw('s_load_dwordx16 s[4:19], s[0:1], 0')
    a.raw('s_load_dwordx4 s[20:23], s[0:1], 64')
    a.raw(f's_load_dwordx2 s[{S_WS}:{S_WS+1}], s[0:1], 80')
    V(f'v_and_b32 v{V_LANE}, 63, v0', [0], [V_LANE])
    V(f'v_lshrrev_b32 v{t[0]}, 6, v0', [0], [t[0]])
    V(f'v_readfirstlane_b32 s{S_WAVE}, v{t[0]}', [t[0]], [], swrites=[S_WAVE], readlane=True)
    S(f's_mov_b32 s{S_K7FFF}, 0x7fff7fff'); S(f's_mov_b32 s{S_K8000}, 0x80008000'); S(f's_mov_b32 s{S_HALF}, 0x38003800')
    S(f's_mov_b32 s{S_HI}, 0'); S(f's_mov_b32 s{S_HI+1}, -1')
    V(f'v_lshlrev_b32 v{V_L16}, 4, v{V_LANE}', [V_LANE], [V_L16])
    S(f's_lshr_b32 s{S_T0}, s2, 3'); S(f's_and_b32 s{S_Q}, s{S_T0}, 3'); S(f's_lshr_b32 s{S_T1}, s{S_T0}, 2')
    S(f's_lshr_b32 s{S_ROT}, s{S_T1}, 1'); S(f's_add_u32 s{S_ROT}, s{S_ROT}, s{S_T1}')
    S(f's_andn2_b32 s{S_CB}, s2, 0x18')
    if PX < 8:
        S(f's_and_b32 s{S_T1}, s2, 7'); S(f's_cmp_eq_u32 s{S_T1}, {PX}'); S(f's_cselect_b32 s{S_PID}, s{S_T0}, 255')
    else: S(f's_mov_b32 s{S_PID}, s2')
    S(f's_lshl_b32 s{S_G}, s{S_PID}, 3'); S(f's_add_u32 s{S_G}, s{S_G}, s{S_WAVE}', sreads=[S_WAVE])
    S(f's_min_u32 s{S_T0L}, s{S_Q}, 1'); S(f's_mul_i32 s{S_T1}, s{S_Q}, 6'); S(f's_add_u32 s{S_T0L}, s{S_T0L}, s{S_T1}')
    S(f's_cmp_lt_u32 s{S_WAVE}, 4'); S(f's_cselect_b32 s{S_XT}, 1, 0'); S(f's_cmp_lt_u32 s{S_Q}, 2'); S(f's_cselect_b32 s{S_XT}, s{S_XT}, 0')
    a.raw('s_waitcnt lgkmcnt(0)', kind='wait')
    sizes = [425984, 32000, 210912, 312, 346112, 832, 832, 2, 8192, 256]
    srds = [S_IDX, S_TAB, S_WC, S_WCO, S_W1, S_B1, S_W2, S_BO, S_OUT, S_DBGF]
    for i in range(10):
        sb, sz = srds[i], sizes[i]
        S(f's_mov_b32 s{sb}, s{4+2*i}'); S(f's_and_b32 s{sb+1}, s{5+2*i}, 0xffff')
        S(f's_mov_b32 s{sb+2}, {sz}'); S(f's_mov_b32 s{sb+3}, 0x00020000')
    S(f's_and_b32 s{S_WS+1}, s{S_WS+1}, 0xffff'); S(f's_mov_b32 s{S_WS+2}, {0x1000000 if debug else WS_SIZE}'); S(f's_mov_b32 s{S_WS+3}, 0x00020000')
    S(f's_cmp_eq_u32 s{S_WAVE}, 8')
    a.raw('s_cbranch_scc1 L_loader', kind='branch')

    def dpp_max(m):
        for d in ('row_shr:1 row_mask:0xf', 'row_shr:2 row_mask:0xf', 'row_shr:4 row_mask:0xf', 'row_shr:8 row_mask:0xf', 'row_bcast:15 row_mask:0xa', 'row_bcast:31 row_mask:0xc'):
            V(f'v_max_u32_dpp v{m}, v{m}, v{m} {d} bank_mask:0xf', [m], [m], dpp=True)
    def rho_salu(sh, st1, st2, clamp=True):
        S(f's_cmp_ge_u32 s{sh}, 13'); S(f's_cselect_b32 s{st1}, 1, 0')
        S(f's_mul_i32 s{st2}, s{st1}, 13'); S(f's_sub_u32 s{sh}, s{sh}, s{st2}')
        S(f's_lshl_b32 s{st2}, s{st1}, 2')
        S(f's_lshl_b32 s{st1}, s{st1}, 4'); S(f's_add_u32 s{st1}, s{st1}, s{sh}')
        S(f's_add_u32 s{st2}, s{st2}, s{sh}'); S(f's_and_b32 s{sh}, s{sh}, 12'); S(f's_add_u32 s{sh}, s{sh}, s{st2}')
        if clamp: S(f's_add_u32 s{sh}, s{sh}, 1'); S(f's_cmp_eq_u32 s{sh}, 29'); S(f's_cselect_b32 s{sh}, 0, s{sh}')

    S(f's_cmp_ge_u32 s{S_PID}, {NP2}')
    a.cond_begin('s_cbranch_scc1 L_noprod', 'L_noprod')
    p = [72 + i for i in range(16)]
    S(f's_cmp_ge_u32 s{S_G}, 136'); a.raw('s_cbranch_scc1 L_prodv5', kind='branch')
    S(f's_cmp_ge_u32 s{S_G}, 32'); a.raw('s_cbranch_scc1 L_prodrow', kind='branch')
    S(f's_cmp_ge_u32 s{S_G}, 26'); a.raw('s_cbranch_scc1 L_prodfin', kind='branch')
    MF = 116; IF = 124; SD = 40
    V(f'v_and_b32 v{p[0]}, 31, v{V_LANE}', [V_LANE], [p[0]])
    V(f'v_lshrrev_b32 v{p[1]}, 5, v{V_LANE}', [V_LANE], [p[1]])
    V(f'v_mul_u32_u24 v{p[2]}, 52, v{p[0]}', [p[0]], [p[2]])
    V(f'v_lshl_add_u32 v{p[2]}, v{p[1]}, 4, v{p[2]}', [p[1], p[2]], [p[2]])
    S(f's_mul_i32 s{S_T2}, s{S_G}, 1352')
    a.vmem(f'buffer_load_dwordx4 {vr(MF,4)}, v{p[2]}, s[{S_WC}:{S_WC+3}], s{S_T2} offen', [p[2]], R(MF, 4))
    a.vmem(f'buffer_load_dwordx4 {vr(MF+4,4)}, v{p[2]}, s[{S_WC}:{S_WC+3}], s{S_T2} offen offset:32', [p[2]], R(MF+4, 4))
    V(f'v_lshlrev_b32 v{p[3]}, 3, v{p[1]}', [p[1]], [p[3]])
    V(f'v_sub_u32 v{p[3]}, v{p[0]}, v{p[3]}', [p[0], p[3]], [p[3]])
    V(f'v_and_b32 v{p[4]}, 1, v{p[3]}', [p[3]], [p[4]])
    V(f'v_lshlrev_b32 v{p[4]}, 4, v{p[4]}', [p[4]], [p[4]])
    V(f'v_mov_b32 v{p[5]}, 0x3f80', [], [p[5]])
    V(f'v_lshlrev_b32 v{p[4]}, v{p[4]}, v{p[5]}', [p[4], p[5]], [p[4]])
    V(f'v_ashrrev_i32 v{p[3]}, 1, v{p[3]}', [p[3]], [p[3]])
    for ks in range(2):
        for r in range(4):
            V(f'v_cmp_eq_u32 vcc, {8*ks + r}, v{p[3]}', [p[3]], [], swrites=['vcc'])
            V(f'v_cndmask_b32 v{IF+4*ks+r}, 0, v{p[4]}, vcc', [p[4]], [IF+4*ks+r], sreads=['vcc'])
    V(f'v_lshrrev_b32 v{p[3]}, 1, v{p[0]}', [p[0]], [p[3]])
    V(f'v_and_b32 v{p[4]}, 1, v{p[0]}', [p[0]], [p[4]])
    V(f'v_subrev_u32 v{p[5]}, 1, v{p[3]}', [p[3]], [p[5]])
    V(f'v_mul_i32_i24 v{p[5]}, v{p[5]}, v{p[3]}', [p[5], p[3]], [p[5]])
    V(f'v_lshrrev_b32 v{p[5]}, 1, v{p[5]}', [p[5]], [p[5]])
    V(f'v_mul_u32_u24 v{p[6]}, 12, v{p[3]}', [p[3]], [p[6]])
    V(f'v_sub_u32 v{p[6]}, v{p[6]}, v{p[5]}', [p[6], p[5]], [p[6]])
    V(f'v_mul_u32_u24 v{p[5]}, 92, v{p[4]}', [p[4]], [p[5]])
    V(f'v_add_u32 v{p[6]}, v{p[6]}, v{p[5]}', [p[6], p[5]], [p[6]])
    V(f'v_lshl_add_u32 v{p[6]}, v{p[1]}, 1, v{p[6]}', [p[1], p[6]], [p[6]])
    S(f's_lshl_b32 s{S_T3}, s{S_WAVE}, 10'); S(f's_add_u32 s{S_T3}, s{S_T3}, {I0B}')
    V(f'v_lshlrev_b32 v{p[6]}, 2, v{p[6]}', [p[6]], [p[6]])
    V(f'v_add_u32 v{p[6]}, s{S_T3}, v{p[6]}', [p[6]], [p[6]])
    V(f'v_lshlrev_b32 v{p[5]}, 1, v{p[1]}', [p[1]], [p[5]])
    V(f'v_sub_u32 v{p[3]}, v{p[3]}, v{p[5]}', [p[3], p[5]], [p[3]])
    V(f'v_cmp_gt_u32 vcc, 26, v{p[0]}', [p[0]], [], swrites=['vcc'])
    V(f'v_mov_b32 v{p[5]}, 100', [], [p[5]])
    V(f'v_cndmask_b32 v{p[3]}, v{p[5]}, v{p[3]}, vcc', [p[5], p[3]], [p[3]], sreads=['vcc'])
    V(f'v_mov_b32 v{p[7]}, 0', [], [p[7]])
    V(f'v_mov_b32 v{p[8]}, s{S_T3}', [], [p[8]])
    a.ds(f'ds_write_b32 v{p[8]}, v{p[7]} offset:364', [p[8], p[7]])
    a.ds(f'ds_write_b32 v{p[8]}, v{p[7]} offset:732', [p[8], p[7]])
    V(f'v_add_u32 v{p[8]}, s{S_T3}, v{V_L16}', [V_L16], [p[8]])
    V(f'v_cmp_le_u32 vcc, 23, v{V_LANE}', [V_LANE], [], swrites=['vcc'])
    V(f'v_cndmask_b32 v{p[9]}, 0, 1, vcc', [], [p[9]], sreads=['vcc'])
    S(f's_mov_b32 s{S_T0}, s{S_G}')
    rho_salu(S_T0, S_T1, S_T4)
    V(f'v_mul_u32_u24 v{p[9]}, {25*368}, v{p[9]}', [p[9]], [p[9]])
    V(f'v_add_u32 v{p[9]}, v{p[9]}, v{V_L16}', [p[9], V_L16], [p[9]])
    S(f's_mul_i32 s{S_T0}, s{S_T0}, 368')
    a.mfma('v_mfma_f32_32x32x16_bf16', SD, MF, IF, None, 8, 16)
    a.mfma('v_mfma_f32_32x32x16_bf16', SD, MF+4, IF+4, SD, 8, 16)
    a.mfma('v_mfma_f32_32x32x16_bf16', SD, IF, MF, SD, 8, 16)
    a.mfma('v_mfma_f32_32x32x16_bf16', SD, IF+4, MF+4, SD, 8, 16)
    m = p[10]
    V(f'v_max3_f32 v{m}, |v{SD}|, |v{SD+1}|, |v{SD+2}|', R(SD, 3), [m])
    for r in range(3, 15, 2):
        V(f'v_max3_f32 v{m}, |v{SD+r}|, |v{SD+r+1}|, v{m}', [SD+r, SD+r+1, m], [m])
    dpp_max(m)
    V(f'v_frexp_exp_i32_f32 v{m}, v{m}', [m], [m])
    V(f'v_readlane_b32 s{S_T4}, v{m}, 63', [m], [], swrites=[S_T4], readlane=True)
    S(f's_sub_i32 s{S_C}, 15, s{S_T4}', sreads=[S_T4])
    S(f's_sub_i32 s{S_T4}, s{S_T4}, 15')
    for r in range(14): V(f'v_ldexp_f32 v{SD+r}, v{SD+r}, s{S_C}', [SD+r], [SD+r])
    for rp in range(7):
        V(f'v_cvt_pk_f16_f32 v{MF+rp}, v{SD+2*rp}, v{SD+2*rp+1}', [SD+2*rp, SD+2*rp+1], [MF+rp])
    for rp in range(7):
        aa, bb = rp >> 1, rp & 1
        V(f'v_cmp_ge_i32 vcc, {4*aa+bb}, v{p[3]}', [p[3]], [], swrites=['vcc'])
        if aa == 3: S('s_mov_b32 vcc_hi, 0', sreads=['vcc'])
        S('s_mov_b64 exec, vcc', sreads=['vcc'])
        a.ds(f'ds_write_b32 v{p[6]}, v{MF+rp} offset:{4*(4*aa+bb)}', [p[6], MF+rp])
        fullexec()
    a.raw('s_waitcnt lgkmcnt(0)', kind='wait')
    a.ds(f'ds_read_b128 {vr(IF,4)}, v{p[8]}', [p[8]], R(IF, 4))
    execn(46)
    a.vmem(f'buffer_store_dwordx4 {vr(IF,4)}, v{p[9]}, s[{S_WS}:{S_WS+3}], s{S_T0} offen sc1', [p[9]] + R(IF, 4), [], wide_store=R(IF, 4))
    fullexec()
    S(f's_lshl_b32 s{S_T1}, s{S_T1}, 2'); S(f's_add_u32 s{S_T1}, s{S_T1}, {WS_EWT}')
    V(f'v_mov_b32 v{p[11]}, s{S_T4}', [], [p[11]]); V(f'v_mov_b32 v{p[12]}, s{S_T1}', [], [p[12]])
    S('s_mov_b64 exec, 1')
    a.vmem(f'buffer_store_dword v{p[11]}, v{p[12]}, s[{S_WS}:{S_WS+3}], 0 offen sc1', [p[11], p[12]], [])
    a.raw('s_branch L_prodfin', kind='branch')
    a.label('L_prodrow')
    S(f's_sub_u32 s{S_G}, s{S_G}, 32')
    PR = 40; PA = 48
    S(f's_mul_i32 s{S_T2}, s{S_G}, 1352'); S(f's_add_u32 s{S_T2}, s{S_T2}, 35152')
    V(f'v_cmp_le_u32 vcc, 43, v{V_LANE}', [V_LANE], [], swrites=['vcc'])
    V(f'v_cndmask_b32 v{p[0]}, 0, 1, vcc', [], [p[0]], sreads=['vcc'])
    V(f'v_mul_u32_u24 v{p[2]}, 12, v{p[0]}', [p[0]], [p[2]])
    V(f'v_sub_u32 v{p[2]}, v{V_L16}, v{p[2]}', [V_L16, p[2]], [p[2]])
    a.vmem(f'buffer_load_dwordx4 {vr(PR,4)}, v{p[2]}, s[{S_WC}:{S_WC+3}], s{S_T2} offen', [p[2]], R(PR, 4))
    V(f'v_min_u32 v{p[3]}, 21, v{V_LANE}', [V_LANE], [p[3]])
    V(f'v_lshlrev_b32 v{p[4]}, 4, v{p[3]}', [p[3]], [p[4]])
    a.vmem(f'buffer_load_dwordx4 {vr(PR+4,4)}, v{p[4]}, s[{S_WC}:{S_WC+3}], s{S_T2} offen offset:1012', [p[4]], R(PR+4, 4))
    S(f's_mul_i32 s{S_T1}, s{S_G}, 2521'); S(f's_lshr_b32 s{S_T1}, s{S_T1}, 16')
    S(f's_mul_i32 s{S_T3}, s{S_T1}, 26'); S(f's_sub_u32 s{S_T0}, s{S_G}, s{S_T3}')
    rho_salu(S_T0, S_T3, S_T4)
    V(f'v_mul_u32_u24 v{p[7]}, {25*688}, v{p[0]}', [p[0]], [p[7]])
    V(f'v_add_u32 v{p[7]}, v{p[7]}, v{V_L16}', [p[7], V_L16], [p[7]])
    V(f'v_add_u32 v{p[8]}, {26*688+336}, v{p[4]}', [p[4]], [p[8]])
    S(f's_mul_i32 s{S_T0}, s{S_T0}, 688'); S(f's_mul_i32 s{S_T2}, s{S_T1}, {IMG}'); S(f's_add_u32 s{S_T2}, s{S_T2}, s{S_T0}'); S(f's_add_u32 s{S_T2}, s{S_T2}, {WS_IMG[1]}')
    S(f's_lshl_b32 s{S_T1}, s{S_T1}, 5'); S(f's_add_u32 s{S_T1}, s{S_T1}, s{S_T3}'); S(f's_add_u32 s{S_T1}, s{S_T1}, 32')
    for i in range(8): V(f'v_and_b32 v{PA+i}, s{S_K7FFF}, v{PR+i}', [PR+i], [PA+i])
    m = p[11]
    V(f'v_pk_maximum3_f16 v{m}, v{PA}, v{PA+1}, v{PA+2}', R(PA, 3), [m])
    V(f'v_pk_maximum3_f16 v{m}, v{m}, v{PA+3}, v{PA+4}', [m, PA+3, PA+4], [m])
    V(f'v_pk_maximum3_f16 v{m}, v{m}, v{PA+5}, v{PA+6}', [m, PA+5, PA+6], [m])
    V(f'v_pk_max_u16 v{m}, v{m}, v{PA+7}', [m, PA+7], [m])
    V(f'v_max_u16_sdwa v{m}, v{m}, v{m} dst_sel:DWORD dst_unused:UNUSED_PAD src0_sel:WORD_1 src1_sel:WORD_0', [m], [m], opsel=True)
    dpp_max(m)
    V(f'v_readlane_b32 s{S_T0}, v{m}, 63', [m], [], swrites=[S_T0], readlane=True)
    S(f's_lshr_b32 s{S_T0}, s{S_T0}, 7', sreads=[S_T0], swrites=[S_T0])
    S(f's_sub_i32 s{S_T0}, s{S_T0}, 30'); S(f's_max_i32 s{S_T0}, s{S_T0}, 0')
    S(f's_mul_i32 s{S_C}, s{S_T0}, 0x800080'); S(f's_sub_i32 s{S_T0}, s{S_T0}, 112')
    for i in range(8): V(f'v_pk_sub_u16 v{PA+i}, v{PA+i}, s{S_C} clamp', [PA+i], [PA+i])
    for i in range(8): V(f'v_lshlrev_b32 v{PA+i}, 3, v{PA+i}', [PA+i], [PA+i])
    for i in range(8): V(f'v_bfi_b32 v{PA+i}, s{S_K8000}, v{PR+i}, v{PA+i}', [PA+i, PR+i], [PA+i])
    a.vmem(f'buffer_store_dwordx4 {vr(PA,4)}, v{p[7]}, s[{S_WS}:{S_WS+3}], s{S_T2} offen sc1', [p[7]] + R(PA, 4), [], wide_store=R(PA, 4))
    execn(22)
    a.vmem(f'buffer_store_dwordx4 {vr(PA+4,4)}, v{p[8]}, s[{S_WS}:{S_WS+3}], s{S_T2} offen sc1', [p[8]] + R(PA+4, 4), [], wide_store=R(PA+4, 4))
    S(f's_lshl_b32 s{S_T1}, s{S_T1}, 2'); S(f's_add_u32 s{S_T1}, s{S_T1}, {WS_EWT}')
    V(f'v_mov_b32 v{p[9]}, s{S_T0}', [], [p[9]]); V(f'v_mov_b32 v{p[10]}, s{S_T1}', [], [p[10]])
    S('s_mov_b64 exec, 1')
    a.vmem(f'buffer_store_dword v{p[9]}, v{p[10]}, s[{S_WS}:{S_WS+3}], 0 offen sc1', [p[9], p[10]], [])
    S(f's_cmp_lg_u32 s{S_G}, 0'); a.raw('s_cbranch_scc1 L_prodfin', kind='branch')
    a.raw(f's_memrealtime s[{S_MT}:{S_MT+1}]')
    a.raw('s_waitcnt lgkmcnt(0)', kind='wait')
    V(f'v_mov_b32 v{p[12]}, s{S_MT}', [], [p[12]]); V(f'v_mov_b32 v{p[13]}, {WS_EWT + (32+15)*4}', [], [p[13]])
    a.vmem(f'buffer_store_dword v{p[12]}, v{p[13]}, s[{S_WS}:{S_WS+3}], 0 offen sc1', [p[12], p[13]], [])
    a.raw('s_branch L_prodfin', kind='branch')
    a.label('L_prodv5')
    S(f's_cmp_ge_u32 s{S_G}, 162'); a.raw('s_cbranch_scc1 L_prodfin', kind='branch')
    LA = 40; LB = 44; AC = 48
    S(f's_sub_u32 s{S_T0}, s{S_G}, 136')
    S(f's_mul_i32 s{S_T2}, s{S_T0}, 52'); S(f's_add_u32 s{S_T2}, s{S_T2}, {5*35152}')
    V(f'v_lshrrev_b32 v{p[0]}, 2, v{V_LANE}', [V_LANE], [p[0]])
    V(f'v_and_b32 v{p[1]}, 3, v{V_LANE}', [V_LANE], [p[1]])
    V(f'v_mul_u32_u24 v{p[2]}, 0x548, v{p[0]}', [p[0]], [p[2]])
    V(f'v_lshl_add_u32 v{p[2]}, v{p[1]}, 4, v{p[2]}', [p[1], p[2]], [p[2]])
    a.vmem(f'buffer_load_dwordx4 {vr(LA,4)}, v{p[2]}, s[{S_WC}:{S_WC+3}], s{S_T2} offen', [p[2]], R(LA, 4))
    S(f's_add_u32 s{S_T2}, s{S_T2}, {16*1352}')
    a.vmem(f'buffer_load_dwordx4 {vr(LB,4)}, v{p[2]}, s[{S_WC}:{S_WC+3}], s{S_T2} offen', [p[2]], R(LB, 4))
    V(f'v_lshlrev_b32 v{p[3]}, 1, v{p[0]}', [p[0]], [p[3]])
    a.vmem(f'buffer_load_ushort v{p[4]}, v{p[3]}, s[{S_WCO}:{S_WCO+3}], 0 offen offset:260', [p[3]], [p[4]])
    a.vmem(f'buffer_load_ushort v{p[5]}, v{p[3]}, s[{S_WCO}:{S_WCO+3}], 0 offen offset:292', [p[3]], [p[5]])
    rho_salu(S_T0, S_T1, S_T4, clamp=False)
    S(f's_lshl_b32 s{S_T0}, s{S_T0}, 4'); S(f's_add_u32 s{S_T0}, s{S_T0}, {WS_V5F}')
    V(f'v_lshlrev_b32 v{p[6]}, 10, v{p[1]}', [p[1]], [p[6]])
    V(f'v_cmp_ne_u32 vcc, 3, v{p[1]}', [p[1]], [], swrites=['vcc'])
    for r in (1, 2, 3):
        V(f'v_cndmask_b32 v{LA+r}, 0, v{LA+r}, vcc', [LA+r], [LA+r], sreads=['vcc'])
        V(f'v_cndmask_b32 v{LB+r}, 0, v{LB+r}, vcc', [LB+r], [LB+r], sreads=['vcc'])
    V(f'v_lshlrev_b32 v{p[4]}, 16, v{p[4]}', [p[4]], [p[4]])
    V(f'v_lshlrev_b32 v{p[5]}, 16, v{p[5]}', [p[5]], [p[5]])
    for r in range(4):
        V(f'v_lshlrev_b32 v{p[7]}, 16, v{LA+r}', [LA+r], [p[7]])
        V(f'v_and_b32 v{p[8]}, 0xffff0000, v{LA+r}', [LA+r], [p[8]])
        V(f'v_lshlrev_b32 v{p[9]}, 16, v{LB+r}', [LB+r], [p[9]])
        V(f'v_and_b32 v{p[10]}, 0xffff0000, v{LB+r}', [LB+r], [p[10]])
        V(f'v_mul_f32 v{AC+2*r}, v{p[4]}, v{p[7]}', [p[4], p[7]], [AC+2*r])
        V(f'v_mul_f32 v{AC+2*r+1}, v{p[4]}, v{p[8]}', [p[4], p[8]], [AC+2*r+1])
        V(f'v_fmac_f32 v{AC+2*r}, v{p[5]}, v{p[9]}', [AC+2*r, p[5], p[9]], [AC+2*r])
        V(f'v_fmac_f32 v{AC+2*r+1}, v{p[5]}, v{p[10]}', [AC+2*r+1, p[5], p[10]], [AC+2*r+1])
    for d in (4, 8):
        for e in range(8):
            V(f'v_add_f32_dpp v{AC+e}, v{AC+e}, v{AC+e} row_ror:{d} row_mask:0xf bank_mask:0xf', [AC+e], [AC+e], dpp=True)
    for op in ('v_permlane16_swap_b32', 'v_permlane32_swap_b32'):
        for e in range(8): V(f'v_mov_b32 v{p[7+e]}, v{AC+e}', [AC+e], [p[7+e]])
        for e in range(8): V(f'{op} v{AC+e}, v{p[7+e]}', [AC+e, p[7+e]], [AC+e, p[7+e]], permlane=True)
        for e in range(8): V(f'v_add_f32 v{AC+e}, v{AC+e}, v{p[7+e]}', [AC+e, p[7+e]], [AC+e])
    for r in range(4):
        V(f'v_cvt_pk_bf16_f32 v{LA+r}, v{AC+2*r}, v{AC+2*r+1}', [AC+2*r, AC+2*r+1], [LA+r])
        V(f'v_lshlrev_b32 v{p[7]}, 16, v{LA+r}', [LA+r], [p[7]])
        V(f'v_and_b32 v{p[8]}, 0xffff0000, v{LA+r}', [LA+r], [p[8]])
        V(f'v_sub_f32 v{p[7]}, v{AC+2*r}, v{p[7]}', [AC+2*r, p[7]], [p[7]])
        V(f'v_sub_f32 v{p[8]}, v{AC+2*r+1}, v{p[8]}', [AC+2*r+1, p[8]], [p[8]])
        V(f'v_cvt_pk_bf16_f32 v{LB+r}, v{p[7]}, v{p[8]}', [p[7], p[8]], [LB+r])
    execn(4)
    a.vmem(f'buffer_store_dwordx4 {vr(LA,4)}, v{p[6]}, s[{S_WS}:{S_WS+3}], s{S_T0} offen sc1', [p[6]] + R(LA, 4), [], wide_store=R(LA, 4))
    a.vmem(f'buffer_store_dwordx4 {vr(LB,4)}, v{p[6]}, s[{S_WS}:{S_WS+3}], s{S_T0} offen offset:512 sc1', [p[6]] + R(LB, 4), [], wide_store=R(LB, 4))
    a.label('L_prodfin')
    fullexec()
    a.raw('s_waitcnt vmcnt(0) lgkmcnt(0)', kind='wait')
    rawbar()
    S(f's_cmp_lg_u32 s{S_WAVE}, 0')
    a.raw('s_cbranch_scc1 L_noprod', kind='branch')
    S(f's_lshl_b32 s{S_T0}, s{S_PID}, 2')
    V(f'v_mov_b32 v{p[0]}, 1', [], [p[0]]); V(f'v_mov_b32 v{p[1]}, s{S_T0}', [], [p[1]])
    S('s_mov_b64 exec, 1')
    a.vmem(f'buffer_store_dword v{p[0]}, v{p[1]}, s[{S_DBGF}:{S_DBGF+3}], 0 offen offset:128 sc1', [p[0], p[1]], [])
    fullexec()
    a.nop(2)
    a.cond_end()
    a.nop(12)
    stamp('prod')
    PWT = 136; BIGR = 137
    V(f'v_mov_b32 v{BIGR}, 0x7f000000', [], [BIGR])
    V(f'v_lshrrev_b32 v{t[0]}, 4, v0', [0], [t[0]])
    V(f'v_and_b32 v{t[1]}, 15, v0', [0], [t[1]])
    V(f'v_mad_u32_u24 v{t[0]}, v{t[0]}, 13, v{t[1]}', [t[0], t[1]], [t[0]])
    V(f'v_lshlrev_b32 v{t[0]}, 1, v{t[0]}', [t[0]], [t[0]])
    V(f'v_cmp_gt_u32 vcc, 13, v{t[1]}', [t[1]], [], swrites=['vcc'])
    V(f'v_cndmask_b32 v{t[0]}, v{BIGR}, v{t[0]}, vcc', [BIGR, t[0]], [t[0]], sreads=['vcc'])
    S(f's_cmp_gt_u32 s{S_WAVE}, 2')
    a.cond_begin('s_cbranch_scc1 L_nopw', 'L_nopw')
    a.vmem(f'buffer_load_ushort v{PWT}, v{t[0]}, s[{S_WCO}:{S_WCO+3}], 0 offen', [t[0]], [PWT])
    a.cond_end()
    V(f'v_mov_b32 v{t[2]}, 0', [], [t[2]])
    a.vmem(f'buffer_load_ushort v{V_ACC}, v{t[2]}, s[{S_BO}:{S_BO+3}], 0 offen', [t[2]], [V_ACC])
    def addr_setup():
        V(f'v_and_b32 v{t[0]}, 31, v{V_LANE}', [V_LANE], [t[0]])
        V(f'v_cmp_gt_u32 vcc, 28, v{t[0]}', [t[0]], [], swrites=['vcc'])
        V(f'v_addc_co_u32 v{t[4]}, vcc, 0, v{t[0]}, vcc', [t[0]], [t[4]], sreads=['vcc'], swrites=['vcc'])
        V(f'v_cmp_eq_u32 s[{S_MT}:{S_MT+1}], 28, v{t[0]}', [t[0]], [], swrites=[S_MT, S_MT+1])
        V(f'v_cndmask_b32 v{t[4]}, v{t[4]}, 0, s[{S_MT}:{S_MT+1}]', [t[4]], [t[4]], sreads=[S_MT])
        V(f'v_lshrrev_b32 v{t[1]}, 5, v{V_LANE}', [V_LANE], [t[1]])
        V(f'v_mad_u32_u24 v{t[4]}, v{t[1]}, 26, v{t[4]}', [t[1], t[4]], [t[4]])
        V(f'v_cmp_gt_u32 vcc, 25, v{t[0]}', [t[0]], [], swrites=['vcc'])
        S(f's_or_b64 vcc, vcc, s[{S_MT}:{S_MT+1}]', sreads=['vcc', S_MT])
        V(f'v_mov_b32 v{t[5]}, 0x40000', [], [t[5]])
        V(f'v_cndmask_b32 v{t[5]}, v{t[5]}, 0, vcc', [t[5]], [t[5]])
        S(f's_movk_i32 s{S_T0}, 0x2b0'); S(f's_movk_i32 s{S_T1}, 0x170')
        V(f'v_mad_u32_u24 v{V_AADDR[0]}, v{t[4]}, s{S_T0}, v{t[5]}', [t[4], t[5]], [V_AADDR[0]])
        V(f'v_add_u32 v{V_AADDR[1]}, {U[2]}, v{V_AADDR[0]}', [V_AADDR[0]], [V_AADDR[1]])
        V(f'v_mad_u32_u24 v{V_AADDR0}, v{t[4]}, s{S_T1}, v{t[5]}', [t[4], t[5]], [V_AADDR0])
        V(f'v_add_u32 v{V_AADDR0}, {I0B}, v{V_AADDR0}', [V_AADDR0], [V_AADDR0])
    V(f'v_and_b32 v{t[0]}, 31, v{V_LANE}', [V_LANE], [t[0]])
    V(f'v_lshlrev_b32 v{t[0]}, 2, v{t[0]}', [t[0]], [t[0]])
    S(f's_mul_i32 s{S_T0}, s{S_WAVE}, 1664'); S(f's_add_u32 s{S_T0}, s{S_T0}, {X16}')
    V(f'v_add_u32 v{V_TRADDR}, s{S_T0}, v{t[0]}', [t[0]], [V_TRADDR])
    V(f'v_lshrrev_b32 v{t[4]}, 4, v{V_LANE}', [V_LANE], [t[4]])
    V(f'v_lshrrev_b32 v{t[0]}, 2, v{V_LANE}', [V_LANE], [t[0]])
    V(f'v_mul_u32_u24 v{t[0]}, 224, v{t[0]}', [t[0]], [t[0]])
    V(f'v_and_b32 v{t[5]}, 3, v{V_LANE}', [V_LANE], [t[5]])
    V(f'v_lshl_add_u32 v{t[0]}, v{t[5]}, 3, v{t[0]}', [t[5], t[0]], [t[0]])
    S(f's_lshr_b32 s{S_T0}, s{S_WAVE}, 2'); S(f's_sub_u32 s{S_T0}, 1, s{S_T0}')
    S(f's_lshl_b32 s{S_T1}, s{S_T0}, 5')
    V(f'v_add_u32 v{V_DAADDR}, s{S_T1}, v{t[0]}', [t[0]], [V_DAADDR])
    V(f'v_add_u32 v{V_DBK}, 57344, v{V_DAADDR}', [V_DAADDR], [V_DBK])
    S(f's_lshl_b32 s{S_T2}, s{S_T0L}, 5'); S(f's_add_u32 s{S_T1}, s{S_T1}, s{S_T2}'); S(f's_add_u32 s{S_T1}, s{S_T1}, {BW - 32}')
    V(f'v_lshlrev_b32 v{t[4]}, 3, v{t[4]}', [t[4]], [t[4]])
    V(f'v_add_u32 v{V_BWADDR}, s{S_T1}, v{t[4]}', [t[4]], [V_BWADDR])
    V(f'v_mov_b32 v{V_SYNC}, {SYNC}', [], [V_SYNC])
    S(f's_lshl_b32 s{S_T0}, s{S_WAVE}, 2'); S(f's_add_u32 s{S_T0}, s{S_T0}, {SYNC + 32}')
    V(f'v_mov_b32 v{V_DONEA}, s{S_T0}', [], [V_DONEA])
    a.wait_vm_all()
    S(f's_cmp_gt_u32 s{S_WAVE}, 2')
    a.cond_begin('s_cbranch_scc1 L_nopw2', 'L_nopw2')
    V(f'v_lshlrev_b32 v{PWT}, 16, v{PWT}', [PWT], [PWT])
    V(f'v_lshlrev_b32 v{t[0]}, 2, v0', [0], [t[0]])
    V(f'v_add_u32 v{t[0]}, {POOLW}, v{t[0]}', [t[0]], [t[0]])
    V(f'v_cmp_gt_u32 vcc, 0xa0, v0', [0], [], swrites=['vcc'])
    S('s_mov_b64 exec, vcc', sreads=['vcc'])
    a.ds(f'ds_write_b32 v{t[0]}, v{PWT}', [t[0], PWT])
    fullexec()
    a.cond_end()
    a.barrier()
    S(f's_mov_b32 s{S_KN}, 0')
    stamp('setup')

    chk_n = [0]
    def rdy_fetch(off): a.ds(f'ds_read_b32 v{V_RDY}, v{V_SYNC} offset:{off}', [V_SYNC], [V_RDY])
    def rdy_check(nseq, off, fetched=False):
        if not fetched: rdy_fetch(off)
        i = chk_n[0]; chk_n[0] += 1
        V(f'v_readfirstlane_b32 s{S_T0}, v{V_RDY}', [V_RDY], [], swrites=[S_T0], readlane=True)
        S(f's_cmp_ge_u32 s{S_T0}, {nseq}', sreads=[S_T0])
        a.cond_begin(f's_cbranch_scc1 L_ok{i}', f'L_ok{i}')
        a.raw(f's_mov_b32 s{S_T1}, 0x100000', kind='salu')
        a.label(f'L_sp{i}')
        a.raw('s_sleep 1')
        a.raw(f'ds_read_b32 v{V_RDY}, v{V_SYNC} offset:{off}', kind='ds')
        a.raw(f's_sub_u32 s{S_T1}, s{S_T1}, 1', kind='salu')
        a.raw(f's_cbranch_scc1 L_ok{i}', kind='branch')
        a.raw('s_waitcnt lgkmcnt(0)', kind='wait')
        a.raw(f'v_readfirstlane_b32 s{S_T0}, v{V_RDY}', kind='valu')
        a.raw('s_nop 0', kind='nop')
        a.raw(f's_cmp_ge_u32 s{S_T0}, {nseq}', kind='salu')
        a.raw(f's_cbranch_scc0 L_sp{i}', kind='branch')
        a.cond_end()
    def cnt_check(nseq):
        i = chk_n[0]; chk_n[0] += 1
        S(f's_cmp_ge_u32 s{S_KN}, {nseq}')
        a.cond_begin(f's_cbranch_scc1 L_ok{i}', f'L_ok{i}')
        a.raw(f's_mov_b32 s{S_T1}, 0x100000', kind='salu')
        a.label(f'L_sp{i}')
        a.raw(f'ds_read_b32 v{V_RDY}, v{V_SYNC}', kind='ds')
        a.raw(f's_sub_u32 s{S_T1}, s{S_T1}, 1', kind='salu')
        a.raw(f's_cbranch_scc1 L_ok{i}', kind='branch')
        a.raw('s_waitcnt lgkmcnt(0)', kind='wait')
        a.raw(f'v_readfirstlane_b32 s{S_KN}, v{V_RDY}', kind='valu')
        a.raw('s_nop 0', kind='nop')
        a.raw(f's_cmp_ge_u32 s{S_KN}, {nseq}', kind='salu')
        a.raw(f's_cbranch_scc1 L_ok{i}', kind='branch')
        a.raw('s_sleep 1')
        a.raw(f's_branch L_sp{i}', kind='branch')
        a.cond_end()
    def release(stage):
        V(f'v_mov_b32 v{t[0]}, {stage}', [], [t[0]])
        a.ds(f'ds_write_b32 v{V_DONEA}, v{t[0]}', [V_DONEA, t[0]])

    def x0_ops():
        ops = []
        PB = PBT
        def rd():
            V(f'v_lshlrev_b32 v{V_ACC}, 16, v{V_ACC}', [V_ACC], [V_ACC])
            V(f'v_and_b32 v{t[0]}, 47, v{V_LANE}', [V_LANE], [t[0]])
            V(f'v_cmp_eq_u32 vcc, 0, v{t[0]}', [t[0]], [], swrites=['vcc'])
            V(f'v_cndmask_b32 v{V_ACC}, 0, v{V_ACC}, vcc', [V_ACC], [V_ACC], sreads=['vcc'])
        ops.append(rd)
        m = t[1]
        def c1():
            for v in range(13): V(f'v_and_b32 v{P16+v}, s{S_K7FFF}, v{PB+v}', [PB+v], [P16+v])
        ops.append(c1)
        def c2():
            V(f'v_pk_maximum3_f16 v{m}, v{P16}, v{P16+1}, v{P16+2}', R(P16, 3), [m])
            for v in range(3, 13, 2):
                V(f'v_pk_maximum3_f16 v{m}, v{m}, v{P16+v}, v{P16+v+1}', [m, P16+v, P16+v+1], [m])
            V(f'v_max_u16_sdwa v{m}, v{m}, v{m} dst_sel:DWORD dst_unused:UNUSED_PAD src0_sel:WORD_1 src1_sel:WORD_0', [m], [m], opsel=True)
            V(f'v_lshrrev_b32 v{m}, 7, v{m}', [m], [m])
            V(f'v_subrev_u32 v{m}, 21, v{m}', [m], [m])
            V(f'v_max_i32 v{m}, 0, v{m}', [m], [m])
            V(f'v_subrev_u32 v{V_EX}, 112, v{m}', [m], [V_EX])
            V(f'v_mul_u32_u24 v{m}, 0x800080, v{m}', [m], [m])
        ops.append(c2)
        ops.append(lambda: [V(f'v_pk_sub_u16 v{P16+v}, v{P16+v}, v{m} clamp', [P16+v, m], [P16+v]) for v in range(13)])
        ops.append(lambda: [V(f'v_lshlrev_b32 v{P16+v}, 3, v{P16+v}', [P16+v], [P16+v]) for v in range(13)])
        ops.append(lambda: [V(f'v_bfi_b32 v{P16+v}, s{S_K8000}, v{PB+v}, v{P16+v}', [P16+v, PB+v], [P16+v]) for v in range(13)])
        def qq():
            V(f'v_mov_b32 v{P16+13}, 0', [], [P16+13])
            V(f'v_mov_b32 v{t[2]}, 0x05040100', [], [t[2]])
            V(f'v_mov_b32 v{t[1]}, 0x07060302', [], [t[1]])
            V(f'v_cndmask_b32 v{t[2]}, v{t[2]}, v{t[1]}, s[{S_HI}:{S_HI+1}]', [t[2], t[1]], [t[2]])
            for q in range(7):
                V(f'v_perm_b32 v{XQ+q}, v{P16+2*q+1}, v{P16+2*q}, v{t[2]}', [P16+2*q+1, P16+2*q, t[2]], [XQ+q])
        ops.append(qq)
        def q2():
            V(f'v_lshlrev_b32 v{V_E}, 1, v{V_EX}', [V_EX], [V_E])
            for v in range(13): a.ds(f'ds_write_b32 v{V_TRADDR}, v{PB+v} offset:{128*v}', [V_TRADDR, PB+v])
        ops.append(q2)
        return ops

    DAB = [132, 40, 56]; DBB = [72, 76, 80]; IXR = 84; NDB = 3
    def dnn_reads(i, xt):
        da = DAB[i % NDB]; db = DBB[i % NDB]
        base = CPOS[i] * CH
        a.ds(f'ds_read_b64 {vr(db,2)}, v{IXR+2*i}', [IXR+2*i], R(db, 2))
        a.ds(f'ds_read_b64 {vr(db+2,2)}, v{IXR+2*i+1}', [IXR+2*i+1], R(db+2, 2))
        hi = base >= 57344; ro = 64 if xt else 32
        ad = V_DBK if hi else V_DAADDR; b0 = base - (57344 if hi else 0)
        for q in range(3):
            a.ds(f'ds_read_b64_tr_b16 {vr(da+4*q,2)}, v{ad} offset:{b0+ro+64*q}', [ad], R(da+4*q, 2))
            a.ds(f'ds_read_b64_tr_b16 {vr(da+4*q+2,2)}, v{ad} offset:{b0+ro+64*q+3584}', [ad], R(da+4*q+2, 2))
        if xt:
            a.ds(f'ds_read_b64_tr_b16 {vr(da+12,2)}, v{ad} offset:{b0}', [ad], R(da+12, 2))
            a.ds(f'ds_read_b64_tr_b16 {vr(da+14,2)}, v{ad} offset:{b0+3584}', [ad], R(da+14, 2))
    def dnn_mfma(i, xt):
        da = DAB[i % NDB]; db = DBB[i % NDB]
        for q in range(4 if xt else 3): a.mfma('v_mfma_f32_16x16x32_bf16', DACC+4*q, da+4*q, db, DACC+4*q, 4, 4)
    epi_n = [0]
    def dnn_epilogue():
        e = epi_n[0]; epi_n[0] += 1
        K1 = -2.0 * 1.4426950408889634 * 0.7978845608028654
        K2 = K1 * 0.044715
        acc = DB; W2T = [DB + 2, t[2], t[4], t[6]]
        S(f's_mov_b32 s{S_K2}, {fb(K2)}')
        V(f'v_mov_b32 v{DB+1}, {fb(K1)}', [], [DB+1])
        V(f'v_mov_b32 v{acc}, 0', [], [acc])
        offs = [64, 128, 192, 0]
        for q in range(4):
            a.ds(f'ds_read_b64 {vr(W2T[q],2)}, v{V_BWADDR} offset:{832+offs[q]}', [V_BWADDR], R(W2T[q], 2))
        def grp(qs):
            xs = [DACC + 4*q + r for q in qs for r in range(4)]
            ts = [DA + 4*q + r for q in qs for r in range(4)]
            for x, tt in zip(xs, ts): V(f'v_mul_f32 v{tt}, v{x}, v{x}', [x], [tt])
            for x, tt in zip(xs, ts): V(f'v_fma_f32 v{tt}, v{tt}, s{S_K2}, v{DB+1}', [tt, DB+1], [tt])
            for x, tt in zip(xs, ts): V(f'v_mul_f32 v{tt}, v{tt}, v{x}', [tt, x], [tt])
            for x, tt in zip(xs, ts): V(f'v_exp_f32 v{tt}, v{tt}', [tt], [tt], trans=True)
            for x, tt in zip(xs, ts): V(f'v_add_f32 v{tt}, 1.0, v{tt}', [tt], [tt])
            for x, tt in zip(xs, ts): V(f'v_rcp_f32 v{tt}, v{tt}', [tt], [tt], trans=True)
            for x, tt in zip(xs, ts): V(f'v_mul_f32 v{tt}, v{tt}, v{x}', [tt, x], [tt])
            for q in qs:
                w = W2T[q]; x0_ = DACC + 4*q
                V(f'v_lshlrev_b32 v{x0_}, 16, v{w}', [w], [x0_])
                V(f'v_and_b32 v{x0_+1}, 0xffff0000, v{w}', [w], [x0_+1])
                V(f'v_lshlrev_b32 v{x0_+2}, 16, v{w+1}', [w+1], [x0_+2])
                V(f'v_and_b32 v{x0_+3}, 0xffff0000, v{w+1}', [w+1], [x0_+3])
            for x, tt in zip(xs, ts): V(f'v_fmac_f32 v{acc}, v{tt}, v{x}', [acc, tt, x], [acc])
        grp([0, 1, 2])
        S(f's_cmp_eq_u32 s{S_XT}, 0')
        a.raw(f's_cbranch_scc1 L_dq4_{e}', kind='branch')
        grp([3])
        a.nop(2)
        a.label(f'L_dq4_{e}')
        for op in ('v_permlane16_swap_b32', 'v_permlane32_swap_b32'):
            V(f'v_mov_b32 v{DB+1}, v{acc}', [acc], [DB+1])
            V(f'{op} v{acc}, v{DB+1}', [acc, DB+1], [acc, DB+1], permlane=True)
            V(f'v_add_f32 v{acc}, v{acc}, v{DB+1}', [acc, DB+1], [acc])
        V(f'v_lshlrev_b32 v{t[0]}, 2, v{V_LANE}', [V_LANE], [t[0]])
        S(f's_lshl_b32 s{S_T0}, s{S_WAVE}, 6'); S(f's_add_u32 s{S_T0}, s{S_T0}, {PDL}')
        V(f'v_add_u32 v{t[0]}, s{S_T0}, v{t[0]}', [t[0]], [t[0]])
        V(f'v_mov_b32 v{t[1]}, 1', [], [t[1]])
        execn(16)
        a.ds(f'ds_write_b32 v{t[0]}, v{acc}', [t[0], acc])
        execn(1)
        a.ds(f'ds_add_u32 v{V_SYNC}, v{t[1]} offset:4', [V_SYNC, t[1]])
        fullexec()
        a.wait_lds_all()
    def u5_ops():
        ops = []
        def rd():
            V(f'v_add_u32 v{t[0]}, {V5F}, v{V_L16}', [V_L16], [t[0]])
            for k in range(4):
                a.ds(f'ds_read_b128 {vr(UA+4*k,4)}, v{t[0]} offset:{1024*k}', [t[0]], R(UA+4*k, 4))
            for k in range(4):
                a.ds(f'ds_read_b128 {vr(G+4*k,4)}, v{V_PWADDR} offset:{POOLW-EWT+128*4+16*k}', [V_PWADDR], R(G+4*k, 4))
        ops.append(rd)
        for k in range(4):
            def rb(k=k):
                for e in range(4 if k < 3 else 1):
                    a.ds(f'ds_read_b32 v{DB+e}, v{V_TRADDR} offset:{128*(4*k+e)}', [V_TRADDR], [DB+e])
            ops.append(rb)
            ops += [lambda: None] * 4
            if k == 3:
                def zz():
                    for r in (1, 2, 3): V(f'v_mov_b32 v{DB+r}, 0', [], [DB+r])
                ops.append(zz)
            ops.append(lambda k=k: a.mfma('v_mfma_f32_32x32x16_bf16', G, UA+4*k, DB, G, 8, 16))
            ops.append(lambda: None)
        return ops

    def boundary_ops(l):
        ops = []
        s_ = ZB[2]; mx = ZB[2]+1; my = ZB[2]+2
        W = PW if l < 4 else G
        for r in range(13):
            ops.append(lambda r=r: V(f'v_ldexp_f32 v{D+r}, v{D+r}, v{EW+r}', [D+r, EW+r], [D+r]))
        if l < 4:
            ops.append(lambda: V(f'v_max3_f32 v{mx}, |v{D}|, |v{D+1}|, |v{D+2}|', R(D, 3), [mx]))
            for r in range(3, 13, 2):
                ops.append(lambda r=r: V(f'v_max3_f32 v{mx}, |v{D+r}|, |v{D+r+1}|, v{mx}', [D+r, D+r+1, mx], [mx]))
            ops.append(lambda: V(f'v_mov_b32 v{my}, v{mx}', [mx], [my]))
        ops.append(lambda: V(f'v_mul_f32 v{s_}, v{D}, v{W}', [D, W], [s_]))
        ops.append(lambda: V(f'v_fmac_f32 v{s_}, v{D+1}, v{W+1}', [s_, D+1, W+1], [s_]))
        if l < 4:
            ops.append(lambda: V(f'v_permlane32_swap_b32 v{mx}, v{my}', [mx, my], [mx, my], permlane=True))
        ops.append(lambda: V(f'v_fmac_f32 v{s_}, v{D+2}, v{W+2}', [s_, D+2, W+2], [s_]))
        if l < 4:
            ops.append(lambda: V(f'v_max_f32 v{mx}, v{mx}, v{my}', [mx, my], [mx]))
            ops.append(lambda: V(f'v_frexp_exp_i32_f32 v{mx}, v{mx}', [mx], [mx]))
            ops.append(lambda: V(f'v_sub_u32 v{V_SH}, 8, v{mx}', [mx], [V_SH]))
        for r in range(3, 13):
            ops.append(lambda r=r: V(f'v_fmac_f32 v{s_}, v{D+r}, v{W+r}', [s_, D+r, W+r], [s_]))
        if l < 4:
            for r in range(13):
                ops.append(lambda r=r: V(f'v_ldexp_f32 v{D+r}, v{D+r}, v{V_SH}', [D+r, V_SH], [D+r]))
            for q in range(7):
                hi = D + 2*q + 1 if q < 6 else D + 12
                ops.append(lambda q=q, hi=hi: V(f'v_cvt_pk_f16_f32 v{XQ+q}, v{D+2*q}, v{hi}', [D+2*q, hi], [XQ+q]))
        ops.append(lambda: V(f'v_ldexp_f32 v{s_}, v{s_}, v{V_E}', [s_, V_E], [s_]))
        ops.append(lambda: V(f'v_add_f32 v{V_ACC}, v{V_ACC}, v{s_}', [V_ACC, s_], [V_ACC]))
        if l < 4:
            ops.append(lambda: V(f'v_sub_u32 v{V_E}, v{V_E}, v{V_SH}', [V_E, V_SH], [V_E]))
            ops.append(lambda: V(f'v_add_u32 v{V_E}, v{V_E}, v{V_EX}', [V_E, V_EX], [V_E]))
        if l == 0:
            ops.append(lambda: V(f'v_mov_b32 v{ZL+1}, 0', [], [ZL+1]))
            ops.append(lambda: V(f'v_mov_b32 v{ZL+2}, 0', [], [ZL+2]))
        return ops
    NK = [23, 43, 43, 43, 43]
    ISLOT = [None, 0, 1, 2, 3]
    def a_read(l, k):
        b = AB[k % NAB]
        if l == 0: ad = V_AADDR0; off = 16 * k
        else:
            sl = ISLOT[l]; ad = V_AADDR[sl >> 1]; off = IMG * (sl & 1) + 16 * k
        a.ds(f'ds_read_b128 {vr(b,4)}, v{ad} offset:{off}', [ad], R(b, 4))
    PAIRS0 = [(u, v) for u in range(13) for v in range(u, 13)]
    def zbuf(l, k):
        if k == NK[l] - 1: return ZL
        return ZB[k % 3]
    def z_ops(l, k):
        ops = []
        zb = zbuf(l, k)
        for e in range(4):
            q = 4 * k + e
            if l == 0:
                if q >= 91: break
                i, v = PAIRS0[q]; src = (QH if i == v else XQ) + (i >> 1)
            else:
                if q >= 169: break
                i, v = divmod(q, 13); src = XQ + (i >> 1)
            o = i & 1
            ops.append(lambda zb=zb, e=e, src=src, v=v, o=o: V(f'v_pk_mul_f16 v{zb+e}, v{src}, v{P16+v} op_sel:[{o},0] op_sel_hi:[{o},1]', [src, P16+v], [zb+e]))
        return ops
    def pwrd(l):
        for base, off in ((PW, POOLW - EWT + 128 * l), (EW, 128 * l)):
            if base == PW and l == 4: continue
            for k in range(3):
                a.ds(f'ds_read_b128 {vr(base+4*k,4)}, v{V_PWADDR} offset:{off+16*k}', [V_PWADDR], R(base+4*k, 4))
            a.ds(f'ds_read_b32 v{base+12}, v{V_PWADDR} offset:{off+48}', [V_PWADDR], [base+12])

    cnt_check(1)
    stamp('tab')
    OX = 132
    V(f'v_bfe_u32 v{t[0]}, v{V_LANE}, 4, 1', [V_LANE], [t[0]])
    V(f'v_mul_u32_u24 v{t[0]}, 104, v{t[0]}', [t[0]], [t[0]])
    V(f'v_and_b32 v{t[1]}, 12, v{V_LANE}', [V_LANE], [t[1]])
    V(f'v_add_u32 v{t[0]}, v{t[0]}, v{t[1]}', [t[0], t[1]], [t[0]])
    S(f's_mul_i32 s{S_T0}, s{S_WAVE}, 208'); S(f's_add_u32 s{S_T0}, s{S_T0}, {IDXB}')
    V(f'v_add_u32 v{t[0]}, s{S_T0}, v{t[0]}', [t[0]], [t[0]])
    V(f'v_and_b32 v{t[1]}, 15, v{V_LANE}', [V_LANE], [t[1]])
    V(f'v_mul_u32_u24 v{t[1]}, 104, v{t[1]}', [t[1]], [t[1]])
    S(f's_and_b32 s{S_T0}, s{S_WAVE}, 3'); S(f's_mul_i32 s{S_T0}, s{S_T0}, 1664'); S(f's_add_u32 s{S_T0}, s{S_T0}, {IDXB}')
    S(f's_add_u32 s{S_T2}, s{S_T0}, 104'); S(f's_lshl_b32 s{S_KO}, s{S_ROT}, 3'); S(f's_add_u32 s{S_KO}, s{S_KO}, s{S_T0}')
    for i in range(13):
        tt = t[2 + (i % 4)]
        V(f'v_add_u32 v{tt}, s{S_KO}, v{t[1]}', [t[1]], [tt])
        a.ds(f'ds_read_b64 {vr(IXR+2*i,2)}, v{tt}', [tt], R(IXR+2*i, 2))
        if i < 12:
            S(f's_add_u32 s{S_KO}, s{S_KO}, 8'); S(f's_cmp_eq_u32 s{S_KO}, s{S_T2}'); S(f's_cselect_b32 s{S_KO}, s{S_T0}, s{S_KO}')
    for q in range(7): a.ds(f'ds_read_b32 v{OX+q}, v{t[0]} offset:{16*q}', [t[0]], [OX+q])
    BT = 140
    for q, off in enumerate([64, 128, 192, 0]):
        a.ds(f'ds_read_b64 {vr(BT+2*q,2)}, v{V_BWADDR} offset:{off}', [V_BWADDR], R(BT+2*q, 2))
    V(f'v_and_b32 v{t[6]}, 3, v{V_LANE}', [V_LANE], [t[6]])
    V(f'v_lshlrev_b32 v{t[6]}, 3, v{t[6]}', [t[6]], [t[6]])
    V(f'v_add_u32 v{t[6]}, {TAB}, v{t[6]}', [t[6]], [t[6]])
    V(f'v_lshrrev_b32 v{t[7]}, 4, v{V_LANE}', [V_LANE], [t[7]])
    V(f'v_lshlrev_b32 v{t[7]}, 3, v{t[7]}', [t[7]], [t[7]])
    V(f'v_add_u32 v{t[7]}, {TAB}, v{t[7]}', [t[7]], [t[7]])
    for f in range(26):
        V(f'v_lshl_add_u32 v{IXR+f}, v{IXR+f}, 5, v{t[7]}', [IXR+f, t[7]], [IXR+f])
    for q in range(7):
        V(f'v_min_u32 v{OX+q}, 0x3e7, v{OX+q}', [OX+q], [OX+q])
        V(f'v_lshl_add_u32 v{OX+q}, v{OX+q}, 5, v{t[6]}', [OX+q, t[6]], [OX+q])
        a.ds(f'ds_read_b64_tr_b16 {vr(PBT+2*q,2)}, v{OX+q}', [OX+q], R(PBT+2*q, 2))
    for q in range(4):
        V(f'v_lshlrev_b32 v{DACC+4*q}, 16, v{BT+2*q}', [BT+2*q], [DACC+4*q])
        V(f'v_and_b32 v{DACC+4*q+1}, 0xffff0000, v{BT+2*q}', [BT+2*q], [DACC+4*q+1])
        V(f'v_lshlrev_b32 v{DACC+4*q+2}, 16, v{BT+2*q+1}', [BT+2*q+1], [DACC+4*q+2])
        V(f'v_and_b32 v{DACC+4*q+3}, 0xffff0000, v{BT+2*q+1}', [BT+2*q+1], [DACC+4*q+3])
    stamp('x0')
    a.wait_lds_all()
    import copy
    def dnn_loop(xt):
        x0o = x0_ops()
        CHK = {0: 3, 2: 5, 4: 7, 6: 9, 8: 11, 10: 12, 11: 14}
        def rd(i):
            if i in CHK: cnt_check(CHK[i])
            dnn_reads(i, xt)
        if xt:
            V(f'v_subrev_u32 v{V_DAADDR}, 32, v{V_DAADDR}', [V_DAADDR], [V_DAADDR])
            V(f'v_subrev_u32 v{V_DBK}, 32, v{V_DBK}', [V_DBK], [V_DBK])
        rd(0); rd(1)
        for i in range(13):
            a.comment(f'======== DNN step {i} xt={xt}')
            if i + 2 < 13: rd(i + 2)
            if i < len(x0o): x0o[i]()
            dnn_mfma(i, xt)
            if i in (1, 6, 12): release({1: 1, 6: 2, 12: 3}[i])
        a.wait_lds_all(); a.nop(8)
    S(f's_cmp_eq_u32 s{S_XT}, 0')
    a.raw('s_cbranch_scc1 L_dnn0', kind='branch')
    dnn_loop(1)
    a.raw('s_branch L_dnnend', kind='branch')
    a.label('L_dnn0')
    dnn_loop(0)
    a.label('L_dnnend')
    for q in range(7):
        V(f'v_pk_mul_f16 v{QH+q}, v{XQ+q}, s{S_HALF}', [XQ+q], [QH+q])
    addr_setup()
    V(f'v_lshrrev_b32 v{t[1]}, 5, v{V_LANE}', [V_LANE], [t[1]])
    V(f'v_lshlrev_b32 v{t[1]}, 6, v{t[1]}', [t[1]], [t[1]])
    V(f'v_add_u32 v{V_PWADDR}, {EWT}, v{t[1]}', [t[1]], [V_PWADDR])
    V(f'v_mov_b32 v{ZL+3}, 0', [], [ZL+3])
    stamp('dnn')
    if REP:
        a.wait_lds_all(); a.raw('s_memtime s[96:97]'); a.raw('s_memrealtime s[98:99]'); a.raw('s_waitcnt lgkmcnt(0)', kind='wait')
    if SPLITEPI:
        S(f's_cmp_ge_u32 s{S_WAVE}, 4')
        a.wait_lds_all(); a.nop(8)
        a.cond_begin('s_cbranch_scc1 L_noepiB', 'L_noepiB')
        dnn_epilogue()
        a.nop(2)
        a.cond_end()
    else: dnn_epilogue()
    for l in range(NL):
        a.comment(f'======== layer {l}')
        stamp(f'L{l}')
        rdy_check(l + 1, 8)
        for k in range(PFD): a_read(l, k)
        if l == 4:
            rdy_check(6, 8)
            u5 = u5_ops(); u5[0]()
            fq = u5[1:]
        else: fq = []
        for o in z_ops(l, 0): o()
        for o in z_ops(l, 1): o()
        if PRIO: a.raw('s_setprio 1')
        for k in range(NK[l]):
            if k == NK[l] - 8: pwrd(l)
            zo = z_ops(l, k + 2) if k + 2 < NK[l] else []
            if k % 2 == 0 and k + 1 < NK[l]: a._wait_regs(R(AB[(k + 1) % NAB], 4))
            a.mfma('v_mfma_f32_32x32x16_f16', D, AB[k % NAB], zbuf(l, k), D if k > 0 else None, 8, 16)
            if k + PFD < NK[l]: a_read(l, k + PFD)
            for o in zo: o()
            if PRIO and k == 2: a.raw('s_setprio 2')
            if fq and k >= 4: fq.pop(0)()
        assert not fq
        if l == 0: release(4)
        if l < 4:
            if PRIO: a.raw('s_setprio 0')
            for o in boundary_ops(l): o()
        if l == 0 and SPLITEPI:
            S(f's_cmp_lt_u32 s{S_WAVE}, 4')
            a.wait_lds_all()
            a.cond_begin('s_cbranch_scc1 L_noepiA', 'L_noepiA')
            dnn_epilogue()
            a.nop(2)
            a.cond_end()
    stamp('fin')
    rdy_check(7, 8)
    V(f'v_bfe_u32 v{t[5]}, v{V_LANE}, 4, 1', [V_LANE], [t[5]])
    V(f'v_and_b32 v{t[6]}, 15, v{V_LANE}', [V_LANE], [t[6]])
    V(f'v_lshl_add_u32 v{t[5]}, v{t[6]}, 4, v{t[5]}', [t[5], t[6]], [t[5]])
    V(f'v_lshlrev_b32 v{t[5]}, 2, v{t[5]}', [t[5]], [t[5]])
    S(f's_lshl_b32 s{S_T0}, s{S_WAVE}, 3'); S(f's_add_u32 s{S_T0}, s{S_T0}, {PD}')
    V(f'v_add_u32 v{t[5]}, s{S_T0}, v{t[5]}', [t[5]], [t[5]])
    V(f'v_and_b32 v{t[6]}, 40, v{V_LANE}', [V_LANE], [t[6]])
    V(f'v_cmp_eq_u32 vcc, 0, v{t[6]}', [t[6]], [], swrites=['vcc'])
    V(f'v_mov_b32 v{t[6]}, 0x30000', [], [t[6]])
    V(f'v_cndmask_b32 v{t[5]}, v{t[6]}, v{t[5]}, vcc', [t[5], t[6]], [t[5]], sreads=['vcc'])
    a.ds(f'ds_read_b32 v{t[6]}, v{t[5]}', [t[5]], [t[6]])
    if NL == 5:
        for o in boundary_ops(4): o()
    A_ = V_ACC
    V(f'v_add_f32 v{A_}, v{A_}, v{t[6]}', [A_, t[6]], [A_])
    for d in (8, 4, 2, 1):
        V(f'v_add_f32_dpp v{A_}, v{A_}, v{A_} row_ror:{d} row_mask:0xf bank_mask:0xf', [A_], [A_], dpp=True)
    V(f'v_mov_b32 v{t[5]}, v{A_}', [A_], [t[5]])
    V(f'v_permlane32_swap_b32 v{A_}, v{t[5]}', [A_, t[5]], [A_, t[5]], permlane=True)
    V(f'v_add_f32 v{A_}, v{A_}, v{t[5]}', [A_, t[5]], [A_])
    V(f'v_cvt_pk_bf16_f32 v{A_}, v{A_}, v{A_}', [A_], [A_])
    V(f'v_lshrrev_b32 v{t[5]}, 3, v{V_LANE}', [V_LANE], [t[5]])
    S(f's_lshl_b32 s{S_T0}, s2, 5'); S(f's_lshl_b32 s{S_T1}, s{S_WAVE}, 2'); S(f's_add_u32 s{S_T0}, s{S_T0}, s{S_T1}')
    S('s_mov_b64 exec, 0x10001')
    a.vmem(f'buffer_store_short v{A_}, v{t[5]}, s[{S_OUT}:{S_OUT+3}], s{S_T0} offen', [A_, t[5]], [])
    if REP:
        a.raw('s_memtime s[100:101]'); a.raw('s_memrealtime s[4:5]'); a.raw('s_waitcnt lgkmcnt(0)', kind='wait')
        S(f's_cmp_lg_u32 s{S_WAVE}, 4'); a.raw('s_cbranch_scc1 L_norep', kind='branch')
        S('s_and_b32 s6, s2, 0xfc'); S('s_cmp_lg_u32 s6, 100'); a.raw('s_cbranch_scc1 L_norep', kind='branch')
        S('s_sub_u32 s96, s96, s92'); S('s_sub_u32 s98, s98, s94'); S('s_sub_u32 s100, s100, s92'); S('s_sub_u32 s4, s4, s94')
        V('v_mov_b32 v16, s96', [], [16]); V('v_mov_b32 v17, s98', [], [17]); V('v_mov_b32 v18, s100', [], [18]); V('v_mov_b32 v19, s4', [], [19])
        S('s_and_b32 s6, s2, 3'); S('s_lshl_b32 s6, s6, 4'); V('v_mov_b32 v20, s6', [], [20])
        S('s_mov_b64 exec, 1')
        a.vmem(f'buffer_store_dwordx4 v[16:19], v20, s[{S_DBGF}:{S_DBGF+3}], 0 offen', [16,17,18,19,20], [])
        a.label('L_norep')
    dbg_out()
    a.raw('s_endpgm')

    a.label('L_loader')
    a.lds = []; a.vm = []; a.valu_w = {}; a.mfma_w = {}; a.mfma_c = {}; a.trans_w = {}; a.store_src = {}; a.opsel_w = {}
    stamp_n[0] = 1
    names_c = a.stamp_names; a.stamp_names = []
    LF = 18; LFA = 19; LSY = 20; LDA = 21; LDV = 22; LT = 23; WO = 32; PF = 40; LN = 24; LG = 64
    S(f's_movk_i32 s{S_T0}, 4682')
    for k in range(7):
        V(f'v_add_u32 v{t[0]}, {64*k}, v{V_LANE}', [V_LANE], [t[0]])
        V(f'v_mul_u32_u24 v{t[1]}, s{S_T0}, v{t[0]}', [t[0]], [t[1]])
        V(f'v_lshrrev_b32 v{t[1]}, 16, v{t[1]}', [t[1]], [t[1]])
        V(f'v_mul_u32_u24 v{t[2]}, {832 - 224}, v{t[1]}', [t[1]], [t[2]])
        V(f'v_lshl_add_u32 v{WO+k}, v{t[0]}, 4, v{t[2]}', [t[0], t[2]], [WO+k])
    V(f'v_lshlrev_b32 v{LFA}, 2, v{V_LANE}', [V_LANE], [LFA])
    V(f'v_mov_b32 v{LSY}, {SYNC}', [], [LSY])
    V(f'v_add_u32 v{LDA}, {SYNC}, v{LFA}', [LFA], [LDA])
    V(f'v_mov_b32 v{LT}, 0', [], [LT])
    execn(16)
    a.ds(f'ds_write_b32 v{LDA}, v{LT}', [LDA, LT])
    fullexec()
    V(f'v_and_b32 v{LDA}, 28, v{LFA}', [LFA], [LDA])
    V(f'v_add_u32 v{LDA}, {SYNC + 32}, v{LDA}', [LDA], [LDA])
    S(f's_mul_i32 s{S_KO}, s{S_ROT}, 26624'); S(f's_lshl_b32 s{S_T0}, s{S_T0L}, 5'); S(f's_add_u32 s{S_KO}, s{S_KO}, s{S_T0}')
    S(f's_add_u32 s{S_T3}, s{S_T0}, {13*26624}')
    def l_w1(i):
        for k in range(7):
            S(f's_mov_b32 m0, {CPOS[i]*CH + 1024*k}', m0=True)
            a.vmem(f'buffer_load_dwordx4 v{WO+k}, s[{S_W1}:{S_W1+3}], s{S_KO} offen lds', [WO+k], [], tag=('c', i), dma=True)
        S(f's_add_u32 s{S_KO}, s{S_KO}, 26624'); S(f's_cmp_eq_u32 s{S_KO}, s{S_T3}'); S(f's_cselect_b32 s{S_T1}, {13*26624}, 0'); S(f's_sub_u32 s{S_KO}, s{S_KO}, s{S_T1}')
    def l_lin(tag, srd, src, dst, nbytes, sc=''):
        n = (nbytes + 1023) // 1024
        for pc in range(n):
            if pc % 4 == 0:
                S(f's_mov_b32 m0, {dst + 1024*pc}', m0=True)
                S(f's_mov_b32 s{S_T2}, {src + 1024*pc}')
            lanes = min(64, (nbytes - 1024*pc) // 16)
            if lanes < 64: execn(lanes)
            a.vmem(f'buffer_load_dwordx4 v{V_L16}, s[{srd}:{srd+3}], s{S_T2} offen offset:{1024*(pc%4)} {sc} lds', [V_L16], [], tag=tag, dma=True)
            if lanes < 64: fullexec()
    def publish(n, off):
        a.raw(f'v_mov_b32 v{LT}, {n}', kind='valu')
        a.raw(f'ds_write_b32 v{LSY}, v{LT} offset:{off}', kind='ds')
    def l_flag(lo, hi):
        mk = ((1 << hi) - 1) & ~((1 << lo) - 1)
        S(f's_mov_b64 exec, 0x{mk:x}')
        a.vmem(f'buffer_load_dword v{LF}, v{LFA}, s[{S_DBGF}:{S_DBGF+3}], 0 offen offset:128 sc1', [LFA], [LF])
        fullexec()
    def l_poll(lo, hi, lab, pre=None):
        mk = ((1 << hi) - 1) & ~((1 << lo) - 1)
        a._wait_regs([LF])
        S(f's_mov_b64 exec, 0x{mk:x}')
        S(f's_mov_b32 s{S_T0}, 0')
        a.label(f'L_poll{lab}')
        a.raw(f'v_cmp_ne_u32 vcc, 1, v{LF}', kind='valu')
        a.raw(f's_cbranch_vccz L_polldone{lab}', kind='branch')
        a.raw(f'buffer_load_dword v{LF}, v{LFA}, s[{S_DBGF}:{S_DBGF+3}], 0 offen offset:128 sc1', kind='vmem')
        S(f's_add_u32 s{S_T0}, s{S_T0}, 1')
        S(f's_cmp_lt_u32 s{S_T0}, 0x40000')
        a.raw('s_waitcnt vmcnt(0)', kind='wait')
        if pre: publish(pre, 0)
        a.raw(f's_cbranch_scc1 L_poll{lab}', kind='branch')
        a.label(f'L_polldone{lab}')
        fullexec()
    def l_wait_lds(addr, off, stage, lab):
        a.raw(f's_mov_b32 s{S_T1}, 0x100000', kind='salu')
        a.label(f'L_dw{lab}')
        a.raw(f'ds_read_b32 v{LDV}, v{addr} offset:{off}', kind='ds')
        a.raw(f's_sub_u32 s{S_T1}, s{S_T1}, 1', kind='salu')
        a.raw(f's_cbranch_scc1 L_dn{lab}', kind='branch')
        a.raw('s_waitcnt lgkmcnt(0)', kind='wait')
        a.raw(f'v_cmp_gt_u32 vcc, {stage}, v{LDV}', kind='valu')
        a.raw(f's_cbranch_vccz L_dn{lab}', kind='branch')
        a.raw('s_sleep 1')
        a.raw(f's_branch L_dw{lab}', kind='branch')
        a.label(f'L_dn{lab}')
    for aa in range(4):
        S(f's_add_u32 s{S_T0}, s{S_Q}, {aa}'); S(f's_and_b32 s{S_T0}, s{S_T0}, 3'); S(f's_lshl_b32 s{S_T0}, s{S_T0}, 3'); S(f's_or_b32 s{S_T0}, s{S_T0}, s{S_CB}')
        S(f's_mul_i32 s{S_T0}, s{S_T0}, 1664')
        S(f's_mov_b32 m0, {IDXB + 1664*aa}', m0=True)
        a.vmem(f'buffer_load_dwordx4 v{V_L16}, s[{S_IDX}:{S_IDX+3}], s{S_T0} offen lds', [V_L16], [], tag='tab', dma=True)
        execn(40)
        a.vmem(f'buffer_load_dwordx4 v{V_L16}, s[{S_IDX}:{S_IDX+3}], s{S_T0} offen offset:1024 lds', [V_L16], [], tag='tab', dma=True)
        fullexec()
    a.raw('s_waitcnt lgkmcnt(0)', kind='wait')
    S(f's_cmp_ge_u32 s{S_PID}, {NP2}')
    a.raw('s_cbranch_scc1 L_lnobp', kind='branch')
    rawbar()
    a.label('L_lnobp')
    l_lin('tab', S_TAB, 0, TAB, 32000)
    rawbar()
    l_lin('tab', S_B1, 0, BW, 832); l_lin('tab', S_W2, 0, BW + 832, 832)
    for i in range(11):
        l_w1(i)
        if i == 3: a.wait_vm_tag('tab'); publish(1, 0)
        if i >= 5 and i % 2 == 1:
            a.wait_vm_tag(('c', i - 4)); publish(i - 2, 0)
    stamp('w1iss')
    for i in (7, 9, 10):
        a.wait_vm_tag(('c', i)); publish(i + 2, 0)
    l_flag(0, NP1)
    l_wait_lds(LDA, 0, 1, 'a')
    l_w1(11); l_w1(12)
    l_poll(0, NP1, 'a', pre=14); stamp('polled')
    l_lin(('i', 0), S_WS, WS_IMG0, I0B, IMG0, 'sc1')
    l_lin(('i', 0), S_WS, WS_EWT, EWT, 640, 'sc1')
    a.wait_vm_tag(('c', 12)); publish(14, 0)
    V(f'v_mov_b32 v{t[0]}, {WS_EWT + (32+15)*4}', [], [t[0]])
    a.vmem(f'buffer_load_dword v{LN}, v{t[0]}, s[{S_WS}:{S_WS+3}], 0 offen sc1', [t[0]], [LN])
    S(f's_lshr_b32 s{S_T0}, s2, 3'); S(f's_mul_i32 s{S_T0}, s{S_T0}, 4480'); S(f's_add_u32 s{S_T0}, s{S_T0}, {WS_IMG[1]}')
    for q in range(5):
        if q == 4: S(f's_add_u32 s{S_T0}, s{S_T0}, 4096'); execn(24)
        a.vmem(f'buffer_load_dwordx4 {vr(PF+4*q,4)}, v{V_L16}, s[{S_WS}:{S_WS+3}], s{S_T0} offen offset:{1024*(q%4)} sc1', [V_L16], R(PF+4*q, 4))
    fullexec()
    a.wait_vm_tag(('i', 0)); publish(1, 8)
    l_wait_lds(LDA, 0, 2, 'b')
    l_lin(('i', 1), S_WS, WS_IMG[1], U[0], IMG, 'sc1')
    l_wait_lds(LDA, 0, 3, 'c'); stamp('dnndone')
    l_lin(('i', 2), S_WS, WS_IMG[2], U[1], IMG, 'sc1')
    a.wait_vm_tag(('i', 1)); publish(2, 8); stamp('i1')
    l_lin(('i', 3), S_WS, WS_IMG[3], U[2], IMG, 'sc1')
    a.wait_vm_tag(('i', 2)); publish(3, 8)
    l_flag(NP1, NP2)
    l_wait_lds(LSY, 4, 8, 'd')
    V(f'v_lshlrev_b32 v{t[0]}, 3, v{V_LANE}', [V_LANE], [t[0]])
    V(f'v_add_u32 v{t[0]}, {PDL}, v{t[0]}', [t[0]], [t[0]])
    a.ds(f'ds_read_b64 {vr(LG+4,2)}, v{t[0]}', [t[0]], R(LG+4, 2))
    V(f'v_bfe_u32 v{t[1]}, v{V_LANE}, 3, 2', [V_LANE], [t[1]])
    V(f'v_add_u32 v{t[1]}, s{S_Q}, v{t[1]}', [t[1]], [t[1]])
    V(f'v_and_b32 v{t[1]}, 3, v{t[1]}', [t[1]], [t[1]])
    V(f'v_lshlrev_b32 v{t[1]}, 13, v{t[1]}', [t[1]], [t[1]])
    V(f'v_lshrrev_b32 v{t[2]}, 5, v{V_LANE}', [V_LANE], [t[2]])
    V(f'v_lshl_add_u32 v{t[1]}, v{t[2]}, 7, v{t[1]}', [t[2], t[1]], [t[1]])
    V(f'v_and_b32 v{t[2]}, 7, v{V_LANE}', [V_LANE], [t[2]])
    V(f'v_lshl_add_u32 v{t[1]}, v{t[2]}, 4, v{t[1]}', [t[2], t[1]], [t[1]])
    S(f's_lshl_b32 s{S_T0}, s{S_CB}, 10'); S(f's_lshl_b32 s{S_T1}, s{S_Q}, 8'); S(f's_add_u32 s{S_T0}, s{S_T0}, s{S_T1}'); S(f's_add_u32 s{S_T0}, s{S_T0}, {WS_INB}')
    V(f'v_mov_b32 v{LG}, v{LG+4}', [LG+4], [LG]); V(f'v_mov_b32 v{LG+1}, v{LN}', [LN], [LG+1])
    V(f'v_mov_b32 v{LG+2}, v{LG+5}', [LG+5], [LG+2]); V(f'v_mov_b32 v{LG+3}, v{LN}', [LN], [LG+3])
    a.vmem(f'buffer_store_dwordx4 {vr(LG,4)}, v{t[1]}, s[{S_WS}:{S_WS+3}], s{S_T0} offen sc1', [t[1]] + R(LG, 4), [], wide_store=R(LG, 4))
    a.wait_vm_tag(('i', 3)); publish(4, 8)
    l_wait_lds(LDA, 0, 4, 'e')
    l_lin(('i', 4), S_WS, WS_IMG[4], U[3], IMG, 'sc1')
    l_poll(NP1, NP2, 'b')
    l_lin('v5f', S_WS, WS_V5F, V5F, 4096, 'sc1')
    a.wait_vm_tag(('i', 4)); publish(5, 8)
    a.wait_vm_all(); publish(6, 8); stamp('i5')
    S(f's_lshl_b32 s{S_T2}, s2, 10'); S(f's_add_u32 s{S_T2}, s{S_T2}, {WS_INB}')
    S(f's_mov_b32 s{S_T0}, 0')
    a.label('L_inb')
    a.raw(f'buffer_load_dwordx4 {vr(LG+8,4)}, v{V_L16}, s[{S_WS}:{S_WS+3}], s{S_T2} offen sc1', kind='vmem')
    S(f's_add_u32 s{S_T0}, s{S_T0}, 1')
    a.raw('s_waitcnt vmcnt(0)', kind='wait')
    a.raw(f'v_cmp_ne_u32 vcc, v{LN}, v{LG+9}', kind='valu')
    a.raw(f'v_cmp_ne_u32 s[{S_MT}:{S_MT+1}], v{LN}, v{LG+11}', kind='valu')
    a.raw('s_nop 1', kind='nop')
    a.raw(f's_or_b64 vcc, vcc, s[{S_MT}:{S_MT+1}]', kind='salu')
    a.raw('s_cbranch_vccz L_inbok', kind='branch')
    S(f's_cmp_lt_u32 s{S_T0}, 0x40000')
    a.raw('s_cbranch_scc1 L_inb', kind='branch')
    a.label('L_inbok')
    V(f'v_mov_b32 v{LG+9}, v{LG+10}', [LG+10], [LG+9])
    V(f'v_lshlrev_b32 v{t[0]}, 3, v{V_LANE}', [V_LANE], [t[0]])
    V(f'v_add_u32 v{t[0]}, {PD}, v{t[0]}', [t[0]], [t[0]])
    a.ds(f'ds_write_b64 v{t[0]}, {vr(LG+8,2)}', [t[0], LG+8, LG+9])
    publish(7, 8)
    dbg_out()
    a.label('L_end')
    a.raw('s_endpgm')
    a.stamp_names = (names_c, a.stamp_names)
    return a

HEADER = open('cdna_kernels/' + NAME + '.s.ref').read().split('; Override launch geometry')[0]
def wrap(a):
    s = HEADER
    s += f'; @launch grid=(256,1,1) block=(576,1,1) lds={LDS_TOTAL}\n'
    s += '.amdgcn_target "amdgcn-amd-amdhsa--gfx950"\n.text\n'
    s += f'.globl {NAME}_kernel\n.p2align 8\n.type {NAME}_kernel,@function\n{NAME}_kernel:\n'
    s += a.text()
    s += f'''.section .rodata,"a"
.p2align 6
.amdhsa_kernel {NAME}_kernel
  .amdhsa_next_free_vgpr {NV}
  .amdhsa_next_free_sgpr 102
  .amdhsa_accum_offset {NV}
  .amdhsa_group_segment_fixed_size 0
  .amdhsa_kernarg_size 88
  .amdhsa_user_sgpr_count 2
  .amdhsa_user_sgpr_kernarg_segment_ptr 1
  .amdhsa_system_sgpr_workgroup_id_x 1
  .amdhsa_float_denorm_mode_32 3
.end_amdhsa_kernel
'''
    return s

if __name__ == '__main__':
    import argparse
    ap = argparse.ArgumentParser()
    ap.add_argument('out', nargs='?', default='cdna_kernels/' + NAME + '.s')
    ap.add_argument('--dbg', type=int, default=0)
    ap.add_argument('--prio', type=int, default=1)
    ap.add_argument('--splitepi', type=int, default=1)
    args = ap.parse_args()
    a = gen(debug=args.dbg, PRIO=args.prio, SPLITEPI=args.splitepi)
    open(args.out, 'w').write(wrap(a))
    print(a.count, 'lines', len(a.lines), a.stamp_names)
```

```python
import sys, struct
sys.path.insert(0, 'gen')
from asmfw import *

NAME = 'standalone__deep_cross_xdeepfm__recsys'
IMG = 35776; IMG0 = 19136
U = [IMG * i for i in range(4)]
CH = 7168
CADDR = [121600 + CH * i for i in range(3)] + [CH * i for i in range(10)]
TAB = 71680; IDXB = 103680; SCR = 110336
I0B = 143104 - IMG0
X16 = 143104
V5F = 156672; EWT = 160768; POOLW = 161408; BW = 162048
PDL = V5F
PD = BW
SYNC = 163712
LDS_TOTAL = 163776
WS_IMG0 = 0
WS_IMG = [None] + [19200 + IMG * i for i in range(4)]
WS_V5F = 19200 + 4 * IMG
WS_EWT = WS_V5F + 4096
WS_INB = 0x40000
WS_SIZE = WS_INB + 256 * 1024
NP1 = 17; NP2 = 21
S_IDX, S_TAB, S_WC, S_WCO, S_W1, S_B1, S_W2, S_BO, S_OUT, S_DBGF, S_WS = [24 + 4 * i for i in range(11)]
S_WAVE = 68; S_T0 = 69; S_T1 = 70; S_T2 = 71; S_T3 = 72; S_T4 = 73
S_HI = 74; S_C = 76; S_K7FFF = 77; S_K8000 = 78; S_Q = 79; S_K2 = 80; S_G = 81; S_HALF = 82
S_ROT = 83; S_MT = 84; S_PID = 86; S_CB = 87; S_XT = 88; S_T0L = 89; S_KO = 90; S_KN = 91
SM = [4, 6, 8, 10, 12, 14, 16]
V_LANE = 1
V_T = list(range(2, 12))
V_STAMP = 12; V_E = 13; V_EX = 14; V_ACC = 15
P16 = 16; V_SH = 30; V_L16 = 31
XQ = 32; V_TRADDR = 39; D = 40
ZB = [56, 60, 64]; ZL = 68
AB = [72, 76, 80, 84, 4, 8]; NAB = 6; PFD = 5
PW = 88; EW = 102
V_PWADDR = 101; V_DBADDR = 115
DACC = 116; DA = 132; DB = 148
QH = 152
V_AADDR = [159, 160]; V_AADDR0 = 161; V_DAADDR = 162; V_DBK = 163; V_BWADDR = 164; V_SYNC = 165; V_RDY = 166; V_DONEA = 167
G = DACC; UA = DA
PBT = 148
DA2 = 88; DB2 = 104
NV = 168

import os
PX = int(os.environ.get('PX', '0'))
NL = int(os.environ.get('NL', '5'))
REP = int(os.environ.get('REP', '0'))
PSLEEP = int(os.environ.get('PSLEEP', '12'))
TOUCH = int(os.environ.get('TOUCH', '1'))
XP = os.environ.get('XP', '')
LBAR = int(os.environ.get('LBAR', '7'))
def fb(x): return '0x%08x' % struct.unpack('<I', struct.pack('<f', x))[0]

def gen(debug=None, PRIO=1, SPLITEPI=1, LPRE=24):
    a = Asm()
    V = a.valu; S = a.salu
    t = V_T
    stamp_n = [0]
    a.stamp_names = []
    def stamp(name=''):
        if not debug: return
        a.wait_lds_all()
        a.raw('s_memtime s[98:99]')
        a.raw('s_waitcnt lgkmcnt(0)', kind='wait')
        a.valu(f'v_writelane_b32 v{V_STAMP}, s98, {stamp_n[0]}', [], [V_STAMP])
        a.stamp_names.append(name)
        stamp_n[0] += 1
    def execn(n):
        if n <= 32: S(f's_mov_b64 exec, 0x{(1<<n)-1:x}')
        else: S(f's_mov_b32 exec_hi, 0x{(1<<(n-32))-1:x}')
    def fullexec(): S('s_mov_b64 exec, -1')
    def rawbar(): a.raw('s_barrier', kind='barrier')
    def dbg_out():
        if not debug: return
        fullexec()
        stamp('end')
        a.valu(f'v_writelane_b32 v{V_STAMP}, s100, 62', [], [V_STAMP])
        a.raw('s_memrealtime s[98:99]')
        a.raw('s_waitcnt lgkmcnt(0)', kind='wait')
        a.valu(f'v_writelane_b32 v{V_STAMP}, s98, 63', [], [V_STAMP])
        V(f'v_lshlrev_b32 v{t[0]}, 2, v0', [0], [t[0]])
        S(f's_mul_i32 s{S_T0}, s2, 2304'); S(f's_add_u32 s{S_T0}, s{S_T0}, 0x100000')
        a.vmem(f'buffer_store_dword v{V_STAMP}, v{t[0]}, s[{S_WS}:{S_WS+3}], s{S_T0} offen', [V_STAMP, t[0]], [])
    S('s_cmp_ge_u32 s2, 256')
    a.raw('s_cbranch_scc1 L_end', kind='branch')
    if debug:
        a.raw('s_memrealtime s[100:101]')
        stamp('start')
    if REP:
        a.raw('s_memtime s[92:93]'); a.raw('s_memrealtime s[94:95]')
    a.raw('s_load_dwordx16 s[4:19], s[0:1], 0')
    a.raw('s_load_dwordx4 s[20:23], s[0:1], 64')
    a.raw(f's_load_dwordx2 s[{S_WS}:{S_WS+1}], s[0:1], 80')
    V(f'v_and_b32 v{V_LANE}, 63, v0', [0], [V_LANE])
    V(f'v_lshrrev_b32 v{t[0]}, 6, v0', [0], [t[0]])
    V(f'v_readfirstlane_b32 s{S_WAVE}, v{t[0]}', [t[0]], [], swrites=[S_WAVE], readlane=True)
    S(f's_mov_b32 s{S_K7FFF}, 0x7fff7fff'); S(f's_mov_b32 s{S_K8000}, 0x80008000'); S(f's_mov_b32 s{S_HALF}, 0x38003800')
    S(f's_mov_b32 s{S_HI}, 0'); S(f's_mov_b32 s{S_HI+1}, -1')
    V(f'v_lshlrev_b32 v{V_L16}, 4, v{V_LANE}', [V_LANE], [V_L16])
    S(f's_lshr_b32 s{S_T0}, s2, 3'); S(f's_and_b32 s{S_Q}, s{S_T0}, 3'); S(f's_lshr_b32 s{S_T1}, s{S_T0}, 2')
    S(f's_lshr_b32 s{S_ROT}, s{S_T1}, 1'); S(f's_add_u32 s{S_ROT}, s{S_ROT}, s{S_T1}')
    S(f's_andn2_b32 s{S_CB}, s2, 0x18')
    if PX < 8:
        S(f's_and_b32 s{S_T1}, s2, 7'); S(f's_cmp_eq_u32 s{S_T1}, {PX}'); S(f's_cselect_b32 s{S_PID}, s{S_T0}, 255')
    else: S(f's_mov_b32 s{S_PID}, s2')
    S(f's_lshl_b32 s{S_G}, s{S_PID}, 3'); S(f's_add_u32 s{S_G}, s{S_G}, s{S_WAVE}', sreads=[S_WAVE])
    S(f's_min_u32 s{S_T0L}, s{S_Q}, 1'); S(f's_mul_i32 s{S_T1}, s{S_Q}, 6'); S(f's_add_u32 s{S_T0L}, s{S_T0L}, s{S_T1}')
    S(f's_cmp_lt_u32 s{S_WAVE}, 4'); S(f's_cselect_b32 s{S_XT}, 1, 0'); S(f's_cmp_lt_u32 s{S_Q}, 2'); S(f's_cselect_b32 s{S_XT}, s{S_XT}, 0')
    a.raw('s_waitcnt lgkmcnt(0)', kind='wait')
    sizes = [425984, 32000, 210912, 312, 346112, 832, 832, 2, 8192, 256]
    srds = [S_IDX, S_TAB, S_WC, S_WCO, S_W1, S_B1, S_W2, S_BO, S_OUT, S_DBGF]
    for i in range(10):
        sb, sz = srds[i], sizes[i]
        S(f's_mov_b32 s{sb}, s{4+2*i}'); S(f's_and_b32 s{sb+1}, s{5+2*i}, 0xffff')
        S(f's_mov_b32 s{sb+2}, {sz}'); S(f's_mov_b32 s{sb+3}, 0x00020000')
    S(f's_and_b32 s{S_WS+1}, s{S_WS+1}, 0xffff'); S(f's_mov_b32 s{S_WS+2}, {0x1000000 if debug else WS_SIZE}'); S(f's_mov_b32 s{S_WS+3}, 0x00020000')
    S(f's_cmp_eq_u32 s{S_WAVE}, 8')
    a.raw('s_cbranch_scc1 L_loader', kind='branch')

    def dpp_max(m):
        for d in ('row_shr:1 row_mask:0xf', 'row_shr:2 row_mask:0xf', 'row_shr:4 row_mask:0xf', 'row_shr:8 row_mask:0xf', 'row_bcast:15 row_mask:0xa', 'row_bcast:31 row_mask:0xc'):
            V(f'v_max_u32_dpp v{m}, v{m}, v{m} {d} bank_mask:0xf', [m], [m], dpp=True)
    def rho_salu(sh, st1, st2, clamp=True):
        S(f's_cmp_ge_u32 s{sh}, 13'); S(f's_cselect_b32 s{st1}, 1, 0')
        S(f's_mul_i32 s{st2}, s{st1}, 13'); S(f's_sub_u32 s{sh}, s{sh}, s{st2}')
        S(f's_lshl_b32 s{st2}, s{st1}, 2')
        S(f's_lshl_b32 s{st1}, s{st1}, 4'); S(f's_add_u32 s{st1}, s{st1}, s{sh}')
        S(f's_add_u32 s{st2}, s{st2}, s{sh}'); S(f's_and_b32 s{sh}, s{sh}, 12'); S(f's_add_u32 s{sh}, s{sh}, s{st2}')
        if clamp: S(f's_add_u32 s{sh}, s{sh}, 1'); S(f's_cmp_eq_u32 s{sh}, 29'); S(f's_cselect_b32 s{sh}, 0, s{sh}')

    V(f'v_mov_b32 v{V_SYNC}, {SYNC}', [], [V_SYNC])
    S(f's_cmp_ge_u32 s{S_PID}, {NP2}')
    a.cond_begin('s_cbranch_scc1 L_noprod', 'L_noprod')
    p = [72 + i for i in range(16)]
    S(f's_cmp_ge_u32 s{S_G}, 136'); a.raw('s_cbranch_scc1 L_prodv5', kind='branch')
    S(f's_cmp_ge_u32 s{S_G}, 32'); a.raw('s_cbranch_scc1 L_prodrow', kind='branch')
    S(f's_cmp_ge_u32 s{S_G}, 26'); a.raw('s_cbranch_scc1 L_prodfin', kind='branch')
    MF = 116; IF = 124; SD = 40
    V(f'v_and_b32 v{p[0]}, 31, v{V_LANE}', [V_LANE], [p[0]])
    V(f'v_lshrrev_b32 v{p[1]}, 5, v{V_LANE}', [V_LANE], [p[1]])
    V(f'v_mul_u32_u24 v{p[2]}, 52, v{p[0]}', [p[0]], [p[2]])
    V(f'v_lshl_add_u32 v{p[2]}, v{p[1]}, 4, v{p[2]}', [p[1], p[2]], [p[2]])
    S(f's_mul_i32 s{S_T2}, s{S_G}, 1352')
    a.vmem(f'buffer_load_dwordx4 {vr(MF,4)}, v{p[2]}, s[{S_WC}:{S_WC+3}], s{S_T2} offen', [p[2]], R(MF, 4))
    a.vmem(f'buffer_load_dwordx4 {vr(MF+4,4)}, v{p[2]}, s[{S_WC}:{S_WC+3}], s{S_T2} offen offset:32', [p[2]], R(MF+4, 4))
    V(f'v_lshlrev_b32 v{p[3]}, 3, v{p[1]}', [p[1]], [p[3]])
    V(f'v_sub_u32 v{p[3]}, v{p[0]}, v{p[3]}', [p[0], p[3]], [p[3]])
    V(f'v_and_b32 v{p[4]}, 1, v{p[3]}', [p[3]], [p[4]])
    V(f'v_lshlrev_b32 v{p[4]}, 4, v{p[4]}', [p[4]], [p[4]])
    V(f'v_mov_b32 v{p[5]}, 0x3f80', [], [p[5]])
    V(f'v_lshlrev_b32 v{p[4]}, v{p[4]}, v{p[5]}', [p[4], p[5]], [p[4]])
    V(f'v_ashrrev_i32 v{p[3]}, 1, v{p[3]}', [p[3]], [p[3]])
    for ks in range(2):
        for r in range(4):
            V(f'v_cmp_eq_u32 vcc, {8*ks + r}, v{p[3]}', [p[3]], [], swrites=['vcc'])
            V(f'v_cndmask_b32 v{IF+4*ks+r}, 0, v{p[4]}, vcc', [p[4]], [IF+4*ks+r], sreads=['vcc'])
    V(f'v_lshrrev_b32 v{p[3]}, 1, v{p[0]}', [p[0]], [p[3]])
    V(f'v_and_b32 v{p[4]}, 1, v{p[0]}', [p[0]], [p[4]])
    V(f'v_subrev_u32 v{p[5]}, 1, v{p[3]}', [p[3]], [p[5]])
    V(f'v_mul_i32_i24 v{p[5]}, v{p[5]}, v{p[3]}', [p[5], p[3]], [p[5]])
    V(f'v_lshrrev_b32 v{p[5]}, 1, v{p[5]}', [p[5]], [p[5]])
    V(f'v_mul_u32_u24 v{p[6]}, 12, v{p[3]}', [p[3]], [p[6]])
    V(f'v_sub_u32 v{p[6]}, v{p[6]}, v{p[5]}', [p[6], p[5]], [p[6]])
    V(f'v_mul_u32_u24 v{p[5]}, 92, v{p[4]}', [p[4]], [p[5]])
    V(f'v_add_u32 v{p[6]}, v{p[6]}, v{p[5]}', [p[6], p[5]], [p[6]])
    V(f'v_lshl_add_u32 v{p[6]}, v{p[1]}, 1, v{p[6]}', [p[1], p[6]], [p[6]])
    S(f's_lshl_b32 s{S_T3}, s{S_WAVE}, 10'); S(f's_add_u32 s{S_T3}, s{S_T3}, {SCR}')
    V(f'v_lshlrev_b32 v{p[6]}, 2, v{p[6]}', [p[6]], [p[6]])
    V(f'v_add_u32 v{p[6]}, s{S_T3}, v{p[6]}', [p[6]], [p[6]])
    V(f'v_lshlrev_b32 v{p[5]}, 1, v{p[1]}', [p[1]], [p[5]])
    V(f'v_sub_u32 v{p[3]}, v{p[3]}, v{p[5]}', [p[3], p[5]], [p[3]])
    V(f'v_cmp_gt_u32 vcc, 26, v{p[0]}', [p[0]], [], swrites=['vcc'])
    V(f'v_mov_b32 v{p[5]}, 100', [], [p[5]])
    V(f'v_cndmask_b32 v{p[3]}, v{p[5]}, v{p[3]}, vcc', [p[5], p[3]], [p[3]], sreads=['vcc'])
    V(f'v_mov_b32 v{p[7]}, 0', [], [p[7]])
    V(f'v_mov_b32 v{p[8]}, s{S_T3}', [], [p[8]])
    a.ds(f'ds_write_b32 v{p[8]}, v{p[7]} offset:364', [p[8], p[7]])
    a.ds(f'ds_write_b32 v{p[8]}, v{p[7]} offset:732', [p[8], p[7]])
    V(f'v_add_u32 v{p[8]}, s{S_T3}, v{V_L16}', [V_L16], [p[8]])
    V(f'v_cmp_le_u32 vcc, 23, v{V_LANE}', [V_LANE], [], swrites=['vcc'])
    V(f'v_cndmask_b32 v{p[9]}, 0, 1, vcc', [], [p[9]], sreads=['vcc'])
    S(f's_mov_b32 s{S_T0}, s{S_G}')
    rho_salu(S_T0, S_T1, S_T4)
    V(f'v_mul_u32_u24 v{p[9]}, {25*368}, v{p[9]}', [p[9]], [p[9]])
    V(f'v_add_u32 v{p[9]}, v{p[9]}, v{V_L16}', [p[9], V_L16], [p[9]])
    S(f's_mul_i32 s{S_T0}, s{S_T0}, 368')
    a.mfma('v_mfma_f32_32x32x16_bf16', SD, MF, IF, None, 8, 16)
    a.mfma('v_mfma_f32_32x32x16_bf16', SD, MF+4, IF+4, SD, 8, 16)
    a.mfma('v_mfma_f32_32x32x16_bf16', SD, IF, MF, SD, 8, 16)
    a.mfma('v_mfma_f32_32x32x16_bf16', SD, IF+4, MF+4, SD, 8, 16)
    m = p[10]
    V(f'v_max3_f32 v{m}, |v{SD}|, |v{SD+1}|, |v{SD+2}|', R(SD, 3), [m])
    for r in range(3, 15, 2):
        V(f'v_max3_f32 v{m}, |v{SD+r}|, |v{SD+r+1}|, v{m}', [SD+r, SD+r+1, m], [m])
    dpp_max(m)
    V(f'v_frexp_exp_i32_f32 v{m}, v{m}', [m], [m])
    V(f'v_readlane_b32 s{S_T4}, v{m}, 63', [m], [], swrites=[S_T4], readlane=True)
    S(f's_sub_i32 s{S_C}, 15, s{S_T4}', sreads=[S_T4])
    S(f's_sub_i32 s{S_T4}, s{S_T4}, 15')
    for r in range(14): V(f'v_ldexp_f32 v{SD+r}, v{SD+r}, s{S_C}', [SD+r], [SD+r])
    for rp in range(7):
        V(f'v_cvt_pk_f16_f32 v{MF+rp}, v{SD+2*rp}, v{SD+2*rp+1}', [SD+2*rp, SD+2*rp+1], [MF+rp])
    for rp in range(7):
        aa, bb = rp >> 1, rp & 1
        V(f'v_cmp_ge_i32 vcc, {4*aa+bb}, v{p[3]}', [p[3]], [], swrites=['vcc'])
        if aa == 3: S('s_mov_b32 vcc_hi, 0', sreads=['vcc'])
        S('s_mov_b64 exec, vcc', sreads=['vcc'])
        a.ds(f'ds_write_b32 v{p[6]}, v{MF+rp} offset:{4*(4*aa+bb)}', [p[6], MF+rp])
        fullexec()
    a.raw('s_waitcnt lgkmcnt(0)', kind='wait')
    a.ds(f'ds_read_b128 {vr(IF,4)}, v{p[8]}', [p[8]], R(IF, 4))
    execn(46)
    a.vmem(f'buffer_store_dwordx4 {vr(IF,4)}, v{p[9]}, s[{S_WS}:{S_WS+3}], s{S_T0} offen sc1', [p[9]] + R(IF, 4), [], wide_store=R(IF, 4))
    fullexec()
    S(f's_lshl_b32 s{S_T1}, s{S_T1}, 2'); S(f's_add_u32 s{S_T1}, s{S_T1}, {WS_EWT}')
    V(f'v_mov_b32 v{p[11]}, s{S_T4}', [], [p[11]]); V(f'v_mov_b32 v{p[12]}, s{S_T1}', [], [p[12]])
    S('s_mov_b64 exec, 1')
    a.vmem(f'buffer_store_dword v{p[11]}, v{p[12]}, s[{S_WS}:{S_WS+3}], 0 offen sc1', [p[11], p[12]], [])
    a.raw('s_branch L_prodfin', kind='branch')
    a.label('L_prodrow')
    S(f's_sub_u32 s{S_G}, s{S_G}, 32')
    PR = 40; PA = 48
    S(f's_mul_i32 s{S_T2}, s{S_G}, 1352'); S(f's_add_u32 s{S_T2}, s{S_T2}, 35152')
    V(f'v_cmp_le_u32 vcc, 43, v{V_LANE}', [V_LANE], [], swrites=['vcc'])
    V(f'v_cndmask_b32 v{p[0]}, 0, 1, vcc', [], [p[0]], sreads=['vcc'])
    V(f'v_mul_u32_u24 v{p[2]}, 12, v{p[0]}', [p[0]], [p[2]])
    V(f'v_sub_u32 v{p[2]}, v{V_L16}, v{p[2]}', [V_L16, p[2]], [p[2]])
    a.vmem(f'buffer_load_dwordx4 {vr(PR,4)}, v{p[2]}, s[{S_WC}:{S_WC+3}], s{S_T2} offen', [p[2]], R(PR, 4))
    V(f'v_min_u32 v{p[3]}, 21, v{V_LANE}', [V_LANE], [p[3]])
    V(f'v_lshlrev_b32 v{p[4]}, 4, v{p[3]}', [p[3]], [p[4]])
    a.vmem(f'buffer_load_dwordx4 {vr(PR+4,4)}, v{p[4]}, s[{S_WC}:{S_WC+3}], s{S_T2} offen offset:1012', [p[4]], R(PR+4, 4))
    S(f's_mul_i32 s{S_T1}, s{S_G}, 2521'); S(f's_lshr_b32 s{S_T1}, s{S_T1}, 16')
    S(f's_mul_i32 s{S_T3}, s{S_T1}, 26'); S(f's_sub_u32 s{S_T0}, s{S_G}, s{S_T3}')
    rho_salu(S_T0, S_T3, S_T4)
    V(f'v_mul_u32_u24 v{p[7]}, {25*688}, v{p[0]}', [p[0]], [p[7]])
    V(f'v_add_u32 v{p[7]}, v{p[7]}, v{V_L16}', [p[7], V_L16], [p[7]])
    V(f'v_add_u32 v{p[8]}, {26*688+336}, v{p[4]}', [p[4]], [p[8]])
    S(f's_mul_i32 s{S_T0}, s{S_T0}, 688'); S(f's_mul_i32 s{S_T2}, s{S_T1}, {IMG}'); S(f's_add_u32 s{S_T2}, s{S_T2}, s{S_T0}'); S(f's_add_u32 s{S_T2}, s{S_T2}, {WS_IMG[1]}')
    S(f's_lshl_b32 s{S_T1}, s{S_T1}, 5'); S(f's_add_u32 s{S_T1}, s{S_T1}, s{S_T3}'); S(f's_add_u32 s{S_T1}, s{S_T1}, 32')
    for i in range(8): V(f'v_and_b32 v{PA+i}, s{S_K7FFF}, v{PR+i}', [PR+i], [PA+i])
    m = p[11]
    V(f'v_pk_maximum3_f16 v{m}, v{PA}, v{PA+1}, v{PA+2}', R(PA, 3), [m])
    V(f'v_pk_maximum3_f16 v{m}, v{m}, v{PA+3}, v{PA+4}', [m, PA+3, PA+4], [m])
    V(f'v_pk_maximum3_f16 v{m}, v{m}, v{PA+5}, v{PA+6}', [m, PA+5, PA+6], [m])
    V(f'v_pk_max_u16 v{m}, v{m}, v{PA+7}', [m, PA+7], [m])
    V(f'v_max_u16_sdwa v{m}, v{m}, v{m} dst_sel:DWORD dst_unused:UNUSED_PAD src0_sel:WORD_1 src1_sel:WORD_0', [m], [m], opsel=True)
    dpp_max(m)
    V(f'v_readlane_b32 s{S_T0}, v{m}, 63', [m], [], swrites=[S_T0], readlane=True)
    S(f's_lshr_b32 s{S_T0}, s{S_T0}, 7', sreads=[S_T0], swrites=[S_T0])
    S(f's_sub_i32 s{S_T0}, s{S_T0}, 30'); S(f's_max_i32 s{S_T0}, s{S_T0}, 0')
    S(f's_mul_i32 s{S_C}, s{S_T0}, 0x800080'); S(f's_sub_i32 s{S_T0}, s{S_T0}, 112')
    for i in range(8): V(f'v_pk_sub_u16 v{PA+i}, v{PA+i}, s{S_C} clamp', [PA+i], [PA+i])
    for i in range(8): V(f'v_lshlrev_b32 v{PA+i}, 3, v{PA+i}', [PA+i], [PA+i])
    for i in range(8): V(f'v_bfi_b32 v{PA+i}, s{S_K8000}, v{PR+i}, v{PA+i}', [PA+i, PR+i], [PA+i])
    a.vmem(f'buffer_store_dwordx4 {vr(PA,4)}, v{p[7]}, s[{S_WS}:{S_WS+3}], s{S_T2} offen sc1', [p[7]] + R(PA, 4), [], wide_store=R(PA, 4))
    execn(22)
    a.vmem(f'buffer_store_dwordx4 {vr(PA+4,4)}, v{p[8]}, s[{S_WS}:{S_WS+3}], s{S_T2} offen sc1', [p[8]] + R(PA+4, 4), [], wide_store=R(PA+4, 4))
    S(f's_lshl_b32 s{S_T1}, s{S_T1}, 2'); S(f's_add_u32 s{S_T1}, s{S_T1}, {WS_EWT}')
    V(f'v_mov_b32 v{p[9]}, s{S_T0}', [], [p[9]]); V(f'v_mov_b32 v{p[10]}, s{S_T1}', [], [p[10]])
    S('s_mov_b64 exec, 1')
    a.vmem(f'buffer_store_dword v{p[9]}, v{p[10]}, s[{S_WS}:{S_WS+3}], 0 offen sc1', [p[9], p[10]], [])
    S(f's_cmp_lg_u32 s{S_G}, 0'); a.raw('s_cbranch_scc1 L_prodfin', kind='branch')
    a.raw(f's_memrealtime s[{S_MT}:{S_MT+1}]')
    a.raw('s_waitcnt lgkmcnt(0)', kind='wait')
    V(f'v_mov_b32 v{p[12]}, s{S_MT}', [], [p[12]]); V(f'v_mov_b32 v{p[13]}, {WS_EWT + (32+15)*4}', [], [p[13]])
    a.vmem(f'buffer_store_dword v{p[12]}, v{p[13]}, s[{S_WS}:{S_WS+3}], 0 offen sc1', [p[12], p[13]], [])
    a.raw('s_branch L_prodfin', kind='branch')
    a.label('L_prodv5')
    S(f's_cmp_ge_u32 s{S_G}, 162'); a.raw('s_cbranch_scc1 L_prodfin', kind='branch')
    LA = 40; LB = 44; AC = 48
    S(f's_sub_u32 s{S_T0}, s{S_G}, 136')
    S(f's_mul_i32 s{S_T2}, s{S_T0}, 52'); S(f's_add_u32 s{S_T2}, s{S_T2}, {5*35152}')
    V(f'v_lshrrev_b32 v{p[0]}, 2, v{V_LANE}', [V_LANE], [p[0]])
    V(f'v_and_b32 v{p[1]}, 3, v{V_LANE}', [V_LANE], [p[1]])
    V(f'v_mul_u32_u24 v{p[2]}, 0x548, v{p[0]}', [p[0]], [p[2]])
    V(f'v_lshl_add_u32 v{p[2]}, v{p[1]}, 4, v{p[2]}', [p[1], p[2]], [p[2]])
    a.vmem(f'buffer_load_dwordx4 {vr(LA,4)}, v{p[2]}, s[{S_WC}:{S_WC+3}], s{S_T2} offen', [p[2]], R(LA, 4))
    S(f's_add_u32 s{S_T2}, s{S_T2}, {16*1352}')
    a.vmem(f'buffer_load_dwordx4 {vr(LB,4)}, v{p[2]}, s[{S_WC}:{S_WC+3}], s{S_T2} offen', [p[2]], R(LB, 4))
    V(f'v_lshlrev_b32 v{p[3]}, 1, v{p[0]}', [p[0]], [p[3]])
    a.vmem(f'buffer_load_ushort v{p[4]}, v{p[3]}, s[{S_WCO}:{S_WCO+3}], 0 offen offset:260', [p[3]], [p[4]])
    a.vmem(f'buffer_load_ushort v{p[5]}, v{p[3]}, s[{S_WCO}:{S_WCO+3}], 0 offen offset:292', [p[3]], [p[5]])
    rho_salu(S_T0, S_T1, S_T4, clamp=False)
    S(f's_lshl_b32 s{S_T0}, s{S_T0}, 4'); S(f's_add_u32 s{S_T0}, s{S_T0}, {WS_V5F}')
    V(f'v_lshlrev_b32 v{p[6]}, 10, v{p[1]}', [p[1]], [p[6]])
    V(f'v_cmp_ne_u32 vcc, 3, v{p[1]}', [p[1]], [], swrites=['vcc'])
    for r in (1, 2, 3):
        V(f'v_cndmask_b32 v{LA+r}, 0, v{LA+r}, vcc', [LA+r], [LA+r], sreads=['vcc'])
        V(f'v_cndmask_b32 v{LB+r}, 0, v{LB+r}, vcc', [LB+r], [LB+r], sreads=['vcc'])
    V(f'v_lshlrev_b32 v{p[4]}, 16, v{p[4]}', [p[4]], [p[4]])
    V(f'v_lshlrev_b32 v{p[5]}, 16, v{p[5]}', [p[5]], [p[5]])
    for r in range(4):
        V(f'v_lshlrev_b32 v{p[7]}, 16, v{LA+r}', [LA+r], [p[7]])
        V(f'v_and_b32 v{p[8]}, 0xffff0000, v{LA+r}', [LA+r], [p[8]])
        V(f'v_lshlrev_b32 v{p[9]}, 16, v{LB+r}', [LB+r], [p[9]])
        V(f'v_and_b32 v{p[10]}, 0xffff0000, v{LB+r}', [LB+r], [p[10]])
        V(f'v_mul_f32 v{AC+2*r}, v{p[4]}, v{p[7]}', [p[4], p[7]], [AC+2*r])
        V(f'v_mul_f32 v{AC+2*r+1}, v{p[4]}, v{p[8]}', [p[4], p[8]], [AC+2*r+1])
        V(f'v_fmac_f32 v{AC+2*r}, v{p[5]}, v{p[9]}', [AC+2*r, p[5], p[9]], [AC+2*r])
        V(f'v_fmac_f32 v{AC+2*r+1}, v{p[5]}, v{p[10]}', [AC+2*r+1, p[5], p[10]], [AC+2*r+1])
    for d in (4, 8):
        for e in range(8):
            V(f'v_add_f32_dpp v{AC+e}, v{AC+e}, v{AC+e} row_ror:{d} row_mask:0xf bank_mask:0xf', [AC+e], [AC+e], dpp=True)
    for op in ('v_permlane16_swap_b32', 'v_permlane32_swap_b32'):
        for e in range(8): V(f'v_mov_b32 v{p[7+e]}, v{AC+e}', [AC+e], [p[7+e]])
        for e in range(8): V(f'{op} v{AC+e}, v{p[7+e]}', [AC+e, p[7+e]], [AC+e, p[7+e]], permlane=True)
        for e in range(8): V(f'v_add_f32 v{AC+e}, v{AC+e}, v{p[7+e]}', [AC+e, p[7+e]], [AC+e])
    for r in range(4):
        V(f'v_cvt_pk_bf16_f32 v{LA+r}, v{AC+2*r}, v{AC+2*r+1}', [AC+2*r, AC+2*r+1], [LA+r])
        V(f'v_lshlrev_b32 v{p[7]}, 16, v{LA+r}', [LA+r], [p[7]])
        V(f'v_and_b32 v{p[8]}, 0xffff0000, v{LA+r}', [LA+r], [p[8]])
        V(f'v_sub_f32 v{p[7]}, v{AC+2*r}, v{p[7]}', [AC+2*r, p[7]], [p[7]])
        V(f'v_sub_f32 v{p[8]}, v{AC+2*r+1}, v{p[8]}', [AC+2*r+1, p[8]], [p[8]])
        V(f'v_cvt_pk_bf16_f32 v{LB+r}, v{p[7]}, v{p[8]}', [p[7], p[8]], [LB+r])
    execn(4)
    a.vmem(f'buffer_store_dwordx4 {vr(LA,4)}, v{p[6]}, s[{S_WS}:{S_WS+3}], s{S_T0} offen sc1', [p[6]] + R(LA, 4), [], wide_store=R(LA, 4))
    a.vmem(f'buffer_store_dwordx4 {vr(LB,4)}, v{p[6]}, s[{S_WS}:{S_WS+3}], s{S_T0} offen offset:512 sc1', [p[6]] + R(LB, 4), [], wide_store=R(LB, 4))
    a.label('L_prodfin')
    fullexec()
    a.nop(2)
    a.cond_end()
    a.nop(12)
    stamp('prod')
    PWT = 136; BIGR = 137
    V(f'v_mov_b32 v{BIGR}, 0x7f000000', [], [BIGR])
    V(f'v_lshrrev_b32 v{t[0]}, 4, v0', [0], [t[0]])
    V(f'v_and_b32 v{t[1]}, 15, v0', [0], [t[1]])
    V(f'v_mad_u32_u24 v{t[0]}, v{t[0]}, 13, v{t[1]}', [t[0], t[1]], [t[0]])
    V(f'v_lshlrev_b32 v{t[0]}, 1, v{t[0]}', [t[0]], [t[0]])
    V(f'v_cmp_gt_u32 vcc, 13, v{t[1]}', [t[1]], [], swrites=['vcc'])
    V(f'v_cndmask_b32 v{t[0]}, v{BIGR}, v{t[0]}, vcc', [BIGR, t[0]], [t[0]], sreads=['vcc'])
    S(f's_cmp_gt_u32 s{S_WAVE}, 2')
    a.cond_begin('s_cbranch_scc1 L_nopw', 'L_nopw')
    a.vmem(f'buffer_load_ushort v{PWT}, v{t[0]}, s[{S_WCO}:{S_WCO+3}], 0 offen', [t[0]], [PWT])
    a.cond_end()
    V(f'v_mov_b32 v{t[2]}, 0', [], [t[2]])
    a.vmem(f'buffer_load_ushort v{V_ACC}, v{t[2]}, s[{S_BO}:{S_BO+3}], 0 offen', [t[2]], [V_ACC])
    def addr_setup():
        V(f'v_and_b32 v{t[0]}, 31, v{V_LANE}', [V_LANE], [t[0]])
        V(f'v_cmp_gt_u32 vcc, 28, v{t[0]}', [t[0]], [], swrites=['vcc'])
        V(f'v_addc_co_u32 v{t[4]}, vcc, 0, v{t[0]}, vcc', [t[0]], [t[4]], sreads=['vcc'], swrites=['vcc'])
        V(f'v_cmp_eq_u32 s[{S_MT}:{S_MT+1}], 28, v{t[0]}', [t[0]], [], swrites=[S_MT, S_MT+1])
        V(f'v_cndmask_b32 v{t[4]}, v{t[4]}, 0, s[{S_MT}:{S_MT+1}]', [t[4]], [t[4]], sreads=[S_MT])
        V(f'v_lshrrev_b32 v{t[1]}, 5, v{V_LANE}', [V_LANE], [t[1]])
        V(f'v_mad_u32_u24 v{t[4]}, v{t[1]}, 26, v{t[4]}', [t[1], t[4]], [t[4]])
        V(f'v_cmp_gt_u32 vcc, 25, v{t[0]}', [t[0]], [], swrites=['vcc'])
        S(f's_or_b64 vcc, vcc, s[{S_MT}:{S_MT+1}]', sreads=['vcc', S_MT])
        V(f'v_mov_b32 v{t[5]}, 0x40000', [], [t[5]])
        V(f'v_cndmask_b32 v{t[5]}, v{t[5]}, 0, vcc', [t[5]], [t[5]])
        S(f's_movk_i32 s{S_T0}, 0x2b0'); S(f's_movk_i32 s{S_T1}, 0x170')
        V(f'v_mad_u32_u24 v{V_AADDR[0]}, v{t[4]}, s{S_T0}, v{t[5]}', [t[4], t[5]], [V_AADDR[0]])
        V(f'v_add_u32 v{V_AADDR[1]}, {U[2]}, v{V_AADDR[0]}', [V_AADDR[0]], [V_AADDR[1]])
        V(f'v_mad_u32_u24 v{V_AADDR0}, v{t[4]}, s{S_T1}, v{t[5]}', [t[4], t[5]], [V_AADDR0])
        V(f'v_add_u32 v{V_AADDR0}, {I0B}, v{V_AADDR0}', [V_AADDR0], [V_AADDR0])
    V(f'v_and_b32 v{t[0]}, 31, v{V_LANE}', [V_LANE], [t[0]])
    V(f'v_lshlrev_b32 v{t[0]}, 2, v{t[0]}', [t[0]], [t[0]])
    S(f's_mul_i32 s{S_T0}, s{S_WAVE}, 1664'); S(f's_add_u32 s{S_T0}, s{S_T0}, {X16}')
    V(f'v_add_u32 v{V_TRADDR}, s{S_T0}, v{t[0]}', [t[0]], [V_TRADDR])
    V(f'v_lshrrev_b32 v{t[4]}, 4, v{V_LANE}', [V_LANE], [t[4]])
    V(f'v_lshrrev_b32 v{t[0]}, 2, v{V_LANE}', [V_LANE], [t[0]])
    V(f'v_mul_u32_u24 v{t[0]}, 224, v{t[0]}', [t[0]], [t[0]])
    V(f'v_and_b32 v{t[5]}, 3, v{V_LANE}', [V_LANE], [t[5]])
    V(f'v_lshl_add_u32 v{t[0]}, v{t[5]}, 3, v{t[0]}', [t[5], t[0]], [t[0]])
    S(f's_lshr_b32 s{S_T0}, s{S_WAVE}, 2'); S(f's_sub_u32 s{S_T0}, 1, s{S_T0}')
    S(f's_lshl_b32 s{S_T1}, s{S_T0}, 5')
    V(f'v_add_u32 v{V_DAADDR}, s{S_T1}, v{t[0]}', [t[0]], [V_DAADDR])
    V(f'v_add_u32 v{V_DBK}, 121600, v{V_DAADDR}', [V_DAADDR], [V_DBK])
    S(f's_lshl_b32 s{S_T2}, s{S_T0L}, 5'); S(f's_add_u32 s{S_T1}, s{S_T1}, s{S_T2}'); S(f's_add_u32 s{S_T1}, s{S_T1}, {BW - 32}')
    V(f'v_lshlrev_b32 v{t[4]}, 3, v{t[4]}', [t[4]], [t[4]])
    V(f'v_add_u32 v{V_BWADDR}, s{S_T1}, v{t[4]}', [t[4]], [V_BWADDR])
    V(f'v_mov_b32 v{V_SYNC}, {SYNC}', [], [V_SYNC])
    S(f's_lshl_b32 s{S_T0}, s{S_WAVE}, 2'); S(f's_add_u32 s{S_T0}, s{S_T0}, {SYNC + 32}')
    V(f'v_mov_b32 v{V_DONEA}, s{S_T0}', [], [V_DONEA])
    a.wait_vm_all()
    S(f's_cmp_gt_u32 s{S_WAVE}, 2')
    a.cond_begin('s_cbranch_scc1 L_nopw2', 'L_nopw2')
    V(f'v_lshlrev_b32 v{PWT}, 16, v{PWT}', [PWT], [PWT])
    V(f'v_lshlrev_b32 v{t[0]}, 2, v0', [0], [t[0]])
    V(f'v_add_u32 v{t[0]}, {POOLW}, v{t[0]}', [t[0]], [t[0]])
    V(f'v_cmp_gt_u32 vcc, 0xa0, v0', [0], [], swrites=['vcc'])
    S('s_mov_b64 exec, vcc', sreads=['vcc'])
    a.ds(f'ds_write_b32 v{t[0]}, v{PWT}', [t[0], PWT])
    fullexec()
    a.cond_end()
    a.barrier()
    S(f's_cmp_ge_u32 s{S_PID}, {NP2}')
    a.cond_begin('s_cbranch_scc1 L_noflag', 'L_noflag')
    S(f's_cmp_lg_u32 s{S_WAVE}, 0')
    a.raw('s_cbranch_scc1 L_noflag', kind='branch')
    S(f's_lshl_b32 s{S_T0}, s{S_PID}, 2')
    V(f'v_mov_b32 v{t[0]}, 1', [], [t[0]]); V(f'v_mov_b32 v{t[1]}, s{S_T0}', [], [t[1]])
    S('s_mov_b64 exec, 1')
    a.vmem(f'buffer_store_dword v{t[0]}, v{t[1]}, s[{S_DBGF}:{S_DBGF+3}], 0 offen offset:128 sc1', [t[0], t[1]], [])
    fullexec()
    a.cond_end()
    S(f's_mov_b32 s{S_KN}, 0')
    stamp('setup')

    chk_n = [0]
    def rdy_fetch(off): a.ds(f'ds_read_b32 v{V_RDY}, v{V_SYNC} offset:{off}', [V_SYNC], [V_RDY])
    def rdy_check(nseq, off, fetched=False):
        if not fetched: rdy_fetch(off)
        i = chk_n[0]; chk_n[0] += 1
        V(f'v_readfirstlane_b32 s{S_T0}, v{V_RDY}', [V_RDY], [], swrites=[S_T0], readlane=True)
        S(f's_cmp_ge_u32 s{S_T0}, {nseq}', sreads=[S_T0])
        a.cond_begin(f's_cbranch_scc1 L_ok{i}', f'L_ok{i}')
        a.raw(f's_mov_b32 s{S_T1}, 0x100000', kind='salu')
        a.label(f'L_sp{i}')
        a.raw('s_sleep 1')
        a.raw(f'ds_read_b32 v{V_RDY}, v{V_SYNC} offset:{off}', kind='ds')
        a.raw(f's_sub_u32 s{S_T1}, s{S_T1}, 1', kind='salu')
        a.raw(f's_cbranch_scc1 L_ok{i}', kind='branch')
        a.raw('s_waitcnt lgkmcnt(0)', kind='wait')
        a.raw(f'v_readfirstlane_b32 s{S_T0}, v{V_RDY}', kind='valu')
        a.raw('s_nop 0', kind='nop')
        a.raw(f's_cmp_ge_u32 s{S_T0}, {nseq}', kind='salu')
        a.raw(f's_cbranch_scc0 L_sp{i}', kind='branch')
        a.cond_end()
    def cnt_check(nseq):
        i = chk_n[0]; chk_n[0] += 1
        S(f's_cmp_ge_u32 s{S_KN}, {nseq}')
        a.cond_begin(f's_cbranch_scc1 L_ok{i}', f'L_ok{i}')
        a.raw(f's_mov_b32 s{S_T1}, 0x100000', kind='salu')
        a.label(f'L_sp{i}')
        a.raw(f'ds_read_b32 v{V_RDY}, v{V_SYNC}', kind='ds')
        a.raw(f's_sub_u32 s{S_T1}, s{S_T1}, 1', kind='salu')
        a.raw(f's_cbranch_scc1 L_ok{i}', kind='branch')
        a.raw('s_waitcnt lgkmcnt(0)', kind='wait')
        a.raw(f'v_readfirstlane_b32 s{S_KN}, v{V_RDY}', kind='valu')
        a.raw('s_nop 0', kind='nop')
        a.raw(f's_cmp_ge_u32 s{S_KN}, {nseq}', kind='salu')
        a.raw(f's_cbranch_scc1 L_ok{i}', kind='branch')
        a.raw('s_sleep 1')
        a.raw(f's_branch L_sp{i}', kind='branch')
        a.cond_end()
    def release(stage):
        V(f'v_mov_b32 v{t[0]}, {stage}', [], [t[0]])
        a.ds(f'ds_write_b32 v{V_DONEA}, v{t[0]}', [V_DONEA, t[0]])

    def x0_ops():
        ops = []
        PB = PBT
        def rd():
            V(f'v_lshlrev_b32 v{V_ACC}, 16, v{V_ACC}', [V_ACC], [V_ACC])
            V(f'v_and_b32 v{t[0]}, 47, v{V_LANE}', [V_LANE], [t[0]])
            V(f'v_cmp_eq_u32 vcc, 0, v{t[0]}', [t[0]], [], swrites=['vcc'])
            V(f'v_cndmask_b32 v{V_ACC}, 0, v{V_ACC}, vcc', [V_ACC], [V_ACC], sreads=['vcc'])
        ops.append(rd)
        m = t[1]
        def c1():
            for v in range(13): V(f'v_and_b32 v{P16+v}, s{S_K7FFF}, v{PB+v}', [PB+v], [P16+v])
        ops.append(c1)
        def c2():
            V(f'v_pk_maximum3_f16 v{m}, v{P16}, v{P16+1}, v{P16+2}', R(P16, 3), [m])
            for v in range(3, 13, 2):
                V(f'v_pk_maximum3_f16 v{m}, v{m}, v{P16+v}, v{P16+v+1}', [m, P16+v, P16+v+1], [m])
            V(f'v_max_u16_sdwa v{m}, v{m}, v{m} dst_sel:DWORD dst_unused:UNUSED_PAD src0_sel:WORD_1 src1_sel:WORD_0', [m], [m], opsel=True)
            V(f'v_lshrrev_b32 v{m}, 7, v{m}', [m], [m])
            V(f'v_subrev_u32 v{m}, 21, v{m}', [m], [m])
            V(f'v_max_i32 v{m}, 0, v{m}', [m], [m])
            V(f'v_subrev_u32 v{V_EX}, 112, v{m}', [m], [V_EX])
            V(f'v_mul_u32_u24 v{m}, 0x800080, v{m}', [m], [m])
        ops.append(c2)
        ops.append(lambda: [V(f'v_pk_sub_u16 v{P16+v}, v{P16+v}, v{m} clamp', [P16+v, m], [P16+v]) for v in range(13)])
        ops.append(lambda: [V(f'v_lshlrev_b32 v{P16+v}, 3, v{P16+v}', [P16+v], [P16+v]) for v in range(13)])
        ops.append(lambda: [V(f'v_bfi_b32 v{P16+v}, s{S_K8000}, v{PB+v}, v{P16+v}', [P16+v, PB+v], [P16+v]) for v in range(13)])
        def qq():
            V(f'v_mov_b32 v{P16+13}, 0', [], [P16+13])
            V(f'v_mov_b32 v{t[2]}, 0x05040100', [], [t[2]])
            V(f'v_mov_b32 v{t[1]}, 0x07060302', [], [t[1]])
            V(f'v_cndmask_b32 v{t[2]}, v{t[2]}, v{t[1]}, s[{S_HI}:{S_HI+1}]', [t[2], t[1]], [t[2]])
            for q in range(7):
                V(f'v_perm_b32 v{XQ+q}, v{P16+2*q+1}, v{P16+2*q}, v{t[2]}', [P16+2*q+1, P16+2*q, t[2]], [XQ+q])
        ops.append(qq)
        def q2():
            V(f'v_lshlrev_b32 v{V_E}, 1, v{V_EX}', [V_EX], [V_E])
            for v in range(13): a.ds(f'ds_write_b32 v{V_TRADDR}, v{PB+v} offset:{128*v}', [V_TRADDR, PB+v])
        ops.append(q2)
        return ops

    DAB = [132, 40, 56]; DBB = [72, 76, 80]; IXR = 84; NDB = 3
    def dnn_reads(i, xt):
        da = DAB[i % NDB]; db = DBB[i % NDB]
        base = CADDR[i]
        a.ds(f'ds_read_b64 {vr(db,2)}, v{IXR+2*i}', [IXR+2*i], R(db, 2))
        a.ds(f'ds_read_b64 {vr(db+2,2)}, v{IXR+2*i+1}', [IXR+2*i+1], R(db+2, 2))
        ro = 64 if xt else 32
        hi = i < 3
        ad = V_DBK if hi else V_DAADDR; b0 = base - (121600 if hi else 0)
        if i == 11: dnn_reads.shift()
        if i >= 11: b0 -= 57344
        for q in range(3):
            a.ds(f'ds_read_b64_tr_b16 {vr(da+4*q,2)}, v{ad} offset:{b0+ro+64*q}', [ad], R(da+4*q, 2))
            a.ds(f'ds_read_b64_tr_b16 {vr(da+4*q+2,2)}, v{ad} offset:{b0+ro+64*q+3584}', [ad], R(da+4*q+2, 2))
        if xt:
            a.ds(f'ds_read_b64_tr_b16 {vr(da+12,2)}, v{ad} offset:{b0}', [ad], R(da+12, 2))
            a.ds(f'ds_read_b64_tr_b16 {vr(da+14,2)}, v{ad} offset:{b0+3584}', [ad], R(da+14, 2))
    dnn_reads.shift = lambda: V(f'v_add_u32 v{V_DAADDR}, 57344, v{V_DAADDR}', [V_DAADDR], [V_DAADDR])
    def dnn_mfma(i, xt):
        da = DAB[i % NDB]; db = DBB[i % NDB]
        for q in range(4 if xt else 3): a.mfma('v_mfma_f32_16x16x32_bf16', DACC+4*q, da+4*q, db, DACC+4*q, 4, 4)
    epi_n = [0]
    def dnn_epilogue():
        e = epi_n[0]; epi_n[0] += 1
        K1 = -2.0 * 1.4426950408889634 * 0.7978845608028654
        K2 = K1 * 0.044715
        acc = DB; W2T = [DB + 2, t[2], t[4], t[6]]
        S(f's_mov_b32 s{S_K2}, {fb(K2)}')
        V(f'v_mov_b32 v{DB+1}, {fb(K1)}', [], [DB+1])
        V(f'v_mov_b32 v{acc}, 0', [], [acc])
        offs = [64, 128, 192, 0]
        for q in range(4):
            a.ds(f'ds_read_b64 {vr(W2T[q],2)}, v{V_BWADDR} offset:{832+offs[q]}', [V_BWADDR], R(W2T[q], 2))
        def grp(qs):
            xs = [DACC + 4*q + r for q in qs for r in range(4)]
            ts = [DA + 4*q + r for q in qs for r in range(4)]
            for x, tt in zip(xs, ts): V(f'v_mul_f32 v{tt}, v{x}, v{x}', [x], [tt])
            for x, tt in zip(xs, ts): V(f'v_fma_f32 v{tt}, v{tt}, s{S_K2}, v{DB+1}', [tt, DB+1], [tt])
            for x, tt in zip(xs, ts): V(f'v_mul_f32 v{tt}, v{tt}, v{x}', [tt, x], [tt])
            for x, tt in zip(xs, ts): V(f'v_exp_f32 v{tt}, v{tt}', [tt], [tt], trans=True)
            for x, tt in zip(xs, ts): V(f'v_add_f32 v{tt}, 1.0, v{tt}', [tt], [tt])
            for x, tt in zip(xs, ts): V(f'v_rcp_f32 v{tt}, v{tt}', [tt], [tt], trans=True)
            for x, tt in zip(xs, ts): V(f'v_mul_f32 v{tt}, v{tt}, v{x}', [tt, x], [tt])
            for q in qs:
                w = W2T[q]; x0_ = DACC + 4*q
                V(f'v_lshlrev_b32 v{x0_}, 16, v{w}', [w], [x0_])
                V(f'v_and_b32 v{x0_+1}, 0xffff0000, v{w}', [w], [x0_+1])
                V(f'v_lshlrev_b32 v{x0_+2}, 16, v{w+1}', [w+1], [x0_+2])
                V(f'v_and_b32 v{x0_+3}, 0xffff0000, v{w+1}', [w+1], [x0_+3])
            for x, tt in zip(xs, ts): V(f'v_fmac_f32 v{acc}, v{tt}, v{x}', [acc, tt, x], [acc])
        grp([0, 1, 2])
        S(f's_cmp_eq_u32 s{S_XT}, 0')
        a.raw(f's_cbranch_scc1 L_dq4_{e}', kind='branch')
        grp([3])
        a.nop(2)
        a.label(f'L_dq4_{e}')
        for op in ('v_permlane16_swap_b32', 'v_permlane32_swap_b32'):
            V(f'v_mov_b32 v{DB+1}, v{acc}', [acc], [DB+1])
            V(f'{op} v{acc}, v{DB+1}', [acc, DB+1], [acc, DB+1], permlane=True)
            V(f'v_add_f32 v{acc}, v{acc}, v{DB+1}', [acc, DB+1], [acc])
        V(f'v_lshlrev_b32 v{t[0]}, 2, v{V_LANE}', [V_LANE], [t[0]])
        S(f's_lshl_b32 s{S_T0}, s{S_WAVE}, 6'); S(f's_add_u32 s{S_T0}, s{S_T0}, {PDL}')
        V(f'v_add_u32 v{t[0]}, s{S_T0}, v{t[0]}', [t[0]], [t[0]])
        V(f'v_mov_b32 v{t[1]}, 1', [], [t[1]])
        execn(16)
        a.ds(f'ds_write_b32 v{t[0]}, v{acc}', [t[0], acc])
        execn(1)
        a.ds(f'ds_add_u32 v{V_SYNC}, v{t[1]} offset:4', [V_SYNC, t[1]])
        fullexec()
        a.wait_lds_all()
    def u5_ops():
        ops = []
        def rd():
            V(f'v_add_u32 v{t[0]}, {V5F}, v{V_L16}', [V_L16], [t[0]])
            for k in range(4):
                a.ds(f'ds_read_b128 {vr(UA+4*k,4)}, v{t[0]} offset:{1024*k}', [t[0]], R(UA+4*k, 4))
            for k in range(4):
                a.ds(f'ds_read_b128 {vr(G+4*k,4)}, v{V_PWADDR} offset:{POOLW-EWT+128*4+16*k}', [V_PWADDR], R(G+4*k, 4))
        ops.append(rd)
        for k in range(4):
            def rb(k=k):
                for e in range(4 if k < 3 else 1):
                    a.ds(f'ds_read_b32 v{DB+e}, v{V_TRADDR} offset:{128*(4*k+e)}', [V_TRADDR], [DB+e])
            ops.append(rb)
            ops += [lambda: None] * 4
            if k == 3:
                def zz():
                    for r in (1, 2, 3): V(f'v_mov_b32 v{DB+r}, 0', [], [DB+r])
                ops.append(zz)
            ops.append(lambda k=k: a.mfma('v_mfma_f32_32x32x16_bf16', G, UA+4*k, DB, G, 8, 16))
            ops.append(lambda: None)
        return ops

    def boundary_ops(l):
        ops = []
        s_ = ZB[2]; mx = ZB[2]+1; my = ZB[2]+2
        W = PW if l < 4 else G
        for r in range(13):
            ops.append(lambda r=r: V(f'v_ldexp_f32 v{D+r}, v{D+r}, v{EW+r}', [D+r, EW+r], [D+r]))
        if l < 4:
            ops.append(lambda: V(f'v_max3_f32 v{mx}, |v{D}|, |v{D+1}|, |v{D+2}|', R(D, 3), [mx]))
            for r in range(3, 13, 2):
                ops.append(lambda r=r: V(f'v_max3_f32 v{mx}, |v{D+r}|, |v{D+r+1}|, v{mx}', [D+r, D+r+1, mx], [mx]))
            ops.append(lambda: V(f'v_mov_b32 v{my}, v{mx}', [mx], [my]))
        ops.append(lambda: V(f'v_mul_f32 v{s_}, v{D}, v{W}', [D, W], [s_]))
        ops.append(lambda: V(f'v_fmac_f32 v{s_}, v{D+1}, v{W+1}', [s_, D+1, W+1], [s_]))
        if l < 4:
            ops.append(lambda: V(f'v_permlane32_swap_b32 v{mx}, v{my}', [mx, my], [mx, my], permlane=True))
        ops.append(lambda: V(f'v_fmac_f32 v{s_}, v{D+2}, v{W+2}', [s_, D+2, W+2], [s_]))
        if l < 4:
            ops.append(lambda: V(f'v_max_f32 v{mx}, v{mx}, v{my}', [mx, my], [mx]))
            ops.append(lambda: V(f'v_frexp_exp_i32_f32 v{mx}, v{mx}', [mx], [mx]))
            ops.append(lambda: V(f'v_sub_u32 v{V_SH}, 8, v{mx}', [mx], [V_SH]))
        for r in range(3, 13):
            ops.append(lambda r=r: V(f'v_fmac_f32 v{s_}, v{D+r}, v{W+r}', [s_, D+r, W+r], [s_]))
        if l < 4:
            for r in range(13):
                ops.append(lambda r=r: V(f'v_ldexp_f32 v{D+r}, v{D+r}, v{V_SH}', [D+r, V_SH], [D+r]))
            for q in range(7):
                hi = D + 2*q + 1 if q < 6 else D + 12
                ops.append(lambda q=q, hi=hi: V(f'v_cvt_pk_f16_f32 v{XQ+q}, v{D+2*q}, v{hi}', [D+2*q, hi], [XQ+q]))
        ops.append(lambda: V(f'v_ldexp_f32 v{s_}, v{s_}, v{V_E}', [s_, V_E], [s_]))
        ops.append(lambda: V(f'v_add_f32 v{V_ACC}, v{V_ACC}, v{s_}', [V_ACC, s_], [V_ACC]))
        if l < 4:
            ops.append(lambda: V(f'v_sub_u32 v{V_E}, v{V_E}, v{V_SH}', [V_E, V_SH], [V_E]))
            ops.append(lambda: V(f'v_add_u32 v{V_E}, v{V_E}, v{V_EX}', [V_E, V_EX], [V_E]))
        if l == 0:
            ops.append(lambda: V(f'v_mov_b32 v{ZL+1}, 0', [], [ZL+1]))
            ops.append(lambda: V(f'v_mov_b32 v{ZL+2}, 0', [], [ZL+2]))
        return ops
    NK = [23, 43, 43, 43, 43]
    ISLOT = [None, 0, 1, 2, 3]
    def a_read(l, k):
        b = AB[k % NAB]
        if l == 0: ad = V_AADDR0; off = 16 * k
        else:
            sl = ISLOT[l]; ad = V_AADDR[sl >> 1]; off = IMG * (sl & 1) + 16 * k
        a.ds(f'ds_read_b128 {vr(b,4)}, v{ad} offset:{off}', [ad], R(b, 4))
    PAIRS0 = [(u, v) for u in range(13) for v in range(u, 13)]
    def zbuf(l, k):
        if k == NK[l] - 1: return ZL
        return ZB[k % 3]
    def z_ops(l, k):
        ops = []
        zb = zbuf(l, k)
        for e in range(4):
            q = 4 * k + e
            if l == 0:
                if q >= 91: break
                i, v = PAIRS0[q]; src = (QH if i == v else XQ) + (i >> 1)
            else:
                if q >= 169: break
                i, v = divmod(q, 13); src = XQ + (i >> 1)
            o = i & 1
            ops.append(lambda zb=zb, e=e, src=src, v=v, o=o: V(f'v_pk_mul_f16 v{zb+e}, v{src}, v{P16+v} op_sel:[{o},0] op_sel_hi:[{o},1]', [src, P16+v], [zb+e]))
        return ops
    def pwrd(l):
        for base, off in ((PW, POOLW - EWT + 128 * l), (EW, 128 * l)):
            if base == PW and l == 4: continue
            for k in range(3):
                a.ds(f'ds_read_b128 {vr(base+4*k,4)}, v{V_PWADDR} offset:{off+16*k}', [V_PWADDR], R(base+4*k, 4))
            a.ds(f'ds_read_b32 v{base+12}, v{V_PWADDR} offset:{off+48}', [V_PWADDR], [base+12])

    cnt_check(1)
    stamp('tab')
    OX = 132
    V(f'v_bfe_u32 v{t[0]}, v{V_LANE}, 4, 1', [V_LANE], [t[0]])
    V(f'v_mul_u32_u24 v{t[0]}, 104, v{t[0]}', [t[0]], [t[0]])
    V(f'v_and_b32 v{t[1]}, 12, v{V_LANE}', [V_LANE], [t[1]])
    V(f'v_add_u32 v{t[0]}, v{t[0]}, v{t[1]}', [t[0], t[1]], [t[0]])
    S(f's_mul_i32 s{S_T0}, s{S_WAVE}, 208'); S(f's_add_u32 s{S_T0}, s{S_T0}, {IDXB}')
    V(f'v_add_u32 v{t[0]}, s{S_T0}, v{t[0]}', [t[0]], [t[0]])
    V(f'v_and_b32 v{t[1]}, 15, v{V_LANE}', [V_LANE], [t[1]])
    V(f'v_mul_u32_u24 v{t[1]}, 104, v{t[1]}', [t[1]], [t[1]])
    S(f's_and_b32 s{S_T0}, s{S_WAVE}, 3'); S(f's_mul_i32 s{S_T0}, s{S_T0}, 1664'); S(f's_add_u32 s{S_T0}, s{S_T0}, {IDXB}')
    S(f's_add_u32 s{S_T2}, s{S_T0}, 104'); S(f's_lshl_b32 s{S_KO}, s{S_ROT}, 3'); S(f's_add_u32 s{S_KO}, s{S_KO}, s{S_T0}')
    for i in range(13):
        tt = t[2 + (i % 4)]
        V(f'v_add_u32 v{tt}, s{S_KO}, v{t[1]}', [t[1]], [tt])
        a.ds(f'ds_read_b64 {vr(IXR+2*i,2)}, v{tt}', [tt], R(IXR+2*i, 2))
        if i < 12:
            S(f's_add_u32 s{S_KO}, s{S_KO}, 8'); S(f's_cmp_eq_u32 s{S_KO}, s{S_T2}'); S(f's_cselect_b32 s{S_KO}, s{S_T0}, s{S_KO}')
    for q in range(7): a.ds(f'ds_read_b32 v{OX+q}, v{t[0]} offset:{16*q}', [t[0]], [OX+q])
    BT = 140
    for q, off in enumerate([64, 128, 192, 0]):
        a.ds(f'ds_read_b64 {vr(BT+2*q,2)}, v{V_BWADDR} offset:{off}', [V_BWADDR], R(BT+2*q, 2))
    V(f'v_and_b32 v{t[6]}, 3, v{V_LANE}', [V_LANE], [t[6]])
    V(f'v_lshlrev_b32 v{t[6]}, 3, v{t[6]}', [t[6]], [t[6]])
    V(f'v_add_u32 v{t[6]}, {TAB}, v{t[6]}', [t[6]], [t[6]])
    V(f'v_lshrrev_b32 v{t[7]}, 4, v{V_LANE}', [V_LANE], [t[7]])
    V(f'v_lshlrev_b32 v{t[7]}, 3, v{t[7]}', [t[7]], [t[7]])
    V(f'v_add_u32 v{t[7]}, {TAB}, v{t[7]}', [t[7]], [t[7]])
    for f in range(26):
        V(f'v_lshl_add_u32 v{IXR+f}, v{IXR+f}, 5, v{t[7]}', [IXR+f, t[7]], [IXR+f])
    for q in range(7):
        V(f'v_min_u32 v{OX+q}, 0x3e7, v{OX+q}', [OX+q], [OX+q])
        V(f'v_lshl_add_u32 v{OX+q}, v{OX+q}, 5, v{t[6]}', [OX+q, t[6]], [OX+q])
        a.ds(f'ds_read_b64_tr_b16 {vr(PBT+2*q,2)}, v{OX+q}', [OX+q], R(PBT+2*q, 2))
    for q in range(4):
        V(f'v_lshlrev_b32 v{DACC+4*q}, 16, v{BT+2*q}', [BT+2*q], [DACC+4*q])
        V(f'v_and_b32 v{DACC+4*q+1}, 0xffff0000, v{BT+2*q}', [BT+2*q], [DACC+4*q+1])
        V(f'v_lshlrev_b32 v{DACC+4*q+2}, 16, v{BT+2*q+1}', [BT+2*q+1], [DACC+4*q+2])
        V(f'v_and_b32 v{DACC+4*q+3}, 0xffff0000, v{BT+2*q+1}', [BT+2*q+1], [DACC+4*q+3])
    stamp('x0')
    a.wait_lds_all()
    import copy
    def dnn_loop(xt):
        x0o = x0_ops()
        CHK = {0: 3, 2: 5, 4: 7, 6: 9, 8: 11, 10: 13, 12: 14}
        def rd(i):
            if i in CHK: cnt_check(CHK[i])
            dnn_reads(i, xt)
        if xt:
            V(f'v_subrev_u32 v{V_DAADDR}, 32, v{V_DAADDR}', [V_DAADDR], [V_DAADDR])
            V(f'v_subrev_u32 v{V_DBK}, 32, v{V_DBK}', [V_DBK], [V_DBK])
        rd(0); rd(1)
        for i in range(13):
            a.comment(f'======== DNN step {i} xt={xt}')
            if debug == 2:
                a.raw(f's_memtime s[{4+2*(i%7)}:{5+2*(i%7)}]')
                a.lds.append(dict(dst=set(), maybe=True, id=-100-i))
                if i in (6, 12):
                    a.wait_lds_all()
                    for j in range(7 if i == 6 else 6): a.valu(f'v_writelane_b32 v{V_STAMP}, s{4+2*j}, {13 + j + (0 if i == 6 else 7)}', [], [V_STAMP])
            if i + 2 < 13: rd(i + 2)
            if i < len(x0o): x0o[i]()
            dnn_mfma(i, xt)
            if i in (2, 7, 12): release({2: 1, 7: 2, 12: 3}[i])
        a.wait_lds_all(); a.nop(8)
    S(f's_cmp_eq_u32 s{S_XT}, 0')
    a.raw('s_cbranch_scc1 L_dnn0', kind='branch')
    dnn_loop(1)
    a.raw('s_branch L_dnnend', kind='branch')
    a.label('L_dnn0')
    dnn_loop(0)
    a.label('L_dnnend')
    for q in range(7):
        V(f'v_pk_mul_f16 v{QH+q}, v{XQ+q}, s{S_HALF}', [XQ+q], [QH+q])
    addr_setup()
    V(f'v_lshrrev_b32 v{t[1]}, 5, v{V_LANE}', [V_LANE], [t[1]])
    V(f'v_lshlrev_b32 v{t[1]}, 6, v{t[1]}', [t[1]], [t[1]])
    V(f'v_add_u32 v{V_PWADDR}, {EWT}, v{t[1]}', [t[1]], [V_PWADDR])
    V(f'v_mov_b32 v{ZL+3}, 0', [], [ZL+3])
    stamp('dnn')
    if REP:
        a.wait_lds_all(); a.raw('s_memtime s[96:97]'); a.raw('s_memrealtime s[98:99]'); a.raw('s_waitcnt lgkmcnt(0)', kind='wait')
    if SPLITEPI:
        S(f's_cmp_ge_u32 s{S_WAVE}, 4')
        a.wait_lds_all(); a.nop(8)
        a.cond_begin('s_cbranch_scc1 L_noepiB', 'L_noepiB')
        dnn_epilogue()
        a.nop(2)
        a.cond_end()
    else: dnn_epilogue()
    for l in range(NL):
        a.comment(f'======== layer {l}')
        stamp(f'L{l}')
        rdy_check(l + 1, 8)
        for k in range(PFD): a_read(l, k)
        if l == 4:
            rdy_check(6, 8)
            u5 = u5_ops(); u5[0]()
            fq = u5[1:]
        else: fq = []
        for o in z_ops(l, 0): o()
        for o in z_ops(l, 1): o()
        if PRIO: a.raw('s_setprio 1')
        for k in range(NK[l]):
            if k == NK[l] - 8: pwrd(l)
            zo = z_ops(l, k + 2) if k + 2 < NK[l] else []
            if k % 2 == 0 and k + 1 < NK[l]: a._wait_regs(R(AB[(k + 1) % NAB], 4))
            a.mfma('v_mfma_f32_32x32x16_f16', D, AB[k % NAB], zbuf(l, k), D if k > 0 else None, 8, 16)
            if k + PFD < NK[l]: a_read(l, k + PFD)
            for o in zo: o()
            if PRIO and k == 2: a.raw('s_setprio 2')
            if fq and k >= 4: fq.pop(0)()
        assert not fq
        if l == 0: release(4)
        if l < 4:
            if PRIO: a.raw('s_setprio 0')
            for o in boundary_ops(l): o()
        if l == 0 and SPLITEPI:
            S(f's_cmp_lt_u32 s{S_WAVE}, 4')
            a.wait_lds_all()
            a.cond_begin('s_cbranch_scc1 L_noepiA', 'L_noepiA')
            dnn_epilogue()
            a.nop(2)
            a.cond_end()
    if XP == 'idle':
        for _ in range(3): a.raw('s_sleep 16')
    if XP == 'idle6':
        for _ in range(6): a.raw('s_sleep 16')
    if XP in ('mz', 'mr'):
        a.wait_lds_all(); a.nop(16)
        if XP == 'mz':
            for r in range(72, 88): V(f'v_mov_b32 v{r}, 0', [], [r])
        for k in range(47):
            a.mfma('v_mfma_f32_32x32x16_f16', 132, 72 + 4*(k % 4), 16 + 4*(k % 3) if XP == 'mr' else 72, 132 if k else None, 8, 16)
    if XP == 'valu':
        for k in range(376): V(f'v_pk_mul_f16 v{72 + k % 8}, v{16 + k % 13}, v{32 + k % 7}', [16 + k % 13, 32 + k % 7], [72 + k % 8])
    stamp('fin')
    rdy_check(7, 8)
    V(f'v_bfe_u32 v{t[5]}, v{V_LANE}, 4, 1', [V_LANE], [t[5]])
    V(f'v_and_b32 v{t[6]}, 15, v{V_LANE}', [V_LANE], [t[6]])
    V(f'v_lshl_add_u32 v{t[5]}, v{t[6]}, 4, v{t[5]}', [t[5], t[6]], [t[5]])
    V(f'v_lshlrev_b32 v{t[5]}, 2, v{t[5]}', [t[5]], [t[5]])
    S(f's_lshl_b32 s{S_T0}, s{S_WAVE}, 3'); S(f's_add_u32 s{S_T0}, s{S_T0}, {PD}')
    V(f'v_add_u32 v{t[5]}, s{S_T0}, v{t[5]}', [t[5]], [t[5]])
    V(f'v_and_b32 v{t[6]}, 40, v{V_LANE}', [V_LANE], [t[6]])
    V(f'v_cmp_eq_u32 vcc, 0, v{t[6]}', [t[6]], [], swrites=['vcc'])
    V(f'v_mov_b32 v{t[6]}, 0x30000', [], [t[6]])
    V(f'v_cndmask_b32 v{t[5]}, v{t[6]}, v{t[5]}, vcc', [t[5], t[6]], [t[5]], sreads=['vcc'])
    a.ds(f'ds_read_b32 v{t[6]}, v{t[5]}', [t[5]], [t[6]])
    if NL == 5:
        for o in boundary_ops(4): o()
    A_ = V_ACC
    V(f'v_add_f32 v{A_}, v{A_}, v{t[6]}', [A_, t[6]], [A_])
    for d in (8, 4, 2, 1):
        V(f'v_add_f32_dpp v{A_}, v{A_}, v{A_} row_ror:{d} row_mask:0xf bank_mask:0xf', [A_], [A_], dpp=True)
    V(f'v_mov_b32 v{t[5]}, v{A_}', [A_], [t[5]])
    V(f'v_permlane32_swap_b32 v{A_}, v{t[5]}', [A_, t[5]], [A_, t[5]], permlane=True)
    V(f'v_add_f32 v{A_}, v{A_}, v{t[5]}', [A_, t[5]], [A_])
    V(f'v_cvt_pk_bf16_f32 v{A_}, v{A_}, v{A_}', [A_], [A_])
    V(f'v_lshrrev_b32 v{t[5]}, 3, v{V_LANE}', [V_LANE], [t[5]])
    S(f's_lshl_b32 s{S_T0}, s2, 5'); S(f's_lshl_b32 s{S_T1}, s{S_WAVE}, 2'); S(f's_add_u32 s{S_T0}, s{S_T0}, s{S_T1}')
    S('s_mov_b64 exec, 0x10001')
    a.vmem(f'buffer_store_short v{A_}, v{t[5]}, s[{S_OUT}:{S_OUT+3}], s{S_T0} offen', [A_, t[5]], [])
    if REP:
        a.raw('s_memtime s[100:101]'); a.raw('s_memrealtime s[4:5]'); a.raw('s_waitcnt lgkmcnt(0)', kind='wait')
        S(f's_cmp_lg_u32 s{S_WAVE}, 4'); a.raw('s_cbranch_scc1 L_norep', kind='branch')
        S('s_and_b32 s6, s2, 0xfc'); S('s_cmp_lg_u32 s6, 100'); a.raw('s_cbranch_scc1 L_norep', kind='branch')
        S('s_sub_u32 s96, s96, s92'); S('s_sub_u32 s98, s98, s94'); S('s_sub_u32 s100, s100, s92'); S('s_sub_u32 s4, s4, s94')
        V('v_mov_b32 v16, s96', [], [16]); V('v_mov_b32 v17, s98', [], [17]); V('v_mov_b32 v18, s100', [], [18]); V('v_mov_b32 v19, s4', [], [19])
        S('s_and_b32 s6, s2, 3'); S('s_lshl_b32 s6, s6, 4'); V('v_mov_b32 v20, s6', [], [20])
        S('s_mov_b64 exec, 1')
        a.vmem(f'buffer_store_dwordx4 v[16:19], v20, s[{S_DBGF}:{S_DBGF+3}], 0 offen', [16,17,18,19,20], [])
        a.label('L_norep')
    dbg_out()
    a.raw('s_endpgm')

    a.label('L_loader')
    a.lds = []; a.vm = []; a.valu_w = {}; a.mfma_w = {}; a.mfma_c = {}; a.trans_w = {}; a.store_src = {}; a.opsel_w = {}
    stamp_n[0] = 1
    names_c = a.stamp_names; a.stamp_names = []
    LF = 18; LFA = 19; LSY = 20; LDA = 21; LDV = 22; LT = 23; WO = 32; PF = 40; LN = 24; LG = 64
    if TOUCH:
        V(f'v_mov_b32 v{t[0]}, 0', [], [t[0]])
        S('s_mov_b64 exec, 1')
        S(f's_mov_b32 s{S_T0}, {WS_INB - 256}')
        a.vmem(f'buffer_load_dword v{PF}, v{t[0]}, s[{S_WS}:{S_WS+3}], s{S_T0} offen', [t[0]], [PF])
        a.vmem(f'buffer_load_dword v{PF+1}, v{t[0]}, s[{S_DBGF}:{S_DBGF+3}], 0 offen sc1', [t[0]], [PF+1])
        a.vmem(f'buffer_load_dword v{PF+2}, v{t[0]}, s[{S_OUT}:{S_OUT+3}], 0 offen', [t[0]], [PF+2])
        a.vmem(f'buffer_load_dword v{PF+3}, v{t[0]}, s[{S_W1}:{S_W1+3}], 0 offen', [t[0]], [PF+3])
        a.vmem(f'buffer_load_dword v{PF+4}, v{t[0]}, s[{S_TAB}:{S_TAB+3}], 0 offen', [t[0]], [PF+4])
        a.vmem(f'buffer_load_dword v{PF+5}, v{t[0]}, s[{S_B1}:{S_B1+3}], 0 offen', [t[0]], [PF+5])
        a.vmem(f'buffer_load_dword v{PF+6}, v{t[0]}, s[{S_W2}:{S_W2+3}], 0 offen', [t[0]], [PF+6])
        fullexec()
    S(f's_movk_i32 s{S_T0}, 4682')
    for k in range(7):
        V(f'v_add_u32 v{t[0]}, {64*k}, v{V_LANE}', [V_LANE], [t[0]])
        V(f'v_mul_u32_u24 v{t[1]}, s{S_T0}, v{t[0]}', [t[0]], [t[1]])
        V(f'v_lshrrev_b32 v{t[1]}, 16, v{t[1]}', [t[1]], [t[1]])
        V(f'v_mul_u32_u24 v{t[2]}, {832 - 224}, v{t[1]}', [t[1]], [t[2]])
        V(f'v_lshl_add_u32 v{WO+k}, v{t[0]}, 4, v{t[2]}', [t[0], t[2]], [WO+k])
    V(f'v_lshlrev_b32 v{LFA}, 2, v{V_LANE}', [V_LANE], [LFA])
    V(f'v_mov_b32 v{LSY}, {SYNC}', [], [LSY])
    V(f'v_add_u32 v{LDA}, {SYNC}, v{LFA}', [LFA], [LDA])
    V(f'v_mov_b32 v{LT}, 0', [], [LT])
    execn(16)
    a.ds(f'ds_write_b32 v{LDA}, v{LT}', [LDA, LT])
    fullexec()
    V(f'v_and_b32 v{LDA}, 28, v{LFA}', [LFA], [LDA])
    V(f'v_add_u32 v{LDA}, {SYNC + 32}, v{LDA}', [LDA], [LDA])
    S(f's_mul_i32 s{S_KO}, s{S_ROT}, 26624'); S(f's_lshl_b32 s{S_T0}, s{S_T0L}, 5'); S(f's_add_u32 s{S_KO}, s{S_KO}, s{S_T0}')
    S(f's_add_u32 s{S_T3}, s{S_T0}, {13*26624}')
    def l_w1(i):
        for k in range(7):
            S(f's_mov_b32 m0, {CADDR[i] + 1024*k}', m0=True)
            a.vmem(f'buffer_load_dwordx4 v{WO+k}, s[{S_W1}:{S_W1+3}], s{S_KO} offen lds', [WO+k], [], tag=('c', i), dma=True)
        S(f's_add_u32 s{S_KO}, s{S_KO}, 26624'); S(f's_cmp_eq_u32 s{S_KO}, s{S_T3}'); S(f's_cselect_b32 s{S_T1}, {13*26624}, 0'); S(f's_sub_u32 s{S_KO}, s{S_KO}, s{S_T1}')
    def l_lin(tag, srd, src, dst, nbytes, sc=''):
        n = (nbytes + 1023) // 1024
        for pc in range(n):
            if pc % 4 == 0:
                S(f's_mov_b32 m0, {dst + 1024*pc}', m0=True)
                S(f's_mov_b32 s{S_T2}, {src + 1024*pc}')
            lanes = min(64, (nbytes - 1024*pc) // 16)
            if lanes < 64: execn(lanes)
            a.vmem(f'buffer_load_dwordx4 v{V_L16}, s[{srd}:{srd+3}], s{S_T2} offen offset:{1024*(pc%4)} {sc} lds', [V_L16], [], tag=tag, dma=True)
            if lanes < 64: fullexec()
    def publish(n, off):
        a.raw(f'v_mov_b32 v{LT}, {n}', kind='valu')
        a.raw(f'ds_write_b32 v{LSY}, v{LT} offset:{off}', kind='ds')
    def l_flag(lo, hi):
        mk = ((1 << hi) - 1) & ~((1 << lo) - 1)
        S(f's_mov_b64 exec, 0x{mk:x}')
        a.vmem(f'buffer_load_dword v{LF}, v{LFA}, s[{S_DBGF}:{S_DBGF+3}], 0 offen offset:128 sc1', [LFA], [LF])
        fullexec()
    def l_poll(lo, hi, lab, pre=None):
        mk = ((1 << hi) - 1) & ~((1 << lo) - 1)
        a._wait_regs([LF])
        S(f's_mov_b64 exec, 0x{mk:x}')
        S(f's_mov_b32 s{S_T0}, 0')
        a.label(f'L_poll{lab}')
        a.raw(f'v_cmp_ne_u32 vcc, 1, v{LF}', kind='valu')
        a.raw(f's_cbranch_vccz L_polldone{lab}', kind='branch')
        a.raw(f's_sleep {PSLEEP}')
        a.raw(f'buffer_load_dword v{LF}, v{LFA}, s[{S_DBGF}:{S_DBGF+3}], 0 offen offset:128 sc1', kind='vmem')
        S(f's_add_u32 s{S_T0}, s{S_T0}, 1')
        S(f's_cmp_lt_u32 s{S_T0}, 0x40000')
        a.raw('s_waitcnt vmcnt(0)', kind='wait')
        if pre: publish(pre, 0)
        a.raw(f's_cbranch_scc1 L_poll{lab}', kind='branch')
        a.label(f'L_polldone{lab}')
        fullexec()
    def l_wait_lds(addr, off, stage, lab):
        a.raw(f's_mov_b32 s{S_T1}, 0x100000', kind='salu')
        a.label(f'L_dw{lab}')
        a.raw(f'ds_read_b32 v{LDV}, v{addr} offset:{off}', kind='ds')
        a.raw(f's_sub_u32 s{S_T1}, s{S_T1}, 1', kind='salu')
        a.raw(f's_cbranch_scc1 L_dn{lab}', kind='branch')
        a.raw('s_waitcnt lgkmcnt(0)', kind='wait')
        a.raw(f'v_cmp_gt_u32 vcc, {stage}, v{LDV}', kind='valu')
        a.raw(f's_cbranch_vccz L_dn{lab}', kind='branch')
        a.raw('s_sleep 1')
        a.raw(f's_branch L_dw{lab}', kind='branch')
        a.label(f'L_dn{lab}')
    for aa in range(4):
        S(f's_add_u32 s{S_T0}, s{S_Q}, {aa}'); S(f's_and_b32 s{S_T0}, s{S_T0}, 3'); S(f's_lshl_b32 s{S_T0}, s{S_T0}, 3'); S(f's_or_b32 s{S_T0}, s{S_T0}, s{S_CB}')
        S(f's_mul_i32 s{S_T0}, s{S_T0}, 1664')
        S(f's_mov_b32 m0, {IDXB + 1664*aa}', m0=True)
        a.vmem(f'buffer_load_dwordx4 v{V_L16}, s[{S_IDX}:{S_IDX+3}], s{S_T0} offen lds', [V_L16], [], tag='tab', dma=True)
        execn(40)
        a.vmem(f'buffer_load_dwordx4 v{V_L16}, s[{S_IDX}:{S_IDX+3}], s{S_T0} offen offset:1024 lds', [V_L16], [], tag='tab', dma=True)
        fullexec()
    a.raw('s_waitcnt lgkmcnt(0)', kind='wait')
    l_lin('tab', S_TAB, 0, TAB, 32000)
    l_lin('tab', S_B1, 0, BW, 832); l_lin('tab', S_W2, 0, BW + 832, 832)
    for i in range(13):
        l_w1(i)
        if i == 2: a.wait_vm_tag('tab'); publish(1, 0)
        if i == 0 or i == LBAR:
            S(f's_cmp_{"lt" if i == 0 else "ge"}_u32 s{S_PID}, {NP2}')
            a.raw(f's_cbranch_scc1 L_lb{i}', kind='branch')
            rawbar()
            a.label(f'L_lb{i}')
        if i >= 5 and i % 2 == 1:
            a.wait_vm_tag(('c', i - 4)); publish(i - 2, 0)
    l_flag(0, NP1)
    stamp('w1iss')
    for i in (9, 11, 12):
        a.wait_vm_tag(('c', i)); publish(i + 2, 0)
    l_poll(0, NP1, 'a'); stamp('polled')
    l_wait_lds(LDA, 0, 1, 'a')
    l_lin(('i', 0), S_WS, WS_IMG0, I0B, IMG0, 'sc1')
    l_lin(('i', 0), S_WS, WS_EWT, EWT, 640, 'sc1')
    V(f'v_mov_b32 v{t[0]}, {WS_EWT + (32+15)*4}', [], [t[0]])
    a.vmem(f'buffer_load_dword v{LN}, v{t[0]}, s[{S_WS}:{S_WS+3}], 0 offen sc1', [t[0]], [LN])
    S(f's_lshr_b32 s{S_T0}, s2, 3'); S(f's_mul_i32 s{S_T0}, s{S_T0}, 4480'); S(f's_add_u32 s{S_T0}, s{S_T0}, {WS_IMG[1]}')
    for q in range(5):
        if q == 4: S(f's_add_u32 s{S_T0}, s{S_T0}, 4096'); execn(24)
        a.vmem(f'buffer_load_dwordx4 {vr(PF+4*q,4)}, v{V_L16}, s[{S_WS}:{S_WS+3}], s{S_T0} offen offset:{1024*(q%4)} sc1', [V_L16], R(PF+4*q, 4))
    fullexec()
    a.wait_vm_tag(('i', 0)); publish(1, 8)
    l_wait_lds(LDA, 0, 2, 'b')
    l_lin(('i', 1), S_WS, WS_IMG[1], U[0], IMG, 'sc1')
    l_wait_lds(LDA, 0, 3, 'c'); stamp('dnndone')
    l_lin(('i', 2), S_WS, WS_IMG[2], U[1], IMG, 'sc1')
    a.wait_vm_tag(('i', 1)); publish(2, 8); stamp('i1')
    l_lin(('i', 3), S_WS, WS_IMG[3], U[2], IMG, 'sc1')
    a.wait_vm_tag(('i', 2)); publish(3, 8)
    l_flag(NP1, NP2)
    l_wait_lds(LSY, 4, 8, 'd')
    V(f'v_lshlrev_b32 v{t[0]}, 3, v{V_LANE}', [V_LANE], [t[0]])
    V(f'v_add_u32 v{t[0]}, {PDL}, v{t[0]}', [t[0]], [t[0]])
    a.ds(f'ds_read_b64 {vr(LG+4,2)}, v{t[0]}', [t[0]], R(LG+4, 2))
    V(f'v_bfe_u32 v{t[1]}, v{V_LANE}, 3, 2', [V_LANE], [t[1]])
    V(f'v_add_u32 v{t[1]}, s{S_Q}, v{t[1]}', [t[1]], [t[1]])
    V(f'v_and_b32 v{t[1]}, 3, v{t[1]}', [t[1]], [t[1]])
    V(f'v_lshlrev_b32 v{t[1]}, 13, v{t[1]}', [t[1]], [t[1]])
    V(f'v_lshrrev_b32 v{t[2]}, 5, v{V_LANE}', [V_LANE], [t[2]])
    V(f'v_lshl_add_u32 v{t[1]}, v{t[2]}, 7, v{t[1]}', [t[2], t[1]], [t[1]])
    V(f'v_and_b32 v{t[2]}, 7, v{V_LANE}', [V_LANE], [t[2]])
    V(f'v_lshl_add_u32 v{t[1]}, v{t[2]}, 4, v{t[1]}', [t[2], t[1]], [t[1]])
    S(f's_lshl_b32 s{S_T0}, s{S_CB}, 10'); S(f's_lshl_b32 s{S_T1}, s{S_Q}, 8'); S(f's_add_u32 s{S_T0}, s{S_T0}, s{S_T1}'); S(f's_add_u32 s{S_T0}, s{S_T0}, {WS_INB}')
    V(f'v_mov_b32 v{LG}, v{LG+4}', [LG+4], [LG]); V(f'v_mov_b32 v{LG+1}, v{LN}', [LN], [LG+1])
    V(f'v_mov_b32 v{LG+2}, v{LG+5}', [LG+5], [LG+2]); V(f'v_mov_b32 v{LG+3}, v{LN}', [LN], [LG+3])
    a.vmem(f'buffer_store_dwordx4 {vr(LG,4)}, v{t[1]}, s[{S_WS}:{S_WS+3}], s{S_T0} offen sc1', [t[1]] + R(LG, 4), [], wide_store=R(LG, 4))
    a.wait_vm_tag(('i', 3)); publish(4, 8)
    l_wait_lds(LDA, 0, 4, 'e')
    l_lin(('i', 4), S_WS, WS_IMG[4], U[3], IMG, 'sc1')
    l_poll(NP1, NP2, 'b')
    l_lin('v5f', S_WS, WS_V5F, V5F, 4096, 'sc1')
    a.wait_vm_tag(('i', 4)); publish(5, 8)
    a.wait_vm_all(); publish(6, 8); stamp('i5')
    S(f's_lshl_b32 s{S_T2}, s2, 10'); S(f's_add_u32 s{S_T2}, s{S_T2}, {WS_INB}')
    S(f's_mov_b32 s{S_T0}, 0')
    a.label('L_inb')
    a.raw(f'buffer_load_dwordx4 {vr(LG+8,4)}, v{V_L16}, s[{S_WS}:{S_WS+3}], s{S_T2} offen sc1', kind='vmem')
    S(f's_add_u32 s{S_T0}, s{S_T0}, 1')
    a.raw('s_waitcnt vmcnt(0)', kind='wait')
    a.raw(f'v_cmp_ne_u32 vcc, v{LN}, v{LG+9}', kind='valu')
    a.raw(f'v_cmp_ne_u32 s[{S_MT}:{S_MT+1}], v{LN}, v{LG+11}', kind='valu')
    a.raw('s_nop 1', kind='nop')
    a.raw(f's_or_b64 vcc, vcc, s[{S_MT}:{S_MT+1}]', kind='salu')
    a.raw('s_cbranch_vccz L_inbok', kind='branch')
    a.raw(f's_sleep {PSLEEP}')
    S(f's_cmp_lt_u32 s{S_T0}, 0x40000')
    a.raw('s_cbranch_scc1 L_inb', kind='branch')
    a.label('L_inbok')
    V(f'v_mov_b32 v{LG+9}, v{LG+10}', [LG+10], [LG+9])
    V(f'v_lshlrev_b32 v{t[0]}, 3, v{V_LANE}', [V_LANE], [t[0]])
    V(f'v_add_u32 v{t[0]}, {PD}, v{t[0]}', [t[0]], [t[0]])
    a.ds(f'ds_write_b64 v{t[0]}, {vr(LG+8,2)}', [t[0], LG+8, LG+9])
    publish(7, 8)
    dbg_out()
    a.label('L_end')
    a.raw('s_endpgm')
    a.stamp_names = (names_c, a.stamp_names)
    return a

HEADER = open('cdna_kernels/' + NAME + '.s.ref').read().split('; Override launch geometry')[0]
def wrap(a):
    s = HEADER
    s += f'; @launch grid=(256,1,1) block=(576,1,1) lds={LDS_TOTAL}\n'
    s += '.amdgcn_target "amdgcn-amd-amdhsa--gfx950"\n.text\n'
    s += f'.globl {NAME}_kernel\n.p2align 8\n.type {NAME}_kernel,@function\n{NAME}_kernel:\n'
    s += a.text()
    s += f'''.section .rodata,"a"
.p2align 6
.amdhsa_kernel {NAME}_kernel
  .amdhsa_next_free_vgpr {NV}
  .amdhsa_next_free_sgpr 102
  .amdhsa_accum_offset {NV}
  .amdhsa_group_segment_fixed_size 0
  .amdhsa_kernarg_size 88
  .amdhsa_user_sgpr_count 2
  .amdhsa_user_sgpr_kernarg_segment_ptr 1
  .amdhsa_system_sgpr_workgroup_id_x 1
  .amdhsa_float_denorm_mode_32 3
.end_amdhsa_kernel
'''
    return s

if __name__ == '__main__':
    import argparse
    ap = argparse.ArgumentParser()
    ap.add_argument('out', nargs='?', default='cdna_kernels/' + NAME + '.s')
    ap.add_argument('--dbg', type=int, default=0)
    ap.add_argument('--prio', type=int, default=1)
    ap.add_argument('--splitepi', type=int, default=1)
    args = ap.parse_args()
    a = gen(debug=args.dbg, PRIO=args.prio, SPLITEPI=args.splitepi)
    open(args.out, 'w').write(wrap(a))
    print(a.count, 'lines', len(a.lines), a.stamp_names)
```

```python
import sys, struct
sys.path.insert(0, 'gen')
from asmfw import *

NAME = 'standalone__deep_cross_xdeepfm__recsys'
IMG = 35776; IMG0 = 19136
U = [IMG * i for i in range(4)]
CH = 7168
CADDR = [121600 + CH * i for i in range(3)] + [CH * i for i in range(10)]
TAB = 71680; IDXB = 103680; SCR = 110336
I0B = 143104 - IMG0
X16 = 143104
V5F = 156672; EWT = 160768; POOLW = 161408; BW = 162048
PDL = V5F
PD = BW
SYNC = 163712
LDS_TOTAL = 163776
WS_IMG0 = 0
WS_IMG = [None] + [19200 + IMG * i for i in range(4)]
WS_V5F = 19200 + 4 * IMG
WS_EWT = WS_V5F + 4096
WS_INB = 0x40000
WS_SIZE = WS_INB + 256 * 1024
NP1 = 17; NP2 = 21
S_IDX, S_TAB, S_WC, S_WCO, S_W1, S_B1, S_W2, S_BO, S_OUT, S_DBGF, S_WS = [24 + 4 * i for i in range(11)]
S_WAVE = 68; S_T0 = 69; S_T1 = 70; S_T2 = 71; S_T3 = 72; S_T4 = 73
S_HI = 74; S_C = 76; S_K7FFF = 77; S_K8000 = 78; S_Q = 79; S_K2 = 80; S_G = 81; S_HALF = 82
S_ROT = 83; S_MT = 84; S_PID = 86; S_CB = 87; S_XT = 88; S_T0L = 89; S_KO = 90; S_KN = 91
SM = [4, 6, 8, 10, 12, 14, 16]
V_LANE = 1
V_T = list(range(2, 12))
V_STAMP = 12; V_E = 13; V_EX = 14; V_ACC = 15
P16 = 16; V_SH = 30; V_L16 = 31
XQ = 32; V_TRADDR = 39; D = 40
ZB = [56, 60, 64]; ZL = 68
AB = [72, 76, 80, 84, 4, 8]; NAB = 6; PFD = 5
PW = 88; EW = 102
V_PWADDR = 101; V_DBADDR = 115
DACC = 116; DA = 132; DB = 148
QH = 152
V_AADDR = [159, 160]; V_AADDR0 = 161; V_DAADDR = 162; V_DBK = 163; V_BWADDR = 164; V_SYNC = 165; V_RDY = 166; V_DONEA = 167
G = DACC; UA = DA
PBT = 148
DA2 = 88; DB2 = 104
NV = 168

import os
PX = int(os.environ.get('PX', '0'))
NL = int(os.environ.get('NL', '5'))
REP = int(os.environ.get('REP', '0'))
PSLEEP = int(os.environ.get('PSLEEP', '12'))
TOUCH = int(os.environ.get('TOUCH', '1'))
XP = os.environ.get('XP', '')
KNOP = int(os.environ.get('KNOP', '0'))
LBAR = int(os.environ.get('LBAR', '7'))
def fb(x): return '0x%08x' % struct.unpack('<I', struct.pack('<f', x))[0]

def gen(debug=None, PRIO=1, SPLITEPI=1, LPRE=24):
    a = Asm()
    V = a.valu; S = a.salu
    t = V_T
    stamp_n = [0]
    a.stamp_names = []
    def stamp(name=''):
        if not debug: return
        a.wait_lds_all()
        a.raw('s_memtime s[98:99]')
        a.raw('s_waitcnt lgkmcnt(0)', kind='wait')
        a.valu(f'v_writelane_b32 v{V_STAMP}, s98, {stamp_n[0]}', [], [V_STAMP])
        a.stamp_names.append(name)
        stamp_n[0] += 1
    def execn(n):
        if n <= 32: S(f's_mov_b64 exec, 0x{(1<<n)-1:x}')
        else: S(f's_mov_b32 exec_hi, 0x{(1<<(n-32))-1:x}')
    def fullexec(): S('s_mov_b64 exec, -1')
    def rawbar(): a.raw('s_barrier', kind='barrier')
    def dbg_out():
        if not debug: return
        fullexec()
        stamp('end')
        a.valu(f'v_writelane_b32 v{V_STAMP}, s100, 62', [], [V_STAMP])
        a.raw('s_memrealtime s[98:99]')
        a.raw('s_waitcnt lgkmcnt(0)', kind='wait')
        a.valu(f'v_writelane_b32 v{V_STAMP}, s98, 63', [], [V_STAMP])
        V(f'v_lshlrev_b32 v{t[0]}, 2, v0', [0], [t[0]])
        S(f's_mul_i32 s{S_T0}, s2, 2304'); S(f's_add_u32 s{S_T0}, s{S_T0}, 0x100000')
        a.vmem(f'buffer_store_dword v{V_STAMP}, v{t[0]}, s[{S_WS}:{S_WS+3}], s{S_T0} offen', [V_STAMP, t[0]], [])
    S('s_cmp_ge_u32 s2, 256')
    a.raw('s_cbranch_scc1 L_end', kind='branch')
    if debug:
        a.raw('s_memrealtime s[100:101]')
        stamp('start')
    if REP:
        a.raw('s_memtime s[92:93]'); a.raw('s_memrealtime s[94:95]')
    a.raw('s_load_dwordx16 s[4:19], s[0:1], 0')
    a.raw('s_load_dwordx4 s[20:23], s[0:1], 64')
    a.raw(f's_load_dwordx2 s[{S_WS}:{S_WS+1}], s[0:1], 80')
    V(f'v_and_b32 v{V_LANE}, 63, v0', [0], [V_LANE])
    V(f'v_lshrrev_b32 v{t[0]}, 6, v0', [0], [t[0]])
    V(f'v_readfirstlane_b32 s{S_WAVE}, v{t[0]}', [t[0]], [], swrites=[S_WAVE], readlane=True)
    S(f's_mov_b32 s{S_K7FFF}, 0x7fff7fff'); S(f's_mov_b32 s{S_K8000}, 0x80008000'); S(f's_mov_b32 s{S_HALF}, 0x38003800')
    S(f's_mov_b32 s{S_HI}, 0'); S(f's_mov_b32 s{S_HI+1}, -1')
    V(f'v_lshlrev_b32 v{V_L16}, 4, v{V_LANE}', [V_LANE], [V_L16])
    S(f's_lshr_b32 s{S_T0}, s2, 3'); S(f's_and_b32 s{S_Q}, s{S_T0}, 3'); S(f's_lshr_b32 s{S_T1}, s{S_T0}, 2')
    S(f's_lshr_b32 s{S_ROT}, s{S_T1}, 1'); S(f's_add_u32 s{S_ROT}, s{S_ROT}, s{S_T1}')
    S(f's_andn2_b32 s{S_CB}, s2, 0x18')
    if PX < 8:
        S(f's_and_b32 s{S_T1}, s2, 7'); S(f's_cmp_eq_u32 s{S_T1}, {PX}'); S(f's_cselect_b32 s{S_PID}, s{S_T0}, 255')
    else: S(f's_mov_b32 s{S_PID}, s2')
    S(f's_lshl_b32 s{S_G}, s{S_PID}, 3'); S(f's_add_u32 s{S_G}, s{S_G}, s{S_WAVE}', sreads=[S_WAVE])
    S(f's_min_u32 s{S_T0L}, s{S_Q}, 1'); S(f's_mul_i32 s{S_T1}, s{S_Q}, 6'); S(f's_add_u32 s{S_T0L}, s{S_T0L}, s{S_T1}')
    S(f's_cmp_lt_u32 s{S_WAVE}, 4'); S(f's_cselect_b32 s{S_XT}, 1, 0'); S(f's_cmp_lt_u32 s{S_Q}, 2'); S(f's_cselect_b32 s{S_XT}, s{S_XT}, 0')
    a.raw('s_waitcnt lgkmcnt(0)', kind='wait')
    sizes = [425984, 32000, 210912, 312, 346112, 832, 832, 2, 8192, 256]
    srds = [S_IDX, S_TAB, S_WC, S_WCO, S_W1, S_B1, S_W2, S_BO, S_OUT, S_DBGF]
    for i in range(10):
        sb, sz = srds[i], sizes[i]
        S(f's_mov_b32 s{sb}, s{4+2*i}'); S(f's_and_b32 s{sb+1}, s{5+2*i}, 0xffff')
        S(f's_mov_b32 s{sb+2}, {sz}'); S(f's_mov_b32 s{sb+3}, 0x00020000')
    S(f's_and_b32 s{S_WS+1}, s{S_WS+1}, 0xffff'); S(f's_mov_b32 s{S_WS+2}, {0x1000000 if debug else WS_SIZE}'); S(f's_mov_b32 s{S_WS+3}, 0x00020000')
    S(f's_cmp_eq_u32 s{S_WAVE}, 8')
    a.raw('s_cbranch_scc1 L_loader', kind='branch')

    def dpp_max(m):
        for d in ('row_shr:1 row_mask:0xf', 'row_shr:2 row_mask:0xf', 'row_shr:4 row_mask:0xf', 'row_shr:8 row_mask:0xf', 'row_bcast:15 row_mask:0xa', 'row_bcast:31 row_mask:0xc'):
            V(f'v_max_u32_dpp v{m}, v{m}, v{m} {d} bank_mask:0xf', [m], [m], dpp=True)
    def rho_salu(sh, st1, st2, clamp=True):
        S(f's_cmp_ge_u32 s{sh}, 13'); S(f's_cselect_b32 s{st1}, 1, 0')
        S(f's_mul_i32 s{st2}, s{st1}, 13'); S(f's_sub_u32 s{sh}, s{sh}, s{st2}')
        S(f's_lshl_b32 s{st2}, s{st1}, 2')
        S(f's_lshl_b32 s{st1}, s{st1}, 4'); S(f's_add_u32 s{st1}, s{st1}, s{sh}')
        S(f's_add_u32 s{st2}, s{st2}, s{sh}'); S(f's_and_b32 s{sh}, s{sh}, 12'); S(f's_add_u32 s{sh}, s{sh}, s{st2}')
        if clamp: S(f's_add_u32 s{sh}, s{sh}, 1'); S(f's_cmp_eq_u32 s{sh}, 29'); S(f's_cselect_b32 s{sh}, 0, s{sh}')

    V(f'v_mov_b32 v{V_SYNC}, {SYNC}', [], [V_SYNC])
    S(f's_cmp_ge_u32 s{S_PID}, {NP2}')
    a.cond_begin('s_cbranch_scc1 L_noprod', 'L_noprod')
    p = [72 + i for i in range(16)]
    S(f's_cmp_ge_u32 s{S_G}, 136'); a.raw('s_cbranch_scc1 L_prodv5', kind='branch')
    S(f's_cmp_ge_u32 s{S_G}, 32'); a.raw('s_cbranch_scc1 L_prodrow', kind='branch')
    S(f's_cmp_ge_u32 s{S_G}, 26'); a.raw('s_cbranch_scc1 L_prodfin', kind='branch')
    MF = 116; IF = 124; SD = 40
    V(f'v_and_b32 v{p[0]}, 31, v{V_LANE}', [V_LANE], [p[0]])
    V(f'v_lshrrev_b32 v{p[1]}, 5, v{V_LANE}', [V_LANE], [p[1]])
    V(f'v_mul_u32_u24 v{p[2]}, 52, v{p[0]}', [p[0]], [p[2]])
    V(f'v_lshl_add_u32 v{p[2]}, v{p[1]}, 4, v{p[2]}', [p[1], p[2]], [p[2]])
    S(f's_mul_i32 s{S_T2}, s{S_G}, 1352')
    a.vmem(f'buffer_load_dwordx4 {vr(MF,4)}, v{p[2]}, s[{S_WC}:{S_WC+3}], s{S_T2} offen', [p[2]], R(MF, 4))
    a.vmem(f'buffer_load_dwordx4 {vr(MF+4,4)}, v{p[2]}, s[{S_WC}:{S_WC+3}], s{S_T2} offen offset:32', [p[2]], R(MF+4, 4))
    V(f'v_lshlrev_b32 v{p[3]}, 3, v{p[1]}', [p[1]], [p[3]])
    V(f'v_sub_u32 v{p[3]}, v{p[0]}, v{p[3]}', [p[0], p[3]], [p[3]])
    V(f'v_and_b32 v{p[4]}, 1, v{p[3]}', [p[3]], [p[4]])
    V(f'v_lshlrev_b32 v{p[4]}, 4, v{p[4]}', [p[4]], [p[4]])
    V(f'v_mov_b32 v{p[5]}, 0x3f80', [], [p[5]])
    V(f'v_lshlrev_b32 v{p[4]}, v{p[4]}, v{p[5]}', [p[4], p[5]], [p[4]])
    V(f'v_ashrrev_i32 v{p[3]}, 1, v{p[3]}', [p[3]], [p[3]])
    for ks in range(2):
        for r in range(4):
            V(f'v_cmp_eq_u32 vcc, {8*ks + r}, v{p[3]}', [p[3]], [], swrites=['vcc'])
            V(f'v_cndmask_b32 v{IF+4*ks+r}, 0, v{p[4]}, vcc', [p[4]], [IF+4*ks+r], sreads=['vcc'])
    V(f'v_lshrrev_b32 v{p[3]}, 1, v{p[0]}', [p[0]], [p[3]])
    V(f'v_and_b32 v{p[4]}, 1, v{p[0]}', [p[0]], [p[4]])
    V(f'v_subrev_u32 v{p[5]}, 1, v{p[3]}', [p[3]], [p[5]])
    V(f'v_mul_i32_i24 v{p[5]}, v{p[5]}, v{p[3]}', [p[5], p[3]], [p[5]])
    V(f'v_lshrrev_b32 v{p[5]}, 1, v{p[5]}', [p[5]], [p[5]])
    V(f'v_mul_u32_u24 v{p[6]}, 12, v{p[3]}', [p[3]], [p[6]])
    V(f'v_sub_u32 v{p[6]}, v{p[6]}, v{p[5]}', [p[6], p[5]], [p[6]])
    V(f'v_mul_u32_u24 v{p[5]}, 92, v{p[4]}', [p[4]], [p[5]])
    V(f'v_add_u32 v{p[6]}, v{p[6]}, v{p[5]}', [p[6], p[5]], [p[6]])
    V(f'v_lshl_add_u32 v{p[6]}, v{p[1]}, 1, v{p[6]}', [p[1], p[6]], [p[6]])
    S(f's_lshl_b32 s{S_T3}, s{S_WAVE}, 10'); S(f's_add_u32 s{S_T3}, s{S_T3}, {SCR}')
    V(f'v_lshlrev_b32 v{p[6]}, 2, v{p[6]}', [p[6]], [p[6]])
    V(f'v_add_u32 v{p[6]}, s{S_T3}, v{p[6]}', [p[6]], [p[6]])
    V(f'v_lshlrev_b32 v{p[5]}, 1, v{p[1]}', [p[1]], [p[5]])
    V(f'v_sub_u32 v{p[3]}, v{p[3]}, v{p[5]}', [p[3], p[5]], [p[3]])
    V(f'v_cmp_gt_u32 vcc, 26, v{p[0]}', [p[0]], [], swrites=['vcc'])
    V(f'v_mov_b32 v{p[5]}, 100', [], [p[5]])
    V(f'v_cndmask_b32 v{p[3]}, v{p[5]}, v{p[3]}, vcc', [p[5], p[3]], [p[3]], sreads=['vcc'])
    V(f'v_mov_b32 v{p[7]}, 0', [], [p[7]])
    V(f'v_mov_b32 v{p[8]}, s{S_T3}', [], [p[8]])
    a.ds(f'ds_write_b32 v{p[8]}, v{p[7]} offset:364', [p[8], p[7]])
    a.ds(f'ds_write_b32 v{p[8]}, v{p[7]} offset:732', [p[8], p[7]])
    V(f'v_add_u32 v{p[8]}, s{S_T3}, v{V_L16}', [V_L16], [p[8]])
    V(f'v_cmp_le_u32 vcc, 23, v{V_LANE}', [V_LANE], [], swrites=['vcc'])
    V(f'v_cndmask_b32 v{p[9]}, 0, 1, vcc', [], [p[9]], sreads=['vcc'])
    S(f's_mov_b32 s{S_T0}, s{S_G}')
    rho_salu(S_T0, S_T1, S_T4)
    V(f'v_mul_u32_u24 v{p[9]}, {25*368}, v{p[9]}', [p[9]], [p[9]])
    V(f'v_add_u32 v{p[9]}, v{p[9]}, v{V_L16}', [p[9], V_L16], [p[9]])
    S(f's_mul_i32 s{S_T0}, s{S_T0}, 368')
    a.mfma('v_mfma_f32_32x32x16_bf16', SD, MF, IF, None, 8, 16)
    a.mfma('v_mfma_f32_32x32x16_bf16', SD, MF+4, IF+4, SD, 8, 16)
    a.mfma('v_mfma_f32_32x32x16_bf16', SD, IF, MF, SD, 8, 16)
    a.mfma('v_mfma_f32_32x32x16_bf16', SD, IF+4, MF+4, SD, 8, 16)
    m = p[10]
    V(f'v_max3_f32 v{m}, |v{SD}|, |v{SD+1}|, |v{SD+2}|', R(SD, 3), [m])
    for r in range(3, 15, 2):
        V(f'v_max3_f32 v{m}, |v{SD+r}|, |v{SD+r+1}|, v{m}', [SD+r, SD+r+1, m], [m])
    dpp_max(m)
    V(f'v_frexp_exp_i32_f32 v{m}, v{m}', [m], [m])
    V(f'v_readlane_b32 s{S_T4}, v{m}, 63', [m], [], swrites=[S_T4], readlane=True)
    S(f's_sub_i32 s{S_C}, 15, s{S_T4}', sreads=[S_T4])
    S(f's_sub_i32 s{S_T4}, s{S_T4}, 15')
    for r in range(14): V(f'v_ldexp_f32 v{SD+r}, v{SD+r}, s{S_C}', [SD+r], [SD+r])
    for rp in range(7):
        V(f'v_cvt_pk_f16_f32 v{MF+rp}, v{SD+2*rp}, v{SD+2*rp+1}', [SD+2*rp, SD+2*rp+1], [MF+rp])
    for rp in range(7):
        aa, bb = rp >> 1, rp & 1
        V(f'v_cmp_ge_i32 vcc, {4*aa+bb}, v{p[3]}', [p[3]], [], swrites=['vcc'])
        if aa == 3: S('s_mov_b32 vcc_hi, 0', sreads=['vcc'])
        S('s_mov_b64 exec, vcc', sreads=['vcc'])
        a.ds(f'ds_write_b32 v{p[6]}, v{MF+rp} offset:{4*(4*aa+bb)}', [p[6], MF+rp])
        fullexec()
    a.raw('s_waitcnt lgkmcnt(0)', kind='wait')
    a.ds(f'ds_read_b128 {vr(IF,4)}, v{p[8]}', [p[8]], R(IF, 4))
    execn(46)
    a.vmem(f'buffer_store_dwordx4 {vr(IF,4)}, v{p[9]}, s[{S_WS}:{S_WS+3}], s{S_T0} offen sc1', [p[9]] + R(IF, 4), [], wide_store=R(IF, 4))
    fullexec()
    S(f's_lshl_b32 s{S_T1}, s{S_T1}, 2'); S(f's_add_u32 s{S_T1}, s{S_T1}, {WS_EWT}')
    V(f'v_mov_b32 v{p[11]}, s{S_T4}', [], [p[11]]); V(f'v_mov_b32 v{p[12]}, s{S_T1}', [], [p[12]])
    S('s_mov_b64 exec, 1')
    a.vmem(f'buffer_store_dword v{p[11]}, v{p[12]}, s[{S_WS}:{S_WS+3}], 0 offen sc1', [p[11], p[12]], [])
    a.raw('s_branch L_prodfin', kind='branch')
    a.label('L_prodrow')
    S(f's_sub_u32 s{S_G}, s{S_G}, 32')
    PR = 40; PA = 48
    S(f's_mul_i32 s{S_T2}, s{S_G}, 1352'); S(f's_add_u32 s{S_T2}, s{S_T2}, 35152')
    V(f'v_cmp_le_u32 vcc, 43, v{V_LANE}', [V_LANE], [], swrites=['vcc'])
    V(f'v_cndmask_b32 v{p[0]}, 0, 1, vcc', [], [p[0]], sreads=['vcc'])
    V(f'v_mul_u32_u24 v{p[2]}, 12, v{p[0]}', [p[0]], [p[2]])
    V(f'v_sub_u32 v{p[2]}, v{V_L16}, v{p[2]}', [V_L16, p[2]], [p[2]])
    a.vmem(f'buffer_load_dwordx4 {vr(PR,4)}, v{p[2]}, s[{S_WC}:{S_WC+3}], s{S_T2} offen', [p[2]], R(PR, 4))
    V(f'v_min_u32 v{p[3]}, 21, v{V_LANE}', [V_LANE], [p[3]])
    V(f'v_lshlrev_b32 v{p[4]}, 4, v{p[3]}', [p[3]], [p[4]])
    a.vmem(f'buffer_load_dwordx4 {vr(PR+4,4)}, v{p[4]}, s[{S_WC}:{S_WC+3}], s{S_T2} offen offset:1012', [p[4]], R(PR+4, 4))
    S(f's_mul_i32 s{S_T1}, s{S_G}, 2521'); S(f's_lshr_b32 s{S_T1}, s{S_T1}, 16')
    S(f's_mul_i32 s{S_T3}, s{S_T1}, 26'); S(f's_sub_u32 s{S_T0}, s{S_G}, s{S_T3}')
    rho_salu(S_T0, S_T3, S_T4)
    V(f'v_mul_u32_u24 v{p[7]}, {25*688}, v{p[0]}', [p[0]], [p[7]])
    V(f'v_add_u32 v{p[7]}, v{p[7]}, v{V_L16}', [p[7], V_L16], [p[7]])
    V(f'v_add_u32 v{p[8]}, {26*688+336}, v{p[4]}', [p[4]], [p[8]])
    S(f's_mul_i32 s{S_T0}, s{S_T0}, 688'); S(f's_mul_i32 s{S_T2}, s{S_T1}, {IMG}'); S(f's_add_u32 s{S_T2}, s{S_T2}, s{S_T0}'); S(f's_add_u32 s{S_T2}, s{S_T2}, {WS_IMG[1]}')
    S(f's_lshl_b32 s{S_T1}, s{S_T1}, 5'); S(f's_add_u32 s{S_T1}, s{S_T1}, s{S_T3}'); S(f's_add_u32 s{S_T1}, s{S_T1}, 32')
    for i in range(8): V(f'v_and_b32 v{PA+i}, s{S_K7FFF}, v{PR+i}', [PR+i], [PA+i])
    m = p[11]
    V(f'v_pk_maximum3_f16 v{m}, v{PA}, v{PA+1}, v{PA+2}', R(PA, 3), [m])
    V(f'v_pk_maximum3_f16 v{m}, v{m}, v{PA+3}, v{PA+4}', [m, PA+3, PA+4], [m])
    V(f'v_pk_maximum3_f16 v{m}, v{m}, v{PA+5}, v{PA+6}', [m, PA+5, PA+6], [m])
    V(f'v_pk_max_u16 v{m}, v{m}, v{PA+7}', [m, PA+7], [m])
    V(f'v_max_u16_sdwa v{m}, v{m}, v{m} dst_sel:DWORD dst_unused:UNUSED_PAD src0_sel:WORD_1 src1_sel:WORD_0', [m], [m], opsel=True)
    dpp_max(m)
    V(f'v_readlane_b32 s{S_T0}, v{m}, 63', [m], [], swrites=[S_T0], readlane=True)
    S(f's_lshr_b32 s{S_T0}, s{S_T0}, 7', sreads=[S_T0], swrites=[S_T0])
    S(f's_sub_i32 s{S_T0}, s{S_T0}, 30'); S(f's_max_i32 s{S_T0}, s{S_T0}, 0')
    S(f's_mul_i32 s{S_C}, s{S_T0}, 0x800080'); S(f's_sub_i32 s{S_T0}, s{S_T0}, 112')
    for i in range(8): V(f'v_pk_sub_u16 v{PA+i}, v{PA+i}, s{S_C} clamp', [PA+i], [PA+i])
    for i in range(8): V(f'v_lshlrev_b32 v{PA+i}, 3, v{PA+i}', [PA+i], [PA+i])
    for i in range(8): V(f'v_bfi_b32 v{PA+i}, s{S_K8000}, v{PR+i}, v{PA+i}', [PA+i, PR+i], [PA+i])
    a.vmem(f'buffer_store_dwordx4 {vr(PA,4)}, v{p[7]}, s[{S_WS}:{S_WS+3}], s{S_T2} offen sc1', [p[7]] + R(PA, 4), [], wide_store=R(PA, 4))
    execn(22)
    a.vmem(f'buffer_store_dwordx4 {vr(PA+4,4)}, v{p[8]}, s[{S_WS}:{S_WS+3}], s{S_T2} offen sc1', [p[8]] + R(PA+4, 4), [], wide_store=R(PA+4, 4))
    S(f's_lshl_b32 s{S_T1}, s{S_T1}, 2'); S(f's_add_u32 s{S_T1}, s{S_T1}, {WS_EWT}')
    V(f'v_mov_b32 v{p[9]}, s{S_T0}', [], [p[9]]); V(f'v_mov_b32 v{p[10]}, s{S_T1}', [], [p[10]])
    S('s_mov_b64 exec, 1')
    a.vmem(f'buffer_store_dword v{p[9]}, v{p[10]}, s[{S_WS}:{S_WS+3}], 0 offen sc1', [p[9], p[10]], [])
    S(f's_cmp_lg_u32 s{S_G}, 0'); a.raw('s_cbranch_scc1 L_prodfin', kind='branch')
    a.raw(f's_memrealtime s[{S_MT}:{S_MT+1}]')
    a.raw('s_waitcnt lgkmcnt(0)', kind='wait')
    V(f'v_mov_b32 v{p[12]}, s{S_MT}', [], [p[12]]); V(f'v_mov_b32 v{p[13]}, {WS_EWT + (32+15)*4}', [], [p[13]])
    a.vmem(f'buffer_store_dword v{p[12]}, v{p[13]}, s[{S_WS}:{S_WS+3}], 0 offen sc1', [p[12], p[13]], [])
    a.raw('s_branch L_prodfin', kind='branch')
    a.label('L_prodv5')
    S(f's_cmp_ge_u32 s{S_G}, 162'); a.raw('s_cbranch_scc1 L_prodfin', kind='branch')
    LA = 40; LB = 44; AC = 48
    S(f's_sub_u32 s{S_T0}, s{S_G}, 136')
    S(f's_mul_i32 s{S_T2}, s{S_T0}, 52'); S(f's_add_u32 s{S_T2}, s{S_T2}, {5*35152}')
    V(f'v_lshrrev_b32 v{p[0]}, 2, v{V_LANE}', [V_LANE], [p[0]])
    V(f'v_and_b32 v{p[1]}, 3, v{V_LANE}', [V_LANE], [p[1]])
    V(f'v_mul_u32_u24 v{p[2]}, 0x548, v{p[0]}', [p[0]], [p[2]])
    V(f'v_lshl_add_u32 v{p[2]}, v{p[1]}, 4, v{p[2]}', [p[1], p[2]], [p[2]])
    a.vmem(f'buffer_load_dwordx4 {vr(LA,4)}, v{p[2]}, s[{S_WC}:{S_WC+3}], s{S_T2} offen', [p[2]], R(LA, 4))
    S(f's_add_u32 s{S_T2}, s{S_T2}, {16*1352}')
    a.vmem(f'buffer_load_dwordx4 {vr(LB,4)}, v{p[2]}, s[{S_WC}:{S_WC+3}], s{S_T2} offen', [p[2]], R(LB, 4))
    V(f'v_lshlrev_b32 v{p[3]}, 1, v{p[0]}', [p[0]], [p[3]])
    a.vmem(f'buffer_load_ushort v{p[4]}, v{p[3]}, s[{S_WCO}:{S_WCO+3}], 0 offen offset:260', [p[3]], [p[4]])
    a.vmem(f'buffer_load_ushort v{p[5]}, v{p[3]}, s[{S_WCO}:{S_WCO+3}], 0 offen offset:292', [p[3]], [p[5]])
    rho_salu(S_T0, S_T1, S_T4, clamp=False)
    S(f's_lshl_b32 s{S_T0}, s{S_T0}, 4'); S(f's_add_u32 s{S_T0}, s{S_T0}, {WS_V5F}')
    V(f'v_lshlrev_b32 v{p[6]}, 10, v{p[1]}', [p[1]], [p[6]])
    V(f'v_cmp_ne_u32 vcc, 3, v{p[1]}', [p[1]], [], swrites=['vcc'])
    for r in (1, 2, 3):
        V(f'v_cndmask_b32 v{LA+r}, 0, v{LA+r}, vcc', [LA+r], [LA+r], sreads=['vcc'])
        V(f'v_cndmask_b32 v{LB+r}, 0, v{LB+r}, vcc', [LB+r], [LB+r], sreads=['vcc'])
    V(f'v_lshlrev_b32 v{p[4]}, 16, v{p[4]}', [p[4]], [p[4]])
    V(f'v_lshlrev_b32 v{p[5]}, 16, v{p[5]}', [p[5]], [p[5]])
    for r in range(4):
        V(f'v_lshlrev_b32 v{p[7]}, 16, v{LA+r}', [LA+r], [p[7]])
        V(f'v_and_b32 v{p[8]}, 0xffff0000, v{LA+r}', [LA+r], [p[8]])
        V(f'v_lshlrev_b32 v{p[9]}, 16, v{LB+r}', [LB+r], [p[9]])
        V(f'v_and_b32 v{p[10]}, 0xffff0000, v{LB+r}', [LB+r], [p[10]])
        V(f'v_mul_f32 v{AC+2*r}, v{p[4]}, v{p[7]}', [p[4], p[7]], [AC+2*r])
        V(f'v_mul_f32 v{AC+2*r+1}, v{p[4]}, v{p[8]}', [p[4], p[8]], [AC+2*r+1])
        V(f'v_fmac_f32 v{AC+2*r}, v{p[5]}, v{p[9]}', [AC+2*r, p[5], p[9]], [AC+2*r])
        V(f'v_fmac_f32 v{AC+2*r+1}, v{p[5]}, v{p[10]}', [AC+2*r+1, p[5], p[10]], [AC+2*r+1])
    for d in (4, 8):
        for e in range(8):
            V(f'v_add_f32_dpp v{AC+e}, v{AC+e}, v{AC+e} row_ror:{d} row_mask:0xf bank_mask:0xf', [AC+e], [AC+e], dpp=True)
    for op in ('v_permlane16_swap_b32', 'v_permlane32_swap_b32'):
        for e in range(8): V(f'v_mov_b32 v{p[7+e]}, v{AC+e}', [AC+e], [p[7+e]])
        for e in range(8): V(f'{op} v{AC+e}, v{p[7+e]}', [AC+e, p[7+e]], [AC+e, p[7+e]], permlane=True)
        for e in range(8): V(f'v_add_f32 v{AC+e}, v{AC+e}, v{p[7+e]}', [AC+e, p[7+e]], [AC+e])
    for r in range(4):
        V(f'v_cvt_pk_bf16_f32 v{LA+r}, v{AC+2*r}, v{AC+2*r+1}', [AC+2*r, AC+2*r+1], [LA+r])
        V(f'v_lshlrev_b32 v{p[7]}, 16, v{LA+r}', [LA+r], [p[7]])
        V(f'v_and_b32 v{p[8]}, 0xffff0000, v{LA+r}', [LA+r], [p[8]])
        V(f'v_sub_f32 v{p[7]}, v{AC+2*r}, v{p[7]}', [AC+2*r, p[7]], [p[7]])
        V(f'v_sub_f32 v{p[8]}, v{AC+2*r+1}, v{p[8]}', [AC+2*r+1, p[8]], [p[8]])
        V(f'v_cvt_pk_bf16_f32 v{LB+r}, v{p[7]}, v{p[8]}', [p[7], p[8]], [LB+r])
    execn(4)
    a.vmem(f'buffer_store_dwordx4 {vr(LA,4)}, v{p[6]}, s[{S_WS}:{S_WS+3}], s{S_T0} offen sc1', [p[6]] + R(LA, 4), [], wide_store=R(LA, 4))
    a.vmem(f'buffer_store_dwordx4 {vr(LB,4)}, v{p[6]}, s[{S_WS}:{S_WS+3}], s{S_T0} offen offset:512 sc1', [p[6]] + R(LB, 4), [], wide_store=R(LB, 4))
    a.label('L_prodfin')
    fullexec()
    a.nop(2)
    a.cond_end()
    a.nop(12)
    stamp('prod')
    PWT = 136; BIGR = 137
    V(f'v_mov_b32 v{BIGR}, 0x7f000000', [], [BIGR])
    V(f'v_lshrrev_b32 v{t[0]}, 4, v0', [0], [t[0]])
    V(f'v_and_b32 v{t[1]}, 15, v0', [0], [t[1]])
    V(f'v_mad_u32_u24 v{t[0]}, v{t[0]}, 13, v{t[1]}', [t[0], t[1]], [t[0]])
    V(f'v_lshlrev_b32 v{t[0]}, 1, v{t[0]}', [t[0]], [t[0]])
    V(f'v_cmp_gt_u32 vcc, 13, v{t[1]}', [t[1]], [], swrites=['vcc'])
    V(f'v_cndmask_b32 v{t[0]}, v{BIGR}, v{t[0]}, vcc', [BIGR, t[0]], [t[0]], sreads=['vcc'])
    S(f's_cmp_gt_u32 s{S_WAVE}, 2')
    a.cond_begin('s_cbranch_scc1 L_nopw', 'L_nopw')
    a.vmem(f'buffer_load_ushort v{PWT}, v{t[0]}, s[{S_WCO}:{S_WCO+3}], 0 offen', [t[0]], [PWT])
    a.cond_end()
    V(f'v_mov_b32 v{t[2]}, 0', [], [t[2]])
    a.vmem(f'buffer_load_ushort v{V_ACC}, v{t[2]}, s[{S_BO}:{S_BO+3}], 0 offen', [t[2]], [V_ACC])
    def addr_setup():
        V(f'v_and_b32 v{t[0]}, 31, v{V_LANE}', [V_LANE], [t[0]])
        V(f'v_cmp_gt_u32 vcc, 28, v{t[0]}', [t[0]], [], swrites=['vcc'])
        V(f'v_addc_co_u32 v{t[4]}, vcc, 0, v{t[0]}, vcc', [t[0]], [t[4]], sreads=['vcc'], swrites=['vcc'])
        V(f'v_cmp_eq_u32 s[{S_MT}:{S_MT+1}], 28, v{t[0]}', [t[0]], [], swrites=[S_MT, S_MT+1])
        V(f'v_cndmask_b32 v{t[4]}, v{t[4]}, 0, s[{S_MT}:{S_MT+1}]', [t[4]], [t[4]], sreads=[S_MT])
        V(f'v_lshrrev_b32 v{t[1]}, 5, v{V_LANE}', [V_LANE], [t[1]])
        V(f'v_mad_u32_u24 v{t[4]}, v{t[1]}, 26, v{t[4]}', [t[1], t[4]], [t[4]])
        V(f'v_cmp_gt_u32 vcc, 25, v{t[0]}', [t[0]], [], swrites=['vcc'])
        S(f's_or_b64 vcc, vcc, s[{S_MT}:{S_MT+1}]', sreads=['vcc', S_MT])
        V(f'v_mov_b32 v{t[5]}, 0x40000', [], [t[5]])
        V(f'v_cndmask_b32 v{t[5]}, v{t[5]}, 0, vcc', [t[5]], [t[5]])
        S(f's_movk_i32 s{S_T0}, 0x2b0'); S(f's_movk_i32 s{S_T1}, 0x170')
        V(f'v_mad_u32_u24 v{V_AADDR[0]}, v{t[4]}, s{S_T0}, v{t[5]}', [t[4], t[5]], [V_AADDR[0]])
        V(f'v_add_u32 v{V_AADDR[1]}, {U[2]}, v{V_AADDR[0]}', [V_AADDR[0]], [V_AADDR[1]])
        V(f'v_mad_u32_u24 v{V_AADDR0}, v{t[4]}, s{S_T1}, v{t[5]}', [t[4], t[5]], [V_AADDR0])
        V(f'v_add_u32 v{V_AADDR0}, {I0B}, v{V_AADDR0}', [V_AADDR0], [V_AADDR0])
    V(f'v_and_b32 v{t[0]}, 31, v{V_LANE}', [V_LANE], [t[0]])
    V(f'v_lshlrev_b32 v{t[0]}, 2, v{t[0]}', [t[0]], [t[0]])
    S(f's_mul_i32 s{S_T0}, s{S_WAVE}, 1664'); S(f's_add_u32 s{S_T0}, s{S_T0}, {X16}')
    V(f'v_add_u32 v{V_TRADDR}, s{S_T0}, v{t[0]}', [t[0]], [V_TRADDR])
    V(f'v_lshrrev_b32 v{t[4]}, 4, v{V_LANE}', [V_LANE], [t[4]])
    V(f'v_lshrrev_b32 v{t[0]}, 2, v{V_LANE}', [V_LANE], [t[0]])
    V(f'v_mul_u32_u24 v{t[0]}, 224, v{t[0]}', [t[0]], [t[0]])
    V(f'v_and_b32 v{t[5]}, 3, v{V_LANE}', [V_LANE], [t[5]])
    V(f'v_lshl_add_u32 v{t[0]}, v{t[5]}, 3, v{t[0]}', [t[5], t[0]], [t[0]])
    S(f's_lshr_b32 s{S_T0}, s{S_WAVE}, 2'); S(f's_sub_u32 s{S_T0}, 1, s{S_T0}')
    S(f's_lshl_b32 s{S_T1}, s{S_T0}, 5')
    V(f'v_add_u32 v{V_DAADDR}, s{S_T1}, v{t[0]}', [t[0]], [V_DAADDR])
    V(f'v_add_u32 v{V_DBK}, 121600, v{V_DAADDR}', [V_DAADDR], [V_DBK])
    S(f's_lshl_b32 s{S_T2}, s{S_T0L}, 5'); S(f's_add_u32 s{S_T1}, s{S_T1}, s{S_T2}'); S(f's_add_u32 s{S_T1}, s{S_T1}, {BW - 32}')
    V(f'v_lshlrev_b32 v{t[4]}, 3, v{t[4]}', [t[4]], [t[4]])
    V(f'v_add_u32 v{V_BWADDR}, s{S_T1}, v{t[4]}', [t[4]], [V_BWADDR])
    V(f'v_mov_b32 v{V_SYNC}, {SYNC}', [], [V_SYNC])
    S(f's_lshl_b32 s{S_T0}, s{S_WAVE}, 2'); S(f's_add_u32 s{S_T0}, s{S_T0}, {SYNC + 32}')
    V(f'v_mov_b32 v{V_DONEA}, s{S_T0}', [], [V_DONEA])
    a.wait_vm_all()
    S(f's_cmp_gt_u32 s{S_WAVE}, 2')
    a.cond_begin('s_cbranch_scc1 L_nopw2', 'L_nopw2')
    V(f'v_lshlrev_b32 v{PWT}, 16, v{PWT}', [PWT], [PWT])
    V(f'v_lshlrev_b32 v{t[0]}, 2, v0', [0], [t[0]])
    V(f'v_add_u32 v{t[0]}, {POOLW}, v{t[0]}', [t[0]], [t[0]])
    V(f'v_cmp_gt_u32 vcc, 0xa0, v0', [0], [], swrites=['vcc'])
    S('s_mov_b64 exec, vcc', sreads=['vcc'])
    a.ds(f'ds_write_b32 v{t[0]}, v{PWT}', [t[0], PWT])
    fullexec()
    a.cond_end()
    a.barrier()
    S(f's_cmp_ge_u32 s{S_PID}, {NP2}')
    a.cond_begin('s_cbranch_scc1 L_noflag', 'L_noflag')
    S(f's_cmp_lg_u32 s{S_WAVE}, 0')
    a.raw('s_cbranch_scc1 L_noflag', kind='branch')
    S(f's_lshl_b32 s{S_T0}, s{S_PID}, 2')
    V(f'v_mov_b32 v{t[0]}, 1', [], [t[0]]); V(f'v_mov_b32 v{t[1]}, s{S_T0}', [], [t[1]])
    S('s_mov_b64 exec, 1')
    a.vmem(f'buffer_store_dword v{t[0]}, v{t[1]}, s[{S_DBGF}:{S_DBGF+3}], 0 offen offset:128 sc1', [t[0], t[1]], [])
    fullexec()
    a.cond_end()
    S(f's_mov_b32 s{S_KN}, 0')
    stamp('setup')

    chk_n = [0]
    def rdy_fetch(off): a.ds(f'ds_read_b32 v{V_RDY}, v{V_SYNC} offset:{off}', [V_SYNC], [V_RDY])
    def rdy_check(nseq, off, fetched=False):
        if not fetched: rdy_fetch(off)
        i = chk_n[0]; chk_n[0] += 1
        V(f'v_readfirstlane_b32 s{S_T0}, v{V_RDY}', [V_RDY], [], swrites=[S_T0], readlane=True)
        S(f's_cmp_ge_u32 s{S_T0}, {nseq}', sreads=[S_T0])
        a.cond_begin(f's_cbranch_scc1 L_ok{i}', f'L_ok{i}')
        a.raw(f's_mov_b32 s{S_T1}, 0x100000', kind='salu')
        a.label(f'L_sp{i}')
        a.raw('s_sleep 1')
        a.raw(f'ds_read_b32 v{V_RDY}, v{V_SYNC} offset:{off}', kind='ds')
        a.raw(f's_sub_u32 s{S_T1}, s{S_T1}, 1', kind='salu')
        a.raw(f's_cbranch_scc1 L_ok{i}', kind='branch')
        a.raw('s_waitcnt lgkmcnt(0)', kind='wait')
        a.raw(f'v_readfirstlane_b32 s{S_T0}, v{V_RDY}', kind='valu')
        a.raw('s_nop 0', kind='nop')
        a.raw(f's_cmp_ge_u32 s{S_T0}, {nseq}', kind='salu')
        a.raw(f's_cbranch_scc0 L_sp{i}', kind='branch')
        a.cond_end()
    def cnt_check(nseq):
        i = chk_n[0]; chk_n[0] += 1
        S(f's_cmp_ge_u32 s{S_KN}, {nseq}')
        a.cond_begin(f's_cbranch_scc1 L_ok{i}', f'L_ok{i}')
        a.raw(f's_mov_b32 s{S_T1}, 0x100000', kind='salu')
        a.label(f'L_sp{i}')
        a.raw(f'ds_read_b32 v{V_RDY}, v{V_SYNC}', kind='ds')
        a.raw(f's_sub_u32 s{S_T1}, s{S_T1}, 1', kind='salu')
        a.raw(f's_cbranch_scc1 L_ok{i}', kind='branch')
        a.raw('s_waitcnt lgkmcnt(0)', kind='wait')
        a.raw(f'v_readfirstlane_b32 s{S_KN}, v{V_RDY}', kind='valu')
        a.raw('s_nop 0', kind='nop')
        a.raw(f's_cmp_ge_u32 s{S_KN}, {nseq}', kind='salu')
        a.raw(f's_cbranch_scc1 L_ok{i}', kind='branch')
        a.raw('s_sleep 1')
        a.raw(f's_branch L_sp{i}', kind='branch')
        a.cond_end()
    def release(stage):
        V(f'v_mov_b32 v{t[0]}, {stage}', [], [t[0]])
        a.ds(f'ds_write_b32 v{V_DONEA}, v{t[0]}', [V_DONEA, t[0]])

    def x0_ops():
        ops = []
        PB = PBT
        def rd():
            V(f'v_lshlrev_b32 v{V_ACC}, 16, v{V_ACC}', [V_ACC], [V_ACC])
            V(f'v_and_b32 v{t[0]}, 47, v{V_LANE}', [V_LANE], [t[0]])
            V(f'v_cmp_eq_u32 vcc, 0, v{t[0]}', [t[0]], [], swrites=['vcc'])
            V(f'v_cndmask_b32 v{V_ACC}, 0, v{V_ACC}, vcc', [V_ACC], [V_ACC], sreads=['vcc'])
        ops.append(rd)
        m = t[1]
        def c1():
            for v in range(13): V(f'v_and_b32 v{P16+v}, s{S_K7FFF}, v{PB+v}', [PB+v], [P16+v])
        ops.append(c1)
        def c2():
            V(f'v_pk_maximum3_f16 v{m}, v{P16}, v{P16+1}, v{P16+2}', R(P16, 3), [m])
            for v in range(3, 13, 2):
                V(f'v_pk_maximum3_f16 v{m}, v{m}, v{P16+v}, v{P16+v+1}', [m, P16+v, P16+v+1], [m])
            V(f'v_max_u16_sdwa v{m}, v{m}, v{m} dst_sel:DWORD dst_unused:UNUSED_PAD src0_sel:WORD_1 src1_sel:WORD_0', [m], [m], opsel=True)
            V(f'v_lshrrev_b32 v{m}, 7, v{m}', [m], [m])
            V(f'v_subrev_u32 v{m}, 21, v{m}', [m], [m])
            V(f'v_max_i32 v{m}, 0, v{m}', [m], [m])
            V(f'v_subrev_u32 v{V_EX}, 112, v{m}', [m], [V_EX])
            V(f'v_mul_u32_u24 v{m}, 0x800080, v{m}', [m], [m])
        ops.append(c2)
        ops.append(lambda: [V(f'v_pk_sub_u16 v{P16+v}, v{P16+v}, v{m} clamp', [P16+v, m], [P16+v]) for v in range(13)])
        ops.append(lambda: [V(f'v_lshlrev_b32 v{P16+v}, 3, v{P16+v}', [P16+v], [P16+v]) for v in range(13)])
        ops.append(lambda: [V(f'v_bfi_b32 v{P16+v}, s{S_K8000}, v{PB+v}, v{P16+v}', [P16+v, PB+v], [P16+v]) for v in range(13)])
        def qq():
            V(f'v_mov_b32 v{P16+13}, 0', [], [P16+13])
            V(f'v_mov_b32 v{t[2]}, 0x05040100', [], [t[2]])
            V(f'v_mov_b32 v{t[1]}, 0x07060302', [], [t[1]])
            V(f'v_cndmask_b32 v{t[2]}, v{t[2]}, v{t[1]}, s[{S_HI}:{S_HI+1}]', [t[2], t[1]], [t[2]])
            for q in range(7):
                V(f'v_perm_b32 v{XQ+q}, v{P16+2*q+1}, v{P16+2*q}, v{t[2]}', [P16+2*q+1, P16+2*q, t[2]], [XQ+q])
        ops.append(qq)
        def q2():
            V(f'v_lshlrev_b32 v{V_E}, 1, v{V_EX}', [V_EX], [V_E])
            for v in range(13): a.ds(f'ds_write_b32 v{V_TRADDR}, v{PB+v} offset:{128*v}', [V_TRADDR, PB+v])
        ops.append(q2)
        return ops

    DAB = [132, 40, 56]; DBB = [72, 76, 80]; IXR = 84; NDB = 3
    def dnn_reads(i, xt):
        da = DAB[i % NDB]; db = DBB[i % NDB]
        base = CADDR[i]
        a.ds(f'ds_read_b64 {vr(db,2)}, v{IXR+2*i}', [IXR+2*i], R(db, 2))
        a.ds(f'ds_read_b64 {vr(db+2,2)}, v{IXR+2*i+1}', [IXR+2*i+1], R(db+2, 2))
        ro = 64 if xt else 32
        hi = i < 3
        ad = V_DBK if hi else V_DAADDR; b0 = base - (121600 if hi else 0)
        if i == 11: dnn_reads.shift()
        if i >= 11: b0 -= 57344
        for q in range(3):
            a.ds(f'ds_read_b64_tr_b16 {vr(da+4*q,2)}, v{ad} offset:{b0+ro+64*q}', [ad], R(da+4*q, 2))
            a.ds(f'ds_read_b64_tr_b16 {vr(da+4*q+2,2)}, v{ad} offset:{b0+ro+64*q+3584}', [ad], R(da+4*q+2, 2))
        if xt:
            a.ds(f'ds_read_b64_tr_b16 {vr(da+12,2)}, v{ad} offset:{b0}', [ad], R(da+12, 2))
            a.ds(f'ds_read_b64_tr_b16 {vr(da+14,2)}, v{ad} offset:{b0+3584}', [ad], R(da+14, 2))
    dnn_reads.shift = lambda: V(f'v_add_u32 v{V_DAADDR}, 57344, v{V_DAADDR}', [V_DAADDR], [V_DAADDR])
    def dnn_mfma(i, xt):
        da = DAB[i % NDB]; db = DBB[i % NDB]
        for q in range(4 if xt else 3): a.mfma('v_mfma_f32_16x16x32_bf16', DACC+4*q, da+4*q, db, DACC+4*q, 4, 4)
    epi_n = [0]
    def dnn_epilogue():
        e = epi_n[0]; epi_n[0] += 1
        K1 = -2.0 * 1.4426950408889634 * 0.7978845608028654
        K2 = K1 * 0.044715
        acc = DB; W2T = [DB + 2, t[2], t[4], t[6]]
        S(f's_mov_b32 s{S_K2}, {fb(K2)}')
        V(f'v_mov_b32 v{DB+1}, {fb(K1)}', [], [DB+1])
        V(f'v_mov_b32 v{acc}, 0', [], [acc])
        offs = [64, 128, 192, 0]
        for q in range(4):
            a.ds(f'ds_read_b64 {vr(W2T[q],2)}, v{V_BWADDR} offset:{832+offs[q]}', [V_BWADDR], R(W2T[q], 2))
        def grp(qs):
            xs = [DACC + 4*q + r for q in qs for r in range(4)]
            ts = [DA + 4*q + r for q in qs for r in range(4)]
            for x, tt in zip(xs, ts): V(f'v_mul_f32 v{tt}, v{x}, v{x}', [x], [tt])
            for x, tt in zip(xs, ts): V(f'v_fma_f32 v{tt}, v{tt}, s{S_K2}, v{DB+1}', [tt, DB+1], [tt])
            for x, tt in zip(xs, ts): V(f'v_mul_f32 v{tt}, v{tt}, v{x}', [tt, x], [tt])
            for x, tt in zip(xs, ts): V(f'v_exp_f32 v{tt}, v{tt}', [tt], [tt], trans=True)
            for x, tt in zip(xs, ts): V(f'v_add_f32 v{tt}, 1.0, v{tt}', [tt], [tt])
            for x, tt in zip(xs, ts): V(f'v_rcp_f32 v{tt}, v{tt}', [tt], [tt], trans=True)
            for x, tt in zip(xs, ts): V(f'v_mul_f32 v{tt}, v{tt}, v{x}', [tt, x], [tt])
            for q in qs:
                w = W2T[q]; x0_ = DACC + 4*q
                V(f'v_lshlrev_b32 v{x0_}, 16, v{w}', [w], [x0_])
                V(f'v_and_b32 v{x0_+1}, 0xffff0000, v{w}', [w], [x0_+1])
                V(f'v_lshlrev_b32 v{x0_+2}, 16, v{w+1}', [w+1], [x0_+2])
                V(f'v_and_b32 v{x0_+3}, 0xffff0000, v{w+1}', [w+1], [x0_+3])
            for x, tt in zip(xs, ts): V(f'v_fmac_f32 v{acc}, v{tt}, v{x}', [acc, tt, x], [acc])
        grp([0, 1, 2])
        S(f's_cmp_eq_u32 s{S_XT}, 0')
        a.raw(f's_cbranch_scc1 L_dq4_{e}', kind='branch')
        grp([3])
        a.nop(2)
        a.label(f'L_dq4_{e}')
        for op in ('v_permlane16_swap_b32', 'v_permlane32_swap_b32'):
            V(f'v_mov_b32 v{DB+1}, v{acc}', [acc], [DB+1])
            V(f'{op} v{acc}, v{DB+1}', [acc, DB+1], [acc, DB+1], permlane=True)
            V(f'v_add_f32 v{acc}, v{acc}, v{DB+1}', [acc, DB+1], [acc])
        V(f'v_lshlrev_b32 v{t[0]}, 2, v{V_LANE}', [V_LANE], [t[0]])
        S(f's_lshl_b32 s{S_T0}, s{S_WAVE}, 6'); S(f's_add_u32 s{S_T0}, s{S_T0}, {PDL}')
        V(f'v_add_u32 v{t[0]}, s{S_T0}, v{t[0]}', [t[0]], [t[0]])
        V(f'v_mov_b32 v{t[1]}, 1', [], [t[1]])
        execn(16)
        a.ds(f'ds_write_b32 v{t[0]}, v{acc}', [t[0], acc])
        execn(1)
        a.ds(f'ds_add_u32 v{V_SYNC}, v{t[1]} offset:4', [V_SYNC, t[1]])
        fullexec()
        a.wait_lds_all()
    def u5_ops():
        ops = []
        def rd():
            V(f'v_add_u32 v{t[0]}, {V5F}, v{V_L16}', [V_L16], [t[0]])
            for k in range(4):
                a.ds(f'ds_read_b128 {vr(UA+4*k,4)}, v{t[0]} offset:{1024*k}', [t[0]], R(UA+4*k, 4))
            for k in range(4):
                a.ds(f'ds_read_b128 {vr(G+4*k,4)}, v{V_PWADDR} offset:{POOLW-EWT+128*4+16*k}', [V_PWADDR], R(G+4*k, 4))
        ops.append(rd)
        for k in range(4):
            def rb(k=k):
                for e in range(4 if k < 3 else 1):
                    a.ds(f'ds_read_b32 v{DB+e}, v{V_TRADDR} offset:{128*(4*k+e)}', [V_TRADDR], [DB+e])
            ops.append(rb)
            ops += [lambda: None] * 4
            if k == 3:
                def zz():
                    for r in (1, 2, 3): V(f'v_mov_b32 v{DB+r}, 0', [], [DB+r])
                ops.append(zz)
            ops.append(lambda k=k: a.mfma('v_mfma_f32_32x32x16_bf16', G, UA+4*k, DB, G, 8, 16))
            ops.append(lambda: None)
        return ops

    def boundary_ops(l):
        ops = []
        s_ = ZB[2]; mx = ZB[2]+1; my = ZB[2]+2
        W = PW if l < 4 else G
        for r in range(13):
            ops.append(lambda r=r: V(f'v_ldexp_f32 v{D+r}, v{D+r}, v{EW+r}', [D+r, EW+r], [D+r]))
        if l < 4:
            ops.append(lambda: V(f'v_max3_f32 v{mx}, |v{D}|, |v{D+1}|, |v{D+2}|', R(D, 3), [mx]))
            for r in range(3, 13, 2):
                ops.append(lambda r=r: V(f'v_max3_f32 v{mx}, |v{D+r}|, |v{D+r+1}|, v{mx}', [D+r, D+r+1, mx], [mx]))
            ops.append(lambda: V(f'v_mov_b32 v{my}, v{mx}', [mx], [my]))
        ops.append(lambda: V(f'v_mul_f32 v{s_}, v{D}, v{W}', [D, W], [s_]))
        ops.append(lambda: V(f'v_fmac_f32 v{s_}, v{D+1}, v{W+1}', [s_, D+1, W+1], [s_]))
        if l < 4:
            ops.append(lambda: V(f'v_permlane32_swap_b32 v{mx}, v{my}', [mx, my], [mx, my], permlane=True))
        ops.append(lambda: V(f'v_fmac_f32 v{s_}, v{D+2}, v{W+2}', [s_, D+2, W+2], [s_]))
        if l < 4:
            ops.append(lambda: V(f'v_max_f32 v{mx}, v{mx}, v{my}', [mx, my], [mx]))
            ops.append(lambda: V(f'v_frexp_exp_i32_f32 v{mx}, v{mx}', [mx], [mx]))
            ops.append(lambda: V(f'v_sub_u32 v{V_SH}, 8, v{mx}', [mx], [V_SH]))
        for r in range(3, 13):
            ops.append(lambda r=r: V(f'v_fmac_f32 v{s_}, v{D+r}, v{W+r}', [s_, D+r, W+r], [s_]))
        if l < 4:
            for r in range(13):
                ops.append(lambda r=r: V(f'v_ldexp_f32 v{D+r}, v{D+r}, v{V_SH}', [D+r, V_SH], [D+r]))
            for q in range(7):
                hi = D + 2*q + 1 if q < 6 else D + 12
                ops.append(lambda q=q, hi=hi: V(f'v_cvt_pk_f16_f32 v{XQ+q}, v{D+2*q}, v{hi}', [D+2*q, hi], [XQ+q]))
        ops.append(lambda: V(f'v_ldexp_f32 v{s_}, v{s_}, v{V_E}', [s_, V_E], [s_]))
        ops.append(lambda: V(f'v_add_f32 v{V_ACC}, v{V_ACC}, v{s_}', [V_ACC, s_], [V_ACC]))
        if l < 4:
            ops.append(lambda: V(f'v_sub_u32 v{V_E}, v{V_E}, v{V_SH}', [V_E, V_SH], [V_E]))
            ops.append(lambda: V(f'v_add_u32 v{V_E}, v{V_E}, v{V_EX}', [V_E, V_EX], [V_E]))
        if l == 0:
            ops.append(lambda: V(f'v_mov_b32 v{ZL+1}, 0', [], [ZL+1]))
            ops.append(lambda: V(f'v_mov_b32 v{ZL+2}, 0', [], [ZL+2]))
        return ops
    NK = [23, 43, 43, 43, 43]
    ISLOT = [None, 0, 1, 2, 3]
    def a_read(l, k):
        b = AB[k % NAB]
        if l == 0: ad = V_AADDR0; off = 16 * k
        else:
            sl = ISLOT[l]; ad = V_AADDR[sl >> 1]; off = IMG * (sl & 1) + 16 * k
        a.ds(f'ds_read_b128 {vr(b,4)}, v{ad} offset:{off}', [ad], R(b, 4))
    PAIRS0 = [(u, v) for u in range(13) for v in range(u, 13)]
    def zbuf(l, k):
        if k == NK[l] - 1: return ZL
        return ZB[k % 3]
    def z_ops(l, k):
        ops = []
        zb = zbuf(l, k)
        for e in range(4):
            q = 4 * k + e
            if l == 0:
                if q >= 91: break
                i, v = PAIRS0[q]; src = (QH if i == v else XQ) + (i >> 1)
            else:
                if q >= 169: break
                i, v = divmod(q, 13); src = XQ + (i >> 1)
            o = i & 1
            ops.append(lambda zb=zb, e=e, src=src, v=v, o=o: V(f'v_pk_mul_f16 v{zb+e}, v{src}, v{P16+v} op_sel:[{o},0] op_sel_hi:[{o},1]', [src, P16+v], [zb+e]))
        return ops
    def pwrd(l):
        for base, off in ((PW, POOLW - EWT + 128 * l), (EW, 128 * l)):
            if base == PW and l == 4: continue
            for k in range(3):
                a.ds(f'ds_read_b128 {vr(base+4*k,4)}, v{V_PWADDR} offset:{off+16*k}', [V_PWADDR], R(base+4*k, 4))
            a.ds(f'ds_read_b32 v{base+12}, v{V_PWADDR} offset:{off+48}', [V_PWADDR], [base+12])

    cnt_check(1)
    stamp('tab')
    OX = 132
    V(f'v_bfe_u32 v{t[0]}, v{V_LANE}, 4, 1', [V_LANE], [t[0]])
    V(f'v_mul_u32_u24 v{t[0]}, 104, v{t[0]}', [t[0]], [t[0]])
    V(f'v_and_b32 v{t[1]}, 12, v{V_LANE}', [V_LANE], [t[1]])
    V(f'v_add_u32 v{t[0]}, v{t[0]}, v{t[1]}', [t[0], t[1]], [t[0]])
    S(f's_mul_i32 s{S_T0}, s{S_WAVE}, 208'); S(f's_add_u32 s{S_T0}, s{S_T0}, {IDXB}')
    V(f'v_add_u32 v{t[0]}, s{S_T0}, v{t[0]}', [t[0]], [t[0]])
    V(f'v_and_b32 v{t[1]}, 15, v{V_LANE}', [V_LANE], [t[1]])
    V(f'v_mul_u32_u24 v{t[1]}, 104, v{t[1]}', [t[1]], [t[1]])
    S(f's_and_b32 s{S_T0}, s{S_WAVE}, 3'); S(f's_mul_i32 s{S_T0}, s{S_T0}, 1664'); S(f's_add_u32 s{S_T0}, s{S_T0}, {IDXB}')
    S(f's_add_u32 s{S_T2}, s{S_T0}, 104'); S(f's_lshl_b32 s{S_KO}, s{S_ROT}, 3'); S(f's_add_u32 s{S_KO}, s{S_KO}, s{S_T0}')
    for i in range(13):
        tt = t[2 + (i % 4)]
        V(f'v_add_u32 v{tt}, s{S_KO}, v{t[1]}', [t[1]], [tt])
        a.ds(f'ds_read_b64 {vr(IXR+2*i,2)}, v{tt}', [tt], R(IXR+2*i, 2))
        if i < 12:
            S(f's_add_u32 s{S_KO}, s{S_KO}, 8'); S(f's_cmp_eq_u32 s{S_KO}, s{S_T2}'); S(f's_cselect_b32 s{S_KO}, s{S_T0}, s{S_KO}')
    for q in range(7): a.ds(f'ds_read_b32 v{OX+q}, v{t[0]} offset:{16*q}', [t[0]], [OX+q])
    BT = 140
    for q, off in enumerate([64, 128, 192, 0]):
        a.ds(f'ds_read_b64 {vr(BT+2*q,2)}, v{V_BWADDR} offset:{off}', [V_BWADDR], R(BT+2*q, 2))
    V(f'v_and_b32 v{t[6]}, 3, v{V_LANE}', [V_LANE], [t[6]])
    V(f'v_lshlrev_b32 v{t[6]}, 3, v{t[6]}', [t[6]], [t[6]])
    V(f'v_add_u32 v{t[6]}, {TAB}, v{t[6]}', [t[6]], [t[6]])
    V(f'v_lshrrev_b32 v{t[7]}, 4, v{V_LANE}', [V_LANE], [t[7]])
    V(f'v_lshlrev_b32 v{t[7]}, 3, v{t[7]}', [t[7]], [t[7]])
    V(f'v_add_u32 v{t[7]}, {TAB}, v{t[7]}', [t[7]], [t[7]])
    for f in range(26):
        V(f'v_lshl_add_u32 v{IXR+f}, v{IXR+f}, 5, v{t[7]}', [IXR+f, t[7]], [IXR+f])
    for q in range(7):
        V(f'v_min_u32 v{OX+q}, 0x3e7, v{OX+q}', [OX+q], [OX+q])
        V(f'v_lshl_add_u32 v{OX+q}, v{OX+q}, 5, v{t[6]}', [OX+q, t[6]], [OX+q])
        a.ds(f'ds_read_b64_tr_b16 {vr(PBT+2*q,2)}, v{OX+q}', [OX+q], R(PBT+2*q, 2))
    for q in range(4):
        V(f'v_lshlrev_b32 v{DACC+4*q}, 16, v{BT+2*q}', [BT+2*q], [DACC+4*q])
        V(f'v_and_b32 v{DACC+4*q+1}, 0xffff0000, v{BT+2*q}', [BT+2*q], [DACC+4*q+1])
        V(f'v_lshlrev_b32 v{DACC+4*q+2}, 16, v{BT+2*q+1}', [BT+2*q+1], [DACC+4*q+2])
        V(f'v_and_b32 v{DACC+4*q+3}, 0xffff0000, v{BT+2*q+1}', [BT+2*q+1], [DACC+4*q+3])
    stamp('x0')
    a.wait_lds_all()
    import copy
    def dnn_loop(xt):
        x0o = x0_ops()
        CHK = {0: 3, 2: 5, 4: 7, 6: 9, 8: 11, 10: 13, 12: 14}
        def rd(i):
            if i in CHK: cnt_check(CHK[i])
            dnn_reads(i, xt)
        if xt:
            V(f'v_subrev_u32 v{V_DAADDR}, 32, v{V_DAADDR}', [V_DAADDR], [V_DAADDR])
            V(f'v_subrev_u32 v{V_DBK}, 32, v{V_DBK}', [V_DBK], [V_DBK])
        rd(0); rd(1)
        for i in range(13):
            a.comment(f'======== DNN step {i} xt={xt}')
            if debug == 2:
                a.raw(f's_memtime s[{4+2*(i%7)}:{5+2*(i%7)}]')
                a.lds.append(dict(dst=set(), maybe=True, id=-100-i))
                if i in (6, 12):
                    a.wait_lds_all()
                    for j in range(7 if i == 6 else 6): a.valu(f'v_writelane_b32 v{V_STAMP}, s{4+2*j}, {13 + j + (0 if i == 6 else 7)}', [], [V_STAMP])
            if i + 2 < 13: rd(i + 2)
            if i < len(x0o): x0o[i]()
            dnn_mfma(i, xt)
            if i in (2, 7, 12): release({2: 1, 7: 2, 12: 3}[i])
        a.wait_lds_all(); a.nop(8)
    S(f's_cmp_eq_u32 s{S_XT}, 0')
    a.raw('s_cbranch_scc1 L_dnn0', kind='branch')
    dnn_loop(1)
    a.raw('s_branch L_dnnend', kind='branch')
    a.label('L_dnn0')
    dnn_loop(0)
    a.label('L_dnnend')
    for q in range(7):
        V(f'v_pk_mul_f16 v{QH+q}, v{XQ+q}, s{S_HALF}', [XQ+q], [QH+q])
    addr_setup()
    V(f'v_lshrrev_b32 v{t[1]}, 5, v{V_LANE}', [V_LANE], [t[1]])
    V(f'v_lshlrev_b32 v{t[1]}, 6, v{t[1]}', [t[1]], [t[1]])
    V(f'v_add_u32 v{V_PWADDR}, {EWT}, v{t[1]}', [t[1]], [V_PWADDR])
    V(f'v_mov_b32 v{ZL+3}, 0', [], [ZL+3])
    stamp('dnn')
    if REP:
        a.wait_lds_all(); a.raw('s_memtime s[96:97]'); a.raw('s_memrealtime s[98:99]'); a.raw('s_waitcnt lgkmcnt(0)', kind='wait')
    if SPLITEPI:
        S(f's_cmp_ge_u32 s{S_WAVE}, 4')
        a.wait_lds_all(); a.nop(8)
        a.cond_begin('s_cbranch_scc1 L_noepiB', 'L_noepiB')
        dnn_epilogue()
        a.nop(2)
        a.cond_end()
    else: dnn_epilogue()
    for l in range(NL):
        a.comment(f'======== layer {l}')
        stamp(f'L{l}')
        rdy_check(l + 1, 8)
        for k in range(PFD): a_read(l, k)
        if l == 4:
            rdy_check(6, 8)
            u5 = u5_ops(); u5[0]()
            fq = u5[1:]
        else: fq = []
        for o in z_ops(l, 0): o()
        for o in z_ops(l, 1): o()
        if PRIO: a.raw('s_setprio 1')
        for k in range(NK[l]):
            if k == NK[l] - 8: pwrd(l)
            zo = z_ops(l, k + 2) if k + 2 < NK[l] else []
            if k % 2 == 0 and k + 1 < NK[l]: a._wait_regs(R(AB[(k + 1) % NAB], 4))
            a.mfma('v_mfma_f32_32x32x16_f16', D, AB[k % NAB], zbuf(l, k), D if k > 0 else None, 8, 16)
            if k + PFD < NK[l]: a_read(l, k + PFD)
            for o in zo: o()
            if PRIO and k == 2: a.raw('s_setprio 2')
            if KNOP: a.nop(KNOP)
            if fq and k >= 4: fq.pop(0)()
        assert not fq
        if l == 0: release(4)
        if l < 4:
            if PRIO: a.raw('s_setprio 0')
            for o in boundary_ops(l): o()
        if l == 0 and SPLITEPI:
            S(f's_cmp_lt_u32 s{S_WAVE}, 4')
            a.wait_lds_all()
            a.cond_begin('s_cbranch_scc1 L_noepiA', 'L_noepiA')
            dnn_epilogue()
            a.nop(2)
            a.cond_end()
    if XP == 'idle':
        for _ in range(3): a.raw('s_sleep 16')
    if XP == 'idle6':
        for _ in range(6): a.raw('s_sleep 16')
    if XP in ('mz', 'mr'):
        a.wait_lds_all(); a.nop(16)
        if XP == 'mz':
            for r in range(72, 88): V(f'v_mov_b32 v{r}, 0', [], [r])
        for k in range(47):
            a.mfma('v_mfma_f32_32x32x16_f16', 132, 72 + 4*(k % 4), 16 + 4*(k % 3) if XP == 'mr' else 72, 132 if k else None, 8, 16)
    if XP == 'mr16':
        a.wait_lds_all(); a.nop(16)
        for k in range(94):
            a.mfma('v_mfma_f32_16x16x32_f16', 132 + 4*(k % 4), 72 + 4*(k % 4), 16 + 4*(k % 3), (132 + 4*(k % 4)) if k > 3 else None, 4, 4)
    if XP == 'mrb':
        a.wait_lds_all(); a.nop(16)
        for k in range(47):
            a.mfma('v_mfma_f32_32x32x16_bf16', 132, 72 + 4*(k % 4), 16 + 4*(k % 3), 132 if k else None, 8, 16)
    if XP == 'mrv':
        a.wait_lds_all(); a.nop(16)
        for k in range(47):
            a.mfma('v_mfma_f32_32x32x16_f16', 132, 72 + 4*(k % 4), 16 + 4*(k % 3), 132 if k else None, 8, 16)
            for e in range(8): V(f'v_pk_mul_f16 v{56 + e}, v{16 + (k+e) % 13}, v{32 + e % 7}', [16 + (k+e) % 13, 32 + e % 7], [56 + e])
    if XP == 'mrslow':
        a.wait_lds_all(); a.nop(16)
        for k in range(47):
            a.mfma('v_mfma_f32_32x32x16_f16', 132, 72 + 4*(k % 4), 16 + 4*(k % 3), 132 if k else None, 8, 16)
            a.nop(30)
    if XP == 'lds':
        for k in range(376): a.ds(f'ds_read_b128 v[{72+4*(k%4)}:{75+4*(k%4)}], v{V_AADDR[0]} offset:{16*(k%43)}', [V_AADDR[0]], [])
        a.wait_lds_all()
    if XP == 'valu':
        for k in range(376): V(f'v_pk_mul_f16 v{72 + k % 8}, v{16 + k % 13}, v{32 + k % 7}', [16 + k % 13, 32 + k % 7], [72 + k % 8])
    stamp('fin')
    rdy_check(7, 8)
    V(f'v_bfe_u32 v{t[5]}, v{V_LANE}, 4, 1', [V_LANE], [t[5]])
    V(f'v_and_b32 v{t[6]}, 15, v{V_LANE}', [V_LANE], [t[6]])
    V(f'v_lshl_add_u32 v{t[5]}, v{t[6]}, 4, v{t[5]}', [t[5], t[6]], [t[5]])
    V(f'v_lshlrev_b32 v{t[5]}, 2, v{t[5]}', [t[5]], [t[5]])
    S(f's_lshl_b32 s{S_T0}, s{S_WAVE}, 3'); S(f's_add_u32 s{S_T0}, s{S_T0}, {PD}')
    V(f'v_add_u32 v{t[5]}, s{S_T0}, v{t[5]}', [t[5]], [t[5]])
    V(f'v_and_b32 v{t[6]}, 40, v{V_LANE}', [V_LANE], [t[6]])
    V(f'v_cmp_eq_u32 vcc, 0, v{t[6]}', [t[6]], [], swrites=['vcc'])
    V(f'v_mov_b32 v{t[6]}, 0x30000', [], [t[6]])
    V(f'v_cndmask_b32 v{t[5]}, v{t[6]}, v{t[5]}, vcc', [t[5], t[6]], [t[5]], sreads=['vcc'])
    a.ds(f'ds_read_b32 v{t[6]}, v{t[5]}', [t[5]], [t[6]])
    if NL == 5:
        for o in boundary_ops(4): o()
    A_ = V_ACC
    V(f'v_add_f32 v{A_}, v{A_}, v{t[6]}', [A_, t[6]], [A_])
    for d in (8, 4, 2, 1):
        V(f'v_add_f32_dpp v{A_}, v{A_}, v{A_} row_ror:{d} row_mask:0xf bank_mask:0xf', [A_], [A_], dpp=True)
    V(f'v_mov_b32 v{t[5]}, v{A_}', [A_], [t[5]])
    V(f'v_permlane32_swap_b32 v{A_}, v{t[5]}', [A_, t[5]], [A_, t[5]], permlane=True)
    V(f'v_add_f32 v{A_}, v{A_}, v{t[5]}', [A_, t[5]], [A_])
    V(f'v_cvt_pk_bf16_f32 v{A_}, v{A_}, v{A_}', [A_], [A_])
    V(f'v_lshrrev_b32 v{t[5]}, 3, v{V_LANE}', [V_LANE], [t[5]])
    S(f's_lshl_b32 s{S_T0}, s2, 5'); S(f's_lshl_b32 s{S_T1}, s{S_WAVE}, 2'); S(f's_add_u32 s{S_T0}, s{S_T0}, s{S_T1}')
    S('s_mov_b64 exec, 0x10001')
    a.vmem(f'buffer_store_short v{A_}, v{t[5]}, s[{S_OUT}:{S_OUT+3}], s{S_T0} offen', [A_, t[5]], [])
    if REP:
        a.raw('s_memtime s[100:101]'); a.raw('s_memrealtime s[4:5]'); a.raw('s_waitcnt lgkmcnt(0)', kind='wait')
        S(f's_cmp_lg_u32 s{S_WAVE}, 4'); a.raw('s_cbranch_scc1 L_norep', kind='branch')
        S('s_and_b32 s6, s2, 0xfc'); S('s_cmp_lg_u32 s6, 100'); a.raw('s_cbranch_scc1 L_norep', kind='branch')
        S('s_sub_u32 s96, s96, s92'); S('s_sub_u32 s98, s98, s94'); S('s_sub_u32 s100, s100, s92'); S('s_sub_u32 s4, s4, s94')
        V('v_mov_b32 v16, s96', [], [16]); V('v_mov_b32 v17, s98', [], [17]); V('v_mov_b32 v18, s100', [], [18]); V('v_mov_b32 v19, s4', [], [19])
        S('s_and_b32 s6, s2, 3'); S('s_lshl_b32 s6, s6, 4'); V('v_mov_b32 v20, s6', [], [20])
        S('s_mov_b64 exec, 1')
        a.vmem(f'buffer_store_dwordx4 v[16:19], v20, s[{S_DBGF}:{S_DBGF+3}], 0 offen', [16,17,18,19,20], [])
        a.label('L_norep')
    dbg_out()
    a.raw('s_endpgm')

    a.label('L_loader')
    a.lds = []; a.vm = []; a.valu_w = {}; a.mfma_w = {}; a.mfma_c = {}; a.trans_w = {}; a.store_src = {}; a.opsel_w = {}
    stamp_n[0] = 1
    names_c = a.stamp_names; a.stamp_names = []
    LF = 18; LFA = 19; LSY = 20; LDA = 21; LDV = 22; LT = 23; WO = 32; PF = 40; LN = 24; LG = 64
    if TOUCH:
        V(f'v_mov_b32 v{t[0]}, 0', [], [t[0]])
        S('s_mov_b64 exec, 1')
        S(f's_mov_b32 s{S_T0}, {WS_INB - 256}')
        a.vmem(f'buffer_load_dword v{PF}, v{t[0]}, s[{S_WS}:{S_WS+3}], s{S_T0} offen', [t[0]], [PF])
        a.vmem(f'buffer_load_dword v{PF+1}, v{t[0]}, s[{S_DBGF}:{S_DBGF+3}], 0 offen sc1', [t[0]], [PF+1])
        a.vmem(f'buffer_load_dword v{PF+2}, v{t[0]}, s[{S_OUT}:{S_OUT+3}], 0 offen', [t[0]], [PF+2])
        a.vmem(f'buffer_load_dword v{PF+3}, v{t[0]}, s[{S_W1}:{S_W1+3}], 0 offen', [t[0]], [PF+3])
        a.vmem(f'buffer_load_dword v{PF+4}, v{t[0]}, s[{S_TAB}:{S_TAB+3}], 0 offen', [t[0]], [PF+4])
        a.vmem(f'buffer_load_dword v{PF+5}, v{t[0]}, s[{S_B1}:{S_B1+3}], 0 offen', [t[0]], [PF+5])
        a.vmem(f'buffer_load_dword v{PF+6}, v{t[0]}, s[{S_W2}:{S_W2+3}], 0 offen', [t[0]], [PF+6])
        fullexec()
    S(f's_movk_i32 s{S_T0}, 4682')
    for k in range(7):
        V(f'v_add_u32 v{t[0]}, {64*k}, v{V_LANE}', [V_LANE], [t[0]])
        V(f'v_mul_u32_u24 v{t[1]}, s{S_T0}, v{t[0]}', [t[0]], [t[1]])
        V(f'v_lshrrev_b32 v{t[1]}, 16, v{t[1]}', [t[1]], [t[1]])
        V(f'v_mul_u32_u24 v{t[2]}, {832 - 224}, v{t[1]}', [t[1]], [t[2]])
        V(f'v_lshl_add_u32 v{WO+k}, v{t[0]}, 4, v{t[2]}', [t[0], t[2]], [WO+k])
    V(f'v_lshlrev_b32 v{LFA}, 2, v{V_LANE}', [V_LANE], [LFA])
    V(f'v_mov_b32 v{LSY}, {SYNC}', [], [LSY])
    V(f'v_add_u32 v{LDA}, {SYNC}, v{LFA}', [LFA], [LDA])
    V(f'v_mov_b32 v{LT}, 0', [], [LT])
    execn(16)
    a.ds(f'ds_write_b32 v{LDA}, v{LT}', [LDA, LT])
    fullexec()
    V(f'v_and_b32 v{LDA}, 28, v{LFA}', [LFA], [LDA])
    V(f'v_add_u32 v{LDA}, {SYNC + 32}, v{LDA}', [LDA], [LDA])
    S(f's_mul_i32 s{S_KO}, s{S_ROT}, 26624'); S(f's_lshl_b32 s{S_T0}, s{S_T0L}, 5'); S(f's_add_u32 s{S_KO}, s{S_KO}, s{S_T0}')
    S(f's_add_u32 s{S_T3}, s{S_T0}, {13*26624}')
    def l_w1(i):
        for k in range(7):
            S(f's_mov_b32 m0, {CADDR[i] + 1024*k}', m0=True)
            a.vmem(f'buffer_load_dwordx4 v{WO+k}, s[{S_W1}:{S_W1+3}], s{S_KO} offen lds', [WO+k], [], tag=('c', i), dma=True)
        S(f's_add_u32 s{S_KO}, s{S_KO}, 26624'); S(f's_cmp_eq_u32 s{S_KO}, s{S_T3}'); S(f's_cselect_b32 s{S_T1}, {13*26624}, 0'); S(f's_sub_u32 s{S_KO}, s{S_KO}, s{S_T1}')
    def l_lin(tag, srd, src, dst, nbytes, sc=''):
        n = (nbytes + 1023) // 1024
        for pc in range(n):
            if pc % 4 == 0:
                S(f's_mov_b32 m0, {dst + 1024*pc}', m0=True)
                S(f's_mov_b32 s{S_T2}, {src + 1024*pc}')
            lanes = min(64, (nbytes - 1024*pc) // 16)
            if lanes < 64: execn(lanes)
            a.vmem(f'buffer_load_dwordx4 v{V_L16}, s[{srd}:{srd+3}], s{S_T2} offen offset:{1024*(pc%4)} {sc} lds', [V_L16], [], tag=tag, dma=True)
            if lanes < 64: fullexec()
    def publish(n, off):
        a.raw(f'v_mov_b32 v{LT}, {n}', kind='valu')
        a.raw(f'ds_write_b32 v{LSY}, v{LT} offset:{off}', kind='ds')
    def l_flag(lo, hi):
        mk = ((1 << hi) - 1) & ~((1 << lo) - 1)
        S(f's_mov_b64 exec, 0x{mk:x}')
        a.vmem(f'buffer_load_dword v{LF}, v{LFA}, s[{S_DBGF}:{S_DBGF+3}], 0 offen offset:128 sc1', [LFA], [LF])
        fullexec()
    def l_poll(lo, hi, lab, pre=None):
        mk = ((1 << hi) - 1) & ~((1 << lo) - 1)
        a._wait_regs([LF])
        S(f's_mov_b64 exec, 0x{mk:x}')
        S(f's_mov_b32 s{S_T0}, 0')
        a.label(f'L_poll{lab}')
        a.raw(f'v_cmp_ne_u32 vcc, 1, v{LF}', kind='valu')
        a.raw(f's_cbranch_vccz L_polldone{lab}', kind='branch')
        a.raw(f's_sleep {PSLEEP}')
        a.raw(f'buffer_load_dword v{LF}, v{LFA}, s[{S_DBGF}:{S_DBGF+3}], 0 offen offset:128 sc1', kind='vmem')
        S(f's_add_u32 s{S_T0}, s{S_T0}, 1')
        S(f's_cmp_lt_u32 s{S_T0}, 0x40000')
        a.raw('s_waitcnt vmcnt(0)', kind='wait')
        if pre: publish(pre, 0)
        a.raw(f's_cbranch_scc1 L_poll{lab}', kind='branch')
        a.label(f'L_polldone{lab}')
        fullexec()
    def l_wait_lds(addr, off, stage, lab):
        a.raw(f's_mov_b32 s{S_T1}, 0x100000', kind='salu')
        a.label(f'L_dw{lab}')
        a.raw(f'ds_read_b32 v{LDV}, v{addr} offset:{off}', kind='ds')
        a.raw(f's_sub_u32 s{S_T1}, s{S_T1}, 1', kind='salu')
        a.raw(f's_cbranch_scc1 L_dn{lab}', kind='branch')
        a.raw('s_waitcnt lgkmcnt(0)', kind='wait')
        a.raw(f'v_cmp_gt_u32 vcc, {stage}, v{LDV}', kind='valu')
        a.raw(f's_cbranch_vccz L_dn{lab}', kind='branch')
        a.raw('s_sleep 1')
        a.raw(f's_branch L_dw{lab}', kind='branch')
        a.label(f'L_dn{lab}')
    for aa in range(4):
        S(f's_add_u32 s{S_T0}, s{S_Q}, {aa}'); S(f's_and_b32 s{S_T0}, s{S_T0}, 3'); S(f's_lshl_b32 s{S_T0}, s{S_T0}, 3'); S(f's_or_b32 s{S_T0}, s{S_T0}, s{S_CB}')
        S(f's_mul_i32 s{S_T0}, s{S_T0}, 1664')
        S(f's_mov_b32 m0, {IDXB + 1664*aa}', m0=True)
        a.vmem(f'buffer_load_dwordx4 v{V_L16}, s[{S_IDX}:{S_IDX+3}], s{S_T0} offen lds', [V_L16], [], tag='tab', dma=True)
        execn(40)
        a.vmem(f'buffer_load_dwordx4 v{V_L16}, s[{S_IDX}:{S_IDX+3}], s{S_T0} offen offset:1024 lds', [V_L16], [], tag='tab', dma=True)
        fullexec()
    a.raw('s_waitcnt lgkmcnt(0)', kind='wait')
    l_lin('tab', S_TAB, 0, TAB, 32000)
    l_lin('tab', S_B1, 0, BW, 832); l_lin('tab', S_W2, 0, BW + 832, 832)
    for i in range(13):
        l_w1(i)
        if i == 2: a.wait_vm_tag('tab'); publish(1, 0)
        if i == 0 or i == LBAR:
            S(f's_cmp_{"lt" if i == 0 else "ge"}_u32 s{S_PID}, {NP2}')
            a.raw(f's_cbranch_scc1 L_lb{i}', kind='branch')
            rawbar()
            a.label(f'L_lb{i}')
        if i >= 5 and i % 2 == 1:
            a.wait_vm_tag(('c', i - 4)); publish(i - 2, 0)
    l_flag(0, NP1)
    stamp('w1iss')
    for i in (9, 11, 12):
        a.wait_vm_tag(('c', i)); publish(i + 2, 0)
    l_poll(0, NP1, 'a'); stamp('polled')
    l_wait_lds(LDA, 0, 1, 'a')
    l_lin(('i', 0), S_WS, WS_IMG0, I0B, IMG0, 'sc1')
    l_lin(('i', 0), S_WS, WS_EWT, EWT, 640, 'sc1')
    V(f'v_mov_b32 v{t[0]}, {WS_EWT + (32+15)*4}', [], [t[0]])
    a.vmem(f'buffer_load_dword v{LN}, v{t[0]}, s[{S_WS}:{S_WS+3}], 0 offen sc1', [t[0]], [LN])
    S(f's_lshr_b32 s{S_T0}, s2, 3'); S(f's_mul_i32 s{S_T0}, s{S_T0}, 4480'); S(f's_add_u32 s{S_T0}, s{S_T0}, {WS_IMG[1]}')
    for q in range(5):
        if q == 4: S(f's_add_u32 s{S_T0}, s{S_T0}, 4096'); execn(24)
        a.vmem(f'buffer_load_dwordx4 {vr(PF+4*q,4)}, v{V_L16}, s[{S_WS}:{S_WS+3}], s{S_T0} offen offset:{1024*(q%4)} sc1', [V_L16], R(PF+4*q, 4))
    fullexec()
    a.wait_vm_tag(('i', 0)); publish(1, 8)
    l_wait_lds(LDA, 0, 2, 'b')
    l_lin(('i', 1), S_WS, WS_IMG[1], U[0], IMG, 'sc1')
    l_wait_lds(LDA, 0, 3, 'c'); stamp('dnndone')
    l_lin(('i', 2), S_WS, WS_IMG[2], U[1], IMG, 'sc1')
    a.wait_vm_tag(('i', 1)); publish(2, 8); stamp('i1')
    l_lin(('i', 3), S_WS, WS_IMG[3], U[2], IMG, 'sc1')
    a.wait_vm_tag(('i', 2)); publish(3, 8)
    l_flag(NP1, NP2)
    l_wait_lds(LSY, 4, 8, 'd')
    V(f'v_lshlrev_b32 v{t[0]}, 3, v{V_LANE}', [V_LANE], [t[0]])
    V(f'v_add_u32 v{t[0]}, {PDL}, v{t[0]}', [t[0]], [t[0]])
    a.ds(f'ds_read_b64 {vr(LG+4,2)}, v{t[0]}', [t[0]], R(LG+4, 2))
    V(f'v_bfe_u32 v{t[1]}, v{V_LANE}, 3, 2', [V_LANE], [t[1]])
    V(f'v_add_u32 v{t[1]}, s{S_Q}, v{t[1]}', [t[1]], [t[1]])
    V(f'v_and_b32 v{t[1]}, 3, v{t[1]}', [t[1]], [t[1]])
    V(f'v_lshlrev_b32 v{t[1]}, 13, v{t[1]}', [t[1]], [t[1]])
    V(f'v_lshrrev_b32 v{t[2]}, 5, v{V_LANE}', [V_LANE], [t[2]])
    V(f'v_lshl_add_u32 v{t[1]}, v{t[2]}, 7, v{t[1]}', [t[2], t[1]], [t[1]])
    V(f'v_and_b32 v{t[2]}, 7, v{V_LANE}', [V_LANE], [t[2]])
    V(f'v_lshl_add_u32 v{t[1]}, v{t[2]}, 4, v{t[1]}', [t[2], t[1]], [t[1]])
    S(f's_lshl_b32 s{S_T0}, s{S_CB}, 10'); S(f's_lshl_b32 s{S_T1}, s{S_Q}, 8'); S(f's_add_u32 s{S_T0}, s{S_T0}, s{S_T1}'); S(f's_add_u32 s{S_T0}, s{S_T0}, {WS_INB}')
    V(f'v_mov_b32 v{LG}, v{LG+4}', [LG+4], [LG]); V(f'v_mov_b32 v{LG+1}, v{LN}', [LN], [LG+1])
    V(f'v_mov_b32 v{LG+2}, v{LG+5}', [LG+5], [LG+2]); V(f'v_mov_b32 v{LG+3}, v{LN}', [LN], [LG+3])
    a.vmem(f'buffer_store_dwordx4 {vr(LG,4)}, v{t[1]}, s[{S_WS}:{S_WS+3}], s{S_T0} offen sc1', [t[1]] + R(LG, 4), [], wide_store=R(LG, 4))
    a.wait_vm_tag(('i', 3)); publish(4, 8)
    l_wait_lds(LDA, 0, 4, 'e')
    l_lin(('i', 4), S_WS, WS_IMG[4], U[3], IMG, 'sc1')
    l_poll(NP1, NP2, 'b')
    l_lin('v5f', S_WS, WS_V5F, V5F, 4096, 'sc1')
    a.wait_vm_tag(('i', 4)); publish(5, 8)
    a.wait_vm_all(); publish(6, 8); stamp('i5')
    S(f's_lshl_b32 s{S_T2}, s2, 10'); S(f's_add_u32 s{S_T2}, s{S_T2}, {WS_INB}')
    S(f's_mov_b32 s{S_T0}, 0')
    a.label('L_inb')
    a.raw(f'buffer_load_dwordx4 {vr(LG+8,4)}, v{V_L16}, s[{S_WS}:{S_WS+3}], s{S_T2} offen sc1', kind='vmem')
    S(f's_add_u32 s{S_T0}, s{S_T0}, 1')
    a.raw('s_waitcnt vmcnt(0)', kind='wait')
    a.raw(f'v_cmp_ne_u32 vcc, v{LN}, v{LG+9}', kind='valu')
    a.raw(f'v_cmp_ne_u32 s[{S_MT}:{S_MT+1}], v{LN}, v{LG+11}', kind='valu')
    a.raw('s_nop 1', kind='nop')
    a.raw(f's_or_b64 vcc, vcc, s[{S_MT}:{S_MT+1}]', kind='salu')
    a.raw('s_cbranch_vccz L_inbok', kind='branch')
    a.raw(f's_sleep {PSLEEP}')
    S(f's_cmp_lt_u32 s{S_T0}, 0x40000')
    a.raw('s_cbranch_scc1 L_inb', kind='branch')
    a.label('L_inbok')
    V(f'v_mov_b32 v{LG+9}, v{LG+10}', [LG+10], [LG+9])
    V(f'v_lshlrev_b32 v{t[0]}, 3, v{V_LANE}', [V_LANE], [t[0]])
    V(f'v_add_u32 v{t[0]}, {PD}, v{t[0]}', [t[0]], [t[0]])
    a.ds(f'ds_write_b64 v{t[0]}, {vr(LG+8,2)}', [t[0], LG+8, LG+9])
    publish(7, 8)
    dbg_out()
    a.label('L_end')
    a.raw('s_endpgm')
    a.stamp_names = (names_c, a.stamp_names)
    return a

HEADER = open('cdna_kernels/' + NAME + '.s.ref').read().split('; Override launch geometry')[0]
def wrap(a):
    s = HEADER
    s += f'; @launch grid=(256,1,1) block=(576,1,1) lds={LDS_TOTAL}\n'
    s += '.amdgcn_target "amdgcn-amd-amdhsa--gfx950"\n.text\n'
    s += f'.globl {NAME}_kernel\n.p2align 8\n.type {NAME}_kernel,@function\n{NAME}_kernel:\n'
    s += a.text()
    s += f'''.section .rodata,"a"
.p2align 6
.amdhsa_kernel {NAME}_kernel
  .amdhsa_next_free_vgpr {NV}
  .amdhsa_next_free_sgpr 102
  .amdhsa_accum_offset {NV}
  .amdhsa_group_segment_fixed_size 0
  .amdhsa_kernarg_size 88
  .amdhsa_user_sgpr_count 2
  .amdhsa_user_sgpr_kernarg_segment_ptr 1
  .amdhsa_system_sgpr_workgroup_id_x 1
  .amdhsa_float_denorm_mode_32 3
.end_amdhsa_kernel
'''
    return s

if __name__ == '__main__':
    import argparse
    ap = argparse.ArgumentParser()
    ap.add_argument('out', nargs='?', default='cdna_kernels/' + NAME + '.s')
    ap.add_argument('--dbg', type=int, default=0)
    ap.add_argument('--prio', type=int, default=1)
    ap.add_argument('--splitepi', type=int, default=1)
    args = ap.parse_args()
    a = gen(debug=args.dbg, PRIO=args.prio, SPLITEPI=args.splitepi)
    open(args.out, 'w').write(wrap(a))
    print(a.count, 'lines', len(a.lines), a.stamp_names)
```

```python
import sys, struct
sys.path.insert(0, 'gen')
from asmfw import *

NAME = 'standalone__deep_cross_xdeepfm__recsys'
IMG = 35776; IMG0 = 19136
U = [IMG * i for i in range(4)]
CH = 7168
CADDR = [121600 + CH * i for i in range(3)] + [CH * i for i in range(10)]
TAB = 71680; IDXB = 103680; SCR = 110336
I0B = 143104 - IMG0
X16 = 143104
V5F = 156672; EWT = 160768; POOLW = 161408; BW = 162048
PDL = V5F
PD = BW
SYNC = 163712
LDS_TOTAL = 163776
WS_IMG0 = 0
WS_IMG = [None] + [19200 + IMG * i for i in range(4)]
WS_V5F = 19200 + 4 * IMG
WS_EWT = WS_V5F + 4096
WS_INB = 0x40000
WS_SIZE = WS_INB + 256 * 1024
NP1 = 17; NP2 = 21
S_IDX, S_TAB, S_WC, S_WCO, S_W1, S_B1, S_W2, S_BO, S_OUT, S_DBGF, S_WS = [24 + 4 * i for i in range(11)]
S_WAVE = 68; S_T0 = 69; S_T1 = 70; S_T2 = 71; S_T3 = 72; S_T4 = 73
S_HI = 74; S_C = 76; S_K7FFF = 77; S_K8000 = 78; S_Q = 79; S_K2 = 80; S_G = 81; S_HALF = 82
S_ROT = 83; S_MT = 84; S_PID = 86; S_CB = 87; S_XT = 88; S_T0L = 89; S_KO = 90; S_KN = 91; S_SET = 92; S_LAST = 93
SM = [4, 6, 8, 10, 12, 14, 16]
V_LANE = 1
V_T = list(range(2, 12))
V_STAMP = 12; V_E = 13; V_EX = 14; V_ACC = 15
P16 = 16; V_SH = 30; V_L16 = 31
XQ = 32; V_TRADDR = 39; D = 40
ZB = [56, 60, 64]; ZL = 68
AB = [72, 76, 80, 84, 4, 8]; NAB = 6; PFD = 5
PW = 88; EW = 102
V_PWADDR = 101; V_DBADDR = 115
DACC = 116; DA = 132; DB = 148
QH = 152
V_AADDR = [159, 160]; V_AADDR0 = 161; V_DAADDR = 162; V_DBK = 163; V_BWADDR = 164; V_SYNC = 165; V_RDY = 166; V_DONEA = 167
G = DACC; UA = DA
PBT = 148
VT1 = 110; VT2 = 111; VT3 = 112
DA2 = 88; DB2 = 104
NV = 168

import os
PX = int(os.environ.get('PX', '0'))
NL = int(os.environ.get('NL', '5'))
REP = int(os.environ.get('REP', '0'))
PSLEEP = int(os.environ.get('PSLEEP', '12'))
TOUCH = int(os.environ.get('TOUCH', '1'))
XP = os.environ.get('XP', '')
KNOP = int(os.environ.get('KNOP', '0'))
FINSTEP = int(os.environ.get('FINSTEP', '2'))
LBAR = int(os.environ.get('LBAR', '7'))
def fb(x): return '0x%08x' % struct.unpack('<I', struct.pack('<f', x))[0]

def gen(debug=None, PRIO=1, SPLITEPI=1, LPRE=24):
    a = Asm()
    V = a.valu; S = a.salu
    t = V_T
    stamp_n = [0]
    a.stamp_names = []
    def stamp(name=''):
        if not debug: return
        a.wait_lds_all()
        a.raw('s_memtime s[98:99]')
        a.raw('s_waitcnt lgkmcnt(0)', kind='wait')
        a.valu(f'v_writelane_b32 v{V_STAMP}, s98, {stamp_n[0]}', [], [V_STAMP])
        a.stamp_names.append(name)
        stamp_n[0] += 1
    def execn(n):
        if n <= 32: S(f's_mov_b64 exec, 0x{(1<<n)-1:x}')
        else: S(f's_mov_b32 exec_hi, 0x{(1<<(n-32))-1:x}')
    def fullexec(): S('s_mov_b64 exec, -1')
    def rawbar(): a.raw('s_barrier', kind='barrier')
    def dbg_out():
        if not debug: return
        fullexec()
        stamp('end')
        a.valu(f'v_writelane_b32 v{V_STAMP}, s100, 62', [], [V_STAMP])
        a.raw('s_memrealtime s[98:99]')
        a.raw('s_waitcnt lgkmcnt(0)', kind='wait')
        a.valu(f'v_writelane_b32 v{V_STAMP}, s98, 63', [], [V_STAMP])
        V(f'v_lshlrev_b32 v{t[0]}, 2, v0', [0], [t[0]])
        S(f's_mul_i32 s{S_T0}, s2, 2304'); S(f's_add_u32 s{S_T0}, s{S_T0}, 0x100000')
        a.vmem(f'buffer_store_dword v{V_STAMP}, v{t[0]}, s[{S_WS}:{S_WS+3}], s{S_T0} offen', [V_STAMP, t[0]], [])
    S('s_cmp_ge_u32 s2, 256')
    a.raw('s_cbranch_scc1 L_end', kind='branch')
    if debug:
        a.raw('s_memrealtime s[100:101]')
        stamp('start')
    if REP:
        a.raw('s_memtime s[92:93]'); a.raw('s_memrealtime s[94:95]')
    a.raw('s_load_dwordx16 s[4:19], s[0:1], 0')
    a.raw('s_load_dwordx4 s[20:23], s[0:1], 64')
    a.raw(f's_load_dwordx2 s[{S_WS}:{S_WS+1}], s[0:1], 80')
    V(f'v_and_b32 v{V_LANE}, 63, v0', [0], [V_LANE])
    V(f'v_lshrrev_b32 v{t[0]}, 6, v0', [0], [t[0]])
    V(f'v_readfirstlane_b32 s{S_WAVE}, v{t[0]}', [t[0]], [], swrites=[S_WAVE], readlane=True)
    S(f's_mov_b32 s{S_K7FFF}, 0x7fff7fff'); S(f's_mov_b32 s{S_K8000}, 0x80008000'); S(f's_mov_b32 s{S_HALF}, 0x38003800')
    S(f's_mov_b32 s{S_HI}, 0'); S(f's_mov_b32 s{S_HI+1}, -1')
    V(f'v_lshlrev_b32 v{V_L16}, 4, v{V_LANE}', [V_LANE], [V_L16])
    S(f's_lshr_b32 s{S_T0}, s2, 3'); S(f's_and_b32 s{S_Q}, s{S_T0}, 3'); S(f's_lshr_b32 s{S_T1}, s{S_T0}, 2')
    S(f's_lshr_b32 s{S_ROT}, s{S_T1}, 1'); S(f's_add_u32 s{S_ROT}, s{S_ROT}, s{S_T1}')
    S(f's_andn2_b32 s{S_CB}, s2, 0x18')
    S(f's_and_b32 s{S_T1}, s2, 7'); S(f's_cmp_eq_u32 s{S_T1}, 7'); S(f's_cselect_b32 s{S_SET}, 8, 0'); S(f's_cselect_b32 s{S_T1}, 0, s{S_T1}')
    S(f's_cmp_eq_u32 s{S_T1}, 0'); S(f's_cselect_b32 s{S_PID}, s{S_T0}, 255')
    S(f's_lshl_b32 s{S_G}, s{S_PID}, 3'); S(f's_add_u32 s{S_G}, s{S_G}, s{S_WAVE}', sreads=[S_WAVE])
    S(f's_min_u32 s{S_T0L}, s{S_Q}, 1'); S(f's_mul_i32 s{S_T1}, s{S_Q}, 6'); S(f's_add_u32 s{S_T0L}, s{S_T0L}, s{S_T1}')
    S(f's_cmp_lt_u32 s{S_WAVE}, 4'); S(f's_cselect_b32 s{S_XT}, 1, 0'); S(f's_cmp_lt_u32 s{S_Q}, 2'); S(f's_cselect_b32 s{S_XT}, s{S_XT}, 0')
    a.raw('s_waitcnt lgkmcnt(0)', kind='wait')
    sizes = [425984, 32000, 210912, 312, 346112, 832, 832, 2, 8192, 256]
    srds = [S_IDX, S_TAB, S_WC, S_WCO, S_W1, S_B1, S_W2, S_BO, S_OUT, S_DBGF]
    for i in range(10):
        sb, sz = srds[i], sizes[i]
        S(f's_mov_b32 s{sb}, s{4+2*i}'); S(f's_and_b32 s{sb+1}, s{5+2*i}, 0xffff')
        S(f's_mov_b32 s{sb+2}, {sz}'); S(f's_mov_b32 s{sb+3}, 0x00020000')
    S(f's_and_b32 s{S_WS+1}, s{S_WS+1}, 0xffff'); S(f's_mov_b32 s{S_WS+2}, {0x1000000 if debug else WS_SIZE}'); S(f's_mov_b32 s{S_WS+3}, 0x00020000')
    S(f's_cmp_eq_u32 s{S_WAVE}, 8')
    a.raw('s_cbranch_scc1 L_loader', kind='branch')

    def dpp_max(m):
        for d in ('row_shr:1 row_mask:0xf', 'row_shr:2 row_mask:0xf', 'row_shr:4 row_mask:0xf', 'row_shr:8 row_mask:0xf', 'row_bcast:15 row_mask:0xa', 'row_bcast:31 row_mask:0xc'):
            V(f'v_max_u32_dpp v{m}, v{m}, v{m} {d} bank_mask:0xf', [m], [m], dpp=True)
    def rho_salu(sh, st1, st2, clamp=True):
        S(f's_cmp_ge_u32 s{sh}, 13'); S(f's_cselect_b32 s{st1}, 1, 0')
        S(f's_mul_i32 s{st2}, s{st1}, 13'); S(f's_sub_u32 s{sh}, s{sh}, s{st2}')
        S(f's_lshl_b32 s{st2}, s{st1}, 2')
        S(f's_lshl_b32 s{st1}, s{st1}, 4'); S(f's_add_u32 s{st1}, s{st1}, s{sh}')
        S(f's_add_u32 s{st2}, s{st2}, s{sh}'); S(f's_and_b32 s{sh}, s{sh}, 12'); S(f's_add_u32 s{sh}, s{sh}, s{st2}')
        if clamp: S(f's_add_u32 s{sh}, s{sh}, 1'); S(f's_cmp_eq_u32 s{sh}, 29'); S(f's_cselect_b32 s{sh}, 0, s{sh}')

    V(f'v_mov_b32 v{V_SYNC}, {SYNC}', [], [V_SYNC])
    PWT = 136; BIGR = 137
    V(f'v_mov_b32 v{BIGR}, 0x7f000000', [], [BIGR])
    V(f'v_lshrrev_b32 v{t[0]}, 4, v0', [0], [t[0]])
    V(f'v_and_b32 v{t[1]}, 15, v0', [0], [t[1]])
    V(f'v_mad_u32_u24 v{t[0]}, v{t[0]}, 13, v{t[1]}', [t[0], t[1]], [t[0]])
    V(f'v_lshlrev_b32 v{t[0]}, 1, v{t[0]}', [t[0]], [t[0]])
    V(f'v_cmp_gt_u32 vcc, 13, v{t[1]}', [t[1]], [], swrites=['vcc'])
    V(f'v_cndmask_b32 v{t[0]}, v{BIGR}, v{t[0]}, vcc', [BIGR, t[0]], [t[0]], sreads=['vcc'])
    S(f's_cmp_gt_u32 s{S_WAVE}, 2')
    a.cond_begin('s_cbranch_scc1 L_nopw', 'L_nopw')
    a.vmem(f'buffer_load_ushort v{PWT}, v{t[0]}, s[{S_WCO}:{S_WCO+3}], 0 offen', [t[0]], [PWT])
    a.cond_end()
    V(f'v_mov_b32 v{t[2]}, 0', [], [t[2]])
    a.vmem(f'buffer_load_ushort v{V_ACC}, v{t[2]}, s[{S_BO}:{S_BO+3}], 0 offen', [t[2]], [V_ACC])
    S(f's_cmp_ge_u32 s{S_PID}, {NP2}')
    a.cond_begin('s_cbranch_scc1 L_noprod', 'L_noprod')
    p = [72 + i for i in range(16)]
    VF = 138
    S(f's_cmp_ge_u32 s{S_PID}, {NP1}'); S(f's_cselect_b32 s{S_T0}, 4, 0')
    V(f'v_mov_b32 v{VF+1}, s{S_T0}', [], [VF+1])
    a.vmem(f'buffer_load_dword v{VF}, v{VF+1}, s[{S_DBGF}:{S_DBGF+3}], 0 offen offset:128 sc1', [VF+1], [VF])
    def skipchk():
        V(f'v_readfirstlane_b32 s{S_MT}, v{VF}', [VF], [], swrites=[S_MT], readlane=True)
        S(f's_cmp_lg_u32 s{S_MT}, 0', sreads=[S_MT])
        a.raw('s_cbranch_scc1 L_prodskip', kind='branch')
    S(f's_cmp_ge_u32 s{S_G}, 136'); a.raw('s_cbranch_scc1 L_prodv5', kind='branch')
    S(f's_cmp_ge_u32 s{S_G}, 32'); a.raw('s_cbranch_scc1 L_prodrow', kind='branch')
    S(f's_cmp_ge_u32 s{S_G}, 26'); a.raw('s_cbranch_scc1 L_noprod', kind='branch')
    MF = 116; IF = 124; SD = 40
    V(f'v_and_b32 v{p[0]}, 31, v{V_LANE}', [V_LANE], [p[0]])
    V(f'v_lshrrev_b32 v{p[1]}, 5, v{V_LANE}', [V_LANE], [p[1]])
    V(f'v_mul_u32_u24 v{p[2]}, 52, v{p[0]}', [p[0]], [p[2]])
    V(f'v_lshl_add_u32 v{p[2]}, v{p[1]}, 4, v{p[2]}', [p[1], p[2]], [p[2]])
    S(f's_mul_i32 s{S_T2}, s{S_G}, 1352')
    a.vmem(f'buffer_load_dwordx4 {vr(MF,4)}, v{p[2]}, s[{S_WC}:{S_WC+3}], s{S_T2} offen', [p[2]], R(MF, 4))
    a.vmem(f'buffer_load_dwordx4 {vr(MF+4,4)}, v{p[2]}, s[{S_WC}:{S_WC+3}], s{S_T2} offen offset:32', [p[2]], R(MF+4, 4))
    V(f'v_lshlrev_b32 v{p[3]}, 3, v{p[1]}', [p[1]], [p[3]])
    V(f'v_sub_u32 v{p[3]}, v{p[0]}, v{p[3]}', [p[0], p[3]], [p[3]])
    V(f'v_and_b32 v{p[4]}, 1, v{p[3]}', [p[3]], [p[4]])
    V(f'v_lshlrev_b32 v{p[4]}, 4, v{p[4]}', [p[4]], [p[4]])
    V(f'v_mov_b32 v{p[5]}, 0x3f80', [], [p[5]])
    V(f'v_lshlrev_b32 v{p[4]}, v{p[4]}, v{p[5]}', [p[4], p[5]], [p[4]])
    V(f'v_ashrrev_i32 v{p[3]}, 1, v{p[3]}', [p[3]], [p[3]])
    for ks in range(2):
        for r in range(4):
            V(f'v_cmp_eq_u32 vcc, {8*ks + r}, v{p[3]}', [p[3]], [], swrites=['vcc'])
            V(f'v_cndmask_b32 v{IF+4*ks+r}, 0, v{p[4]}, vcc', [p[4]], [IF+4*ks+r], sreads=['vcc'])
    V(f'v_lshrrev_b32 v{p[3]}, 1, v{p[0]}', [p[0]], [p[3]])
    V(f'v_and_b32 v{p[4]}, 1, v{p[0]}', [p[0]], [p[4]])
    V(f'v_subrev_u32 v{p[5]}, 1, v{p[3]}', [p[3]], [p[5]])
    V(f'v_mul_i32_i24 v{p[5]}, v{p[5]}, v{p[3]}', [p[5], p[3]], [p[5]])
    V(f'v_lshrrev_b32 v{p[5]}, 1, v{p[5]}', [p[5]], [p[5]])
    V(f'v_mul_u32_u24 v{p[6]}, 12, v{p[3]}', [p[3]], [p[6]])
    V(f'v_sub_u32 v{p[6]}, v{p[6]}, v{p[5]}', [p[6], p[5]], [p[6]])
    V(f'v_mul_u32_u24 v{p[5]}, 92, v{p[4]}', [p[4]], [p[5]])
    V(f'v_add_u32 v{p[6]}, v{p[6]}, v{p[5]}', [p[6], p[5]], [p[6]])
    V(f'v_lshl_add_u32 v{p[6]}, v{p[1]}, 1, v{p[6]}', [p[1], p[6]], [p[6]])
    S(f's_lshl_b32 s{S_T3}, s{S_WAVE}, 10'); S(f's_add_u32 s{S_T3}, s{S_T3}, {SCR}')
    V(f'v_lshlrev_b32 v{p[6]}, 2, v{p[6]}', [p[6]], [p[6]])
    V(f'v_add_u32 v{p[6]}, s{S_T3}, v{p[6]}', [p[6]], [p[6]])
    V(f'v_lshlrev_b32 v{p[5]}, 1, v{p[1]}', [p[1]], [p[5]])
    V(f'v_sub_u32 v{p[3]}, v{p[3]}, v{p[5]}', [p[3], p[5]], [p[3]])
    V(f'v_cmp_gt_u32 vcc, 26, v{p[0]}', [p[0]], [], swrites=['vcc'])
    V(f'v_mov_b32 v{p[5]}, 100', [], [p[5]])
    V(f'v_cndmask_b32 v{p[3]}, v{p[5]}, v{p[3]}, vcc', [p[5], p[3]], [p[3]], sreads=['vcc'])
    V(f'v_mov_b32 v{p[7]}, 0', [], [p[7]])
    V(f'v_mov_b32 v{p[8]}, s{S_T3}', [], [p[8]])
    a.ds(f'ds_write_b32 v{p[8]}, v{p[7]} offset:364', [p[8], p[7]])
    a.ds(f'ds_write_b32 v{p[8]}, v{p[7]} offset:732', [p[8], p[7]])
    V(f'v_add_u32 v{p[8]}, s{S_T3}, v{V_L16}', [V_L16], [p[8]])
    V(f'v_cmp_le_u32 vcc, 23, v{V_LANE}', [V_LANE], [], swrites=['vcc'])
    V(f'v_cndmask_b32 v{p[9]}, 0, 1, vcc', [], [p[9]], sreads=['vcc'])
    S(f's_mov_b32 s{S_T0}, s{S_G}')
    rho_salu(S_T0, S_T1, S_T4)
    V(f'v_mul_u32_u24 v{p[9]}, {25*368}, v{p[9]}', [p[9]], [p[9]])
    V(f'v_add_u32 v{p[9]}, v{p[9]}, v{V_L16}', [p[9], V_L16], [p[9]])
    S(f's_mul_i32 s{S_T0}, s{S_T0}, 368')
    a.raw('s_waitcnt vmcnt(0)', kind='wait')
    skipchk()
    a.mfma('v_mfma_f32_32x32x16_bf16', SD, MF, IF, None, 8, 16)
    a.mfma('v_mfma_f32_32x32x16_bf16', SD, MF+4, IF+4, SD, 8, 16)
    a.mfma('v_mfma_f32_32x32x16_bf16', SD, IF, MF, SD, 8, 16)
    a.mfma('v_mfma_f32_32x32x16_bf16', SD, IF+4, MF+4, SD, 8, 16)
    m = p[10]
    V(f'v_max3_f32 v{m}, |v{SD}|, |v{SD+1}|, |v{SD+2}|', R(SD, 3), [m])
    for r in range(3, 15, 2):
        V(f'v_max3_f32 v{m}, |v{SD+r}|, |v{SD+r+1}|, v{m}', [SD+r, SD+r+1, m], [m])
    dpp_max(m)
    V(f'v_frexp_exp_i32_f32 v{m}, v{m}', [m], [m])
    V(f'v_readlane_b32 s{S_T4}, v{m}, 63', [m], [], swrites=[S_T4], readlane=True)
    S(f's_sub_i32 s{S_C}, 15, s{S_T4}', sreads=[S_T4])
    S(f's_sub_i32 s{S_T4}, s{S_T4}, 15')
    for r in range(14): V(f'v_ldexp_f32 v{SD+r}, v{SD+r}, s{S_C}', [SD+r], [SD+r])
    for rp in range(7):
        V(f'v_cvt_pk_f16_f32 v{MF+rp}, v{SD+2*rp}, v{SD+2*rp+1}', [SD+2*rp, SD+2*rp+1], [MF+rp])
    for rp in range(7):
        aa, bb = rp >> 1, rp & 1
        V(f'v_cmp_ge_i32 vcc, {4*aa+bb}, v{p[3]}', [p[3]], [], swrites=['vcc'])
        if aa == 3: S('s_mov_b32 vcc_hi, 0', sreads=['vcc'])
        S('s_mov_b64 exec, vcc', sreads=['vcc'])
        a.ds(f'ds_write_b32 v{p[6]}, v{MF+rp} offset:{4*(4*aa+bb)}', [p[6], MF+rp])
        fullexec()
    a.raw('s_waitcnt lgkmcnt(0)', kind='wait')
    a.ds(f'ds_read_b128 {vr(IF,4)}, v{p[8]}', [p[8]], R(IF, 4))
    execn(46)
    a.vmem(f'buffer_store_dwordx4 {vr(IF,4)}, v{p[9]}, s[{S_WS}:{S_WS+3}], s{S_T0} offen sc1', [p[9]] + R(IF, 4), [], wide_store=R(IF, 4))
    fullexec()
    S(f's_lshl_b32 s{S_T1}, s{S_T1}, 2'); S(f's_add_u32 s{S_T1}, s{S_T1}, {WS_EWT}')
    V(f'v_mov_b32 v{p[11]}, s{S_T4}', [], [p[11]]); V(f'v_mov_b32 v{p[12]}, s{S_T1}', [], [p[12]])
    S('s_mov_b64 exec, 1')
    a.vmem(f'buffer_store_dword v{p[11]}, v{p[12]}, s[{S_WS}:{S_WS+3}], 0 offen sc1', [p[11], p[12]], [])
    a.raw('s_branch L_prodfin', kind='branch')
    a.label('L_prodrow')
    S(f's_sub_u32 s{S_G}, s{S_G}, 32')
    PR = 40; PA = 48
    S(f's_mul_i32 s{S_T2}, s{S_G}, 1352'); S(f's_add_u32 s{S_T2}, s{S_T2}, 35152')
    V(f'v_cmp_le_u32 vcc, 43, v{V_LANE}', [V_LANE], [], swrites=['vcc'])
    V(f'v_cndmask_b32 v{p[0]}, 0, 1, vcc', [], [p[0]], sreads=['vcc'])
    V(f'v_mul_u32_u24 v{p[2]}, 12, v{p[0]}', [p[0]], [p[2]])
    V(f'v_sub_u32 v{p[2]}, v{V_L16}, v{p[2]}', [V_L16, p[2]], [p[2]])
    a.vmem(f'buffer_load_dwordx4 {vr(PR,4)}, v{p[2]}, s[{S_WC}:{S_WC+3}], s{S_T2} offen', [p[2]], R(PR, 4))
    V(f'v_min_u32 v{p[3]}, 21, v{V_LANE}', [V_LANE], [p[3]])
    V(f'v_lshlrev_b32 v{p[4]}, 4, v{p[3]}', [p[3]], [p[4]])
    a.vmem(f'buffer_load_dwordx4 {vr(PR+4,4)}, v{p[4]}, s[{S_WC}:{S_WC+3}], s{S_T2} offen offset:1012', [p[4]], R(PR+4, 4))
    S(f's_mul_i32 s{S_T1}, s{S_G}, 2521'); S(f's_lshr_b32 s{S_T1}, s{S_T1}, 16')
    S(f's_mul_i32 s{S_T3}, s{S_T1}, 26'); S(f's_sub_u32 s{S_T0}, s{S_G}, s{S_T3}')
    rho_salu(S_T0, S_T3, S_T4)
    V(f'v_mul_u32_u24 v{p[7]}, {25*688}, v{p[0]}', [p[0]], [p[7]])
    V(f'v_add_u32 v{p[7]}, v{p[7]}, v{V_L16}', [p[7], V_L16], [p[7]])
    V(f'v_add_u32 v{p[8]}, {26*688+336}, v{p[4]}', [p[4]], [p[8]])
    S(f's_mul_i32 s{S_T0}, s{S_T0}, 688'); S(f's_mul_i32 s{S_T2}, s{S_T1}, {IMG}'); S(f's_add_u32 s{S_T2}, s{S_T2}, s{S_T0}'); S(f's_add_u32 s{S_T2}, s{S_T2}, {WS_IMG[1]}')
    S(f's_lshl_b32 s{S_T1}, s{S_T1}, 5'); S(f's_add_u32 s{S_T1}, s{S_T1}, s{S_T3}'); S(f's_add_u32 s{S_T1}, s{S_T1}, 32')
    a.raw('s_waitcnt vmcnt(0)', kind='wait')
    skipchk()
    for i in range(8): V(f'v_and_b32 v{PA+i}, s{S_K7FFF}, v{PR+i}', [PR+i], [PA+i])
    m = p[11]
    V(f'v_pk_maximum3_f16 v{m}, v{PA}, v{PA+1}, v{PA+2}', R(PA, 3), [m])
    V(f'v_pk_maximum3_f16 v{m}, v{m}, v{PA+3}, v{PA+4}', [m, PA+3, PA+4], [m])
    V(f'v_pk_maximum3_f16 v{m}, v{m}, v{PA+5}, v{PA+6}', [m, PA+5, PA+6], [m])
    V(f'v_pk_max_u16 v{m}, v{m}, v{PA+7}', [m, PA+7], [m])
    V(f'v_max_u16_sdwa v{m}, v{m}, v{m} dst_sel:DWORD dst_unused:UNUSED_PAD src0_sel:WORD_1 src1_sel:WORD_0', [m], [m], opsel=True)
    dpp_max(m)
    V(f'v_readlane_b32 s{S_T0}, v{m}, 63', [m], [], swrites=[S_T0], readlane=True)
    S(f's_lshr_b32 s{S_T0}, s{S_T0}, 7', sreads=[S_T0], swrites=[S_T0])
    S(f's_sub_i32 s{S_T0}, s{S_T0}, 30'); S(f's_max_i32 s{S_T0}, s{S_T0}, 0')
    S(f's_mul_i32 s{S_C}, s{S_T0}, 0x800080'); S(f's_sub_i32 s{S_T0}, s{S_T0}, 112')
    for i in range(8): V(f'v_pk_sub_u16 v{PA+i}, v{PA+i}, s{S_C} clamp', [PA+i], [PA+i])
    for i in range(8): V(f'v_lshlrev_b32 v{PA+i}, 3, v{PA+i}', [PA+i], [PA+i])
    for i in range(8): V(f'v_bfi_b32 v{PA+i}, s{S_K8000}, v{PR+i}, v{PA+i}', [PA+i, PR+i], [PA+i])
    a.vmem(f'buffer_store_dwordx4 {vr(PA,4)}, v{p[7]}, s[{S_WS}:{S_WS+3}], s{S_T2} offen sc1', [p[7]] + R(PA, 4), [], wide_store=R(PA, 4))
    execn(22)
    a.vmem(f'buffer_store_dwordx4 {vr(PA+4,4)}, v{p[8]}, s[{S_WS}:{S_WS+3}], s{S_T2} offen sc1', [p[8]] + R(PA+4, 4), [], wide_store=R(PA+4, 4))
    S(f's_lshl_b32 s{S_T1}, s{S_T1}, 2'); S(f's_add_u32 s{S_T1}, s{S_T1}, {WS_EWT}')
    V(f'v_mov_b32 v{p[9]}, s{S_T0}', [], [p[9]]); V(f'v_mov_b32 v{p[10]}, s{S_T1}', [], [p[10]])
    S('s_mov_b64 exec, 1')
    a.vmem(f'buffer_store_dword v{p[9]}, v{p[10]}, s[{S_WS}:{S_WS+3}], 0 offen sc1', [p[9], p[10]], [])
    a.raw('s_branch L_prodfin', kind='branch')
    a.label('L_prodv5')
    S(f's_cmp_ge_u32 s{S_G}, 162'); a.raw('s_cbranch_scc1 L_noprod', kind='branch')
    LA = 40; LB = 44; AC = 48
    S(f's_sub_u32 s{S_T0}, s{S_G}, 136')
    S(f's_mul_i32 s{S_T2}, s{S_T0}, 52'); S(f's_add_u32 s{S_T2}, s{S_T2}, {5*35152}')
    V(f'v_lshrrev_b32 v{p[0]}, 2, v{V_LANE}', [V_LANE], [p[0]])
    V(f'v_and_b32 v{p[1]}, 3, v{V_LANE}', [V_LANE], [p[1]])
    V(f'v_mul_u32_u24 v{p[2]}, 0x548, v{p[0]}', [p[0]], [p[2]])
    V(f'v_lshl_add_u32 v{p[2]}, v{p[1]}, 4, v{p[2]}', [p[1], p[2]], [p[2]])
    a.vmem(f'buffer_load_dwordx4 {vr(LA,4)}, v{p[2]}, s[{S_WC}:{S_WC+3}], s{S_T2} offen', [p[2]], R(LA, 4))
    S(f's_add_u32 s{S_T2}, s{S_T2}, {16*1352}')
    a.vmem(f'buffer_load_dwordx4 {vr(LB,4)}, v{p[2]}, s[{S_WC}:{S_WC+3}], s{S_T2} offen', [p[2]], R(LB, 4))
    V(f'v_lshlrev_b32 v{p[3]}, 1, v{p[0]}', [p[0]], [p[3]])
    a.vmem(f'buffer_load_ushort v{p[4]}, v{p[3]}, s[{S_WCO}:{S_WCO+3}], 0 offen offset:260', [p[3]], [p[4]])
    a.vmem(f'buffer_load_ushort v{p[5]}, v{p[3]}, s[{S_WCO}:{S_WCO+3}], 0 offen offset:292', [p[3]], [p[5]])
    rho_salu(S_T0, S_T1, S_T4, clamp=False)
    S(f's_lshl_b32 s{S_T0}, s{S_T0}, 4'); S(f's_add_u32 s{S_T0}, s{S_T0}, {WS_V5F}')
    V(f'v_lshlrev_b32 v{p[6]}, 10, v{p[1]}', [p[1]], [p[6]])
    a.raw('s_waitcnt vmcnt(0)', kind='wait')
    skipchk()
    V(f'v_cmp_ne_u32 vcc, 3, v{p[1]}', [p[1]], [], swrites=['vcc'])
    for r in (1, 2, 3):
        V(f'v_cndmask_b32 v{LA+r}, 0, v{LA+r}, vcc', [LA+r], [LA+r], sreads=['vcc'])
        V(f'v_cndmask_b32 v{LB+r}, 0, v{LB+r}, vcc', [LB+r], [LB+r], sreads=['vcc'])
    V(f'v_lshlrev_b32 v{p[4]}, 16, v{p[4]}', [p[4]], [p[4]])
    V(f'v_lshlrev_b32 v{p[5]}, 16, v{p[5]}', [p[5]], [p[5]])
    for r in range(4):
        V(f'v_lshlrev_b32 v{p[7]}, 16, v{LA+r}', [LA+r], [p[7]])
        V(f'v_and_b32 v{p[8]}, 0xffff0000, v{LA+r}', [LA+r], [p[8]])
        V(f'v_lshlrev_b32 v{p[9]}, 16, v{LB+r}', [LB+r], [p[9]])
        V(f'v_and_b32 v{p[10]}, 0xffff0000, v{LB+r}', [LB+r], [p[10]])
        V(f'v_mul_f32 v{AC+2*r}, v{p[4]}, v{p[7]}', [p[4], p[7]], [AC+2*r])
        V(f'v_mul_f32 v{AC+2*r+1}, v{p[4]}, v{p[8]}', [p[4], p[8]], [AC+2*r+1])
        V(f'v_fmac_f32 v{AC+2*r}, v{p[5]}, v{p[9]}', [AC+2*r, p[5], p[9]], [AC+2*r])
        V(f'v_fmac_f32 v{AC+2*r+1}, v{p[5]}, v{p[10]}', [AC+2*r+1, p[5], p[10]], [AC+2*r+1])
    for d in (4, 8):
        for e in range(8):
            V(f'v_add_f32_dpp v{AC+e}, v{AC+e}, v{AC+e} row_ror:{d} row_mask:0xf bank_mask:0xf', [AC+e], [AC+e], dpp=True)
    for op in ('v_permlane16_swap_b32', 'v_permlane32_swap_b32'):
        for e in range(8): V(f'v_mov_b32 v{p[7+e]}, v{AC+e}', [AC+e], [p[7+e]])
        for e in range(8): V(f'{op} v{AC+e}, v{p[7+e]}', [AC+e, p[7+e]], [AC+e, p[7+e]], permlane=True)
        for e in range(8): V(f'v_add_f32 v{AC+e}, v{AC+e}, v{p[7+e]}', [AC+e, p[7+e]], [AC+e])
    for r in range(4):
        V(f'v_cvt_pk_bf16_f32 v{LA+r}, v{AC+2*r}, v{AC+2*r+1}', [AC+2*r, AC+2*r+1], [LA+r])
        V(f'v_lshlrev_b32 v{p[7]}, 16, v{LA+r}', [LA+r], [p[7]])
        V(f'v_and_b32 v{p[8]}, 0xffff0000, v{LA+r}', [LA+r], [p[8]])
        V(f'v_sub_f32 v{p[7]}, v{AC+2*r}, v{p[7]}', [AC+2*r, p[7]], [p[7]])
        V(f'v_sub_f32 v{p[8]}, v{AC+2*r+1}, v{p[8]}', [AC+2*r+1, p[8]], [p[8]])
        V(f'v_cvt_pk_bf16_f32 v{LB+r}, v{p[7]}, v{p[8]}', [p[7], p[8]], [LB+r])
    execn(4)
    a.vmem(f'buffer_store_dwordx4 {vr(LA,4)}, v{p[6]}, s[{S_WS}:{S_WS+3}], s{S_T0} offen sc1', [p[6]] + R(LA, 4), [], wide_store=R(LA, 4))
    a.vmem(f'buffer_store_dwordx4 {vr(LB,4)}, v{p[6]}, s[{S_WS}:{S_WS+3}], s{S_T0} offen offset:512 sc1', [p[6]] + R(LB, 4), [], wide_store=R(LB, 4))
    a.label('L_prodfin')
    fullexec()
    a.raw('s_branch L_afterprod', kind='branch')
    a.label('L_prodskip')
    S(f's_mov_b32 s{S_PID}, 255')
    a.cond_end()
    a.raw('s_waitcnt vmcnt(0)', kind='wait')
    a.label('L_afterprod')
    a.vm = []
    a.raw('s_waitcnt lgkmcnt(0)', kind='wait'); a.lds = []
    a.nop(12)
    stamp('prod')
    def addr_setup():
        V(f'v_and_b32 v{t[0]}, 31, v{V_LANE}', [V_LANE], [t[0]])
        V(f'v_cmp_gt_u32 vcc, 28, v{t[0]}', [t[0]], [], swrites=['vcc'])
        V(f'v_addc_co_u32 v{t[4]}, vcc, 0, v{t[0]}, vcc', [t[0]], [t[4]], sreads=['vcc'], swrites=['vcc'])
        V(f'v_cmp_eq_u32 s[{S_MT}:{S_MT+1}], 28, v{t[0]}', [t[0]], [], swrites=[S_MT, S_MT+1])
        V(f'v_cndmask_b32 v{t[4]}, v{t[4]}, 0, s[{S_MT}:{S_MT+1}]', [t[4]], [t[4]], sreads=[S_MT])
        V(f'v_lshrrev_b32 v{t[1]}, 5, v{V_LANE}', [V_LANE], [t[1]])
        V(f'v_mad_u32_u24 v{t[4]}, v{t[1]}, 26, v{t[4]}', [t[1], t[4]], [t[4]])
        V(f'v_cmp_gt_u32 vcc, 25, v{t[0]}', [t[0]], [], swrites=['vcc'])
        S(f's_or_b64 vcc, vcc, s[{S_MT}:{S_MT+1}]', sreads=['vcc', S_MT])
        V(f'v_mov_b32 v{t[5]}, 0x40000', [], [t[5]])
        V(f'v_cndmask_b32 v{t[5]}, v{t[5]}, 0, vcc', [t[5]], [t[5]])
        S(f's_movk_i32 s{S_T0}, 0x2b0'); S(f's_movk_i32 s{S_T1}, 0x170')
        V(f'v_mad_u32_u24 v{V_AADDR[0]}, v{t[4]}, s{S_T0}, v{t[5]}', [t[4], t[5]], [V_AADDR[0]])
        V(f'v_add_u32 v{V_AADDR[1]}, {U[2]}, v{V_AADDR[0]}', [V_AADDR[0]], [V_AADDR[1]])
        V(f'v_mad_u32_u24 v{V_AADDR0}, v{t[4]}, s{S_T1}, v{t[5]}', [t[4], t[5]], [V_AADDR0])
        V(f'v_add_u32 v{V_AADDR0}, {I0B}, v{V_AADDR0}', [V_AADDR0], [V_AADDR0])
    V(f'v_and_b32 v{t[0]}, 31, v{V_LANE}', [V_LANE], [t[0]])
    V(f'v_lshlrev_b32 v{t[0]}, 2, v{t[0]}', [t[0]], [t[0]])
    S(f's_mul_i32 s{S_T0}, s{S_WAVE}, 1664'); S(f's_add_u32 s{S_T0}, s{S_T0}, {X16}')
    V(f'v_add_u32 v{V_TRADDR}, s{S_T0}, v{t[0]}', [t[0]], [V_TRADDR])
    V(f'v_lshrrev_b32 v{t[4]}, 4, v{V_LANE}', [V_LANE], [t[4]])
    V(f'v_lshrrev_b32 v{t[0]}, 2, v{V_LANE}', [V_LANE], [t[0]])
    V(f'v_mul_u32_u24 v{t[0]}, 224, v{t[0]}', [t[0]], [t[0]])
    V(f'v_and_b32 v{t[5]}, 3, v{V_LANE}', [V_LANE], [t[5]])
    V(f'v_lshl_add_u32 v{t[0]}, v{t[5]}, 3, v{t[0]}', [t[5], t[0]], [t[0]])
    S(f's_lshr_b32 s{S_T0}, s{S_WAVE}, 2'); S(f's_sub_u32 s{S_T0}, 1, s{S_T0}')
    S(f's_lshl_b32 s{S_T1}, s{S_T0}, 5')
    V(f'v_add_u32 v{V_DAADDR}, s{S_T1}, v{t[0]}', [t[0]], [V_DAADDR])
    V(f'v_add_u32 v{V_DBK}, 121600, v{V_DAADDR}', [V_DAADDR], [V_DBK])
    S(f's_lshl_b32 s{S_T2}, s{S_T0L}, 5'); S(f's_add_u32 s{S_T1}, s{S_T1}, s{S_T2}'); S(f's_add_u32 s{S_T1}, s{S_T1}, {BW - 32}')
    V(f'v_lshlrev_b32 v{t[4]}, 3, v{t[4]}', [t[4]], [t[4]])
    V(f'v_add_u32 v{V_BWADDR}, s{S_T1}, v{t[4]}', [t[4]], [V_BWADDR])
    V(f'v_mov_b32 v{V_SYNC}, {SYNC}', [], [V_SYNC])
    S(f's_lshl_b32 s{S_T0}, s{S_WAVE}, 2'); S(f's_add_u32 s{S_T0}, s{S_T0}, {SYNC + 32}')
    V(f'v_mov_b32 v{V_DONEA}, s{S_T0}', [], [V_DONEA])
    S(f's_cmp_gt_u32 s{S_WAVE}, 2')
    a.cond_begin('s_cbranch_scc1 L_nopw2', 'L_nopw2')
    V(f'v_lshlrev_b32 v{PWT}, 16, v{PWT}', [PWT], [PWT])
    V(f'v_lshlrev_b32 v{t[0]}, 2, v0', [0], [t[0]])
    V(f'v_add_u32 v{t[0]}, {POOLW}, v{t[0]}', [t[0]], [t[0]])
    V(f'v_cmp_gt_u32 vcc, 0xa0, v0', [0], [], swrites=['vcc'])
    S('s_mov_b64 exec, vcc', sreads=['vcc'])
    a.ds(f'ds_write_b32 v{t[0]}, v{PWT}', [t[0], PWT])
    fullexec()
    a.cond_end()
    a.barrier()
    S(f's_mov_b32 s{S_KN}, 0')
    stamp('setup')

    chk_n = [0]
    def rdy_fetch(off): a.ds(f'ds_read_b32 v{V_RDY}, v{V_SYNC} offset:{off}', [V_SYNC], [V_RDY])
    def rdy_check(nseq, off, fetched=False):
        if not fetched: rdy_fetch(off)
        i = chk_n[0]; chk_n[0] += 1
        V(f'v_readfirstlane_b32 s{S_T0}, v{V_RDY}', [V_RDY], [], swrites=[S_T0], readlane=True)
        S(f's_cmp_ge_u32 s{S_T0}, {nseq}', sreads=[S_T0])
        a.cond_begin(f's_cbranch_scc1 L_ok{i}', f'L_ok{i}')
        a.raw(f's_mov_b32 s{S_T1}, 0x100000', kind='salu')
        a.label(f'L_sp{i}')
        a.raw('s_sleep 1')
        a.raw(f'ds_read_b32 v{V_RDY}, v{V_SYNC} offset:{off}', kind='ds')
        a.raw(f's_sub_u32 s{S_T1}, s{S_T1}, 1', kind='salu')
        a.raw(f's_cbranch_scc1 L_ok{i}', kind='branch')
        a.raw('s_waitcnt lgkmcnt(0)', kind='wait')
        a.raw(f'v_readfirstlane_b32 s{S_T0}, v{V_RDY}', kind='valu')
        a.raw('s_nop 0', kind='nop')
        a.raw(f's_cmp_ge_u32 s{S_T0}, {nseq}', kind='salu')
        a.raw(f's_cbranch_scc0 L_sp{i}', kind='branch')
        a.cond_end()
    def cnt_check(nseq):
        i = chk_n[0]; chk_n[0] += 1
        S(f's_cmp_ge_u32 s{S_KN}, {nseq}')
        a.cond_begin(f's_cbranch_scc1 L_ok{i}', f'L_ok{i}')
        a.raw(f's_mov_b32 s{S_T1}, 0x100000', kind='salu')
        a.label(f'L_sp{i}')
        a.raw(f'ds_read_b32 v{V_RDY}, v{V_SYNC}', kind='ds')
        a.raw(f's_sub_u32 s{S_T1}, s{S_T1}, 1', kind='salu')
        a.raw(f's_cbranch_scc1 L_ok{i}', kind='branch')
        a.raw('s_waitcnt lgkmcnt(0)', kind='wait')
        a.raw(f'v_readfirstlane_b32 s{S_KN}, v{V_RDY}', kind='valu')
        a.raw('s_nop 0', kind='nop')
        a.raw(f's_cmp_ge_u32 s{S_KN}, {nseq}', kind='salu')
        a.raw(f's_cbranch_scc1 L_ok{i}', kind='branch')
        a.raw('s_sleep 1')
        a.raw(f's_branch L_sp{i}', kind='branch')
        a.cond_end()
    def release(stage):
        V(f'v_mov_b32 v{t[0]}, {stage}', [], [t[0]])
        a.ds(f'ds_write_b32 v{V_DONEA}, v{t[0]}', [V_DONEA, t[0]])

    def x0_ops():
        ops = []
        PB = PBT
        def rd():
            V(f'v_lshlrev_b32 v{V_ACC}, 16, v{V_ACC}', [V_ACC], [V_ACC])
            V(f'v_and_b32 v{t[0]}, 47, v{V_LANE}', [V_LANE], [t[0]])
            V(f'v_cmp_eq_u32 vcc, 0, v{t[0]}', [t[0]], [], swrites=['vcc'])
            V(f'v_cndmask_b32 v{V_ACC}, 0, v{V_ACC}, vcc', [V_ACC], [V_ACC], sreads=['vcc'])
        ops.append(rd)
        m = t[1]
        def c1():
            for v in range(13): V(f'v_and_b32 v{P16+v}, s{S_K7FFF}, v{PB+v}', [PB+v], [P16+v])
        ops.append(c1)
        def c2():
            V(f'v_pk_maximum3_f16 v{m}, v{P16}, v{P16+1}, v{P16+2}', R(P16, 3), [m])
            for v in range(3, 13, 2):
                V(f'v_pk_maximum3_f16 v{m}, v{m}, v{P16+v}, v{P16+v+1}', [m, P16+v, P16+v+1], [m])
            V(f'v_max_u16_sdwa v{m}, v{m}, v{m} dst_sel:DWORD dst_unused:UNUSED_PAD src0_sel:WORD_1 src1_sel:WORD_0', [m], [m], opsel=True)
            V(f'v_lshrrev_b32 v{m}, 7, v{m}', [m], [m])
            V(f'v_subrev_u32 v{m}, 21, v{m}', [m], [m])
            V(f'v_max_i32 v{m}, 0, v{m}', [m], [m])
            V(f'v_subrev_u32 v{V_EX}, 112, v{m}', [m], [V_EX])
            V(f'v_mul_u32_u24 v{m}, 0x800080, v{m}', [m], [m])
        ops.append(c2)
        ops.append(lambda: [V(f'v_pk_sub_u16 v{P16+v}, v{P16+v}, v{m} clamp', [P16+v, m], [P16+v]) for v in range(13)])
        ops.append(lambda: [V(f'v_lshlrev_b32 v{P16+v}, 3, v{P16+v}', [P16+v], [P16+v]) for v in range(13)])
        ops.append(lambda: [V(f'v_bfi_b32 v{P16+v}, s{S_K8000}, v{PB+v}, v{P16+v}', [P16+v, PB+v], [P16+v]) for v in range(13)])
        def qq():
            V(f'v_mov_b32 v{P16+13}, 0', [], [P16+13])
            V(f'v_mov_b32 v{t[2]}, 0x05040100', [], [t[2]])
            V(f'v_mov_b32 v{t[1]}, 0x07060302', [], [t[1]])
            V(f'v_cndmask_b32 v{t[2]}, v{t[2]}, v{t[1]}, s[{S_HI}:{S_HI+1}]', [t[2], t[1]], [t[2]])
            for q in range(7):
                V(f'v_perm_b32 v{XQ+q}, v{P16+2*q+1}, v{P16+2*q}, v{t[2]}', [P16+2*q+1, P16+2*q, t[2]], [XQ+q])
        ops.append(qq)
        def q2():
            V(f'v_lshlrev_b32 v{V_E}, 1, v{V_EX}', [V_EX], [V_E])
            for v in range(13): a.ds(f'ds_write_b32 v{V_TRADDR}, v{PB+v} offset:{128*v}', [V_TRADDR, PB+v])
        ops.append(q2)
        return ops

    DAB = [132, 40, 56]; DBB = [72, 76, 80]; IXR = 84; NDB = 3
    def dnn_reads(i, xt):
        da = DAB[i % NDB]; db = DBB[i % NDB]
        base = CADDR[i]
        a.ds(f'ds_read_b64 {vr(db,2)}, v{IXR+2*i}', [IXR+2*i], R(db, 2))
        a.ds(f'ds_read_b64 {vr(db+2,2)}, v{IXR+2*i+1}', [IXR+2*i+1], R(db+2, 2))
        ro = 64 if xt else 32
        hi = i < 3
        ad = V_DBK if hi else V_DAADDR; b0 = base - (121600 if hi else 0)
        if i == 11: dnn_reads.shift()
        if i >= 11: b0 -= 57344
        for q in range(3):
            a.ds(f'ds_read_b64_tr_b16 {vr(da+4*q,2)}, v{ad} offset:{b0+ro+64*q}', [ad], R(da+4*q, 2))
            a.ds(f'ds_read_b64_tr_b16 {vr(da+4*q+2,2)}, v{ad} offset:{b0+ro+64*q+3584}', [ad], R(da+4*q+2, 2))
        if xt:
            a.ds(f'ds_read_b64_tr_b16 {vr(da+12,2)}, v{ad} offset:{b0}', [ad], R(da+12, 2))
            a.ds(f'ds_read_b64_tr_b16 {vr(da+14,2)}, v{ad} offset:{b0+3584}', [ad], R(da+14, 2))
    dnn_reads.shift = lambda: V(f'v_add_u32 v{V_DAADDR}, 57344, v{V_DAADDR}', [V_DAADDR], [V_DAADDR])
    def dnn_mfma(i, xt):
        da = DAB[i % NDB]; db = DBB[i % NDB]
        for q in range(4 if xt else 3): a.mfma('v_mfma_f32_16x16x32_bf16', DACC+4*q, da+4*q, db, DACC+4*q, 4, 4)
    epi_n = [0]
    def dnn_epilogue():
        e = epi_n[0]; epi_n[0] += 1
        K1 = -2.0 * 1.4426950408889634 * 0.7978845608028654
        K2 = K1 * 0.044715
        acc = DB; W2T = [DB + 2, t[2], t[4], t[6]]
        S(f's_mov_b32 s{S_K2}, {fb(K2)}')
        V(f'v_mov_b32 v{DB+1}, {fb(K1)}', [], [DB+1])
        V(f'v_mov_b32 v{acc}, 0', [], [acc])
        offs = [64, 128, 192, 0]
        for q in range(4):
            a.ds(f'ds_read_b64 {vr(W2T[q],2)}, v{V_BWADDR} offset:{832+offs[q]}', [V_BWADDR], R(W2T[q], 2))
        def grp(qs):
            xs = [DACC + 4*q + r for q in qs for r in range(4)]
            ts = [DA + 4*q + r for q in qs for r in range(4)]
            for x, tt in zip(xs, ts): V(f'v_mul_f32 v{tt}, v{x}, v{x}', [x], [tt])
            for x, tt in zip(xs, ts): V(f'v_fma_f32 v{tt}, v{tt}, s{S_K2}, v{DB+1}', [tt, DB+1], [tt])
            for x, tt in zip(xs, ts): V(f'v_mul_f32 v{tt}, v{tt}, v{x}', [tt, x], [tt])
            for x, tt in zip(xs, ts): V(f'v_exp_f32 v{tt}, v{tt}', [tt], [tt], trans=True)
            for x, tt in zip(xs, ts): V(f'v_add_f32 v{tt}, 1.0, v{tt}', [tt], [tt])
            for x, tt in zip(xs, ts): V(f'v_rcp_f32 v{tt}, v{tt}', [tt], [tt], trans=True)
            for x, tt in zip(xs, ts): V(f'v_mul_f32 v{tt}, v{tt}, v{x}', [tt, x], [tt])
            for q in qs:
                w = W2T[q]; x0_ = DACC + 4*q
                V(f'v_lshlrev_b32 v{x0_}, 16, v{w}', [w], [x0_])
                V(f'v_and_b32 v{x0_+1}, 0xffff0000, v{w}', [w], [x0_+1])
                V(f'v_lshlrev_b32 v{x0_+2}, 16, v{w+1}', [w+1], [x0_+2])
                V(f'v_and_b32 v{x0_+3}, 0xffff0000, v{w+1}', [w+1], [x0_+3])
            for x, tt in zip(xs, ts): V(f'v_fmac_f32 v{acc}, v{tt}, v{x}', [acc, tt, x], [acc])
        grp([0, 1, 2])
        S(f's_cmp_eq_u32 s{S_XT}, 0')
        a.raw(f's_cbranch_scc1 L_dq4_{e}', kind='branch')
        grp([3])
        a.nop(2)
        a.label(f'L_dq4_{e}')
        for op in ('v_permlane16_swap_b32', 'v_permlane32_swap_b32'):
            V(f'v_mov_b32 v{DB+1}, v{acc}', [acc], [DB+1])
            V(f'{op} v{acc}, v{DB+1}', [acc, DB+1], [acc, DB+1], permlane=True)
            V(f'v_add_f32 v{acc}, v{acc}, v{DB+1}', [acc, DB+1], [acc])
        V(f'v_lshlrev_b32 v{t[0]}, 2, v{V_LANE}', [V_LANE], [t[0]])
        S(f's_lshl_b32 s{S_T0}, s{S_WAVE}, 6'); S(f's_add_u32 s{S_T0}, s{S_T0}, {PDL}')
        V(f'v_add_u32 v{t[0]}, s{S_T0}, v{t[0]}', [t[0]], [t[0]])
        V(f'v_mov_b32 v{t[1]}, 1', [], [t[1]])
        execn(16)
        a.ds(f'ds_write_b32 v{t[0]}, v{acc}', [t[0], acc])
        execn(1)
        a.ds(f'ds_add_u32 v{V_SYNC}, v{t[1]} offset:4', [V_SYNC, t[1]])
        fullexec()
        a.wait_lds_all()
    def u5_ops():
        ops = []
        def rd():
            V(f'v_add_u32 v{t[0]}, {V5F}, v{V_L16}', [V_L16], [t[0]])
            for k in range(4):
                a.ds(f'ds_read_b128 {vr(UA+4*k,4)}, v{t[0]} offset:{1024*k}', [t[0]], R(UA+4*k, 4))
            for k in range(4):
                a.ds(f'ds_read_b128 {vr(G+4*k,4)}, v{V_PWADDR} offset:{POOLW-EWT+128*4+16*k}', [V_PWADDR], R(G+4*k, 4))
        ops.append(rd)
        for k in range(4):
            def rb(k=k):
                for e in range(4 if k < 3 else 1):
                    a.ds(f'ds_read_b32 v{DB+e}, v{V_TRADDR} offset:{128*(4*k+e)}', [V_TRADDR], [DB+e])
            ops.append(rb)
            ops += [lambda: None] * 4
            if k == 3:
                def zz():
                    for r in (1, 2, 3): V(f'v_mov_b32 v{DB+r}, 0', [], [DB+r])
                ops.append(zz)
            ops.append(lambda k=k: a.mfma('v_mfma_f32_32x32x16_bf16', G, UA+4*k, DB, G, 8, 16))
            ops.append(lambda: None)
        return ops

    def boundary_ops(l):
        ops = []
        s_ = ZB[2]; mx = ZB[2]+1; my = ZB[2]+2
        W = PW if l < 4 else G
        for r in range(13):
            ops.append(lambda r=r: V(f'v_ldexp_f32 v{D+r}, v{D+r}, v{EW+r}', [D+r, EW+r], [D+r]))
        if l < 4:
            ops.append(lambda: V(f'v_max3_f32 v{mx}, |v{D}|, |v{D+1}|, |v{D+2}|', R(D, 3), [mx]))
            for r in range(3, 13, 2):
                ops.append(lambda r=r: V(f'v_max3_f32 v{mx}, |v{D+r}|, |v{D+r+1}|, v{mx}', [D+r, D+r+1, mx], [mx]))
            ops.append(lambda: V(f'v_mov_b32 v{my}, v{mx}', [mx], [my]))
        ops.append(lambda: V(f'v_mul_f32 v{s_}, v{D}, v{W}', [D, W], [s_]))
        ops.append(lambda: V(f'v_fmac_f32 v{s_}, v{D+1}, v{W+1}', [s_, D+1, W+1], [s_]))
        if l < 4:
            ops.append(lambda: V(f'v_permlane32_swap_b32 v{mx}, v{my}', [mx, my], [mx, my], permlane=True))
        ops.append(lambda: V(f'v_fmac_f32 v{s_}, v{D+2}, v{W+2}', [s_, D+2, W+2], [s_]))
        if l < 4:
            ops.append(lambda: V(f'v_max_f32 v{mx}, v{mx}, v{my}', [mx, my], [mx]))
            ops.append(lambda: V(f'v_frexp_exp_i32_f32 v{mx}, v{mx}', [mx], [mx]))
            ops.append(lambda: V(f'v_sub_u32 v{V_SH}, 8, v{mx}', [mx], [V_SH]))
        for r in range(3, 13):
            ops.append(lambda r=r: V(f'v_fmac_f32 v{s_}, v{D+r}, v{W+r}', [s_, D+r, W+r], [s_]))
        if l < 4:
            for r in range(13):
                ops.append(lambda r=r: V(f'v_ldexp_f32 v{D+r}, v{D+r}, v{V_SH}', [D+r, V_SH], [D+r]))
            for q in range(7):
                hi = D + 2*q + 1 if q < 6 else D + 12
                ops.append(lambda q=q, hi=hi: V(f'v_cvt_pk_f16_f32 v{XQ+q}, v{D+2*q}, v{hi}', [D+2*q, hi], [XQ+q]))
        ops.append(lambda: V(f'v_ldexp_f32 v{s_}, v{s_}, v{V_E}', [s_, V_E], [s_]))
        ops.append(lambda: V(f'v_add_f32 v{V_ACC}, v{V_ACC}, v{s_}', [V_ACC, s_], [V_ACC]))
        if l < 4:
            ops.append(lambda: V(f'v_sub_u32 v{V_E}, v{V_E}, v{V_SH}', [V_E, V_SH], [V_E]))
            ops.append(lambda: V(f'v_add_u32 v{V_E}, v{V_E}, v{V_EX}', [V_E, V_EX], [V_E]))
        if l == 0:
            ops.append(lambda: V(f'v_mov_b32 v{ZL+1}, 0', [], [ZL+1]))
            ops.append(lambda: V(f'v_mov_b32 v{ZL+2}, 0', [], [ZL+2]))
        return ops
    NK = [23, 43, 43, 43, 43]
    ISLOT = [None, 0, 1, 2, 3]
    def a_read(l, k):
        b = AB[k % NAB]
        if l == 0: ad = V_AADDR0; off = 16 * k
        else:
            sl = ISLOT[l]; ad = V_AADDR[sl >> 1]; off = IMG * (sl & 1) + 16 * k
        a.ds(f'ds_read_b128 {vr(b,4)}, v{ad} offset:{off}', [ad], R(b, 4))
    PAIRS0 = [(u, v) for u in range(13) for v in range(u, 13)]
    def zbuf(l, k):
        if k == NK[l] - 1: return ZL
        return ZB[k % 3]
    def z_ops(l, k):
        ops = []
        zb = zbuf(l, k)
        for e in range(4):
            q = 4 * k + e
            if l == 0:
                if q >= 91: break
                i, v = PAIRS0[q]; src = (QH if i == v else XQ) + (i >> 1)
            else:
                if q >= 169: break
                i, v = divmod(q, 13); src = XQ + (i >> 1)
            o = i & 1
            ops.append(lambda zb=zb, e=e, src=src, v=v, o=o: V(f'v_pk_mul_f16 v{zb+e}, v{src}, v{P16+v} op_sel:[{o},0] op_sel_hi:[{o},1]', [src, P16+v], [zb+e]))
        return ops
    def pwrd(l):
        for base, off in ((PW, POOLW - EWT + 128 * l), (EW, 128 * l)):
            if base == PW and l == 4: continue
            for k in range(3):
                a.ds(f'ds_read_b128 {vr(base+4*k,4)}, v{V_PWADDR} offset:{off+16*k}', [V_PWADDR], R(base+4*k, 4))
            a.ds(f'ds_read_b32 v{base+12}, v{V_PWADDR} offset:{off+48}', [V_PWADDR], [base+12])

    cnt_check(1)
    stamp('tab')
    OX = 132
    V(f'v_bfe_u32 v{t[0]}, v{V_LANE}, 4, 1', [V_LANE], [t[0]])
    V(f'v_mul_u32_u24 v{t[0]}, 104, v{t[0]}', [t[0]], [t[0]])
    V(f'v_and_b32 v{t[1]}, 12, v{V_LANE}', [V_LANE], [t[1]])
    V(f'v_add_u32 v{t[0]}, v{t[0]}, v{t[1]}', [t[0], t[1]], [t[0]])
    S(f's_mul_i32 s{S_T0}, s{S_WAVE}, 208'); S(f's_add_u32 s{S_T0}, s{S_T0}, {IDXB}')
    V(f'v_add_u32 v{t[0]}, s{S_T0}, v{t[0]}', [t[0]], [t[0]])
    V(f'v_and_b32 v{t[1]}, 15, v{V_LANE}', [V_LANE], [t[1]])
    V(f'v_mul_u32_u24 v{t[1]}, 104, v{t[1]}', [t[1]], [t[1]])
    S(f's_and_b32 s{S_T0}, s{S_WAVE}, 3'); S(f's_mul_i32 s{S_T0}, s{S_T0}, 1664'); S(f's_add_u32 s{S_T0}, s{S_T0}, {IDXB}')
    S(f's_add_u32 s{S_T2}, s{S_T0}, 104'); S(f's_lshl_b32 s{S_KO}, s{S_ROT}, 3'); S(f's_add_u32 s{S_KO}, s{S_KO}, s{S_T0}')
    for i in range(13):
        tt = t[2 + (i % 4)]
        V(f'v_add_u32 v{tt}, s{S_KO}, v{t[1]}', [t[1]], [tt])
        a.ds(f'ds_read_b64 {vr(IXR+2*i,2)}, v{tt}', [tt], R(IXR+2*i, 2))
        if i < 12:
            S(f's_add_u32 s{S_KO}, s{S_KO}, 8'); S(f's_cmp_eq_u32 s{S_KO}, s{S_T2}'); S(f's_cselect_b32 s{S_KO}, s{S_T0}, s{S_KO}')
    for q in range(7): a.ds(f'ds_read_b32 v{OX+q}, v{t[0]} offset:{16*q}', [t[0]], [OX+q])
    BT = 140
    for q, off in enumerate([64, 128, 192, 0]):
        a.ds(f'ds_read_b64 {vr(BT+2*q,2)}, v{V_BWADDR} offset:{off}', [V_BWADDR], R(BT+2*q, 2))
    V(f'v_and_b32 v{t[6]}, 3, v{V_LANE}', [V_LANE], [t[6]])
    V(f'v_lshlrev_b32 v{t[6]}, 3, v{t[6]}', [t[6]], [t[6]])
    V(f'v_add_u32 v{t[6]}, {TAB}, v{t[6]}', [t[6]], [t[6]])
    V(f'v_lshrrev_b32 v{t[7]}, 4, v{V_LANE}', [V_LANE], [t[7]])
    V(f'v_lshlrev_b32 v{t[7]}, 3, v{t[7]}', [t[7]], [t[7]])
    V(f'v_add_u32 v{t[7]}, {TAB}, v{t[7]}', [t[7]], [t[7]])
    for f in range(26):
        V(f'v_lshl_add_u32 v{IXR+f}, v{IXR+f}, 5, v{t[7]}', [IXR+f, t[7]], [IXR+f])
    for q in range(7):
        V(f'v_min_u32 v{OX+q}, 0x3e7, v{OX+q}', [OX+q], [OX+q])
        V(f'v_lshl_add_u32 v{OX+q}, v{OX+q}, 5, v{t[6]}', [OX+q, t[6]], [OX+q])
        a.ds(f'ds_read_b64_tr_b16 {vr(PBT+2*q,2)}, v{OX+q}', [OX+q], R(PBT+2*q, 2))
    for q in range(4):
        V(f'v_lshlrev_b32 v{DACC+4*q}, 16, v{BT+2*q}', [BT+2*q], [DACC+4*q])
        V(f'v_and_b32 v{DACC+4*q+1}, 0xffff0000, v{BT+2*q}', [BT+2*q], [DACC+4*q+1])
        V(f'v_lshlrev_b32 v{DACC+4*q+2}, 16, v{BT+2*q+1}', [BT+2*q+1], [DACC+4*q+2])
        V(f'v_and_b32 v{DACC+4*q+3}, 0xffff0000, v{BT+2*q+1}', [BT+2*q+1], [DACC+4*q+3])
    stamp('x0')
    a.wait_lds_all()
    S(f's_mov_b32 s{S_LAST}, 0')
    S(f's_cmp_ge_u32 s{S_PID}, {NP2}')
    a.raw('s_cbranch_scc1 L_nocnt', kind='branch')
    a.raw('s_waitcnt vmcnt(0)', kind='wait')
    a.raw(f'v_mov_b32 v{VT1}, 1', kind='valu')
    S('s_mov_b64 exec, 1')
    a.raw(f'ds_add_rtn_u32 v{VT2}, v{V_SYNC}, v{VT1} offset:12', kind='ds')
    a.raw('s_waitcnt lgkmcnt(0)', kind='wait')
    a.raw(f'v_readfirstlane_b32 s{S_T0}, v{VT2}', kind='valu')
    a.raw('s_nop 0', kind='nop')
    S(f's_cmp_lg_u32 s{S_T0}, 7')
    a.raw('s_cbranch_scc1 L_nocnt', kind='branch')
    S(f's_mov_b32 s{S_LAST}, 1')
    S(f's_cmp_ge_u32 s{S_PID}, {NP1}'); S(f's_cselect_b32 s{S_T0}, 4, 0'); S(f's_add_u32 s{S_T0}, s{S_T0}, s{S_SET}')
    a.raw(f'v_mov_b32 v{VT2}, s{S_T0}', kind='valu')
    a.raw(f'buffer_atomic_add v{VT1}, v{VT2}, s[{S_DBGF}:{S_DBGF+3}], 0 offen offset:64 sc0 sc1', kind='vmem')
    a.label('L_nocnt')
    fullexec()
    fin_n = [0]
    def prod_finish():
        e = fin_n[0]; fin_n[0] += 1
        S(f's_cmp_eq_u32 s{S_LAST}, 0')
        a.raw(f's_cbranch_scc1 L_nofin{e}', kind='branch')
        a.raw(f's_memrealtime s[{S_MT}:{S_MT+1}]')
        a.raw('s_waitcnt vmcnt(0) lgkmcnt(0)', kind='wait')
        a.raw(f'v_readfirstlane_b32 s{S_T2}, v{VT1}', kind='valu')
        S(f's_cmp_ge_u32 s{S_PID}, {NP1}'); S(f's_cselect_b32 s{S_T0}, 4, 0'); S(f's_cselect_b32 s{S_T1}, {NP2 - NP1 - 1}, {NP1 - 1}')
        S(f's_cmp_lg_u32 s{S_T2}, s{S_T1}')
        a.raw(f's_cbranch_scc1 L_nofin{e}', kind='branch')
        S(f's_or_b32 s{S_MT}, s{S_MT}, 1')
        a.raw(f'v_mov_b32 v{VT1}, s{S_MT}', kind='valu')
        a.raw(f'v_mov_b32 v{VT2}, 0', kind='valu')
        a.raw(f'v_mov_b32 v{VT3}, s{S_T0}', kind='valu')
        S('s_mov_b64 exec, 1')
        a.raw(f'buffer_atomic_cmpswap v[{VT1}:{VT2}], v{VT3}, s[{S_DBGF}:{S_DBGF+3}], 0 offen offset:128 sc1', kind='vmem')
        fullexec()
        a.label(f'L_nofin{e}')
    import copy
    def dnn_loop(xt):
        x0o = x0_ops()
        CHK = {0: 3, 2: 5, 4: 7, 6: 9, 8: 11, 10: 13, 12: 14}
        def rd(i):
            if i in CHK: cnt_check(CHK[i])
            dnn_reads(i, xt)
        if xt:
            V(f'v_subrev_u32 v{V_DAADDR}, 32, v{V_DAADDR}', [V_DAADDR], [V_DAADDR])
            V(f'v_subrev_u32 v{V_DBK}, 32, v{V_DBK}', [V_DBK], [V_DBK])
        rd(0); rd(1)
        for i in range(13):
            a.comment(f'======== DNN step {i} xt={xt}')
            if debug == 2:
                a.raw(f's_memtime s[{4+2*(i%7)}:{5+2*(i%7)}]')
                a.lds.append(dict(dst=set(), maybe=True, id=-100-i))
                if i in (6, 12):
                    a.wait_lds_all()
                    for j in range(7 if i == 6 else 6): a.valu(f'v_writelane_b32 v{V_STAMP}, s{4+2*j}, {13 + j + (0 if i == 6 else 7)}', [], [V_STAMP])
            if i + 2 < 13: rd(i + 2)
            if i < len(x0o): x0o[i]()
            dnn_mfma(i, xt)
            if i == FINSTEP: prod_finish()
            if i in (2, 7, 12): release({2: 1, 7: 2, 12: 3}[i])
        a.wait_lds_all(); a.nop(8)
    S(f's_cmp_eq_u32 s{S_XT}, 0')
    a.raw('s_cbranch_scc1 L_dnn0', kind='branch')
    dnn_loop(1)
    a.raw('s_branch L_dnnend', kind='branch')
    a.label('L_dnn0')
    dnn_loop(0)
    a.label('L_dnnend')
    for q in range(7):
        V(f'v_pk_mul_f16 v{QH+q}, v{XQ+q}, s{S_HALF}', [XQ+q], [QH+q])
    addr_setup()
    V(f'v_lshrrev_b32 v{t[1]}, 5, v{V_LANE}', [V_LANE], [t[1]])
    V(f'v_lshlrev_b32 v{t[1]}, 6, v{t[1]}', [t[1]], [t[1]])
    V(f'v_add_u32 v{V_PWADDR}, {EWT}, v{t[1]}', [t[1]], [V_PWADDR])
    V(f'v_mov_b32 v{ZL+3}, 0', [], [ZL+3])
    stamp('dnn')
    if REP:
        a.wait_lds_all(); a.raw('s_memtime s[96:97]'); a.raw('s_memrealtime s[98:99]'); a.raw('s_waitcnt lgkmcnt(0)', kind='wait')
    if SPLITEPI:
        S(f's_cmp_ge_u32 s{S_WAVE}, 4')
        a.wait_lds_all(); a.nop(8)
        a.cond_begin('s_cbranch_scc1 L_noepiB', 'L_noepiB')
        dnn_epilogue()
        a.nop(2)
        a.cond_end()
    else: dnn_epilogue()
    for l in range(NL):
        a.comment(f'======== layer {l}')
        stamp(f'L{l}')
        rdy_check(l + 1, 8)
        for k in range(PFD): a_read(l, k)
        if l == 4:
            rdy_check(6, 8)
            u5 = u5_ops(); u5[0]()
            fq = u5[1:]
        else: fq = []
        for o in z_ops(l, 0): o()
        for o in z_ops(l, 1): o()
        if PRIO: a.raw('s_setprio 1')
        for k in range(NK[l]):
            if k == NK[l] - 8: pwrd(l)
            zo = z_ops(l, k + 2) if k + 2 < NK[l] else []
            if k % 2 == 0 and k + 1 < NK[l]: a._wait_regs(R(AB[(k + 1) % NAB], 4))
            a.mfma('v_mfma_f32_32x32x16_f16', D, AB[k % NAB], zbuf(l, k), D if k > 0 else None, 8, 16)
            if k + PFD < NK[l]: a_read(l, k + PFD)
            for o in zo: o()
            if PRIO and k == 2: a.raw('s_setprio 2')
            if KNOP: a.nop(KNOP)
            if fq and k >= 4: fq.pop(0)()
        assert not fq
        if l == 0: release(4)
        if l < 4:
            if PRIO: a.raw('s_setprio 0')
            for o in boundary_ops(l): o()
        if l == 0 and SPLITEPI:
            S(f's_cmp_lt_u32 s{S_WAVE}, 4')
            a.wait_lds_all()
            a.cond_begin('s_cbranch_scc1 L_noepiA', 'L_noepiA')
            dnn_epilogue()
            a.nop(2)
            a.cond_end()
    if XP == 'idle':
        for _ in range(3): a.raw('s_sleep 16')
    if XP == 'idle6':
        for _ in range(6): a.raw('s_sleep 16')
    if XP in ('mz', 'mr'):
        a.wait_lds_all(); a.nop(16)
        if XP == 'mz':
            for r in range(72, 88): V(f'v_mov_b32 v{r}, 0', [], [r])
        for k in range(47):
            a.mfma('v_mfma_f32_32x32x16_f16', 132, 72 + 4*(k % 4), 16 + 4*(k % 3) if XP == 'mr' else 72, 132 if k else None, 8, 16)
    if XP == 'mr16':
        a.wait_lds_all(); a.nop(16)
        for k in range(94):
            a.mfma('v_mfma_f32_16x16x32_f16', 132 + 4*(k % 4), 72 + 4*(k % 4), 16 + 4*(k % 3), (132 + 4*(k % 4)) if k > 3 else None, 4, 4)
    if XP == 'mrb':
        a.wait_lds_all(); a.nop(16)
        for k in range(47):
            a.mfma('v_mfma_f32_32x32x16_bf16', 132, 72 + 4*(k % 4), 16 + 4*(k % 3), 132 if k else None, 8, 16)
    if XP == 'mrv':
        a.wait_lds_all(); a.nop(16)
        for k in range(47):
            a.mfma('v_mfma_f32_32x32x16_f16', 132, 72 + 4*(k % 4), 16 + 4*(k % 3), 132 if k else None, 8, 16)
            for e in range(8): V(f'v_pk_mul_f16 v{56 + e}, v{16 + (k+e) % 13}, v{32 + e % 7}', [16 + (k+e) % 13, 32 + e % 7], [56 + e])
    if XP == 'mrslow':
        a.wait_lds_all(); a.nop(16)
        for k in range(47):
            a.mfma('v_mfma_f32_32x32x16_f16', 132, 72 + 4*(k % 4), 16 + 4*(k % 3), 132 if k else None, 8, 16)
            a.nop(30)
    if XP == 'lds':
        for k in range(376): a.ds(f'ds_read_b128 v[{72+4*(k%4)}:{75+4*(k%4)}], v{V_AADDR[0]} offset:{16*(k%43)}', [V_AADDR[0]], [])
        a.wait_lds_all()
    if XP == 'valu':
        for k in range(376): V(f'v_pk_mul_f16 v{72 + k % 8}, v{16 + k % 13}, v{32 + k % 7}', [16 + k % 13, 32 + k % 7], [72 + k % 8])
    stamp('fin')
    rdy_check(7, 8)
    V(f'v_bfe_u32 v{t[5]}, v{V_LANE}, 4, 1', [V_LANE], [t[5]])
    V(f'v_and_b32 v{t[6]}, 15, v{V_LANE}', [V_LANE], [t[6]])
    V(f'v_lshl_add_u32 v{t[5]}, v{t[6]}, 4, v{t[5]}', [t[5], t[6]], [t[5]])
    V(f'v_lshlrev_b32 v{t[5]}, 2, v{t[5]}', [t[5]], [t[5]])
    S(f's_lshl_b32 s{S_T0}, s{S_WAVE}, 3'); S(f's_add_u32 s{S_T0}, s{S_T0}, {PD}')
    V(f'v_add_u32 v{t[5]}, s{S_T0}, v{t[5]}', [t[5]], [t[5]])
    V(f'v_and_b32 v{t[6]}, 40, v{V_LANE}', [V_LANE], [t[6]])
    V(f'v_cmp_eq_u32 vcc, 0, v{t[6]}', [t[6]], [], swrites=['vcc'])
    V(f'v_mov_b32 v{t[6]}, 0x30000', [], [t[6]])
    V(f'v_cndmask_b32 v{t[5]}, v{t[6]}, v{t[5]}, vcc', [t[5], t[6]], [t[5]], sreads=['vcc'])
    a.ds(f'ds_read_b32 v{t[6]}, v{t[5]}', [t[5]], [t[6]])
    if NL == 5:
        for o in boundary_ops(4): o()
    A_ = V_ACC
    V(f'v_add_f32 v{A_}, v{A_}, v{t[6]}', [A_, t[6]], [A_])
    for d in (8, 4, 2, 1):
        V(f'v_add_f32_dpp v{A_}, v{A_}, v{A_} row_ror:{d} row_mask:0xf bank_mask:0xf', [A_], [A_], dpp=True)
    V(f'v_mov_b32 v{t[5]}, v{A_}', [A_], [t[5]])
    V(f'v_permlane32_swap_b32 v{A_}, v{t[5]}', [A_, t[5]], [A_, t[5]], permlane=True)
    V(f'v_add_f32 v{A_}, v{A_}, v{t[5]}', [A_, t[5]], [A_])
    V(f'v_cvt_pk_bf16_f32 v{A_}, v{A_}, v{A_}', [A_], [A_])
    V(f'v_lshrrev_b32 v{t[5]}, 3, v{V_LANE}', [V_LANE], [t[5]])
    S(f's_lshl_b32 s{S_T0}, s2, 5'); S(f's_lshl_b32 s{S_T1}, s{S_WAVE}, 2'); S(f's_add_u32 s{S_T0}, s{S_T0}, s{S_T1}')
    S('s_mov_b64 exec, 0x10001')
    a.vmem(f'buffer_store_short v{A_}, v{t[5]}, s[{S_OUT}:{S_OUT+3}], s{S_T0} offen', [A_, t[5]], [])
    if REP:
        a.raw('s_memtime s[100:101]'); a.raw('s_memrealtime s[4:5]'); a.raw('s_waitcnt lgkmcnt(0)', kind='wait')
        S(f's_cmp_lg_u32 s{S_WAVE}, 4'); a.raw('s_cbranch_scc1 L_norep', kind='branch')
        S('s_and_b32 s6, s2, 0xfc'); S('s_cmp_lg_u32 s6, 100'); a.raw('s_cbranch_scc1 L_norep', kind='branch')
        S('s_sub_u32 s96, s96, s92'); S('s_sub_u32 s98, s98, s94'); S('s_sub_u32 s100, s100, s92'); S('s_sub_u32 s4, s4, s94')
        V('v_mov_b32 v16, s96', [], [16]); V('v_mov_b32 v17, s98', [], [17]); V('v_mov_b32 v18, s100', [], [18]); V('v_mov_b32 v19, s4', [], [19])
        S('s_and_b32 s6, s2, 3'); S('s_lshl_b32 s6, s6, 4'); V('v_mov_b32 v20, s6', [], [20])
        S('s_mov_b64 exec, 1')
        a.vmem(f'buffer_store_dwordx4 v[16:19], v20, s[{S_DBGF}:{S_DBGF+3}], 0 offen', [16,17,18,19,20], [])
        a.label('L_norep')
    dbg_out()
    a.raw('s_endpgm')

    a.label('L_loader')
    a.lds = []; a.vm = []; a.valu_w = {}; a.mfma_w = {}; a.mfma_c = {}; a.trans_w = {}; a.store_src = {}; a.opsel_w = {}
    stamp_n[0] = 1
    names_c = a.stamp_names; a.stamp_names = []
    LF = 18; LFA = 19; LSY = 20; LDA = 21; LDV = 22; LT = 23; WO = 32; PF = 40; LN = 24; LG = 64
    if TOUCH:
        V(f'v_mov_b32 v{t[0]}, 0', [], [t[0]])
        S('s_mov_b64 exec, 1')
        S(f's_mov_b32 s{S_T0}, {WS_INB - 256}')
        a.vmem(f'buffer_load_dword v{PF}, v{t[0]}, s[{S_WS}:{S_WS+3}], s{S_T0} offen', [t[0]], [PF])
        a.vmem(f'buffer_load_dword v{PF+1}, v{t[0]}, s[{S_DBGF}:{S_DBGF+3}], 0 offen sc1', [t[0]], [PF+1])
        a.vmem(f'buffer_load_dword v{PF+2}, v{t[0]}, s[{S_OUT}:{S_OUT+3}], 0 offen', [t[0]], [PF+2])
        a.vmem(f'buffer_load_dword v{PF+3}, v{t[0]}, s[{S_W1}:{S_W1+3}], 0 offen', [t[0]], [PF+3])
        a.vmem(f'buffer_load_dword v{PF+4}, v{t[0]}, s[{S_TAB}:{S_TAB+3}], 0 offen', [t[0]], [PF+4])
        a.vmem(f'buffer_load_dword v{PF+5}, v{t[0]}, s[{S_B1}:{S_B1+3}], 0 offen', [t[0]], [PF+5])
        a.vmem(f'buffer_load_dword v{PF+6}, v{t[0]}, s[{S_W2}:{S_W2+3}], 0 offen', [t[0]], [PF+6])
        fullexec()
    S(f's_movk_i32 s{S_T0}, 4682')
    for k in range(7):
        V(f'v_add_u32 v{t[0]}, {64*k}, v{V_LANE}', [V_LANE], [t[0]])
        V(f'v_mul_u32_u24 v{t[1]}, s{S_T0}, v{t[0]}', [t[0]], [t[1]])
        V(f'v_lshrrev_b32 v{t[1]}, 16, v{t[1]}', [t[1]], [t[1]])
        V(f'v_mul_u32_u24 v{t[2]}, {832 - 224}, v{t[1]}', [t[1]], [t[2]])
        V(f'v_lshl_add_u32 v{WO+k}, v{t[0]}, 4, v{t[2]}', [t[0], t[2]], [WO+k])
    V(f'v_lshlrev_b32 v{LFA}, 2, v{V_LANE}', [V_LANE], [LFA])
    V(f'v_mov_b32 v{LSY}, {SYNC}', [], [LSY])
    V(f'v_add_u32 v{LDA}, {SYNC}, v{LFA}', [LFA], [LDA])
    V(f'v_mov_b32 v{LT}, 0', [], [LT])
    execn(16)
    a.ds(f'ds_write_b32 v{LDA}, v{LT}', [LDA, LT])
    fullexec()
    V(f'v_and_b32 v{LDA}, 28, v{LFA}', [LFA], [LDA])
    V(f'v_add_u32 v{LDA}, {SYNC + 32}, v{LDA}', [LDA], [LDA])
    S(f's_mul_i32 s{S_KO}, s{S_ROT}, 26624'); S(f's_lshl_b32 s{S_T0}, s{S_T0L}, 5'); S(f's_add_u32 s{S_KO}, s{S_KO}, s{S_T0}')
    S(f's_add_u32 s{S_T3}, s{S_T0}, {13*26624}')
    def l_w1(i):
        for k in range(7):
            S(f's_mov_b32 m0, {CADDR[i] + 1024*k}', m0=True)
            a.vmem(f'buffer_load_dwordx4 v{WO+k}, s[{S_W1}:{S_W1+3}], s{S_KO} offen lds', [WO+k], [], tag=('c', i), dma=True)
        S(f's_add_u32 s{S_KO}, s{S_KO}, 26624'); S(f's_cmp_eq_u32 s{S_KO}, s{S_T3}'); S(f's_cselect_b32 s{S_T1}, {13*26624}, 0'); S(f's_sub_u32 s{S_KO}, s{S_KO}, s{S_T1}')
    def l_lin(tag, srd, src, dst, nbytes, sc=''):
        n = (nbytes + 1023) // 1024
        for pc in range(n):
            if pc % 4 == 0:
                S(f's_mov_b32 m0, {dst + 1024*pc}', m0=True)
                S(f's_mov_b32 s{S_T2}, {src + 1024*pc}')
            lanes = min(64, (nbytes - 1024*pc) // 16)
            if lanes < 64: execn(lanes)
            a.vmem(f'buffer_load_dwordx4 v{V_L16}, s[{srd}:{srd+3}], s{S_T2} offen offset:{1024*(pc%4)} {sc} lds', [V_L16], [], tag=tag, dma=True)
            if lanes < 64: fullexec()
    def publish(n, off):
        a.raw(f'v_mov_b32 v{LT}, {n}', kind='valu')
        a.raw(f'ds_write_b32 v{LSY}, v{LT} offset:{off}', kind='ds')
    def l_flag(lo, hi):
        mk = ((1 << hi) - 1) & ~((1 << lo) - 1)
        S(f's_mov_b64 exec, 0x{mk:x}')
        a.vmem(f'buffer_load_dword v{LF}, v{LFA}, s[{S_DBGF}:{S_DBGF+3}], 0 offen offset:128 sc1', [LFA], [LF])
        fullexec()
    def l_poll(lo, hi, lab, pre=None):
        mk = ((1 << hi) - 1) & ~((1 << lo) - 1)
        a._wait_regs([LF])
        S(f's_mov_b64 exec, 0x{mk:x}')
        S(f's_mov_b32 s{S_T0}, 0')
        a.label(f'L_poll{lab}')
        a.raw(f'v_cmp_eq_u32 vcc, 0, v{LF}', kind='valu')
        a.raw(f's_cbranch_vccz L_polldone{lab}', kind='branch')
        a.raw(f's_sleep {PSLEEP}')
        a.raw(f'buffer_load_dword v{LF}, v{LFA}, s[{S_DBGF}:{S_DBGF+3}], 0 offen offset:128 sc1', kind='vmem')
        S(f's_add_u32 s{S_T0}, s{S_T0}, 1')
        S(f's_cmp_lt_u32 s{S_T0}, 0x40000')
        a.raw('s_waitcnt vmcnt(0)', kind='wait')
        if pre: publish(pre, 0)
        a.raw(f's_cbranch_scc1 L_poll{lab}', kind='branch')
        a.label(f'L_polldone{lab}')
        fullexec()
    def l_wait_lds(addr, off, stage, lab):
        a.raw(f's_mov_b32 s{S_T1}, 0x100000', kind='salu')
        a.label(f'L_dw{lab}')
        a.raw(f'ds_read_b32 v{LDV}, v{addr} offset:{off}', kind='ds')
        a.raw(f's_sub_u32 s{S_T1}, s{S_T1}, 1', kind='salu')
        a.raw(f's_cbranch_scc1 L_dn{lab}', kind='branch')
        a.raw('s_waitcnt lgkmcnt(0)', kind='wait')
        a.raw(f'v_cmp_gt_u32 vcc, {stage}, v{LDV}', kind='valu')
        a.raw(f's_cbranch_vccz L_dn{lab}', kind='branch')
        a.raw('s_sleep 1')
        a.raw(f's_branch L_dw{lab}', kind='branch')
        a.label(f'L_dn{lab}')
    for aa in range(4):
        S(f's_add_u32 s{S_T0}, s{S_Q}, {aa}'); S(f's_and_b32 s{S_T0}, s{S_T0}, 3'); S(f's_lshl_b32 s{S_T0}, s{S_T0}, 3'); S(f's_or_b32 s{S_T0}, s{S_T0}, s{S_CB}')
        S(f's_mul_i32 s{S_T0}, s{S_T0}, 1664')
        S(f's_mov_b32 m0, {IDXB + 1664*aa}', m0=True)
        a.vmem(f'buffer_load_dwordx4 v{V_L16}, s[{S_IDX}:{S_IDX+3}], s{S_T0} offen lds', [V_L16], [], tag='tab', dma=True)
        execn(40)
        a.vmem(f'buffer_load_dwordx4 v{V_L16}, s[{S_IDX}:{S_IDX+3}], s{S_T0} offen offset:1024 lds', [V_L16], [], tag='tab', dma=True)
        fullexec()
    a.raw('s_waitcnt lgkmcnt(0)', kind='wait')
    l_lin('tab', S_TAB, 0, TAB, 32000)
    l_lin('tab', S_B1, 0, BW, 832); l_lin('tab', S_W2, 0, BW + 832, 832)
    for i in range(13):
        l_w1(i)
        if i == 2: a.wait_vm_tag('tab'); publish(1, 0)
        if i == 0: rawbar()
        if i >= 5 and i % 2 == 1:
            a.wait_vm_tag(('c', i - 4)); publish(i - 2, 0)
    l_flag(0, 1)
    stamp('w1iss')
    for i in (9, 11, 12):
        a.wait_vm_tag(('c', i)); publish(i + 2, 0)
    l_poll(0, 1, 'a'); stamp('polled')
    V(f'v_readlane_b32 s{S_T0}, v{LF}, 0', [LF], [], swrites=[S_T0], readlane=True)
    V(f'v_mov_b32 v{LN}, s{S_T0}', [], [LN], sreads=[S_T0])
    l_wait_lds(LDA, 0, 1, 'a')
    l_lin(('i', 0), S_WS, WS_IMG0, I0B, IMG0, 'sc1')
    l_lin(('i', 0), S_WS, WS_EWT, EWT, 640, 'sc1')
    S(f's_lshr_b32 s{S_T0}, s2, 3'); S(f's_mul_i32 s{S_T0}, s{S_T0}, 4480'); S(f's_add_u32 s{S_T0}, s{S_T0}, {WS_IMG[1]}')
    for q in range(5):
        if q == 4: S(f's_add_u32 s{S_T0}, s{S_T0}, 4096'); execn(24)
        a.vmem(f'buffer_load_dwordx4 {vr(PF+4*q,4)}, v{V_L16}, s[{S_WS}:{S_WS+3}], s{S_T0} offen offset:{1024*(q%4)} sc1', [V_L16], R(PF+4*q, 4))
    fullexec()
    a.wait_vm_tag(('i', 0)); publish(1, 8)
    l_wait_lds(LDA, 0, 2, 'b')
    l_lin(('i', 1), S_WS, WS_IMG[1], U[0], IMG, 'sc1')
    l_wait_lds(LDA, 0, 3, 'c'); stamp('dnndone')
    l_lin(('i', 2), S_WS, WS_IMG[2], U[1], IMG, 'sc1')
    a.wait_vm_tag(('i', 1)); publish(2, 8); stamp('i1')
    l_lin(('i', 3), S_WS, WS_IMG[3], U[2], IMG, 'sc1')
    a.wait_vm_tag(('i', 2)); publish(3, 8)
    l_flag(1, 2)
    l_wait_lds(LSY, 4, 8, 'd')
    V(f'v_lshlrev_b32 v{t[0]}, 3, v{V_LANE}', [V_LANE], [t[0]])
    V(f'v_add_u32 v{t[0]}, {PDL}, v{t[0]}', [t[0]], [t[0]])
    a.ds(f'ds_read_b64 {vr(LG+4,2)}, v{t[0]}', [t[0]], R(LG+4, 2))
    V(f'v_bfe_u32 v{t[1]}, v{V_LANE}, 3, 2', [V_LANE], [t[1]])
    V(f'v_add_u32 v{t[1]}, s{S_Q}, v{t[1]}', [t[1]], [t[1]])
    V(f'v_and_b32 v{t[1]}, 3, v{t[1]}', [t[1]], [t[1]])
    V(f'v_lshlrev_b32 v{t[1]}, 13, v{t[1]}', [t[1]], [t[1]])
    V(f'v_lshrrev_b32 v{t[2]}, 5, v{V_LANE}', [V_LANE], [t[2]])
    V(f'v_lshl_add_u32 v{t[1]}, v{t[2]}, 7, v{t[1]}', [t[2], t[1]], [t[1]])
    V(f'v_and_b32 v{t[2]}, 7, v{V_LANE}', [V_LANE], [t[2]])
    V(f'v_lshl_add_u32 v{t[1]}, v{t[2]}, 4, v{t[1]}', [t[2], t[1]], [t[1]])
    S(f's_lshl_b32 s{S_T0}, s{S_CB}, 10'); S(f's_lshl_b32 s{S_T1}, s{S_Q}, 8'); S(f's_add_u32 s{S_T0}, s{S_T0}, s{S_T1}'); S(f's_add_u32 s{S_T0}, s{S_T0}, {WS_INB}')
    V(f'v_mov_b32 v{LG}, v{LG+4}', [LG+4], [LG]); V(f'v_mov_b32 v{LG+1}, v{LN}', [LN], [LG+1])
    V(f'v_mov_b32 v{LG+2}, v{LG+5}', [LG+5], [LG+2]); V(f'v_mov_b32 v{LG+3}, v{LN}', [LN], [LG+3])
    a.vmem(f'buffer_store_dwordx4 {vr(LG,4)}, v{t[1]}, s[{S_WS}:{S_WS+3}], s{S_T0} offen sc1', [t[1]] + R(LG, 4), [], wide_store=R(LG, 4))
    a.wait_vm_tag(('i', 3)); publish(4, 8)
    l_wait_lds(LDA, 0, 4, 'e')
    l_lin(('i', 4), S_WS, WS_IMG[4], U[3], IMG, 'sc1')
    l_poll(1, 2, 'b')
    l_lin('v5f', S_WS, WS_V5F, V5F, 4096, 'sc1')
    a.wait_vm_tag(('i', 4)); publish(5, 8)
    a.wait_vm_all(); publish(6, 8); stamp('i5')
    S(f's_lshl_b32 s{S_T2}, s2, 10'); S(f's_add_u32 s{S_T2}, s{S_T2}, {WS_INB}')
    S(f's_mov_b32 s{S_T0}, 0')
    a.label('L_inb')
    a.raw(f'buffer_load_dwordx4 {vr(LG+8,4)}, v{V_L16}, s[{S_WS}:{S_WS+3}], s{S_T2} offen sc1', kind='vmem')
    S(f's_add_u32 s{S_T0}, s{S_T0}, 1')
    a.raw('s_waitcnt vmcnt(0)', kind='wait')
    a.raw(f'v_cmp_ne_u32 vcc, v{LN}, v{LG+9}', kind='valu')
    a.raw(f'v_cmp_ne_u32 s[{S_MT}:{S_MT+1}], v{LN}, v{LG+11}', kind='valu')
    a.raw('s_nop 1', kind='nop')
    a.raw(f's_or_b64 vcc, vcc, s[{S_MT}:{S_MT+1}]', kind='salu')
    a.raw('s_cbranch_vccz L_inbok', kind='branch')
    a.raw(f's_sleep {PSLEEP}')
    S(f's_cmp_lt_u32 s{S_T0}, 0x40000')
    a.raw('s_cbranch_scc1 L_inb', kind='branch')
    a.label('L_inbok')
    V(f'v_mov_b32 v{LG+9}, v{LG+10}', [LG+10], [LG+9])
    V(f'v_lshlrev_b32 v{t[0]}, 3, v{V_LANE}', [V_LANE], [t[0]])
    V(f'v_add_u32 v{t[0]}, {PD}, v{t[0]}', [t[0]], [t[0]])
    a.ds(f'ds_write_b64 v{t[0]}, {vr(LG+8,2)}', [t[0], LG+8, LG+9])
    publish(7, 8)
    dbg_out()
    a.label('L_end')
    a.raw('s_endpgm')
    a.stamp_names = (names_c, a.stamp_names)
    return a

HEADER = open('cdna_kernels/' + NAME + '.s.ref').read().split('; Override launch geometry')[0]
def wrap(a):
    s = HEADER
    s += f'; @launch grid=(256,1,1) block=(576,1,1) lds={LDS_TOTAL}\n'
    s += '.amdgcn_target "amdgcn-amd-amdhsa--gfx950"\n.text\n'
    s += f'.globl {NAME}_kernel\n.p2align 8\n.type {NAME}_kernel,@function\n{NAME}_kernel:\n'
    s += a.text()
    s += f'''.section .rodata,"a"
.p2align 6
.amdhsa_kernel {NAME}_kernel
  .amdhsa_next_free_vgpr {NV}
  .amdhsa_next_free_sgpr 102
  .amdhsa_accum_offset {NV}
  .amdhsa_group_segment_fixed_size 0
  .amdhsa_kernarg_size 88
  .amdhsa_user_sgpr_count 2
  .amdhsa_user_sgpr_kernarg_segment_ptr 1
  .amdhsa_system_sgpr_workgroup_id_x 1
  .amdhsa_float_denorm_mode_32 3
.end_amdhsa_kernel
'''
    return s

if __name__ == '__main__':
    import argparse
    ap = argparse.ArgumentParser()
    ap.add_argument('out', nargs='?', default='cdna_kernels/' + NAME + '.s')
    ap.add_argument('--dbg', type=int, default=0)
    ap.add_argument('--prio', type=int, default=1)
    ap.add_argument('--splitepi', type=int, default=1)
    args = ap.parse_args()
    a = gen(debug=args.dbg, PRIO=args.prio, SPLITEPI=args.splitepi)
    open(args.out, 'w').write(wrap(a))
    print(a.count, 'lines', len(a.lines), a.stamp_names)
```

```python
import sys, struct
sys.path.insert(0, 'gen')
from asmfw import *

NAME = 'standalone__deep_cross_xdeepfm__recsys'
IMG = 35776; IMG0 = 19136
U = [IMG * i for i in range(4)]
CH = 7168
CADDR = [121600 + CH * i for i in range(3)] + [CH * i for i in range(10)]
TAB = 71680; IDXB = 103680; SCR = 110336
I0B = 143104 - IMG0
X16 = 143104
V5F = 156672; EWT = 160768; POOLW = 161408; BW = 162048
PDL = V5F
PD = BW
SYNC = 163712
LDS_TOTAL = 163776
WS_IMG0 = 0
WS_IMG = [None] + [19200 + IMG * i for i in range(4)]
WS_V5F = 19200 + 4 * IMG
WS_EWT = WS_V5F + 4096
WS_IMGT = WS_IMG[4]; WS_V5R = WS_EWT + 1024
WS_INB = 0x40000
WS_SIZE = WS_INB + 256 * 1024
NP1 = 18; NP2 = 22; NPT = 29
S_IDX, S_TAB, S_WC, S_WCO, S_W1, S_B1, S_W2, S_BO, S_OUT, S_DBGF, S_WS = [24 + 4 * i for i in range(11)]
S_WAVE = 68; S_T0 = 69; S_T1 = 70; S_T2 = 71; S_T3 = 72; S_T4 = 73
S_HI = 74; S_C = 76; S_K7FFF = 77; S_K8000 = 78; S_Q = 79; S_K2 = 80; S_G = 81; S_HALF = 82
S_ROT = 83; S_MT = 84; S_PID = 86; S_CB = 87; S_XT = 88; S_T0L = 89; S_KO = 90; S_KN = 91; S_SET = 92; S_LAST = 93
SM = [4, 6, 8, 10, 12, 14, 16]
V_LANE = 1
V_T = list(range(2, 12))
V_STAMP = 12; V_E = 13; V_EX = 14; V_ACC = 15
P16 = 16; V_SH = 30; V_L16 = 31
XQ = 32; V_TRADDR = 39; D = 40
ZB = [56, 60, 64]; ZL = 68
AB = [72, 76, 80, 84, 4, 8]; NAB = 6; PFD = 5
PW = 88; EW = 102
V_PWADDR = 101; V_DBADDR = 115
DACC = 116; DA = 132; DB = 148
QH = 152
V_AADDR = [159, 160]; V_AADDR0 = 161; V_DAADDR = 162; V_DBK = 163; V_BWADDR = 164; V_SYNC = 165; V_RDY = 166; V_DONEA = 167
G = DACC; UA = DA
PBT = 68
VT1 = 158; VT2 = 159; VT3 = 160
DA2 = 88; DB2 = 104
NV = 168

import os
PX = int(os.environ.get('PX', '0'))
NL = int(os.environ.get('NL', '5'))
REP = int(os.environ.get('REP', '0'))
PSLEEP = int(os.environ.get('PSLEEP', '6'))
TOUCH = int(os.environ.get('TOUCH', '1'))
XP = os.environ.get('XP', '')
KNOP = int(os.environ.get('KNOP', '0'))
FINSTEP = int(os.environ.get('FINSTEP', '2'))
DG = int(os.environ.get('DG', '1'))
BPRIO = int(os.environ.get('BPRIO', '0'))
EPRIO = os.environ.get('EPRIO')
TABP = int(os.environ.get('TABP', '1'))
SETS = os.environ.get('SETS', 'd')
LBAR = int(os.environ.get('LBAR', '7'))
def fb(x): return '0x%08x' % struct.unpack('<I', struct.pack('<f', x))[0]

def gen(debug=None, PRIO=1, SPLITEPI=1, LPRE=24):
    a = Asm()
    V = a.valu; S = a.salu
    t = V_T
    stamp_n = [0]
    a.stamp_names = []
    def stamp(name=''):
        if not debug: return
        a.wait_lds_all()
        a.raw('s_memtime s[98:99]')
        a.raw('s_waitcnt lgkmcnt(0)', kind='wait')
        a.valu(f'v_writelane_b32 v{V_STAMP}, s98, {stamp_n[0]}', [], [V_STAMP])
        a.stamp_names.append(name)
        stamp_n[0] += 1
    def execn(n):
        if n <= 32: S(f's_mov_b64 exec, 0x{(1<<n)-1:x}')
        else: S(f's_mov_b32 exec_hi, 0x{(1<<(n-32))-1:x}')
    def fullexec(): S('s_mov_b64 exec, -1')
    def rawbar(): a.raw('s_barrier', kind='barrier')
    def dbg_out():
        if not debug: return
        fullexec()
        stamp('end')
        a.valu(f'v_writelane_b32 v{V_STAMP}, s100, 62', [], [V_STAMP])
        a.raw('s_memrealtime s[98:99]')
        a.raw('s_waitcnt lgkmcnt(0)', kind='wait')
        a.valu(f'v_writelane_b32 v{V_STAMP}, s98, 63', [], [V_STAMP])
        V(f'v_lshlrev_b32 v{t[0]}, 2, v0', [0], [t[0]])
        S(f's_mul_i32 s{S_T0}, s2, 2304'); S(f's_add_u32 s{S_T0}, s{S_T0}, 0x100000')
        a.vmem(f'buffer_store_dword v{V_STAMP}, v{t[0]}, s[{S_WS}:{S_WS+3}], s{S_T0} offen', [V_STAMP, t[0]], [])
    S('s_cmp_ge_u32 s2, 256')
    a.raw('s_cbranch_scc1 L_end', kind='branch')
    if debug:
        a.raw('s_memrealtime s[100:101]')
        stamp('start')
    if REP:
        a.raw('s_memtime s[92:93]'); a.raw('s_memrealtime s[94:95]')
    a.raw('s_load_dwordx16 s[4:19], s[0:1], 0')
    a.raw('s_load_dwordx4 s[20:23], s[0:1], 64')
    a.raw(f's_load_dwordx2 s[{S_WS}:{S_WS+1}], s[0:1], 80')
    V(f'v_and_b32 v{V_LANE}, 63, v0', [0], [V_LANE])
    V(f'v_lshrrev_b32 v{t[0]}, 6, v0', [0], [t[0]])
    V(f'v_readfirstlane_b32 s{S_WAVE}, v{t[0]}', [t[0]], [], swrites=[S_WAVE], readlane=True)
    S(f's_mov_b32 s{S_K7FFF}, 0x7fff7fff'); S(f's_mov_b32 s{S_K8000}, 0x80008000'); S(f's_mov_b32 s{S_HALF}, 0x38003800')
    S(f's_mov_b32 s{S_HI}, 0'); S(f's_mov_b32 s{S_HI+1}, -1')
    V(f'v_lshlrev_b32 v{V_L16}, 4, v{V_LANE}', [V_LANE], [V_L16])
    S(f's_lshr_b32 s{S_T0}, s2, 3'); S(f's_and_b32 s{S_Q}, s{S_T0}, 3'); S(f's_lshr_b32 s{S_T1}, s{S_T0}, 2')
    S(f's_lshr_b32 s{S_ROT}, s{S_T1}, 1'); S(f's_add_u32 s{S_ROT}, s{S_ROT}, s{S_T1}')
    S(f's_andn2_b32 s{S_CB}, s2, 0x18')
    if SETS == 'd':
        S(f's_and_b32 s{S_T1}, s2, 7'); S(f's_cmp_eq_u32 s{S_T1}, 7'); S(f's_cselect_b32 s{S_SET}, 8, 0'); S(f's_cselect_b32 s{S_T1}, 0, s{S_T1}')
        S(f's_cmp_eq_u32 s{S_T1}, 0'); S(f's_cselect_b32 s{S_PID}, s{S_T0}, 255')
    else:
        S(f's_mov_b32 s{S_SET}, 0'); S(f's_and_b32 s{S_T1}, s2, 7'); S(f's_cmp_eq_u32 s{S_T1}, {SETS}'); S(f's_cselect_b32 s{S_PID}, s{S_T0}, 255')
    S(f's_lshl_b32 s{S_G}, s{S_PID}, 3'); S(f's_add_u32 s{S_G}, s{S_G}, s{S_WAVE}', sreads=[S_WAVE])
    S(f's_min_u32 s{S_T0L}, s{S_Q}, 1'); S(f's_mul_i32 s{S_T1}, s{S_Q}, 6'); S(f's_add_u32 s{S_T0L}, s{S_T0L}, s{S_T1}')
    S(f's_cmp_lt_u32 s{S_WAVE}, 4'); S(f's_cselect_b32 s{S_XT}, 1, 0'); S(f's_cmp_lt_u32 s{S_Q}, 2'); S(f's_cselect_b32 s{S_XT}, s{S_XT}, 0')
    a.raw('s_waitcnt lgkmcnt(0)', kind='wait')
    sizes = [425984, 32000, 210912, 312, 346112, 832, 832, 2, 8192, 256]
    srds = [S_IDX, S_TAB, S_WC, S_WCO, S_W1, S_B1, S_W2, S_BO, S_OUT, S_DBGF]
    for i in range(10):
        sb, sz = srds[i], sizes[i]
        S(f's_mov_b32 s{sb}, s{4+2*i}'); S(f's_and_b32 s{sb+1}, s{5+2*i}, 0xffff')
        S(f's_mov_b32 s{sb+2}, {sz}'); S(f's_mov_b32 s{sb+3}, 0x00020000')
    S(f's_and_b32 s{S_WS+1}, s{S_WS+1}, 0xffff'); S(f's_mov_b32 s{S_WS+2}, {0x1000000 if debug else WS_SIZE}'); S(f's_mov_b32 s{S_WS+3}, 0x00020000')
    S(f's_cmp_eq_u32 s{S_WAVE}, 8')
    a.raw('s_cbranch_scc1 L_loader', kind='branch')

    def dpp_max(m):
        for d in ('row_shr:1 row_mask:0xf', 'row_shr:2 row_mask:0xf', 'row_shr:4 row_mask:0xf', 'row_shr:8 row_mask:0xf', 'row_bcast:15 row_mask:0xa', 'row_bcast:31 row_mask:0xc'):
            V(f'v_max_u32_dpp v{m}, v{m}, v{m} {d} bank_mask:0xf', [m], [m], dpp=True)
    def rho_salu(sh, st1, st2, clamp=True):
        S(f's_cmp_ge_u32 s{sh}, 13'); S(f's_cselect_b32 s{st1}, 1, 0')
        S(f's_mul_i32 s{st2}, s{st1}, 13'); S(f's_sub_u32 s{sh}, s{sh}, s{st2}')
        S(f's_lshl_b32 s{st2}, s{st1}, 2')
        S(f's_lshl_b32 s{st1}, s{st1}, 4'); S(f's_add_u32 s{st1}, s{st1}, s{sh}')
        S(f's_add_u32 s{st2}, s{st2}, s{sh}'); S(f's_and_b32 s{sh}, s{sh}, 12'); S(f's_add_u32 s{sh}, s{sh}, s{st2}')
        if clamp: S(f's_add_u32 s{sh}, s{sh}, 1'); S(f's_cmp_eq_u32 s{sh}, 29'); S(f's_cselect_b32 s{sh}, 0, s{sh}')

    V(f'v_mov_b32 v{V_SYNC}, {SYNC}', [], [V_SYNC])
    PWT = 136; BIGR = 137
    V(f'v_mov_b32 v{BIGR}, 0x7f000000', [], [BIGR])
    V(f'v_lshrrev_b32 v{t[0]}, 4, v0', [0], [t[0]])
    V(f'v_and_b32 v{t[1]}, 15, v0', [0], [t[1]])
    V(f'v_mad_u32_u24 v{t[0]}, v{t[0]}, 13, v{t[1]}', [t[0], t[1]], [t[0]])
    V(f'v_lshlrev_b32 v{t[0]}, 1, v{t[0]}', [t[0]], [t[0]])
    V(f'v_cmp_gt_u32 vcc, 13, v{t[1]}', [t[1]], [], swrites=['vcc'])
    V(f'v_cndmask_b32 v{t[0]}, v{BIGR}, v{t[0]}, vcc', [BIGR, t[0]], [t[0]], sreads=['vcc'])
    S(f's_cmp_gt_u32 s{S_WAVE}, 2')
    a.cond_begin('s_cbranch_scc1 L_nopw', 'L_nopw')
    a.vmem(f'buffer_load_ushort v{PWT}, v{t[0]}, s[{S_WCO}:{S_WCO+3}], 0 offen', [t[0]], [PWT])
    a.cond_end()
    V(f'v_mov_b32 v{t[2]}, 0', [], [t[2]])
    a.vmem(f'buffer_load_ushort v{V_ACC}, v{t[2]}, s[{S_BO}:{S_BO+3}], 0 offen', [t[2]], [V_ACC])
    def sym_addr(p, srow, wsbase):
        V(f'v_lshrrev_b32 v{p[3]}, 1, v{p[0]}', [p[0]], [p[3]])
        V(f'v_and_b32 v{p[4]}, 1, v{p[0]}', [p[0]], [p[4]])
        V(f'v_subrev_u32 v{p[5]}, 1, v{p[3]}', [p[3]], [p[5]])
        V(f'v_mul_i32_i24 v{p[5]}, v{p[5]}, v{p[3]}', [p[5], p[3]], [p[5]])
        V(f'v_lshrrev_b32 v{p[5]}, 1, v{p[5]}', [p[5]], [p[5]])
        V(f'v_mul_u32_u24 v{p[6]}, 12, v{p[3]}', [p[3]], [p[6]])
        V(f'v_sub_u32 v{p[6]}, v{p[6]}, v{p[5]}', [p[6], p[5]], [p[6]])
        V(f'v_mul_u32_u24 v{p[5]}, 92, v{p[4]}', [p[4]], [p[5]])
        V(f'v_add_u32 v{p[6]}, v{p[6]}, v{p[5]}', [p[6], p[5]], [p[6]])
        V(f'v_lshl_add_u32 v{p[6]}, v{p[1]}, 1, v{p[6]}', [p[1], p[6]], [p[6]])
        V(f'v_lshlrev_b32 v{p[6]}, 2, v{p[6]}', [p[6]], [p[6]])
        V(f'v_add_u32 v{p[6]}, s{S_T3}, v{p[6]}', [p[6]], [p[6]])
        V(f'v_lshlrev_b32 v{p[5]}, 1, v{p[1]}', [p[1]], [p[5]])
        V(f'v_sub_u32 v{p[3]}, v{p[3]}, v{p[5]}', [p[3], p[5]], [p[3]])
        V(f'v_cmp_gt_u32 vcc, 26, v{p[0]}', [p[0]], [], swrites=['vcc'])
        V(f'v_mov_b32 v{p[5]}, 100', [], [p[5]])
        V(f'v_cndmask_b32 v{p[3]}, v{p[5]}, v{p[3]}, vcc', [p[5], p[3]], [p[3]], sreads=['vcc'])
        V(f'v_add_u32 v{p[8]}, s{S_T3}, v{V_L16}', [V_L16], [p[8]])
        V(f'v_cmp_le_u32 vcc, 23, v{V_LANE}', [V_LANE], [], swrites=['vcc'])
        V(f'v_cndmask_b32 v{p[9]}, 0, 1, vcc', [], [p[9]], sreads=['vcc'])
        S(f's_mov_b32 s{S_T0}, s{srow}')
        rho_salu(S_T0, S_T1, S_T4)
        V(f'v_mul_u32_u24 v{p[9]}, {25*368}, v{p[9]}', [p[9]], [p[9]])
        V(f'v_add_u32 v{p[9]}, v{p[9]}, v{V_L16}', [p[9], V_L16], [p[9]])
        S(f's_mul_i32 s{S_T0}, s{S_T0}, 368'); S(f's_add_u32 s{S_T0}, s{S_T0}, {wsbase}')

    def sym_out(p, SD, MF, IF, ewl):
        m = p[10]
        V(f'v_max3_f32 v{m}, |v{SD}|, |v{SD+1}|, |v{SD+2}|', R(SD, 3), [m])
        for r in range(3, 15, 2):
            V(f'v_max3_f32 v{m}, |v{SD+r}|, |v{SD+r+1}|, v{m}', [SD+r, SD+r+1, m], [m])
        dpp_max(m)
        V(f'v_frexp_exp_i32_f32 v{m}, v{m}', [m], [m])
        V(f'v_readlane_b32 s{S_T4}, v{m}, 63', [m], [], swrites=[S_T4], readlane=True)
        S(f's_sub_i32 s{S_C}, 15, s{S_T4}', sreads=[S_T4])
        S(f's_sub_i32 s{S_T4}, s{S_T4}, 15')
        for r in range(14): V(f'v_ldexp_f32 v{SD+r}, v{SD+r}, s{S_C}', [SD+r], [SD+r])
        for rp in range(7):
            V(f'v_cvt_pk_f16_f32 v{MF+rp}, v{SD+2*rp}, v{SD+2*rp+1}', [SD+2*rp, SD+2*rp+1], [MF+rp])
        V(f'v_mov_b32 v{p[7]}, 0', [], [p[7]])
        V(f'v_mov_b32 v{p[13]}, s{S_T3}', [], [p[13]])
        a.ds(f'ds_write_b32 v{p[13]}, v{p[7]} offset:364', [p[13], p[7]])
        a.ds(f'ds_write_b32 v{p[13]}, v{p[7]} offset:732', [p[13], p[7]])
        for rp in range(7):
            aa, bb = rp >> 1, rp & 1
            V(f'v_cmp_ge_i32 vcc, {4*aa+bb}, v{p[3]}', [p[3]], [], swrites=['vcc'])
            if aa == 3: S('s_mov_b32 vcc_hi, 0', sreads=['vcc'])
            S('s_mov_b64 exec, vcc', sreads=['vcc'])
            a.ds(f'ds_write_b32 v{p[6]}, v{MF+rp} offset:{4*(4*aa+bb)}', [p[6], MF+rp])
            fullexec()
        a.raw('s_waitcnt lgkmcnt(0)', kind='wait')
        a.ds(f'ds_read_b128 {vr(IF,4)}, v{p[8]}', [p[8]], R(IF, 4))
        execn(46)
        a.vmem(f'buffer_store_dwordx4 {vr(IF,4)}, v{p[9]}, s[{S_WS}:{S_WS+3}], s{S_T0} offen sc1', [p[9]] + R(IF, 4), [], wide_store=R(IF, 4))
        fullexec()
        S(f's_lshl_b32 s{S_T1}, s{S_T1}, 2'); S(f's_add_u32 s{S_T1}, s{S_T1}, {WS_EWT + 128 * ewl}')
        V(f'v_mov_b32 v{p[11]}, s{S_T4}', [], [p[11]]); V(f'v_mov_b32 v{p[12]}, s{S_T1}', [], [p[12]])
        S('s_mov_b64 exec, 1')
        a.vmem(f'buffer_store_dword v{p[11]}, v{p[12]}, s[{S_WS}:{S_WS+3}], 0 offen sc1', [p[11], p[12]], [])

    S(f's_cmp_ge_u32 s{S_PID}, {NP2}')
    a.cond_begin('s_cbranch_scc1 L_noprod', 'L_noprod')
    p = [72 + i for i in range(16)]
    VF = 138
    S(f's_cmp_ge_u32 s{S_PID}, {NP1}'); S(f's_cselect_b32 s{S_T0}, 4, 0')
    S(f's_lshl_b32 s{S_T1}, s{S_PID}, 2'); S(f's_add_u32 s{S_T1}, s{S_T1}, 8'); S(f's_cmp_lt_u32 s{S_PID}, 4'); S(f's_cselect_b32 s{S_T0}, s{S_T1}, s{S_T0}')
    V(f'v_mov_b32 v{VF+1}, s{S_T0}', [], [VF+1])
    a.vmem(f'buffer_load_dword v{VF}, v{VF+1}, s[{S_DBGF}:{S_DBGF+3}], 0 offen offset:128 sc1', [VF+1], [VF])
    def skipchk():
        V(f'v_readfirstlane_b32 s{S_MT}, v{VF}', [VF], [], swrites=[S_MT], readlane=True)
        S(f's_cmp_lg_u32 s{S_MT}, 0', sreads=[S_MT])
        a.raw('s_cbranch_scc1 L_prodskip', kind='branch')
    S(f's_cmp_ge_u32 s{S_G}, 112'); a.raw('s_cbranch_scc1 L_prodv5', kind='branch')
    S(f's_cmp_ge_u32 s{S_G}, 110'); a.raw('s_cbranch_scc1 L_noprod', kind='branch')
    S(f's_cmp_ge_u32 s{S_G}, 32'); a.raw('s_cbranch_scc1 L_prodrow', kind='branch')
    S(f's_cmp_ge_u32 s{S_G}, 26'); a.raw('s_cbranch_scc1 L_noprod', kind='branch')
    MF = 116; IF = 124; SD = 40
    V(f'v_and_b32 v{p[0]}, 31, v{V_LANE}', [V_LANE], [p[0]])
    V(f'v_lshrrev_b32 v{p[1]}, 5, v{V_LANE}', [V_LANE], [p[1]])
    V(f'v_mul_u32_u24 v{p[2]}, 52, v{p[0]}', [p[0]], [p[2]])
    V(f'v_lshl_add_u32 v{p[2]}, v{p[1]}, 4, v{p[2]}', [p[1], p[2]], [p[2]])
    S(f's_mul_i32 s{S_T2}, s{S_G}, 1352')
    a.vmem(f'buffer_load_dwordx4 {vr(MF,4)}, v{p[2]}, s[{S_WC}:{S_WC+3}], s{S_T2} offen', [p[2]], R(MF, 4))
    a.vmem(f'buffer_load_dwordx4 {vr(MF+4,4)}, v{p[2]}, s[{S_WC}:{S_WC+3}], s{S_T2} offen offset:32', [p[2]], R(MF+4, 4))
    V(f'v_lshlrev_b32 v{p[3]}, 3, v{p[1]}', [p[1]], [p[3]])
    V(f'v_sub_u32 v{p[3]}, v{p[0]}, v{p[3]}', [p[0], p[3]], [p[3]])
    V(f'v_and_b32 v{p[4]}, 1, v{p[3]}', [p[3]], [p[4]])
    V(f'v_lshlrev_b32 v{p[4]}, 4, v{p[4]}', [p[4]], [p[4]])
    V(f'v_mov_b32 v{p[5]}, 0x3f80', [], [p[5]])
    V(f'v_lshlrev_b32 v{p[4]}, v{p[4]}, v{p[5]}', [p[4], p[5]], [p[4]])
    V(f'v_ashrrev_i32 v{p[3]}, 1, v{p[3]}', [p[3]], [p[3]])
    for ks in range(2):
        for r in range(4):
            V(f'v_cmp_eq_u32 vcc, {8*ks + r}, v{p[3]}', [p[3]], [], swrites=['vcc'])
            V(f'v_cndmask_b32 v{IF+4*ks+r}, 0, v{p[4]}, vcc', [p[4]], [IF+4*ks+r], sreads=['vcc'])
    S(f's_lshl_b32 s{S_T3}, s{S_WAVE}, 10'); S(f's_add_u32 s{S_T3}, s{S_T3}, {SCR}')
    sym_addr(p, S_G, WS_IMG0)
    a.raw('s_waitcnt vmcnt(0)', kind='wait')
    skipchk()
    a.mfma('v_mfma_f32_32x32x16_bf16', SD, MF, IF, None, 8, 16)
    a.mfma('v_mfma_f32_32x32x16_bf16', SD, MF+4, IF+4, SD, 8, 16)
    a.mfma('v_mfma_f32_32x32x16_bf16', SD, IF, MF, SD, 8, 16)
    a.mfma('v_mfma_f32_32x32x16_bf16', SD, IF+4, MF+4, SD, 8, 16)
    sym_out(p, SD, MF, IF, 0)
    a.raw('s_branch L_prodfin', kind='branch')
    a.label('L_prodrow')
    S(f's_sub_u32 s{S_G}, s{S_G}, 32')
    PR = 40; PA = 48
    S(f's_mul_i32 s{S_T2}, s{S_G}, 1352'); S(f's_add_u32 s{S_T2}, s{S_T2}, 35152')
    V(f'v_cmp_le_u32 vcc, 43, v{V_LANE}', [V_LANE], [], swrites=['vcc'])
    V(f'v_cndmask_b32 v{p[0]}, 0, 1, vcc', [], [p[0]], sreads=['vcc'])
    V(f'v_mul_u32_u24 v{p[2]}, 12, v{p[0]}', [p[0]], [p[2]])
    V(f'v_sub_u32 v{p[2]}, v{V_L16}, v{p[2]}', [V_L16, p[2]], [p[2]])
    a.vmem(f'buffer_load_dwordx4 {vr(PR,4)}, v{p[2]}, s[{S_WC}:{S_WC+3}], s{S_T2} offen', [p[2]], R(PR, 4))
    V(f'v_min_u32 v{p[3]}, 21, v{V_LANE}', [V_LANE], [p[3]])
    V(f'v_lshlrev_b32 v{p[4]}, 4, v{p[3]}', [p[3]], [p[4]])
    a.vmem(f'buffer_load_dwordx4 {vr(PR+4,4)}, v{p[4]}, s[{S_WC}:{S_WC+3}], s{S_T2} offen offset:1012', [p[4]], R(PR+4, 4))
    S(f's_mul_i32 s{S_T1}, s{S_G}, 2521'); S(f's_lshr_b32 s{S_T1}, s{S_T1}, 16')
    S(f's_mul_i32 s{S_T3}, s{S_T1}, 26'); S(f's_sub_u32 s{S_T0}, s{S_G}, s{S_T3}')
    rho_salu(S_T0, S_T3, S_T4)
    V(f'v_mul_u32_u24 v{p[7]}, {25*688}, v{p[0]}', [p[0]], [p[7]])
    V(f'v_add_u32 v{p[7]}, v{p[7]}, v{V_L16}', [p[7], V_L16], [p[7]])
    V(f'v_add_u32 v{p[8]}, {26*688+336}, v{p[4]}', [p[4]], [p[8]])
    S(f's_mul_i32 s{S_T0}, s{S_T0}, 688'); S(f's_mul_i32 s{S_T2}, s{S_T1}, {IMG}'); S(f's_add_u32 s{S_T2}, s{S_T2}, s{S_T0}'); S(f's_add_u32 s{S_T2}, s{S_T2}, {WS_IMG[1]}')
    S(f's_lshl_b32 s{S_T1}, s{S_T1}, 5'); S(f's_add_u32 s{S_T1}, s{S_T1}, s{S_T3}'); S(f's_add_u32 s{S_T1}, s{S_T1}, 32')
    a.raw('s_waitcnt vmcnt(0)', kind='wait')
    skipchk()
    for i in range(8): V(f'v_and_b32 v{PA+i}, s{S_K7FFF}, v{PR+i}', [PR+i], [PA+i])
    m = p[11]
    V(f'v_pk_maximum3_f16 v{m}, v{PA}, v{PA+1}, v{PA+2}', R(PA, 3), [m])
    V(f'v_pk_maximum3_f16 v{m}, v{m}, v{PA+3}, v{PA+4}', [m, PA+3, PA+4], [m])
    V(f'v_pk_maximum3_f16 v{m}, v{m}, v{PA+5}, v{PA+6}', [m, PA+5, PA+6], [m])
    V(f'v_pk_max_u16 v{m}, v{m}, v{PA+7}', [m, PA+7], [m])
    V(f'v_max_u16_sdwa v{m}, v{m}, v{m} dst_sel:DWORD dst_unused:UNUSED_PAD src0_sel:WORD_1 src1_sel:WORD_0', [m], [m], opsel=True)
    dpp_max(m)
    V(f'v_readlane_b32 s{S_T0}, v{m}, 63', [m], [], swrites=[S_T0], readlane=True)
    S(f's_lshr_b32 s{S_T0}, s{S_T0}, 7', sreads=[S_T0], swrites=[S_T0])
    S(f's_sub_i32 s{S_T0}, s{S_T0}, 30'); S(f's_max_i32 s{S_T0}, s{S_T0}, 0')
    S(f's_mul_i32 s{S_C}, s{S_T0}, 0x800080'); S(f's_sub_i32 s{S_T0}, s{S_T0}, 112')
    for i in range(8): V(f'v_pk_sub_u16 v{PA+i}, v{PA+i}, s{S_C} clamp', [PA+i], [PA+i])
    for i in range(8): V(f'v_lshlrev_b32 v{PA+i}, 3, v{PA+i}', [PA+i], [PA+i])
    for i in range(8): V(f'v_bfi_b32 v{PA+i}, s{S_K8000}, v{PR+i}, v{PA+i}', [PA+i, PR+i], [PA+i])
    a.vmem(f'buffer_store_dwordx4 {vr(PA,4)}, v{p[7]}, s[{S_WS}:{S_WS+3}], s{S_T2} offen sc1', [p[7]] + R(PA, 4), [], wide_store=R(PA, 4))
    execn(22)
    a.vmem(f'buffer_store_dwordx4 {vr(PA+4,4)}, v{p[8]}, s[{S_WS}:{S_WS+3}], s{S_T2} offen sc1', [p[8]] + R(PA+4, 4), [], wide_store=R(PA+4, 4))
    S(f's_lshl_b32 s{S_T1}, s{S_T1}, 2'); S(f's_add_u32 s{S_T1}, s{S_T1}, {WS_EWT}')
    V(f'v_mov_b32 v{p[9]}, s{S_T0}', [], [p[9]]); V(f'v_mov_b32 v{p[10]}, s{S_T1}', [], [p[10]])
    S('s_mov_b64 exec, 1')
    a.vmem(f'buffer_store_dword v{p[9]}, v{p[10]}, s[{S_WS}:{S_WS+3}], 0 offen sc1', [p[9], p[10]], [])
    a.raw('s_branch L_prodfin', kind='branch')
    a.label('L_prodv5')
    S(f's_sub_u32 s{S_T0}, s{S_G}, 112'); S(f's_lshr_b32 s{S_T3}, s{S_T0}, 5'); S(f's_and_b32 s{S_T0}, s{S_T0}, 31')
    S(f's_cmp_ge_u32 s{S_T0}, 26'); a.raw('s_cbranch_scc1 L_noprod', kind='branch')
    LA = 40; LB = 44; AC = 48
    S(f's_mul_i32 s{S_T2}, s{S_T0}, 52'); S(f's_mul_i32 s{S_T1}, s{S_T3}, 35152'); S(f's_add_u32 s{S_T2}, s{S_T2}, s{S_T1}'); S(f's_add_u32 s{S_T2}, s{S_T2}, {4*35152}')
    V(f'v_lshrrev_b32 v{p[0]}, 2, v{V_LANE}', [V_LANE], [p[0]])
    V(f'v_and_b32 v{p[1]}, 3, v{V_LANE}', [V_LANE], [p[1]])
    V(f'v_mul_u32_u24 v{p[2]}, 0x548, v{p[0]}', [p[0]], [p[2]])
    V(f'v_lshl_add_u32 v{p[2]}, v{p[1]}, 4, v{p[2]}', [p[1], p[2]], [p[2]])
    a.vmem(f'buffer_load_dwordx4 {vr(LA,4)}, v{p[2]}, s[{S_WC}:{S_WC+3}], s{S_T2} offen', [p[2]], R(LA, 4))
    S(f's_add_u32 s{S_T2}, s{S_T2}, {16*1352}')
    a.vmem(f'buffer_load_dwordx4 {vr(LB,4)}, v{p[2]}, s[{S_WC}:{S_WC+3}], s{S_T2} offen', [p[2]], R(LB, 4))
    V(f'v_lshlrev_b32 v{p[3]}, 1, v{p[0]}', [p[0]], [p[3]])
    S(f's_mul_i32 s{S_T2}, s{S_T3}, 52')
    a.vmem(f'buffer_load_ushort v{p[4]}, v{p[3]}, s[{S_WCO}:{S_WCO+3}], s{S_T2} offen offset:208', [p[3]], [p[4]])
    a.vmem(f'buffer_load_ushort v{p[5]}, v{p[3]}, s[{S_WCO}:{S_WCO+3}], s{S_T2} offen offset:240', [p[3]], [p[5]])
    S(f's_lshl_b32 s{S_C}, s{S_T0}, 7'); S(f's_add_u32 s{S_C}, s{S_C}, {WS_V5R}')
    rho_salu(S_T0, S_T1, S_T4, clamp=False)
    S(f's_lshl_b32 s{S_T0}, s{S_T0}, 4'); S(f's_add_u32 s{S_T0}, s{S_T0}, {WS_V5F}')
    S(f's_cmp_eq_u32 s{S_T3}, 0'); S(f's_cselect_b32 s{S_T0}, s{S_T0}, s{S_C}'); S(f's_cselect_b32 s{S_T1}, 10, 4'); S(f's_movk_i32 s{S_T4}, 0x200'); S(f's_cselect_b32 s{S_T4}, s{S_T4}, 64')
    V(f'v_lshlrev_b32 v{p[6]}, s{S_T1}, v{p[1]}', [p[1]], [p[6]])
    V(f'v_add_u32 v{p[15]}, s{S_T4}, v{p[6]}', [p[6]], [p[15]])
    a.raw('s_waitcnt vmcnt(0)', kind='wait')
    skipchk()
    V(f'v_cmp_ne_u32 vcc, 3, v{p[1]}', [p[1]], [], swrites=['vcc'])
    for r in (1, 2, 3):
        V(f'v_cndmask_b32 v{LA+r}, 0, v{LA+r}, vcc', [LA+r], [LA+r], sreads=['vcc'])
        V(f'v_cndmask_b32 v{LB+r}, 0, v{LB+r}, vcc', [LB+r], [LB+r], sreads=['vcc'])
    V(f'v_lshlrev_b32 v{p[4]}, 16, v{p[4]}', [p[4]], [p[4]])
    V(f'v_lshlrev_b32 v{p[5]}, 16, v{p[5]}', [p[5]], [p[5]])
    V(f'v_cmp_gt_u32 vcc, 10, v{p[0]}', [p[0]], [], swrites=['vcc'])
    V(f'v_cndmask_b32 v{p[5]}, 0, v{p[5]}, vcc', [p[5]], [p[5]], sreads=['vcc'])
    for r in range(4):
        V(f'v_lshlrev_b32 v{p[7]}, 16, v{LA+r}', [LA+r], [p[7]])
        V(f'v_and_b32 v{p[8]}, 0xffff0000, v{LA+r}', [LA+r], [p[8]])
        V(f'v_lshlrev_b32 v{p[9]}, 16, v{LB+r}', [LB+r], [p[9]])
        V(f'v_and_b32 v{p[10]}, 0xffff0000, v{LB+r}', [LB+r], [p[10]])
        V(f'v_mul_f32 v{AC+2*r}, v{p[4]}, v{p[7]}', [p[4], p[7]], [AC+2*r])
        V(f'v_mul_f32 v{AC+2*r+1}, v{p[4]}, v{p[8]}', [p[4], p[8]], [AC+2*r+1])
        V(f'v_fmac_f32 v{AC+2*r}, v{p[5]}, v{p[9]}', [AC+2*r, p[5], p[9]], [AC+2*r])
        V(f'v_fmac_f32 v{AC+2*r+1}, v{p[5]}, v{p[10]}', [AC+2*r+1, p[5], p[10]], [AC+2*r+1])
    for d in (4, 8):
        for e in range(8):
            V(f'v_add_f32_dpp v{AC+e}, v{AC+e}, v{AC+e} row_ror:{d} row_mask:0xf bank_mask:0xf', [AC+e], [AC+e], dpp=True)
    for op in ('v_permlane16_swap_b32', 'v_permlane32_swap_b32'):
        for e in range(8): V(f'v_mov_b32 v{p[7+e]}, v{AC+e}', [AC+e], [p[7+e]])
        for e in range(8): V(f'{op} v{AC+e}, v{p[7+e]}', [AC+e, p[7+e]], [AC+e, p[7+e]], permlane=True)
        for e in range(8): V(f'v_add_f32 v{AC+e}, v{AC+e}, v{p[7+e]}', [AC+e, p[7+e]], [AC+e])
    for r in range(4):
        V(f'v_cvt_pk_bf16_f32 v{LA+r}, v{AC+2*r}, v{AC+2*r+1}', [AC+2*r, AC+2*r+1], [LA+r])
        V(f'v_lshlrev_b32 v{p[7]}, 16, v{LA+r}', [LA+r], [p[7]])
        V(f'v_and_b32 v{p[8]}, 0xffff0000, v{LA+r}', [LA+r], [p[8]])
        V(f'v_sub_f32 v{p[7]}, v{AC+2*r}, v{p[7]}', [AC+2*r, p[7]], [p[7]])
        V(f'v_sub_f32 v{p[8]}, v{AC+2*r+1}, v{p[8]}', [AC+2*r+1, p[8]], [p[8]])
        V(f'v_cvt_pk_bf16_f32 v{LB+r}, v{p[7]}, v{p[8]}', [p[7], p[8]], [LB+r])
    execn(4)
    a.vmem(f'buffer_store_dwordx4 {vr(LA,4)}, v{p[6]}, s[{S_WS}:{S_WS+3}], s{S_T0} offen sc1', [p[6]] + R(LA, 4), [], wide_store=R(LA, 4))
    a.vmem(f'buffer_store_dwordx4 {vr(LB,4)}, v{p[15]}, s[{S_WS}:{S_WS+3}], s{S_T0} offen sc1', [p[15]] + R(LB, 4), [], wide_store=R(LB, 4))
    a.label('L_prodfin')
    fullexec()
    a.raw('s_branch L_afterprod', kind='branch')
    a.label('L_prodskip')
    S(f's_mov_b32 s{S_PID}, 255')
    a.cond_end()
    a.raw('s_waitcnt vmcnt(0)', kind='wait')
    a.label('L_afterprod')
    a.vm = []
    a.raw('s_waitcnt lgkmcnt(0)', kind='wait'); a.lds = []
    a.nop(12)
    stamp('prod')
    def addr_setup():
        V(f'v_and_b32 v{t[0]}, 31, v{V_LANE}', [V_LANE], [t[0]])
        V(f'v_cmp_gt_u32 vcc, 28, v{t[0]}', [t[0]], [], swrites=['vcc'])
        V(f'v_addc_co_u32 v{t[4]}, vcc, 0, v{t[0]}, vcc', [t[0]], [t[4]], sreads=['vcc'], swrites=['vcc'])
        V(f'v_cmp_eq_u32 s[{S_MT}:{S_MT+1}], 28, v{t[0]}', [t[0]], [], swrites=[S_MT, S_MT+1])
        V(f'v_cndmask_b32 v{t[4]}, v{t[4]}, 0, s[{S_MT}:{S_MT+1}]', [t[4]], [t[4]], sreads=[S_MT])
        V(f'v_lshrrev_b32 v{t[1]}, 5, v{V_LANE}', [V_LANE], [t[1]])
        V(f'v_mad_u32_u24 v{t[4]}, v{t[1]}, 26, v{t[4]}', [t[1], t[4]], [t[4]])
        V(f'v_cmp_gt_u32 vcc, 25, v{t[0]}', [t[0]], [], swrites=['vcc'])
        S(f's_or_b64 vcc, vcc, s[{S_MT}:{S_MT+1}]', sreads=['vcc', S_MT])
        V(f'v_mov_b32 v{t[5]}, 0x40000', [], [t[5]])
        V(f'v_cndmask_b32 v{t[5]}, v{t[5]}, 0, vcc', [t[5]], [t[5]])
        S(f's_movk_i32 s{S_T0}, 0x2b0'); S(f's_movk_i32 s{S_T1}, 0x170')
        V(f'v_mad_u32_u24 v{V_AADDR[0]}, v{t[4]}, s{S_T0}, v{t[5]}', [t[4], t[5]], [V_AADDR[0]])
        V(f'v_add_u32 v{V_AADDR[1]}, {U[2]}, v{V_AADDR[0]}', [V_AADDR[0]], [V_AADDR[1]])
        V(f'v_mad_u32_u24 v{V_AADDR0}, v{t[4]}, s{S_T1}, v{t[5]}', [t[4], t[5]], [V_AADDR0])
        V(f'v_add_u32 v{V_AADDR0}, {I0B}, v{V_AADDR0}', [V_AADDR0], [V_AADDR0])
    V(f'v_and_b32 v{t[0]}, 31, v{V_LANE}', [V_LANE], [t[0]])
    V(f'v_lshlrev_b32 v{t[0]}, 2, v{t[0]}', [t[0]], [t[0]])
    S(f's_mul_i32 s{S_T0}, s{S_WAVE}, 1664'); S(f's_add_u32 s{S_T0}, s{S_T0}, {X16}')
    V(f'v_add_u32 v{V_TRADDR}, s{S_T0}, v{t[0]}', [t[0]], [V_TRADDR])
    V(f'v_lshrrev_b32 v{t[4]}, 4, v{V_LANE}', [V_LANE], [t[4]])
    V(f'v_lshrrev_b32 v{t[0]}, 2, v{V_LANE}', [V_LANE], [t[0]])
    V(f'v_mul_u32_u24 v{t[0]}, 224, v{t[0]}', [t[0]], [t[0]])
    V(f'v_and_b32 v{t[5]}, 3, v{V_LANE}', [V_LANE], [t[5]])
    V(f'v_lshl_add_u32 v{t[0]}, v{t[5]}, 3, v{t[0]}', [t[5], t[0]], [t[0]])
    V(f'v_mov_b32 v{V_DAADDR}, v{t[0]}', [t[0]], [V_DAADDR])
    V(f'v_add_u32 v{V_DBK}, 121600, v{V_DAADDR}', [V_DAADDR], [V_DBK])
    S(f's_lshl_b32 s{S_T1}, s{S_T0L}, 5'); S(f's_add_u32 s{S_T1}, s{S_T1}, {BW}')
    V(f'v_lshlrev_b32 v{t[4]}, 3, v{t[4]}', [t[4]], [t[4]])
    V(f'v_add_u32 v{V_BWADDR}, s{S_T1}, v{t[4]}', [t[4]], [V_BWADDR])
    V(f'v_mov_b32 v{V_SYNC}, {SYNC}', [], [V_SYNC])
    S(f's_lshl_b32 s{S_T0}, s{S_WAVE}, 2'); S(f's_add_u32 s{S_T0}, s{S_T0}, {SYNC + 32}')
    V(f'v_mov_b32 v{V_DONEA}, s{S_T0}', [], [V_DONEA])
    S(f's_cmp_gt_u32 s{S_WAVE}, 2')
    a.cond_begin('s_cbranch_scc1 L_nopw2', 'L_nopw2')
    V(f'v_lshlrev_b32 v{PWT}, 16, v{PWT}', [PWT], [PWT])
    V(f'v_lshlrev_b32 v{t[0]}, 2, v0', [0], [t[0]])
    V(f'v_add_u32 v{t[0]}, {POOLW}, v{t[0]}', [t[0]], [t[0]])
    V(f'v_cmp_gt_u32 vcc, 0xa0, v0', [0], [], swrites=['vcc'])
    S('s_mov_b64 exec, vcc', sreads=['vcc'])
    a.ds(f'ds_write_b32 v{t[0]}, v{PWT}', [t[0], PWT])
    fullexec()
    a.cond_end()
    a.barrier()
    S(f's_cmp_ge_u32 s{S_PID}, {NP2}')
    a.raw('s_cbranch_scc1 L_nocnt', kind='branch')
    a.raw('s_waitcnt vmcnt(0)', kind='wait')
    a.raw(f'v_mov_b32 v{VT1}, 1', kind='valu')
    S('s_mov_b64 exec, 1')
    a.raw(f'ds_add_rtn_u32 v{VT2}, v{V_SYNC}, v{VT1} offset:12', kind='ds')
    a.raw(f's_memrealtime s[{S_MT}:{S_MT+1}]')
    a.raw('s_waitcnt lgkmcnt(0)', kind='wait')
    a.raw(f'v_readfirstlane_b32 s{S_T0}, v{VT2}', kind='valu')
    a.raw('s_nop 0', kind='nop')
    S(f's_cmp_lg_u32 s{S_T0}, 7')
    a.raw('s_cbranch_scc1 L_nocnt', kind='branch')
    S(f's_cmp_ge_u32 s{S_PID}, 4')
    a.raw('s_cbranch_scc1 L_cntat', kind='branch')
    S(f's_lshl_b32 s{S_T0}, s{S_PID}, 2')
    a.raw(f'v_mov_b32 v{VT2}, s{S_T0}', kind='valu')
    a.raw(f'buffer_store_dword v{VT1}, v{VT2}, s[{S_DBGF}:{S_DBGF+3}], 0 offen offset:136 sc1', kind='vmem')
    a.raw('s_branch L_nocnt', kind='branch')
    a.label('L_cntat')
    S(f's_cmp_ge_u32 s{S_PID}, {NP1}'); S(f's_cselect_b32 s{S_T0}, 4, 0'); S(f's_cselect_b32 s{S_T1}, {NP2 - NP1 - 1}, {NP1 - 4 - 1}')
    S(f's_add_u32 s{S_T2}, s{S_T0}, s{S_SET}')
    a.raw(f'v_mov_b32 v{VT2}, s{S_T2}', kind='valu')
    a.raw(f'buffer_atomic_add v{VT1}, v{VT2}, s[{S_DBGF}:{S_DBGF+3}], 0 offen offset:64 sc0 sc1', kind='vmem')
    a.raw('s_waitcnt vmcnt(0)', kind='wait')
    a.raw(f'v_readfirstlane_b32 s{S_T2}, v{VT1}', kind='valu')
    a.raw('s_nop 0', kind='nop')
    S(f's_cmp_lg_u32 s{S_T2}, s{S_T1}')
    a.raw('s_cbranch_scc1 L_nocnt', kind='branch')
    S(f's_or_b32 s{S_MT}, s{S_MT}, 1')
    a.raw(f'v_mov_b32 v{VT1}, s{S_MT}', kind='valu')
    a.raw(f'v_mov_b32 v{VT2}, 0', kind='valu')
    a.raw(f'v_mov_b32 v{VT3}, s{S_T0}', kind='valu')
    a.raw(f'buffer_atomic_cmpswap v[{VT1}:{VT2}], v{VT3}, s[{S_DBGF}:{S_DBGF+3}], 0 offen offset:128 sc1', kind='vmem')
    a.label('L_nocnt')
    fullexec()
    S(f's_mov_b32 s{S_KN}, 0')
    stamp('setup')

    chk_n = [0]
    def rdy_fetch(off): a.ds(f'ds_read_b32 v{V_RDY}, v{V_SYNC} offset:{off}', [V_SYNC], [V_RDY])
    def rdy_check(nseq, off, fetched=False):
        if not fetched: rdy_fetch(off)
        i = chk_n[0]; chk_n[0] += 1
        V(f'v_readfirstlane_b32 s{S_T0}, v{V_RDY}', [V_RDY], [], swrites=[S_T0], readlane=True)
        S(f's_cmp_ge_u32 s{S_T0}, {nseq}', sreads=[S_T0])
        a.cond_begin(f's_cbranch_scc1 L_ok{i}', f'L_ok{i}')
        a.raw(f's_mov_b32 s{S_T1}, 0x100000', kind='salu')
        a.label(f'L_sp{i}')
        a.raw('s_sleep 1')
        a.raw(f'ds_read_b32 v{V_RDY}, v{V_SYNC} offset:{off}', kind='ds')
        a.raw(f's_sub_u32 s{S_T1}, s{S_T1}, 1', kind='salu')
        a.raw(f's_cbranch_scc1 L_ok{i}', kind='branch')
        a.raw('s_waitcnt lgkmcnt(0)', kind='wait')
        a.raw(f'v_readfirstlane_b32 s{S_T0}, v{V_RDY}', kind='valu')
        a.raw('s_nop 0', kind='nop')
        a.raw(f's_cmp_ge_u32 s{S_T0}, {nseq}', kind='salu')
        a.raw(f's_cbranch_scc0 L_sp{i}', kind='branch')
        a.cond_end()
    def cnt_check(nseq):
        i = chk_n[0]; chk_n[0] += 1
        S(f's_cmp_ge_u32 s{S_KN}, {nseq}')
        a.cond_begin(f's_cbranch_scc1 L_ok{i}', f'L_ok{i}')
        a.raw(f's_mov_b32 s{S_T1}, 0x100000', kind='salu')
        a.label(f'L_sp{i}')
        a.raw(f'ds_read_b32 v{V_RDY}, v{V_SYNC}', kind='ds')
        a.raw(f's_sub_u32 s{S_T1}, s{S_T1}, 1', kind='salu')
        a.raw(f's_cbranch_scc1 L_ok{i}', kind='branch')
        a.raw('s_waitcnt lgkmcnt(0)', kind='wait')
        a.raw(f'v_readfirstlane_b32 s{S_KN}, v{V_RDY}', kind='valu')
        a.raw('s_nop 0', kind='nop')
        a.raw(f's_cmp_ge_u32 s{S_KN}, {nseq}', kind='salu')
        a.raw(f's_cbranch_scc1 L_ok{i}', kind='branch')
        a.raw('s_sleep 1')
        a.raw(f's_branch L_sp{i}', kind='branch')
        a.cond_end()
    def release(stage):
        V(f'v_mov_b32 v{t[0]}, {stage}', [], [t[0]])
        a.ds(f'ds_write_b32 v{V_DONEA}, v{t[0]}', [V_DONEA, t[0]])

    def x0_ops():
        ops = []
        PB = PBT
        def rd():
            V(f'v_lshlrev_b32 v{V_ACC}, 16, v{V_ACC}', [V_ACC], [V_ACC])
            V(f'v_and_b32 v{t[0]}, 47, v{V_LANE}', [V_LANE], [t[0]])
            V(f'v_cmp_eq_u32 vcc, 0, v{t[0]}', [t[0]], [], swrites=['vcc'])
            V(f'v_cndmask_b32 v{V_ACC}, 0, v{V_ACC}, vcc', [V_ACC], [V_ACC], sreads=['vcc'])
        ops.append(rd)
        m = t[1]
        def c1():
            for v in range(13): V(f'v_and_b32 v{P16+v}, s{S_K7FFF}, v{PB+v}', [PB+v], [P16+v])
        ops.append(c1)
        def c2():
            V(f'v_pk_maximum3_f16 v{m}, v{P16}, v{P16+1}, v{P16+2}', R(P16, 3), [m])
            for v in range(3, 13, 2):
                V(f'v_pk_maximum3_f16 v{m}, v{m}, v{P16+v}, v{P16+v+1}', [m, P16+v, P16+v+1], [m])
            V(f'v_max_u16_sdwa v{m}, v{m}, v{m} dst_sel:DWORD dst_unused:UNUSED_PAD src0_sel:WORD_1 src1_sel:WORD_0', [m], [m], opsel=True)
            V(f'v_lshrrev_b32 v{m}, 7, v{m}', [m], [m])
            V(f'v_subrev_u32 v{m}, 21, v{m}', [m], [m])
            V(f'v_max_i32 v{m}, 0, v{m}', [m], [m])
            V(f'v_subrev_u32 v{V_EX}, 112, v{m}', [m], [V_EX])
            V(f'v_mul_u32_u24 v{m}, 0x800080, v{m}', [m], [m])
        ops.append(c2)
        ops.append(lambda: [V(f'v_pk_sub_u16 v{P16+v}, v{P16+v}, v{m} clamp', [P16+v, m], [P16+v]) for v in range(13)])
        ops.append(lambda: [V(f'v_lshlrev_b32 v{P16+v}, 3, v{P16+v}', [P16+v], [P16+v]) for v in range(13)])
        ops.append(lambda: [V(f'v_bfi_b32 v{P16+v}, s{S_K8000}, v{PB+v}, v{P16+v}', [P16+v, PB+v], [P16+v]) for v in range(13)])
        def qq():
            V(f'v_mov_b32 v{P16+13}, 0', [], [P16+13])
            V(f'v_mov_b32 v{t[2]}, 0x05040100', [], [t[2]])
            V(f'v_mov_b32 v{t[1]}, 0x07060302', [], [t[1]])
            V(f'v_cndmask_b32 v{t[2]}, v{t[2]}, v{t[1]}, s[{S_HI}:{S_HI+1}]', [t[2], t[1]], [t[2]])
            for q in range(7):
                V(f'v_perm_b32 v{XQ+q}, v{P16+2*q+1}, v{P16+2*q}, v{t[2]}', [P16+2*q+1, P16+2*q, t[2]], [XQ+q])
        ops.append(qq)
        def q2():
            V(f'v_lshlrev_b32 v{V_E}, 1, v{V_EX}', [V_EX], [V_E])
        ops.append(q2)
        return ops

    ACC = 40; DAB = [68, 96]; DBB = [124, 128]; IXR = 132; NDB = 2
    def dnn_bread(i):
        db = DBB[i % NDB]
        a.ds(f'ds_read_b64 {vr(db,2)}, v{IXR+2*i}', [IXR+2*i], R(db, 2))
        a.ds(f'ds_read_b64 {vr(db+2,2)}, v{IXR+2*i+1}', [IXR+2*i+1], R(db+2, 2))
        if i == 11: V(f'v_add_u32 v{V_DAADDR}, 57344, v{V_DAADDR}', [V_DAADDR], [V_DAADDR])
    def dnn_aread(i, q):
        da = DAB[i % NDB]
        hi = i < 3
        ad = V_DBK if hi else V_DAADDR; b0 = CADDR[i] - (121600 if hi else 0)
        if i >= 11: b0 -= 57344
        a.ds(f'ds_read_b64_tr_b16 {vr(da+4*q,2)}, v{ad} offset:{b0+32*q}', [ad], R(da+4*q, 2))
        a.ds(f'ds_read_b64_tr_b16 {vr(da+4*q+2,2)}, v{ad} offset:{b0+32*q+3584}', [ad], R(da+4*q+2, 2))
    def dnn_mf(i, q):
        a.mfma('v_mfma_f32_16x16x32_bf16', ACC+4*q, DAB[i % NDB]+4*q, DBB[i % NDB], ACC+4*q, 4, 4)
    def dnn_epilogue(xt):
        K1 = -2.0 * 1.4426950408889634 * 0.7978845608028654
        K2 = K1 * 0.044715
        acc = 124; K1R = 125; W2T = 96; TT = 68
        qs = list(range(0 if xt else 1, 7))
        S(f's_mov_b32 s{S_K2}, {fb(K2)}')
        for q in qs:
            a.ds(f'ds_read_b64 {vr(W2T+2*q,2)}, v{V_BWADDR} offset:{832+32*q}', [V_BWADDR], R(W2T+2*q, 2))
        V(f'v_mov_b32 v{K1R}, {fb(K1)}', [], [K1R])
        V(f'v_mov_b32 v{acc}, 0', [], [acc])
        xs = [ACC + 4*q + r for q in qs for r in range(4)]
        ts = [TT + 4*q + r for q in qs for r in range(4)]
        for x, tt in zip(xs, ts): V(f'v_mul_f32 v{tt}, v{x}, v{x}', [x], [tt])
        for x, tt in zip(xs, ts): V(f'v_fma_f32 v{tt}, v{tt}, s{S_K2}, v{K1R}', [tt, K1R], [tt])
        for x, tt in zip(xs, ts): V(f'v_mul_f32 v{tt}, v{tt}, v{x}', [tt, x], [tt])
        for x, tt in zip(xs, ts): V(f'v_exp_f32 v{tt}, v{tt}', [tt], [tt], trans=True)
        for x, tt in zip(xs, ts): V(f'v_add_f32 v{tt}, 1.0, v{tt}', [tt], [tt])
        for x, tt in zip(xs, ts): V(f'v_rcp_f32 v{tt}, v{tt}', [tt], [tt], trans=True)
        for x, tt in zip(xs, ts): V(f'v_mul_f32 v{tt}, v{tt}, v{x}', [tt, x], [tt])
        for q in qs:
            w = W2T + 2*q; x0_ = ACC + 4*q
            V(f'v_lshlrev_b32 v{x0_}, 16, v{w}', [w], [x0_])
            V(f'v_and_b32 v{x0_+1}, 0xffff0000, v{w}', [w], [x0_+1])
            V(f'v_lshlrev_b32 v{x0_+2}, 16, v{w+1}', [w+1], [x0_+2])
            V(f'v_and_b32 v{x0_+3}, 0xffff0000, v{w+1}', [w+1], [x0_+3])
        for x, tt in zip(xs, ts): V(f'v_fmac_f32 v{acc}, v{tt}, v{x}', [acc, tt, x], [acc])
        for op in ('v_permlane16_swap_b32', 'v_permlane32_swap_b32'):
            V(f'v_mov_b32 v{K1R}, v{acc}', [acc], [K1R])
            V(f'{op} v{acc}, v{K1R}', [acc, K1R], [acc, K1R], permlane=True)
            V(f'v_add_f32 v{acc}, v{acc}, v{K1R}', [acc, K1R], [acc])
        V(f'v_lshlrev_b32 v{t[0]}, 2, v{V_LANE}', [V_LANE], [t[0]])
        S(f's_and_b32 s{S_T0}, s{S_WAVE}, 3'); S(f's_lshl_b32 s{S_T0}, s{S_T0}, 6'); S(f's_add_u32 s{S_T0}, s{S_T0}, {PDL}')
        V(f'v_add_u32 v{t[0]}, s{S_T0}, v{t[0]}', [t[0]], [t[0]])
        V(f'v_mov_b32 v{t[1]}, 1', [], [t[1]])
        execn(16)
        a.ds(f'ds_write_b32 v{t[0]}, v{acc}', [t[0], acc])
        execn(1)
        a.ds(f'ds_add_u32 v{V_SYNC}, v{t[1]} offset:4', [V_SYNC, t[1]])
        fullexec()
    def u5_ops():
        ops = []
        def rd():
            V(f'v_add_u32 v{t[0]}, {V5F}, v{V_L16}', [V_L16], [t[0]])
            for k in range(4):
                a.ds(f'ds_read_b128 {vr(UA+4*k,4)}, v{t[0]} offset:{1024*k}', [t[0]], R(UA+4*k, 4))
            for k in range(4):
                a.ds(f'ds_read_b128 {vr(G+4*k,4)}, v{V_PWADDR} offset:{POOLW-EWT+128*3+16*k}', [V_PWADDR], R(G+4*k, 4))
        ops.append(rd)
        for k in range(4):
            def rb(k=k):
                for e in range(4 if k < 3 else 1):
                    a.ds(f'ds_read_b32 v{DB+e}, v{V_TRADDR} offset:{128*(4*k+e)}', [V_TRADDR], [DB+e])
            ops.append(rb)
            ops += [lambda: None] * 4
            if k == 3:
                def zz():
                    for r in (1, 2, 3): V(f'v_mov_b32 v{DB+r}, 0', [], [DB+r])
                ops.append(zz)
            ops.append(lambda k=k: a.mfma('v_mfma_f32_32x32x16_bf16', G, UA+4*k, DB, G, 8, 16))
            ops.append(lambda: None)
        return ops

    def boundary_ops(l):
        ops = []
        s_ = ZB[2]; mx = ZB[2]+1; my = ZB[2]+2
        W = PW if l < 4 else G
        for r in range(13):
            ops.append(lambda r=r: V(f'v_ldexp_f32 v{D+r}, v{D+r}, v{EW+r}', [D+r, EW+r], [D+r]))
        if l < 4:
            ops.append(lambda: V(f'v_max3_f32 v{mx}, |v{D}|, |v{D+1}|, |v{D+2}|', R(D, 3), [mx]))
            for r in range(3, 13, 2):
                ops.append(lambda r=r: V(f'v_max3_f32 v{mx}, |v{D+r}|, |v{D+r+1}|, v{mx}', [D+r, D+r+1, mx], [mx]))
            ops.append(lambda: V(f'v_mov_b32 v{my}, v{mx}', [mx], [my]))
        ops.append(lambda: V(f'v_mul_f32 v{s_}, v{D}, v{W}', [D, W], [s_]))
        ops.append(lambda: V(f'v_fmac_f32 v{s_}, v{D+1}, v{W+1}', [s_, D+1, W+1], [s_]))
        if l < 4:
            ops.append(lambda: V(f'v_permlane32_swap_b32 v{mx}, v{my}', [mx, my], [mx, my], permlane=True))
        ops.append(lambda: V(f'v_fmac_f32 v{s_}, v{D+2}, v{W+2}', [s_, D+2, W+2], [s_]))
        if l < 4:
            ops.append(lambda: V(f'v_max_f32 v{mx}, v{mx}, v{my}', [mx, my], [mx]))
            ops.append(lambda: V(f'v_frexp_exp_i32_f32 v{mx}, v{mx}', [mx], [mx]))
            ops.append(lambda: V(f'v_sub_u32 v{V_SH}, 8, v{mx}', [mx], [V_SH]))
        for r in range(3, 13):
            ops.append(lambda r=r: V(f'v_fmac_f32 v{s_}, v{D+r}, v{W+r}', [s_, D+r, W+r], [s_]))
        if l < 4:
            for r in range(13):
                ops.append(lambda r=r: V(f'v_ldexp_f32 v{D+r}, v{D+r}, v{V_SH}', [D+r, V_SH], [D+r]))
            for q in range(7):
                hi = D + 2*q + 1 if q < 6 else D + 12
                ops.append(lambda q=q, hi=hi: V(f'v_cvt_pk_f16_f32 v{XQ+q}, v{D+2*q}, v{hi}', [D+2*q, hi], [XQ+q]))
        ops.append(lambda: V(f'v_ldexp_f32 v{s_}, v{s_}, v{V_E}', [s_, V_E], [s_]))
        ops.append(lambda: V(f'v_add_f32 v{V_ACC}, v{V_ACC}, v{s_}', [V_ACC, s_], [V_ACC]))
        if l < 4:
            ops.append(lambda: V(f'v_sub_u32 v{V_E}, v{V_E}, v{V_SH}', [V_E, V_SH], [V_E]))
            ops.append(lambda: V(f'v_add_u32 v{V_E}, v{V_E}, v{V_EX}', [V_E, V_EX], [V_E]))
        if l == 0:
            ops.append(lambda: V(f'v_mov_b32 v{ZL+1}, 0', [], [ZL+1]))
            ops.append(lambda: V(f'v_mov_b32 v{ZL+2}, 0', [], [ZL+2]))
        return ops
    NK = [23, 43, 43, 43, 23]
    DT = 132
    ISLOT = [None, 0, 1, 2, 3]
    def a_read(l, k):
        b = AB[k % NAB]
        if l in (0, 4): ad = V_AADDR0; off = 16 * k
        else:
            sl = ISLOT[l]; ad = V_AADDR[sl >> 1]; off = IMG * (sl & 1) + 16 * k
        a.ds(f'ds_read_b128 {vr(b,4)}, v{ad} offset:{off}', [ad], R(b, 4))
    PAIRS0 = [(u, v) for u in range(13) for v in range(u, 13)]
    def zbuf(l, k):
        if k == NK[l] - 1: return ZL
        return ZB[k % 3]
    def z_ops(l, k):
        ops = []
        zb = zbuf(l, k)
        for e in range(4):
            q = 4 * k + e
            if l in (0, 4):
                if q >= 91: break
                i, v = PAIRS0[q]; src = (QH if i == v else XQ) + (i >> 1)
            else:
                if q >= 169: break
                i, v = divmod(q, 13); src = XQ + (i >> 1)
            o = i & 1
            ops.append(lambda zb=zb, e=e, src=src, v=v, o=o: V(f'v_pk_mul_f16 v{zb+e}, v{src}, v{P16+v} op_sel:[{o},0] op_sel_hi:[{o},1]', [src, P16+v], [zb+e]))
        return ops
    def pwrd(l):
        lst = {3: ((EW, 128 * 3),), 4: ((PW, 128 * 4),)}.get(l, ((PW, POOLW - EWT + 128 * l), (EW, 128 * l)))
        for base, off in lst:
            for k in range(3):
                a.ds(f'ds_read_b128 {vr(base+4*k,4)}, v{V_PWADDR} offset:{off+16*k}', [V_PWADDR], R(base+4*k, 4))
            a.ds(f'ds_read_b32 v{base+12}, v{V_PWADDR} offset:{off+48}', [V_PWADDR], [base+12])

    OX = 96
    V(f'v_bfe_u32 v{t[0]}, v{V_LANE}, 4, 1', [V_LANE], [t[0]])
    V(f'v_mul_u32_u24 v{t[0]}, 104, v{t[0]}', [t[0]], [t[0]])
    V(f'v_and_b32 v{t[1]}, 12, v{V_LANE}', [V_LANE], [t[1]])
    V(f'v_add_u32 v{t[0]}, v{t[0]}, v{t[1]}', [t[0], t[1]], [t[0]])
    S(f's_mul_i32 s{S_T0}, s{S_WAVE}, 208'); S(f's_add_u32 s{S_T0}, s{S_T0}, {IDXB}')
    V(f'v_add_u32 v{t[8]}, s{S_T0}, v{t[0]}', [t[0]], [t[8]])
    V(f'v_and_b32 v{t[6]}, 3, v{V_LANE}', [V_LANE], [t[6]])
    V(f'v_lshlrev_b32 v{t[6]}, 3, v{t[6]}', [t[6]], [t[6]])
    V(f'v_add_u32 v{t[6]}, {TAB}, v{t[6]}', [t[6]], [t[6]])
    V(f'v_lshrrev_b32 v{t[7]}, 4, v{V_LANE}', [V_LANE], [t[7]])
    V(f'v_lshlrev_b32 v{t[7]}, 3, v{t[7]}', [t[7]], [t[7]])
    V(f'v_add_u32 v{t[7]}, {TAB}, v{t[7]}', [t[7]], [t[7]])
    V(f'v_and_b32 v{t[9]}, 15, v{V_LANE}', [V_LANE], [t[9]])
    V(f'v_mul_u32_u24 v{t[9]}, 104, v{t[9]}', [t[9]], [t[9]])
    cnt_check(1)
    stamp('tab')
    for q in range(7): a.ds(f'ds_read_b32 v{OX+q}, v{t[8]} offset:{16*q}', [t[8]], [OX+q])
    isB = f's_cmp_{"ge" if DG else "lt"}_u32 s{S_WAVE}, 4'
    isA = f's_cmp_{"lt" if DG else "ge"}_u32 s{S_WAVE}, 4'
    S(isA)
    a.cond_begin('s_cbranch_scc1 L_noix', 'L_noix')
    a.raw('s_setprio 3')
    S(f's_and_b32 s{S_T0}, s{S_WAVE}, 3'); S(f's_mul_i32 s{S_T0}, s{S_T0}, 1664'); S(f's_add_u32 s{S_T0}, s{S_T0}, {IDXB}')
    S(f's_add_u32 s{S_T2}, s{S_T0}, 104'); S(f's_lshl_b32 s{S_KO}, s{S_ROT}, 3'); S(f's_add_u32 s{S_KO}, s{S_KO}, s{S_T0}')
    for i in range(13):
        tt = t[2 + (i % 4)]
        V(f'v_add_u32 v{tt}, s{S_KO}, v{t[9]}', [t[9]], [tt])
        a.ds(f'ds_read_b64 {vr(IXR+2*i,2)}, v{tt}', [tt], R(IXR+2*i, 2))
        if i < 12:
            S(f's_add_u32 s{S_KO}, s{S_KO}, 8'); S(f's_cmp_eq_u32 s{S_KO}, s{S_T2}'); S(f's_cselect_b32 s{S_KO}, s{S_T0}, s{S_KO}')
    BT = 104
    for q in range(7):
        a.ds(f'ds_read_b64 {vr(BT+2*q,2)}, v{V_BWADDR} offset:{32*q}', [V_BWADDR], R(BT+2*q, 2))
    a.cond_end()
    for q in range(7):
        V(f'v_min_u32 v{OX+q}, 0x3e7, v{OX+q}', [OX+q], [OX+q])
        V(f'v_lshl_add_u32 v{OX+q}, v{OX+q}, 5, v{t[6]}', [OX+q, t[6]], [OX+q])
        a.ds(f'ds_read_b64_tr_b16 {vr(PBT+2*q,2)}, v{OX+q}', [OX+q], R(PBT+2*q, 2))
    for v in range(13): a.ds(f'ds_write_b32 v{V_TRADDR}, v{PBT+v} offset:{128*v}', [V_TRADDR, PBT+v])
    a.wait_lds_all()
    stamp('x0')
    S(isB)
    a.raw('s_cbranch_scc1 L_grpB', kind='branch')
    release(3)
    S(f's_cmp_lt_u32 s{S_PID}, {NP2}'); a.raw('s_cbranch_scc1 L_x0prep', kind='branch')
    S(f's_cmp_ge_u32 s{S_PID}, {NPT}'); a.raw('s_cbranch_scc1 L_x0prep', kind='branch')
    p = [84 + i for i in range(16)]
    TD = 100; F1 = 116; F2 = 124; F3 = 132; TF = 140; TI = S_SET + 2
    S(f's_sub_u32 s{TI}, s{S_PID}, {NP2}'); S(f's_lshl_b32 s{TI}, s{TI}, 2'); S(f's_and_b32 s{S_T4}, s{S_WAVE}, 3'); S(f's_add_u32 s{TI}, s{TI}, s{S_T4}')
    S(f's_mul_i32 s{S_T3}, s{S_T4}, 1664'); S(f's_add_u32 s{S_T3}, s{S_T3}, {SCR + 3328}')
    V(f'v_lshrrev_b32 v{p[0]}, 2, v{V_LANE}', [V_LANE], [p[0]])
    V(f'v_and_b32 v{p[1]}, 3, v{V_LANE}', [V_LANE], [p[1]])
    V(f'v_mul_u32_u24 v{p[2]}, 0x548, v{p[0]}', [p[0]], [p[2]])
    V(f'v_lshl_add_u32 v{p[2]}, v{p[1]}, 4, v{p[2]}', [p[1], p[2]], [p[2]])
    S(f's_min_u32 s{S_T2}, s{TI}, 25'); S(f's_mul_i32 s{S_T2}, s{S_T2}, 52'); S(f's_add_u32 s{S_T2}, s{S_T2}, {4*35152}')
    S(f's_mov_b32 m0, s{S_T3}', m0=True)
    a.vmem(f'buffer_load_dwordx4 v{p[2]}, s[{S_WC}:{S_WC+3}], s{S_T2} offen lds', [p[2]], [], dma=True)
    S(f's_add_u32 m0, s{S_T3}, 1024', m0=True); S(f's_add_u32 s{S_T2}, s{S_T2}, {16*1352}')
    execn(40)
    a.vmem(f'buffer_load_dwordx4 v{p[2]}, s[{S_WC}:{S_WC+3}], s{S_T2} offen lds', [p[2]], [], dma=True)
    fullexec()
    V(f'v_mov_b32 v{TF+2}, 0', [], [TF+2])
    S(f's_mov_b32 s{S_T0}, 0')
    a.label('L_tpoll')
    a.raw(f'buffer_load_dword v{TF}, v{TF+2}, s[{S_DBGF}:{S_DBGF+3}], 0 offen offset:132 sc1', kind='vmem')
    a.raw(f'buffer_load_dword v{TF+1}, v{TF+2}, s[{S_DBGF}:{S_DBGF+3}], 0 offen offset:152 sc1', kind='vmem')
    S(f's_add_u32 s{S_T0}, s{S_T0}, 1')
    a.raw('s_waitcnt vmcnt(0)', kind='wait'); a.vm = []
    a.raw(f'v_readfirstlane_b32 s{S_T1}, v{TF}', kind='valu')
    a.raw(f'v_readfirstlane_b32 s{S_T2}, v{TF+1}', kind='valu')
    a.raw('s_nop 0', kind='nop')
    S(f's_or_b32 s{S_T1}, s{S_T1}, s{S_T2}')
    a.raw('s_cbranch_scc1 L_tgo', kind='branch')
    a.raw(f's_sleep {PSLEEP}')
    S(f's_cmp_lt_u32 s{S_T0}, 0x40000')
    a.raw('s_cbranch_scc1 L_tpoll', kind='branch')
    a.label('L_tgo')
    S(f's_mul_i32 s{S_T2}, s{S_T4}, 832'); S(f's_add_u32 m0, s{S_T2}, {SCR}', m0=True); S(f's_add_u32 s{S_T2}, s{S_T2}, {WS_V5R}')
    execn(52)
    a.vmem(f'buffer_load_dwordx4 v{V_L16}, s[{S_WS}:{S_WS+3}], s{S_T2} offen sc1 lds', [V_L16], [], dma=True)
    fullexec()
    V(f'v_lshrrev_b32 v{p[3]}, 5, v{V_LANE}', [V_LANE], [p[3]])
    V(f'v_bfe_u32 v{p[4]}, v{V_LANE}, 2, 2', [V_LANE], [p[4]])
    V(f'v_lshl_add_u32 v{p[3]}, v{p[3]}, 3, v{p[4]}', [p[3], p[4]], [p[3]])
    V(f'v_bfe_u32 v{p[4]}, v{V_LANE}, 4, 1', [V_LANE], [p[4]])
    V(f'v_lshlrev_b32 v{p[4]}, 5, v{p[4]}', [p[4]], [p[4]])
    V(f'v_lshl_add_u32 v{p[4]}, v{p[1]}, 3, v{p[4]}', [p[1], p[4]], [p[4]])
    AW = [TF+3, TF+4, TF+5]; AV = [TF+6, TF+7, TF+8]
    V(f'v_lshl_add_u32 v{AW[0]}, v{p[3]}, 6, v{p[4]}', [p[3], p[4]], [AW[0]])
    V(f'v_add_u32 v{AW[0]}, s{S_T3}, v{AW[0]}', [AW[0]], [AW[0]])
    V(f'v_lshl_add_u32 v{AV[0]}, v{p[3]}, 7, v{p[4]}', [p[3], p[4]], [AV[0]])
    V(f'v_add_u32 v{AV[0]}, {SCR}, v{AV[0]}', [AV[0]], [AV[0]])
    V(f'v_mov_b32 v{p[5]}, 0x30000', [], [p[5]])
    for k_, lim in ((1, 10), (2, 6)):
        V(f'v_cmp_gt_u32 vcc, {lim}, v{p[3]}', [p[3]], [], swrites=['vcc'])
        V(f'v_cndmask_b32 v{AW[k_]}, v{p[5]}, v{AW[0]}, vcc', [p[5], AW[0]], [AW[k_]], sreads=['vcc'])
        V(f'v_cndmask_b32 v{AV[k_]}, v{p[5]}, v{AV[0]}, vcc', [p[5], AV[0]], [AV[k_]], sreads=['vcc'])
    V(f'v_and_b32 v{p[0]}, 31, v{V_LANE}', [V_LANE], [p[0]])
    V(f'v_lshrrev_b32 v{p[1]}, 5, v{V_LANE}', [V_LANE], [p[1]])
    S(f's_min_u32 s{S_C}, s{TI}, 25')
    sym_addr(p, S_C, WS_IMGT)
    S(f's_mov_b32 s{TI+1}, s{S_T0}'); S(f's_mov_b32 s{TI+2}, s{S_T1}')
    a.wait_vm_all()
    V(f'v_mov_b32 v{TF}, 1', [], [TF])
    execn(1)
    a.ds(f'ds_add_u32 v{V_SYNC}, v{TF} offset:16', [V_SYNC, TF])
    fullexec()
    for ks in range(2):
        for tt in range(2):
            ad = AW[0] if ks == 0 else AW[1 + tt]
            a.ds(f'ds_read_b64_tr_b16 {vr(F1+4*ks+2*tt,2)}, v{ad} offset:{(16*ks+4*tt)*64}', [ad], R(F1+4*ks+2*tt, 2))
    rdy_check(4, 16)
    for F, lo in ((F2, 0), (F3, 64)):
        for ks in range(2):
            for tt in range(2):
                ad = AV[0] if ks == 0 else AV[1 + tt]
                a.ds(f'ds_read_b64_tr_b16 {vr(F+4*ks+2*tt,2)}, v{ad} offset:{(16*ks+4*tt)*128+lo}', [ad], R(F+4*ks+2*tt, 2))
    first = True
    for F in (F2, F3):
        for ks in range(2):
            a.mfma('v_mfma_f32_32x32x16_bf16', TD, F1+4*ks, F+4*ks, None if first else TD, 8, 16); first = False
            a.mfma('v_mfma_f32_32x32x16_bf16', TD, F+4*ks, F1+4*ks, TD, 8, 16)
    S(f's_mov_b32 s{S_T0}, s{TI+1}'); S(f's_mov_b32 s{S_T1}, s{TI+2}')
    sym_out(p, TD, F1, F2, 4)
    a.raw('s_waitcnt vmcnt(0)', kind='wait'); a.vm = []
    a.raw(f'v_mov_b32 v{VT1}, 1', kind='valu')
    a.raw(f'ds_add_rtn_u32 v{VT2}, v{V_SYNC}, v{VT1} offset:20', kind='ds')
    a.raw('s_waitcnt lgkmcnt(0)', kind='wait'); a.lds = []
    a.raw(f'v_readfirstlane_b32 s{S_T0}, v{VT2}', kind='valu')
    a.raw('s_nop 0', kind='nop')
    S(f's_cmp_lg_u32 s{S_T0}, 3')
    a.raw('s_cbranch_scc1 L_tdone', kind='branch')
    a.raw(f'v_mov_b32 v{VT2}, s{S_SET}', kind='valu')
    a.raw(f'buffer_atomic_add v{VT1}, v{VT2}, s[{S_DBGF}:{S_DBGF+3}], 0 offen offset:80 sc0 sc1', kind='vmem')
    a.raw('s_waitcnt vmcnt(0)', kind='wait')
    a.raw(f'v_readfirstlane_b32 s{S_T2}, v{VT1}', kind='valu')
    a.raw(f'v_mov_b32 v{VT2}, 0', kind='valu')
    a.raw(f'v_mov_b32 v{VT1}, 1', kind='valu')
    S(f's_cmp_lg_u32 s{S_T2}, {NPT - NP2 - 1}')
    a.raw('s_cbranch_scc1 L_tdone', kind='branch')
    a.raw(f'buffer_store_dword v{VT1}, v{VT2}, s[{S_DBGF}:{S_DBGF+3}], 0 offen offset:152 sc1', kind='vmem')
    a.label('L_tdone')
    fullexec()
    a.nop(4)
    a.raw('s_branch L_x0prep', kind='branch')
    a.label('L_grpB')
    for f in range(26):
        V(f'v_lshl_add_u32 v{IXR+f}, v{IXR+f}, 5, v{t[7]}', [IXR+f, t[7]], [IXR+f])
    for q in range(7):
        V(f'v_lshlrev_b32 v{ACC+4*q}, 16, v{BT+2*q}', [BT+2*q], [ACC+4*q])
        V(f'v_and_b32 v{ACC+4*q+1}, 0xffff0000, v{BT+2*q}', [BT+2*q], [ACC+4*q+1])
        V(f'v_lshlrev_b32 v{ACC+4*q+2}, 16, v{BT+2*q+1}', [BT+2*q+1], [ACC+4*q+2])
        V(f'v_and_b32 v{ACC+4*q+3}, 0xffff0000, v{BT+2*q+1}', [BT+2*q+1], [ACC+4*q+3])
    a.wait_lds_all()
    def dnn_loop(xt):
        CHK = {0: 3, 2: 5, 4: 7, 6: 9, 8: 11, 10: 13, 12: 14}
        qs = list(range(0 if xt else 1, 7))
        cnt_check(CHK[0]); dnn_bread(0)
        for q in qs: dnn_aread(0, q)
        for i in range(13):
            a.comment(f'======== DNN step {i} xt={xt}')
            if i + 1 < 13:
                if (i + 1) in CHK: cnt_check(CHK[i + 1])
                dnn_bread(i + 1)
            for q in qs:
                dnn_mf(i, q)
                if i + 1 < 13: dnn_aread(i + 1, q)
            if i in (2, 7, 12): release({2: 1, 7: 2, 12: 3}[i])
        if EPRIO is not None: a.raw(f's_setprio {EPRIO}')
        dnn_epilogue(xt)
        a.wait_lds_all(); a.nop(8)
    S(f's_cmp_ge_u32 s{S_Q}, 2')
    a.raw('s_cbranch_scc1 L_dnn0', kind='branch')
    dnn_loop(1)
    a.raw('s_branch L_dnnend', kind='branch')
    a.label('L_dnn0')
    dnn_loop(0)
    a.label('L_dnnend')
    for v in range(13): a.ds(f'ds_read_b32 v{PBT+v}, v{V_TRADDR} offset:{128*v}', [V_TRADDR], [PBT+v])
    a.wait_lds_all()
    a.label('L_x0prep')
    for o in x0_ops(): o()
    for q in range(7):
        V(f'v_pk_mul_f16 v{QH+q}, v{XQ+q}, s{S_HALF}', [XQ+q], [QH+q])
    addr_setup()
    V(f'v_lshrrev_b32 v{t[1]}, 5, v{V_LANE}', [V_LANE], [t[1]])
    V(f'v_lshlrev_b32 v{t[1]}, 6, v{t[1]}', [t[1]], [t[1]])
    V(f'v_add_u32 v{V_PWADDR}, {EWT}, v{t[1]}', [t[1]], [V_PWADDR])
    V(f'v_mov_b32 v{ZL+3}, 0', [], [ZL+3])
    stamp('dnn')
    if REP:
        a.wait_lds_all(); a.raw('s_memtime s[96:97]'); a.raw('s_memrealtime s[98:99]'); a.raw('s_waitcnt lgkmcnt(0)', kind='wait')
    S1 = DB; S2 = DB + 1
    for l in range(5):
        a.comment(f'======== layer {l}')
        stamp(f'L{l}')
        rdy_check({0: 1, 1: 2, 2: 3, 3: 4, 4: 6}[l], 8)
        for k in range(PFD): a_read(l, k)
        fq = []
        if l == 3:
            rdy_check(5, 8)
            u5 = u5_ops(); u5[0]()
            fq = u5[1:]
        if l == 4:
            V(f'v_mov_b32 v{t[0]}, 0x05040100', [], [t[0]])
            V(f'v_mov_b32 v{t[1]}, 0x07060302', [], [t[1]])
            V(f'v_cndmask_b32 v{t[0]}, v{t[0]}, v{t[1]}, s[{S_HI}:{S_HI+1}]', [t[0], t[1]], [t[0]])
            for q in range(7):
                V(f'v_perm_b32 v{XQ+q}, v{P16+2*q+1}, v{P16+2*q}, v{t[0]}', [P16+2*q+1, P16+2*q, t[0]], [XQ+q])
            for r in range(13): fq.append(lambda r=r: V(f'v_ldexp_f32 v{D+r}, v{D+r}, v{EW+r}', [D+r, EW+r], [D+r]))
            fq.append(lambda: V(f'v_mul_f32 v{S1}, v{D}, v{G}', [D, G], [S1]))
            for r in range(1, 13): fq.append(lambda r=r: V(f'v_fmac_f32 v{S1}, v{D+r}, v{G+r}', [S1, D+r, G+r], [S1]))
        for o in z_ops(l, 0): o()
        for o in z_ops(l, 1): o()
        if PRIO and not BPRIO and l < 4: a.raw('s_setprio 1')
        DD = DT if l == 4 else D
        for k in range(NK[l]):
            if k == NK[l] - 8: pwrd(l)
            zo = z_ops(l, k + 2) if k + 2 < NK[l] else []
            if k % 2 == 0 and k + 1 < NK[l]: a._wait_regs(R(AB[(k + 1) % NAB], 4))
            a.mfma('v_mfma_f32_32x32x16_f16', DD, AB[k % NAB], zbuf(l, k), DD if k > 0 else None, 8, 16)
            if k + PFD < NK[l]: a_read(l, k + PFD)
            for o in zo: o()
            if PRIO and not BPRIO and k == 2: a.raw('s_setprio 2')
            if l == 4:
                for _ in range(2 if k >= 18 or k % 4 == 0 else 1):
                    if fq and k >= 1: fq.pop(0)()
            elif fq and k >= 4: fq.pop(0)()
        assert not fq
        if l == 0: release(4)
        if l < 3:
            if PRIO and not BPRIO: a.raw('s_setprio 0')
            for o in boundary_ops(l): o()
    stamp('fin')
    rdy_check(7, 8)
    V(f'v_bfe_u32 v{t[5]}, v{V_LANE}, 4, 1', [V_LANE], [t[5]])
    V(f'v_and_b32 v{t[6]}, 15, v{V_LANE}', [V_LANE], [t[6]])
    V(f'v_lshl_add_u32 v{t[5]}, v{t[6]}, 4, v{t[5]}', [t[5], t[6]], [t[5]])
    V(f'v_lshlrev_b32 v{t[5]}, 2, v{t[5]}', [t[5]], [t[5]])
    S(f's_lshl_b32 s{S_T0}, s{S_WAVE}, 3'); S(f's_add_u32 s{S_T0}, s{S_T0}, {PD}')
    V(f'v_add_u32 v{t[5]}, s{S_T0}, v{t[5]}', [t[5]], [t[5]])
    V(f'v_and_b32 v{t[6]}, 44, v{V_LANE}', [V_LANE], [t[6]])
    V(f'v_cmp_eq_u32 vcc, 0, v{t[6]}', [t[6]], [], swrites=['vcc'])
    V(f'v_mov_b32 v{t[6]}, 0x30000', [], [t[6]])
    V(f'v_cndmask_b32 v{t[5]}, v{t[6]}, v{t[5]}, vcc', [t[5], t[6]], [t[5]], sreads=['vcc'])
    a.ds(f'ds_read_b32 v{t[6]}, v{t[5]}', [t[5]], [t[6]])
    for r in range(13): V(f'v_lshl_add_u32 v{PW+r}, v{V_EX}, 1, v{PW+r}', [V_EX, PW+r], [PW+r])
    for r in range(13): V(f'v_ldexp_f32 v{DT+r}, v{DT+r}, v{PW+r}', [DT+r, PW+r], [DT+r])
    for r in range(13): V(f'v_fmac_f32 v{S1}, v{D+r}, v{DT+r}', [S1, D+r, DT+r], [S1])
    V(f'v_ldexp_f32 v{S1}, v{S1}, v{V_E}', [S1, V_E], [S1])
    V(f'v_add_f32 v{V_ACC}, v{V_ACC}, v{S1}', [V_ACC, S1], [V_ACC])
    A_ = V_ACC
    V(f'v_add_f32 v{A_}, v{A_}, v{t[6]}', [A_, t[6]], [A_])
    for d in (8, 4, 2, 1):
        V(f'v_add_f32_dpp v{A_}, v{A_}, v{A_} row_ror:{d} row_mask:0xf bank_mask:0xf', [A_], [A_], dpp=True)
    V(f'v_mov_b32 v{t[5]}, v{A_}', [A_], [t[5]])
    V(f'v_permlane32_swap_b32 v{A_}, v{t[5]}', [A_, t[5]], [A_, t[5]], permlane=True)
    V(f'v_add_f32 v{A_}, v{A_}, v{t[5]}', [A_, t[5]], [A_])
    V(f'v_cvt_pk_bf16_f32 v{A_}, v{A_}, v{A_}', [A_], [A_])
    V(f'v_lshrrev_b32 v{t[5]}, 3, v{V_LANE}', [V_LANE], [t[5]])
    S(f's_lshl_b32 s{S_T0}, s2, 5'); S(f's_lshl_b32 s{S_T1}, s{S_WAVE}, 2'); S(f's_add_u32 s{S_T0}, s{S_T0}, s{S_T1}')
    S('s_mov_b64 exec, 0x10001')
    a.vmem(f'buffer_store_short v{A_}, v{t[5]}, s[{S_OUT}:{S_OUT+3}], s{S_T0} offen', [A_, t[5]], [])
    if REP:
        a.raw('s_memtime s[100:101]'); a.raw('s_memrealtime s[4:5]'); a.raw('s_waitcnt lgkmcnt(0)', kind='wait')
        S(f's_cmp_lg_u32 s{S_WAVE}, 4'); a.raw('s_cbranch_scc1 L_norep', kind='branch')
        S('s_and_b32 s6, s2, 0xfc'); S('s_cmp_lg_u32 s6, 100'); a.raw('s_cbranch_scc1 L_norep', kind='branch')
        S('s_sub_u32 s96, s96, s92'); S('s_sub_u32 s98, s98, s94'); S('s_sub_u32 s100, s100, s92'); S('s_sub_u32 s4, s4, s94')
        V('v_mov_b32 v16, s96', [], [16]); V('v_mov_b32 v17, s98', [], [17]); V('v_mov_b32 v18, s100', [], [18]); V('v_mov_b32 v19, s4', [], [19])
        S('s_and_b32 s6, s2, 3'); S('s_lshl_b32 s6, s6, 4'); V('v_mov_b32 v20, s6', [], [20])
        S('s_mov_b64 exec, 1')
        a.vmem(f'buffer_store_dwordx4 v[16:19], v20, s[{S_DBGF}:{S_DBGF+3}], 0 offen', [16,17,18,19,20], [])
        a.label('L_norep')
    dbg_out()
    a.raw('s_endpgm')

    a.label('L_loader')
    a.lds = []; a.vm = []; a.valu_w = {}; a.mfma_w = {}; a.mfma_c = {}; a.trans_w = {}; a.store_src = {}; a.opsel_w = {}
    stamp_n[0] = 1
    names_c = a.stamp_names; a.stamp_names = []
    LF = 18; LFA = 19; LSY = 20; LDA = 21; LDV = 22; LT = 23; WO = 32; PF = 40; LN = 24; LG = 64
    if TOUCH:
        V(f'v_mov_b32 v{t[0]}, 0', [], [t[0]])
        S('s_mov_b64 exec, 1')
        S(f's_mov_b32 s{S_T0}, {WS_INB - 256}')
        a.vmem(f'buffer_load_dword v{PF}, v{t[0]}, s[{S_WS}:{S_WS+3}], s{S_T0} offen', [t[0]], [PF])
        a.vmem(f'buffer_load_dword v{PF+1}, v{t[0]}, s[{S_DBGF}:{S_DBGF+3}], 0 offen sc1', [t[0]], [PF+1])
        a.vmem(f'buffer_load_dword v{PF+2}, v{t[0]}, s[{S_OUT}:{S_OUT+3}], 0 offen', [t[0]], [PF+2])
        a.vmem(f'buffer_load_dword v{PF+3}, v{t[0]}, s[{S_W1}:{S_W1+3}], 0 offen', [t[0]], [PF+3])
        a.vmem(f'buffer_load_dword v{PF+4}, v{t[0]}, s[{S_TAB}:{S_TAB+3}], 0 offen', [t[0]], [PF+4])
        a.vmem(f'buffer_load_dword v{PF+5}, v{t[0]}, s[{S_B1}:{S_B1+3}], 0 offen', [t[0]], [PF+5])
        a.vmem(f'buffer_load_dword v{PF+6}, v{t[0]}, s[{S_W2}:{S_W2+3}], 0 offen', [t[0]], [PF+6])
        fullexec()
    S(f's_movk_i32 s{S_T0}, 4682')
    for k in range(7):
        V(f'v_add_u32 v{t[0]}, {64*k}, v{V_LANE}', [V_LANE], [t[0]])
        V(f'v_mul_u32_u24 v{t[1]}, s{S_T0}, v{t[0]}', [t[0]], [t[1]])
        V(f'v_lshrrev_b32 v{t[1]}, 16, v{t[1]}', [t[1]], [t[1]])
        V(f'v_mul_u32_u24 v{t[2]}, {832 - 224}, v{t[1]}', [t[1]], [t[2]])
        V(f'v_lshl_add_u32 v{WO+k}, v{t[0]}, 4, v{t[2]}', [t[0], t[2]], [WO+k])
    V(f'v_lshlrev_b32 v{LFA}, 2, v{V_LANE}', [V_LANE], [LFA])
    V(f'v_mov_b32 v{LSY}, {SYNC}', [], [LSY])
    V(f'v_add_u32 v{LDA}, {SYNC}, v{LFA}', [LFA], [LDA])
    V(f'v_mov_b32 v{LT}, 0', [], [LT])
    execn(16)
    a.ds(f'ds_write_b32 v{LDA}, v{LT}', [LDA, LT])
    fullexec()
    V(f'v_and_b32 v{LDA}, 28, v{LFA}', [LFA], [LDA])
    V(f'v_add_u32 v{LDA}, {SYNC + 32}, v{LDA}', [LDA], [LDA])
    S(f's_mul_i32 s{S_KO}, s{S_ROT}, 26624'); S(f's_lshl_b32 s{S_T0}, s{S_T0L}, 5'); S(f's_add_u32 s{S_KO}, s{S_KO}, s{S_T0}')
    S(f's_add_u32 s{S_T3}, s{S_T0}, {13*26624}')
    def l_w1(i):
        for k in range(7):
            S(f's_mov_b32 m0, {CADDR[i] + 1024*k}', m0=True)
            a.vmem(f'buffer_load_dwordx4 v{WO+k}, s[{S_W1}:{S_W1+3}], s{S_KO} offen lds', [WO+k], [], tag=('c', i), dma=True)
        S(f's_add_u32 s{S_KO}, s{S_KO}, 26624'); S(f's_cmp_eq_u32 s{S_KO}, s{S_T3}'); S(f's_cselect_b32 s{S_T1}, {13*26624}, 0'); S(f's_sub_u32 s{S_KO}, s{S_KO}, s{S_T1}')
    def l_lin(tag, srd, src, dst, nbytes, sc=''):
        n = (nbytes + 1023) // 1024
        for pc in range(n):
            if pc % 4 == 0:
                S(f's_mov_b32 m0, {dst + 1024*pc}', m0=True)
                S(f's_mov_b32 s{S_T2}, {src + 1024*pc}')
            lanes = min(64, (nbytes - 1024*pc) // 16)
            if lanes < 64: execn(lanes)
            a.vmem(f'buffer_load_dwordx4 v{V_L16}, s[{srd}:{srd+3}], s{S_T2} offen offset:{1024*(pc%4)} {sc} lds', [V_L16], [], tag=tag, dma=True)
            if lanes < 64: fullexec()
    def publish(n, off):
        a.raw(f'v_mov_b32 v{LT}, {n}', kind='valu')
        a.raw(f'ds_write_b32 v{LSY}, v{LT} offset:{off}', kind='ds')
    def l_flag(lo, hi):
        mk = ((1 << hi) - 1) & ~((1 << lo) - 1)
        S(f's_mov_b64 exec, 0x{mk:x}')
        a.vmem(f'buffer_load_dword v{LF}, v{LFA}, s[{S_DBGF}:{S_DBGF+3}], 0 offen offset:128 sc1', [LFA], [LF])
        fullexec()
    def l_poll(lo, hi, lab, pre=None):
        mk = ((1 << hi) - 1) & ~((1 << lo) - 1)
        a._wait_regs([LF])
        S(f's_mov_b64 exec, 0x{mk:x}')
        S(f's_mov_b32 s{S_T0}, 0')
        a.label(f'L_poll{lab}')
        a.raw(f'v_cmp_eq_u32 vcc, 0, v{LF}', kind='valu')
        a.raw(f's_cbranch_vccz L_polldone{lab}', kind='branch')
        a.raw(f's_sleep {PSLEEP}')
        a.raw(f'buffer_load_dword v{LF}, v{LFA}, s[{S_DBGF}:{S_DBGF+3}], 0 offen offset:128 sc1', kind='vmem')
        S(f's_add_u32 s{S_T0}, s{S_T0}, 1')
        S(f's_cmp_lt_u32 s{S_T0}, 0x40000')
        a.raw('s_waitcnt vmcnt(0)', kind='wait')
        if pre: publish(pre, 0)
        a.raw(f's_cbranch_scc1 L_poll{lab}', kind='branch')
        a.label(f'L_polldone{lab}')
        fullexec()
    def l_wait_lds(addr, off, stage, lab):
        a.raw(f's_mov_b32 s{S_T1}, 0x100000', kind='salu')
        a.label(f'L_dw{lab}')
        a.raw(f'ds_read_b32 v{LDV}, v{addr} offset:{off}', kind='ds')
        a.raw(f's_sub_u32 s{S_T1}, s{S_T1}, 1', kind='salu')
        a.raw(f's_cbranch_scc1 L_dn{lab}', kind='branch')
        a.raw('s_waitcnt lgkmcnt(0)', kind='wait')
        a.raw(f'v_cmp_gt_u32 vcc, {stage}, v{LDV}', kind='valu')
        a.raw(f's_cbranch_vccz L_dn{lab}', kind='branch')
        a.raw('s_sleep 1')
        a.raw(f's_branch L_dw{lab}', kind='branch')
        a.label(f'L_dn{lab}')
    for aa in range(4):
        S(f's_add_u32 s{S_T0}, s{S_Q}, {aa}'); S(f's_and_b32 s{S_T0}, s{S_T0}, 3'); S(f's_lshl_b32 s{S_T0}, s{S_T0}, 3'); S(f's_or_b32 s{S_T0}, s{S_T0}, s{S_CB}')
        S(f's_mul_i32 s{S_T0}, s{S_T0}, 1664')
        S(f's_mov_b32 m0, {IDXB + 1664*aa}', m0=True)
        a.vmem(f'buffer_load_dwordx4 v{V_L16}, s[{S_IDX}:{S_IDX+3}], s{S_T0} offen lds', [V_L16], [], tag='tab', dma=True)
        execn(40)
        a.vmem(f'buffer_load_dwordx4 v{V_L16}, s[{S_IDX}:{S_IDX+3}], s{S_T0} offen offset:1024 lds', [V_L16], [], tag='tab', dma=True)
        fullexec()
    a.raw('s_waitcnt lgkmcnt(0)', kind='wait')
    l_lin('tab', S_TAB, 0, TAB, 32000)
    l_lin('tab', S_B1, 0, BW, 832); l_lin('tab', S_W2, 0, BW + 832, 832)
    for i in range(13):
        l_w1(i)
        if i == TABP: a.wait_vm_tag('tab'); publish(1, 0)
        if i == 0: rawbar()
        if i >= 5 and i % 2 == 1:
            a.wait_vm_tag(('c', i - 4)); publish(i - 2, 0)
    l_flag(2, 6)
    stamp('w1iss')
    for i in (9, 11, 12):
        a.wait_vm_tag(('c', i)); publish(i + 2, 0)
    l_poll(2, 6, 'k'); stamp('polled')
    l_flag(0, 1)
    l_wait_lds(LDA, 0, 1, 'a')
    l_lin(('i', 0), S_WS, WS_IMG0, I0B, IMG0, 'sc1')
    l_lin(('i', 0), S_WS, WS_EWT, EWT, 128, 'sc1')
    a.wait_vm_tag(('i', 0)); publish(1, 8)
    l_poll(0, 1, 'a')
    V(f'v_readlane_b32 s{S_T0}, v{LF}, 0', [LF], [], swrites=[S_T0], readlane=True)
    V(f'v_mov_b32 v{LN}, s{S_T0}', [], [LN], sreads=[S_T0])
    l_lin(('i', 1), S_WS, WS_EWT + 128, EWT + 128, 384, 'sc1')
    S(f's_lshr_b32 s{S_T0}, s2, 3'); S(f's_mul_i32 s{S_T0}, s{S_T0}, 3360'); S(f's_add_u32 s{S_T0}, s{S_T0}, {WS_IMG[1]}')
    for q in range(4):
        if q == 3: execn(18)
        a.vmem(f'buffer_load_dwordx4 {vr(PF+4*q,4)}, v{V_L16}, s[{S_WS}:{S_WS+3}], s{S_T0} offen offset:{1024*q} sc1', [V_L16], R(PF+4*q, 4))
    fullexec()
    l_wait_lds(LDA, 0, 2, 'b')
    l_lin(('i', 1), S_WS, WS_IMG[1], U[0], IMG, 'sc1')
    a.wait_vm_tag(('i', 1)); publish(2, 8); stamp('i1')
    l_wait_lds(LDA, 0, 3, 'c'); stamp('dnndone')
    l_lin(('i', 2), S_WS, WS_IMG[2], U[1], IMG, 'sc1')
    l_lin(('i', 3), S_WS, WS_IMG[3], U[2], IMG, 'sc1')
    a.wait_vm_tag(('i', 2)); publish(3, 8)
    a.wait_vm_tag(('i', 3)); publish(4, 8)
    l_wait_lds(LSY, 4, 4, 'd')
    V(f'v_lshlrev_b32 v{t[0]}, 3, v{V_LANE}', [V_LANE], [t[0]])
    V(f'v_add_u32 v{t[0]}, {PDL}, v{t[0]}', [t[0]], [t[0]])
    a.ds(f'ds_read_b64 {vr(LG+4,2)}, v{t[0]}', [t[0]], R(LG+4, 2))
    V(f'v_bfe_u32 v{t[1]}, v{V_LANE}, 3, 2', [V_LANE], [t[1]])
    V(f'v_add_u32 v{t[1]}, s{S_Q}, v{t[1]}', [t[1]], [t[1]])
    V(f'v_and_b32 v{t[1]}, 3, v{t[1]}', [t[1]], [t[1]])
    V(f'v_lshlrev_b32 v{t[1]}, 13, v{t[1]}', [t[1]], [t[1]])
    V(f'v_and_b32 v{t[2]}, 7, v{V_LANE}', [V_LANE], [t[2]])
    V(f'v_lshl_add_u32 v{t[1]}, v{t[2]}, 4, v{t[1]}', [t[2], t[1]], [t[1]])
    S(f's_lshl_b32 s{S_T0}, s{S_CB}, 10'); S(f's_lshl_b32 s{S_T1}, s{S_Q}, 7'); S(f's_add_u32 s{S_T0}, s{S_T0}, s{S_T1}'); S(f's_add_u32 s{S_T0}, s{S_T0}, {WS_INB}')
    V(f'v_mov_b32 v{LG}, v{LG+4}', [LG+4], [LG]); V(f'v_mov_b32 v{LG+1}, v{LN}', [LN], [LG+1])
    V(f'v_mov_b32 v{LG+2}, v{LG+5}', [LG+5], [LG+2]); V(f'v_mov_b32 v{LG+3}, v{LN}', [LN], [LG+3])
    execn(32)
    a.vmem(f'buffer_store_dwordx4 {vr(LG,4)}, v{t[1]}, s[{S_WS}:{S_WS+3}], s{S_T0} offen sc1', [t[1]] + R(LG, 4), [], wide_store=R(LG, 4))
    fullexec()
    l_lin('v5f', S_WS, WS_V5F, V5F, 4096, 'sc1')
    l_flag(6, 7)
    a.wait_vm_tag('v5f'); publish(5, 8)
    l_wait_lds(LDA, 0, 4, 'e')
    l_poll(6, 7, 'b')
    l_lin(('i', 4), S_WS, WS_IMGT, I0B, IMG0, 'sc1')
    l_lin(('i', 4), S_WS, WS_EWT + 512, EWT + 512, 128, 'sc1')
    a.wait_vm_all(); publish(6, 8); stamp('i5')
    S(f's_lshl_b32 s{S_T2}, s2, 10'); S(f's_add_u32 s{S_T2}, s{S_T2}, {WS_INB}')
    S(f's_mov_b32 s{S_T0}, 0')
    execn(32)
    a.label('L_inb')
    a.raw(f'buffer_load_dwordx4 {vr(LG+8,4)}, v{V_L16}, s[{S_WS}:{S_WS+3}], s{S_T2} offen sc1', kind='vmem')
    S(f's_add_u32 s{S_T0}, s{S_T0}, 1')
    a.raw('s_waitcnt vmcnt(0)', kind='wait')
    a.raw(f'v_cmp_ne_u32 vcc, v{LN}, v{LG+9}', kind='valu')
    a.raw(f'v_cmp_ne_u32 s[{S_MT}:{S_MT+1}], v{LN}, v{LG+11}', kind='valu')
    a.raw('s_nop 1', kind='nop')
    a.raw(f's_or_b64 vcc, vcc, s[{S_MT}:{S_MT+1}]', kind='salu')
    a.raw('s_cbranch_vccz L_inbok', kind='branch')
    a.raw(f's_sleep {PSLEEP}')
    S(f's_cmp_lt_u32 s{S_T0}, 0x40000')
    a.raw('s_cbranch_scc1 L_inb', kind='branch')
    a.label('L_inbok')
    V(f'v_mov_b32 v{LG+9}, v{LG+10}', [LG+10], [LG+9])
    V(f'v_lshlrev_b32 v{t[0]}, 3, v{V_LANE}', [V_LANE], [t[0]])
    V(f'v_add_u32 v{t[0]}, {PD}, v{t[0]}', [t[0]], [t[0]])
    a.ds(f'ds_write_b64 v{t[0]}, {vr(LG+8,2)}', [t[0], LG+8, LG+9])
    publish(7, 8)
    dbg_out()
    a.label('L_end')
    a.raw('s_endpgm')
    a.stamp_names = (names_c, a.stamp_names)
    return a

HEADER = open('cdna_kernels/' + NAME + '.s.ref').read().split('; Override launch geometry')[0]
def wrap(a):
    s = HEADER
    s += f'; @launch grid=(256,1,1) block=(576,1,1) lds={LDS_TOTAL}\n'
    s += '.amdgcn_target "amdgcn-amd-amdhsa--gfx950"\n.text\n'
    s += f'.globl {NAME}_kernel\n.p2align 8\n.type {NAME}_kernel,@function\n{NAME}_kernel:\n'
    s += a.text()
    s += f'''.section .rodata,"a"
.p2align 6
.amdhsa_kernel {NAME}_kernel
  .amdhsa_next_free_vgpr {NV}
  .amdhsa_next_free_sgpr 102
  .amdhsa_accum_offset {NV}
  .amdhsa_group_segment_fixed_size 0
  .amdhsa_kernarg_size 88
  .amdhsa_user_sgpr_count 2
  .amdhsa_user_sgpr_kernarg_segment_ptr 1
  .amdhsa_system_sgpr_workgroup_id_x 1
  .amdhsa_float_denorm_mode_32 3
.end_amdhsa_kernel
'''
    return s

if __name__ == '__main__':
    import argparse
    ap = argparse.ArgumentParser()
    ap.add_argument('out', nargs='?', default='cdna_kernels/' + NAME + '.s')
    ap.add_argument('--dbg', type=int, default=0)
    ap.add_argument('--prio', type=int, default=1)
    ap.add_argument('--splitepi', type=int, default=1)
    args = ap.parse_args()
    a = gen(debug=args.dbg, PRIO=args.prio, SPLITEPI=args.splitepi)
    open(args.out, 'w').write(wrap(a))
    print(a.count, 'lines', len(a.lines), a.stamp_names)
```

```python
import sys, struct
sys.path.insert(0, 'gen')
from asmfw import *

NAME = 'standalone__deep_cross_xdeepfm__recsys'
IMG = 35776; IMG0 = 19136
U = [IMG * i for i in range(4)]
CH = 7168
CADDR = [121600 + CH * i for i in range(3)] + [CH * i for i in range(10)]
TAB = 71680; IDXB = 103680; SCR = 110336
I0B = 143104 - IMG0
X16 = 143104
V5F = 156672; EWT = 160768; POOLW = 161408; BW = 162048
PDL = V5F
PD = BW
SYNC = 163712
LDS_TOTAL = 163776
WS_IMG0 = 0
WS_IMG = [None] + [19200 + IMG * i for i in range(4)]
WS_V5F = 19200 + 4 * IMG
WS_EWT = WS_V5F + 4096
WS_IMGT = WS_IMG[4]; WS_V5R = WS_EWT + 1024
WS_INB = 0x40000
WS_SIZE = WS_INB + 256 * 1024
NP1 = 18; NP2 = 22; NPT = 29
S_IDX, S_TAB, S_WC, S_WCO, S_W1, S_B1, S_W2, S_BO, S_OUT, S_DBGF, S_WS = [24 + 4 * i for i in range(11)]
S_WAVE = 68; S_T0 = 69; S_T1 = 70; S_T2 = 71; S_T3 = 72; S_T4 = 73
S_HI = 74; S_C = 76; S_K7FFF = 77; S_K8000 = 78; S_Q = 79; S_K2 = 80; S_G = 81; S_HALF = 82
S_ROT = 83; S_MT = 84; S_PID = 86; S_CB = 87; S_XT = 88; S_T0L = 89; S_KO = 90; S_KN = 91; S_SET = 92; S_LAST = 93
SM = [4, 6, 8, 10, 12, 14, 16]
V_LANE = 1
V_T = list(range(2, 12))
V_STAMP = 12; V_E = 13; V_EX = 14; V_ACC = 15
P16 = 16; V_SH = 30; V_L16 = 31
XQ = 32; V_TRADDR = 39; D = 40
ZB = [56, 60, 64]; ZL = 68
AB = [72, 76, 80, 84, 4, 8]; NAB = 6; PFD = 5
PW = 88; EW = 102
V_PWADDR = 101; V_DBADDR = 115
DACC = 116; DA = 132; DB = 148
QH = 152
V_AADDR = [159, 160]; V_AADDR0 = 161; V_DAADDR = 162; V_DBK = 163; V_BWADDR = 164; V_SYNC = 165; V_RDY = 166; V_DONEA = 167
G = DACC; UA = DA
PBT = 68
VT1 = 158; VT2 = 159; VT3 = 160
DA2 = 88; DB2 = 104
NV = 168

import os
PX = int(os.environ.get('PX', '0'))
NL = int(os.environ.get('NL', '5'))
REP = int(os.environ.get('REP', '0'))
PSLEEP = int(os.environ.get('PSLEEP', '6'))
TOUCH = int(os.environ.get('TOUCH', '2'))
XP = os.environ.get('XP', '')
KNOP = int(os.environ.get('KNOP', '0'))
FINSTEP = int(os.environ.get('FINSTEP', '2'))
DG = int(os.environ.get('DG', '1'))
BPRIO = int(os.environ.get('BPRIO', '0'))
EPRIO = os.environ.get('EPRIO')
TABP = int(os.environ.get('TABP', '1'))
SETS = os.environ.get('SETS', '0')
LB0 = int(os.environ.get('LB0', '6'))
LBAR = int(os.environ.get('LBAR', '7'))
def fb(x): return '0x%08x' % struct.unpack('<I', struct.pack('<f', x))[0]

def gen(debug=None, PRIO=1, SPLITEPI=1, LPRE=24):
    a = Asm()
    V = a.valu; S = a.salu
    t = V_T
    stamp_n = [0]
    a.stamp_names = []
    def stamp(name=''):
        if not debug: return
        a.wait_lds_all()
        a.raw('s_memtime s[98:99]')
        a.raw('s_waitcnt lgkmcnt(0)', kind='wait')
        a.valu(f'v_writelane_b32 v{V_STAMP}, s98, {stamp_n[0]}', [], [V_STAMP])
        a.stamp_names.append(name)
        stamp_n[0] += 1
    def execn(n):
        if n <= 32: S(f's_mov_b64 exec, 0x{(1<<n)-1:x}')
        else: S(f's_mov_b32 exec_hi, 0x{(1<<(n-32))-1:x}')
    def fullexec(): S('s_mov_b64 exec, -1')
    def rawbar(): a.raw('s_barrier', kind='barrier')
    def dbg_out():
        if not debug: return
        fullexec()
        stamp('end')
        a.valu(f'v_writelane_b32 v{V_STAMP}, s100, 62', [], [V_STAMP])
        a.raw('s_memrealtime s[98:99]')
        a.raw('s_waitcnt lgkmcnt(0)', kind='wait')
        a.valu(f'v_writelane_b32 v{V_STAMP}, s98, 63', [], [V_STAMP])
        V(f'v_lshlrev_b32 v{t[0]}, 2, v0', [0], [t[0]])
        S(f's_mul_i32 s{S_T0}, s2, 2304'); S(f's_add_u32 s{S_T0}, s{S_T0}, 0x100000')
        a.vmem(f'buffer_store_dword v{V_STAMP}, v{t[0]}, s[{S_WS}:{S_WS+3}], s{S_T0} offen', [V_STAMP, t[0]], [])
    S('s_cmp_ge_u32 s2, 256')
    a.raw('s_cbranch_scc1 L_end', kind='branch')
    if debug:
        a.raw('s_memrealtime s[100:101]')
        stamp('start')
    if REP:
        a.raw('s_memtime s[92:93]'); a.raw('s_memrealtime s[94:95]')
    a.raw('s_load_dwordx16 s[4:19], s[0:1], 0')
    a.raw('s_load_dwordx4 s[20:23], s[0:1], 64')
    a.raw(f's_load_dwordx2 s[{S_WS}:{S_WS+1}], s[0:1], 80')
    V(f'v_and_b32 v{V_LANE}, 63, v0', [0], [V_LANE])
    V(f'v_lshrrev_b32 v{t[0]}, 6, v0', [0], [t[0]])
    V(f'v_readfirstlane_b32 s{S_WAVE}, v{t[0]}', [t[0]], [], swrites=[S_WAVE], readlane=True)
    S(f's_mov_b32 s{S_K7FFF}, 0x7fff7fff'); S(f's_mov_b32 s{S_K8000}, 0x80008000'); S(f's_mov_b32 s{S_HALF}, 0x38003800')
    S(f's_mov_b32 s{S_HI}, 0'); S(f's_mov_b32 s{S_HI+1}, -1')
    V(f'v_lshlrev_b32 v{V_L16}, 4, v{V_LANE}', [V_LANE], [V_L16])
    S(f's_lshr_b32 s{S_T0}, s2, 3'); S(f's_and_b32 s{S_Q}, s{S_T0}, 3'); S(f's_lshr_b32 s{S_T1}, s{S_T0}, 2')
    S(f's_lshr_b32 s{S_ROT}, s{S_T1}, 1'); S(f's_add_u32 s{S_ROT}, s{S_ROT}, s{S_T1}')
    S(f's_andn2_b32 s{S_CB}, s2, 0x18')
    if SETS == 'd':
        S(f's_and_b32 s{S_T1}, s2, 7'); S(f's_cmp_eq_u32 s{S_T1}, 7'); S(f's_cselect_b32 s{S_SET}, 8, 0'); S(f's_cselect_b32 s{S_T1}, 0, s{S_T1}')
        S(f's_cmp_eq_u32 s{S_T1}, 0'); S(f's_cselect_b32 s{S_PID}, s{S_T0}, 255')
    else:
        S(f's_mov_b32 s{S_SET}, 0'); S(f's_and_b32 s{S_T1}, s2, 7'); S(f's_cmp_eq_u32 s{S_T1}, {SETS}'); S(f's_cselect_b32 s{S_PID}, s{S_T0}, 255')
    S(f's_lshl_b32 s{S_G}, s{S_PID}, 3'); S(f's_add_u32 s{S_G}, s{S_G}, s{S_WAVE}', sreads=[S_WAVE])
    S(f's_min_u32 s{S_T0L}, s{S_Q}, 1'); S(f's_mul_i32 s{S_T1}, s{S_Q}, 6'); S(f's_add_u32 s{S_T0L}, s{S_T0L}, s{S_T1}')
    S(f's_cmp_lt_u32 s{S_WAVE}, 4'); S(f's_cselect_b32 s{S_XT}, 1, 0'); S(f's_cmp_lt_u32 s{S_Q}, 2'); S(f's_cselect_b32 s{S_XT}, s{S_XT}, 0')
    a.raw('s_waitcnt lgkmcnt(0)', kind='wait')
    sizes = [425984, 32000, 210912, 312, 346112, 832, 832, 2, 8192, 256]
    srds = [S_IDX, S_TAB, S_WC, S_WCO, S_W1, S_B1, S_W2, S_BO, S_OUT, S_DBGF]
    for i in range(10):
        sb, sz = srds[i], sizes[i]
        S(f's_mov_b32 s{sb}, s{4+2*i}'); S(f's_and_b32 s{sb+1}, s{5+2*i}, 0xffff')
        S(f's_mov_b32 s{sb+2}, {sz}'); S(f's_mov_b32 s{sb+3}, 0x00020000')
    S(f's_and_b32 s{S_WS+1}, s{S_WS+1}, 0xffff'); S(f's_mov_b32 s{S_WS+2}, {0x1000000 if debug else WS_SIZE}'); S(f's_mov_b32 s{S_WS+3}, 0x00020000')
    S(f's_cmp_eq_u32 s{S_WAVE}, 8')
    a.raw('s_cbranch_scc1 L_loader', kind='branch')

    def dpp_max(m):
        for d in ('row_shr:1 row_mask:0xf', 'row_shr:2 row_mask:0xf', 'row_shr:4 row_mask:0xf', 'row_shr:8 row_mask:0xf', 'row_bcast:15 row_mask:0xa', 'row_bcast:31 row_mask:0xc'):
            V(f'v_max_u32_dpp v{m}, v{m}, v{m} {d} bank_mask:0xf', [m], [m], dpp=True)
    def rho_salu(sh, st1, st2, clamp=True):
        S(f's_cmp_ge_u32 s{sh}, 13'); S(f's_cselect_b32 s{st1}, 1, 0')
        S(f's_mul_i32 s{st2}, s{st1}, 13'); S(f's_sub_u32 s{sh}, s{sh}, s{st2}')
        S(f's_lshl_b32 s{st2}, s{st1}, 2')
        S(f's_lshl_b32 s{st1}, s{st1}, 4'); S(f's_add_u32 s{st1}, s{st1}, s{sh}')
        S(f's_add_u32 s{st2}, s{st2}, s{sh}'); S(f's_and_b32 s{sh}, s{sh}, 12'); S(f's_add_u32 s{sh}, s{sh}, s{st2}')
        if clamp: S(f's_add_u32 s{sh}, s{sh}, 1'); S(f's_cmp_eq_u32 s{sh}, 29'); S(f's_cselect_b32 s{sh}, 0, s{sh}')

    V(f'v_mov_b32 v{V_SYNC}, {SYNC}', [], [V_SYNC])
    S(f's_lshl_b32 s{S_T0}, s{S_WAVE}, 12'); S(f's_add_u32 m0, s{S_T0}, {TAB}', m0=True)
    for k in range(4):
        if k == 3:
            S(f's_cmp_eq_u32 s{S_WAVE}, 7'); S(f's_cselect_b64 exec, 0xffff, -1')
        a.vmem(f'buffer_load_dwordx4 v{V_L16}, s[{S_TAB}:{S_TAB+3}], s{S_T0} offen offset:{1024*k} lds', [V_L16], [], dma=True)
    S(f's_lshr_b32 s{S_T0}, s{S_WAVE}, 1'); S(f's_add_u32 s{S_T0}, s{S_T0}, s{S_Q}'); S(f's_and_b32 s{S_T0}, s{S_T0}, 3')
    S(f's_lshl_b32 s{S_T0}, s{S_T0}, 3'); S(f's_or_b32 s{S_T0}, s{S_T0}, s{S_CB}'); S(f's_lshl_b32 s{S_T0}, s{S_T0}, 1')
    S(f's_and_b32 s{S_T1}, s{S_WAVE}, 1'); S(f's_add_u32 s{S_T0}, s{S_T0}, s{S_T1}'); S(f's_mul_i32 s{S_T0}, s{S_T0}, 832')
    S(f's_mul_i32 s{S_T1}, s{S_WAVE}, 832'); S(f's_add_u32 m0, s{S_T1}, {IDXB}', m0=True)
    S('s_mov_b32 exec_lo, -1'); S('s_mov_b32 exec_hi, 0xfffff')
    a.vmem(f'buffer_load_dwordx4 v{V_L16}, s[{S_IDX}:{S_IDX+3}], s{S_T0} offen lds', [V_L16], [], dma=True)
    S(f's_cmp_lg_u32 s{S_WAVE}, 5'); a.cond_begin('s_cbranch_scc1 L_nb1', 'L_nb1')
    S(f's_mov_b32 m0, {BW}', m0=True)
    a.vmem(f'buffer_load_dwordx4 v{V_L16}, s[{S_B1}:{S_B1+3}], 0 offen lds', [V_L16], [], dma=True)
    S(f's_mov_b32 m0, {BW + 832}', m0=True)
    a.vmem(f'buffer_load_dwordx4 v{V_L16}, s[{S_W2}:{S_W2+3}], 0 offen lds', [V_L16], [], dma=True)
    a.cond_end()
    fullexec()
    PWT = 136; BIGR = 137
    V(f'v_mov_b32 v{BIGR}, 0x7f000000', [], [BIGR])
    V(f'v_lshrrev_b32 v{t[0]}, 4, v0', [0], [t[0]])
    V(f'v_and_b32 v{t[1]}, 15, v0', [0], [t[1]])
    V(f'v_mad_u32_u24 v{t[0]}, v{t[0]}, 13, v{t[1]}', [t[0], t[1]], [t[0]])
    V(f'v_lshlrev_b32 v{t[0]}, 1, v{t[0]}', [t[0]], [t[0]])
    V(f'v_cmp_gt_u32 vcc, 13, v{t[1]}', [t[1]], [], swrites=['vcc'])
    V(f'v_cndmask_b32 v{t[0]}, v{BIGR}, v{t[0]}, vcc', [BIGR, t[0]], [t[0]], sreads=['vcc'])
    S(f's_cmp_gt_u32 s{S_WAVE}, 2')
    a.cond_begin('s_cbranch_scc1 L_nopw', 'L_nopw')
    a.vmem(f'buffer_load_ushort v{PWT}, v{t[0]}, s[{S_WCO}:{S_WCO+3}], 0 offen', [t[0]], [PWT])
    a.cond_end()
    V(f'v_mov_b32 v{t[2]}, 0', [], [t[2]])
    a.vmem(f'buffer_load_ushort v{V_ACC}, v{t[2]}, s[{S_BO}:{S_BO+3}], 0 offen', [t[2]], [V_ACC])
    def sym_addr(p, srow, wsbase):
        V(f'v_lshrrev_b32 v{p[3]}, 1, v{p[0]}', [p[0]], [p[3]])
        V(f'v_and_b32 v{p[4]}, 1, v{p[0]}', [p[0]], [p[4]])
        V(f'v_subrev_u32 v{p[5]}, 1, v{p[3]}', [p[3]], [p[5]])
        V(f'v_mul_i32_i24 v{p[5]}, v{p[5]}, v{p[3]}', [p[5], p[3]], [p[5]])
        V(f'v_lshrrev_b32 v{p[5]}, 1, v{p[5]}', [p[5]], [p[5]])
        V(f'v_mul_u32_u24 v{p[6]}, 12, v{p[3]}', [p[3]], [p[6]])
        V(f'v_sub_u32 v{p[6]}, v{p[6]}, v{p[5]}', [p[6], p[5]], [p[6]])
        V(f'v_mul_u32_u24 v{p[5]}, 92, v{p[4]}', [p[4]], [p[5]])
        V(f'v_add_u32 v{p[6]}, v{p[6]}, v{p[5]}', [p[6], p[5]], [p[6]])
        V(f'v_lshl_add_u32 v{p[6]}, v{p[1]}, 1, v{p[6]}', [p[1], p[6]], [p[6]])
        V(f'v_lshlrev_b32 v{p[6]}, 2, v{p[6]}', [p[6]], [p[6]])
        V(f'v_add_u32 v{p[6]}, s{S_T3}, v{p[6]}', [p[6]], [p[6]])
        V(f'v_lshlrev_b32 v{p[5]}, 1, v{p[1]}', [p[1]], [p[5]])
        V(f'v_sub_u32 v{p[3]}, v{p[3]}, v{p[5]}', [p[3], p[5]], [p[3]])
        V(f'v_cmp_gt_u32 vcc, 26, v{p[0]}', [p[0]], [], swrites=['vcc'])
        V(f'v_mov_b32 v{p[5]}, 100', [], [p[5]])
        V(f'v_cndmask_b32 v{p[3]}, v{p[5]}, v{p[3]}, vcc', [p[5], p[3]], [p[3]], sreads=['vcc'])
        V(f'v_add_u32 v{p[8]}, s{S_T3}, v{V_L16}', [V_L16], [p[8]])
        V(f'v_cmp_le_u32 vcc, 23, v{V_LANE}', [V_LANE], [], swrites=['vcc'])
        V(f'v_cndmask_b32 v{p[9]}, 0, 1, vcc', [], [p[9]], sreads=['vcc'])
        S(f's_mov_b32 s{S_T0}, s{srow}')
        rho_salu(S_T0, S_T1, S_T4)
        V(f'v_mul_u32_u24 v{p[9]}, {25*368}, v{p[9]}', [p[9]], [p[9]])
        V(f'v_add_u32 v{p[9]}, v{p[9]}, v{V_L16}', [p[9], V_L16], [p[9]])
        S(f's_mul_i32 s{S_T0}, s{S_T0}, 368'); S(f's_add_u32 s{S_T0}, s{S_T0}, {wsbase}')

    def sym_out(p, SD, MF, IF, ewl):
        m = p[10]
        V(f'v_max3_f32 v{m}, |v{SD}|, |v{SD+1}|, |v{SD+2}|', R(SD, 3), [m])
        for r in range(3, 15, 2):
            V(f'v_max3_f32 v{m}, |v{SD+r}|, |v{SD+r+1}|, v{m}', [SD+r, SD+r+1, m], [m])
        dpp_max(m)
        V(f'v_frexp_exp_i32_f32 v{m}, v{m}', [m], [m])
        V(f'v_readlane_b32 s{S_T4}, v{m}, 63', [m], [], swrites=[S_T4], readlane=True)
        S(f's_sub_i32 s{S_C}, 15, s{S_T4}', sreads=[S_T4])
        S(f's_sub_i32 s{S_T4}, s{S_T4}, 15')
        for r in range(14): V(f'v_ldexp_f32 v{SD+r}, v{SD+r}, s{S_C}', [SD+r], [SD+r])
        for rp in range(7):
            V(f'v_cvt_pk_f16_f32 v{MF+rp}, v{SD+2*rp}, v{SD+2*rp+1}', [SD+2*rp, SD+2*rp+1], [MF+rp])
        V(f'v_mov_b32 v{p[7]}, 0', [], [p[7]])
        V(f'v_mov_b32 v{p[13]}, s{S_T3}', [], [p[13]])
        a.ds(f'ds_write_b32 v{p[13]}, v{p[7]} offset:364', [p[13], p[7]])
        a.ds(f'ds_write_b32 v{p[13]}, v{p[7]} offset:732', [p[13], p[7]])
        for rp in range(7):
            aa, bb = rp >> 1, rp & 1
            V(f'v_cmp_ge_i32 vcc, {4*aa+bb}, v{p[3]}', [p[3]], [], swrites=['vcc'])
            if aa == 3: S('s_mov_b32 vcc_hi, 0', sreads=['vcc'])
            S('s_mov_b64 exec, vcc', sreads=['vcc'])
            a.ds(f'ds_write_b32 v{p[6]}, v{MF+rp} offset:{4*(4*aa+bb)}', [p[6], MF+rp])
            fullexec()
        a.raw('s_waitcnt lgkmcnt(0)', kind='wait')
        a.ds(f'ds_read_b128 {vr(IF,4)}, v{p[8]}', [p[8]], R(IF, 4))
        execn(46)
        a.vmem(f'buffer_store_dwordx4 {vr(IF,4)}, v{p[9]}, s[{S_WS}:{S_WS+3}], s{S_T0} offen sc1', [p[9]] + R(IF, 4), [], wide_store=R(IF, 4))
        fullexec()
        S(f's_lshl_b32 s{S_T1}, s{S_T1}, 2'); S(f's_add_u32 s{S_T1}, s{S_T1}, {WS_EWT + 128 * ewl}')
        V(f'v_mov_b32 v{p[11]}, s{S_T4}', [], [p[11]]); V(f'v_mov_b32 v{p[12]}, s{S_T1}', [], [p[12]])
        S('s_mov_b64 exec, 1')
        a.vmem(f'buffer_store_dword v{p[11]}, v{p[12]}, s[{S_WS}:{S_WS+3}], 0 offen sc1', [p[11], p[12]], [])

    S(f's_cmp_ge_u32 s{S_PID}, {NP2}')
    a.cond_begin('s_cbranch_scc1 L_noprod', 'L_noprod')
    p = [72 + i for i in range(16)]
    VF = 138
    S(f's_cmp_ge_u32 s{S_PID}, {NP1}'); S(f's_cselect_b32 s{S_T0}, 4, 0')
    S(f's_lshl_b32 s{S_T1}, s{S_PID}, 2'); S(f's_add_u32 s{S_T1}, s{S_T1}, 8'); S(f's_cmp_lt_u32 s{S_PID}, 4'); S(f's_cselect_b32 s{S_T0}, s{S_T1}, s{S_T0}')
    V(f'v_mov_b32 v{VF+1}, s{S_T0}', [], [VF+1])
    if SETS == 'd': a.vmem(f'buffer_load_dword v{VF}, v{VF+1}, s[{S_DBGF}:{S_DBGF+3}], 0 offen offset:128 sc1', [VF+1], [VF])
    def skipchk():
        if SETS != 'd': return
        V(f'v_readfirstlane_b32 s{S_MT}, v{VF}', [VF], [], swrites=[S_MT], readlane=True)
        S(f's_cmp_lg_u32 s{S_MT}, 0', sreads=[S_MT])
        a.raw('s_cbranch_scc1 L_prodskip', kind='branch')
    S(f's_cmp_ge_u32 s{S_G}, 112'); a.raw('s_cbranch_scc1 L_prodv5', kind='branch')
    S(f's_cmp_ge_u32 s{S_G}, 110'); a.raw('s_cbranch_scc1 L_noprod', kind='branch')
    S(f's_cmp_ge_u32 s{S_G}, 32'); a.raw('s_cbranch_scc1 L_prodrow', kind='branch')
    S(f's_cmp_ge_u32 s{S_G}, 26'); a.raw('s_cbranch_scc1 L_noprod', kind='branch')
    MF = 116; IF = 124; SD = 40
    V(f'v_and_b32 v{p[0]}, 31, v{V_LANE}', [V_LANE], [p[0]])
    V(f'v_lshrrev_b32 v{p[1]}, 5, v{V_LANE}', [V_LANE], [p[1]])
    V(f'v_mul_u32_u24 v{p[2]}, 52, v{p[0]}', [p[0]], [p[2]])
    V(f'v_lshl_add_u32 v{p[2]}, v{p[1]}, 4, v{p[2]}', [p[1], p[2]], [p[2]])
    S(f's_mul_i32 s{S_T2}, s{S_G}, 1352')
    a.vmem(f'buffer_load_dwordx4 {vr(MF,4)}, v{p[2]}, s[{S_WC}:{S_WC+3}], s{S_T2} offen', [p[2]], R(MF, 4))
    a.vmem(f'buffer_load_dwordx4 {vr(MF+4,4)}, v{p[2]}, s[{S_WC}:{S_WC+3}], s{S_T2} offen offset:32', [p[2]], R(MF+4, 4))
    V(f'v_lshlrev_b32 v{p[3]}, 3, v{p[1]}', [p[1]], [p[3]])
    V(f'v_sub_u32 v{p[3]}, v{p[0]}, v{p[3]}', [p[0], p[3]], [p[3]])
    V(f'v_and_b32 v{p[4]}, 1, v{p[3]}', [p[3]], [p[4]])
    V(f'v_lshlrev_b32 v{p[4]}, 4, v{p[4]}', [p[4]], [p[4]])
    V(f'v_mov_b32 v{p[5]}, 0x3f80', [], [p[5]])
    V(f'v_lshlrev_b32 v{p[4]}, v{p[4]}, v{p[5]}', [p[4], p[5]], [p[4]])
    V(f'v_ashrrev_i32 v{p[3]}, 1, v{p[3]}', [p[3]], [p[3]])
    for ks in range(2):
        for r in range(4):
            V(f'v_cmp_eq_u32 vcc, {8*ks + r}, v{p[3]}', [p[3]], [], swrites=['vcc'])
            V(f'v_cndmask_b32 v{IF+4*ks+r}, 0, v{p[4]}, vcc', [p[4]], [IF+4*ks+r], sreads=['vcc'])
    S(f's_lshl_b32 s{S_T3}, s{S_WAVE}, 10'); S(f's_add_u32 s{S_T3}, s{S_T3}, {SCR}')
    sym_addr(p, S_G, WS_IMG0)
    a.raw('s_waitcnt vmcnt(0)', kind='wait')
    skipchk()
    a.mfma('v_mfma_f32_32x32x16_bf16', SD, MF, IF, None, 8, 16)
    a.mfma('v_mfma_f32_32x32x16_bf16', SD, MF+4, IF+4, SD, 8, 16)
    a.mfma('v_mfma_f32_32x32x16_bf16', SD, IF, MF, SD, 8, 16)
    a.mfma('v_mfma_f32_32x32x16_bf16', SD, IF+4, MF+4, SD, 8, 16)
    sym_out(p, SD, MF, IF, 0)
    a.raw('s_branch L_prodfin', kind='branch')
    a.label('L_prodrow')
    S(f's_sub_u32 s{S_G}, s{S_G}, 32')
    PR = 40; PA = 48
    S(f's_mul_i32 s{S_T2}, s{S_G}, 1352'); S(f's_add_u32 s{S_T2}, s{S_T2}, 35152')
    V(f'v_cmp_le_u32 vcc, 43, v{V_LANE}', [V_LANE], [], swrites=['vcc'])
    V(f'v_cndmask_b32 v{p[0]}, 0, 1, vcc', [], [p[0]], sreads=['vcc'])
    V(f'v_mul_u32_u24 v{p[2]}, 12, v{p[0]}', [p[0]], [p[2]])
    V(f'v_sub_u32 v{p[2]}, v{V_L16}, v{p[2]}', [V_L16, p[2]], [p[2]])
    a.vmem(f'buffer_load_dwordx4 {vr(PR,4)}, v{p[2]}, s[{S_WC}:{S_WC+3}], s{S_T2} offen', [p[2]], R(PR, 4))
    V(f'v_min_u32 v{p[3]}, 21, v{V_LANE}', [V_LANE], [p[3]])
    V(f'v_lshlrev_b32 v{p[4]}, 4, v{p[3]}', [p[3]], [p[4]])
    a.vmem(f'buffer_load_dwordx4 {vr(PR+4,4)}, v{p[4]}, s[{S_WC}:{S_WC+3}], s{S_T2} offen offset:1012', [p[4]], R(PR+4, 4))
    S(f's_mul_i32 s{S_T1}, s{S_G}, 2521'); S(f's_lshr_b32 s{S_T1}, s{S_T1}, 16')
    S(f's_mul_i32 s{S_T3}, s{S_T1}, 26'); S(f's_sub_u32 s{S_T0}, s{S_G}, s{S_T3}')
    rho_salu(S_T0, S_T3, S_T4)
    V(f'v_mul_u32_u24 v{p[7]}, {25*688}, v{p[0]}', [p[0]], [p[7]])
    V(f'v_add_u32 v{p[7]}, v{p[7]}, v{V_L16}', [p[7], V_L16], [p[7]])
    V(f'v_add_u32 v{p[8]}, {26*688+336}, v{p[4]}', [p[4]], [p[8]])
    S(f's_mul_i32 s{S_T0}, s{S_T0}, 688'); S(f's_mul_i32 s{S_T2}, s{S_T1}, {IMG}'); S(f's_add_u32 s{S_T2}, s{S_T2}, s{S_T0}'); S(f's_add_u32 s{S_T2}, s{S_T2}, {WS_IMG[1]}')
    S(f's_lshl_b32 s{S_T1}, s{S_T1}, 5'); S(f's_add_u32 s{S_T1}, s{S_T1}, s{S_T3}'); S(f's_add_u32 s{S_T1}, s{S_T1}, 32')
    a.raw('s_waitcnt vmcnt(0)', kind='wait')
    skipchk()
    for i in range(8): V(f'v_and_b32 v{PA+i}, s{S_K7FFF}, v{PR+i}', [PR+i], [PA+i])
    m = p[11]
    V(f'v_pk_maximum3_f16 v{m}, v{PA}, v{PA+1}, v{PA+2}', R(PA, 3), [m])
    V(f'v_pk_maximum3_f16 v{m}, v{m}, v{PA+3}, v{PA+4}', [m, PA+3, PA+4], [m])
    V(f'v_pk_maximum3_f16 v{m}, v{m}, v{PA+5}, v{PA+6}', [m, PA+5, PA+6], [m])
    V(f'v_pk_max_u16 v{m}, v{m}, v{PA+7}', [m, PA+7], [m])
    V(f'v_max_u16_sdwa v{m}, v{m}, v{m} dst_sel:DWORD dst_unused:UNUSED_PAD src0_sel:WORD_1 src1_sel:WORD_0', [m], [m], opsel=True)
    dpp_max(m)
    V(f'v_readlane_b32 s{S_T0}, v{m}, 63', [m], [], swrites=[S_T0], readlane=True)
    S(f's_lshr_b32 s{S_T0}, s{S_T0}, 7', sreads=[S_T0], swrites=[S_T0])
    S(f's_sub_i32 s{S_T0}, s{S_T0}, 30'); S(f's_max_i32 s{S_T0}, s{S_T0}, 0')
    S(f's_mul_i32 s{S_C}, s{S_T0}, 0x800080'); S(f's_sub_i32 s{S_T0}, s{S_T0}, 112')
    for i in range(8): V(f'v_pk_sub_u16 v{PA+i}, v{PA+i}, s{S_C} clamp', [PA+i], [PA+i])
    for i in range(8): V(f'v_lshlrev_b32 v{PA+i}, 3, v{PA+i}', [PA+i], [PA+i])
    for i in range(8): V(f'v_bfi_b32 v{PA+i}, s{S_K8000}, v{PR+i}, v{PA+i}', [PA+i, PR+i], [PA+i])
    a.vmem(f'buffer_store_dwordx4 {vr(PA,4)}, v{p[7]}, s[{S_WS}:{S_WS+3}], s{S_T2} offen sc1', [p[7]] + R(PA, 4), [], wide_store=R(PA, 4))
    execn(22)
    a.vmem(f'buffer_store_dwordx4 {vr(PA+4,4)}, v{p[8]}, s[{S_WS}:{S_WS+3}], s{S_T2} offen sc1', [p[8]] + R(PA+4, 4), [], wide_store=R(PA+4, 4))
    S(f's_lshl_b32 s{S_T1}, s{S_T1}, 2'); S(f's_add_u32 s{S_T1}, s{S_T1}, {WS_EWT}')
    V(f'v_mov_b32 v{p[9]}, s{S_T0}', [], [p[9]]); V(f'v_mov_b32 v{p[10]}, s{S_T1}', [], [p[10]])
    S('s_mov_b64 exec, 1')
    a.vmem(f'buffer_store_dword v{p[9]}, v{p[10]}, s[{S_WS}:{S_WS+3}], 0 offen sc1', [p[9], p[10]], [])
    a.raw('s_branch L_prodfin', kind='branch')
    a.label('L_prodv5')
    S(f's_sub_u32 s{S_T0}, s{S_G}, 112'); S(f's_lshr_b32 s{S_T3}, s{S_T0}, 5'); S(f's_and_b32 s{S_T0}, s{S_T0}, 31')
    S(f's_cmp_ge_u32 s{S_T0}, 26'); a.raw('s_cbranch_scc1 L_noprod', kind='branch')
    LA = 40; LB = 44; AC = 48
    S(f's_mul_i32 s{S_T2}, s{S_T0}, 52'); S(f's_mul_i32 s{S_T1}, s{S_T3}, 35152'); S(f's_add_u32 s{S_T2}, s{S_T2}, s{S_T1}'); S(f's_add_u32 s{S_T2}, s{S_T2}, {4*35152}')
    V(f'v_lshrrev_b32 v{p[0]}, 2, v{V_LANE}', [V_LANE], [p[0]])
    V(f'v_and_b32 v{p[1]}, 3, v{V_LANE}', [V_LANE], [p[1]])
    V(f'v_mul_u32_u24 v{p[2]}, 0x548, v{p[0]}', [p[0]], [p[2]])
    V(f'v_lshl_add_u32 v{p[2]}, v{p[1]}, 4, v{p[2]}', [p[1], p[2]], [p[2]])
    a.vmem(f'buffer_load_dwordx4 {vr(LA,4)}, v{p[2]}, s[{S_WC}:{S_WC+3}], s{S_T2} offen', [p[2]], R(LA, 4))
    S(f's_add_u32 s{S_T2}, s{S_T2}, {16*1352}')
    a.vmem(f'buffer_load_dwordx4 {vr(LB,4)}, v{p[2]}, s[{S_WC}:{S_WC+3}], s{S_T2} offen', [p[2]], R(LB, 4))
    V(f'v_lshlrev_b32 v{p[3]}, 1, v{p[0]}', [p[0]], [p[3]])
    S(f's_mul_i32 s{S_T2}, s{S_T3}, 52')
    a.vmem(f'buffer_load_ushort v{p[4]}, v{p[3]}, s[{S_WCO}:{S_WCO+3}], s{S_T2} offen offset:208', [p[3]], [p[4]])
    a.vmem(f'buffer_load_ushort v{p[5]}, v{p[3]}, s[{S_WCO}:{S_WCO+3}], s{S_T2} offen offset:240', [p[3]], [p[5]])
    S(f's_lshl_b32 s{S_C}, s{S_T0}, 7'); S(f's_add_u32 s{S_C}, s{S_C}, {WS_V5R}')
    rho_salu(S_T0, S_T1, S_T4, clamp=False)
    S(f's_lshl_b32 s{S_T0}, s{S_T0}, 4'); S(f's_add_u32 s{S_T0}, s{S_T0}, {WS_V5F}')
    S(f's_cmp_eq_u32 s{S_T3}, 0'); S(f's_cselect_b32 s{S_T0}, s{S_T0}, s{S_C}'); S(f's_cselect_b32 s{S_T1}, 10, 4'); S(f's_movk_i32 s{S_T4}, 0x200'); S(f's_cselect_b32 s{S_T4}, s{S_T4}, 64')
    V(f'v_lshlrev_b32 v{p[6]}, s{S_T1}, v{p[1]}', [p[1]], [p[6]])
    V(f'v_add_u32 v{p[15]}, s{S_T4}, v{p[6]}', [p[6]], [p[15]])
    a.raw('s_waitcnt vmcnt(0)', kind='wait')
    skipchk()
    V(f'v_cmp_ne_u32 vcc, 3, v{p[1]}', [p[1]], [], swrites=['vcc'])
    for r in (1, 2, 3):
        V(f'v_cndmask_b32 v{LA+r}, 0, v{LA+r}, vcc', [LA+r], [LA+r], sreads=['vcc'])
        V(f'v_cndmask_b32 v{LB+r}, 0, v{LB+r}, vcc', [LB+r], [LB+r], sreads=['vcc'])
    V(f'v_lshlrev_b32 v{p[4]}, 16, v{p[4]}', [p[4]], [p[4]])
    V(f'v_lshlrev_b32 v{p[5]}, 16, v{p[5]}', [p[5]], [p[5]])
    V(f'v_cmp_gt_u32 vcc, 10, v{p[0]}', [p[0]], [], swrites=['vcc'])
    V(f'v_cndmask_b32 v{p[5]}, 0, v{p[5]}, vcc', [p[5]], [p[5]], sreads=['vcc'])
    for r in range(4):
        V(f'v_lshlrev_b32 v{p[7]}, 16, v{LA+r}', [LA+r], [p[7]])
        V(f'v_and_b32 v{p[8]}, 0xffff0000, v{LA+r}', [LA+r], [p[8]])
        V(f'v_lshlrev_b32 v{p[9]}, 16, v{LB+r}', [LB+r], [p[9]])
        V(f'v_and_b32 v{p[10]}, 0xffff0000, v{LB+r}', [LB+r], [p[10]])
        V(f'v_mul_f32 v{AC+2*r}, v{p[4]}, v{p[7]}', [p[4], p[7]], [AC+2*r])
        V(f'v_mul_f32 v{AC+2*r+1}, v{p[4]}, v{p[8]}', [p[4], p[8]], [AC+2*r+1])
        V(f'v_fmac_f32 v{AC+2*r}, v{p[5]}, v{p[9]}', [AC+2*r, p[5], p[9]], [AC+2*r])
        V(f'v_fmac_f32 v{AC+2*r+1}, v{p[5]}, v{p[10]}', [AC+2*r+1, p[5], p[10]], [AC+2*r+1])
    for d in (4, 8):
        for e in range(8):
            V(f'v_add_f32_dpp v{AC+e}, v{AC+e}, v{AC+e} row_ror:{d} row_mask:0xf bank_mask:0xf', [AC+e], [AC+e], dpp=True)
    for op in ('v_permlane16_swap_b32', 'v_permlane32_swap_b32'):
        for e in range(8): V(f'v_mov_b32 v{p[7+e]}, v{AC+e}', [AC+e], [p[7+e]])
        for e in range(8): V(f'{op} v{AC+e}, v{p[7+e]}', [AC+e, p[7+e]], [AC+e, p[7+e]], permlane=True)
        for e in range(8): V(f'v_add_f32 v{AC+e}, v{AC+e}, v{p[7+e]}', [AC+e, p[7+e]], [AC+e])
    for r in range(4):
        V(f'v_cvt_pk_bf16_f32 v{LA+r}, v{AC+2*r}, v{AC+2*r+1}', [AC+2*r, AC+2*r+1], [LA+r])
        V(f'v_lshlrev_b32 v{p[7]}, 16, v{LA+r}', [LA+r], [p[7]])
        V(f'v_and_b32 v{p[8]}, 0xffff0000, v{LA+r}', [LA+r], [p[8]])
        V(f'v_sub_f32 v{p[7]}, v{AC+2*r}, v{p[7]}', [AC+2*r, p[7]], [p[7]])
        V(f'v_sub_f32 v{p[8]}, v{AC+2*r+1}, v{p[8]}', [AC+2*r+1, p[8]], [p[8]])
        V(f'v_cvt_pk_bf16_f32 v{LB+r}, v{p[7]}, v{p[8]}', [p[7], p[8]], [LB+r])
    execn(4)
    a.vmem(f'buffer_store_dwordx4 {vr(LA,4)}, v{p[6]}, s[{S_WS}:{S_WS+3}], s{S_T0} offen sc1', [p[6]] + R(LA, 4), [], wide_store=R(LA, 4))
    a.vmem(f'buffer_store_dwordx4 {vr(LB,4)}, v{p[15]}, s[{S_WS}:{S_WS+3}], s{S_T0} offen sc1', [p[15]] + R(LB, 4), [], wide_store=R(LB, 4))
    a.label('L_prodfin')
    fullexec()
    a.raw('s_branch L_afterprod', kind='branch')
    a.label('L_prodskip')
    S(f's_mov_b32 s{S_PID}, 255')
    a.cond_end()
    a.raw('s_waitcnt vmcnt(0)', kind='wait')
    a.label('L_afterprod')
    a.vm = []
    a.raw('s_waitcnt lgkmcnt(0)', kind='wait'); a.lds = []
    a.nop(12)
    stamp('prod')
    def addr_setup():
        V(f'v_and_b32 v{t[0]}, 31, v{V_LANE}', [V_LANE], [t[0]])
        V(f'v_cmp_gt_u32 vcc, 28, v{t[0]}', [t[0]], [], swrites=['vcc'])
        V(f'v_addc_co_u32 v{t[4]}, vcc, 0, v{t[0]}, vcc', [t[0]], [t[4]], sreads=['vcc'], swrites=['vcc'])
        V(f'v_cmp_eq_u32 s[{S_MT}:{S_MT+1}], 28, v{t[0]}', [t[0]], [], swrites=[S_MT, S_MT+1])
        V(f'v_cndmask_b32 v{t[4]}, v{t[4]}, 0, s[{S_MT}:{S_MT+1}]', [t[4]], [t[4]], sreads=[S_MT])
        V(f'v_lshrrev_b32 v{t[1]}, 5, v{V_LANE}', [V_LANE], [t[1]])
        V(f'v_mad_u32_u24 v{t[4]}, v{t[1]}, 26, v{t[4]}', [t[1], t[4]], [t[4]])
        V(f'v_cmp_gt_u32 vcc, 25, v{t[0]}', [t[0]], [], swrites=['vcc'])
        S(f's_or_b64 vcc, vcc, s[{S_MT}:{S_MT+1}]', sreads=['vcc', S_MT])
        V(f'v_mov_b32 v{t[5]}, 0x40000', [], [t[5]])
        V(f'v_cndmask_b32 v{t[5]}, v{t[5]}, 0, vcc', [t[5]], [t[5]])
        S(f's_movk_i32 s{S_T0}, 0x2b0'); S(f's_movk_i32 s{S_T1}, 0x170')
        V(f'v_mad_u32_u24 v{V_AADDR[0]}, v{t[4]}, s{S_T0}, v{t[5]}', [t[4], t[5]], [V_AADDR[0]])
        V(f'v_add_u32 v{V_AADDR[1]}, {U[2]}, v{V_AADDR[0]}', [V_AADDR[0]], [V_AADDR[1]])
        V(f'v_mad_u32_u24 v{V_AADDR0}, v{t[4]}, s{S_T1}, v{t[5]}', [t[4], t[5]], [V_AADDR0])
        V(f'v_add_u32 v{V_AADDR0}, {I0B}, v{V_AADDR0}', [V_AADDR0], [V_AADDR0])
    V(f'v_and_b32 v{t[0]}, 31, v{V_LANE}', [V_LANE], [t[0]])
    V(f'v_lshlrev_b32 v{t[0]}, 2, v{t[0]}', [t[0]], [t[0]])
    S(f's_mul_i32 s{S_T0}, s{S_WAVE}, 1664'); S(f's_add_u32 s{S_T0}, s{S_T0}, {X16}')
    V(f'v_add_u32 v{V_TRADDR}, s{S_T0}, v{t[0]}', [t[0]], [V_TRADDR])
    V(f'v_lshrrev_b32 v{t[4]}, 4, v{V_LANE}', [V_LANE], [t[4]])
    V(f'v_lshrrev_b32 v{t[0]}, 2, v{V_LANE}', [V_LANE], [t[0]])
    V(f'v_mul_u32_u24 v{t[0]}, 224, v{t[0]}', [t[0]], [t[0]])
    V(f'v_and_b32 v{t[5]}, 3, v{V_LANE}', [V_LANE], [t[5]])
    V(f'v_lshl_add_u32 v{t[0]}, v{t[5]}, 3, v{t[0]}', [t[5], t[0]], [t[0]])
    V(f'v_mov_b32 v{V_DAADDR}, v{t[0]}', [t[0]], [V_DAADDR])
    V(f'v_add_u32 v{V_DBK}, 121600, v{V_DAADDR}', [V_DAADDR], [V_DBK])
    S(f's_lshl_b32 s{S_T1}, s{S_T0L}, 5'); S(f's_add_u32 s{S_T1}, s{S_T1}, {BW}')
    V(f'v_lshlrev_b32 v{t[4]}, 3, v{t[4]}', [t[4]], [t[4]])
    V(f'v_add_u32 v{V_BWADDR}, s{S_T1}, v{t[4]}', [t[4]], [V_BWADDR])
    V(f'v_mov_b32 v{V_SYNC}, {SYNC}', [], [V_SYNC])
    S(f's_lshl_b32 s{S_T0}, s{S_WAVE}, 2'); S(f's_add_u32 s{S_T0}, s{S_T0}, {SYNC + 32}')
    V(f'v_mov_b32 v{V_DONEA}, s{S_T0}', [], [V_DONEA])
    S(f's_cmp_gt_u32 s{S_WAVE}, 2')
    a.cond_begin('s_cbranch_scc1 L_nopw2', 'L_nopw2')
    V(f'v_lshlrev_b32 v{PWT}, 16, v{PWT}', [PWT], [PWT])
    V(f'v_lshlrev_b32 v{t[0]}, 2, v0', [0], [t[0]])
    V(f'v_add_u32 v{t[0]}, {POOLW}, v{t[0]}', [t[0]], [t[0]])
    V(f'v_cmp_gt_u32 vcc, 0xa0, v0', [0], [], swrites=['vcc'])
    S('s_mov_b64 exec, vcc', sreads=['vcc'])
    a.ds(f'ds_write_b32 v{t[0]}, v{PWT}', [t[0], PWT])
    fullexec()
    a.cond_end()
    a.barrier()
    S(f's_cmp_ge_u32 s{S_PID}, {NP2}')
    a.raw('s_cbranch_scc1 L_nocnt', kind='branch')
    a.raw('s_waitcnt vmcnt(0)', kind='wait')
    a.raw(f'v_mov_b32 v{VT1}, 1', kind='valu')
    S('s_mov_b64 exec, 1')
    a.raw(f'ds_add_rtn_u32 v{VT2}, v{V_SYNC}, v{VT1} offset:12', kind='ds')
    a.raw(f's_memrealtime s[{S_MT}:{S_MT+1}]')
    a.raw('s_waitcnt lgkmcnt(0)', kind='wait')
    a.raw(f'v_readfirstlane_b32 s{S_T0}, v{VT2}', kind='valu')
    a.raw('s_nop 0', kind='nop')
    S(f's_cmp_lg_u32 s{S_T0}, 7')
    a.raw('s_cbranch_scc1 L_nocnt', kind='branch')
    S(f's_cmp_ge_u32 s{S_PID}, 4')
    a.raw('s_cbranch_scc1 L_cntat', kind='branch')
    S(f's_lshl_b32 s{S_T0}, s{S_PID}, 2')
    a.raw(f'v_mov_b32 v{VT2}, s{S_T0}', kind='valu')
    a.raw(f'buffer_store_dword v{VT1}, v{VT2}, s[{S_DBGF}:{S_DBGF+3}], 0 offen offset:136 sc1', kind='vmem')
    a.raw('s_branch L_nocnt', kind='branch')
    a.label('L_cntat')
    S(f's_cmp_ge_u32 s{S_PID}, {NP1}'); S(f's_cselect_b32 s{S_T0}, 4, 0'); S(f's_cselect_b32 s{S_T1}, {NP2 - NP1 - 1}, {NP1 - 4 - 1}')
    S(f's_add_u32 s{S_T2}, s{S_T0}, s{S_SET}')
    a.raw(f'v_mov_b32 v{VT2}, s{S_T2}', kind='valu')
    a.raw(f'buffer_atomic_add v{VT1}, v{VT2}, s[{S_DBGF}:{S_DBGF+3}], 0 offen offset:64 sc0 sc1', kind='vmem')
    a.raw('s_waitcnt vmcnt(0)', kind='wait')
    a.raw(f'v_readfirstlane_b32 s{S_T2}, v{VT1}', kind='valu')
    a.raw('s_nop 0', kind='nop')
    S(f's_cmp_lg_u32 s{S_T2}, s{S_T1}')
    a.raw('s_cbranch_scc1 L_nocnt', kind='branch')
    S(f's_or_b32 s{S_MT}, s{S_MT}, 1')
    a.raw(f'v_mov_b32 v{VT1}, s{S_MT}', kind='valu')
    a.raw(f'v_mov_b32 v{VT2}, 0', kind='valu')
    a.raw(f'v_mov_b32 v{VT3}, s{S_T0}', kind='valu')
    a.raw(f'buffer_atomic_cmpswap v[{VT1}:{VT2}], v{VT3}, s[{S_DBGF}:{S_DBGF+3}], 0 offen offset:128 sc1', kind='vmem')
    a.label('L_nocnt')
    fullexec()
    S(f's_mov_b32 s{S_KN}, 0')
    stamp('setup')

    chk_n = [0]
    def rdy_fetch(off): a.ds(f'ds_read_b32 v{V_RDY}, v{V_SYNC} offset:{off}', [V_SYNC], [V_RDY])
    def rdy_check(nseq, off, fetched=False):
        if not fetched: rdy_fetch(off)
        i = chk_n[0]; chk_n[0] += 1
        V(f'v_readfirstlane_b32 s{S_T0}, v{V_RDY}', [V_RDY], [], swrites=[S_T0], readlane=True)
        S(f's_cmp_ge_u32 s{S_T0}, {nseq}', sreads=[S_T0])
        a.cond_begin(f's_cbranch_scc1 L_ok{i}', f'L_ok{i}')
        a.raw(f's_mov_b32 s{S_T1}, 0x100000', kind='salu')
        a.label(f'L_sp{i}')
        a.raw('s_sleep 1')
        a.raw(f'ds_read_b32 v{V_RDY}, v{V_SYNC} offset:{off}', kind='ds')
        a.raw(f's_sub_u32 s{S_T1}, s{S_T1}, 1', kind='salu')
        a.raw(f's_cbranch_scc1 L_ok{i}', kind='branch')
        a.raw('s_waitcnt lgkmcnt(0)', kind='wait')
        a.raw(f'v_readfirstlane_b32 s{S_T0}, v{V_RDY}', kind='valu')
        a.raw('s_nop 0', kind='nop')
        a.raw(f's_cmp_ge_u32 s{S_T0}, {nseq}', kind='salu')
        a.raw(f's_cbranch_scc0 L_sp{i}', kind='branch')
        a.cond_end()
    def cnt_check(nseq):
        i = chk_n[0]; chk_n[0] += 1
        S(f's_cmp_ge_u32 s{S_KN}, {nseq}')
        a.cond_begin(f's_cbranch_scc1 L_ok{i}', f'L_ok{i}')
        a.raw(f's_mov_b32 s{S_T1}, 0x100000', kind='salu')
        a.label(f'L_sp{i}')
        a.raw(f'ds_read_b32 v{V_RDY}, v{V_SYNC}', kind='ds')
        a.raw(f's_sub_u32 s{S_T1}, s{S_T1}, 1', kind='salu')
        a.raw(f's_cbranch_scc1 L_ok{i}', kind='branch')
        a.raw('s_waitcnt lgkmcnt(0)', kind='wait')
        a.raw(f'v_readfirstlane_b32 s{S_KN}, v{V_RDY}', kind='valu')
        a.raw('s_nop 0', kind='nop')
        a.raw(f's_cmp_ge_u32 s{S_KN}, {nseq}', kind='salu')
        a.raw(f's_cbranch_scc1 L_ok{i}', kind='branch')
        a.raw('s_sleep 1')
        a.raw(f's_branch L_sp{i}', kind='branch')
        a.cond_end()
    def release(stage):
        V(f'v_mov_b32 v{t[0]}, {stage}', [], [t[0]])
        a.ds(f'ds_write_b32 v{V_DONEA}, v{t[0]}', [V_DONEA, t[0]])

    def x0_ops():
        ops = []
        PB = PBT
        def rd():
            V(f'v_lshlrev_b32 v{V_ACC}, 16, v{V_ACC}', [V_ACC], [V_ACC])
            V(f'v_and_b32 v{t[0]}, 47, v{V_LANE}', [V_LANE], [t[0]])
            V(f'v_cmp_eq_u32 vcc, 0, v{t[0]}', [t[0]], [], swrites=['vcc'])
            V(f'v_cndmask_b32 v{V_ACC}, 0, v{V_ACC}, vcc', [V_ACC], [V_ACC], sreads=['vcc'])
        ops.append(rd)
        m = t[1]
        def c1():
            for v in range(13): V(f'v_and_b32 v{P16+v}, s{S_K7FFF}, v{PB+v}', [PB+v], [P16+v])
        ops.append(c1)
        def c2():
            V(f'v_pk_maximum3_f16 v{m}, v{P16}, v{P16+1}, v{P16+2}', R(P16, 3), [m])
            for v in range(3, 13, 2):
                V(f'v_pk_maximum3_f16 v{m}, v{m}, v{P16+v}, v{P16+v+1}', [m, P16+v, P16+v+1], [m])
            V(f'v_max_u16_sdwa v{m}, v{m}, v{m} dst_sel:DWORD dst_unused:UNUSED_PAD src0_sel:WORD_1 src1_sel:WORD_0', [m], [m], opsel=True)
            V(f'v_lshrrev_b32 v{m}, 7, v{m}', [m], [m])
            V(f'v_subrev_u32 v{m}, 21, v{m}', [m], [m])
            V(f'v_max_i32 v{m}, 0, v{m}', [m], [m])
            V(f'v_subrev_u32 v{V_EX}, 112, v{m}', [m], [V_EX])
            V(f'v_mul_u32_u24 v{m}, 0x800080, v{m}', [m], [m])
        ops.append(c2)
        ops.append(lambda: [V(f'v_pk_sub_u16 v{P16+v}, v{P16+v}, v{m} clamp', [P16+v, m], [P16+v]) for v in range(13)])
        ops.append(lambda: [V(f'v_lshlrev_b32 v{P16+v}, 3, v{P16+v}', [P16+v], [P16+v]) for v in range(13)])
        ops.append(lambda: [V(f'v_bfi_b32 v{P16+v}, s{S_K8000}, v{PB+v}, v{P16+v}', [P16+v, PB+v], [P16+v]) for v in range(13)])
        def qq():
            V(f'v_mov_b32 v{P16+13}, 0', [], [P16+13])
            V(f'v_mov_b32 v{t[2]}, 0x05040100', [], [t[2]])
            V(f'v_mov_b32 v{t[1]}, 0x07060302', [], [t[1]])
            V(f'v_cndmask_b32 v{t[2]}, v{t[2]}, v{t[1]}, s[{S_HI}:{S_HI+1}]', [t[2], t[1]], [t[2]])
            for q in range(7):
                V(f'v_perm_b32 v{XQ+q}, v{P16+2*q+1}, v{P16+2*q}, v{t[2]}', [P16+2*q+1, P16+2*q, t[2]], [XQ+q])
        ops.append(qq)
        def q2():
            V(f'v_lshlrev_b32 v{V_E}, 1, v{V_EX}', [V_EX], [V_E])
        ops.append(q2)
        return ops

    ACC = 40; DAB = [68, 96]; DBB = [124, 128]; IXR = 132; NDB = 2
    def dnn_bread(i):
        db = DBB[i % NDB]
        a.ds(f'ds_read_b64 {vr(db,2)}, v{IXR+2*i}', [IXR+2*i], R(db, 2))
        a.ds(f'ds_read_b64 {vr(db+2,2)}, v{IXR+2*i+1}', [IXR+2*i+1], R(db+2, 2))
        if i == 11: V(f'v_add_u32 v{V_DAADDR}, 57344, v{V_DAADDR}', [V_DAADDR], [V_DAADDR])
    def dnn_aread(i, q):
        da = DAB[i % NDB]
        hi = i < 3
        ad = V_DBK if hi else V_DAADDR; b0 = CADDR[i] - (121600 if hi else 0)
        if i >= 11: b0 -= 57344
        a.ds(f'ds_read_b64_tr_b16 {vr(da+4*q,2)}, v{ad} offset:{b0+32*q}', [ad], R(da+4*q, 2))
        a.ds(f'ds_read_b64_tr_b16 {vr(da+4*q+2,2)}, v{ad} offset:{b0+32*q+3584}', [ad], R(da+4*q+2, 2))
    def dnn_mf(i, q):
        a.mfma('v_mfma_f32_16x16x32_bf16', ACC+4*q, DAB[i % NDB]+4*q, DBB[i % NDB], ACC+4*q, 4, 4)
    def dnn_epilogue(xt):
        K1 = -2.0 * 1.4426950408889634 * 0.7978845608028654
        K2 = K1 * 0.044715
        acc = 124; K1R = 125; W2T = 96; TT = 68
        qs = list(range(0 if xt else 1, 7))
        S(f's_mov_b32 s{S_K2}, {fb(K2)}')
        for q in qs:
            a.ds(f'ds_read_b64 {vr(W2T+2*q,2)}, v{V_BWADDR} offset:{832+32*q}', [V_BWADDR], R(W2T+2*q, 2))
        V(f'v_mov_b32 v{K1R}, {fb(K1)}', [], [K1R])
        V(f'v_mov_b32 v{acc}, 0', [], [acc])
        xs = [ACC + 4*q + r for q in qs for r in range(4)]
        ts = [TT + 4*q + r for q in qs for r in range(4)]
        for x, tt in zip(xs, ts): V(f'v_mul_f32 v{tt}, v{x}, v{x}', [x], [tt])
        for x, tt in zip(xs, ts): V(f'v_fma_f32 v{tt}, v{tt}, s{S_K2}, v{K1R}', [tt, K1R], [tt])
        for x, tt in zip(xs, ts): V(f'v_mul_f32 v{tt}, v{tt}, v{x}', [tt, x], [tt])
        for x, tt in zip(xs, ts): V(f'v_exp_f32 v{tt}, v{tt}', [tt], [tt], trans=True)
        for x, tt in zip(xs, ts): V(f'v_add_f32 v{tt}, 1.0, v{tt}', [tt], [tt])
        for x, tt in zip(xs, ts): V(f'v_rcp_f32 v{tt}, v{tt}', [tt], [tt], trans=True)
        for x, tt in zip(xs, ts): V(f'v_mul_f32 v{tt}, v{tt}, v{x}', [tt, x], [tt])
        for q in qs:
            w = W2T + 2*q; x0_ = ACC + 4*q
            V(f'v_lshlrev_b32 v{x0_}, 16, v{w}', [w], [x0_])
            V(f'v_and_b32 v{x0_+1}, 0xffff0000, v{w}', [w], [x0_+1])
            V(f'v_lshlrev_b32 v{x0_+2}, 16, v{w+1}', [w+1], [x0_+2])
            V(f'v_and_b32 v{x0_+3}, 0xffff0000, v{w+1}', [w+1], [x0_+3])
        for x, tt in zip(xs, ts): V(f'v_fmac_f32 v{acc}, v{tt}, v{x}', [acc, tt, x], [acc])
        for op in ('v_permlane16_swap_b32', 'v_permlane32_swap_b32'):
            V(f'v_mov_b32 v{K1R}, v{acc}', [acc], [K1R])
            V(f'{op} v{acc}, v{K1R}', [acc, K1R], [acc, K1R], permlane=True)
            V(f'v_add_f32 v{acc}, v{acc}, v{K1R}', [acc, K1R], [acc])
        V(f'v_lshlrev_b32 v{t[0]}, 2, v{V_LANE}', [V_LANE], [t[0]])
        S(f's_and_b32 s{S_T0}, s{S_WAVE}, 3'); S(f's_lshl_b32 s{S_T0}, s{S_T0}, 6'); S(f's_add_u32 s{S_T0}, s{S_T0}, {PDL}')
        V(f'v_add_u32 v{t[0]}, s{S_T0}, v{t[0]}', [t[0]], [t[0]])
        V(f'v_mov_b32 v{t[1]}, 1', [], [t[1]])
        execn(16)
        a.ds(f'ds_write_b32 v{t[0]}, v{acc}', [t[0], acc])
        execn(1)
        a.ds(f'ds_add_u32 v{V_SYNC}, v{t[1]} offset:4', [V_SYNC, t[1]])
        fullexec()
    def u5_ops():
        ops = []
        def rd():
            V(f'v_add_u32 v{t[0]}, {V5F}, v{V_L16}', [V_L16], [t[0]])
            for k in range(4):
                a.ds(f'ds_read_b128 {vr(UA+4*k,4)}, v{t[0]} offset:{1024*k}', [t[0]], R(UA+4*k, 4))
            for k in range(4):
                a.ds(f'ds_read_b128 {vr(G+4*k,4)}, v{V_PWADDR} offset:{POOLW-EWT+128*3+16*k}', [V_PWADDR], R(G+4*k, 4))
        ops.append(rd)
        for k in range(4):
            def rb(k=k):
                for e in range(4 if k < 3 else 1):
                    a.ds(f'ds_read_b32 v{DB+e}, v{V_TRADDR} offset:{128*(4*k+e)}', [V_TRADDR], [DB+e])
            ops.append(rb)
            ops += [lambda: None] * 4
            if k == 3:
                def zz():
                    for r in (1, 2, 3): V(f'v_mov_b32 v{DB+r}, 0', [], [DB+r])
                ops.append(zz)
            ops.append(lambda k=k: a.mfma('v_mfma_f32_32x32x16_bf16', G, UA+4*k, DB, G, 8, 16))
            ops.append(lambda: None)
        return ops

    def boundary_ops(l):
        ops = []
        s_ = ZB[2]; mx = ZB[2]+1; my = ZB[2]+2
        W = PW if l < 4 else G
        for r in range(13):
            ops.append(lambda r=r: V(f'v_ldexp_f32 v{D+r}, v{D+r}, v{EW+r}', [D+r, EW+r], [D+r]))
        if l < 4:
            ops.append(lambda: V(f'v_max3_f32 v{mx}, |v{D}|, |v{D+1}|, |v{D+2}|', R(D, 3), [mx]))
            for r in range(3, 13, 2):
                ops.append(lambda r=r: V(f'v_max3_f32 v{mx}, |v{D+r}|, |v{D+r+1}|, v{mx}', [D+r, D+r+1, mx], [mx]))
            ops.append(lambda: V(f'v_mov_b32 v{my}, v{mx}', [mx], [my]))
        ops.append(lambda: V(f'v_mul_f32 v{s_}, v{D}, v{W}', [D, W], [s_]))
        ops.append(lambda: V(f'v_fmac_f32 v{s_}, v{D+1}, v{W+1}', [s_, D+1, W+1], [s_]))
        if l < 4:
            ops.append(lambda: V(f'v_permlane32_swap_b32 v{mx}, v{my}', [mx, my], [mx, my], permlane=True))
        ops.append(lambda: V(f'v_fmac_f32 v{s_}, v{D+2}, v{W+2}', [s_, D+2, W+2], [s_]))
        if l < 4:
            ops.append(lambda: V(f'v_max_f32 v{mx}, v{mx}, v{my}', [mx, my], [mx]))
            ops.append(lambda: V(f'v_frexp_exp_i32_f32 v{mx}, v{mx}', [mx], [mx]))
            ops.append(lambda: V(f'v_sub_u32 v{V_SH}, 8, v{mx}', [mx], [V_SH]))
        for r in range(3, 13):
            ops.append(lambda r=r: V(f'v_fmac_f32 v{s_}, v{D+r}, v{W+r}', [s_, D+r, W+r], [s_]))
        if l < 4:
            for r in range(13):
                ops.append(lambda r=r: V(f'v_ldexp_f32 v{D+r}, v{D+r}, v{V_SH}', [D+r, V_SH], [D+r]))
            for q in range(7):
                hi = D + 2*q + 1 if q < 6 else D + 12
                ops.append(lambda q=q, hi=hi: V(f'v_cvt_pk_f16_f32 v{XQ+q}, v{D+2*q}, v{hi}', [D+2*q, hi], [XQ+q]))
        ops.append(lambda: V(f'v_ldexp_f32 v{s_}, v{s_}, v{V_E}', [s_, V_E], [s_]))
        ops.append(lambda: V(f'v_add_f32 v{V_ACC}, v{V_ACC}, v{s_}', [V_ACC, s_], [V_ACC]))
        if l < 4:
            ops.append(lambda: V(f'v_sub_u32 v{V_E}, v{V_E}, v{V_SH}', [V_E, V_SH], [V_E]))
            ops.append(lambda: V(f'v_add_u32 v{V_E}, v{V_E}, v{V_EX}', [V_E, V_EX], [V_E]))
        if l == 0:
            ops.append(lambda: V(f'v_mov_b32 v{ZL+1}, 0', [], [ZL+1]))
            ops.append(lambda: V(f'v_mov_b32 v{ZL+2}, 0', [], [ZL+2]))
        return ops
    NK = [23, 43, 43, 43, 23]
    DT = 132
    ISLOT = [None, 0, 1, 2, 3]
    def a_read(l, k):
        b = AB[k % NAB]
        if l in (0, 4): ad = V_AADDR0; off = 16 * k
        else:
            sl = ISLOT[l]; ad = V_AADDR[sl >> 1]; off = IMG * (sl & 1) + 16 * k
        a.ds(f'ds_read_b128 {vr(b,4)}, v{ad} offset:{off}', [ad], R(b, 4))
    PAIRS0 = [(u, v) for u in range(13) for v in range(u, 13)]
    def zbuf(l, k):
        if k == NK[l] - 1: return ZL
        return ZB[k % 3]
    def z_ops(l, k):
        ops = []
        zb = zbuf(l, k)
        for e in range(4):
            q = 4 * k + e
            if l in (0, 4):
                if q >= 91: break
                i, v = PAIRS0[q]; src = (QH if i == v else XQ) + (i >> 1)
            else:
                if q >= 169: break
                i, v = divmod(q, 13); src = XQ + (i >> 1)
            o = i & 1
            ops.append(lambda zb=zb, e=e, src=src, v=v, o=o: V(f'v_pk_mul_f16 v{zb+e}, v{src}, v{P16+v} op_sel:[{o},0] op_sel_hi:[{o},1]', [src, P16+v], [zb+e]))
        return ops
    def pwrd(l):
        lst = {3: ((EW, 128 * 3),), 4: ((PW, 128 * 4),)}.get(l, ((PW, POOLW - EWT + 128 * l), (EW, 128 * l)))
        for base, off in lst:
            for k in range(3):
                a.ds(f'ds_read_b128 {vr(base+4*k,4)}, v{V_PWADDR} offset:{off+16*k}', [V_PWADDR], R(base+4*k, 4))
            a.ds(f'ds_read_b32 v{base+12}, v{V_PWADDR} offset:{off+48}', [V_PWADDR], [base+12])

    OX = 96
    V(f'v_bfe_u32 v{t[0]}, v{V_LANE}, 4, 1', [V_LANE], [t[0]])
    V(f'v_mul_u32_u24 v{t[0]}, 104, v{t[0]}', [t[0]], [t[0]])
    V(f'v_and_b32 v{t[1]}, 12, v{V_LANE}', [V_LANE], [t[1]])
    V(f'v_add_u32 v{t[0]}, v{t[0]}, v{t[1]}', [t[0], t[1]], [t[0]])
    S(f's_mul_i32 s{S_T0}, s{S_WAVE}, 208'); S(f's_add_u32 s{S_T0}, s{S_T0}, {IDXB}')
    V(f'v_add_u32 v{t[8]}, s{S_T0}, v{t[0]}', [t[0]], [t[8]])
    V(f'v_and_b32 v{t[6]}, 3, v{V_LANE}', [V_LANE], [t[6]])
    V(f'v_lshlrev_b32 v{t[6]}, 3, v{t[6]}', [t[6]], [t[6]])
    V(f'v_add_u32 v{t[6]}, {TAB}, v{t[6]}', [t[6]], [t[6]])
    V(f'v_lshrrev_b32 v{t[7]}, 4, v{V_LANE}', [V_LANE], [t[7]])
    V(f'v_lshlrev_b32 v{t[7]}, 3, v{t[7]}', [t[7]], [t[7]])
    V(f'v_add_u32 v{t[7]}, {TAB}, v{t[7]}', [t[7]], [t[7]])
    V(f'v_and_b32 v{t[9]}, 15, v{V_LANE}', [V_LANE], [t[9]])
    V(f'v_mul_u32_u24 v{t[9]}, 104, v{t[9]}', [t[9]], [t[9]])
    stamp('tab')
    for q in range(7): a.ds(f'ds_read_b32 v{OX+q}, v{t[8]} offset:{16*q}', [t[8]], [OX+q])
    isB = f's_cmp_{"ge" if DG else "lt"}_u32 s{S_WAVE}, 4'
    isA = f's_cmp_{"lt" if DG else "ge"}_u32 s{S_WAVE}, 4'
    S(isA)
    a.cond_begin('s_cbranch_scc1 L_noix', 'L_noix')
    a.raw('s_setprio 3')
    S(f's_and_b32 s{S_T0}, s{S_WAVE}, 3'); S(f's_mul_i32 s{S_T0}, s{S_T0}, 1664'); S(f's_add_u32 s{S_T0}, s{S_T0}, {IDXB}')
    S(f's_add_u32 s{S_T2}, s{S_T0}, 104'); S(f's_lshl_b32 s{S_KO}, s{S_ROT}, 3'); S(f's_add_u32 s{S_KO}, s{S_KO}, s{S_T0}')
    for i in range(13):
        tt = t[2 + (i % 4)]
        V(f'v_add_u32 v{tt}, s{S_KO}, v{t[9]}', [t[9]], [tt])
        a.ds(f'ds_read_b64 {vr(IXR+2*i,2)}, v{tt}', [tt], R(IXR+2*i, 2))
        if i < 12:
            S(f's_add_u32 s{S_KO}, s{S_KO}, 8'); S(f's_cmp_eq_u32 s{S_KO}, s{S_T2}'); S(f's_cselect_b32 s{S_KO}, s{S_T0}, s{S_KO}')
    BT = 104
    for q in range(7):
        a.ds(f'ds_read_b64 {vr(BT+2*q,2)}, v{V_BWADDR} offset:{32*q}', [V_BWADDR], R(BT+2*q, 2))
    a.cond_end()
    for q in range(7):
        V(f'v_min_u32 v{OX+q}, 0x3e7, v{OX+q}', [OX+q], [OX+q])
        V(f'v_lshl_add_u32 v{OX+q}, v{OX+q}, 5, v{t[6]}', [OX+q, t[6]], [OX+q])
        a.ds(f'ds_read_b64_tr_b16 {vr(PBT+2*q,2)}, v{OX+q}', [OX+q], R(PBT+2*q, 2))
    for v in range(13): a.ds(f'ds_write_b32 v{V_TRADDR}, v{PBT+v} offset:{128*v}', [V_TRADDR, PBT+v])
    a.wait_lds_all()
    stamp('x0')
    S(isB)
    a.raw('s_cbranch_scc1 L_grpB', kind='branch')
    release(3)
    S(f's_cmp_lt_u32 s{S_PID}, {NP2}'); a.raw('s_cbranch_scc1 L_x0prep', kind='branch')
    S(f's_cmp_ge_u32 s{S_PID}, {NPT}'); a.raw('s_cbranch_scc1 L_x0prep', kind='branch')
    p = [84 + i for i in range(16)]
    TD = 100; F1 = 116; F2 = 124; F3 = 132; TF = 140; TI = S_SET + 2
    S(f's_sub_u32 s{TI}, s{S_PID}, {NP2}'); S(f's_lshl_b32 s{TI}, s{TI}, 2'); S(f's_and_b32 s{S_T4}, s{S_WAVE}, 3'); S(f's_add_u32 s{TI}, s{TI}, s{S_T4}')
    S(f's_mul_i32 s{S_T3}, s{S_T4}, 1664'); S(f's_add_u32 s{S_T3}, s{S_T3}, {SCR + 3328}')
    V(f'v_lshrrev_b32 v{p[0]}, 2, v{V_LANE}', [V_LANE], [p[0]])
    V(f'v_and_b32 v{p[1]}, 3, v{V_LANE}', [V_LANE], [p[1]])
    V(f'v_mul_u32_u24 v{p[2]}, 0x548, v{p[0]}', [p[0]], [p[2]])
    V(f'v_lshl_add_u32 v{p[2]}, v{p[1]}, 4, v{p[2]}', [p[1], p[2]], [p[2]])
    S(f's_min_u32 s{S_T2}, s{TI}, 25'); S(f's_mul_i32 s{S_T2}, s{S_T2}, 52'); S(f's_add_u32 s{S_T2}, s{S_T2}, {4*35152}')
    S(f's_mov_b32 m0, s{S_T3}', m0=True)
    a.vmem(f'buffer_load_dwordx4 v{p[2]}, s[{S_WC}:{S_WC+3}], s{S_T2} offen lds', [p[2]], [], dma=True)
    S(f's_add_u32 m0, s{S_T3}, 1024', m0=True); S(f's_add_u32 s{S_T2}, s{S_T2}, {16*1352}')
    execn(40)
    a.vmem(f'buffer_load_dwordx4 v{p[2]}, s[{S_WC}:{S_WC+3}], s{S_T2} offen lds', [p[2]], [], dma=True)
    fullexec()
    V(f'v_mov_b32 v{TF+2}, 0', [], [TF+2])
    S(f's_mov_b32 s{S_T0}, 0')
    a.label('L_tpoll')
    S('s_mov_b64 exec, 1')
    a.raw(f'buffer_load_dword v{TF}, v{TF+2}, s[{S_DBGF}:{S_DBGF+3}], 0 offen offset:132 sc1', kind='vmem')
    fullexec()
    S(f's_add_u32 s{S_T0}, s{S_T0}, 1')
    a.raw('s_waitcnt vmcnt(0)', kind='wait'); a.vm = []
    a.raw(f'v_readfirstlane_b32 s{S_T1}, v{TF}', kind='valu')
    a.raw('s_nop 0', kind='nop')
    S(f's_cmp_lg_u32 s{S_T1}, 0')
    a.raw('s_cbranch_scc1 L_tgo', kind='branch')
    a.raw(f's_sleep {PSLEEP}')
    S(f's_cmp_lt_u32 s{S_T0}, 0x40000')
    a.raw('s_cbranch_scc1 L_tpoll', kind='branch')
    a.label('L_tgo')
    S(f's_mul_i32 s{S_T2}, s{S_T4}, 832'); S(f's_add_u32 m0, s{S_T2}, {SCR}', m0=True); S(f's_add_u32 s{S_T2}, s{S_T2}, {WS_V5R}')
    execn(52)
    a.vmem(f'buffer_load_dwordx4 v{V_L16}, s[{S_WS}:{S_WS+3}], s{S_T2} offen sc1 lds', [V_L16], [], dma=True)
    fullexec()
    V(f'v_lshrrev_b32 v{p[3]}, 5, v{V_LANE}', [V_LANE], [p[3]])
    V(f'v_bfe_u32 v{p[4]}, v{V_LANE}, 2, 2', [V_LANE], [p[4]])
    V(f'v_lshl_add_u32 v{p[3]}, v{p[3]}, 3, v{p[4]}', [p[3], p[4]], [p[3]])
    V(f'v_bfe_u32 v{p[4]}, v{V_LANE}, 4, 1', [V_LANE], [p[4]])
    V(f'v_lshlrev_b32 v{p[4]}, 5, v{p[4]}', [p[4]], [p[4]])
    V(f'v_lshl_add_u32 v{p[4]}, v{p[1]}, 3, v{p[4]}', [p[1], p[4]], [p[4]])
    AW = [TF+3, TF+4, TF+5]; AV = [TF+6, TF+7, TF+8]
    V(f'v_lshl_add_u32 v{AW[0]}, v{p[3]}, 6, v{p[4]}', [p[3], p[4]], [AW[0]])
    V(f'v_add_u32 v{AW[0]}, s{S_T3}, v{AW[0]}', [AW[0]], [AW[0]])
    V(f'v_lshl_add_u32 v{AV[0]}, v{p[3]}, 7, v{p[4]}', [p[3], p[4]], [AV[0]])
    V(f'v_add_u32 v{AV[0]}, {SCR}, v{AV[0]}', [AV[0]], [AV[0]])
    V(f'v_mov_b32 v{p[5]}, 0x30000', [], [p[5]])
    for k_, lim in ((1, 10), (2, 6)):
        V(f'v_cmp_gt_u32 vcc, {lim}, v{p[3]}', [p[3]], [], swrites=['vcc'])
        V(f'v_cndmask_b32 v{AW[k_]}, v{p[5]}, v{AW[0]}, vcc', [p[5], AW[0]], [AW[k_]], sreads=['vcc'])
        V(f'v_cndmask_b32 v{AV[k_]}, v{p[5]}, v{AV[0]}, vcc', [p[5], AV[0]], [AV[k_]], sreads=['vcc'])
    V(f'v_and_b32 v{p[0]}, 31, v{V_LANE}', [V_LANE], [p[0]])
    V(f'v_lshrrev_b32 v{p[1]}, 5, v{V_LANE}', [V_LANE], [p[1]])
    S(f's_min_u32 s{S_C}, s{TI}, 25')
    sym_addr(p, S_C, WS_IMGT)
    S(f's_mov_b32 s{TI+1}, s{S_T0}'); S(f's_mov_b32 s{TI+2}, s{S_T1}')
    a.wait_vm_all()
    V(f'v_mov_b32 v{TF}, 1', [], [TF])
    execn(1)
    a.ds(f'ds_add_u32 v{V_SYNC}, v{TF} offset:16', [V_SYNC, TF])
    fullexec()
    for ks in range(2):
        for tt in range(2):
            ad = AW[0] if ks == 0 else AW[1 + tt]
            a.ds(f'ds_read_b64_tr_b16 {vr(F1+4*ks+2*tt,2)}, v{ad} offset:{(16*ks+4*tt)*64}', [ad], R(F1+4*ks+2*tt, 2))
    rdy_check(4, 16)
    for F, lo in ((F2, 0), (F3, 64)):
        for ks in range(2):
            for tt in range(2):
                ad = AV[0] if ks == 0 else AV[1 + tt]
                a.ds(f'ds_read_b64_tr_b16 {vr(F+4*ks+2*tt,2)}, v{ad} offset:{(16*ks+4*tt)*128+lo}', [ad], R(F+4*ks+2*tt, 2))
    first = True
    for F in (F2, F3):
        for ks in range(2):
            a.mfma('v_mfma_f32_32x32x16_bf16', TD, F1+4*ks, F+4*ks, None if first else TD, 8, 16); first = False
            a.mfma('v_mfma_f32_32x32x16_bf16', TD, F+4*ks, F1+4*ks, TD, 8, 16)
    S(f's_mov_b32 s{S_T0}, s{TI+1}'); S(f's_mov_b32 s{S_T1}, s{TI+2}')
    sym_out(p, TD, F1, F2, 4)
    a.raw('s_waitcnt vmcnt(0)', kind='wait'); a.vm = []
    a.raw(f'v_mov_b32 v{VT1}, 1', kind='valu')
    a.raw(f'ds_add_rtn_u32 v{VT2}, v{V_SYNC}, v{VT1} offset:20', kind='ds')
    a.raw('s_waitcnt lgkmcnt(0)', kind='wait'); a.lds = []
    a.raw(f'v_readfirstlane_b32 s{S_T0}, v{VT2}', kind='valu')
    a.raw('s_nop 0', kind='nop')
    S(f's_cmp_lg_u32 s{S_T0}, 3')
    a.raw('s_cbranch_scc1 L_tdone', kind='branch')
    a.raw(f'v_mov_b32 v{VT2}, s{S_SET}', kind='valu')
    a.raw(f'buffer_atomic_add v{VT1}, v{VT2}, s[{S_DBGF}:{S_DBGF+3}], 0 offen offset:80 sc0 sc1', kind='vmem')
    a.raw('s_waitcnt vmcnt(0)', kind='wait')
    a.raw(f'v_readfirstlane_b32 s{S_T2}, v{VT1}', kind='valu')
    a.raw(f'v_mov_b32 v{VT2}, 0', kind='valu')
    a.raw(f'v_mov_b32 v{VT1}, 1', kind='valu')
    S(f's_cmp_lg_u32 s{S_T2}, {NPT - NP2 - 1}')
    a.raw('s_cbranch_scc1 L_tdone', kind='branch')
    a.raw(f'buffer_store_dword v{VT1}, v{VT2}, s[{S_DBGF}:{S_DBGF+3}], 0 offen offset:152 sc1', kind='vmem')
    a.label('L_tdone')
    fullexec()
    a.nop(4)
    a.raw('s_branch L_x0prep', kind='branch')
    a.label('L_grpB')
    for f in range(26):
        V(f'v_lshl_add_u32 v{IXR+f}, v{IXR+f}, 5, v{t[7]}', [IXR+f, t[7]], [IXR+f])
    for q in range(7):
        V(f'v_lshlrev_b32 v{ACC+4*q}, 16, v{BT+2*q}', [BT+2*q], [ACC+4*q])
        V(f'v_and_b32 v{ACC+4*q+1}, 0xffff0000, v{BT+2*q}', [BT+2*q], [ACC+4*q+1])
        V(f'v_lshlrev_b32 v{ACC+4*q+2}, 16, v{BT+2*q+1}', [BT+2*q+1], [ACC+4*q+2])
        V(f'v_and_b32 v{ACC+4*q+3}, 0xffff0000, v{BT+2*q+1}', [BT+2*q+1], [ACC+4*q+3])
    a.wait_lds_all()
    def dnn_loop(xt):
        CHK = {0: 3, 2: 5, 4: 7, 6: 9, 8: 11, 10: 13, 12: 14}
        qs = list(range(0 if xt else 1, 7))
        cnt_check(CHK[0]); dnn_bread(0)
        for q in qs: dnn_aread(0, q)
        for i in range(13):
            a.comment(f'======== DNN step {i} xt={xt}')
            if i + 1 < 13:
                if (i + 1) in CHK: cnt_check(CHK[i + 1])
                dnn_bread(i + 1)
            for q in qs:
                dnn_mf(i, q)
                if i + 1 < 13: dnn_aread(i + 1, q)
            if i in (2, 7, 12): release({2: 1, 7: 2, 12: 3}[i])
        if EPRIO is not None: a.raw(f's_setprio {EPRIO}')
        dnn_epilogue(xt)
        a.wait_lds_all(); a.nop(8)
    S(f's_cmp_ge_u32 s{S_Q}, 2')
    a.raw('s_cbranch_scc1 L_dnn0', kind='branch')
    dnn_loop(1)
    a.raw('s_branch L_dnnend', kind='branch')
    a.label('L_dnn0')
    dnn_loop(0)
    a.label('L_dnnend')
    for v in range(13): a.ds(f'ds_read_b32 v{PBT+v}, v{V_TRADDR} offset:{128*v}', [V_TRADDR], [PBT+v])
    a.wait_lds_all()
    a.label('L_x0prep')
    for o in x0_ops(): o()
    for q in range(7):
        V(f'v_pk_mul_f16 v{QH+q}, v{XQ+q}, s{S_HALF}', [XQ+q], [QH+q])
    addr_setup()
    V(f'v_lshrrev_b32 v{t[1]}, 5, v{V_LANE}', [V_LANE], [t[1]])
    V(f'v_lshlrev_b32 v{t[1]}, 6, v{t[1]}', [t[1]], [t[1]])
    V(f'v_add_u32 v{V_PWADDR}, {EWT}, v{t[1]}', [t[1]], [V_PWADDR])
    V(f'v_mov_b32 v{ZL+3}, 0', [], [ZL+3])
    stamp('dnn')
    if REP:
        a.wait_lds_all(); a.raw('s_memtime s[96:97]'); a.raw('s_memrealtime s[98:99]'); a.raw('s_waitcnt lgkmcnt(0)', kind='wait')
    S1 = DB; S2 = DB + 1
    for l in range(5):
        a.comment(f'======== layer {l}')
        stamp(f'L{l}')
        rdy_check({0: 1, 1: 2, 2: 3, 3: 4, 4: 6}[l], 8)
        for k in range(PFD): a_read(l, k)
        fq = []
        if l == 3:
            rdy_check(5, 8)
            u5 = u5_ops(); u5[0]()
            fq = u5[1:]
        if l == 4:
            V(f'v_mov_b32 v{t[0]}, 0x05040100', [], [t[0]])
            V(f'v_mov_b32 v{t[1]}, 0x07060302', [], [t[1]])
            V(f'v_cndmask_b32 v{t[0]}, v{t[0]}, v{t[1]}, s[{S_HI}:{S_HI+1}]', [t[0], t[1]], [t[0]])
            for q in range(7):
                V(f'v_perm_b32 v{XQ+q}, v{P16+2*q+1}, v{P16+2*q}, v{t[0]}', [P16+2*q+1, P16+2*q, t[0]], [XQ+q])
            for r in range(13): fq.append(lambda r=r: V(f'v_ldexp_f32 v{D+r}, v{D+r}, v{EW+r}', [D+r, EW+r], [D+r]))
            fq.append(lambda: V(f'v_mul_f32 v{S1}, v{D}, v{G}', [D, G], [S1]))
            for r in range(1, 13): fq.append(lambda r=r: V(f'v_fmac_f32 v{S1}, v{D+r}, v{G+r}', [S1, D+r, G+r], [S1]))
        for o in z_ops(l, 0): o()
        for o in z_ops(l, 1): o()
        if PRIO and not BPRIO and l < 4: a.raw('s_setprio 1')
        DD = DT if l == 4 else D
        for k in range(NK[l]):
            if k == NK[l] - 8: pwrd(l)
            zo = z_ops(l, k + 2) if k + 2 < NK[l] else []
            if k % 2 == 0 and k + 1 < NK[l]: a._wait_regs(R(AB[(k + 1) % NAB], 4))
            a.mfma('v_mfma_f32_32x32x16_f16', DD, AB[k % NAB], zbuf(l, k), DD if k > 0 else None, 8, 16)
            if k + PFD < NK[l]: a_read(l, k + PFD)
            for o in zo: o()
            if PRIO and not BPRIO and k == 2: a.raw('s_setprio 2')
            if l == 4:
                for _ in range(2 if k >= 18 or k % 4 == 0 else 1):
                    if fq and k >= 1: fq.pop(0)()
            elif fq and k >= 4: fq.pop(0)()
        assert not fq
        if l == 0: release(4)
        if l < 3:
            if PRIO and not BPRIO: a.raw('s_setprio 0')
            for o in boundary_ops(l): o()
    stamp('fin')
    rdy_check(7, 8)
    V(f'v_bfe_u32 v{t[5]}, v{V_LANE}, 4, 1', [V_LANE], [t[5]])
    V(f'v_and_b32 v{t[6]}, 15, v{V_LANE}', [V_LANE], [t[6]])
    V(f'v_lshl_add_u32 v{t[5]}, v{t[6]}, 4, v{t[5]}', [t[5], t[6]], [t[5]])
    V(f'v_lshlrev_b32 v{t[5]}, 2, v{t[5]}', [t[5]], [t[5]])
    S(f's_lshl_b32 s{S_T0}, s{S_WAVE}, 3'); S(f's_add_u32 s{S_T0}, s{S_T0}, {PD}')
    V(f'v_add_u32 v{t[5]}, s{S_T0}, v{t[5]}', [t[5]], [t[5]])
    V(f'v_and_b32 v{t[6]}, 44, v{V_LANE}', [V_LANE], [t[6]])
    V(f'v_cmp_eq_u32 vcc, 0, v{t[6]}', [t[6]], [], swrites=['vcc'])
    V(f'v_mov_b32 v{t[6]}, 0x30000', [], [t[6]])
    V(f'v_cndmask_b32 v{t[5]}, v{t[6]}, v{t[5]}, vcc', [t[5], t[6]], [t[5]], sreads=['vcc'])
    a.ds(f'ds_read_b32 v{t[6]}, v{t[5]}', [t[5]], [t[6]])
    for r in range(13): V(f'v_lshl_add_u32 v{PW+r}, v{V_EX}, 1, v{PW+r}', [V_EX, PW+r], [PW+r])
    for r in range(13): V(f'v_ldexp_f32 v{DT+r}, v{DT+r}, v{PW+r}', [DT+r, PW+r], [DT+r])
    for r in range(13): V(f'v_fmac_f32 v{S1}, v{D+r}, v{DT+r}', [S1, D+r, DT+r], [S1])
    V(f'v_ldexp_f32 v{S1}, v{S1}, v{V_E}', [S1, V_E], [S1])
    V(f'v_add_f32 v{V_ACC}, v{V_ACC}, v{S1}', [V_ACC, S1], [V_ACC])
    A_ = V_ACC
    V(f'v_add_f32 v{A_}, v{A_}, v{t[6]}', [A_, t[6]], [A_])
    for d in (8, 4, 2, 1):
        V(f'v_add_f32_dpp v{A_}, v{A_}, v{A_} row_ror:{d} row_mask:0xf bank_mask:0xf', [A_], [A_], dpp=True)
    V(f'v_mov_b32 v{t[5]}, v{A_}', [A_], [t[5]])
    V(f'v_permlane32_swap_b32 v{A_}, v{t[5]}', [A_, t[5]], [A_, t[5]], permlane=True)
    V(f'v_add_f32 v{A_}, v{A_}, v{t[5]}', [A_, t[5]], [A_])
    V(f'v_cvt_pk_bf16_f32 v{A_}, v{A_}, v{A_}', [A_], [A_])
    V(f'v_lshrrev_b32 v{t[5]}, 3, v{V_LANE}', [V_LANE], [t[5]])
    S(f's_lshl_b32 s{S_T0}, s2, 5'); S(f's_lshl_b32 s{S_T1}, s{S_WAVE}, 2'); S(f's_add_u32 s{S_T0}, s{S_T0}, s{S_T1}')
    S('s_mov_b64 exec, 0x10001')
    a.vmem(f'buffer_store_short v{A_}, v{t[5]}, s[{S_OUT}:{S_OUT+3}], s{S_T0} offen', [A_, t[5]], [])
    if REP:
        a.raw('s_memtime s[100:101]'); a.raw('s_memrealtime s[4:5]'); a.raw('s_waitcnt lgkmcnt(0)', kind='wait')
        S(f's_cmp_lg_u32 s{S_WAVE}, 4'); a.raw('s_cbranch_scc1 L_norep', kind='branch')
        S('s_and_b32 s6, s2, 0xfc'); S('s_cmp_lg_u32 s6, 100'); a.raw('s_cbranch_scc1 L_norep', kind='branch')
        S('s_sub_u32 s96, s96, s92'); S('s_sub_u32 s98, s98, s94'); S('s_sub_u32 s100, s100, s92'); S('s_sub_u32 s4, s4, s94')
        V('v_mov_b32 v16, s96', [], [16]); V('v_mov_b32 v17, s98', [], [17]); V('v_mov_b32 v18, s100', [], [18]); V('v_mov_b32 v19, s4', [], [19])
        S('s_and_b32 s6, s2, 3'); S('s_lshl_b32 s6, s6, 4'); V('v_mov_b32 v20, s6', [], [20])
        S('s_mov_b64 exec, 1')
        a.vmem(f'buffer_store_dwordx4 v[16:19], v20, s[{S_DBGF}:{S_DBGF+3}], 0 offen', [16,17,18,19,20], [])
        a.label('L_norep')
    dbg_out()
    a.raw('s_endpgm')

    a.label('L_loader')
    a.lds = []; a.vm = []; a.valu_w = {}; a.mfma_w = {}; a.mfma_c = {}; a.trans_w = {}; a.store_src = {}; a.opsel_w = {}
    stamp_n[0] = 1
    names_c = a.stamp_names; a.stamp_names = []
    LF = 18; LFA = 19; LSY = 20; LDA = 21; LDV = 22; LT = 23; WO = 32; PF = 40; LN = 24; LG = 64
    if TOUCH:
        V(f'v_mov_b32 v{t[0]}, 0', [], [t[0]])
        S('s_mov_b64 exec, 1')
        S(f's_mov_b32 s{S_T0}, {WS_INB - 256}')
        a.vmem(f'buffer_load_dword v{PF}, v{t[0]}, s[{S_WS}:{S_WS+3}], s{S_T0} offen', [t[0]], [PF])
        if TOUCH == 1: a.vmem(f'buffer_load_dword v{PF+1}, v{t[0]}, s[{S_DBGF}:{S_DBGF+3}], 0 offen sc1', [t[0]], [PF+1])
        a.vmem(f'buffer_load_dword v{PF+2}, v{t[0]}, s[{S_OUT}:{S_OUT+3}], 0 offen', [t[0]], [PF+2])
        a.vmem(f'buffer_load_dword v{PF+3}, v{t[0]}, s[{S_W1}:{S_W1+3}], 0 offen', [t[0]], [PF+3])
        a.vmem(f'buffer_load_dword v{PF+4}, v{t[0]}, s[{S_TAB}:{S_TAB+3}], 0 offen', [t[0]], [PF+4])
        a.vmem(f'buffer_load_dword v{PF+5}, v{t[0]}, s[{S_B1}:{S_B1+3}], 0 offen', [t[0]], [PF+5])
        a.vmem(f'buffer_load_dword v{PF+6}, v{t[0]}, s[{S_W2}:{S_W2+3}], 0 offen', [t[0]], [PF+6])
        fullexec()
    S(f's_movk_i32 s{S_T0}, 4682')
    for k in range(7):
        V(f'v_add_u32 v{t[0]}, {64*k}, v{V_LANE}', [V_LANE], [t[0]])
        V(f'v_mul_u32_u24 v{t[1]}, s{S_T0}, v{t[0]}', [t[0]], [t[1]])
        V(f'v_lshrrev_b32 v{t[1]}, 16, v{t[1]}', [t[1]], [t[1]])
        V(f'v_mul_u32_u24 v{t[2]}, {832 - 224}, v{t[1]}', [t[1]], [t[2]])
        V(f'v_lshl_add_u32 v{WO+k}, v{t[0]}, 4, v{t[2]}', [t[0], t[2]], [WO+k])
    V(f'v_lshlrev_b32 v{LFA}, 2, v{V_LANE}', [V_LANE], [LFA])
    V(f'v_mov_b32 v{LSY}, {SYNC}', [], [LSY])
    V(f'v_add_u32 v{LDA}, {SYNC}, v{LFA}', [LFA], [LDA])
    V(f'v_mov_b32 v{LT}, 0', [], [LT])
    execn(16)
    a.ds(f'ds_write_b32 v{LDA}, v{LT}', [LDA, LT])
    fullexec()
    V(f'v_and_b32 v{LDA}, 28, v{LFA}', [LFA], [LDA])
    V(f'v_add_u32 v{LDA}, {SYNC + 32}, v{LDA}', [LDA], [LDA])
    S(f's_mul_i32 s{S_KO}, s{S_ROT}, 26624'); S(f's_lshl_b32 s{S_T0}, s{S_T0L}, 5'); S(f's_add_u32 s{S_KO}, s{S_KO}, s{S_T0}')
    S(f's_add_u32 s{S_T3}, s{S_T0}, {13*26624}')
    def l_w1(i):
        for k in range(7):
            S(f's_mov_b32 m0, {CADDR[i] + 1024*k}', m0=True)
            a.vmem(f'buffer_load_dwordx4 v{WO+k}, s[{S_W1}:{S_W1+3}], s{S_KO} offen lds', [WO+k], [], tag=('c', i), dma=True)
        S(f's_add_u32 s{S_KO}, s{S_KO}, 26624'); S(f's_cmp_eq_u32 s{S_KO}, s{S_T3}'); S(f's_cselect_b32 s{S_T1}, {13*26624}, 0'); S(f's_sub_u32 s{S_KO}, s{S_KO}, s{S_T1}')
    def l_lin(tag, srd, src, dst, nbytes, sc=''):
        n = (nbytes + 1023) // 1024
        for pc in range(n):
            if pc % 4 == 0:
                S(f's_mov_b32 m0, {dst + 1024*pc}', m0=True)
                S(f's_mov_b32 s{S_T2}, {src + 1024*pc}')
            lanes = min(64, (nbytes - 1024*pc) // 16)
            if lanes < 64: execn(lanes)
            a.vmem(f'buffer_load_dwordx4 v{V_L16}, s[{srd}:{srd+3}], s{S_T2} offen offset:{1024*(pc%4)} {sc} lds', [V_L16], [], tag=tag, dma=True)
            if lanes < 64: fullexec()
    def publish(n, off):
        a.raw(f'v_mov_b32 v{LT}, {n}', kind='valu')
        a.raw(f'ds_write_b32 v{LSY}, v{LT} offset:{off}', kind='ds')
    def l_flag(lo, hi):
        mk = ((1 << hi) - 1) & ~((1 << lo) - 1)
        S(f's_mov_b64 exec, 0x{mk:x}')
        a.vmem(f'buffer_load_dword v{LF}, v{LFA}, s[{S_DBGF}:{S_DBGF+3}], 0 offen offset:128 sc1', [LFA], [LF])
        fullexec()
    def l_poll(lo, hi, lab, pre=None):
        mk = ((1 << hi) - 1) & ~((1 << lo) - 1)
        a._wait_regs([LF])
        S(f's_mov_b64 exec, 0x{mk:x}')
        S(f's_mov_b32 s{S_T0}, 0')
        a.label(f'L_poll{lab}')
        a.raw(f'v_cmp_eq_u32 vcc, 0, v{LF}', kind='valu')
        a.raw(f's_cbranch_vccz L_polldone{lab}', kind='branch')
        a.raw(f's_sleep {PSLEEP}')
        a.raw(f'buffer_load_dword v{LF}, v{LFA}, s[{S_DBGF}:{S_DBGF+3}], 0 offen offset:128 sc1', kind='vmem')
        S(f's_add_u32 s{S_T0}, s{S_T0}, 1')
        S(f's_cmp_lt_u32 s{S_T0}, 0x40000')
        a.raw('s_waitcnt vmcnt(0)', kind='wait')
        if pre: publish(pre[0], pre[1])
        a.raw(f's_cbranch_scc1 L_poll{lab}', kind='branch')
        a.label(f'L_polldone{lab}')
        fullexec()
    def l_wait_lds(addr, off, stage, lab, pre=None):
        a.raw(f's_mov_b32 s{S_T1}, 0x100000', kind='salu')
        a.label(f'L_dw{lab}')
        a.raw(f'ds_read_b32 v{LDV}, v{addr} offset:{off}', kind='ds')
        a.raw(f's_sub_u32 s{S_T1}, s{S_T1}, 1', kind='salu')
        a.raw(f's_cbranch_scc1 L_dn{lab}', kind='branch')
        a.raw('s_waitcnt lgkmcnt(0)', kind='wait')
        a.raw(f'v_cmp_gt_u32 vcc, {stage}, v{LDV}', kind='valu')
        a.raw(f's_cbranch_vccz L_dn{lab}', kind='branch')
        if pre:
            a.raw('s_waitcnt vmcnt(0)', kind='wait')
            publish(pre[0], pre[1])
        a.raw('s_sleep 1')
        a.raw(f's_branch L_dw{lab}', kind='branch')
        a.label(f'L_dn{lab}')
    a.raw('s_waitcnt lgkmcnt(0)', kind='wait')
    for i in range(13):
        l_w1(i)
        if i == LB0: rawbar()
        if i in (9, 11):
            a.wait_vm_tag(('c', i - 8)); publish(i - 6, 0)
    l_flag(2, 6)
    stamp('w1iss')
    for i in (5, 7, 9, 11, 12):
        a.wait_vm_tag(('c', i)); publish(i + 2, 0)
    l_poll(2, 6, 'k'); stamp('polled')
    l_flag(0, 1)
    S(f's_lshr_b32 s{S_T0}, s2, 3'); S(f's_mul_i32 s{S_T0}, s{S_T0}, 608')
    execn(38)
    a.vmem(f'buffer_load_dwordx4 {vr(PF+16,4)}, v{V_L16}, s[{S_WS}:{S_WS+3}], s{S_T0} offen sc1', [V_L16], R(PF+16, 4))
    fullexec()
    l_wait_lds(LDA, 0, 1, 'a')
    l_lin(('i', 0), S_WS, WS_IMG0, I0B, IMG0, 'sc1')
    l_lin(('i', 0), S_WS, WS_EWT, EWT, 128, 'sc1')
    l_poll(0, 1, 'a', pre=(1, 8))
    V(f'v_readlane_b32 s{S_T0}, v{LF}, 0', [LF], [], swrites=[S_T0], readlane=True)
    V(f'v_mov_b32 v{LN}, s{S_T0}', [], [LN], sreads=[S_T0])
    S(f's_lshr_b32 s{S_T0}, s2, 3'); S(f's_mul_i32 s{S_T0}, s{S_T0}, 3360'); S(f's_add_u32 s{S_T0}, s{S_T0}, {WS_IMG[1]}')
    for q in range(4):
        if q == 3: execn(18)
        a.vmem(f'buffer_load_dwordx4 {vr(PF+4*q,4)}, v{V_L16}, s[{S_WS}:{S_WS+3}], s{S_T0} offen offset:{1024*q} sc1', [V_L16], R(PF+4*q, 4))
    fullexec()
    l_lin(('i', 1), S_WS, WS_EWT + 128, EWT + 128, 384, 'sc1')
    l_wait_lds(LDA, 0, 2, 'b', pre=(1, 8))
    l_lin(('i', 1), S_WS, WS_IMG[1], U[0], 16384, 'sc1')
    a.wait_vm_tag(('i', 0)); publish(1, 8)
    l_lin(('i', 1), S_WS, WS_IMG[1] + 16384, U[0] + 16384, IMG - 16384, 'sc1')
    a.wait_vm_tag(('i', 1)); publish(2, 8); stamp('i1')
    l_wait_lds(LDA, 0, 3, 'c'); stamp('dnndone')
    l_lin(('i', 2), S_WS, WS_IMG[2], U[1], IMG, 'sc1')
    l_lin(('i', 3), S_WS, WS_IMG[3], U[2], IMG, 'sc1')
    a.wait_vm_tag(('i', 2)); publish(3, 8)
    a.wait_vm_tag(('i', 3)); publish(4, 8)
    l_wait_lds(LSY, 4, 4, 'd')
    V(f'v_lshlrev_b32 v{t[0]}, 3, v{V_LANE}', [V_LANE], [t[0]])
    V(f'v_add_u32 v{t[0]}, {PDL}, v{t[0]}', [t[0]], [t[0]])
    a.ds(f'ds_read_b64 {vr(LG+4,2)}, v{t[0]}', [t[0]], R(LG+4, 2))
    V(f'v_bfe_u32 v{t[1]}, v{V_LANE}, 3, 2', [V_LANE], [t[1]])
    V(f'v_add_u32 v{t[1]}, s{S_Q}, v{t[1]}', [t[1]], [t[1]])
    V(f'v_and_b32 v{t[1]}, 3, v{t[1]}', [t[1]], [t[1]])
    V(f'v_lshlrev_b32 v{t[1]}, 13, v{t[1]}', [t[1]], [t[1]])
    V(f'v_and_b32 v{t[2]}, 7, v{V_LANE}', [V_LANE], [t[2]])
    V(f'v_lshl_add_u32 v{t[1]}, v{t[2]}, 4, v{t[1]}', [t[2], t[1]], [t[1]])
    S(f's_lshl_b32 s{S_T0}, s{S_CB}, 10'); S(f's_lshl_b32 s{S_T1}, s{S_Q}, 7'); S(f's_add_u32 s{S_T0}, s{S_T0}, s{S_T1}'); S(f's_add_u32 s{S_T0}, s{S_T0}, {WS_INB}')
    V(f'v_mov_b32 v{LG}, v{LG+4}', [LG+4], [LG]); V(f'v_mov_b32 v{LG+1}, v{LN}', [LN], [LG+1])
    V(f'v_mov_b32 v{LG+2}, v{LG+5}', [LG+5], [LG+2]); V(f'v_mov_b32 v{LG+3}, v{LN}', [LN], [LG+3])
    execn(32)
    a.vmem(f'buffer_store_dwordx4 {vr(LG,4)}, v{t[1]}, s[{S_WS}:{S_WS+3}], s{S_T0} offen sc1', [t[1]] + R(LG, 4), [], wide_store=R(LG, 4))
    fullexec()
    l_lin('v5f', S_WS, WS_V5F, V5F, 4096, 'sc1')
    l_flag(6, 7)
    a.wait_vm_tag('v5f'); publish(5, 8)
    l_wait_lds(LDA, 0, 4, 'e')
    l_poll(6, 7, 'b')
    l_lin(('i', 4), S_WS, WS_IMGT, I0B, IMG0, 'sc1')
    l_lin(('i', 4), S_WS, WS_EWT + 512, EWT + 512, 128, 'sc1')
    a.wait_vm_all(); publish(6, 8); stamp('i5')
    S(f's_lshl_b32 s{S_T2}, s2, 10'); S(f's_add_u32 s{S_T2}, s{S_T2}, {WS_INB}')
    S(f's_mov_b32 s{S_T0}, 0')
    execn(32)
    a.label('L_inb')
    a.raw(f'buffer_load_dwordx4 {vr(LG+8,4)}, v{V_L16}, s[{S_WS}:{S_WS+3}], s{S_T2} offen sc1', kind='vmem')
    S(f's_add_u32 s{S_T0}, s{S_T0}, 1')
    a.raw('s_waitcnt vmcnt(0)', kind='wait')
    a.raw(f'v_cmp_ne_u32 vcc, v{LN}, v{LG+9}', kind='valu')
    a.raw(f'v_cmp_ne_u32 s[{S_MT}:{S_MT+1}], v{LN}, v{LG+11}', kind='valu')
    a.raw('s_nop 1', kind='nop')
    a.raw(f's_or_b64 vcc, vcc, s[{S_MT}:{S_MT+1}]', kind='salu')
    a.raw('s_cbranch_vccz L_inbok', kind='branch')
    a.raw(f's_sleep {PSLEEP}')
    S(f's_cmp_lt_u32 s{S_T0}, 0x40000')
    a.raw('s_cbranch_scc1 L_inb', kind='branch')
    a.label('L_inbok')
    V(f'v_mov_b32 v{LG+9}, v{LG+10}', [LG+10], [LG+9])
    V(f'v_lshlrev_b32 v{t[0]}, 3, v{V_LANE}', [V_LANE], [t[0]])
    V(f'v_add_u32 v{t[0]}, {PD}, v{t[0]}', [t[0]], [t[0]])
    a.ds(f'ds_write_b64 v{t[0]}, {vr(LG+8,2)}', [t[0], LG+8, LG+9])
    publish(7, 8)
    dbg_out()
    a.label('L_end')
    a.raw('s_endpgm')
    a.stamp_names = (names_c, a.stamp_names)
    return a

HEADER = open('cdna_kernels/' + NAME + '.s.ref').read().split('; Override launch geometry')[0]
def wrap(a):
    s = HEADER
    s += f'; @launch grid=(256,1,1) block=(576,1,1) lds={LDS_TOTAL}\n'
    s += '.amdgcn_target "amdgcn-amd-amdhsa--gfx950"\n.text\n'
    s += f'.globl {NAME}_kernel\n.p2align 8\n.type {NAME}_kernel,@function\n{NAME}_kernel:\n'
    s += a.text()
    s += f'''.section .rodata,"a"
.p2align 6
.amdhsa_kernel {NAME}_kernel
  .amdhsa_next_free_vgpr {NV}
  .amdhsa_next_free_sgpr 102
  .amdhsa_accum_offset {NV}
  .amdhsa_group_segment_fixed_size 0
  .amdhsa_kernarg_size 88
  .amdhsa_user_sgpr_count 2
  .amdhsa_user_sgpr_kernarg_segment_ptr 1
  .amdhsa_system_sgpr_workgroup_id_x 1
  .amdhsa_float_denorm_mode_32 3
.end_amdhsa_kernel
'''
    return s

if __name__ == '__main__':
    import argparse
    ap = argparse.ArgumentParser()
    ap.add_argument('out', nargs='?', default='cdna_kernels/' + NAME + '.s')
    ap.add_argument('--dbg', type=int, default=0)
    ap.add_argument('--prio', type=int, default=1)
    ap.add_argument('--splitepi', type=int, default=1)
    args = ap.parse_args()
    a = gen(debug=args.dbg, PRIO=args.prio, SPLITEPI=args.splitepi)
    open(args.out, 'w').write(wrap(a))
    print(a.count, 'lines', len(a.lines), a.stamp_names)
```

```python
import sys, struct
sys.path.insert(0, 'gen')
from asmfw import *

NAME = 'standalone__deep_cross_xdeepfm__recsys'
IMG = 35776; IMG0 = 19136
U = [IMG * i for i in range(4)]
CH = 7168
CADDR = [121600 + CH * i for i in range(3)] + [CH * i for i in range(10)]
TAB = 71680; IDXB = 103680; SCR = 110336
I0B = 143104 - IMG0
X16 = 143104
V5F = 156672; EWT = 160768; POOLW = 161408; BW = 162048
PDL = V5F
PD = BW
SYNC = 163712
LDS_TOTAL = 163776
WS_IMG0 = 0
WS_IMG = [None] + [19200 + IMG * i for i in range(4)]
WS_V5F = 19200 + 4 * IMG
WS_EWT = WS_V5F + 4096
WS_IMGT = WS_IMG[4]; WS_V5R = WS_EWT + 1024
WS_INB = 0x40000
WS_SIZE = WS_INB + 256 * 1024
NP0 = 7; NP1 = 24; NP2 = 31; NPT0 = 32; NPT = 39
S_IDX, S_TAB, S_WC, S_WCO, S_W1, S_B1, S_W2, S_BO, S_OUT, S_DBGF, S_WS = [24 + 4 * i for i in range(11)]
S_WAVE = 68; S_T0 = 69; S_T1 = 70; S_T2 = 71; S_T3 = 72; S_T4 = 73
S_HI = 74; S_C = 76; S_K7FFF = 77; S_K8000 = 78; S_Q = 79; S_K2 = 80; S_G = 81; S_HALF = 82
S_ROT = 83; S_MT = 84; S_PID = 86; S_CB = 87; S_XT = 88; S_T0L = 89; S_KO = 90; S_KN = 91; S_SET = 92; S_LAST = 93
SM = [4, 6, 8, 10, 12, 14, 16]
V_LANE = 1
V_T = list(range(2, 12))
V_STAMP = 12; V_E = 13; V_EX = 14; V_ACC = 15
P16 = 16; V_SH = 30; V_L16 = 31
XQ = 32; V_TRADDR = 39; D = 40
ZB = [56, 60, 64]; ZL = 68
AB = [72, 76, 80, 84, 4, 8]; NAB = 6; PFD = 5
PW = 88; EW = 102
V_PWADDR = 101; V_DBADDR = 115
DACC = 116; DA = 132; DB = 148
QH = 152
V_AADDR = [159, 160]; V_AADDR0 = 161; V_DAADDR = 162; V_DBK = 163; V_BWADDR = 164; V_SYNC = 165; V_RDY = 166; V_DONEA = 167
G = DACC; UA = DA
PBT = 68
VT1 = 158; VT2 = 159; VT3 = 160
DA2 = 88; DB2 = 104
NV = 168

import os
PX = int(os.environ.get('PX', '0'))
NL = int(os.environ.get('NL', '5'))
REP = int(os.environ.get('REP', '0'))
PSLEEP = int(os.environ.get('PSLEEP', '6'))
TOUCH = int(os.environ.get('TOUCH', '2'))
XP = os.environ.get('XP', '')
KNOP = int(os.environ.get('KNOP', '0'))
FINSTEP = int(os.environ.get('FINSTEP', '2'))
DG = int(os.environ.get('DG', '1'))
BPRIO = int(os.environ.get('BPRIO', '0'))
EPRIO = os.environ.get('EPRIO')
TABP = int(os.environ.get('TABP', '1'))
SETS = os.environ.get('SETS', '0')
LB0 = int(os.environ.get('LB0', '6'))
LBAR = int(os.environ.get('LBAR', '7'))
def fb(x): return '0x%08x' % struct.unpack('<I', struct.pack('<f', x))[0]

def gen(debug=None, PRIO=1, SPLITEPI=1, LPRE=24):
    a = Asm()
    V = a.valu; S = a.salu
    t = V_T
    stamp_n = [0]
    a.stamp_names = []
    def stamp(name=''):
        if not debug: return
        a.wait_lds_all()
        a.raw('s_memtime s[98:99]')
        a.raw('s_waitcnt lgkmcnt(0)', kind='wait')
        a.valu(f'v_writelane_b32 v{V_STAMP}, s98, {stamp_n[0]}', [], [V_STAMP])
        a.stamp_names.append(name)
        stamp_n[0] += 1
    def execn(n):
        if n <= 32: S(f's_mov_b64 exec, 0x{(1<<n)-1:x}')
        else: S(f's_mov_b32 exec_hi, 0x{(1<<(n-32))-1:x}')
    def fullexec(): S('s_mov_b64 exec, -1')
    def rawbar(): a.raw('s_barrier', kind='barrier')
    def dbg_out():
        if not debug: return
        fullexec()
        stamp('end')
        a.valu(f'v_writelane_b32 v{V_STAMP}, s100, 62', [], [V_STAMP])
        a.raw('s_memrealtime s[98:99]')
        a.raw('s_waitcnt lgkmcnt(0)', kind='wait')
        a.valu(f'v_writelane_b32 v{V_STAMP}, s98, 63', [], [V_STAMP])
        V(f'v_lshlrev_b32 v{t[0]}, 2, v0', [0], [t[0]])
        S(f's_mul_i32 s{S_T0}, s2, 2304'); S(f's_add_u32 s{S_T0}, s{S_T0}, 0x100000')
        a.vmem(f'buffer_store_dword v{V_STAMP}, v{t[0]}, s[{S_WS}:{S_WS+3}], s{S_T0} offen', [V_STAMP, t[0]], [])
    S('s_cmp_ge_u32 s2, 256')
    a.raw('s_cbranch_scc1 L_end', kind='branch')
    if debug:
        a.raw('s_memrealtime s[100:101]')
        stamp('start')
    if REP:
        a.raw('s_memtime s[92:93]'); a.raw('s_memrealtime s[94:95]')
    a.raw('s_load_dwordx16 s[4:19], s[0:1], 0')
    a.raw('s_load_dwordx4 s[20:23], s[0:1], 64')
    a.raw(f's_load_dwordx2 s[{S_WS}:{S_WS+1}], s[0:1], 80')
    V(f'v_and_b32 v{V_LANE}, 63, v0', [0], [V_LANE])
    V(f'v_lshrrev_b32 v{t[0]}, 6, v0', [0], [t[0]])
    V(f'v_readfirstlane_b32 s{S_WAVE}, v{t[0]}', [t[0]], [], swrites=[S_WAVE], readlane=True)
    V(f'v_lshlrev_b32 v{t[1]}, 2, v{V_LANE}', [V_LANE], [t[1]])
    V(f'v_add_u32 v{t[1]}, {SYNC}, v{t[1]}', [t[1]], [t[1]])
    V(f'v_mov_b32 v{t[2]}, 0', [], [t[2]])
    S(f's_cmp_lg_u32 s{S_WAVE}, 0', sreads=[S_WAVE])
    a.raw('s_cbranch_scc1 L_noinit', kind='branch')
    execn(16)
    a.raw(f'ds_write_b32 v{t[1]}, v{t[2]}', kind='ds')
    fullexec()
    a.label('L_noinit')
    S(f's_mov_b32 s{S_K7FFF}, 0x7fff7fff'); S(f's_mov_b32 s{S_K8000}, 0x80008000'); S(f's_mov_b32 s{S_HALF}, 0x38003800')
    S(f's_mov_b32 s{S_HI}, 0'); S(f's_mov_b32 s{S_HI+1}, -1')
    V(f'v_lshlrev_b32 v{V_L16}, 4, v{V_LANE}', [V_LANE], [V_L16])
    S(f's_lshr_b32 s{S_T0}, s2, 3'); S(f's_and_b32 s{S_Q}, s{S_T0}, 3'); S(f's_lshr_b32 s{S_T1}, s{S_T0}, 2')
    S(f's_lshr_b32 s{S_ROT}, s{S_T1}, 1'); S(f's_add_u32 s{S_ROT}, s{S_ROT}, s{S_T1}')
    S(f's_andn2_b32 s{S_CB}, s2, 0x18')
    S(f's_mov_b32 s{S_SET}, 0'); S(f's_and_b32 s{S_T1}, s2, 7'); S(f's_lshl_b32 s{S_PID}, s{S_T1}, 5'); S(f's_add_u32 s{S_PID}, s{S_PID}, s{S_T0}')
    S(f's_cmp_{"ge" if DG else "lt"}_u32 s{S_WAVE}, 4', sreads=[S_WAVE]); S(f's_cselect_b32 s{S_PID}, 255, s{S_PID}')
    S(f's_cmp_eq_u32 s{S_WAVE}, 8'); S(f's_cselect_b32 s{S_PID}, 255, s{S_PID}')
    S(f's_and_b32 s{S_G}, s{S_WAVE}, 3'); S(f's_lshl_b32 s{S_T1}, s{S_PID}, 2'); S(f's_add_u32 s{S_G}, s{S_G}, s{S_T1}')
    S(f's_min_u32 s{S_T0L}, s{S_Q}, 1'); S(f's_mul_i32 s{S_T1}, s{S_Q}, 6'); S(f's_add_u32 s{S_T0L}, s{S_T0L}, s{S_T1}')
    S(f's_cmp_lt_u32 s{S_WAVE}, 4'); S(f's_cselect_b32 s{S_XT}, 1, 0'); S(f's_cmp_lt_u32 s{S_Q}, 2'); S(f's_cselect_b32 s{S_XT}, s{S_XT}, 0')
    a.raw('s_waitcnt lgkmcnt(0)', kind='wait')
    rawbar()
    sizes = [425984, 32000, 210912, 312, 346112, 832, 832, 2, 8192, 256]
    srds = [S_IDX, S_TAB, S_WC, S_WCO, S_W1, S_B1, S_W2, S_BO, S_OUT, S_DBGF]
    for i in range(10):
        sb, sz = srds[i], sizes[i]
        S(f's_mov_b32 s{sb}, s{4+2*i}'); S(f's_and_b32 s{sb+1}, s{5+2*i}, 0xffff')
        S(f's_mov_b32 s{sb+2}, {sz}'); S(f's_mov_b32 s{sb+3}, 0x00020000')
    S(f's_and_b32 s{S_WS+1}, s{S_WS+1}, 0xffff'); S(f's_mov_b32 s{S_WS+2}, {0x1000000 if debug else WS_SIZE}'); S(f's_mov_b32 s{S_WS+3}, 0x00020000')
    S(f's_cmp_eq_u32 s{S_WAVE}, 8')
    a.raw('s_cbranch_scc1 L_loader', kind='branch')

    def dpp_max(m):
        for d in ('row_shr:1 row_mask:0xf', 'row_shr:2 row_mask:0xf', 'row_shr:4 row_mask:0xf', 'row_shr:8 row_mask:0xf', 'row_bcast:15 row_mask:0xa', 'row_bcast:31 row_mask:0xc'):
            V(f'v_max_u32_dpp v{m}, v{m}, v{m} {d} bank_mask:0xf', [m], [m], dpp=True)
    def rho_salu(sh, st1, st2, clamp=True):
        S(f's_cmp_ge_u32 s{sh}, 13'); S(f's_cselect_b32 s{st1}, 1, 0')
        S(f's_mul_i32 s{st2}, s{st1}, 13'); S(f's_sub_u32 s{sh}, s{sh}, s{st2}')
        S(f's_lshl_b32 s{st2}, s{st1}, 2')
        S(f's_lshl_b32 s{st1}, s{st1}, 4'); S(f's_add_u32 s{st1}, s{st1}, s{sh}')
        S(f's_add_u32 s{st2}, s{st2}, s{sh}'); S(f's_and_b32 s{sh}, s{sh}, 12'); S(f's_add_u32 s{sh}, s{sh}, s{st2}')
        if clamp: S(f's_add_u32 s{sh}, s{sh}, 1'); S(f's_cmp_eq_u32 s{sh}, 29'); S(f's_cselect_b32 s{sh}, 0, s{sh}')

    V(f'v_mov_b32 v{V_SYNC}, {SYNC}', [], [V_SYNC])
    S(f's_lshl_b32 s{S_T0}, s{S_WAVE}, 12'); S(f's_add_u32 m0, s{S_T0}, {TAB}', m0=True)
    for k in range(4):
        if k == 3:
            S(f's_cmp_eq_u32 s{S_WAVE}, 7'); S(f's_cselect_b64 exec, 0xffff, -1')
        a.vmem(f'buffer_load_dwordx4 v{V_L16}, s[{S_TAB}:{S_TAB+3}], s{S_T0} offen offset:{1024*k} lds', [V_L16], [], dma=True)
    S(f's_lshr_b32 s{S_T0}, s{S_WAVE}, 1'); S(f's_add_u32 s{S_T0}, s{S_T0}, s{S_Q}'); S(f's_and_b32 s{S_T0}, s{S_T0}, 3')
    S(f's_lshl_b32 s{S_T0}, s{S_T0}, 3'); S(f's_or_b32 s{S_T0}, s{S_T0}, s{S_CB}'); S(f's_lshl_b32 s{S_T0}, s{S_T0}, 1')
    S(f's_and_b32 s{S_T1}, s{S_WAVE}, 1'); S(f's_add_u32 s{S_T0}, s{S_T0}, s{S_T1}'); S(f's_mul_i32 s{S_T0}, s{S_T0}, 832')
    S(f's_mul_i32 s{S_T1}, s{S_WAVE}, 832'); S(f's_add_u32 m0, s{S_T1}, {IDXB}', m0=True)
    S('s_mov_b32 exec_lo, -1'); S('s_mov_b32 exec_hi, 0xfffff')
    a.vmem(f'buffer_load_dwordx4 v{V_L16}, s[{S_IDX}:{S_IDX+3}], s{S_T0} offen lds', [V_L16], [], dma=True)
    S(f's_cmp_lg_u32 s{S_WAVE}, 5'); a.cond_begin('s_cbranch_scc1 L_nb1', 'L_nb1')
    S(f's_mov_b32 m0, {BW}', m0=True)
    a.vmem(f'buffer_load_dwordx4 v{V_L16}, s[{S_B1}:{S_B1+3}], 0 offen lds', [V_L16], [], dma=True)
    S(f's_mov_b32 m0, {BW + 832}', m0=True)
    a.vmem(f'buffer_load_dwordx4 v{V_L16}, s[{S_W2}:{S_W2+3}], 0 offen lds', [V_L16], [], dma=True)
    a.cond_end()
    fullexec()
    PWT = 136; BIGR = 137
    V(f'v_mov_b32 v{BIGR}, 0x7f000000', [], [BIGR])
    V(f'v_lshrrev_b32 v{t[0]}, 4, v0', [0], [t[0]])
    V(f'v_and_b32 v{t[1]}, 15, v0', [0], [t[1]])
    V(f'v_mad_u32_u24 v{t[0]}, v{t[0]}, 13, v{t[1]}', [t[0], t[1]], [t[0]])
    V(f'v_lshlrev_b32 v{t[0]}, 1, v{t[0]}', [t[0]], [t[0]])
    V(f'v_cmp_gt_u32 vcc, 13, v{t[1]}', [t[1]], [], swrites=['vcc'])
    V(f'v_cndmask_b32 v{t[0]}, v{BIGR}, v{t[0]}, vcc', [BIGR, t[0]], [t[0]], sreads=['vcc'])
    S(f's_cmp_gt_u32 s{S_WAVE}, 2')
    a.cond_begin('s_cbranch_scc1 L_nopw', 'L_nopw')
    a.vmem(f'buffer_load_ushort v{PWT}, v{t[0]}, s[{S_WCO}:{S_WCO+3}], 0 offen', [t[0]], [PWT])
    a.cond_end()
    V(f'v_mov_b32 v{t[2]}, 0', [], [t[2]])
    a.vmem(f'buffer_load_ushort v{V_ACC}, v{t[2]}, s[{S_BO}:{S_BO+3}], 0 offen', [t[2]], [V_ACC])
    def sym_addr(p, srow, wsbase):
        V(f'v_lshrrev_b32 v{p[3]}, 1, v{p[0]}', [p[0]], [p[3]])
        V(f'v_and_b32 v{p[4]}, 1, v{p[0]}', [p[0]], [p[4]])
        V(f'v_subrev_u32 v{p[5]}, 1, v{p[3]}', [p[3]], [p[5]])
        V(f'v_mul_i32_i24 v{p[5]}, v{p[5]}, v{p[3]}', [p[5], p[3]], [p[5]])
        V(f'v_lshrrev_b32 v{p[5]}, 1, v{p[5]}', [p[5]], [p[5]])
        V(f'v_mul_u32_u24 v{p[6]}, 12, v{p[3]}', [p[3]], [p[6]])
        V(f'v_sub_u32 v{p[6]}, v{p[6]}, v{p[5]}', [p[6], p[5]], [p[6]])
        V(f'v_mul_u32_u24 v{p[5]}, 92, v{p[4]}', [p[4]], [p[5]])
        V(f'v_add_u32 v{p[6]}, v{p[6]}, v{p[5]}', [p[6], p[5]], [p[6]])
        V(f'v_lshl_add_u32 v{p[6]}, v{p[1]}, 1, v{p[6]}', [p[1], p[6]], [p[6]])
        V(f'v_lshlrev_b32 v{p[6]}, 2, v{p[6]}', [p[6]], [p[6]])
        V(f'v_add_u32 v{p[6]}, s{S_T3}, v{p[6]}', [p[6]], [p[6]])
        V(f'v_lshlrev_b32 v{p[5]}, 1, v{p[1]}', [p[1]], [p[5]])
        V(f'v_sub_u32 v{p[3]}, v{p[3]}, v{p[5]}', [p[3], p[5]], [p[3]])
        V(f'v_cmp_gt_u32 vcc, 26, v{p[0]}', [p[0]], [], swrites=['vcc'])
        V(f'v_mov_b32 v{p[5]}, 100', [], [p[5]])
        V(f'v_cndmask_b32 v{p[3]}, v{p[5]}, v{p[3]}, vcc', [p[5], p[3]], [p[3]], sreads=['vcc'])
        V(f'v_add_u32 v{p[8]}, s{S_T3}, v{V_L16}', [V_L16], [p[8]])
        V(f'v_cmp_le_u32 vcc, 23, v{V_LANE}', [V_LANE], [], swrites=['vcc'])
        V(f'v_cndmask_b32 v{p[9]}, 0, 1, vcc', [], [p[9]], sreads=['vcc'])
        S(f's_mov_b32 s{S_T0}, s{srow}')
        rho_salu(S_T0, S_T1, S_T4)
        V(f'v_mul_u32_u24 v{p[9]}, {25*368}, v{p[9]}', [p[9]], [p[9]])
        V(f'v_add_u32 v{p[9]}, v{p[9]}, v{V_L16}', [p[9], V_L16], [p[9]])
        S(f's_mul_i32 s{S_T0}, s{S_T0}, 368'); S(f's_add_u32 s{S_T0}, s{S_T0}, {wsbase}')

    def sym_out(p, SD, MF, IF, ewl):
        m = p[10]
        V(f'v_max3_f32 v{m}, |v{SD}|, |v{SD+1}|, |v{SD+2}|', R(SD, 3), [m])
        for r in range(3, 15, 2):
            V(f'v_max3_f32 v{m}, |v{SD+r}|, |v{SD+r+1}|, v{m}', [SD+r, SD+r+1, m], [m])
        dpp_max(m)
        V(f'v_frexp_exp_i32_f32 v{m}, v{m}', [m], [m])
        V(f'v_readlane_b32 s{S_T4}, v{m}, 63', [m], [], swrites=[S_T4], readlane=True)
        S(f's_sub_i32 s{S_C}, 15, s{S_T4}', sreads=[S_T4])
        S(f's_sub_i32 s{S_T4}, s{S_T4}, 15')
        for r in range(14): V(f'v_ldexp_f32 v{SD+r}, v{SD+r}, s{S_C}', [SD+r], [SD+r])
        for rp in range(7):
            V(f'v_cvt_pk_f16_f32 v{MF+rp}, v{SD+2*rp}, v{SD+2*rp+1}', [SD+2*rp, SD+2*rp+1], [MF+rp])
        V(f'v_mov_b32 v{p[7]}, 0', [], [p[7]])
        V(f'v_mov_b32 v{p[13]}, s{S_T3}', [], [p[13]])
        a.ds(f'ds_write_b32 v{p[13]}, v{p[7]} offset:364', [p[13], p[7]])
        a.ds(f'ds_write_b32 v{p[13]}, v{p[7]} offset:732', [p[13], p[7]])
        for rp in range(7):
            aa, bb = rp >> 1, rp & 1
            V(f'v_cmp_ge_i32 vcc, {4*aa+bb}, v{p[3]}', [p[3]], [], swrites=['vcc'])
            if aa == 3: S('s_mov_b32 vcc_hi, 0', sreads=['vcc'])
            S('s_mov_b64 exec, vcc', sreads=['vcc'])
            a.ds(f'ds_write_b32 v{p[6]}, v{MF+rp} offset:{4*(4*aa+bb)}', [p[6], MF+rp])
            fullexec()
        a.raw('s_waitcnt lgkmcnt(0)', kind='wait')
        a.ds(f'ds_read_b128 {vr(IF,4)}, v{p[8]}', [p[8]], R(IF, 4))
        execn(46)
        a.vmem(f'buffer_store_dwordx4 {vr(IF,4)}, v{p[9]}, s[{S_WS}:{S_WS+3}], s{S_T0} offen sc1', [p[9]] + R(IF, 4), [], wide_store=R(IF, 4))
        fullexec()
        S(f's_lshl_b32 s{S_T1}, s{S_T1}, 2'); S(f's_add_u32 s{S_T1}, s{S_T1}, {WS_EWT + 128 * ewl}')
        V(f'v_mov_b32 v{p[11]}, s{S_T4}', [], [p[11]]); V(f'v_mov_b32 v{p[12]}, s{S_T1}', [], [p[12]])
        S('s_mov_b64 exec, 1')
        a.vmem(f'buffer_store_dword v{p[11]}, v{p[12]}, s[{S_WS}:{S_WS+3}], 0 offen sc1', [p[11], p[12]], [])

    S(f's_cmp_ge_u32 s{S_PID}, {NP2}')
    a.cond_begin('s_cbranch_scc1 L_noprod', 'L_noprod')
    p = [72 + i for i in range(16)]
    def skipchk():
        a.raw('s_setprio 3')
        V(f'v_mov_b32 v{t[1]}, 1', [], [t[1]]); S('s_mov_b64 exec, 1'); a.ds(f'ds_add_u32 v{V_SYNC}, v{t[1]} offset:24', [V_SYNC, t[1]]); fullexec()
    S(f's_cmp_ge_u32 s{S_G}, 68'); a.raw('s_cbranch_scc1 L_prodv5', kind='branch')
    S(f's_cmp_ge_u32 s{S_G}, 67'); a.raw('s_cbranch_scc1 L_noprod', kind='branch')
    S(f's_cmp_ge_u32 s{S_G}, 28'); a.raw('s_cbranch_scc1 L_prodrow', kind='branch')
    S(f's_cmp_ge_u32 s{S_G}, 26'); a.raw('s_cbranch_scc1 L_noprod', kind='branch')
    MF = 116; IF = 124; SD = 40
    V(f'v_and_b32 v{p[0]}, 31, v{V_LANE}', [V_LANE], [p[0]])
    V(f'v_lshrrev_b32 v{p[1]}, 5, v{V_LANE}', [V_LANE], [p[1]])
    V(f'v_mul_u32_u24 v{p[2]}, 52, v{p[0]}', [p[0]], [p[2]])
    V(f'v_lshl_add_u32 v{p[2]}, v{p[1]}, 4, v{p[2]}', [p[1], p[2]], [p[2]])
    S(f's_mul_i32 s{S_T2}, s{S_G}, 1352')
    a.vmem(f'buffer_load_dwordx4 {vr(MF,4)}, v{p[2]}, s[{S_WC}:{S_WC+3}], s{S_T2} offen', [p[2]], R(MF, 4))
    a.vmem(f'buffer_load_dwordx4 {vr(MF+4,4)}, v{p[2]}, s[{S_WC}:{S_WC+3}], s{S_T2} offen offset:32', [p[2]], R(MF+4, 4))
    V(f'v_lshlrev_b32 v{p[3]}, 3, v{p[1]}', [p[1]], [p[3]])
    V(f'v_sub_u32 v{p[3]}, v{p[0]}, v{p[3]}', [p[0], p[3]], [p[3]])
    V(f'v_and_b32 v{p[4]}, 1, v{p[3]}', [p[3]], [p[4]])
    V(f'v_lshlrev_b32 v{p[4]}, 4, v{p[4]}', [p[4]], [p[4]])
    V(f'v_mov_b32 v{p[5]}, 0x3f80', [], [p[5]])
    V(f'v_lshlrev_b32 v{p[4]}, v{p[4]}, v{p[5]}', [p[4], p[5]], [p[4]])
    V(f'v_ashrrev_i32 v{p[3]}, 1, v{p[3]}', [p[3]], [p[3]])
    for ks in range(2):
        for r in range(4):
            V(f'v_cmp_eq_u32 vcc, {8*ks + r}, v{p[3]}', [p[3]], [], swrites=['vcc'])
            V(f'v_cndmask_b32 v{IF+4*ks+r}, 0, v{p[4]}, vcc', [p[4]], [IF+4*ks+r], sreads=['vcc'])
    S(f's_lshl_b32 s{S_T3}, s{S_WAVE}, 10'); S(f's_add_u32 s{S_T3}, s{S_T3}, {SCR}')
    sym_addr(p, S_G, WS_IMG0)
    a.raw('s_waitcnt vmcnt(0)', kind='wait')
    skipchk()
    a.mfma('v_mfma_f32_32x32x16_bf16', SD, MF, IF, None, 8, 16)
    a.mfma('v_mfma_f32_32x32x16_bf16', SD, MF+4, IF+4, SD, 8, 16)
    a.mfma('v_mfma_f32_32x32x16_bf16', SD, IF, MF, SD, 8, 16)
    a.mfma('v_mfma_f32_32x32x16_bf16', SD, IF+4, MF+4, SD, 8, 16)
    sym_out(p, SD, MF, IF, 0)
    a.raw('s_branch L_prodfin', kind='branch')
    a.label('L_prodrow')
    S(f's_sub_u32 s{S_G}, s{S_G}, 28'); S(f's_lshl_b32 s{S_G}, s{S_G}, 1')
    PR = 40; PA = 88
    S(f's_mul_i32 s{S_T2}, s{S_G}, 1352'); S(f's_add_u32 s{S_T2}, s{S_T2}, 35152')
    V(f'v_cmp_le_u32 vcc, 43, v{V_LANE}', [V_LANE], [], swrites=['vcc'])
    V(f'v_cndmask_b32 v{p[0]}, 0, 1, vcc', [], [p[0]], sreads=['vcc'])
    V(f'v_mul_u32_u24 v{p[2]}, 12, v{p[0]}', [p[0]], [p[2]])
    V(f'v_sub_u32 v{p[2]}, v{V_L16}, v{p[2]}', [V_L16, p[2]], [p[2]])
    V(f'v_min_u32 v{p[3]}, 21, v{V_LANE}', [V_LANE], [p[3]])
    V(f'v_lshlrev_b32 v{p[4]}, 4, v{p[3]}', [p[3]], [p[4]])
    for rr in range(2):
        a.vmem(f'buffer_load_dwordx4 {vr(PR+8*rr,4)}, v{p[2]}, s[{S_WC}:{S_WC+3}], s{S_T2} offen offset:{1352*rr}', [p[2]], R(PR+8*rr, 4))
        a.vmem(f'buffer_load_dwordx4 {vr(PR+8*rr+4,4)}, v{p[4]}, s[{S_WC}:{S_WC+3}], s{S_T2} offen offset:{1352*rr+1012}', [p[4]], R(PR+8*rr+4, 4))
    V(f'v_mul_u32_u24 v{p[7]}, {25*688}, v{p[0]}', [p[0]], [p[7]])
    V(f'v_add_u32 v{p[7]}, v{p[7]}, v{V_L16}', [p[7], V_L16], [p[7]])
    V(f'v_add_u32 v{p[8]}, {26*688+336}, v{p[4]}', [p[4]], [p[8]])
    S(f's_mul_i32 s{S_T1}, s{S_G}, 2521'); S(f's_lshr_b32 s{S_T1}, s{S_T1}, 16')
    for rr in range(2):
        so, se = 4 + 2*rr, 5 + 2*rr
        S(f's_mul_i32 s{S_T3}, s{S_T1}, 26'); S(f's_sub_u32 s{S_T0}, s{S_G}, s{S_T3}'); S(f's_add_u32 s{S_T0}, s{S_T0}, {rr}')
        rho_salu(S_T0, S_T3, S_T4)
        S(f's_mul_i32 s{S_T0}, s{S_T0}, 688'); S(f's_mul_i32 s{so}, s{S_T1}, {IMG}'); S(f's_add_u32 s{so}, s{so}, s{S_T0}'); S(f's_add_u32 s{so}, s{so}, {WS_IMG[1]}')
        S(f's_lshl_b32 s{se}, s{S_T1}, 5'); S(f's_add_u32 s{se}, s{se}, s{S_T3}'); S(f's_lshl_b32 s{se}, s{se}, 2'); S(f's_add_u32 s{se}, s{se}, {WS_EWT + 128}')
    a.raw('s_waitcnt vmcnt(0)', kind='wait')
    skipchk()
    for i in range(16): V(f'v_and_b32 v{PA+i}, s{S_K7FFF}, v{PR+i}', [PR+i], [PA+i])
    m = p[11]
    V(f'v_pk_max_u16 v{m}, v{PA}, v{PA+1}', R(PA, 2), [m])
    for i in range(2, 16, 2): V(f'v_pk_maximum3_f16 v{m}, v{m}, v{PA+i}, v{PA+i+1}', [m, PA+i, PA+i+1], [m])
    V(f'v_max_u16_sdwa v{m}, v{m}, v{m} dst_sel:DWORD dst_unused:UNUSED_PAD src0_sel:WORD_1 src1_sel:WORD_0', [m], [m], opsel=True)
    dpp_max(m)
    V(f'v_readlane_b32 s{S_T0}, v{m}, 63', [m], [], swrites=[S_T0], readlane=True)
    S(f's_lshr_b32 s{S_T0}, s{S_T0}, 7', sreads=[S_T0], swrites=[S_T0])
    S(f's_sub_i32 s{S_T0}, s{S_T0}, 30'); S(f's_max_i32 s{S_T0}, s{S_T0}, 0')
    S(f's_mul_i32 s{S_C}, s{S_T0}, 0x800080'); S(f's_sub_i32 s{S_T0}, s{S_T0}, 112')
    for i in range(16): V(f'v_pk_sub_u16 v{PA+i}, v{PA+i}, s{S_C} clamp', [PA+i], [PA+i])
    for i in range(16): V(f'v_lshlrev_b32 v{PA+i}, 3, v{PA+i}', [PA+i], [PA+i])
    for i in range(16): V(f'v_bfi_b32 v{PA+i}, s{S_K8000}, v{PR+i}, v{PA+i}', [PA+i, PR+i], [PA+i])
    V(f'v_mov_b32 v{p[9]}, s{S_T0}', [], [p[9]]); V(f'v_mov_b32 v{p[10]}, 0', [], [p[10]])
    for rr in range(2):
        a.vmem(f'buffer_store_dwordx4 {vr(PA+8*rr,4)}, v{p[7]}, s[{S_WS}:{S_WS+3}], s{4+2*rr} offen sc1', [p[7]] + R(PA+8*rr, 4), [], wide_store=R(PA+8*rr, 4))
    execn(22)
    for rr in range(2):
        a.vmem(f'buffer_store_dwordx4 {vr(PA+8*rr+4,4)}, v{p[8]}, s[{S_WS}:{S_WS+3}], s{4+2*rr} offen sc1', [p[8]] + R(PA+8*rr+4, 4), [], wide_store=R(PA+8*rr+4, 4))
    S('s_mov_b64 exec, 1')
    for rr in range(2):
        a.vmem(f'buffer_store_dword v{p[9]}, v{p[10]}, s[{S_WS}:{S_WS+3}], s{5+2*rr} offen sc1', [p[9], p[10]], [])
    a.raw('s_branch L_prodfin', kind='branch')
    a.label('L_prodv5')
    S(f's_sub_u32 s{S_T0}, s{S_G}, 68'); S(f's_cmp_ge_u32 s{S_T0}, 28'); S(f's_cselect_b32 s{S_T3}, 1, 0'); S(f's_mul_i32 s{S_T1}, s{S_T3}, 28'); S(f's_sub_u32 s{S_T0}, s{S_T0}, s{S_T1}')
    S(f's_cmp_ge_u32 s{S_T0}, 26'); a.raw('s_cbranch_scc1 L_noprod', kind='branch')
    LA = 40; LB = 44; AC = 48
    S(f's_mul_i32 s{S_T2}, s{S_T0}, 52'); S(f's_mul_i32 s{S_T1}, s{S_T3}, 35152'); S(f's_add_u32 s{S_T2}, s{S_T2}, s{S_T1}'); S(f's_add_u32 s{S_T2}, s{S_T2}, {4*35152}')
    V(f'v_lshrrev_b32 v{p[0]}, 2, v{V_LANE}', [V_LANE], [p[0]])
    V(f'v_and_b32 v{p[1]}, 3, v{V_LANE}', [V_LANE], [p[1]])
    V(f'v_mul_u32_u24 v{p[2]}, 0x548, v{p[0]}', [p[0]], [p[2]])
    V(f'v_lshl_add_u32 v{p[2]}, v{p[1]}, 4, v{p[2]}', [p[1], p[2]], [p[2]])
    a.vmem(f'buffer_load_dwordx4 {vr(LA,4)}, v{p[2]}, s[{S_WC}:{S_WC+3}], s{S_T2} offen', [p[2]], R(LA, 4))
    S(f's_add_u32 s{S_T2}, s{S_T2}, {16*1352}')
    a.vmem(f'buffer_load_dwordx4 {vr(LB,4)}, v{p[2]}, s[{S_WC}:{S_WC+3}], s{S_T2} offen', [p[2]], R(LB, 4))
    V(f'v_lshlrev_b32 v{p[3]}, 1, v{p[0]}', [p[0]], [p[3]])
    S(f's_mul_i32 s{S_T2}, s{S_T3}, 52')
    a.vmem(f'buffer_load_ushort v{p[4]}, v{p[3]}, s[{S_WCO}:{S_WCO+3}], s{S_T2} offen offset:208', [p[3]], [p[4]])
    a.vmem(f'buffer_load_ushort v{p[5]}, v{p[3]}, s[{S_WCO}:{S_WCO+3}], s{S_T2} offen offset:240', [p[3]], [p[5]])
    S(f's_lshl_b32 s{S_C}, s{S_T0}, 7'); S(f's_add_u32 s{S_C}, s{S_C}, {WS_V5R}')
    rho_salu(S_T0, S_T1, S_T4, clamp=False)
    S(f's_lshl_b32 s{S_T0}, s{S_T0}, 4'); S(f's_add_u32 s{S_T0}, s{S_T0}, {WS_V5F}')
    S(f's_cmp_eq_u32 s{S_T3}, 0'); S(f's_cselect_b32 s{S_T0}, s{S_T0}, s{S_C}'); S(f's_cselect_b32 s{S_T1}, 10, 4'); S(f's_movk_i32 s{S_T4}, 0x200'); S(f's_cselect_b32 s{S_T4}, s{S_T4}, 64')
    V(f'v_lshlrev_b32 v{p[6]}, s{S_T1}, v{p[1]}', [p[1]], [p[6]])
    V(f'v_add_u32 v{p[15]}, s{S_T4}, v{p[6]}', [p[6]], [p[15]])
    a.raw('s_waitcnt vmcnt(0)', kind='wait')
    skipchk()
    V(f'v_cmp_ne_u32 vcc, 3, v{p[1]}', [p[1]], [], swrites=['vcc'])
    for r in (1, 2, 3):
        V(f'v_cndmask_b32 v{LA+r}, 0, v{LA+r}, vcc', [LA+r], [LA+r], sreads=['vcc'])
        V(f'v_cndmask_b32 v{LB+r}, 0, v{LB+r}, vcc', [LB+r], [LB+r], sreads=['vcc'])
    V(f'v_lshlrev_b32 v{p[4]}, 16, v{p[4]}', [p[4]], [p[4]])
    V(f'v_lshlrev_b32 v{p[5]}, 16, v{p[5]}', [p[5]], [p[5]])
    V(f'v_cmp_gt_u32 vcc, 10, v{p[0]}', [p[0]], [], swrites=['vcc'])
    V(f'v_cndmask_b32 v{p[5]}, 0, v{p[5]}, vcc', [p[5]], [p[5]], sreads=['vcc'])
    for r in range(4):
        V(f'v_lshlrev_b32 v{p[7]}, 16, v{LA+r}', [LA+r], [p[7]])
        V(f'v_and_b32 v{p[8]}, 0xffff0000, v{LA+r}', [LA+r], [p[8]])
        V(f'v_lshlrev_b32 v{p[9]}, 16, v{LB+r}', [LB+r], [p[9]])
        V(f'v_and_b32 v{p[10]}, 0xffff0000, v{LB+r}', [LB+r], [p[10]])
        V(f'v_mul_f32 v{AC+2*r}, v{p[4]}, v{p[7]}', [p[4], p[7]], [AC+2*r])
        V(f'v_mul_f32 v{AC+2*r+1}, v{p[4]}, v{p[8]}', [p[4], p[8]], [AC+2*r+1])
        V(f'v_fmac_f32 v{AC+2*r}, v{p[5]}, v{p[9]}', [AC+2*r, p[5], p[9]], [AC+2*r])
        V(f'v_fmac_f32 v{AC+2*r+1}, v{p[5]}, v{p[10]}', [AC+2*r+1, p[5], p[10]], [AC+2*r+1])
    for d in (4, 8):
        for e in range(8):
            V(f'v_add_f32_dpp v{AC+e}, v{AC+e}, v{AC+e} row_ror:{d} row_mask:0xf bank_mask:0xf', [AC+e], [AC+e], dpp=True)
    for op in ('v_permlane16_swap_b32', 'v_permlane32_swap_b32'):
        for e in range(8): V(f'v_mov_b32 v{p[7+e]}, v{AC+e}', [AC+e], [p[7+e]])
        for e in range(8): V(f'{op} v{AC+e}, v{p[7+e]}', [AC+e, p[7+e]], [AC+e, p[7+e]], permlane=True)
        for e in range(8): V(f'v_add_f32 v{AC+e}, v{AC+e}, v{p[7+e]}', [AC+e, p[7+e]], [AC+e])
    for r in range(4):
        V(f'v_cvt_pk_bf16_f32 v{LA+r}, v{AC+2*r}, v{AC+2*r+1}', [AC+2*r, AC+2*r+1], [LA+r])
        V(f'v_lshlrev_b32 v{p[7]}, 16, v{LA+r}', [LA+r], [p[7]])
        V(f'v_and_b32 v{p[8]}, 0xffff0000, v{LA+r}', [LA+r], [p[8]])
        V(f'v_sub_f32 v{p[7]}, v{AC+2*r}, v{p[7]}', [AC+2*r, p[7]], [p[7]])
        V(f'v_sub_f32 v{p[8]}, v{AC+2*r+1}, v{p[8]}', [AC+2*r+1, p[8]], [p[8]])
        V(f'v_cvt_pk_bf16_f32 v{LB+r}, v{p[7]}, v{p[8]}', [p[7], p[8]], [LB+r])
    execn(4)
    a.vmem(f'buffer_store_dwordx4 {vr(LA,4)}, v{p[6]}, s[{S_WS}:{S_WS+3}], s{S_T0} offen sc1', [p[6]] + R(LA, 4), [], wide_store=R(LA, 4))
    a.vmem(f'buffer_store_dwordx4 {vr(LB,4)}, v{p[15]}, s[{S_WS}:{S_WS+3}], s{S_T0} offen sc1', [p[15]] + R(LB, 4), [], wide_store=R(LB, 4))
    a.label('L_prodfin')
    fullexec()
    a.raw('s_branch L_afterprod', kind='branch')
    a.cond_end()
    a.raw('s_waitcnt vmcnt(0)', kind='wait')
    V(f'v_mov_b32 v{t[1]}, 1', [], [t[1]]); S('s_mov_b64 exec, 1'); a.ds(f'ds_add_u32 v{V_SYNC}, v{t[1]} offset:24', [V_SYNC, t[1]]); fullexec()
    a.label('L_afterprod')
    a.vm = []
    a.raw('s_waitcnt lgkmcnt(0)', kind='wait'); a.lds = []
    a.nop(12)
    stamp('prod')
    def addr_setup():
        V(f'v_and_b32 v{t[0]}, 31, v{V_LANE}', [V_LANE], [t[0]])
        V(f'v_cmp_gt_u32 vcc, 28, v{t[0]}', [t[0]], [], swrites=['vcc'])
        V(f'v_addc_co_u32 v{t[4]}, vcc, 0, v{t[0]}, vcc', [t[0]], [t[4]], sreads=['vcc'], swrites=['vcc'])
        V(f'v_cmp_eq_u32 s[{S_MT}:{S_MT+1}], 28, v{t[0]}', [t[0]], [], swrites=[S_MT, S_MT+1])
        V(f'v_cndmask_b32 v{t[4]}, v{t[4]}, 0, s[{S_MT}:{S_MT+1}]', [t[4]], [t[4]], sreads=[S_MT])
        V(f'v_lshrrev_b32 v{t[1]}, 5, v{V_LANE}', [V_LANE], [t[1]])
        V(f'v_mad_u32_u24 v{t[4]}, v{t[1]}, 26, v{t[4]}', [t[1], t[4]], [t[4]])
        V(f'v_cmp_gt_u32 vcc, 25, v{t[0]}', [t[0]], [], swrites=['vcc'])
        S(f's_or_b64 vcc, vcc, s[{S_MT}:{S_MT+1}]', sreads=['vcc', S_MT])
        V(f'v_mov_b32 v{t[5]}, 0x40000', [], [t[5]])
        V(f'v_cndmask_b32 v{t[5]}, v{t[5]}, 0, vcc', [t[5]], [t[5]])
        S(f's_movk_i32 s{S_T0}, 0x2b0'); S(f's_movk_i32 s{S_T1}, 0x170')
        V(f'v_mad_u32_u24 v{V_AADDR[0]}, v{t[4]}, s{S_T0}, v{t[5]}', [t[4], t[5]], [V_AADDR[0]])
        V(f'v_add_u32 v{V_AADDR[1]}, {U[2]}, v{V_AADDR[0]}', [V_AADDR[0]], [V_AADDR[1]])
        V(f'v_mad_u32_u24 v{V_AADDR0}, v{t[4]}, s{S_T1}, v{t[5]}', [t[4], t[5]], [V_AADDR0])
        V(f'v_add_u32 v{V_AADDR0}, {I0B}, v{V_AADDR0}', [V_AADDR0], [V_AADDR0])
    V(f'v_and_b32 v{t[0]}, 31, v{V_LANE}', [V_LANE], [t[0]])
    V(f'v_lshlrev_b32 v{t[0]}, 2, v{t[0]}', [t[0]], [t[0]])
    S(f's_mul_i32 s{S_T0}, s{S_WAVE}, 1664'); S(f's_add_u32 s{S_T0}, s{S_T0}, {X16}')
    V(f'v_add_u32 v{V_TRADDR}, s{S_T0}, v{t[0]}', [t[0]], [V_TRADDR])
    V(f'v_lshrrev_b32 v{t[4]}, 4, v{V_LANE}', [V_LANE], [t[4]])
    V(f'v_lshrrev_b32 v{t[0]}, 2, v{V_LANE}', [V_LANE], [t[0]])
    V(f'v_mul_u32_u24 v{t[0]}, 224, v{t[0]}', [t[0]], [t[0]])
    V(f'v_and_b32 v{t[5]}, 3, v{V_LANE}', [V_LANE], [t[5]])
    V(f'v_lshl_add_u32 v{t[0]}, v{t[5]}, 3, v{t[0]}', [t[5], t[0]], [t[0]])
    V(f'v_mov_b32 v{V_DAADDR}, v{t[0]}', [t[0]], [V_DAADDR])
    V(f'v_add_u32 v{V_DBK}, 121600, v{V_DAADDR}', [V_DAADDR], [V_DBK])
    S(f's_lshl_b32 s{S_T1}, s{S_T0L}, 5'); S(f's_add_u32 s{S_T1}, s{S_T1}, {BW}')
    V(f'v_lshlrev_b32 v{t[4]}, 3, v{t[4]}', [t[4]], [t[4]])
    V(f'v_add_u32 v{V_BWADDR}, s{S_T1}, v{t[4]}', [t[4]], [V_BWADDR])
    V(f'v_mov_b32 v{V_SYNC}, {SYNC}', [], [V_SYNC])
    S(f's_lshl_b32 s{S_T0}, s{S_WAVE}, 2'); S(f's_add_u32 s{S_T0}, s{S_T0}, {SYNC + 32}')
    V(f'v_mov_b32 v{V_DONEA}, s{S_T0}', [], [V_DONEA])
    S(f's_cmp_gt_u32 s{S_WAVE}, 2')
    a.cond_begin('s_cbranch_scc1 L_nopw2', 'L_nopw2')
    V(f'v_lshlrev_b32 v{PWT}, 16, v{PWT}', [PWT], [PWT])
    V(f'v_lshlrev_b32 v{t[0]}, 2, v0', [0], [t[0]])
    V(f'v_add_u32 v{t[0]}, {POOLW}, v{t[0]}', [t[0]], [t[0]])
    V(f'v_cmp_gt_u32 vcc, 0xa0, v0', [0], [], swrites=['vcc'])
    S('s_mov_b64 exec, vcc', sreads=['vcc'])
    a.ds(f'ds_write_b32 v{t[0]}, v{PWT}', [t[0], PWT])
    fullexec()
    a.cond_end()
    a.wait_lds_all()
    S(f's_cmp_ge_u32 s{S_PID}, {NP2}')
    a.raw('s_cbranch_scc1 L_nocnt', kind='branch')
    a.raw('s_waitcnt vmcnt(0)', kind='wait')
    a.raw(f'v_mov_b32 v{VT1}, 1', kind='valu')
    S('s_mov_b64 exec, 1')
    a.raw(f'ds_add_rtn_u32 v{VT2}, v{V_SYNC}, v{VT1} offset:12', kind='ds')
    a.raw(f's_memrealtime s[{S_MT}:{S_MT+1}]')
    a.raw('s_waitcnt lgkmcnt(0)', kind='wait')
    a.raw(f'v_readfirstlane_b32 s{S_T0}, v{VT2}', kind='valu')
    a.raw('s_nop 0', kind='nop')
    S(f's_cmp_lg_u32 s{S_T0}, 3')
    a.raw('s_cbranch_scc1 L_nocnt', kind='branch')
    S(f's_mov_b32 s{S_T0}, 136'); S(f's_mov_b32 s{S_T1}, {NP0 - 1}'); S(f's_mov_b32 s{S_T2}, 0')
    S(f's_cmp_ge_u32 s{S_PID}, {NP0}'); S(f's_cselect_b32 s{S_T0}, 128, s{S_T0}'); S(f's_cselect_b32 s{S_T1}, {NP1 - NP0 - 1}, s{S_T1}'); S(f's_cselect_b32 s{S_T2}, 4, s{S_T2}')
    S(f's_cmp_ge_u32 s{S_PID}, {NP1}'); S(f's_cselect_b32 s{S_T0}, 64, s{S_T0}'); S(f's_cselect_b32 s{S_T1}, {NP2 - NP1 - 1}, s{S_T1}'); S(f's_cselect_b32 s{S_T2}, 8, s{S_T2}')
    a.raw(f'v_mov_b32 v{VT2}, s{S_T2}', kind='valu')
    a.raw(f'buffer_atomic_add v{VT1}, v{VT2}, s[{S_DBGF}:{S_DBGF+3}], 0 offen sc0 sc1', kind='vmem')
    a.raw('s_waitcnt vmcnt(0)', kind='wait')
    a.raw(f'v_readfirstlane_b32 s{S_T2}, v{VT1}', kind='valu')
    a.raw('s_nop 0', kind='nop')
    S(f's_cmp_lg_u32 s{S_T2}, s{S_T1}')
    a.raw('s_cbranch_scc1 L_nocnt', kind='branch')
    S(f's_or_b32 s{S_MT}, s{S_MT}, 1')
    a.raw(f'v_mov_b32 v{VT1}, s{S_MT}', kind='valu')
    a.raw(f'v_mov_b32 v{VT3}, s{S_T0}', kind='valu')
    a.raw(f'buffer_store_dword v{VT1}, v{VT3}, s[{S_DBGF}:{S_DBGF+3}], 0 offen sc1', kind='vmem')
    a.label('L_nocnt')
    fullexec()
    a.raw('s_setprio 0')
    S(f's_mov_b32 s{S_KN}, 0')
    stamp('setup')

    chk_n = [0]
    def rdy_fetch(off): a.ds(f'ds_read_b32 v{V_RDY}, v{V_SYNC} offset:{off}', [V_SYNC], [V_RDY])
    def rdy_check(nseq, off, fetched=False):
        if not fetched: rdy_fetch(off)
        i = chk_n[0]; chk_n[0] += 1
        V(f'v_readfirstlane_b32 s{S_T0}, v{V_RDY}', [V_RDY], [], swrites=[S_T0], readlane=True)
        S(f's_cmp_ge_u32 s{S_T0}, {nseq}', sreads=[S_T0])
        a.cond_begin(f's_cbranch_scc1 L_ok{i}', f'L_ok{i}')
        a.raw(f's_mov_b32 s{S_T1}, 0x100000', kind='salu')
        a.label(f'L_sp{i}')
        a.raw('s_sleep 1')
        a.raw(f'ds_read_b32 v{V_RDY}, v{V_SYNC} offset:{off}', kind='ds')
        a.raw(f's_sub_u32 s{S_T1}, s{S_T1}, 1', kind='salu')
        a.raw(f's_cbranch_scc1 L_ok{i}', kind='branch')
        a.raw('s_waitcnt lgkmcnt(0)', kind='wait')
        a.raw(f'v_readfirstlane_b32 s{S_T0}, v{V_RDY}', kind='valu')
        a.raw('s_nop 0', kind='nop')
        a.raw(f's_cmp_ge_u32 s{S_T0}, {nseq}', kind='salu')
        a.raw(f's_cbranch_scc0 L_sp{i}', kind='branch')
        a.cond_end()
    def cnt_check(nseq):
        i = chk_n[0]; chk_n[0] += 1
        S(f's_cmp_ge_u32 s{S_KN}, {nseq}')
        a.cond_begin(f's_cbranch_scc1 L_ok{i}', f'L_ok{i}')
        a.raw(f's_mov_b32 s{S_T1}, 0x100000', kind='salu')
        a.label(f'L_sp{i}')
        a.raw(f'ds_read_b32 v{V_RDY}, v{V_SYNC}', kind='ds')
        a.raw(f's_sub_u32 s{S_T1}, s{S_T1}, 1', kind='salu')
        a.raw(f's_cbranch_scc1 L_ok{i}', kind='branch')
        a.raw('s_waitcnt lgkmcnt(0)', kind='wait')
        a.raw(f'v_readfirstlane_b32 s{S_KN}, v{V_RDY}', kind='valu')
        a.raw('s_nop 0', kind='nop')
        a.raw(f's_cmp_ge_u32 s{S_KN}, {nseq}', kind='salu')
        a.raw(f's_cbranch_scc1 L_ok{i}', kind='branch')
        a.raw('s_sleep 1')
        a.raw(f's_branch L_sp{i}', kind='branch')
        a.cond_end()
    def release(stage):
        V(f'v_mov_b32 v{t[0]}, {stage}', [], [t[0]])
        a.ds(f'ds_write_b32 v{V_DONEA}, v{t[0]}', [V_DONEA, t[0]])

    def x0_ops():
        ops = []
        PB = PBT
        def rd():
            V(f'v_lshlrev_b32 v{V_ACC}, 16, v{V_ACC}', [V_ACC], [V_ACC])
            V(f'v_and_b32 v{t[0]}, 47, v{V_LANE}', [V_LANE], [t[0]])
            V(f'v_cmp_eq_u32 vcc, 0, v{t[0]}', [t[0]], [], swrites=['vcc'])
            V(f'v_cndmask_b32 v{V_ACC}, 0, v{V_ACC}, vcc', [V_ACC], [V_ACC], sreads=['vcc'])
        ops.append(rd)
        m = t[1]
        def c1():
            for v in range(13): V(f'v_and_b32 v{P16+v}, s{S_K7FFF}, v{PB+v}', [PB+v], [P16+v])
        ops.append(c1)
        def c2():
            V(f'v_pk_maximum3_f16 v{m}, v{P16}, v{P16+1}, v{P16+2}', R(P16, 3), [m])
            for v in range(3, 13, 2):
                V(f'v_pk_maximum3_f16 v{m}, v{m}, v{P16+v}, v{P16+v+1}', [m, P16+v, P16+v+1], [m])
            V(f'v_max_u16_sdwa v{m}, v{m}, v{m} dst_sel:DWORD dst_unused:UNUSED_PAD src0_sel:WORD_1 src1_sel:WORD_0', [m], [m], opsel=True)
            V(f'v_lshrrev_b32 v{m}, 7, v{m}', [m], [m])
            V(f'v_subrev_u32 v{m}, 21, v{m}', [m], [m])
            V(f'v_max_i32 v{m}, 0, v{m}', [m], [m])
            V(f'v_subrev_u32 v{V_EX}, 112, v{m}', [m], [V_EX])
            V(f'v_mul_u32_u24 v{m}, 0x800080, v{m}', [m], [m])
        ops.append(c2)
        ops.append(lambda: [V(f'v_pk_sub_u16 v{P16+v}, v{P16+v}, v{m} clamp', [P16+v, m], [P16+v]) for v in range(13)])
        ops.append(lambda: [V(f'v_lshlrev_b32 v{P16+v}, 3, v{P16+v}', [P16+v], [P16+v]) for v in range(13)])
        ops.append(lambda: [V(f'v_bfi_b32 v{P16+v}, s{S_K8000}, v{PB+v}, v{P16+v}', [P16+v, PB+v], [P16+v]) for v in range(13)])
        def qq():
            V(f'v_mov_b32 v{P16+13}, 0', [], [P16+13])
            V(f'v_mov_b32 v{t[2]}, 0x05040100', [], [t[2]])
            V(f'v_mov_b32 v{t[1]}, 0x07060302', [], [t[1]])
            V(f'v_cndmask_b32 v{t[2]}, v{t[2]}, v{t[1]}, s[{S_HI}:{S_HI+1}]', [t[2], t[1]], [t[2]])
            for q in range(7):
                V(f'v_perm_b32 v{XQ+q}, v{P16+2*q+1}, v{P16+2*q}, v{t[2]}', [P16+2*q+1, P16+2*q, t[2]], [XQ+q])
        ops.append(qq)
        def q2():
            V(f'v_lshlrev_b32 v{V_E}, 1, v{V_EX}', [V_EX], [V_E])
        ops.append(q2)
        return ops

    ACC = 40; DAB = [68, 96]; DBB = [124, 128]; IXR = 132; NDB = 2
    def dnn_bread(i):
        db = DBB[i % NDB]
        a.ds(f'ds_read_b64 {vr(db,2)}, v{IXR+2*i}', [IXR+2*i], R(db, 2))
        a.ds(f'ds_read_b64 {vr(db+2,2)}, v{IXR+2*i+1}', [IXR+2*i+1], R(db+2, 2))
        if i == 11: V(f'v_add_u32 v{V_DAADDR}, 57344, v{V_DAADDR}', [V_DAADDR], [V_DAADDR])
    def dnn_aread(i, q):
        da = DAB[i % NDB]
        hi = i < 3
        ad = V_DBK if hi else V_DAADDR; b0 = CADDR[i] - (121600 if hi else 0)
        if i >= 11: b0 -= 57344
        a.ds(f'ds_read_b64_tr_b16 {vr(da+4*q,2)}, v{ad} offset:{b0+32*q}', [ad], R(da+4*q, 2))
        a.ds(f'ds_read_b64_tr_b16 {vr(da+4*q+2,2)}, v{ad} offset:{b0+32*q+3584}', [ad], R(da+4*q+2, 2))
    def dnn_mf(i, q):
        a.mfma('v_mfma_f32_16x16x32_bf16', ACC+4*q, DAB[i % NDB]+4*q, DBB[i % NDB], ACC+4*q, 4, 4)
    def dnn_epilogue(xt):
        K1 = -2.0 * 1.4426950408889634 * 0.7978845608028654
        K2 = K1 * 0.044715
        acc = 124; K1R = 125; W2T = 96; TT = 68
        qs = list(range(0 if xt else 1, 7))
        S(f's_mov_b32 s{S_K2}, {fb(K2)}')
        for q in qs:
            a.ds(f'ds_read_b64 {vr(W2T+2*q,2)}, v{V_BWADDR} offset:{832+32*q}', [V_BWADDR], R(W2T+2*q, 2))
        V(f'v_mov_b32 v{K1R}, {fb(K1)}', [], [K1R])
        V(f'v_mov_b32 v{acc}, 0', [], [acc])
        xs = [ACC + 4*q + r for q in qs for r in range(4)]
        ts = [TT + 4*q + r for q in qs for r in range(4)]
        for x, tt in zip(xs, ts): V(f'v_mul_f32 v{tt}, v{x}, v{x}', [x], [tt])
        for x, tt in zip(xs, ts): V(f'v_fma_f32 v{tt}, v{tt}, s{S_K2}, v{K1R}', [tt, K1R], [tt])
        for x, tt in zip(xs, ts): V(f'v_mul_f32 v{tt}, v{tt}, v{x}', [tt, x], [tt])
        for x, tt in zip(xs, ts): V(f'v_exp_f32 v{tt}, v{tt}', [tt], [tt], trans=True)
        for x, tt in zip(xs, ts): V(f'v_add_f32 v{tt}, 1.0, v{tt}', [tt], [tt])
        for x, tt in zip(xs, ts): V(f'v_rcp_f32 v{tt}, v{tt}', [tt], [tt], trans=True)
        for x, tt in zip(xs, ts): V(f'v_mul_f32 v{tt}, v{tt}, v{x}', [tt, x], [tt])
        for q in qs:
            w = W2T + 2*q; x0_ = ACC + 4*q
            V(f'v_lshlrev_b32 v{x0_}, 16, v{w}', [w], [x0_])
            V(f'v_and_b32 v{x0_+1}, 0xffff0000, v{w}', [w], [x0_+1])
            V(f'v_lshlrev_b32 v{x0_+2}, 16, v{w+1}', [w+1], [x0_+2])
            V(f'v_and_b32 v{x0_+3}, 0xffff0000, v{w+1}', [w+1], [x0_+3])
        for x, tt in zip(xs, ts): V(f'v_fmac_f32 v{acc}, v{tt}, v{x}', [acc, tt, x], [acc])
        for op in ('v_permlane16_swap_b32', 'v_permlane32_swap_b32'):
            V(f'v_mov_b32 v{K1R}, v{acc}', [acc], [K1R])
            V(f'{op} v{acc}, v{K1R}', [acc, K1R], [acc, K1R], permlane=True)
            V(f'v_add_f32 v{acc}, v{acc}, v{K1R}', [acc, K1R], [acc])
        V(f'v_lshlrev_b32 v{t[0]}, 2, v{V_LANE}', [V_LANE], [t[0]])
        S(f's_and_b32 s{S_T0}, s{S_WAVE}, 3'); S(f's_lshl_b32 s{S_T0}, s{S_T0}, 6'); S(f's_add_u32 s{S_T0}, s{S_T0}, {PDL}')
        V(f'v_add_u32 v{t[0]}, s{S_T0}, v{t[0]}', [t[0]], [t[0]])
        V(f'v_mov_b32 v{t[1]}, 1', [], [t[1]])
        execn(16)
        a.ds(f'ds_write_b32 v{t[0]}, v{acc}', [t[0], acc])
        execn(1)
        a.ds(f'ds_add_u32 v{V_SYNC}, v{t[1]} offset:4', [V_SYNC, t[1]])
        fullexec()
    def u5_ops():
        ops = []
        def rd():
            V(f'v_add_u32 v{t[0]}, {V5F}, v{V_L16}', [V_L16], [t[0]])
            for k in range(4):
                a.ds(f'ds_read_b128 {vr(UA+4*k,4)}, v{t[0]} offset:{1024*k}', [t[0]], R(UA+4*k, 4))
            for k in range(4):
                a.ds(f'ds_read_b128 {vr(G+4*k,4)}, v{V_PWADDR} offset:{POOLW-EWT+128*3+16*k}', [V_PWADDR], R(G+4*k, 4))
        ops.append(rd)
        for k in range(4):
            def rb(k=k):
                for e in range(4 if k < 3 else 1):
                    a.ds(f'ds_read_b32 v{DB+e}, v{V_TRADDR} offset:{128*(4*k+e)}', [V_TRADDR], [DB+e])
            ops.append(rb)
            ops += [lambda: None] * 4
            if k == 3:
                def zz():
                    for r in (1, 2, 3): V(f'v_mov_b32 v{DB+r}, 0', [], [DB+r])
                ops.append(zz)
            ops.append(lambda k=k: a.mfma('v_mfma_f32_32x32x16_bf16', G, UA+4*k, DB, G, 8, 16))
            ops.append(lambda: None)
        return ops

    def boundary_ops(l):
        ops = []
        s_ = ZB[2]; mx = ZB[2]+1; my = ZB[2]+2
        W = PW if l < 4 else G
        for r in range(13):
            ops.append(lambda r=r: V(f'v_ldexp_f32 v{D+r}, v{D+r}, v{EW+r}', [D+r, EW+r], [D+r]))
        if l < 4:
            ops.append(lambda: V(f'v_max3_f32 v{mx}, |v{D}|, |v{D+1}|, |v{D+2}|', R(D, 3), [mx]))
            for r in range(3, 13, 2):
                ops.append(lambda r=r: V(f'v_max3_f32 v{mx}, |v{D+r}|, |v{D+r+1}|, v{mx}', [D+r, D+r+1, mx], [mx]))
            ops.append(lambda: V(f'v_mov_b32 v{my}, v{mx}', [mx], [my]))
        ops.append(lambda: V(f'v_mul_f32 v{s_}, v{D}, v{W}', [D, W], [s_]))
        ops.append(lambda: V(f'v_fmac_f32 v{s_}, v{D+1}, v{W+1}', [s_, D+1, W+1], [s_]))
        if l < 4:
            ops.append(lambda: V(f'v_permlane32_swap_b32 v{mx}, v{my}', [mx, my], [mx, my], permlane=True))
        ops.append(lambda: V(f'v_fmac_f32 v{s_}, v{D+2}, v{W+2}', [s_, D+2, W+2], [s_]))
        if l < 4:
            ops.append(lambda: V(f'v_max_f32 v{mx}, v{mx}, v{my}', [mx, my], [mx]))
            ops.append(lambda: V(f'v_frexp_exp_i32_f32 v{mx}, v{mx}', [mx], [mx]))
            ops.append(lambda: V(f'v_sub_u32 v{V_SH}, 8, v{mx}', [mx], [V_SH]))
        for r in range(3, 13):
            ops.append(lambda r=r: V(f'v_fmac_f32 v{s_}, v{D+r}, v{W+r}', [s_, D+r, W+r], [s_]))
        if l < 4:
            for r in range(13):
                ops.append(lambda r=r: V(f'v_ldexp_f32 v{D+r}, v{D+r}, v{V_SH}', [D+r, V_SH], [D+r]))
            for q in range(7):
                hi = D + 2*q + 1 if q < 6 else D + 12
                ops.append(lambda q=q, hi=hi: V(f'v_cvt_pk_f16_f32 v{XQ+q}, v{D+2*q}, v{hi}', [D+2*q, hi], [XQ+q]))
        ops.append(lambda: V(f'v_ldexp_f32 v{s_}, v{s_}, v{V_E}', [s_, V_E], [s_]))
        ops.append(lambda: V(f'v_add_f32 v{V_ACC}, v{V_ACC}, v{s_}', [V_ACC, s_], [V_ACC]))
        if l < 4:
            ops.append(lambda: V(f'v_sub_u32 v{V_E}, v{V_E}, v{V_SH}', [V_E, V_SH], [V_E]))
            ops.append(lambda: V(f'v_add_u32 v{V_E}, v{V_E}, v{V_EX}', [V_E, V_EX], [V_E]))
        if l == 0:
            ops.append(lambda: V(f'v_mov_b32 v{ZL+1}, 0', [], [ZL+1]))
            ops.append(lambda: V(f'v_mov_b32 v{ZL+2}, 0', [], [ZL+2]))
        return ops
    NK = [23, 43, 43, 43, 23]
    DT = 132
    ISLOT = [None, 0, 1, 2, 3]
    def a_read(l, k):
        b = AB[k % NAB]
        if l in (0, 4): ad = V_AADDR0; off = 16 * k
        else:
            sl = ISLOT[l]; ad = V_AADDR[sl >> 1]; off = IMG * (sl & 1) + 16 * k
        a.ds(f'ds_read_b128 {vr(b,4)}, v{ad} offset:{off}', [ad], R(b, 4))
    PAIRS0 = [(u, v) for u in range(13) for v in range(u, 13)]
    def zbuf(l, k):
        if k == NK[l] - 1: return ZL
        return ZB[k % 3]
    def z_ops(l, k):
        ops = []
        zb = zbuf(l, k)
        for e in range(4):
            q = 4 * k + e
            if l in (0, 4):
                if q >= 91: break
                i, v = PAIRS0[q]; src = (QH if i == v else XQ) + (i >> 1)
            else:
                if q >= 169: break
                i, v = divmod(q, 13); src = XQ + (i >> 1)
            o = i & 1
            ops.append(lambda zb=zb, e=e, src=src, v=v, o=o: V(f'v_pk_mul_f16 v{zb+e}, v{src}, v{P16+v} op_sel:[{o},0] op_sel_hi:[{o},1]', [src, P16+v], [zb+e]))
        return ops
    def pwrd(l):
        lst = {3: ((EW, 128 * 3),), 4: ((PW, 128 * 4),)}.get(l, ((PW, POOLW - EWT + 128 * l), (EW, 128 * l)))
        for base, off in lst:
            for k in range(3):
                a.ds(f'ds_read_b128 {vr(base+4*k,4)}, v{V_PWADDR} offset:{off+16*k}', [V_PWADDR], R(base+4*k, 4))
            a.ds(f'ds_read_b32 v{base+12}, v{V_PWADDR} offset:{off+48}', [V_PWADDR], [base+12])

    OX = 96
    V(f'v_bfe_u32 v{t[0]}, v{V_LANE}, 4, 1', [V_LANE], [t[0]])
    V(f'v_mul_u32_u24 v{t[0]}, 104, v{t[0]}', [t[0]], [t[0]])
    V(f'v_and_b32 v{t[1]}, 12, v{V_LANE}', [V_LANE], [t[1]])
    V(f'v_add_u32 v{t[0]}, v{t[0]}, v{t[1]}', [t[0], t[1]], [t[0]])
    S(f's_mul_i32 s{S_T0}, s{S_WAVE}, 208'); S(f's_add_u32 s{S_T0}, s{S_T0}, {IDXB}')
    V(f'v_add_u32 v{t[8]}, s{S_T0}, v{t[0]}', [t[0]], [t[8]])
    V(f'v_and_b32 v{t[6]}, 3, v{V_LANE}', [V_LANE], [t[6]])
    V(f'v_lshlrev_b32 v{t[6]}, 3, v{t[6]}', [t[6]], [t[6]])
    V(f'v_add_u32 v{t[6]}, {TAB}, v{t[6]}', [t[6]], [t[6]])
    V(f'v_lshrrev_b32 v{t[7]}, 4, v{V_LANE}', [V_LANE], [t[7]])
    V(f'v_lshlrev_b32 v{t[7]}, 3, v{t[7]}', [t[7]], [t[7]])
    V(f'v_add_u32 v{t[7]}, {TAB}, v{t[7]}', [t[7]], [t[7]])
    V(f'v_and_b32 v{t[9]}, 15, v{V_LANE}', [V_LANE], [t[9]])
    V(f'v_mul_u32_u24 v{t[9]}, 104, v{t[9]}', [t[9]], [t[9]])
    rdy_check(8, 24)
    stamp('tab')
    for q in range(7): a.ds(f'ds_read_b32 v{OX+q}, v{t[8]} offset:{16*q}', [t[8]], [OX+q])
    isB = f's_cmp_{"ge" if DG else "lt"}_u32 s{S_WAVE}, 4'
    isA = f's_cmp_{"lt" if DG else "ge"}_u32 s{S_WAVE}, 4'
    S(isA)
    a.cond_begin('s_cbranch_scc1 L_noix', 'L_noix')
    a.raw('s_setprio 3')
    S(f's_and_b32 s{S_T0}, s{S_WAVE}, 3'); S(f's_mul_i32 s{S_T0}, s{S_T0}, 1664'); S(f's_add_u32 s{S_T0}, s{S_T0}, {IDXB}')
    S(f's_add_u32 s{S_T2}, s{S_T0}, 104'); S(f's_lshl_b32 s{S_KO}, s{S_ROT}, 3'); S(f's_add_u32 s{S_KO}, s{S_KO}, s{S_T0}')
    for i in range(13):
        tt = t[2 + (i % 4)]
        V(f'v_add_u32 v{tt}, s{S_KO}, v{t[9]}', [t[9]], [tt])
        a.ds(f'ds_read_b64 {vr(IXR+2*i,2)}, v{tt}', [tt], R(IXR+2*i, 2))
        if i < 12:
            S(f's_add_u32 s{S_KO}, s{S_KO}, 8'); S(f's_cmp_eq_u32 s{S_KO}, s{S_T2}'); S(f's_cselect_b32 s{S_KO}, s{S_T0}, s{S_KO}')
    BT = 104
    for q in range(7):
        a.ds(f'ds_read_b64 {vr(BT+2*q,2)}, v{V_BWADDR} offset:{32*q}', [V_BWADDR], R(BT+2*q, 2))
    a.cond_end()
    for q in range(7):
        V(f'v_min_u32 v{OX+q}, 0x3e7, v{OX+q}', [OX+q], [OX+q])
        V(f'v_lshl_add_u32 v{OX+q}, v{OX+q}, 5, v{t[6]}', [OX+q, t[6]], [OX+q])
        a.ds(f'ds_read_b64_tr_b16 {vr(PBT+2*q,2)}, v{OX+q}', [OX+q], R(PBT+2*q, 2))
    for v in range(13): a.ds(f'ds_write_b32 v{V_TRADDR}, v{PBT+v} offset:{128*v}', [V_TRADDR, PBT+v])
    a.wait_lds_all()
    stamp('x0')
    S(isB)
    a.raw('s_cbranch_scc1 L_grpB', kind='branch')
    release(3)
    S(f's_cmp_lt_u32 s{S_PID}, {NPT0}'); a.raw('s_cbranch_scc1 L_x0prep', kind='branch')
    S(f's_cmp_ge_u32 s{S_PID}, {NPT}'); a.raw('s_cbranch_scc1 L_x0prep', kind='branch')
    p = [84 + i for i in range(16)]
    TD = 100; F1 = 116; F2 = 124; F3 = 132; TF = 140; TI = S_SET + 2
    S(f's_sub_u32 s{TI}, s{S_PID}, {NPT0}'); S(f's_lshl_b32 s{TI}, s{TI}, 2'); S(f's_and_b32 s{S_T4}, s{S_WAVE}, 3'); S(f's_add_u32 s{TI}, s{TI}, s{S_T4}')
    S(f's_mul_i32 s{S_T3}, s{S_T4}, 1664'); S(f's_add_u32 s{S_T3}, s{S_T3}, {SCR + 3328}')
    V(f'v_lshrrev_b32 v{p[0]}, 2, v{V_LANE}', [V_LANE], [p[0]])
    V(f'v_and_b32 v{p[1]}, 3, v{V_LANE}', [V_LANE], [p[1]])
    V(f'v_mul_u32_u24 v{p[2]}, 0x548, v{p[0]}', [p[0]], [p[2]])
    V(f'v_lshl_add_u32 v{p[2]}, v{p[1]}, 4, v{p[2]}', [p[1], p[2]], [p[2]])
    S(f's_min_u32 s{S_T2}, s{TI}, 25'); S(f's_mul_i32 s{S_T2}, s{S_T2}, 52'); S(f's_add_u32 s{S_T2}, s{S_T2}, {4*35152}')
    S(f's_mov_b32 m0, s{S_T3}', m0=True)
    a.vmem(f'buffer_load_dwordx4 v{p[2]}, s[{S_WC}:{S_WC+3}], s{S_T2} offen lds', [p[2]], [], dma=True)
    S(f's_add_u32 m0, s{S_T3}, 1024', m0=True); S(f's_add_u32 s{S_T2}, s{S_T2}, {16*1352}')
    execn(40)
    a.vmem(f'buffer_load_dwordx4 v{p[2]}, s[{S_WC}:{S_WC+3}], s{S_T2} offen lds', [p[2]], [], dma=True)
    fullexec()
    V(f'v_mov_b32 v{TF+2}, 0', [], [TF+2])
    S(f's_mov_b32 s{S_T0}, 0')
    a.label('L_tpoll')
    S('s_mov_b64 exec, 1')
    a.raw(f'buffer_load_dword v{TF}, v{TF+2}, s[{S_DBGF}:{S_DBGF+3}], 0 offen offset:64 sc1', kind='vmem')
    fullexec()
    S(f's_add_u32 s{S_T0}, s{S_T0}, 1')
    a.raw('s_waitcnt vmcnt(0)', kind='wait'); a.vm = []
    a.raw(f'v_readfirstlane_b32 s{S_T1}, v{TF}', kind='valu')
    a.raw('s_nop 0', kind='nop')
    S(f's_cmp_lg_u32 s{S_T1}, 0')
    a.raw('s_cbranch_scc1 L_tgo', kind='branch')
    a.raw(f's_sleep {PSLEEP}')
    S(f's_cmp_lt_u32 s{S_T0}, 0x40000')
    a.raw('s_cbranch_scc1 L_tpoll', kind='branch')
    a.label('L_tgo')
    S(f's_mul_i32 s{S_T2}, s{S_T4}, 832'); S(f's_add_u32 m0, s{S_T2}, {SCR}', m0=True); S(f's_add_u32 s{S_T2}, s{S_T2}, {WS_V5R}')
    execn(52)
    a.vmem(f'buffer_load_dwordx4 v{V_L16}, s[{S_WS}:{S_WS+3}], s{S_T2} offen sc1 lds', [V_L16], [], dma=True)
    fullexec()
    V(f'v_lshrrev_b32 v{p[3]}, 5, v{V_LANE}', [V_LANE], [p[3]])
    V(f'v_bfe_u32 v{p[4]}, v{V_LANE}, 2, 2', [V_LANE], [p[4]])
    V(f'v_lshl_add_u32 v{p[3]}, v{p[3]}, 3, v{p[4]}', [p[3], p[4]], [p[3]])
    V(f'v_bfe_u32 v{p[4]}, v{V_LANE}, 4, 1', [V_LANE], [p[4]])
    V(f'v_lshlrev_b32 v{p[4]}, 5, v{p[4]}', [p[4]], [p[4]])
    V(f'v_lshl_add_u32 v{p[4]}, v{p[1]}, 3, v{p[4]}', [p[1], p[4]], [p[4]])
    AW = [TF+3, TF+4, TF+5]; AV = [TF+6, TF+7, TF+8]
    V(f'v_lshl_add_u32 v{AW[0]}, v{p[3]}, 6, v{p[4]}', [p[3], p[4]], [AW[0]])
    V(f'v_add_u32 v{AW[0]}, s{S_T3}, v{AW[0]}', [AW[0]], [AW[0]])
    V(f'v_lshl_add_u32 v{AV[0]}, v{p[3]}, 7, v{p[4]}', [p[3], p[4]], [AV[0]])
    V(f'v_add_u32 v{AV[0]}, {SCR}, v{AV[0]}', [AV[0]], [AV[0]])
    V(f'v_mov_b32 v{p[5]}, 0x30000', [], [p[5]])
    for k_, lim in ((1, 10), (2, 6)):
        V(f'v_cmp_gt_u32 vcc, {lim}, v{p[3]}', [p[3]], [], swrites=['vcc'])
        V(f'v_cndmask_b32 v{AW[k_]}, v{p[5]}, v{AW[0]}, vcc', [p[5], AW[0]], [AW[k_]], sreads=['vcc'])
        V(f'v_cndmask_b32 v{AV[k_]}, v{p[5]}, v{AV[0]}, vcc', [p[5], AV[0]], [AV[k_]], sreads=['vcc'])
    V(f'v_and_b32 v{p[0]}, 31, v{V_LANE}', [V_LANE], [p[0]])
    V(f'v_lshrrev_b32 v{p[1]}, 5, v{V_LANE}', [V_LANE], [p[1]])
    S(f's_min_u32 s{S_C}, s{TI}, 25')
    sym_addr(p, S_C, WS_IMGT)
    S(f's_mov_b32 s{TI+1}, s{S_T0}'); S(f's_mov_b32 s{TI+2}, s{S_T1}')
    a.wait_vm_all()
    V(f'v_mov_b32 v{TF}, 1', [], [TF])
    execn(1)
    a.ds(f'ds_add_u32 v{V_SYNC}, v{TF} offset:16', [V_SYNC, TF])
    fullexec()
    for ks in range(2):
        for tt in range(2):
            ad = AW[0] if ks == 0 else AW[1 + tt]
            a.ds(f'ds_read_b64_tr_b16 {vr(F1+4*ks+2*tt,2)}, v{ad} offset:{(16*ks+4*tt)*64}', [ad], R(F1+4*ks+2*tt, 2))
    rdy_check(4, 16)
    for F, lo in ((F2, 0), (F3, 64)):
        for ks in range(2):
            for tt in range(2):
                ad = AV[0] if ks == 0 else AV[1 + tt]
                a.ds(f'ds_read_b64_tr_b16 {vr(F+4*ks+2*tt,2)}, v{ad} offset:{(16*ks+4*tt)*128+lo}', [ad], R(F+4*ks+2*tt, 2))
    first = True
    for F in (F2, F3):
        for ks in range(2):
            a.mfma('v_mfma_f32_32x32x16_bf16', TD, F1+4*ks, F+4*ks, None if first else TD, 8, 16); first = False
            a.mfma('v_mfma_f32_32x32x16_bf16', TD, F+4*ks, F1+4*ks, TD, 8, 16)
    S(f's_mov_b32 s{S_T0}, s{TI+1}'); S(f's_mov_b32 s{S_T1}, s{TI+2}')
    sym_out(p, TD, F1, F2, 4)
    a.raw('s_waitcnt vmcnt(0)', kind='wait'); a.vm = []
    a.raw(f'v_mov_b32 v{VT1}, 1', kind='valu')
    a.raw(f'ds_add_rtn_u32 v{VT2}, v{V_SYNC}, v{VT1} offset:20', kind='ds')
    a.raw('s_waitcnt lgkmcnt(0)', kind='wait'); a.lds = []
    a.raw(f'v_readfirstlane_b32 s{S_T0}, v{VT2}', kind='valu')
    a.raw('s_nop 0', kind='nop')
    S(f's_cmp_lg_u32 s{S_T0}, 3')
    a.raw('s_cbranch_scc1 L_tdone', kind='branch')
    a.raw(f'v_mov_b32 v{VT2}, s{S_SET}', kind='valu')
    a.raw(f'buffer_atomic_add v{VT1}, v{VT2}, s[{S_DBGF}:{S_DBGF+3}], 0 offen offset:12 sc0 sc1', kind='vmem')
    a.raw('s_waitcnt vmcnt(0)', kind='wait')
    a.raw(f'v_readfirstlane_b32 s{S_T2}, v{VT1}', kind='valu')
    a.raw(f'v_mov_b32 v{VT2}, 0', kind='valu')
    a.raw(f'v_mov_b32 v{VT1}, 1', kind='valu')
    S(f's_cmp_lg_u32 s{S_T2}, {NPT - NPT0 - 1}')
    a.raw('s_cbranch_scc1 L_tdone', kind='branch')
    a.raw(f'buffer_store_dword v{VT1}, v{VT2}, s[{S_DBGF}:{S_DBGF+3}], 0 offen offset:192 sc1', kind='vmem')
    a.label('L_tdone')
    fullexec()
    a.nop(4)
    a.raw('s_branch L_x0prep', kind='branch')
    a.label('L_grpB')
    for f in range(26):
        V(f'v_lshl_add_u32 v{IXR+f}, v{IXR+f}, 5, v{t[7]}', [IXR+f, t[7]], [IXR+f])
    for q in range(7):
        V(f'v_lshlrev_b32 v{ACC+4*q}, 16, v{BT+2*q}', [BT+2*q], [ACC+4*q])
        V(f'v_and_b32 v{ACC+4*q+1}, 0xffff0000, v{BT+2*q}', [BT+2*q], [ACC+4*q+1])
        V(f'v_lshlrev_b32 v{ACC+4*q+2}, 16, v{BT+2*q+1}', [BT+2*q+1], [ACC+4*q+2])
        V(f'v_and_b32 v{ACC+4*q+3}, 0xffff0000, v{BT+2*q+1}', [BT+2*q+1], [ACC+4*q+3])
    a.wait_lds_all()
    def dnn_loop(xt):
        CHK = {0: 3, 2: 5, 4: 7, 6: 9, 8: 11, 10: 13, 12: 14}
        qs = list(range(0 if xt else 1, 7))
        cnt_check(CHK[0]); dnn_bread(0)
        for q in qs: dnn_aread(0, q)
        for i in range(13):
            a.comment(f'======== DNN step {i} xt={xt}')
            if i + 1 < 13:
                if (i + 1) in CHK: cnt_check(CHK[i + 1])
                dnn_bread(i + 1)
            for q in qs:
                dnn_mf(i, q)
                if i + 1 < 13: dnn_aread(i + 1, q)
            if i in (2, 7, 12): release({2: 1, 7: 2, 12: 3}[i])
        if EPRIO is not None: a.raw(f's_setprio {EPRIO}')
        dnn_epilogue(xt)
        a.wait_lds_all(); a.nop(8)
    S(f's_cmp_ge_u32 s{S_Q}, 2')
    a.raw('s_cbranch_scc1 L_dnn0', kind='branch')
    dnn_loop(1)
    a.raw('s_branch L_dnnend', kind='branch')
    a.label('L_dnn0')
    dnn_loop(0)
    a.label('L_dnnend')
    for v in range(13): a.ds(f'ds_read_b32 v{PBT+v}, v{V_TRADDR} offset:{128*v}', [V_TRADDR], [PBT+v])
    a.wait_lds_all()
    a.label('L_x0prep')
    for o in x0_ops(): o()
    for q in range(7):
        V(f'v_pk_mul_f16 v{QH+q}, v{XQ+q}, s{S_HALF}', [XQ+q], [QH+q])
    addr_setup()
    V(f'v_lshrrev_b32 v{t[1]}, 5, v{V_LANE}', [V_LANE], [t[1]])
    V(f'v_lshlrev_b32 v{t[1]}, 6, v{t[1]}', [t[1]], [t[1]])
    V(f'v_add_u32 v{V_PWADDR}, {EWT}, v{t[1]}', [t[1]], [V_PWADDR])
    V(f'v_mov_b32 v{ZL+3}, 0', [], [ZL+3])
    stamp('dnn')
    if REP:
        a.wait_lds_all(); a.raw('s_memtime s[96:97]'); a.raw('s_memrealtime s[98:99]'); a.raw('s_waitcnt lgkmcnt(0)', kind='wait')
    S1 = DB; S2 = DB + 1
    for l in range(5):
        a.comment(f'======== layer {l}')
        stamp(f'L{l}')
        rdy_check({0: 1, 1: 2, 2: 3, 3: 4, 4: 6}[l], 8)
        for k in range(PFD): a_read(l, k)
        fq = []
        if l == 3:
            rdy_check(5, 8)
            u5 = u5_ops(); u5[0]()
            fq = u5[1:]
        if l == 4:
            V(f'v_mov_b32 v{t[0]}, 0x05040100', [], [t[0]])
            V(f'v_mov_b32 v{t[1]}, 0x07060302', [], [t[1]])
            V(f'v_cndmask_b32 v{t[0]}, v{t[0]}, v{t[1]}, s[{S_HI}:{S_HI+1}]', [t[0], t[1]], [t[0]])
            for q in range(7):
                V(f'v_perm_b32 v{XQ+q}, v{P16+2*q+1}, v{P16+2*q}, v{t[0]}', [P16+2*q+1, P16+2*q, t[0]], [XQ+q])
            for r in range(13): fq.append(lambda r=r: V(f'v_ldexp_f32 v{D+r}, v{D+r}, v{EW+r}', [D+r, EW+r], [D+r]))
            fq.append(lambda: V(f'v_mul_f32 v{S1}, v{D}, v{G}', [D, G], [S1]))
            for r in range(1, 13): fq.append(lambda r=r: V(f'v_fmac_f32 v{S1}, v{D+r}, v{G+r}', [S1, D+r, G+r], [S1]))
        for o in z_ops(l, 0): o()
        for o in z_ops(l, 1): o()
        if PRIO and not BPRIO and l < 4: a.raw('s_setprio 1')
        DD = DT if l == 4 else D
        for k in range(NK[l]):
            if k == NK[l] - 8: pwrd(l)
            zo = z_ops(l, k + 2) if k + 2 < NK[l] else []
            if k % 2 == 0 and k + 1 < NK[l]: a._wait_regs(R(AB[(k + 1) % NAB], 4))
            a.mfma('v_mfma_f32_32x32x16_f16', DD, AB[k % NAB], zbuf(l, k), DD if k > 0 else None, 8, 16)
            if k + PFD < NK[l]: a_read(l, k + PFD)
            for o in zo: o()
            if PRIO and not BPRIO and k == 2: a.raw('s_setprio 2')
            if l == 4:
                for _ in range(2 if k >= 18 or k % 4 == 0 else 1):
                    if fq and k >= 1: fq.pop(0)()
            elif fq and k >= 4: fq.pop(0)()
        assert not fq
        if l == 0: release(4)
        if l < 3:
            if PRIO and not BPRIO: a.raw('s_setprio 0')
            for o in boundary_ops(l): o()
    stamp('fin')
    rdy_check(7, 8)
    V(f'v_bfe_u32 v{t[5]}, v{V_LANE}, 4, 1', [V_LANE], [t[5]])
    V(f'v_and_b32 v{t[6]}, 15, v{V_LANE}', [V_LANE], [t[6]])
    V(f'v_lshl_add_u32 v{t[5]}, v{t[6]}, 4, v{t[5]}', [t[5], t[6]], [t[5]])
    V(f'v_lshlrev_b32 v{t[5]}, 2, v{t[5]}', [t[5]], [t[5]])
    S(f's_lshl_b32 s{S_T0}, s{S_WAVE}, 3'); S(f's_add_u32 s{S_T0}, s{S_T0}, {PD}')
    V(f'v_add_u32 v{t[5]}, s{S_T0}, v{t[5]}', [t[5]], [t[5]])
    V(f'v_and_b32 v{t[6]}, 44, v{V_LANE}', [V_LANE], [t[6]])
    V(f'v_cmp_eq_u32 vcc, 0, v{t[6]}', [t[6]], [], swrites=['vcc'])
    V(f'v_mov_b32 v{t[6]}, 0x30000', [], [t[6]])
    V(f'v_cndmask_b32 v{t[5]}, v{t[6]}, v{t[5]}, vcc', [t[5], t[6]], [t[5]], sreads=['vcc'])
    a.ds(f'ds_read_b32 v{t[6]}, v{t[5]}', [t[5]], [t[6]])
    for r in range(13): V(f'v_lshl_add_u32 v{PW+r}, v{V_EX}, 1, v{PW+r}', [V_EX, PW+r], [PW+r])
    for r in range(13): V(f'v_ldexp_f32 v{DT+r}, v{DT+r}, v{PW+r}', [DT+r, PW+r], [DT+r])
    for r in range(13): V(f'v_fmac_f32 v{S1}, v{D+r}, v{DT+r}', [S1, D+r, DT+r], [S1])
    V(f'v_ldexp_f32 v{S1}, v{S1}, v{V_E}', [S1, V_E], [S1])
    V(f'v_add_f32 v{V_ACC}, v{V_ACC}, v{S1}', [V_ACC, S1], [V_ACC])
    A_ = V_ACC
    V(f'v_add_f32 v{A_}, v{A_}, v{t[6]}', [A_, t[6]], [A_])
    for d in (8, 4, 2, 1):
        V(f'v_add_f32_dpp v{A_}, v{A_}, v{A_} row_ror:{d} row_mask:0xf bank_mask:0xf', [A_], [A_], dpp=True)
    V(f'v_mov_b32 v{t[5]}, v{A_}', [A_], [t[5]])
    V(f'v_permlane32_swap_b32 v{A_}, v{t[5]}', [A_, t[5]], [A_, t[5]], permlane=True)
    V(f'v_add_f32 v{A_}, v{A_}, v{t[5]}', [A_, t[5]], [A_])
    V(f'v_cvt_pk_bf16_f32 v{A_}, v{A_}, v{A_}', [A_], [A_])
    V(f'v_lshrrev_b32 v{t[5]}, 3, v{V_LANE}', [V_LANE], [t[5]])
    S(f's_lshl_b32 s{S_T0}, s2, 5'); S(f's_lshl_b32 s{S_T1}, s{S_WAVE}, 2'); S(f's_add_u32 s{S_T0}, s{S_T0}, s{S_T1}')
    S('s_mov_b64 exec, 0x10001')
    a.vmem(f'buffer_store_short v{A_}, v{t[5]}, s[{S_OUT}:{S_OUT+3}], s{S_T0} offen', [A_, t[5]], [])
    if REP:
        a.raw('s_memtime s[100:101]'); a.raw('s_memrealtime s[4:5]'); a.raw('s_waitcnt lgkmcnt(0)', kind='wait')
        S(f's_cmp_lg_u32 s{S_WAVE}, 4'); a.raw('s_cbranch_scc1 L_norep', kind='branch')
        S('s_and_b32 s6, s2, 0xfc'); S('s_cmp_lg_u32 s6, 100'); a.raw('s_cbranch_scc1 L_norep', kind='branch')
        S('s_sub_u32 s96, s96, s92'); S('s_sub_u32 s98, s98, s94'); S('s_sub_u32 s100, s100, s92'); S('s_sub_u32 s4, s4, s94')
        V('v_mov_b32 v16, s96', [], [16]); V('v_mov_b32 v17, s98', [], [17]); V('v_mov_b32 v18, s100', [], [18]); V('v_mov_b32 v19, s4', [], [19])
        S('s_and_b32 s6, s2, 3'); S('s_lshl_b32 s6, s6, 4'); V('v_mov_b32 v20, s6', [], [20])
        S('s_mov_b64 exec, 1')
        a.vmem(f'buffer_store_dwordx4 v[16:19], v20, s[{S_DBGF}:{S_DBGF+3}], 0 offen', [16,17,18,19,20], [])
        a.label('L_norep')
    dbg_out()
    a.raw('s_endpgm')

    a.label('L_loader')
    a.lds = []; a.vm = []; a.valu_w = {}; a.mfma_w = {}; a.mfma_c = {}; a.trans_w = {}; a.store_src = {}; a.opsel_w = {}
    stamp_n[0] = 1
    names_c = a.stamp_names; a.stamp_names = []
    LF = 18; LFA = 19; LSY = 20; LDA = 21; LDV = 22; LT = 23; WO = 32; PF = 40; LN = 24; LG = 64
    if TOUCH:
        V(f'v_mov_b32 v{t[0]}, 0', [], [t[0]])
        S('s_mov_b64 exec, 1')
        S(f's_mov_b32 s{S_T0}, {WS_INB - 256}')
        a.vmem(f'buffer_load_dword v{PF}, v{t[0]}, s[{S_WS}:{S_WS+3}], s{S_T0} offen', [t[0]], [PF])
        if TOUCH == 1: a.vmem(f'buffer_load_dword v{PF+1}, v{t[0]}, s[{S_DBGF}:{S_DBGF+3}], 0 offen sc1', [t[0]], [PF+1])
        a.vmem(f'buffer_load_dword v{PF+2}, v{t[0]}, s[{S_OUT}:{S_OUT+3}], 0 offen', [t[0]], [PF+2])
        a.vmem(f'buffer_load_dword v{PF+3}, v{t[0]}, s[{S_W1}:{S_W1+3}], 0 offen', [t[0]], [PF+3])
        a.vmem(f'buffer_load_dword v{PF+4}, v{t[0]}, s[{S_TAB}:{S_TAB+3}], 0 offen', [t[0]], [PF+4])
        a.vmem(f'buffer_load_dword v{PF+5}, v{t[0]}, s[{S_B1}:{S_B1+3}], 0 offen', [t[0]], [PF+5])
        a.vmem(f'buffer_load_dword v{PF+6}, v{t[0]}, s[{S_W2}:{S_W2+3}], 0 offen', [t[0]], [PF+6])
        fullexec()
    S(f's_movk_i32 s{S_T0}, 4682')
    for k in range(7):
        V(f'v_add_u32 v{t[0]}, {64*k}, v{V_LANE}', [V_LANE], [t[0]])
        V(f'v_mul_u32_u24 v{t[1]}, s{S_T0}, v{t[0]}', [t[0]], [t[1]])
        V(f'v_lshrrev_b32 v{t[1]}, 16, v{t[1]}', [t[1]], [t[1]])
        V(f'v_mul_u32_u24 v{t[2]}, {832 - 224}, v{t[1]}', [t[1]], [t[2]])
        V(f'v_lshl_add_u32 v{WO+k}, v{t[0]}, 4, v{t[2]}', [t[0], t[2]], [WO+k])
    V(f'v_lshlrev_b32 v{LFA}, 2, v{V_LANE}', [V_LANE], [LFA])
    V(f'v_mov_b32 v{LSY}, {SYNC}', [], [LSY])
    V(f'v_and_b32 v{LDA}, 28, v{LFA}', [LFA], [LDA])
    V(f'v_add_u32 v{LDA}, {SYNC + 32}, v{LDA}', [LDA], [LDA])
    S(f's_mul_i32 s{S_KO}, s{S_ROT}, 26624'); S(f's_lshl_b32 s{S_T0}, s{S_T0L}, 5'); S(f's_add_u32 s{S_KO}, s{S_KO}, s{S_T0}')
    S(f's_add_u32 s{S_T3}, s{S_T0}, {13*26624}')
    def l_w1(i):
        for k in range(7):
            S(f's_mov_b32 m0, {CADDR[i] + 1024*k}', m0=True)
            a.vmem(f'buffer_load_dwordx4 v{WO+k}, s[{S_W1}:{S_W1+3}], s{S_KO} offen lds', [WO+k], [], tag=('c', i), dma=True)
        S(f's_add_u32 s{S_KO}, s{S_KO}, 26624'); S(f's_cmp_eq_u32 s{S_KO}, s{S_T3}'); S(f's_cselect_b32 s{S_T1}, {13*26624}, 0'); S(f's_sub_u32 s{S_KO}, s{S_KO}, s{S_T1}')
    def l_lin(tag, srd, src, dst, nbytes, sc=''):
        n = (nbytes + 1023) // 1024
        for pc in range(n):
            if pc % 4 == 0:
                S(f's_mov_b32 m0, {dst + 1024*pc}', m0=True)
                S(f's_mov_b32 s{S_T2}, {src + 1024*pc}')
            lanes = min(64, (nbytes - 1024*pc) // 16)
            if lanes < 64: execn(lanes)
            a.vmem(f'buffer_load_dwordx4 v{V_L16}, s[{srd}:{srd+3}], s{S_T2} offen offset:{1024*(pc%4)} {sc} lds', [V_L16], [], tag=tag, dma=True)
            if lanes < 64: fullexec()
    def publish(n, off):
        a.raw(f'v_mov_b32 v{LT}, {n}', kind='valu')
        a.raw(f'ds_write_b32 v{LSY}, v{LT} offset:{off}', kind='ds')
    def l_flag(lo, hi):
        mk = ((1 << hi) - 1) & ~((1 << lo) - 1)
        S(f's_mov_b64 exec, 0x{mk:x}')
        a.vmem(f'buffer_load_dword v{LF}, v{LFA}, s[{S_DBGF}:{S_DBGF+3}], 0 offen offset:128 sc1', [LFA], [LF])
        fullexec()
    def l_poll(lo, hi, lab, pre=None):
        mk = ((1 << hi) - 1) & ~((1 << lo) - 1)
        a._wait_regs([LF])
        S(f's_mov_b64 exec, 0x{mk:x}')
        S(f's_mov_b32 s{S_T0}, 0')
        a.label(f'L_poll{lab}')
        a.raw(f'v_cmp_eq_u32 vcc, 0, v{LF}', kind='valu')
        a.raw(f's_cbranch_vccz L_polldone{lab}', kind='branch')
        a.raw(f's_sleep {PSLEEP}')
        a.raw(f'buffer_load_dword v{LF}, v{LFA}, s[{S_DBGF}:{S_DBGF+3}], 0 offen offset:128 sc1', kind='vmem')
        S(f's_add_u32 s{S_T0}, s{S_T0}, 1')
        S(f's_cmp_lt_u32 s{S_T0}, 0x40000')
        a.raw('s_waitcnt vmcnt(0)', kind='wait')
        if pre: publish(pre[0], pre[1])
        a.raw(f's_cbranch_scc1 L_poll{lab}', kind='branch')
        a.label(f'L_polldone{lab}')
        fullexec()
    def l_wait_lds(addr, off, stage, lab, pre=None):
        a.raw(f's_mov_b32 s{S_T1}, 0x100000', kind='salu')
        a.label(f'L_dw{lab}')
        a.raw(f'ds_read_b32 v{LDV}, v{addr} offset:{off}', kind='ds')
        a.raw(f's_sub_u32 s{S_T1}, s{S_T1}, 1', kind='salu')
        a.raw(f's_cbranch_scc1 L_dn{lab}', kind='branch')
        a.raw('s_waitcnt lgkmcnt(0)', kind='wait')
        a.raw(f'v_cmp_gt_u32 vcc, {stage}, v{LDV}', kind='valu')
        a.raw(f's_cbranch_vccz L_dn{lab}', kind='branch')
        if pre:
            a.raw('s_waitcnt vmcnt(0)', kind='wait')
            publish(pre[0], pre[1])
        a.raw('s_sleep 1')
        a.raw(f's_branch L_dw{lab}', kind='branch')
        a.label(f'L_dn{lab}')
    a.raw('s_waitcnt lgkmcnt(0)', kind='wait')
    for i in range(13):
        l_w1(i)
        if i in (9, 11):
            a.wait_vm_tag(('c', i - 8)); publish(i - 6, 0)
    l_flag(2, 3)
    stamp('w1iss')
    for i in (5, 7, 9, 11, 12):
        a.wait_vm_tag(('c', i)); publish(i + 2, 0)
    l_poll(2, 3, 'k'); stamp('polled')
    l_flag(0, 1)
    S(f's_lshr_b32 s{S_T0}, s2, 3'); S(f's_mul_i32 s{S_T0}, s{S_T0}, 608')
    execn(38)
    a.vmem(f'buffer_load_dwordx4 {vr(PF+16,4)}, v{V_L16}, s[{S_WS}:{S_WS+3}], s{S_T0} offen sc1', [V_L16], R(PF+16, 4))
    fullexec()
    l_wait_lds(LDA, 0, 1, 'a')
    l_lin(('i', 0), S_WS, WS_IMG0, I0B, IMG0, 'sc1')
    l_lin(('i', 0), S_WS, WS_EWT, EWT, 128, 'sc1')
    l_poll(0, 1, 'a', pre=(1, 8))
    V(f'v_readlane_b32 s{S_T0}, v{LF}, 0', [LF], [], swrites=[S_T0], readlane=True)
    V(f'v_mov_b32 v{LN}, s{S_T0}', [], [LN], sreads=[S_T0])
    S(f's_lshr_b32 s{S_T0}, s2, 3'); S(f's_mul_i32 s{S_T0}, s{S_T0}, 3360'); S(f's_add_u32 s{S_T0}, s{S_T0}, {WS_IMG[1]}')
    for q in range(4):
        if q == 3: execn(18)
        a.vmem(f'buffer_load_dwordx4 {vr(PF+4*q,4)}, v{V_L16}, s[{S_WS}:{S_WS+3}], s{S_T0} offen offset:{1024*q} sc1', [V_L16], R(PF+4*q, 4))
    fullexec()
    l_lin(('i', 1), S_WS, WS_EWT + 128, EWT + 128, 384, 'sc1')
    l_wait_lds(LDA, 0, 2, 'b', pre=(1, 8))
    l_lin(('i', 1), S_WS, WS_IMG[1], U[0], 16384, 'sc1')
    a.wait_vm_tag(('i', 0)); publish(1, 8)
    l_lin(('i', 1), S_WS, WS_IMG[1] + 16384, U[0] + 16384, IMG - 16384, 'sc1')
    a.wait_vm_tag(('i', 1)); publish(2, 8); stamp('i1')
    l_wait_lds(LDA, 0, 3, 'c'); stamp('dnndone')
    l_lin(('i', 2), S_WS, WS_IMG[2], U[1], IMG, 'sc1')
    l_lin(('i', 3), S_WS, WS_IMG[3], U[2], IMG, 'sc1')
    a.wait_vm_tag(('i', 2)); publish(3, 8)
    a.wait_vm_tag(('i', 3)); publish(4, 8)
    l_wait_lds(LSY, 4, 4, 'd')
    V(f'v_lshlrev_b32 v{t[0]}, 3, v{V_LANE}', [V_LANE], [t[0]])
    V(f'v_add_u32 v{t[0]}, {PDL}, v{t[0]}', [t[0]], [t[0]])
    a.ds(f'ds_read_b64 {vr(LG+4,2)}, v{t[0]}', [t[0]], R(LG+4, 2))
    V(f'v_bfe_u32 v{t[1]}, v{V_LANE}, 3, 2', [V_LANE], [t[1]])
    V(f'v_add_u32 v{t[1]}, s{S_Q}, v{t[1]}', [t[1]], [t[1]])
    V(f'v_and_b32 v{t[1]}, 3, v{t[1]}', [t[1]], [t[1]])
    V(f'v_lshlrev_b32 v{t[1]}, 13, v{t[1]}', [t[1]], [t[1]])
    V(f'v_and_b32 v{t[2]}, 7, v{V_LANE}', [V_LANE], [t[2]])
    V(f'v_lshl_add_u32 v{t[1]}, v{t[2]}, 4, v{t[1]}', [t[2], t[1]], [t[1]])
    S(f's_lshl_b32 s{S_T0}, s{S_CB}, 10'); S(f's_lshl_b32 s{S_T1}, s{S_Q}, 7'); S(f's_add_u32 s{S_T0}, s{S_T0}, s{S_T1}'); S(f's_add_u32 s{S_T0}, s{S_T0}, {WS_INB}')
    V(f'v_mov_b32 v{LG}, v{LG+4}', [LG+4], [LG]); V(f'v_mov_b32 v{LG+1}, v{LN}', [LN], [LG+1])
    V(f'v_mov_b32 v{LG+2}, v{LG+5}', [LG+5], [LG+2]); V(f'v_mov_b32 v{LG+3}, v{LN}', [LN], [LG+3])
    execn(32)
    a.vmem(f'buffer_store_dwordx4 {vr(LG,4)}, v{t[1]}, s[{S_WS}:{S_WS+3}], s{S_T0} offen sc1', [t[1]] + R(LG, 4), [], wide_store=R(LG, 4))
    fullexec()
    l_lin('v5f', S_WS, WS_V5F, V5F, 4096, 'sc1')
    l_flag(16, 17)
    a.wait_vm_tag('v5f'); publish(5, 8)
    l_wait_lds(LDA, 0, 4, 'e')
    l_poll(16, 17, 'b')
    l_lin(('i', 4), S_WS, WS_IMGT, I0B, IMG0, 'sc1')
    l_lin(('i', 4), S_WS, WS_EWT + 512, EWT + 512, 128, 'sc1')
    a.wait_vm_all(); publish(6, 8); stamp('i5')
    S(f's_lshl_b32 s{S_T2}, s2, 10'); S(f's_add_u32 s{S_T2}, s{S_T2}, {WS_INB}')
    S(f's_mov_b32 s{S_T0}, 0')
    execn(32)
    a.label('L_inb')
    a.raw(f'buffer_load_dwordx4 {vr(LG+8,4)}, v{V_L16}, s[{S_WS}:{S_WS+3}], s{S_T2} offen sc1', kind='vmem')
    S(f's_add_u32 s{S_T0}, s{S_T0}, 1')
    a.raw('s_waitcnt vmcnt(0)', kind='wait')
    a.raw(f'v_cmp_ne_u32 vcc, v{LN}, v{LG+9}', kind='valu')
    a.raw(f'v_cmp_ne_u32 s[{S_MT}:{S_MT+1}], v{LN}, v{LG+11}', kind='valu')
    a.raw('s_nop 1', kind='nop')
    a.raw(f's_or_b64 vcc, vcc, s[{S_MT}:{S_MT+1}]', kind='salu')
    a.raw('s_cbranch_vccz L_inbok', kind='branch')
    a.raw(f's_sleep {PSLEEP}')
    S(f's_cmp_lt_u32 s{S_T0}, 0x40000')
    a.raw('s_cbranch_scc1 L_inb', kind='branch')
    a.label('L_inbok')
    V(f'v_mov_b32 v{LG+9}, v{LG+10}', [LG+10], [LG+9])
    V(f'v_lshlrev_b32 v{t[0]}, 3, v{V_LANE}', [V_LANE], [t[0]])
    V(f'v_add_u32 v{t[0]}, {PD}, v{t[0]}', [t[0]], [t[0]])
    a.ds(f'ds_write_b64 v{t[0]}, {vr(LG+8,2)}', [t[0], LG+8, LG+9])
    publish(7, 8)
    dbg_out()
    a.label('L_end')
    a.raw('s_endpgm')
    a.stamp_names = (names_c, a.stamp_names)
    return a

HEADER = open('cdna_kernels/' + NAME + '.s.ref').read().split('; Override launch geometry')[0]
def wrap(a):
    s = HEADER
    s += f'; @launch grid=(256,1,1) block=(576,1,1) lds={LDS_TOTAL}\n'
    s += '.amdgcn_target "amdgcn-amd-amdhsa--gfx950"\n.text\n'
    s += f'.globl {NAME}_kernel\n.p2align 8\n.type {NAME}_kernel,@function\n{NAME}_kernel:\n'
    s += a.text()
    s += f'''.section .rodata,"a"
.p2align 6
.amdhsa_kernel {NAME}_kernel
  .amdhsa_next_free_vgpr {NV}
  .amdhsa_next_free_sgpr 102
  .amdhsa_accum_offset {NV}
  .amdhsa_group_segment_fixed_size 0
  .amdhsa_kernarg_size 88
  .amdhsa_user_sgpr_count 2
  .amdhsa_user_sgpr_kernarg_segment_ptr 1
  .amdhsa_system_sgpr_workgroup_id_x 1
  .amdhsa_float_denorm_mode_32 3
.end_amdhsa_kernel
'''
    return s

if __name__ == '__main__':
    import argparse
    ap = argparse.ArgumentParser()
    ap.add_argument('out', nargs='?', default='cdna_kernels/' + NAME + '.s')
    ap.add_argument('--dbg', type=int, default=0)
    ap.add_argument('--prio', type=int, default=1)
    ap.add_argument('--splitepi', type=int, default=1)
    args = ap.parse_args()
    a = gen(debug=args.dbg, PRIO=args.prio, SPLITEPI=args.splitepi)
    open(args.out, 'w').write(wrap(a))
    print(a.count, 'lines', len(a.lines), a.stamp_names)
```

```python
import sys, struct
sys.path.insert(0, 'gen')
from asmfw import *

NAME = 'standalone__deep_cross_xdeepfm__recsys'
IMG = 35776; IMG0 = 19136
U = [IMG * i for i in range(4)]
CH = 7168
CADDR = [121600 + CH * i for i in range(3)] + [CH * i for i in range(10)]
TAB = 71680; IDXB = 103680; SCR = 110336
I0B = 143104 - IMG0
X16 = 143104
V5F = 156672; EWT = 160768; POOLW = 161408; BW = 162048
PDL = V5F
PD = BW
SYNC = 163712
LDS_TOTAL = 163840
WS_IMG0 = 0
WS_IMG = [None] + [19200 + IMG * i for i in range(4)]
WS_V5F = 19200 + 4 * IMG
WS_EWT = WS_V5F + 4096
WS_IMGT = WS_IMG[4]; WS_V5R = WS_EWT + 1024
WS_INB = 0x40000
WS_SIZE = WS_INB + 256 * 1024
NP0 = 7; NP1 = 24; NP2 = 31; NPT0 = 32; NPT = 39
S_IDX, S_TAB, S_WC, S_WCO, S_W1, S_B1, S_W2, S_BO, S_OUT, S_DBGF, S_WS = [24 + 4 * i for i in range(11)]
S_WAVE = 68; S_T0 = 69; S_T1 = 70; S_T2 = 71; S_T3 = 72; S_T4 = 73
S_HI = 74; S_C = 76; S_K7FFF = 77; S_K8000 = 78; S_Q = 79; S_K2 = 80; S_G = 81; S_HALF = 82
S_ROT = 83; S_MT = 84; S_PID = 86; S_CB = 87; S_XT = 88; S_T0L = 89; S_KO = 90; S_KN = 91; S_SET = 92; S_LAST = 93
SM = [4, 6, 8, 10, 12, 14, 16]
V_LANE = 1
V_T = list(range(2, 12))
V_STAMP = 12; V_E = 13; V_EX = 14; V_ACC = 15
P16 = 16; V_SH = 30; V_L16 = 31
XQ = 32; V_TRADDR = 39; D = 40
ZB = [56, 60, 64]; ZL = 68
AB = [72, 76, 80, 84, 4, 8]; NAB = 6; PFD = 5
PW = 88; EW = 102
V_PWADDR = 101; V_DBADDR = 115
DACC = 116; DA = 132; DB = 148
QH = 152
V_AADDR = [159, 160]; V_AADDR0 = 161; V_DAADDR = 162; V_DBK = 163; V_BWADDR = 164; V_SYNC = 165; V_RDY = 166; V_DONEA = 167
G = DACC; UA = DA
PBT = 68
VT1 = 158; VT2 = 159; VT3 = 160
DA2 = 88; DB2 = 104
NV = 168

import os
PX = int(os.environ.get('PX', '0'))
NL = int(os.environ.get('NL', '5'))
REP = int(os.environ.get('REP', '0'))
PSLEEP = int(os.environ.get('PSLEEP', '6'))
TOUCH = 0
XP = os.environ.get('XP', '')
KNOP = int(os.environ.get('KNOP', '0'))
FINSTEP = int(os.environ.get('FINSTEP', '2'))
DG = int(os.environ.get('DG', '1'))
BPRIO = int(os.environ.get('BPRIO', '0'))
EPRIO = os.environ.get('EPRIO')
TABP = int(os.environ.get('TABP', '1'))
SETS = os.environ.get('SETS', '0')
LB0 = int(os.environ.get('LB0', '6'))
KPR = int(os.environ.get('KPR', '0'))
ELW = int(os.environ.get('ELW', '7'))
CPR = int(os.environ.get('CPR', '3'))
CDLY = int(os.environ.get('CDLY', '1'))
LBAR = int(os.environ.get('LBAR', '7'))
def fb(x): return '0x%08x' % struct.unpack('<I', struct.pack('<f', x))[0]

def gen(debug=None, PRIO=1, SPLITEPI=1, LPRE=24):
    a = Asm()
    V = a.valu; S = a.salu
    t = V_T
    stamp_n = [0]
    a.stamp_names = []
    def stamp(name=''):
        if not debug: return
        a.wait_lds_all()
        a.raw('s_memtime s[98:99]')
        a.raw('s_waitcnt lgkmcnt(0)', kind='wait')
        a.valu(f'v_writelane_b32 v{V_STAMP}, s98, {stamp_n[0]}', [], [V_STAMP])
        a.stamp_names.append(name)
        stamp_n[0] += 1
    def execn(n):
        if n <= 32: S(f's_mov_b64 exec, 0x{(1<<n)-1:x}')
        else: S(f's_mov_b32 exec_hi, 0x{(1<<(n-32))-1:x}')
    def fullexec(): S('s_mov_b64 exec, -1')
    def rawbar(): a.raw('s_barrier', kind='barrier')
    def dbg_out():
        if not debug: return
        fullexec()
        stamp('end')
        a.valu(f'v_writelane_b32 v{V_STAMP}, s100, 62', [], [V_STAMP])
        a.raw('s_memrealtime s[98:99]')
        a.raw('s_waitcnt lgkmcnt(0)', kind='wait')
        a.valu(f'v_writelane_b32 v{V_STAMP}, s98, 63', [], [V_STAMP])
        V(f'v_lshlrev_b32 v{t[0]}, 2, v0', [0], [t[0]])
        S(f's_mul_i32 s{S_T0}, s2, 3072'); S(f's_add_u32 s{S_T0}, s{S_T0}, 0x100000')
        a.vmem(f'buffer_store_dword v{V_STAMP}, v{t[0]}, s[{S_WS}:{S_WS+3}], s{S_T0} offen', [V_STAMP, t[0]], [])
    S('s_cmp_ge_u32 s2, 256')
    a.raw('s_cbranch_scc1 L_end', kind='branch')
    if debug:
        a.raw('s_memrealtime s[100:101]')
        stamp('start')
    if REP:
        a.raw('s_memtime s[92:93]'); a.raw('s_memrealtime s[94:95]')
    a.raw('s_load_dwordx16 s[4:19], s[0:1], 0')
    a.raw('s_load_dwordx4 s[20:23], s[0:1], 64')
    a.raw(f's_load_dwordx2 s[{S_WS}:{S_WS+1}], s[0:1], 80')
    V(f'v_and_b32 v{V_LANE}, 63, v0', [0], [V_LANE])
    V(f'v_lshrrev_b32 v{t[0]}, 6, v0', [0], [t[0]])
    V(f'v_readfirstlane_b32 s{S_WAVE}, v{t[0]}', [t[0]], [], swrites=[S_WAVE], readlane=True)
    V(f'v_lshlrev_b32 v{t[1]}, 2, v{V_LANE}', [V_LANE], [t[1]])
    V(f'v_add_u32 v{t[1]}, {SYNC}, v{t[1]}', [t[1]], [t[1]])
    V(f'v_mov_b32 v{t[2]}, 0', [], [t[2]])
    S(f's_cmp_lg_u32 s{S_WAVE}, 0', sreads=[S_WAVE])
    a.raw('s_cbranch_scc1 L_noinit', kind='branch')
    execn(32)
    a.raw(f'ds_write_b32 v{t[1]}, v{t[2]}', kind='ds')
    fullexec()
    a.label('L_noinit')
    S(f's_mov_b32 s{S_K7FFF}, 0x7fff7fff'); S(f's_mov_b32 s{S_K8000}, 0x80008000'); S(f's_mov_b32 s{S_HALF}, 0x38003800')
    S(f's_mov_b32 s{S_HI}, 0'); S(f's_mov_b32 s{S_HI+1}, -1')
    V(f'v_lshlrev_b32 v{V_L16}, 4, v{V_LANE}', [V_LANE], [V_L16])
    S(f's_lshr_b32 s{S_T0}, s2, 3'); S(f's_and_b32 s{S_Q}, s{S_T0}, 3'); S(f's_lshr_b32 s{S_T1}, s{S_T0}, 2')
    S(f's_lshr_b32 s{S_ROT}, s{S_T1}, 1'); S(f's_add_u32 s{S_ROT}, s{S_ROT}, s{S_T1}')
    S(f's_andn2_b32 s{S_CB}, s2, 0x18')
    S(f's_mov_b32 s{S_SET}, 0'); S(f's_and_b32 s{S_T1}, s2, 7'); S(f's_lshl_b32 s{S_PID}, s{S_T1}, 5'); S(f's_add_u32 s{S_PID}, s{S_PID}, s{S_T0}')
    S(f's_cmp_{"ge" if DG else "lt"}_u32 s{S_WAVE}, 4', sreads=[S_WAVE]); S(f's_cselect_b32 s{S_PID}, 255, s{S_PID}')
    S(f's_cmp_eq_u32 s{S_WAVE}, 8'); S(f's_cselect_b32 s{S_PID}, 255, s{S_PID}')
    S(f's_and_b32 s{S_G}, s{S_WAVE}, 3'); S(f's_lshl_b32 s{S_T1}, s{S_PID}, 2'); S(f's_add_u32 s{S_G}, s{S_G}, s{S_T1}')
    S(f's_min_u32 s{S_T0L}, s{S_Q}, 1'); S(f's_mul_i32 s{S_T1}, s{S_Q}, 6'); S(f's_add_u32 s{S_T0L}, s{S_T0L}, s{S_T1}')
    S(f's_cmp_lt_u32 s{S_WAVE}, 4'); S(f's_cselect_b32 s{S_XT}, 1, 0'); S(f's_cmp_lt_u32 s{S_Q}, 2'); S(f's_cselect_b32 s{S_XT}, s{S_XT}, 0')
    a.raw('s_waitcnt lgkmcnt(0)', kind='wait')
    rawbar()
    sizes = [425984, 32000, 210912, 312, 346112, 832, 832, 2, 8192, 256]
    srds = [S_IDX, S_TAB, S_WC, S_WCO, S_W1, S_B1, S_W2, S_BO, S_OUT, S_DBGF]
    for i in range(10):
        sb, sz = srds[i], sizes[i]
        S(f's_mov_b32 s{sb}, s{4+2*i}'); S(f's_and_b32 s{sb+1}, s{5+2*i}, 0xffff')
        S(f's_mov_b32 s{sb+2}, {sz}'); S(f's_mov_b32 s{sb+3}, 0x00020000')
    S(f's_and_b32 s{S_WS+1}, s{S_WS+1}, 0xffff'); S(f's_mov_b32 s{S_WS+2}, {0x1000000 if debug else WS_SIZE}'); S(f's_mov_b32 s{S_WS+3}, 0x00020000')
    S(f's_cmp_ge_u32 s{S_WAVE}, 8')
    a.raw('s_cbranch_scc1 L_loader', kind='branch')

    def dpp_max(m):
        for d in ('row_shr:1 row_mask:0xf', 'row_shr:2 row_mask:0xf', 'row_shr:4 row_mask:0xf', 'row_shr:8 row_mask:0xf', 'row_bcast:15 row_mask:0xa', 'row_bcast:31 row_mask:0xc'):
            V(f'v_max_u32_dpp v{m}, v{m}, v{m} {d} bank_mask:0xf', [m], [m], dpp=True)
    def rho_salu(sh, st1, st2, clamp=True):
        S(f's_cmp_ge_u32 s{sh}, 13'); S(f's_cselect_b32 s{st1}, 1, 0')
        S(f's_mul_i32 s{st2}, s{st1}, 13'); S(f's_sub_u32 s{sh}, s{sh}, s{st2}')
        S(f's_lshl_b32 s{st2}, s{st1}, 2')
        S(f's_lshl_b32 s{st1}, s{st1}, 4'); S(f's_add_u32 s{st1}, s{st1}, s{sh}')
        S(f's_add_u32 s{st2}, s{st2}, s{sh}'); S(f's_and_b32 s{sh}, s{sh}, 12'); S(f's_add_u32 s{sh}, s{sh}, s{st2}')
        if clamp: S(f's_add_u32 s{sh}, s{sh}, 1'); S(f's_cmp_eq_u32 s{sh}, 29'); S(f's_cselect_b32 s{sh}, 0, s{sh}')

    V(f'v_mov_b32 v{V_SYNC}, {SYNC}', [], [V_SYNC])
    S(f's_lshl_b32 s{S_T0}, s{S_WAVE}, 12'); S(f's_add_u32 m0, s{S_T0}, {TAB}', m0=True)
    for k in range(4):
        if k == 3:
            S(f's_cmp_eq_u32 s{S_WAVE}, 7'); S(f's_cselect_b64 exec, 0xffff, -1')
        a.vmem(f'buffer_load_dwordx4 v{V_L16}, s[{S_TAB}:{S_TAB+3}], s{S_T0} offen offset:{1024*k} lds', [V_L16], [], dma=True)
    S(f's_lshr_b32 s{S_T0}, s{S_WAVE}, 1'); S(f's_add_u32 s{S_T0}, s{S_T0}, s{S_Q}'); S(f's_and_b32 s{S_T0}, s{S_T0}, 3')
    S(f's_lshl_b32 s{S_T0}, s{S_T0}, 3'); S(f's_or_b32 s{S_T0}, s{S_T0}, s{S_CB}'); S(f's_lshl_b32 s{S_T0}, s{S_T0}, 1')
    S(f's_and_b32 s{S_T1}, s{S_WAVE}, 1'); S(f's_add_u32 s{S_T0}, s{S_T0}, s{S_T1}'); S(f's_mul_i32 s{S_T0}, s{S_T0}, 832')
    S(f's_mul_i32 s{S_T1}, s{S_WAVE}, 832'); S(f's_add_u32 m0, s{S_T1}, {IDXB}', m0=True)
    S('s_mov_b32 exec_lo, -1'); S('s_mov_b32 exec_hi, 0xfffff')
    a.vmem(f'buffer_load_dwordx4 v{V_L16}, s[{S_IDX}:{S_IDX+3}], s{S_T0} offen lds', [V_L16], [], dma=True)
    S(f's_cmp_lg_u32 s{S_WAVE}, 5'); a.cond_begin('s_cbranch_scc1 L_nb1', 'L_nb1')
    S(f's_mov_b32 m0, {BW}', m0=True)
    a.vmem(f'buffer_load_dwordx4 v{V_L16}, s[{S_B1}:{S_B1+3}], 0 offen lds', [V_L16], [], dma=True)
    S(f's_mov_b32 m0, {BW + 832}', m0=True)
    a.vmem(f'buffer_load_dwordx4 v{V_L16}, s[{S_W2}:{S_W2+3}], 0 offen lds', [V_L16], [], dma=True)
    a.cond_end()
    fullexec()
    PWT = 136; BIGR = 137
    V(f'v_mov_b32 v{BIGR}, 0x7f000000', [], [BIGR])
    V(f'v_lshrrev_b32 v{t[0]}, 4, v0', [0], [t[0]])
    V(f'v_and_b32 v{t[1]}, 15, v0', [0], [t[1]])
    V(f'v_mad_u32_u24 v{t[0]}, v{t[0]}, 13, v{t[1]}', [t[0], t[1]], [t[0]])
    V(f'v_lshlrev_b32 v{t[0]}, 1, v{t[0]}', [t[0]], [t[0]])
    V(f'v_cmp_gt_u32 vcc, 13, v{t[1]}', [t[1]], [], swrites=['vcc'])
    V(f'v_cndmask_b32 v{t[0]}, v{BIGR}, v{t[0]}, vcc', [BIGR, t[0]], [t[0]], sreads=['vcc'])
    S(f's_cmp_gt_u32 s{S_WAVE}, 2')
    a.cond_begin('s_cbranch_scc1 L_nopw', 'L_nopw')
    a.vmem(f'buffer_load_ushort v{PWT}, v{t[0]}, s[{S_WCO}:{S_WCO+3}], 0 offen', [t[0]], [PWT])
    a.cond_end()
    V(f'v_mov_b32 v{t[2]}, 0', [], [t[2]])
    a.vmem(f'buffer_load_ushort v{V_ACC}, v{t[2]}, s[{S_BO}:{S_BO+3}], 0 offen', [t[2]], [V_ACC])
    def sym_addr(p, srow, wsbase):
        V(f'v_lshrrev_b32 v{p[3]}, 1, v{p[0]}', [p[0]], [p[3]])
        V(f'v_and_b32 v{p[4]}, 1, v{p[0]}', [p[0]], [p[4]])
        V(f'v_subrev_u32 v{p[5]}, 1, v{p[3]}', [p[3]], [p[5]])
        V(f'v_mul_i32_i24 v{p[5]}, v{p[5]}, v{p[3]}', [p[5], p[3]], [p[5]])
        V(f'v_lshrrev_b32 v{p[5]}, 1, v{p[5]}', [p[5]], [p[5]])
        V(f'v_mul_u32_u24 v{p[6]}, 12, v{p[3]}', [p[3]], [p[6]])
        V(f'v_sub_u32 v{p[6]}, v{p[6]}, v{p[5]}', [p[6], p[5]], [p[6]])
        V(f'v_mul_u32_u24 v{p[5]}, 92, v{p[4]}', [p[4]], [p[5]])
        V(f'v_add_u32 v{p[6]}, v{p[6]}, v{p[5]}', [p[6], p[5]], [p[6]])
        V(f'v_lshl_add_u32 v{p[6]}, v{p[1]}, 1, v{p[6]}', [p[1], p[6]], [p[6]])
        V(f'v_lshlrev_b32 v{p[6]}, 2, v{p[6]}', [p[6]], [p[6]])
        V(f'v_add_u32 v{p[6]}, s{S_T3}, v{p[6]}', [p[6]], [p[6]])
        V(f'v_lshlrev_b32 v{p[5]}, 1, v{p[1]}', [p[1]], [p[5]])
        V(f'v_sub_u32 v{p[3]}, v{p[3]}, v{p[5]}', [p[3], p[5]], [p[3]])
        V(f'v_cmp_gt_u32 vcc, 26, v{p[0]}', [p[0]], [], swrites=['vcc'])
        V(f'v_mov_b32 v{p[5]}, 100', [], [p[5]])
        V(f'v_cndmask_b32 v{p[3]}, v{p[5]}, v{p[3]}, vcc', [p[5], p[3]], [p[3]], sreads=['vcc'])
        V(f'v_add_u32 v{p[8]}, s{S_T3}, v{V_L16}', [V_L16], [p[8]])
        V(f'v_cmp_le_u32 vcc, 23, v{V_LANE}', [V_LANE], [], swrites=['vcc'])
        V(f'v_cndmask_b32 v{p[9]}, 0, 1, vcc', [], [p[9]], sreads=['vcc'])
        S(f's_mov_b32 s{S_T0}, s{srow}')
        rho_salu(S_T0, S_T1, S_T4)
        V(f'v_mul_u32_u24 v{p[9]}, {25*368}, v{p[9]}', [p[9]], [p[9]])
        V(f'v_add_u32 v{p[9]}, v{p[9]}, v{V_L16}', [p[9], V_L16], [p[9]])
        S(f's_mul_i32 s{S_T0}, s{S_T0}, 368'); S(f's_add_u32 s{S_T0}, s{S_T0}, {wsbase}')

    def sym_out(p, SD, MF, IF, ewl):
        m = p[10]
        V(f'v_max3_f32 v{m}, |v{SD}|, |v{SD+1}|, |v{SD+2}|', R(SD, 3), [m])
        for r in range(3, 15, 2):
            V(f'v_max3_f32 v{m}, |v{SD+r}|, |v{SD+r+1}|, v{m}', [SD+r, SD+r+1, m], [m])
        dpp_max(m)
        V(f'v_frexp_exp_i32_f32 v{m}, v{m}', [m], [m])
        V(f'v_readlane_b32 s{S_T4}, v{m}, 63', [m], [], swrites=[S_T4], readlane=True)
        S(f's_sub_i32 s{S_C}, 15, s{S_T4}', sreads=[S_T4])
        S(f's_sub_i32 s{S_T4}, s{S_T4}, 15')
        for r in range(14): V(f'v_ldexp_f32 v{SD+r}, v{SD+r}, s{S_C}', [SD+r], [SD+r])
        for rp in range(7):
            V(f'v_cvt_pk_f16_f32 v{MF+rp}, v{SD+2*rp}, v{SD+2*rp+1}', [SD+2*rp, SD+2*rp+1], [MF+rp])
        V(f'v_mov_b32 v{p[7]}, 0', [], [p[7]])
        V(f'v_mov_b32 v{p[13]}, s{S_T3}', [], [p[13]])
        a.ds(f'ds_write_b32 v{p[13]}, v{p[7]} offset:364', [p[13], p[7]])
        a.ds(f'ds_write_b32 v{p[13]}, v{p[7]} offset:732', [p[13], p[7]])
        for rp in range(7):
            aa, bb = rp >> 1, rp & 1
            V(f'v_cmp_ge_i32 vcc, {4*aa+bb}, v{p[3]}', [p[3]], [], swrites=['vcc'])
            if aa == 3: S('s_mov_b32 vcc_hi, 0', sreads=['vcc'])
            S('s_mov_b64 exec, vcc', sreads=['vcc'])
            a.ds(f'ds_write_b32 v{p[6]}, v{MF+rp} offset:{4*(4*aa+bb)}', [p[6], MF+rp])
            fullexec()
        a.raw('s_waitcnt lgkmcnt(0)', kind='wait')
        a.ds(f'ds_read_b128 {vr(IF,4)}, v{p[8]}', [p[8]], R(IF, 4))
        execn(46)
        a.vmem(f'buffer_store_dwordx4 {vr(IF,4)}, v{p[9]}, s[{S_WS}:{S_WS+3}], s{S_T0} offen sc1', [p[9]] + R(IF, 4), [], wide_store=R(IF, 4))
        fullexec()
        S(f's_lshl_b32 s{S_T1}, s{S_T1}, 2'); S(f's_add_u32 s{S_T1}, s{S_T1}, {WS_EWT + 128 * ewl}')
        V(f'v_mov_b32 v{p[11]}, s{S_T4}', [], [p[11]]); V(f'v_mov_b32 v{p[12]}, s{S_T1}', [], [p[12]])
        S('s_mov_b64 exec, 1')
        a.vmem(f'buffer_store_dword v{p[11]}, v{p[12]}, s[{S_WS}:{S_WS+3}], 0 offen sc1', [p[11], p[12]], [])

    S(f's_cmp_ge_u32 s{S_PID}, {NP2}')
    a.cond_begin('s_cbranch_scc1 L_noprod', 'L_noprod')
    p = [72 + i for i in range(16)]
    def skipchk():
        a.raw('s_setprio 3')
        V(f'v_mov_b32 v{t[1]}, 1', [], [t[1]]); S('s_mov_b64 exec, 1'); a.ds(f'ds_add_u32 v{V_SYNC}, v{t[1]} offset:24', [V_SYNC, t[1]]); fullexec()
    S(f's_cmp_ge_u32 s{S_G}, 68'); a.raw('s_cbranch_scc1 L_prodv5', kind='branch')
    S(f's_cmp_ge_u32 s{S_G}, 67'); a.raw('s_cbranch_scc1 L_noprod', kind='branch')
    S(f's_cmp_ge_u32 s{S_G}, 28'); a.raw('s_cbranch_scc1 L_prodrow', kind='branch')
    S(f's_cmp_ge_u32 s{S_G}, 26'); a.raw('s_cbranch_scc1 L_noprod', kind='branch')
    MF = 116; IF = 124; SD = 40
    V(f'v_and_b32 v{p[0]}, 31, v{V_LANE}', [V_LANE], [p[0]])
    V(f'v_lshrrev_b32 v{p[1]}, 5, v{V_LANE}', [V_LANE], [p[1]])
    V(f'v_mul_u32_u24 v{p[2]}, 52, v{p[0]}', [p[0]], [p[2]])
    V(f'v_lshl_add_u32 v{p[2]}, v{p[1]}, 4, v{p[2]}', [p[1], p[2]], [p[2]])
    S(f's_mul_i32 s{S_T2}, s{S_G}, 1352')
    a.vmem(f'buffer_load_dwordx4 {vr(MF,4)}, v{p[2]}, s[{S_WC}:{S_WC+3}], s{S_T2} offen', [p[2]], R(MF, 4))
    a.vmem(f'buffer_load_dwordx4 {vr(MF+4,4)}, v{p[2]}, s[{S_WC}:{S_WC+3}], s{S_T2} offen offset:32', [p[2]], R(MF+4, 4))
    V(f'v_lshlrev_b32 v{p[3]}, 3, v{p[1]}', [p[1]], [p[3]])
    V(f'v_sub_u32 v{p[3]}, v{p[0]}, v{p[3]}', [p[0], p[3]], [p[3]])
    V(f'v_and_b32 v{p[4]}, 1, v{p[3]}', [p[3]], [p[4]])
    V(f'v_lshlrev_b32 v{p[4]}, 4, v{p[4]}', [p[4]], [p[4]])
    V(f'v_mov_b32 v{p[5]}, 0x3f80', [], [p[5]])
    V(f'v_lshlrev_b32 v{p[4]}, v{p[4]}, v{p[5]}', [p[4], p[5]], [p[4]])
    V(f'v_ashrrev_i32 v{p[3]}, 1, v{p[3]}', [p[3]], [p[3]])
    for ks in range(2):
        for r in range(4):
            V(f'v_cmp_eq_u32 vcc, {8*ks + r}, v{p[3]}', [p[3]], [], swrites=['vcc'])
            V(f'v_cndmask_b32 v{IF+4*ks+r}, 0, v{p[4]}, vcc', [p[4]], [IF+4*ks+r], sreads=['vcc'])
    S(f's_lshl_b32 s{S_T3}, s{S_WAVE}, 10'); S(f's_add_u32 s{S_T3}, s{S_T3}, {SCR}')
    sym_addr(p, S_G, WS_IMG0)
    if CDLY: rawbar()
    a.raw('s_waitcnt vmcnt(0)', kind='wait')
    skipchk()
    a.mfma('v_mfma_f32_32x32x16_bf16', SD, MF, IF, None, 8, 16)
    a.mfma('v_mfma_f32_32x32x16_bf16', SD, MF+4, IF+4, SD, 8, 16)
    a.mfma('v_mfma_f32_32x32x16_bf16', SD, IF, MF, SD, 8, 16)
    a.mfma('v_mfma_f32_32x32x16_bf16', SD, IF+4, MF+4, SD, 8, 16)
    sym_out(p, SD, MF, IF, 0)
    a.raw('s_branch L_prodfin', kind='branch')
    a.label('L_prodrow')
    S(f's_sub_u32 s{S_G}, s{S_G}, 28'); S(f's_lshl_b32 s{S_G}, s{S_G}, 1')
    PR = 40; PA = 88
    S(f's_mul_i32 s{S_T2}, s{S_G}, 1352'); S(f's_add_u32 s{S_T2}, s{S_T2}, 35152')
    V(f'v_cmp_le_u32 vcc, 43, v{V_LANE}', [V_LANE], [], swrites=['vcc'])
    V(f'v_cndmask_b32 v{p[0]}, 0, 1, vcc', [], [p[0]], sreads=['vcc'])
    V(f'v_mul_u32_u24 v{p[2]}, 12, v{p[0]}', [p[0]], [p[2]])
    V(f'v_sub_u32 v{p[2]}, v{V_L16}, v{p[2]}', [V_L16, p[2]], [p[2]])
    V(f'v_min_u32 v{p[3]}, 21, v{V_LANE}', [V_LANE], [p[3]])
    V(f'v_lshlrev_b32 v{p[4]}, 4, v{p[3]}', [p[3]], [p[4]])
    for rr in range(2):
        a.vmem(f'buffer_load_dwordx4 {vr(PR+8*rr,4)}, v{p[2]}, s[{S_WC}:{S_WC+3}], s{S_T2} offen offset:{1352*rr}', [p[2]], R(PR+8*rr, 4))
        a.vmem(f'buffer_load_dwordx4 {vr(PR+8*rr+4,4)}, v{p[4]}, s[{S_WC}:{S_WC+3}], s{S_T2} offen offset:{1352*rr+1012}', [p[4]], R(PR+8*rr+4, 4))
    V(f'v_mul_u32_u24 v{p[7]}, {25*688}, v{p[0]}', [p[0]], [p[7]])
    V(f'v_add_u32 v{p[7]}, v{p[7]}, v{V_L16}', [p[7], V_L16], [p[7]])
    V(f'v_add_u32 v{p[8]}, {26*688+336}, v{p[4]}', [p[4]], [p[8]])
    S(f's_mul_i32 s{S_T1}, s{S_G}, 2521'); S(f's_lshr_b32 s{S_T1}, s{S_T1}, 16')
    for rr in range(2):
        so, se = 4 + 2*rr, 5 + 2*rr
        S(f's_mul_i32 s{S_T3}, s{S_T1}, 26'); S(f's_sub_u32 s{S_T0}, s{S_G}, s{S_T3}'); S(f's_add_u32 s{S_T0}, s{S_T0}, {rr}')
        rho_salu(S_T0, S_T3, S_T4)
        S(f's_mul_i32 s{S_T0}, s{S_T0}, 688'); S(f's_mul_i32 s{so}, s{S_T1}, {IMG}'); S(f's_add_u32 s{so}, s{so}, s{S_T0}'); S(f's_add_u32 s{so}, s{so}, {WS_IMG[1]}')
        S(f's_lshl_b32 s{se}, s{S_T1}, 5'); S(f's_add_u32 s{se}, s{se}, s{S_T3}'); S(f's_lshl_b32 s{se}, s{se}, 2'); S(f's_add_u32 s{se}, s{se}, {WS_EWT + 128}')
    if CDLY: rawbar()
    a.raw('s_waitcnt vmcnt(0)', kind='wait')
    skipchk()
    for i in range(16): V(f'v_and_b32 v{PA+i}, s{S_K7FFF}, v{PR+i}', [PR+i], [PA+i])
    m = p[11]
    V(f'v_pk_max_u16 v{m}, v{PA}, v{PA+1}', R(PA, 2), [m])
    for i in range(2, 16, 2): V(f'v_pk_maximum3_f16 v{m}, v{m}, v{PA+i}, v{PA+i+1}', [m, PA+i, PA+i+1], [m])
    V(f'v_max_u16_sdwa v{m}, v{m}, v{m} dst_sel:DWORD dst_unused:UNUSED_PAD src0_sel:WORD_1 src1_sel:WORD_0', [m], [m], opsel=True)
    dpp_max(m)
    V(f'v_readlane_b32 s{S_T0}, v{m}, 63', [m], [], swrites=[S_T0], readlane=True)
    S(f's_lshr_b32 s{S_T0}, s{S_T0}, 7', sreads=[S_T0], swrites=[S_T0])
    S(f's_sub_i32 s{S_T0}, s{S_T0}, 30'); S(f's_max_i32 s{S_T0}, s{S_T0}, 0')
    S(f's_mul_i32 s{S_C}, s{S_T0}, 0x800080'); S(f's_sub_i32 s{S_T0}, s{S_T0}, 112')
    for i in range(16): V(f'v_pk_sub_u16 v{PA+i}, v{PA+i}, s{S_C} clamp', [PA+i], [PA+i])
    for i in range(16): V(f'v_lshlrev_b32 v{PA+i}, 3, v{PA+i}', [PA+i], [PA+i])
    for i in range(16): V(f'v_bfi_b32 v{PA+i}, s{S_K8000}, v{PR+i}, v{PA+i}', [PA+i, PR+i], [PA+i])
    V(f'v_mov_b32 v{p[9]}, s{S_T0}', [], [p[9]]); V(f'v_mov_b32 v{p[10]}, 0', [], [p[10]])
    for rr in range(2):
        a.vmem(f'buffer_store_dwordx4 {vr(PA+8*rr,4)}, v{p[7]}, s[{S_WS}:{S_WS+3}], s{4+2*rr} offen sc1', [p[7]] + R(PA+8*rr, 4), [], wide_store=R(PA+8*rr, 4))
    execn(22)
    for rr in range(2):
        a.vmem(f'buffer_store_dwordx4 {vr(PA+8*rr+4,4)}, v{p[8]}, s[{S_WS}:{S_WS+3}], s{4+2*rr} offen sc1', [p[8]] + R(PA+8*rr+4, 4), [], wide_store=R(PA+8*rr+4, 4))
    S('s_mov_b64 exec, 1')
    for rr in range(2):
        a.vmem(f'buffer_store_dword v{p[9]}, v{p[10]}, s[{S_WS}:{S_WS+3}], s{5+2*rr} offen sc1', [p[9], p[10]], [])
    a.raw('s_branch L_prodfin', kind='branch')
    a.label('L_prodv5')
    S(f's_sub_u32 s{S_T0}, s{S_G}, 68'); S(f's_cmp_ge_u32 s{S_T0}, 28'); S(f's_cselect_b32 s{S_T3}, 1, 0'); S(f's_mul_i32 s{S_T1}, s{S_T3}, 28'); S(f's_sub_u32 s{S_T0}, s{S_T0}, s{S_T1}')
    S(f's_cmp_ge_u32 s{S_T0}, 26'); a.raw('s_cbranch_scc1 L_noprod', kind='branch')
    LA = 40; LB = 44; AC = 48
    S(f's_mul_i32 s{S_T2}, s{S_T0}, 52'); S(f's_mul_i32 s{S_T1}, s{S_T3}, 35152'); S(f's_add_u32 s{S_T2}, s{S_T2}, s{S_T1}'); S(f's_add_u32 s{S_T2}, s{S_T2}, {4*35152}')
    V(f'v_lshrrev_b32 v{p[0]}, 2, v{V_LANE}', [V_LANE], [p[0]])
    V(f'v_and_b32 v{p[1]}, 3, v{V_LANE}', [V_LANE], [p[1]])
    V(f'v_mul_u32_u24 v{p[2]}, 0x548, v{p[0]}', [p[0]], [p[2]])
    V(f'v_lshl_add_u32 v{p[2]}, v{p[1]}, 4, v{p[2]}', [p[1], p[2]], [p[2]])
    a.vmem(f'buffer_load_dwordx4 {vr(LA,4)}, v{p[2]}, s[{S_WC}:{S_WC+3}], s{S_T2} offen', [p[2]], R(LA, 4))
    S(f's_add_u32 s{S_T2}, s{S_T2}, {16*1352}')
    a.vmem(f'buffer_load_dwordx4 {vr(LB,4)}, v{p[2]}, s[{S_WC}:{S_WC+3}], s{S_T2} offen', [p[2]], R(LB, 4))
    V(f'v_lshlrev_b32 v{p[3]}, 1, v{p[0]}', [p[0]], [p[3]])
    S(f's_mul_i32 s{S_T2}, s{S_T3}, 52')
    a.vmem(f'buffer_load_ushort v{p[4]}, v{p[3]}, s[{S_WCO}:{S_WCO+3}], s{S_T2} offen offset:208', [p[3]], [p[4]])
    a.vmem(f'buffer_load_ushort v{p[5]}, v{p[3]}, s[{S_WCO}:{S_WCO+3}], s{S_T2} offen offset:240', [p[3]], [p[5]])
    S(f's_lshl_b32 s{S_C}, s{S_T0}, 7'); S(f's_add_u32 s{S_C}, s{S_C}, {WS_V5R}')
    rho_salu(S_T0, S_T1, S_T4, clamp=False)
    S(f's_lshl_b32 s{S_T0}, s{S_T0}, 4'); S(f's_add_u32 s{S_T0}, s{S_T0}, {WS_V5F}')
    S(f's_cmp_eq_u32 s{S_T3}, 0'); S(f's_cselect_b32 s{S_T0}, s{S_T0}, s{S_C}'); S(f's_cselect_b32 s{S_T1}, 10, 4'); S(f's_movk_i32 s{S_T4}, 0x200'); S(f's_cselect_b32 s{S_T4}, s{S_T4}, 64')
    V(f'v_lshlrev_b32 v{p[6]}, s{S_T1}, v{p[1]}', [p[1]], [p[6]])
    V(f'v_add_u32 v{p[15]}, s{S_T4}, v{p[6]}', [p[6]], [p[15]])
    if CDLY: rawbar()
    a.raw('s_waitcnt vmcnt(0)', kind='wait')
    skipchk()
    V(f'v_cmp_ne_u32 vcc, 3, v{p[1]}', [p[1]], [], swrites=['vcc'])
    for r in (1, 2, 3):
        V(f'v_cndmask_b32 v{LA+r}, 0, v{LA+r}, vcc', [LA+r], [LA+r], sreads=['vcc'])
        V(f'v_cndmask_b32 v{LB+r}, 0, v{LB+r}, vcc', [LB+r], [LB+r], sreads=['vcc'])
    V(f'v_lshlrev_b32 v{p[4]}, 16, v{p[4]}', [p[4]], [p[4]])
    V(f'v_lshlrev_b32 v{p[5]}, 16, v{p[5]}', [p[5]], [p[5]])
    V(f'v_cmp_gt_u32 vcc, 10, v{p[0]}', [p[0]], [], swrites=['vcc'])
    V(f'v_cndmask_b32 v{p[5]}, 0, v{p[5]}, vcc', [p[5]], [p[5]], sreads=['vcc'])
    for r in range(4):
        V(f'v_lshlrev_b32 v{p[7]}, 16, v{LA+r}', [LA+r], [p[7]])
        V(f'v_and_b32 v{p[8]}, 0xffff0000, v{LA+r}', [LA+r], [p[8]])
        V(f'v_lshlrev_b32 v{p[9]}, 16, v{LB+r}', [LB+r], [p[9]])
        V(f'v_and_b32 v{p[10]}, 0xffff0000, v{LB+r}', [LB+r], [p[10]])
        V(f'v_mul_f32 v{AC+2*r}, v{p[4]}, v{p[7]}', [p[4], p[7]], [AC+2*r])
        V(f'v_mul_f32 v{AC+2*r+1}, v{p[4]}, v{p[8]}', [p[4], p[8]], [AC+2*r+1])
        V(f'v_fmac_f32 v{AC+2*r}, v{p[5]}, v{p[9]}', [AC+2*r, p[5], p[9]], [AC+2*r])
        V(f'v_fmac_f32 v{AC+2*r+1}, v{p[5]}, v{p[10]}', [AC+2*r+1, p[5], p[10]], [AC+2*r+1])
    for d in (4, 8):
        for e in range(8):
            V(f'v_add_f32_dpp v{AC+e}, v{AC+e}, v{AC+e} row_ror:{d} row_mask:0xf bank_mask:0xf', [AC+e], [AC+e], dpp=True)
    for op in ('v_permlane16_swap_b32', 'v_permlane32_swap_b32'):
        for e in range(8): V(f'v_mov_b32 v{p[7+e]}, v{AC+e}', [AC+e], [p[7+e]])
        for e in range(8): V(f'{op} v{AC+e}, v{p[7+e]}', [AC+e, p[7+e]], [AC+e, p[7+e]], permlane=True)
        for e in range(8): V(f'v_add_f32 v{AC+e}, v{AC+e}, v{p[7+e]}', [AC+e, p[7+e]], [AC+e])
    for r in range(4):
        V(f'v_cvt_pk_bf16_f32 v{LA+r}, v{AC+2*r}, v{AC+2*r+1}', [AC+2*r, AC+2*r+1], [LA+r])
        V(f'v_lshlrev_b32 v{p[7]}, 16, v{LA+r}', [LA+r], [p[7]])
        V(f'v_and_b32 v{p[8]}, 0xffff0000, v{LA+r}', [LA+r], [p[8]])
        V(f'v_sub_f32 v{p[7]}, v{AC+2*r}, v{p[7]}', [AC+2*r, p[7]], [p[7]])
        V(f'v_sub_f32 v{p[8]}, v{AC+2*r+1}, v{p[8]}', [AC+2*r+1, p[8]], [p[8]])
        V(f'v_cvt_pk_bf16_f32 v{LB+r}, v{p[7]}, v{p[8]}', [p[7], p[8]], [LB+r])
    execn(4)
    a.vmem(f'buffer_store_dwordx4 {vr(LA,4)}, v{p[6]}, s[{S_WS}:{S_WS+3}], s{S_T0} offen sc1', [p[6]] + R(LA, 4), [], wide_store=R(LA, 4))
    a.vmem(f'buffer_store_dwordx4 {vr(LB,4)}, v{p[15]}, s[{S_WS}:{S_WS+3}], s{S_T0} offen sc1', [p[15]] + R(LB, 4), [], wide_store=R(LB, 4))
    a.label('L_prodfin')
    fullexec()
    a.raw('s_branch L_afterprod', kind='branch')
    a.cond_end()
    if CDLY: rawbar()
    a.raw('s_waitcnt vmcnt(0)', kind='wait')
    V(f'v_mov_b32 v{t[1]}, 1', [], [t[1]]); S('s_mov_b64 exec, 1'); a.ds(f'ds_add_u32 v{V_SYNC}, v{t[1]} offset:24', [V_SYNC, t[1]]); fullexec()
    a.label('L_afterprod')
    a.vm = []
    a.raw('s_waitcnt lgkmcnt(0)', kind='wait'); a.lds = []
    a.nop(12)
    stamp('prod')
    def addr_setup():
        V(f'v_and_b32 v{t[0]}, 31, v{V_LANE}', [V_LANE], [t[0]])
        V(f'v_cmp_gt_u32 vcc, 28, v{t[0]}', [t[0]], [], swrites=['vcc'])
        V(f'v_addc_co_u32 v{t[4]}, vcc, 0, v{t[0]}, vcc', [t[0]], [t[4]], sreads=['vcc'], swrites=['vcc'])
        V(f'v_cmp_eq_u32 s[{S_MT}:{S_MT+1}], 28, v{t[0]}', [t[0]], [], swrites=[S_MT, S_MT+1])
        V(f'v_cndmask_b32 v{t[4]}, v{t[4]}, 0, s[{S_MT}:{S_MT+1}]', [t[4]], [t[4]], sreads=[S_MT])
        V(f'v_lshrrev_b32 v{t[1]}, 5, v{V_LANE}', [V_LANE], [t[1]])
        V(f'v_mad_u32_u24 v{t[4]}, v{t[1]}, 26, v{t[4]}', [t[1], t[4]], [t[4]])
        V(f'v_cmp_gt_u32 vcc, 25, v{t[0]}', [t[0]], [], swrites=['vcc'])
        S(f's_or_b64 vcc, vcc, s[{S_MT}:{S_MT+1}]', sreads=['vcc', S_MT])
        V(f'v_mov_b32 v{t[5]}, 0x40000', [], [t[5]])
        V(f'v_cndmask_b32 v{t[5]}, v{t[5]}, 0, vcc', [t[5]], [t[5]])
        S(f's_movk_i32 s{S_T0}, 0x2b0'); S(f's_movk_i32 s{S_T1}, 0x170')
        V(f'v_mad_u32_u24 v{V_AADDR[0]}, v{t[4]}, s{S_T0}, v{t[5]}', [t[4], t[5]], [V_AADDR[0]])
        V(f'v_add_u32 v{V_AADDR[1]}, {U[2]}, v{V_AADDR[0]}', [V_AADDR[0]], [V_AADDR[1]])
        V(f'v_mad_u32_u24 v{V_AADDR0}, v{t[4]}, s{S_T1}, v{t[5]}', [t[4], t[5]], [V_AADDR0])
        V(f'v_add_u32 v{V_AADDR0}, {I0B}, v{V_AADDR0}', [V_AADDR0], [V_AADDR0])
    V(f'v_and_b32 v{t[0]}, 31, v{V_LANE}', [V_LANE], [t[0]])
    V(f'v_lshlrev_b32 v{t[0]}, 2, v{t[0]}', [t[0]], [t[0]])
    S(f's_mul_i32 s{S_T0}, s{S_WAVE}, 1664'); S(f's_add_u32 s{S_T0}, s{S_T0}, {X16}')
    V(f'v_add_u32 v{V_TRADDR}, s{S_T0}, v{t[0]}', [t[0]], [V_TRADDR])
    V(f'v_lshrrev_b32 v{t[4]}, 4, v{V_LANE}', [V_LANE], [t[4]])
    V(f'v_lshrrev_b32 v{t[0]}, 2, v{V_LANE}', [V_LANE], [t[0]])
    V(f'v_mul_u32_u24 v{t[0]}, 224, v{t[0]}', [t[0]], [t[0]])
    V(f'v_and_b32 v{t[5]}, 3, v{V_LANE}', [V_LANE], [t[5]])
    V(f'v_lshl_add_u32 v{t[0]}, v{t[5]}, 3, v{t[0]}', [t[5], t[0]], [t[0]])
    V(f'v_mov_b32 v{V_DAADDR}, v{t[0]}', [t[0]], [V_DAADDR])
    V(f'v_add_u32 v{V_DBK}, 121600, v{V_DAADDR}', [V_DAADDR], [V_DBK])
    S(f's_lshl_b32 s{S_T1}, s{S_T0L}, 5'); S(f's_add_u32 s{S_T1}, s{S_T1}, {BW}')
    V(f'v_lshlrev_b32 v{t[4]}, 3, v{t[4]}', [t[4]], [t[4]])
    V(f'v_add_u32 v{V_BWADDR}, s{S_T1}, v{t[4]}', [t[4]], [V_BWADDR])
    V(f'v_mov_b32 v{V_SYNC}, {SYNC}', [], [V_SYNC])
    S(f's_lshl_b32 s{S_T0}, s{S_WAVE}, 2'); S(f's_add_u32 s{S_T0}, s{S_T0}, {SYNC + 32}')
    V(f'v_mov_b32 v{V_DONEA}, s{S_T0}', [], [V_DONEA])
    S(f's_cmp_gt_u32 s{S_WAVE}, 2')
    a.cond_begin('s_cbranch_scc1 L_nopw2', 'L_nopw2')
    V(f'v_lshlrev_b32 v{PWT}, 16, v{PWT}', [PWT], [PWT])
    V(f'v_lshlrev_b32 v{t[0]}, 2, v0', [0], [t[0]])
    V(f'v_add_u32 v{t[0]}, {POOLW}, v{t[0]}', [t[0]], [t[0]])
    V(f'v_cmp_gt_u32 vcc, 0xa0, v0', [0], [], swrites=['vcc'])
    S('s_mov_b64 exec, vcc', sreads=['vcc'])
    a.ds(f'ds_write_b32 v{t[0]}, v{PWT}', [t[0], PWT])
    fullexec()
    a.cond_end()
    a.wait_lds_all()
    S(f's_cmp_ge_u32 s{S_PID}, {NP2}')
    a.raw('s_cbranch_scc1 L_nocnt', kind='branch')
    a.raw('s_waitcnt vmcnt(0)', kind='wait')
    a.raw(f'v_mov_b32 v{VT1}, 1', kind='valu')
    S('s_mov_b64 exec, 1')
    a.raw(f'ds_add_rtn_u32 v{VT2}, v{V_SYNC}, v{VT1} offset:12', kind='ds')
    a.raw(f's_memrealtime s[{S_MT}:{S_MT+1}]')
    a.raw('s_waitcnt lgkmcnt(0)', kind='wait')
    a.raw(f'v_readfirstlane_b32 s{S_T0}, v{VT2}', kind='valu')
    a.raw('s_nop 0', kind='nop')
    S(f's_cmp_lg_u32 s{S_T0}, 3')
    a.raw('s_cbranch_scc1 L_nocnt', kind='branch')
    S(f's_mov_b32 s{S_T0}, 136'); S(f's_mov_b32 s{S_T1}, {NP0 - 1}'); S(f's_mov_b32 s{S_T2}, 0')
    S(f's_cmp_ge_u32 s{S_PID}, {NP0}'); S(f's_cselect_b32 s{S_T0}, 128, s{S_T0}'); S(f's_cselect_b32 s{S_T1}, {NP1 - NP0 - 1}, s{S_T1}'); S(f's_cselect_b32 s{S_T2}, 4, s{S_T2}')
    S(f's_cmp_ge_u32 s{S_PID}, {NP1}'); S(f's_cselect_b32 s{S_T0}, 64, s{S_T0}'); S(f's_cselect_b32 s{S_T1}, {NP2 - NP1 - 1}, s{S_T1}'); S(f's_cselect_b32 s{S_T2}, 8, s{S_T2}')
    a.raw(f'v_mov_b32 v{VT2}, s{S_T2}', kind='valu')
    a.raw(f'buffer_atomic_add v{VT1}, v{VT2}, s[{S_DBGF}:{S_DBGF+3}], 0 offen sc0 sc1', kind='vmem')
    a.raw('s_waitcnt vmcnt(0)', kind='wait')
    a.raw(f'v_readfirstlane_b32 s{S_T2}, v{VT1}', kind='valu')
    a.raw('s_nop 0', kind='nop')
    S(f's_cmp_lg_u32 s{S_T2}, s{S_T1}')
    a.raw('s_cbranch_scc1 L_nocnt', kind='branch')
    S(f's_or_b32 s{S_MT}, s{S_MT}, 1')
    a.raw(f'v_mov_b32 v{VT1}, s{S_MT}', kind='valu')
    a.raw(f'v_mov_b32 v{VT3}, s{S_T0}', kind='valu')
    a.raw(f'buffer_store_dword v{VT1}, v{VT3}, s[{S_DBGF}:{S_DBGF+3}], 0 offen sc1', kind='vmem')
    a.label('L_nocnt')
    fullexec()
    a.raw('s_setprio 0')
    S(f's_mov_b32 s{S_KN}, 0')
    stamp('setup')

    chk_n = [0]
    def rdy_fetch(off): a.ds(f'ds_read_b32 v{V_RDY}, v{V_SYNC} offset:{off}', [V_SYNC], [V_RDY])
    def rdy_check(nseq, off, fetched=False):
        if not fetched: rdy_fetch(off)
        i = chk_n[0]; chk_n[0] += 1
        V(f'v_readfirstlane_b32 s{S_T0}, v{V_RDY}', [V_RDY], [], swrites=[S_T0], readlane=True)
        S(f's_cmp_ge_u32 s{S_T0}, {nseq}', sreads=[S_T0])
        a.cond_begin(f's_cbranch_scc1 L_ok{i}', f'L_ok{i}')
        a.raw(f's_mov_b32 s{S_T1}, 0x100000', kind='salu')
        a.label(f'L_sp{i}')
        a.raw('s_sleep 1')
        a.raw(f'ds_read_b32 v{V_RDY}, v{V_SYNC} offset:{off}', kind='ds')
        a.raw(f's_sub_u32 s{S_T1}, s{S_T1}, 1', kind='salu')
        a.raw(f's_cbranch_scc1 L_ok{i}', kind='branch')
        a.raw('s_waitcnt lgkmcnt(0)', kind='wait')
        a.raw(f'v_readfirstlane_b32 s{S_T0}, v{V_RDY}', kind='valu')
        a.raw('s_nop 0', kind='nop')
        a.raw(f's_cmp_ge_u32 s{S_T0}, {nseq}', kind='salu')
        a.raw(f's_cbranch_scc0 L_sp{i}', kind='branch')
        a.cond_end()
    def cnt_check(nseq):
        i = chk_n[0]; chk_n[0] += 1
        S(f's_cmp_ge_u32 s{S_KN}, {nseq}')
        a.cond_begin(f's_cbranch_scc1 L_ok{i}', f'L_ok{i}')
        a.raw(f's_mov_b32 s{S_T1}, 0x100000', kind='salu')
        a.label(f'L_sp{i}')
        a.raw(f'ds_read_b32 v{V_RDY}, v{V_SYNC}', kind='ds')
        a.raw(f's_sub_u32 s{S_T1}, s{S_T1}, 1', kind='salu')
        a.raw(f's_cbranch_scc1 L_ok{i}', kind='branch')
        a.raw('s_waitcnt lgkmcnt(0)', kind='wait')
        a.raw(f'v_readfirstlane_b32 s{S_KN}, v{V_RDY}', kind='valu')
        a.raw('s_nop 0', kind='nop')
        a.raw(f's_cmp_ge_u32 s{S_KN}, {nseq}', kind='salu')
        a.raw(f's_cbranch_scc1 L_ok{i}', kind='branch')
        a.raw('s_sleep 1')
        a.raw(f's_branch L_sp{i}', kind='branch')
        a.cond_end()
    def release(stage):
        V(f'v_mov_b32 v{t[0]}, {stage}', [], [t[0]])
        a.ds(f'ds_write_b32 v{V_DONEA}, v{t[0]}', [V_DONEA, t[0]])

    def x0_ops():
        ops = []
        PB = PBT
        def rd():
            V(f'v_lshlrev_b32 v{V_ACC}, 16, v{V_ACC}', [V_ACC], [V_ACC])
            V(f'v_and_b32 v{t[0]}, 47, v{V_LANE}', [V_LANE], [t[0]])
            V(f'v_cmp_eq_u32 vcc, 0, v{t[0]}', [t[0]], [], swrites=['vcc'])
            V(f'v_cndmask_b32 v{V_ACC}, 0, v{V_ACC}, vcc', [V_ACC], [V_ACC], sreads=['vcc'])
        ops.append(rd)
        m = t[1]
        def c1():
            for v in range(13): V(f'v_and_b32 v{P16+v}, s{S_K7FFF}, v{PB+v}', [PB+v], [P16+v])
        ops.append(c1)
        def c2():
            V(f'v_pk_maximum3_f16 v{m}, v{P16}, v{P16+1}, v{P16+2}', R(P16, 3), [m])
            for v in range(3, 13, 2):
                V(f'v_pk_maximum3_f16 v{m}, v{m}, v{P16+v}, v{P16+v+1}', [m, P16+v, P16+v+1], [m])
            V(f'v_max_u16_sdwa v{m}, v{m}, v{m} dst_sel:DWORD dst_unused:UNUSED_PAD src0_sel:WORD_1 src1_sel:WORD_0', [m], [m], opsel=True)
            V(f'v_lshrrev_b32 v{m}, 7, v{m}', [m], [m])
            V(f'v_subrev_u32 v{m}, 21, v{m}', [m], [m])
            V(f'v_max_i32 v{m}, 0, v{m}', [m], [m])
            V(f'v_subrev_u32 v{V_EX}, 112, v{m}', [m], [V_EX])
            V(f'v_mul_u32_u24 v{m}, 0x800080, v{m}', [m], [m])
        ops.append(c2)
        ops.append(lambda: [V(f'v_pk_sub_u16 v{P16+v}, v{P16+v}, v{m} clamp', [P16+v, m], [P16+v]) for v in range(13)])
        ops.append(lambda: [V(f'v_lshlrev_b32 v{P16+v}, 3, v{P16+v}', [P16+v], [P16+v]) for v in range(13)])
        ops.append(lambda: [V(f'v_bfi_b32 v{P16+v}, s{S_K8000}, v{PB+v}, v{P16+v}', [P16+v, PB+v], [P16+v]) for v in range(13)])
        def qq():
            V(f'v_mov_b32 v{P16+13}, 0', [], [P16+13])
            V(f'v_mov_b32 v{t[2]}, 0x05040100', [], [t[2]])
            V(f'v_mov_b32 v{t[1]}, 0x07060302', [], [t[1]])
            V(f'v_cndmask_b32 v{t[2]}, v{t[2]}, v{t[1]}, s[{S_HI}:{S_HI+1}]', [t[2], t[1]], [t[2]])
            for q in range(7):
                V(f'v_perm_b32 v{XQ+q}, v{P16+2*q+1}, v{P16+2*q}, v{t[2]}', [P16+2*q+1, P16+2*q, t[2]], [XQ+q])
        ops.append(qq)
        def q2():
            V(f'v_lshlrev_b32 v{V_E}, 1, v{V_EX}', [V_EX], [V_E])
        ops.append(q2)
        return ops

    ACC = 40; DAB = [68, 96]; DBB = [124, 128]; IXR = 132; NDB = 2
    def dnn_bread(i):
        db = DBB[i % NDB]
        a.ds(f'ds_read_b64 {vr(db,2)}, v{IXR+2*i}', [IXR+2*i], R(db, 2))
        a.ds(f'ds_read_b64 {vr(db+2,2)}, v{IXR+2*i+1}', [IXR+2*i+1], R(db+2, 2))
        if i == 11: V(f'v_add_u32 v{V_DAADDR}, 57344, v{V_DAADDR}', [V_DAADDR], [V_DAADDR])
    def dnn_aread(i, q):
        da = DAB[i % NDB]
        hi = i < 3
        ad = V_DBK if hi else V_DAADDR; b0 = CADDR[i] - (121600 if hi else 0)
        if i >= 11: b0 -= 57344
        a.ds(f'ds_read_b64_tr_b16 {vr(da+4*q,2)}, v{ad} offset:{b0+32*q}', [ad], R(da+4*q, 2))
        a.ds(f'ds_read_b64_tr_b16 {vr(da+4*q+2,2)}, v{ad} offset:{b0+32*q+3584}', [ad], R(da+4*q+2, 2))
    def dnn_mf(i, q):
        a.mfma('v_mfma_f32_16x16x32_bf16', ACC+4*q, DAB[i % NDB]+4*q, DBB[i % NDB], ACC+4*q, 4, 4)
    def dnn_epilogue(xt):
        K1 = -2.0 * 1.4426950408889634 * 0.7978845608028654
        K2 = K1 * 0.044715
        acc = 124; K1R = 125; W2T = 96; TT = 68
        qs = list(range(0 if xt else 1, 7))
        S(f's_mov_b32 s{S_K2}, {fb(K2)}')
        for q in qs:
            a.ds(f'ds_read_b64 {vr(W2T+2*q,2)}, v{V_BWADDR} offset:{832+32*q}', [V_BWADDR], R(W2T+2*q, 2))
        V(f'v_mov_b32 v{K1R}, {fb(K1)}', [], [K1R])
        V(f'v_mov_b32 v{acc}, 0', [], [acc])
        xs = [ACC + 4*q + r for q in qs for r in range(4)]
        ts = [TT + 4*q + r for q in qs for r in range(4)]
        for x, tt in zip(xs, ts): V(f'v_mul_f32 v{tt}, v{x}, v{x}', [x], [tt])
        for x, tt in zip(xs, ts): V(f'v_fma_f32 v{tt}, v{tt}, s{S_K2}, v{K1R}', [tt, K1R], [tt])
        for x, tt in zip(xs, ts): V(f'v_mul_f32 v{tt}, v{tt}, v{x}', [tt, x], [tt])
        for x, tt in zip(xs, ts): V(f'v_exp_f32 v{tt}, v{tt}', [tt], [tt], trans=True)
        for x, tt in zip(xs, ts): V(f'v_add_f32 v{tt}, 1.0, v{tt}', [tt], [tt])
        for x, tt in zip(xs, ts): V(f'v_rcp_f32 v{tt}, v{tt}', [tt], [tt], trans=True)
        for x, tt in zip(xs, ts): V(f'v_mul_f32 v{tt}, v{tt}, v{x}', [tt, x], [tt])
        for q in qs:
            w = W2T + 2*q; x0_ = ACC + 4*q
            V(f'v_lshlrev_b32 v{x0_}, 16, v{w}', [w], [x0_])
            V(f'v_and_b32 v{x0_+1}, 0xffff0000, v{w}', [w], [x0_+1])
            V(f'v_lshlrev_b32 v{x0_+2}, 16, v{w+1}', [w+1], [x0_+2])
            V(f'v_and_b32 v{x0_+3}, 0xffff0000, v{w+1}', [w+1], [x0_+3])
        for x, tt in zip(xs, ts): V(f'v_fmac_f32 v{acc}, v{tt}, v{x}', [acc, tt, x], [acc])
        for op in ('v_permlane16_swap_b32', 'v_permlane32_swap_b32'):
            V(f'v_mov_b32 v{K1R}, v{acc}', [acc], [K1R])
            V(f'{op} v{acc}, v{K1R}', [acc, K1R], [acc, K1R], permlane=True)
            V(f'v_add_f32 v{acc}, v{acc}, v{K1R}', [acc, K1R], [acc])
        V(f'v_lshlrev_b32 v{t[0]}, 2, v{V_LANE}', [V_LANE], [t[0]])
        S(f's_and_b32 s{S_T0}, s{S_WAVE}, 3'); S(f's_lshl_b32 s{S_T0}, s{S_T0}, 6'); S(f's_add_u32 s{S_T0}, s{S_T0}, {PDL}')
        V(f'v_add_u32 v{t[0]}, s{S_T0}, v{t[0]}', [t[0]], [t[0]])
        V(f'v_mov_b32 v{t[1]}, 1', [], [t[1]])
        execn(16)
        a.ds(f'ds_write_b32 v{t[0]}, v{acc}', [t[0], acc])
        execn(1)
        a.ds(f'ds_add_u32 v{V_SYNC}, v{t[1]} offset:4', [V_SYNC, t[1]])
        fullexec()
    def u5_ops():
        ops = []
        def rd():
            V(f'v_add_u32 v{t[0]}, {V5F}, v{V_L16}', [V_L16], [t[0]])
            for k in range(4):
                a.ds(f'ds_read_b128 {vr(UA+4*k,4)}, v{t[0]} offset:{1024*k}', [t[0]], R(UA+4*k, 4))
            for k in range(4):
                a.ds(f'ds_read_b128 {vr(G+4*k,4)}, v{V_PWADDR} offset:{POOLW-EWT+128*3+16*k}', [V_PWADDR], R(G+4*k, 4))
        ops.append(rd)
        for k in range(4):
            def rb(k=k):
                for e in range(4 if k < 3 else 1):
                    a.ds(f'ds_read_b32 v{DB+e}, v{V_TRADDR} offset:{128*(4*k+e)}', [V_TRADDR], [DB+e])
            ops.append(rb)
            ops += [lambda: None] * 4
            if k == 3:
                def zz():
                    for r in (1, 2, 3): V(f'v_mov_b32 v{DB+r}, 0', [], [DB+r])
                ops.append(zz)
            ops.append(lambda k=k: a.mfma('v_mfma_f32_32x32x16_bf16', G, UA+4*k, DB, G, 8, 16))
            ops.append(lambda: None)
        return ops

    def boundary_ops(l):
        ops = []
        s_ = ZB[2]; mx = ZB[2]+1; my = ZB[2]+2
        W = PW if l < 4 else G
        for r in range(13):
            ops.append(lambda r=r: V(f'v_ldexp_f32 v{D+r}, v{D+r}, v{EW+r}', [D+r, EW+r], [D+r]))
        if l < 4:
            ops.append(lambda: V(f'v_max3_f32 v{mx}, |v{D}|, |v{D+1}|, |v{D+2}|', R(D, 3), [mx]))
            for r in range(3, 13, 2):
                ops.append(lambda r=r: V(f'v_max3_f32 v{mx}, |v{D+r}|, |v{D+r+1}|, v{mx}', [D+r, D+r+1, mx], [mx]))
            ops.append(lambda: V(f'v_mov_b32 v{my}, v{mx}', [mx], [my]))
        ops.append(lambda: V(f'v_mul_f32 v{s_}, v{D}, v{W}', [D, W], [s_]))
        ops.append(lambda: V(f'v_fmac_f32 v{s_}, v{D+1}, v{W+1}', [s_, D+1, W+1], [s_]))
        if l < 4:
            ops.append(lambda: V(f'v_permlane32_swap_b32 v{mx}, v{my}', [mx, my], [mx, my], permlane=True))
        ops.append(lambda: V(f'v_fmac_f32 v{s_}, v{D+2}, v{W+2}', [s_, D+2, W+2], [s_]))
        if l < 4:
            ops.append(lambda: V(f'v_max_f32 v{mx}, v{mx}, v{my}', [mx, my], [mx]))
            ops.append(lambda: V(f'v_frexp_exp_i32_f32 v{mx}, v{mx}', [mx], [mx]))
            ops.append(lambda: V(f'v_sub_u32 v{V_SH}, 8, v{mx}', [mx], [V_SH]))
        for r in range(3, 13):
            ops.append(lambda r=r: V(f'v_fmac_f32 v{s_}, v{D+r}, v{W+r}', [s_, D+r, W+r], [s_]))
        if l < 4:
            for r in range(13):
                ops.append(lambda r=r: V(f'v_ldexp_f32 v{D+r}, v{D+r}, v{V_SH}', [D+r, V_SH], [D+r]))
            for q in range(7):
                hi = D + 2*q + 1 if q < 6 else D + 12
                ops.append(lambda q=q, hi=hi: V(f'v_cvt_pk_f16_f32 v{XQ+q}, v{D+2*q}, v{hi}', [D+2*q, hi], [XQ+q]))
        ops.append(lambda: V(f'v_ldexp_f32 v{s_}, v{s_}, v{V_E}', [s_, V_E], [s_]))
        ops.append(lambda: V(f'v_add_f32 v{V_ACC}, v{V_ACC}, v{s_}', [V_ACC, s_], [V_ACC]))
        if l < 4:
            ops.append(lambda: V(f'v_sub_u32 v{V_E}, v{V_E}, v{V_SH}', [V_E, V_SH], [V_E]))
            ops.append(lambda: V(f'v_add_u32 v{V_E}, v{V_E}, v{V_EX}', [V_E, V_EX], [V_E]))
        if l == 0:
            ops.append(lambda: V(f'v_mov_b32 v{ZL+1}, 0', [], [ZL+1]))
            ops.append(lambda: V(f'v_mov_b32 v{ZL+2}, 0', [], [ZL+2]))
        return ops
    NK = [23, 43, 43, 43, 23]
    DT = 132
    ISLOT = [None, 0, 1, 2, 3]
    def a_read(l, k):
        b = AB[k % NAB]
        if l in (0, 4): ad = V_AADDR0; off = 16 * k
        else:
            sl = ISLOT[l]; ad = V_AADDR[sl >> 1]; off = IMG * (sl & 1) + 16 * k
        a.ds(f'ds_read_b128 {vr(b,4)}, v{ad} offset:{off}', [ad], R(b, 4))
    PAIRS0 = [(u, v) for u in range(13) for v in range(u, 13)]
    def zbuf(l, k):
        if k == NK[l] - 1: return ZL
        return ZB[k % 3]
    def z_ops(l, k):
        ops = []
        zb = zbuf(l, k)
        for e in range(4):
            q = 4 * k + e
            if l in (0, 4):
                if q >= 91: break
                i, v = PAIRS0[q]; src = (QH if i == v else XQ) + (i >> 1)
            else:
                if q >= 169: break
                i, v = divmod(q, 13); src = XQ + (i >> 1)
            o = i & 1
            ops.append(lambda zb=zb, e=e, src=src, v=v, o=o: V(f'v_pk_mul_f16 v{zb+e}, v{src}, v{P16+v} op_sel:[{o},0] op_sel_hi:[{o},1]', [src, P16+v], [zb+e]))
        return ops
    def pwrd(l):
        lst = {3: ((EW, 128 * 3),), 4: ((PW, 128 * 4),)}.get(l, ((PW, POOLW - EWT + 128 * l), (EW, 128 * l)))
        for base, off in lst:
            for k in range(3):
                a.ds(f'ds_read_b128 {vr(base+4*k,4)}, v{V_PWADDR} offset:{off+16*k}', [V_PWADDR], R(base+4*k, 4))
            a.ds(f'ds_read_b32 v{base+12}, v{V_PWADDR} offset:{off+48}', [V_PWADDR], [base+12])

    LF = 40; LFA = 41; LSY = V_SYNC; LDA = 42; LDV = 43; LT = 44; LN = 45; PF = 48; LG = 72
    def l_lin(tag, srd, src, dst, nbytes, sc=''):
        n = (nbytes + 1023) // 1024
        for pc in range(n):
            if pc % 4 == 0:
                S(f's_mov_b32 m0, {dst + 1024*pc}', m0=True)
                S(f's_mov_b32 s{S_T2}, {src + 1024*pc}')
            lanes = min(64, (nbytes - 1024*pc) // 16)
            if lanes < 64: execn(lanes)
            a.vmem(f'buffer_load_dwordx4 v{V_L16}, s[{srd}:{srd+3}], s{S_T2} offen offset:{1024*(pc%4)} {sc} lds', [V_L16], [], tag=tag, dma=True)
            if lanes < 64: fullexec()
    def publish(n, off):
        a.raw(f'v_mov_b32 v{LT}, {n}', kind='valu')
        a.raw(f'ds_write_b32 v{LSY}, v{LT} offset:{off}', kind='ds')
    def l_flag(lo, hi):
        mk = ((1 << hi) - 1) & ~((1 << lo) - 1)
        S(f's_mov_b64 exec, 0x{mk:x}')
        a.vmem(f'buffer_load_dword v{LF}, v{LFA}, s[{S_DBGF}:{S_DBGF+3}], 0 offen offset:128 sc1', [LFA], [LF])
        fullexec()
    def l_poll(lo, hi, lab, pre=None):
        mk = ((1 << hi) - 1) & ~((1 << lo) - 1)
        a._wait_regs([LF])
        S(f's_mov_b64 exec, 0x{mk:x}')
        S(f's_mov_b32 s{S_T0}, 0')
        a.label(f'L_poll{lab}')
        a.raw(f'v_cmp_eq_u32 vcc, 0, v{LF}', kind='valu')
        a.raw(f's_cbranch_vccz L_polldone{lab}', kind='branch')
        a.raw(f's_sleep {PSLEEP}')
        a.raw(f'buffer_load_dword v{LF}, v{LFA}, s[{S_DBGF}:{S_DBGF+3}], 0 offen offset:128 sc1', kind='vmem')
        S(f's_add_u32 s{S_T0}, s{S_T0}, 1')
        S(f's_cmp_lt_u32 s{S_T0}, 0x40000')
        a.raw('s_waitcnt vmcnt(0)', kind='wait')
        if pre: publish(pre[0], pre[1])
        a.raw(f's_cbranch_scc1 L_poll{lab}', kind='branch')
        a.label(f'L_polldone{lab}')
        fullexec()
    def l_wait_lds(addr, off, stage, lab, pre=None):
        a.raw(f's_mov_b32 s{S_T1}, 0x100000', kind='salu')
        a.label(f'L_dw{lab}')
        a.raw(f'ds_read_b32 v{LDV}, v{addr} offset:{off}', kind='ds')
        a.raw(f's_sub_u32 s{S_T1}, s{S_T1}, 1', kind='salu')
        a.raw(f's_cbranch_scc1 L_dn{lab}', kind='branch')
        a.raw('s_waitcnt lgkmcnt(0)', kind='wait')
        a.raw(f'v_cmp_gt_u32 vcc, {stage}, v{LDV}', kind='valu')
        a.raw(f's_cbranch_vccz L_dn{lab}', kind='branch')
        if pre:
            a.raw('s_waitcnt vmcnt(0)', kind='wait')
            publish(pre[0], pre[1])
        a.raw('s_sleep 1')
        a.raw(f's_branch L_dw{lab}', kind='branch')
        a.label(f'L_dn{lab}')
    def l_setup():
        V(f'v_lshlrev_b32 v{LFA}, 2, v{V_LANE}', [V_LANE], [LFA])
        V(f'v_min_u32 v{LDA}, 44, v{LFA}', [LFA], [LDA])
        V(f'v_add_u32 v{LDA}, {SYNC + 32}, v{LDA}', [LDA], [LDA])
    OX = 96
    V(f'v_bfe_u32 v{t[0]}, v{V_LANE}, 4, 1', [V_LANE], [t[0]])
    V(f'v_mul_u32_u24 v{t[0]}, 104, v{t[0]}', [t[0]], [t[0]])
    V(f'v_and_b32 v{t[1]}, 12, v{V_LANE}', [V_LANE], [t[1]])
    V(f'v_add_u32 v{t[0]}, v{t[0]}, v{t[1]}', [t[0], t[1]], [t[0]])
    S(f's_mul_i32 s{S_T0}, s{S_WAVE}, 208'); S(f's_add_u32 s{S_T0}, s{S_T0}, {IDXB}')
    V(f'v_add_u32 v{t[8]}, s{S_T0}, v{t[0]}', [t[0]], [t[8]])
    V(f'v_and_b32 v{t[6]}, 3, v{V_LANE}', [V_LANE], [t[6]])
    V(f'v_lshlrev_b32 v{t[6]}, 3, v{t[6]}', [t[6]], [t[6]])
    V(f'v_add_u32 v{t[6]}, {TAB}, v{t[6]}', [t[6]], [t[6]])
    V(f'v_lshrrev_b32 v{t[7]}, 4, v{V_LANE}', [V_LANE], [t[7]])
    V(f'v_lshlrev_b32 v{t[7]}, 3, v{t[7]}', [t[7]], [t[7]])
    V(f'v_add_u32 v{t[7]}, {TAB}, v{t[7]}', [t[7]], [t[7]])
    V(f'v_and_b32 v{t[9]}, 15, v{V_LANE}', [V_LANE], [t[9]])
    V(f'v_mul_u32_u24 v{t[9]}, 104, v{t[9]}', [t[9]], [t[9]])
    rdy_check(8, 24)
    stamp('tab')
    for q in range(7): a.ds(f'ds_read_b32 v{OX+q}, v{t[8]} offset:{16*q}', [t[8]], [OX+q])
    isB = f's_cmp_{"ge" if DG else "lt"}_u32 s{S_WAVE}, 4'
    isA = f's_cmp_{"lt" if DG else "ge"}_u32 s{S_WAVE}, 4'
    for q in range(7):
        V(f'v_min_u32 v{OX+q}, 0x3e7, v{OX+q}', [OX+q], [OX+q])
        V(f'v_lshl_add_u32 v{OX+q}, v{OX+q}, 5, v{t[6]}', [OX+q, t[6]], [OX+q])
        a.ds(f'ds_read_b64_tr_b16 {vr(PBT+2*q,2)}, v{OX+q}', [OX+q], R(PBT+2*q, 2))
    for v in range(13): a.ds(f'ds_write_b32 v{V_TRADDR}, v{PBT+v} offset:{128*v}', [V_TRADDR, PBT+v])
    a.wait_lds_all()
    stamp('x0')
    release(3)
    S(f's_cmp_lt_u32 s{S_PID}, {NPT0}'); a.raw('s_cbranch_scc1 L_x0prep', kind='branch')
    S(f's_cmp_ge_u32 s{S_PID}, {NPT}'); a.raw('s_cbranch_scc1 L_x0prep', kind='branch')
    p = [84 + i for i in range(16)]
    TD = 100; F1 = 116; F2 = 124; F3 = 132; TF = 140; TI = S_SET + 2
    S(f's_sub_u32 s{TI}, s{S_PID}, {NPT0}'); S(f's_lshl_b32 s{TI}, s{TI}, 2'); S(f's_and_b32 s{S_T4}, s{S_WAVE}, 3'); S(f's_add_u32 s{TI}, s{TI}, s{S_T4}')
    S(f's_mul_i32 s{S_T3}, s{S_T4}, 1664'); S(f's_add_u32 s{S_T3}, s{S_T3}, {SCR + 3328}')
    V(f'v_lshrrev_b32 v{p[0]}, 2, v{V_LANE}', [V_LANE], [p[0]])
    V(f'v_and_b32 v{p[1]}, 3, v{V_LANE}', [V_LANE], [p[1]])
    V(f'v_mul_u32_u24 v{p[2]}, 0x548, v{p[0]}', [p[0]], [p[2]])
    V(f'v_lshl_add_u32 v{p[2]}, v{p[1]}, 4, v{p[2]}', [p[1], p[2]], [p[2]])
    S(f's_min_u32 s{S_T2}, s{TI}, 25'); S(f's_mul_i32 s{S_T2}, s{S_T2}, 52'); S(f's_add_u32 s{S_T2}, s{S_T2}, {4*35152}')
    S(f's_mov_b32 m0, s{S_T3}', m0=True)
    a.vmem(f'buffer_load_dwordx4 v{p[2]}, s[{S_WC}:{S_WC+3}], s{S_T2} offen lds', [p[2]], [], dma=True)
    S(f's_add_u32 m0, s{S_T3}, 1024', m0=True); S(f's_add_u32 s{S_T2}, s{S_T2}, {16*1352}')
    execn(40)
    a.vmem(f'buffer_load_dwordx4 v{p[2]}, s[{S_WC}:{S_WC+3}], s{S_T2} offen lds', [p[2]], [], dma=True)
    fullexec()
    V(f'v_mov_b32 v{TF+2}, 0', [], [TF+2])
    S(f's_mov_b32 s{S_T0}, 0')
    a.label('L_tpoll')
    S('s_mov_b64 exec, 1')
    a.raw(f'buffer_load_dword v{TF}, v{TF+2}, s[{S_DBGF}:{S_DBGF+3}], 0 offen offset:64 sc1', kind='vmem')
    fullexec()
    S(f's_add_u32 s{S_T0}, s{S_T0}, 1')
    a.raw('s_waitcnt vmcnt(0)', kind='wait'); a.vm = []
    a.raw(f'v_readfirstlane_b32 s{S_T1}, v{TF}', kind='valu')
    a.raw('s_nop 0', kind='nop')
    S(f's_cmp_lg_u32 s{S_T1}, 0')
    a.raw('s_cbranch_scc1 L_tgo', kind='branch')
    a.raw(f's_sleep {PSLEEP}')
    S(f's_cmp_lt_u32 s{S_T0}, 0x40000')
    a.raw('s_cbranch_scc1 L_tpoll', kind='branch')
    a.label('L_tgo')
    S(f's_mul_i32 s{S_T2}, s{S_T4}, 832'); S(f's_add_u32 m0, s{S_T2}, {SCR}', m0=True); S(f's_add_u32 s{S_T2}, s{S_T2}, {WS_V5R}')
    execn(52)
    a.vmem(f'buffer_load_dwordx4 v{V_L16}, s[{S_WS}:{S_WS+3}], s{S_T2} offen sc1 lds', [V_L16], [], dma=True)
    fullexec()
    V(f'v_lshrrev_b32 v{p[3]}, 5, v{V_LANE}', [V_LANE], [p[3]])
    V(f'v_bfe_u32 v{p[4]}, v{V_LANE}, 2, 2', [V_LANE], [p[4]])
    V(f'v_lshl_add_u32 v{p[3]}, v{p[3]}, 3, v{p[4]}', [p[3], p[4]], [p[3]])
    V(f'v_bfe_u32 v{p[4]}, v{V_LANE}, 4, 1', [V_LANE], [p[4]])
    V(f'v_lshlrev_b32 v{p[4]}, 5, v{p[4]}', [p[4]], [p[4]])
    V(f'v_lshl_add_u32 v{p[4]}, v{p[1]}, 3, v{p[4]}', [p[1], p[4]], [p[4]])
    AW = [TF+3, TF+4, TF+5]; AV = [TF+6, TF+7, TF+8]
    V(f'v_lshl_add_u32 v{AW[0]}, v{p[3]}, 6, v{p[4]}', [p[3], p[4]], [AW[0]])
    V(f'v_add_u32 v{AW[0]}, s{S_T3}, v{AW[0]}', [AW[0]], [AW[0]])
    V(f'v_lshl_add_u32 v{AV[0]}, v{p[3]}, 7, v{p[4]}', [p[3], p[4]], [AV[0]])
    V(f'v_add_u32 v{AV[0]}, {SCR}, v{AV[0]}', [AV[0]], [AV[0]])
    V(f'v_mov_b32 v{p[5]}, 0x30000', [], [p[5]])
    for k_, lim in ((1, 10), (2, 6)):
        V(f'v_cmp_gt_u32 vcc, {lim}, v{p[3]}', [p[3]], [], swrites=['vcc'])
        V(f'v_cndmask_b32 v{AW[k_]}, v{p[5]}, v{AW[0]}, vcc', [p[5], AW[0]], [AW[k_]], sreads=['vcc'])
        V(f'v_cndmask_b32 v{AV[k_]}, v{p[5]}, v{AV[0]}, vcc', [p[5], AV[0]], [AV[k_]], sreads=['vcc'])
    V(f'v_and_b32 v{p[0]}, 31, v{V_LANE}', [V_LANE], [p[0]])
    V(f'v_lshrrev_b32 v{p[1]}, 5, v{V_LANE}', [V_LANE], [p[1]])
    S(f's_min_u32 s{S_C}, s{TI}, 25')
    sym_addr(p, S_C, WS_IMGT)
    S(f's_mov_b32 s{TI+1}, s{S_T0}'); S(f's_mov_b32 s{TI+2}, s{S_T1}')
    a.wait_vm_all()
    V(f'v_mov_b32 v{TF}, 1', [], [TF])
    execn(1)
    a.ds(f'ds_add_u32 v{V_SYNC}, v{TF} offset:16', [V_SYNC, TF])
    fullexec()
    for ks in range(2):
        for tt in range(2):
            ad = AW[0] if ks == 0 else AW[1 + tt]
            a.ds(f'ds_read_b64_tr_b16 {vr(F1+4*ks+2*tt,2)}, v{ad} offset:{(16*ks+4*tt)*64}', [ad], R(F1+4*ks+2*tt, 2))
    rdy_check(4, 16)
    for F, lo in ((F2, 0), (F3, 64)):
        for ks in range(2):
            for tt in range(2):
                ad = AV[0] if ks == 0 else AV[1 + tt]
                a.ds(f'ds_read_b64_tr_b16 {vr(F+4*ks+2*tt,2)}, v{ad} offset:{(16*ks+4*tt)*128+lo}', [ad], R(F+4*ks+2*tt, 2))
    first = True
    for F in (F2, F3):
        for ks in range(2):
            a.mfma('v_mfma_f32_32x32x16_bf16', TD, F1+4*ks, F+4*ks, None if first else TD, 8, 16); first = False
            a.mfma('v_mfma_f32_32x32x16_bf16', TD, F+4*ks, F1+4*ks, TD, 8, 16)
    S(f's_mov_b32 s{S_T0}, s{TI+1}'); S(f's_mov_b32 s{S_T1}, s{TI+2}')
    sym_out(p, TD, F1, F2, 4)
    a.raw('s_waitcnt vmcnt(0)', kind='wait'); a.vm = []
    a.raw(f'v_mov_b32 v{VT1}, 1', kind='valu')
    a.raw(f'ds_add_rtn_u32 v{VT2}, v{V_SYNC}, v{VT1} offset:20', kind='ds')
    a.raw('s_waitcnt lgkmcnt(0)', kind='wait'); a.lds = []
    a.raw(f'v_readfirstlane_b32 s{S_T0}, v{VT2}', kind='valu')
    a.raw('s_nop 0', kind='nop')
    S(f's_cmp_lg_u32 s{S_T0}, 3')
    a.raw('s_cbranch_scc1 L_tdone', kind='branch')
    a.raw(f'v_mov_b32 v{VT2}, s{S_SET}', kind='valu')
    a.raw(f'buffer_atomic_add v{VT1}, v{VT2}, s[{S_DBGF}:{S_DBGF+3}], 0 offen offset:12 sc0 sc1', kind='vmem')
    a.raw('s_waitcnt vmcnt(0)', kind='wait')
    a.raw(f'v_readfirstlane_b32 s{S_T2}, v{VT1}', kind='valu')
    a.raw(f'v_mov_b32 v{VT2}, 0', kind='valu')
    a.raw(f'v_mov_b32 v{VT1}, 1', kind='valu')
    S(f's_cmp_lg_u32 s{S_T2}, {NPT - NPT0 - 1}')
    a.raw('s_cbranch_scc1 L_tdone', kind='branch')
    a.raw(f'buffer_store_dword v{VT1}, v{VT2}, s[{S_DBGF}:{S_DBGF+3}], 0 offen offset:192 sc1', kind='vmem')
    a.label('L_tdone')
    fullexec()
    a.nop(4)
    a.raw('s_branch L_x0prep', kind='branch')
    a.label('L_x0prep')
    for o in x0_ops(): o()
    for q in range(7):
        V(f'v_pk_mul_f16 v{QH+q}, v{XQ+q}, s{S_HALF}', [XQ+q], [QH+q])
    addr_setup()
    V(f'v_lshrrev_b32 v{t[1]}, 5, v{V_LANE}', [V_LANE], [t[1]])
    V(f'v_lshlrev_b32 v{t[1]}, 6, v{t[1]}', [t[1]], [t[1]])
    V(f'v_add_u32 v{V_PWADDR}, {EWT}, v{t[1]}', [t[1]], [V_PWADDR])
    V(f'v_mov_b32 v{ZL+3}, 0', [], [ZL+3])
    stamp('dnn')
    S(f's_cmp_lg_u32 s{S_WAVE}, {ELW}')
    a.wait_lds_all(); a.wait_vm_all()
    a.raw('s_cbranch_scc1 L_noel', kind='branch')
    l_setup()
    l_flag(2, 3)
    l_poll(2, 3, 'k')
    l_flag(0, 1)
    S(f's_lshr_b32 s{S_T0}, s2, 3'); S(f's_mul_i32 s{S_T0}, s{S_T0}, 608')
    execn(38)
    a.vmem(f'buffer_load_dwordx4 {vr(PF+16,4)}, v{V_L16}, s[{S_WS}:{S_WS+3}], s{S_T0} offen sc1', [V_L16], R(PF+16, 4))
    fullexec()
    l_wait_lds(LDA, 0, 1, 'a')
    l_lin(('i', 0), S_WS, WS_IMG0, I0B, IMG0, 'sc1')
    l_lin(('i', 0), S_WS, WS_EWT, EWT, 128, 'sc1')
    l_poll(0, 1, 'a', pre=(1, 8))
    V(f'v_readlane_b32 s{S_T0}, v{LF}, 0', [LF], [], swrites=[S_T0], readlane=True)
    V(f'v_mov_b32 v{LN}, s{S_T0}', [], [LN], sreads=[S_T0])
    a.ds(f'ds_write_b32 v{LSY}, v{LN} offset:28', [LSY, LN])
    S(f's_lshr_b32 s{S_T0}, s2, 3'); S(f's_mul_i32 s{S_T0}, s{S_T0}, 3360'); S(f's_add_u32 s{S_T0}, s{S_T0}, {WS_IMG[1]}')
    for q in range(4):
        if q == 3: execn(18)
        a.vmem(f'buffer_load_dwordx4 {vr(PF+4*q,4)}, v{V_L16}, s[{S_WS}:{S_WS+3}], s{S_T0} offen offset:{1024*q} sc1', [V_L16], R(PF+4*q, 4))
    fullexec()
    l_lin(('i', 1), S_WS, WS_EWT + 128, EWT + 128, 384, 'sc1')
    l_wait_lds(LDA, 0, 2, 'b', pre=(1, 8))
    l_lin(('i', 1), S_WS, WS_IMG[1], U[0], 16384, 'sc1')
    a.wait_vm_tag(('i', 0)); publish(1, 8)
    l_lin(('i', 1), S_WS, WS_IMG[1] + 16384, U[0] + 16384, IMG - 16384, 'sc1')
    a.wait_vm_tag(('i', 1)); publish(2, 8)
    a.wait_lds_all(); a.wait_vm_all(); a.raw('s_waitcnt lgkmcnt(0)', kind='wait')
    a.label('L_noel')
    if REP:
        a.wait_lds_all(); a.raw('s_memtime s[96:97]'); a.raw('s_memrealtime s[98:99]'); a.raw('s_waitcnt lgkmcnt(0)', kind='wait')
    S1 = DB; S2 = DB + 1
    for l in range(5):
        a.comment(f'======== layer {l}')
        stamp(f'L{l}')
        rdy_check({0: 1, 1: 2, 2: 3, 3: 4, 4: 6}[l], 8)
        for k in range(PFD): a_read(l, k)
        fq = []
        if l == 3:
            rdy_check(5, 8)
            u5 = u5_ops(); u5[0]()
            fq = u5[1:]
        if l == 4:
            V(f'v_mov_b32 v{t[0]}, 0x05040100', [], [t[0]])
            V(f'v_mov_b32 v{t[1]}, 0x07060302', [], [t[1]])
            V(f'v_cndmask_b32 v{t[0]}, v{t[0]}, v{t[1]}, s[{S_HI}:{S_HI+1}]', [t[0], t[1]], [t[0]])
            for q in range(7):
                V(f'v_perm_b32 v{XQ+q}, v{P16+2*q+1}, v{P16+2*q}, v{t[0]}', [P16+2*q+1, P16+2*q, t[0]], [XQ+q])
            for r in range(13): fq.append(lambda r=r: V(f'v_ldexp_f32 v{D+r}, v{D+r}, v{EW+r}', [D+r, EW+r], [D+r]))
            fq.append(lambda: V(f'v_mul_f32 v{S1}, v{D}, v{G}', [D, G], [S1]))
            for r in range(1, 13): fq.append(lambda r=r: V(f'v_fmac_f32 v{S1}, v{D+r}, v{G+r}', [S1, D+r, G+r], [S1]))
        for o in z_ops(l, 0): o()
        for o in z_ops(l, 1): o()
        if PRIO and not BPRIO and l < 4: a.raw('s_setprio 1')
        bpre = KPR and l >= KPR - 1
        if bpre and l < 4:
            S(isA); a.raw(f's_cbranch_scc1 L_kp{l}', kind='branch'); a.raw('s_setprio 3'); a.label(f'L_kp{l}')
        DD = DT if l == 4 else D
        for k in range(NK[l]):
            if k == NK[l] - 8: pwrd(l)
            zo = z_ops(l, k + 2) if k + 2 < NK[l] else []
            if k % 2 == 0 and k + 1 < NK[l]: a._wait_regs(R(AB[(k + 1) % NAB], 4))
            a.mfma('v_mfma_f32_32x32x16_f16', DD, AB[k % NAB], zbuf(l, k), DD if k > 0 else None, 8, 16)
            if k + PFD < NK[l]: a_read(l, k + PFD)
            for o in zo: o()
            if PRIO and not BPRIO and k == 2:
                if bpre:
                    S(isB); a.raw(f's_cbranch_scc1 L_kq{l}', kind='branch'); a.raw('s_setprio 2'); a.label(f'L_kq{l}')
                else: a.raw('s_setprio 2')
            if l == 4:
                for _ in range(2 if k >= 18 or k % 4 == 0 else 1):
                    if fq and k >= 1: fq.pop(0)()
            elif fq and k >= 4: fq.pop(0)()
        assert not fq
        if l == 0: release(4)
        if l < 3:
            if PRIO and not BPRIO: a.raw('s_setprio 0')
            for o in boundary_ops(l): o()
    stamp('fin')
    rdy_check(7, 8)
    V(f'v_bfe_u32 v{t[5]}, v{V_LANE}, 4, 1', [V_LANE], [t[5]])
    V(f'v_and_b32 v{t[6]}, 15, v{V_LANE}', [V_LANE], [t[6]])
    V(f'v_lshl_add_u32 v{t[5]}, v{t[6]}, 4, v{t[5]}', [t[5], t[6]], [t[5]])
    V(f'v_lshlrev_b32 v{t[5]}, 2, v{t[5]}', [t[5]], [t[5]])
    S(f's_lshl_b32 s{S_T0}, s{S_WAVE}, 3'); S(f's_add_u32 s{S_T0}, s{S_T0}, {PD}')
    V(f'v_add_u32 v{t[5]}, s{S_T0}, v{t[5]}', [t[5]], [t[5]])
    V(f'v_and_b32 v{t[6]}, 44, v{V_LANE}', [V_LANE], [t[6]])
    V(f'v_cmp_eq_u32 vcc, 0, v{t[6]}', [t[6]], [], swrites=['vcc'])
    V(f'v_mov_b32 v{t[6]}, 0x30000', [], [t[6]])
    V(f'v_cndmask_b32 v{t[5]}, v{t[6]}, v{t[5]}, vcc', [t[5], t[6]], [t[5]], sreads=['vcc'])
    a.ds(f'ds_read_b32 v{t[6]}, v{t[5]}', [t[5]], [t[6]])
    for r in range(13): V(f'v_lshl_add_u32 v{PW+r}, v{V_EX}, 1, v{PW+r}', [V_EX, PW+r], [PW+r])
    for r in range(13): V(f'v_ldexp_f32 v{DT+r}, v{DT+r}, v{PW+r}', [DT+r, PW+r], [DT+r])
    for r in range(13): V(f'v_fmac_f32 v{S1}, v{D+r}, v{DT+r}', [S1, D+r, DT+r], [S1])
    V(f'v_ldexp_f32 v{S1}, v{S1}, v{V_E}', [S1, V_E], [S1])
    V(f'v_add_f32 v{V_ACC}, v{V_ACC}, v{S1}', [V_ACC, S1], [V_ACC])
    A_ = V_ACC
    V(f'v_add_f32 v{A_}, v{A_}, v{t[6]}', [A_, t[6]], [A_])
    for d in (8, 4, 2, 1):
        V(f'v_add_f32_dpp v{A_}, v{A_}, v{A_} row_ror:{d} row_mask:0xf bank_mask:0xf', [A_], [A_], dpp=True)
    V(f'v_mov_b32 v{t[5]}, v{A_}', [A_], [t[5]])
    V(f'v_permlane32_swap_b32 v{A_}, v{t[5]}', [A_, t[5]], [A_, t[5]], permlane=True)
    V(f'v_add_f32 v{A_}, v{A_}, v{t[5]}', [A_, t[5]], [A_])
    V(f'v_cvt_pk_bf16_f32 v{A_}, v{A_}, v{A_}', [A_], [A_])
    V(f'v_lshrrev_b32 v{t[5]}, 3, v{V_LANE}', [V_LANE], [t[5]])
    S(f's_lshl_b32 s{S_T0}, s2, 5'); S(f's_lshl_b32 s{S_T1}, s{S_WAVE}, 2'); S(f's_add_u32 s{S_T0}, s{S_T0}, s{S_T1}')
    S('s_mov_b64 exec, 0x10001')
    a.vmem(f'buffer_store_short v{A_}, v{t[5]}, s[{S_OUT}:{S_OUT+3}], s{S_T0} offen', [A_, t[5]], [])
    if REP:
        a.raw('s_memtime s[100:101]'); a.raw('s_memrealtime s[4:5]'); a.raw('s_waitcnt lgkmcnt(0)', kind='wait')
        S(f's_cmp_lg_u32 s{S_WAVE}, 4'); a.raw('s_cbranch_scc1 L_norep', kind='branch')
        S('s_and_b32 s6, s2, 0xfc'); S('s_cmp_lg_u32 s6, 100'); a.raw('s_cbranch_scc1 L_norep', kind='branch')
        S('s_sub_u32 s96, s96, s92'); S('s_sub_u32 s98, s98, s94'); S('s_sub_u32 s100, s100, s92'); S('s_sub_u32 s4, s4, s94')
        V('v_mov_b32 v16, s96', [], [16]); V('v_mov_b32 v17, s98', [], [17]); V('v_mov_b32 v18, s100', [], [18]); V('v_mov_b32 v19, s4', [], [19])
        S('s_and_b32 s6, s2, 3'); S('s_lshl_b32 s6, s6, 4'); V('v_mov_b32 v20, s6', [], [20])
        S('s_mov_b64 exec, 1')
        a.vmem(f'buffer_store_dwordx4 v[16:19], v20, s[{S_DBGF}:{S_DBGF+3}], 0 offen', [16,17,18,19,20], [])
        a.label('L_norep')
    dbg_out()
    a.raw('s_endpgm')

    a.label('L_loader')
    a.lds = []; a.vm = []; a.valu_w = {}; a.mfma_w = {}; a.mfma_c = {}; a.trans_w = {}; a.store_src = {}; a.opsel_w = {}
    stamp_n[0] = 1
    names_c = a.stamp_names; a.stamp_names = []
    WO = 16
    S(f's_movk_i32 s{S_T0}, 4682')
    for k in range(7):
        V(f'v_add_u32 v{t[0]}, {64*k}, v{V_LANE}', [V_LANE], [t[0]])
        V(f'v_mul_u32_u24 v{t[1]}, s{S_T0}, v{t[0]}', [t[0]], [t[1]])
        V(f'v_lshrrev_b32 v{t[1]}, 16, v{t[1]}', [t[1]], [t[1]])
        V(f'v_mul_u32_u24 v{t[2]}, {832 - 224}, v{t[1]}', [t[1]], [t[2]])
        V(f'v_lshl_add_u32 v{WO+k}, v{t[0]}, 4, v{t[2]}', [t[0], t[2]], [WO+k])
    S(f's_and_b32 s{S_T4}, s{S_WAVE}, 3'); S(f's_lshl_b32 s{S_T3}, s{S_T0L}, 5')
    V(f'v_mov_b32 v{V_SYNC}, {SYNC}', [], [V_SYNC])
    V(f'v_lshrrev_b32 v{t[4]}, 4, v{V_LANE}', [V_LANE], [t[4]])
    V(f'v_lshrrev_b32 v{t[0]}, 2, v{V_LANE}', [V_LANE], [t[0]])
    V(f'v_mul_u32_u24 v{t[0]}, 224, v{t[0]}', [t[0]], [t[0]])
    V(f'v_and_b32 v{t[5]}, 3, v{V_LANE}', [V_LANE], [t[5]])
    V(f'v_lshl_add_u32 v{V_DAADDR}, v{t[5]}, 3, v{t[0]}', [t[5], t[0]], [V_DAADDR])
    V(f'v_add_u32 v{V_DBK}, 121600, v{V_DAADDR}', [V_DAADDR], [V_DBK])
    S(f's_add_u32 s{S_T1}, s{S_T3}, {BW}')
    V(f'v_lshlrev_b32 v{t[4]}, 3, v{t[4]}', [t[4]], [t[4]])
    V(f'v_add_u32 v{V_BWADDR}, s{S_T1}, v{t[4]}', [t[4]], [V_BWADDR])
    V(f'v_add_u32 v{t[7]}, {TAB}, v{t[4]}', [t[4]], [t[7]])
    S(f's_lshl_b32 s{S_T0}, s{S_WAVE}, 2'); S(f's_add_u32 s{S_T0}, s{S_T0}, {SYNC + 32}')
    V(f'v_mov_b32 v{V_DONEA}, s{S_T0}', [], [V_DONEA])
    V(f'v_and_b32 v{t[9]}, 15, v{V_LANE}', [V_LANE], [t[9]])
    V(f'v_mul_u32_u24 v{t[9]}, 104, v{t[9]}', [t[9]], [t[9]])
    V(f'v_mov_b32 v{t[8]}, 1', [], [t[8]])
    if CDLY: a.raw(f's_barrier', kind='barrier')
    for j in range(4):
        if j == 3:
            S(f's_cmp_lg_u32 s{S_T4}, 0'); a.cond_begin('s_cbranch_scc1 L_nc12', 'L_nc12')
        S(f's_add_u32 s{S_T0}, s{S_T4}, {4*j}')
        S(f's_add_u32 s{S_T1}, s{S_T0}, s{S_ROT}'); S(f's_cmp_ge_u32 s{S_T1}, 13'); S(f's_cselect_b32 s{S_T2}, 13, 0'); S(f's_sub_u32 s{S_T1}, s{S_T1}, s{S_T2}')
        S(f's_mul_i32 s{S_KO}, s{S_T1}, 26624'); S(f's_add_u32 s{S_KO}, s{S_KO}, s{S_T3}')
        S(f's_mul_i32 s{S_T1}, s{S_T0}, {CH}'); S(f's_cmp_lt_u32 s{S_T0}, 3'); S(f's_mov_b32 s{S_T2}, {-3*CH}'); S(f's_cselect_b32 s{S_T2}, 121600, s{S_T2}'); S(f's_add_u32 s{S_T1}, s{S_T1}, s{S_T2}')
        for k in range(7):
            S(f's_add_u32 m0, s{S_T1}, {1024*k}', m0=True)
            a.vmem(f'buffer_load_dwordx4 v{WO+k}, s[{S_W1}:{S_W1+3}], s{S_KO} offen lds', [WO+k], [], tag=('c', j), dma=True)
        if j == 3: a.cond_end()
    stamp('w1iss')
    a.raw(f's_setprio {CPR}')
    def arrive(off):
        S('s_mov_b64 exec, 1'); a.ds(f'ds_add_u32 v{V_SYNC}, v{t[8]} offset:{off}', [V_SYNC, t[8]]); fullexec()
    a.wait_vm_tag(('c', 1)); arrive(0)
    rdy_check(8, 24)
    stamp('tab')
    S(f's_and_b32 s{S_T0}, s{S_WAVE}, 3'); S(f's_mul_i32 s{S_T0}, s{S_T0}, 1664'); S(f's_add_u32 s{S_T0}, s{S_T0}, {IDXB}')
    S(f's_add_u32 s{S_T2}, s{S_T0}, 104'); S(f's_lshl_b32 s{S_KO}, s{S_ROT}, 3'); S(f's_add_u32 s{S_KO}, s{S_KO}, s{S_T0}')
    for i in range(13):
        tt = t[2 + (i % 4)]
        V(f'v_add_u32 v{tt}, s{S_KO}, v{t[9]}', [t[9]], [tt])
        a.ds(f'ds_read_b64 {vr(IXR+2*i,2)}, v{tt}', [tt], R(IXR+2*i, 2))
        if i < 12:
            S(f's_add_u32 s{S_KO}, s{S_KO}, 8'); S(f's_cmp_eq_u32 s{S_KO}, s{S_T2}'); S(f's_cselect_b32 s{S_KO}, s{S_T0}, s{S_KO}')
    BT = 104
    for q in range(7):
        a.ds(f'ds_read_b64 {vr(BT+2*q,2)}, v{V_BWADDR} offset:{32*q}', [V_BWADDR], R(BT+2*q, 2))
    a.wait_vm_all(); arrive(80)
    for f in range(26):
        V(f'v_lshl_add_u32 v{IXR+f}, v{IXR+f}, 5, v{t[7]}', [IXR+f, t[7]], [IXR+f])
    for q in range(7):
        V(f'v_lshlrev_b32 v{ACC+4*q}, 16, v{BT+2*q}', [BT+2*q], [ACC+4*q])
        V(f'v_and_b32 v{ACC+4*q+1}, 0xffff0000, v{BT+2*q}', [BT+2*q], [ACC+4*q+1])
        V(f'v_lshlrev_b32 v{ACC+4*q+2}, 16, v{BT+2*q+1}', [BT+2*q+1], [ACC+4*q+2])
        V(f'v_and_b32 v{ACC+4*q+3}, 0xffff0000, v{BT+2*q+1}', [BT+2*q+1], [ACC+4*q+3])
    a.wait_lds_all()
    def dnn_loop(xt):
        qs = list(range(0 if xt else 1, 7))
        rdy_check(4, 0); dnn_bread(0)
        for q in qs: dnn_aread(0, q)
        for i in range(13):
            a.comment(f'======== DNN step {i} xt={xt}')
            if i + 1 < 13:
                if i + 1 == 8: rdy_check(4, 80)
                dnn_bread(i + 1)
            for q in qs:
                dnn_mf(i, q)
                if i + 1 < 13: dnn_aread(i + 1, q)
            if i in (2, 7, 12): release({2: 1, 7: 2, 12: 9}[i])
        if EPRIO is not None: a.raw(f's_setprio {EPRIO}')
        dnn_epilogue(xt)
        a.wait_lds_all(); a.nop(8)
    S(f's_cmp_ge_u32 s{S_Q}, 2')
    a.raw('s_cbranch_scc1 L_dnn0', kind='branch')
    dnn_loop(1)
    a.raw('s_branch L_dnnend', kind='branch')
    a.label('L_dnn0')
    dnn_loop(0)
    a.label('L_dnnend')
    stamp('cdone')
    S(f's_cmp_lg_u32 s{S_WAVE}, 8')
    a.raw('s_cbranch_scc1 L_cend', kind='branch')
    a.raw('s_setprio 3')
    l_setup()
    l_wait_lds(LSY, 8, 2, 'n')
    a.ds(f'ds_read_b32 v{LN}, v{LSY} offset:28', [LSY], [LN])
    l_wait_lds(LDA, 0, 3, 'c'); stamp('dnndone')
    l_lin(('i', 2), S_WS, WS_IMG[2], U[1], IMG, 'sc1')
    l_lin(('i', 3), S_WS, WS_IMG[3], U[2], IMG, 'sc1')
    a.wait_vm_tag(('i', 2)); publish(3, 8)
    a.wait_vm_tag(('i', 3)); publish(4, 8)
    l_wait_lds(LSY, 4, 4, 'd')
    V(f'v_lshlrev_b32 v{t[0]}, 3, v{V_LANE}', [V_LANE], [t[0]])
    V(f'v_add_u32 v{t[0]}, {PDL}, v{t[0]}', [t[0]], [t[0]])
    a.ds(f'ds_read_b64 {vr(LG+4,2)}, v{t[0]}', [t[0]], R(LG+4, 2))
    V(f'v_bfe_u32 v{t[1]}, v{V_LANE}, 3, 2', [V_LANE], [t[1]])
    V(f'v_add_u32 v{t[1]}, s{S_Q}, v{t[1]}', [t[1]], [t[1]])
    V(f'v_and_b32 v{t[1]}, 3, v{t[1]}', [t[1]], [t[1]])
    V(f'v_lshlrev_b32 v{t[1]}, 13, v{t[1]}', [t[1]], [t[1]])
    V(f'v_and_b32 v{t[2]}, 7, v{V_LANE}', [V_LANE], [t[2]])
    V(f'v_lshl_add_u32 v{t[1]}, v{t[2]}, 4, v{t[1]}', [t[2], t[1]], [t[1]])
    S(f's_lshl_b32 s{S_T0}, s{S_CB}, 10'); S(f's_lshl_b32 s{S_T1}, s{S_Q}, 7'); S(f's_add_u32 s{S_T0}, s{S_T0}, s{S_T1}'); S(f's_add_u32 s{S_T0}, s{S_T0}, {WS_INB}')
    V(f'v_mov_b32 v{LG}, v{LG+4}', [LG+4], [LG]); V(f'v_mov_b32 v{LG+1}, v{LN}', [LN], [LG+1])
    V(f'v_mov_b32 v{LG+2}, v{LG+5}', [LG+5], [LG+2]); V(f'v_mov_b32 v{LG+3}, v{LN}', [LN], [LG+3])
    execn(32)
    a.vmem(f'buffer_store_dwordx4 {vr(LG,4)}, v{t[1]}, s[{S_WS}:{S_WS+3}], s{S_T0} offen sc1', [t[1]] + R(LG, 4), [], wide_store=R(LG, 4))
    fullexec()
    l_lin('v5f', S_WS, WS_V5F, V5F, 4096, 'sc1')
    l_flag(16, 17)
    a.wait_vm_tag('v5f'); publish(5, 8)
    l_wait_lds(LDA, 0, 4, 'e')
    l_poll(16, 17, 'b')
    l_lin(('i', 4), S_WS, WS_IMGT, I0B, IMG0, 'sc1')
    l_lin(('i', 4), S_WS, WS_EWT + 512, EWT + 512, 128, 'sc1')
    a.wait_vm_all(); publish(6, 8); stamp('i5')
    S(f's_lshl_b32 s{S_T2}, s2, 10'); S(f's_add_u32 s{S_T2}, s{S_T2}, {WS_INB}')
    S(f's_mov_b32 s{S_T0}, 0')
    execn(32)
    a.label('L_inb')
    a.raw(f'buffer_load_dwordx4 {vr(LG+8,4)}, v{V_L16}, s[{S_WS}:{S_WS+3}], s{S_T2} offen sc1', kind='vmem')
    S(f's_add_u32 s{S_T0}, s{S_T0}, 1')
    a.raw('s_waitcnt vmcnt(0)', kind='wait')
    a.raw(f'v_cmp_ne_u32 vcc, v{LN}, v{LG+9}', kind='valu')
    a.raw(f'v_cmp_ne_u32 s[{S_MT}:{S_MT+1}], v{LN}, v{LG+11}', kind='valu')
    a.raw('s_nop 1', kind='nop')
    a.raw(f's_or_b64 vcc, vcc, s[{S_MT}:{S_MT+1}]', kind='salu')
    a.raw('s_cbranch_vccz L_inbok', kind='branch')
    a.raw(f's_sleep {PSLEEP}')
    S(f's_cmp_lt_u32 s{S_T0}, 0x40000')
    a.raw('s_cbranch_scc1 L_inb', kind='branch')
    a.label('L_inbok')
    V(f'v_mov_b32 v{LG+9}, v{LG+10}', [LG+10], [LG+9])
    V(f'v_lshlrev_b32 v{t[0]}, 3, v{V_LANE}', [V_LANE], [t[0]])
    V(f'v_add_u32 v{t[0]}, {PD}, v{t[0]}', [t[0]], [t[0]])
    a.ds(f'ds_write_b64 v{t[0]}, {vr(LG+8,2)}', [t[0], LG+8, LG+9])
    publish(7, 8)
    a.label('L_cend')
    dbg_out()
    a.label('L_end')
    a.raw('s_endpgm')
    a.stamp_names = (names_c, a.stamp_names)
    return a

HEADER = open('cdna_kernels/' + NAME + '.s.ref').read().split('; Override launch geometry')[0]
def wrap(a):
    s = HEADER
    s += f'; @launch grid=(256,1,1) block=(768,1,1) lds={LDS_TOTAL}\n'
    s += '.amdgcn_target "amdgcn-amd-amdhsa--gfx950"\n.text\n'
    s += f'.globl {NAME}_kernel\n.p2align 8\n.type {NAME}_kernel,@function\n{NAME}_kernel:\n'
    s += a.text()
    s += f'''.section .rodata,"a"
.p2align 6
.amdhsa_kernel {NAME}_kernel
  .amdhsa_next_free_vgpr {NV}
  .amdhsa_next_free_sgpr 102
  .amdhsa_accum_offset {NV}
  .amdhsa_group_segment_fixed_size 0
  .amdhsa_kernarg_size 88
  .amdhsa_user_sgpr_count 2
  .amdhsa_user_sgpr_kernarg_segment_ptr 1
  .amdhsa_system_sgpr_workgroup_id_x 1
  .amdhsa_float_denorm_mode_32 3
.end_amdhsa_kernel
'''
    return s

if __name__ == '__main__':
    import argparse
    ap = argparse.ArgumentParser()
    ap.add_argument('out', nargs='?', default='cdna_kernels/' + NAME + '.s')
    ap.add_argument('--dbg', type=int, default=0)
    ap.add_argument('--prio', type=int, default=1)
    ap.add_argument('--splitepi', type=int, default=1)
    args = ap.parse_args()
    a = gen(debug=args.dbg, PRIO=args.prio, SPLITEPI=args.splitepi)
    open(args.out, 'w').write(wrap(a))
    print(a.count, 'lines', len(a.lines), a.stamp_names)
```

```python
import sys, struct
sys.path.insert(0, 'gen')
from asmfw import *

NAME = 'standalone__deep_cross_xdeepfm__recsys'
IMG = 35776; IMG0 = 19136
U = [IMG * i for i in range(4)]
CH = 7168
CADDR = [121600 + CH * i for i in range(3)] + [CH * i for i in range(10)]
TAB = 71680; IDXB = 103680; SCR = 110336
I0B = 143104 - IMG0
X16 = 143104
V5F = 156672; EWT = 160768; POOLW = 161408; BW = 162048
PDL = V5F
PD = BW
SYNC = 163712
LDS_TOTAL = 163776
WS_IMG0 = 0
WS_IMG = [None] + [19200 + IMG * i for i in range(4)]
WS_V5F = 19200 + 4 * IMG
WS_EWT = WS_V5F + 4096
WS_IMGT = WS_IMG[4]; WS_V5R = WS_EWT + 1024
WS_INB = 0x40000
WS_SIZE = WS_INB + 256 * 1024
NP0 = 7; NP1 = 24; NP2 = 31; NPT0 = 32; NPT = 39
S_IDX, S_TAB, S_WC, S_WCO, S_W1, S_B1, S_W2, S_BO, S_OUT, S_DBGF, S_WS = [24 + 4 * i for i in range(11)]
S_WAVE = 68; S_T0 = 69; S_T1 = 70; S_T2 = 71; S_T3 = 72; S_T4 = 73
S_HI = 74; S_C = 76; S_K7FFF = 77; S_K8000 = 78; S_Q = 79; S_K2 = 80; S_G = 81; S_HALF = 82
S_ROT = 83; S_MT = 84; S_PID = 86; S_CB = 87; S_XT = 88; S_T0L = 89; S_KO = 90; S_KN = 91; S_SET = 92; S_LAST = 93
SM = [4, 6, 8, 10, 12, 14, 16]
V_LANE = 1
V_T = list(range(2, 12))
V_STAMP = 12; V_E = 13; V_EX = 14; V_ACC = 15
P16 = 16; V_SH = 30; V_L16 = 31
XQ = 32; V_TRADDR = 39; D = 40
ZB = [56, 60, 64]; ZL = 68
AB = [72, 76, 80, 84, 4, 8]; NAB = 6; PFD = 5
PW = 88; EW = 102
V_PWADDR = 101; V_DBADDR = 115
DACC = 116; DA = 132; DB = 148
QH = 152
V_AADDR = [159, 160]; V_AADDR0 = 161; V_DAADDR = 162; V_DBK = 163; V_BWADDR = 164; V_SYNC = 165; V_RDY = 166; V_DONEA = 167
G = DACC; UA = DA
PBT = 68
VT1 = 158; VT2 = 159; VT3 = 160
DA2 = 88; DB2 = 104
NV = 168

import os
PX = int(os.environ.get('PX', '0'))
NL = int(os.environ.get('NL', '5'))
REP = int(os.environ.get('REP', '0'))
PSLEEP = int(os.environ.get('PSLEEP', '6'))
TOUCH = int(os.environ.get('TOUCH', '2'))
XP = os.environ.get('XP', '')
KNOP = int(os.environ.get('KNOP', '0'))
FINSTEP = int(os.environ.get('FINSTEP', '2'))
DG = int(os.environ.get('DG', '1'))
BPRIO = int(os.environ.get('BPRIO', '0'))
EPRIO = os.environ.get('EPRIO')
TABP = int(os.environ.get('TABP', '1'))
SETS = os.environ.get('SETS', '0')
LB0 = int(os.environ.get('LB0', '6'))
KPR = int(os.environ.get('KPR', '0'))
CPF = int(os.environ.get('CPF', '0'))
LBAR = int(os.environ.get('LBAR', '7'))
def fb(x): return '0x%08x' % struct.unpack('<I', struct.pack('<f', x))[0]

def gen(debug=None, PRIO=1, SPLITEPI=1, LPRE=24):
    a = Asm()
    V = a.valu; S = a.salu
    t = V_T
    stamp_n = [0]
    a.stamp_names = []
    def stamp(name=''):
        if not debug: return
        a.wait_lds_all()
        a.raw('s_memtime s[98:99]')
        a.raw('s_waitcnt lgkmcnt(0)', kind='wait')
        a.valu(f'v_writelane_b32 v{V_STAMP}, s98, {stamp_n[0]}', [], [V_STAMP])
        a.stamp_names.append(name)
        stamp_n[0] += 1
    def execn(n):
        if n <= 32: S(f's_mov_b64 exec, 0x{(1<<n)-1:x}')
        else: S(f's_mov_b32 exec_hi, 0x{(1<<(n-32))-1:x}')
    def fullexec(): S('s_mov_b64 exec, -1')
    def rawbar(): a.raw('s_barrier', kind='barrier')
    def dbg_out():
        if not debug: return
        fullexec()
        stamp('end')
        a.valu(f'v_writelane_b32 v{V_STAMP}, s100, 62', [], [V_STAMP])
        a.raw('s_memrealtime s[98:99]')
        a.raw('s_waitcnt lgkmcnt(0)', kind='wait')
        a.valu(f'v_writelane_b32 v{V_STAMP}, s98, 63', [], [V_STAMP])
        V(f'v_lshlrev_b32 v{t[0]}, 2, v0', [0], [t[0]])
        S(f's_mul_i32 s{S_T0}, s2, 2304'); S(f's_add_u32 s{S_T0}, s{S_T0}, 0x100000')
        a.vmem(f'buffer_store_dword v{V_STAMP}, v{t[0]}, s[{S_WS}:{S_WS+3}], s{S_T0} offen', [V_STAMP, t[0]], [])
    S('s_cmp_ge_u32 s2, 256')
    a.raw('s_cbranch_scc1 L_end', kind='branch')
    if debug:
        a.raw('s_memrealtime s[100:101]')
        stamp('start')
    if REP:
        a.raw('s_memtime s[92:93]'); a.raw('s_memrealtime s[94:95]')
    a.raw('s_load_dwordx16 s[4:19], s[0:1], 0')
    a.raw('s_load_dwordx4 s[20:23], s[0:1], 64')
    a.raw(f's_load_dwordx2 s[{S_WS}:{S_WS+1}], s[0:1], 80')
    V(f'v_and_b32 v{V_LANE}, 63, v0', [0], [V_LANE])
    V(f'v_lshrrev_b32 v{t[0]}, 6, v0', [0], [t[0]])
    V(f'v_readfirstlane_b32 s{S_WAVE}, v{t[0]}', [t[0]], [], swrites=[S_WAVE], readlane=True)
    V(f'v_lshlrev_b32 v{t[1]}, 2, v{V_LANE}', [V_LANE], [t[1]])
    V(f'v_add_u32 v{t[1]}, {SYNC}, v{t[1]}', [t[1]], [t[1]])
    V(f'v_mov_b32 v{t[2]}, 0', [], [t[2]])
    S(f's_cmp_lg_u32 s{S_WAVE}, 0', sreads=[S_WAVE])
    a.raw('s_cbranch_scc1 L_noinit', kind='branch')
    execn(16)
    a.raw(f'ds_write_b32 v{t[1]}, v{t[2]}', kind='ds')
    fullexec()
    a.label('L_noinit')
    S(f's_mov_b32 s{S_K7FFF}, 0x7fff7fff'); S(f's_mov_b32 s{S_K8000}, 0x80008000'); S(f's_mov_b32 s{S_HALF}, 0x38003800')
    S(f's_mov_b32 s{S_HI}, 0'); S(f's_mov_b32 s{S_HI+1}, -1')
    V(f'v_lshlrev_b32 v{V_L16}, 4, v{V_LANE}', [V_LANE], [V_L16])
    S(f's_lshr_b32 s{S_T0}, s2, 3'); S(f's_and_b32 s{S_Q}, s{S_T0}, 3'); S(f's_lshr_b32 s{S_T1}, s{S_T0}, 2')
    S(f's_lshr_b32 s{S_ROT}, s{S_T1}, 1'); S(f's_add_u32 s{S_ROT}, s{S_ROT}, s{S_T1}')
    S(f's_andn2_b32 s{S_CB}, s2, 0x18')
    S(f's_mov_b32 s{S_SET}, 0'); S(f's_and_b32 s{S_T1}, s2, 7'); S(f's_lshl_b32 s{S_PID}, s{S_T1}, 5'); S(f's_add_u32 s{S_PID}, s{S_PID}, s{S_T0}')
    S(f's_cmp_{"ge" if DG else "lt"}_u32 s{S_WAVE}, 4', sreads=[S_WAVE]); S(f's_cselect_b32 s{S_PID}, 255, s{S_PID}')
    S(f's_cmp_eq_u32 s{S_WAVE}, 8'); S(f's_cselect_b32 s{S_PID}, 255, s{S_PID}')
    S(f's_and_b32 s{S_G}, s{S_WAVE}, 3'); S(f's_lshl_b32 s{S_T1}, s{S_PID}, 2'); S(f's_add_u32 s{S_G}, s{S_G}, s{S_T1}')
    S(f's_min_u32 s{S_T0L}, s{S_Q}, 1'); S(f's_mul_i32 s{S_T1}, s{S_Q}, 6'); S(f's_add_u32 s{S_T0L}, s{S_T0L}, s{S_T1}')
    S(f's_cmp_lt_u32 s{S_WAVE}, 4'); S(f's_cselect_b32 s{S_XT}, 1, 0'); S(f's_cmp_lt_u32 s{S_Q}, 2'); S(f's_cselect_b32 s{S_XT}, s{S_XT}, 0')
    a.raw('s_waitcnt lgkmcnt(0)', kind='wait')
    rawbar()
    sizes = [425984, 32000, 210912, 312, 346112, 832, 832, 2, 8192, 256]
    srds = [S_IDX, S_TAB, S_WC, S_WCO, S_W1, S_B1, S_W2, S_BO, S_OUT, S_DBGF]
    for i in range(10):
        sb, sz = srds[i], sizes[i]
        S(f's_mov_b32 s{sb}, s{4+2*i}'); S(f's_and_b32 s{sb+1}, s{5+2*i}, 0xffff')
        S(f's_mov_b32 s{sb+2}, {sz}'); S(f's_mov_b32 s{sb+3}, 0x00020000')
    S(f's_and_b32 s{S_WS+1}, s{S_WS+1}, 0xffff'); S(f's_mov_b32 s{S_WS+2}, {0x1000000 if debug else WS_SIZE}'); S(f's_mov_b32 s{S_WS+3}, 0x00020000')
    S(f's_cmp_eq_u32 s{S_WAVE}, 8')
    a.raw('s_cbranch_scc1 L_loader', kind='branch')

    def dpp_max(m):
        for d in ('row_shr:1 row_mask:0xf', 'row_shr:2 row_mask:0xf', 'row_shr:4 row_mask:0xf', 'row_shr:8 row_mask:0xf', 'row_bcast:15 row_mask:0xa', 'row_bcast:31 row_mask:0xc'):
            V(f'v_max_u32_dpp v{m}, v{m}, v{m} {d} bank_mask:0xf', [m], [m], dpp=True)
    def rho_salu(sh, st1, st2, clamp=True):
        S(f's_cmp_ge_u32 s{sh}, 13'); S(f's_cselect_b32 s{st1}, 1, 0')
        S(f's_mul_i32 s{st2}, s{st1}, 13'); S(f's_sub_u32 s{sh}, s{sh}, s{st2}')
        S(f's_lshl_b32 s{st2}, s{st1}, 2')
        S(f's_lshl_b32 s{st1}, s{st1}, 4'); S(f's_add_u32 s{st1}, s{st1}, s{sh}')
        S(f's_add_u32 s{st2}, s{st2}, s{sh}'); S(f's_and_b32 s{sh}, s{sh}, 12'); S(f's_add_u32 s{sh}, s{sh}, s{st2}')
        if clamp: S(f's_add_u32 s{sh}, s{sh}, 1'); S(f's_cmp_eq_u32 s{sh}, 29'); S(f's_cselect_b32 s{sh}, 0, s{sh}')

    V(f'v_mov_b32 v{V_SYNC}, {SYNC}', [], [V_SYNC])
    S(f's_lshl_b32 s{S_T0}, s{S_WAVE}, 12'); S(f's_add_u32 m0, s{S_T0}, {TAB}', m0=True)
    for k in range(4):
        if k == 3:
            S(f's_cmp_eq_u32 s{S_WAVE}, 7'); S(f's_cselect_b64 exec, 0xffff, -1')
        a.vmem(f'buffer_load_dwordx4 v{V_L16}, s[{S_TAB}:{S_TAB+3}], s{S_T0} offen offset:{1024*k} lds', [V_L16], [], dma=True)
    S(f's_lshr_b32 s{S_T0}, s{S_WAVE}, 1'); S(f's_add_u32 s{S_T0}, s{S_T0}, s{S_Q}'); S(f's_and_b32 s{S_T0}, s{S_T0}, 3')
    S(f's_lshl_b32 s{S_T0}, s{S_T0}, 3'); S(f's_or_b32 s{S_T0}, s{S_T0}, s{S_CB}'); S(f's_lshl_b32 s{S_T0}, s{S_T0}, 1')
    S(f's_and_b32 s{S_T1}, s{S_WAVE}, 1'); S(f's_add_u32 s{S_T0}, s{S_T0}, s{S_T1}'); S(f's_mul_i32 s{S_T0}, s{S_T0}, 832')
    S(f's_mul_i32 s{S_T1}, s{S_WAVE}, 832'); S(f's_add_u32 m0, s{S_T1}, {IDXB}', m0=True)
    S('s_mov_b32 exec_lo, -1'); S('s_mov_b32 exec_hi, 0xfffff')
    a.vmem(f'buffer_load_dwordx4 v{V_L16}, s[{S_IDX}:{S_IDX+3}], s{S_T0} offen lds', [V_L16], [], dma=True)
    S(f's_cmp_lg_u32 s{S_WAVE}, 5'); a.cond_begin('s_cbranch_scc1 L_nb1', 'L_nb1')
    S(f's_mov_b32 m0, {BW}', m0=True)
    a.vmem(f'buffer_load_dwordx4 v{V_L16}, s[{S_B1}:{S_B1+3}], 0 offen lds', [V_L16], [], dma=True)
    S(f's_mov_b32 m0, {BW + 832}', m0=True)
    a.vmem(f'buffer_load_dwordx4 v{V_L16}, s[{S_W2}:{S_W2+3}], 0 offen lds', [V_L16], [], dma=True)
    a.cond_end()
    fullexec()
    PWT = 136; BIGR = 137
    V(f'v_mov_b32 v{BIGR}, 0x7f000000', [], [BIGR])
    V(f'v_lshrrev_b32 v{t[0]}, 4, v0', [0], [t[0]])
    V(f'v_and_b32 v{t[1]}, 15, v0', [0], [t[1]])
    V(f'v_mad_u32_u24 v{t[0]}, v{t[0]}, 13, v{t[1]}', [t[0], t[1]], [t[0]])
    V(f'v_lshlrev_b32 v{t[0]}, 1, v{t[0]}', [t[0]], [t[0]])
    V(f'v_cmp_gt_u32 vcc, 13, v{t[1]}', [t[1]], [], swrites=['vcc'])
    V(f'v_cndmask_b32 v{t[0]}, v{BIGR}, v{t[0]}, vcc', [BIGR, t[0]], [t[0]], sreads=['vcc'])
    S(f's_cmp_gt_u32 s{S_WAVE}, 2')
    a.cond_begin('s_cbranch_scc1 L_nopw', 'L_nopw')
    a.vmem(f'buffer_load_ushort v{PWT}, v{t[0]}, s[{S_WCO}:{S_WCO+3}], 0 offen', [t[0]], [PWT])
    a.cond_end()
    V(f'v_mov_b32 v{t[2]}, 0', [], [t[2]])
    a.vmem(f'buffer_load_ushort v{V_ACC}, v{t[2]}, s[{S_BO}:{S_BO+3}], 0 offen', [t[2]], [V_ACC])
    def sym_addr(p, srow, wsbase):
        V(f'v_lshrrev_b32 v{p[3]}, 1, v{p[0]}', [p[0]], [p[3]])
        V(f'v_and_b32 v{p[4]}, 1, v{p[0]}', [p[0]], [p[4]])
        V(f'v_subrev_u32 v{p[5]}, 1, v{p[3]}', [p[3]], [p[5]])
        V(f'v_mul_i32_i24 v{p[5]}, v{p[5]}, v{p[3]}', [p[5], p[3]], [p[5]])
        V(f'v_lshrrev_b32 v{p[5]}, 1, v{p[5]}', [p[5]], [p[5]])
        V(f'v_mul_u32_u24 v{p[6]}, 12, v{p[3]}', [p[3]], [p[6]])
        V(f'v_sub_u32 v{p[6]}, v{p[6]}, v{p[5]}', [p[6], p[5]], [p[6]])
        V(f'v_mul_u32_u24 v{p[5]}, 92, v{p[4]}', [p[4]], [p[5]])
        V(f'v_add_u32 v{p[6]}, v{p[6]}, v{p[5]}', [p[6], p[5]], [p[6]])
        V(f'v_lshl_add_u32 v{p[6]}, v{p[1]}, 1, v{p[6]}', [p[1], p[6]], [p[6]])
        V(f'v_lshlrev_b32 v{p[6]}, 2, v{p[6]}', [p[6]], [p[6]])
        V(f'v_add_u32 v{p[6]}, s{S_T3}, v{p[6]}', [p[6]], [p[6]])
        V(f'v_lshlrev_b32 v{p[5]}, 1, v{p[1]}', [p[1]], [p[5]])
        V(f'v_sub_u32 v{p[3]}, v{p[3]}, v{p[5]}', [p[3], p[5]], [p[3]])
        V(f'v_cmp_gt_u32 vcc, 26, v{p[0]}', [p[0]], [], swrites=['vcc'])
        V(f'v_mov_b32 v{p[5]}, 100', [], [p[5]])
        V(f'v_cndmask_b32 v{p[3]}, v{p[5]}, v{p[3]}, vcc', [p[5], p[3]], [p[3]], sreads=['vcc'])
        V(f'v_add_u32 v{p[8]}, s{S_T3}, v{V_L16}', [V_L16], [p[8]])
        V(f'v_cmp_le_u32 vcc, 23, v{V_LANE}', [V_LANE], [], swrites=['vcc'])
        V(f'v_cndmask_b32 v{p[9]}, 0, 1, vcc', [], [p[9]], sreads=['vcc'])
        S(f's_mov_b32 s{S_T0}, s{srow}')
        rho_salu(S_T0, S_T1, S_T4)
        V(f'v_mul_u32_u24 v{p[9]}, {25*368}, v{p[9]}', [p[9]], [p[9]])
        V(f'v_add_u32 v{p[9]}, v{p[9]}, v{V_L16}', [p[9], V_L16], [p[9]])
        S(f's_mul_i32 s{S_T0}, s{S_T0}, 368'); S(f's_add_u32 s{S_T0}, s{S_T0}, {wsbase}')

    def sym_out(p, SD, MF, IF, ewl):
        m = p[10]
        V(f'v_max3_f32 v{m}, |v{SD}|, |v{SD+1}|, |v{SD+2}|', R(SD, 3), [m])
        for r in range(3, 15, 2):
            V(f'v_max3_f32 v{m}, |v{SD+r}|, |v{SD+r+1}|, v{m}', [SD+r, SD+r+1, m], [m])
        dpp_max(m)
        V(f'v_frexp_exp_i32_f32 v{m}, v{m}', [m], [m])
        V(f'v_readlane_b32 s{S_T4}, v{m}, 63', [m], [], swrites=[S_T4], readlane=True)
        S(f's_sub_i32 s{S_C}, 15, s{S_T4}', sreads=[S_T4])
        S(f's_sub_i32 s{S_T4}, s{S_T4}, 15')
        for r in range(14): V(f'v_ldexp_f32 v{SD+r}, v{SD+r}, s{S_C}', [SD+r], [SD+r])
        for rp in range(7):
            V(f'v_cvt_pk_f16_f32 v{MF+rp}, v{SD+2*rp}, v{SD+2*rp+1}', [SD+2*rp, SD+2*rp+1], [MF+rp])
        V(f'v_mov_b32 v{p[7]}, 0', [], [p[7]])
        V(f'v_mov_b32 v{p[13]}, s{S_T3}', [], [p[13]])
        a.ds(f'ds_write_b32 v{p[13]}, v{p[7]} offset:364', [p[13], p[7]])
        a.ds(f'ds_write_b32 v{p[13]}, v{p[7]} offset:732', [p[13], p[7]])
        for rp in range(7):
            aa, bb = rp >> 1, rp & 1
            V(f'v_cmp_ge_i32 vcc, {4*aa+bb}, v{p[3]}', [p[3]], [], swrites=['vcc'])
            if aa == 3: S('s_mov_b32 vcc_hi, 0', sreads=['vcc'])
            S('s_mov_b64 exec, vcc', sreads=['vcc'])
            a.ds(f'ds_write_b32 v{p[6]}, v{MF+rp} offset:{4*(4*aa+bb)}', [p[6], MF+rp])
            fullexec()
        a.raw('s_waitcnt lgkmcnt(0)', kind='wait')
        a.ds(f'ds_read_b128 {vr(IF,4)}, v{p[8]}', [p[8]], R(IF, 4))
        execn(46)
        a.vmem(f'buffer_store_dwordx4 {vr(IF,4)}, v{p[9]}, s[{S_WS}:{S_WS+3}], s{S_T0} offen sc1', [p[9]] + R(IF, 4), [], wide_store=R(IF, 4))
        fullexec()
        S(f's_lshl_b32 s{S_T1}, s{S_T1}, 2'); S(f's_add_u32 s{S_T1}, s{S_T1}, {WS_EWT + 128 * ewl}')
        V(f'v_mov_b32 v{p[11]}, s{S_T4}', [], [p[11]]); V(f'v_mov_b32 v{p[12]}, s{S_T1}', [], [p[12]])
        S('s_mov_b64 exec, 1')
        a.vmem(f'buffer_store_dword v{p[11]}, v{p[12]}, s[{S_WS}:{S_WS+3}], 0 offen sc1', [p[11], p[12]], [])

    S(f's_cmp_ge_u32 s{S_PID}, {NP2}')
    a.cond_begin('s_cbranch_scc1 L_noprod', 'L_noprod')
    p = [72 + i for i in range(16)]
    def skipchk():
        a.raw('s_setprio 3')
        V(f'v_mov_b32 v{t[1]}, 1', [], [t[1]]); S('s_mov_b64 exec, 1'); a.ds(f'ds_add_u32 v{V_SYNC}, v{t[1]} offset:24', [V_SYNC, t[1]]); fullexec()
    S(f's_cmp_ge_u32 s{S_G}, 68'); a.raw('s_cbranch_scc1 L_prodv5', kind='branch')
    S(f's_cmp_ge_u32 s{S_G}, 67'); a.raw('s_cbranch_scc1 L_noprod', kind='branch')
    S(f's_cmp_ge_u32 s{S_G}, 28'); a.raw('s_cbranch_scc1 L_prodrow', kind='branch')
    S(f's_cmp_ge_u32 s{S_G}, 26'); a.raw('s_cbranch_scc1 L_noprod', kind='branch')
    MF = 116; IF = 124; SD = 40
    V(f'v_and_b32 v{p[0]}, 31, v{V_LANE}', [V_LANE], [p[0]])
    V(f'v_lshrrev_b32 v{p[1]}, 5, v{V_LANE}', [V_LANE], [p[1]])
    V(f'v_mul_u32_u24 v{p[2]}, 52, v{p[0]}', [p[0]], [p[2]])
    V(f'v_lshl_add_u32 v{p[2]}, v{p[1]}, 4, v{p[2]}', [p[1], p[2]], [p[2]])
    S(f's_mul_i32 s{S_T2}, s{S_G}, 1352')
    a.vmem(f'buffer_load_dwordx4 {vr(MF,4)}, v{p[2]}, s[{S_WC}:{S_WC+3}], s{S_T2} offen', [p[2]], R(MF, 4))
    a.vmem(f'buffer_load_dwordx4 {vr(MF+4,4)}, v{p[2]}, s[{S_WC}:{S_WC+3}], s{S_T2} offen offset:32', [p[2]], R(MF+4, 4))
    V(f'v_lshlrev_b32 v{p[3]}, 3, v{p[1]}', [p[1]], [p[3]])
    V(f'v_sub_u32 v{p[3]}, v{p[0]}, v{p[3]}', [p[0], p[3]], [p[3]])
    V(f'v_and_b32 v{p[4]}, 1, v{p[3]}', [p[3]], [p[4]])
    V(f'v_lshlrev_b32 v{p[4]}, 4, v{p[4]}', [p[4]], [p[4]])
    V(f'v_mov_b32 v{p[5]}, 0x3f80', [], [p[5]])
    V(f'v_lshlrev_b32 v{p[4]}, v{p[4]}, v{p[5]}', [p[4], p[5]], [p[4]])
    V(f'v_ashrrev_i32 v{p[3]}, 1, v{p[3]}', [p[3]], [p[3]])
    for ks in range(2):
        for r in range(4):
            V(f'v_cmp_eq_u32 vcc, {8*ks + r}, v{p[3]}', [p[3]], [], swrites=['vcc'])
            V(f'v_cndmask_b32 v{IF+4*ks+r}, 0, v{p[4]}, vcc', [p[4]], [IF+4*ks+r], sreads=['vcc'])
    S(f's_lshl_b32 s{S_T3}, s{S_WAVE}, 10'); S(f's_add_u32 s{S_T3}, s{S_T3}, {SCR}')
    sym_addr(p, S_G, WS_IMG0)
    a.raw('s_waitcnt vmcnt(0)', kind='wait')
    skipchk()
    a.mfma('v_mfma_f32_32x32x16_bf16', SD, MF, IF, None, 8, 16)
    a.mfma('v_mfma_f32_32x32x16_bf16', SD, MF+4, IF+4, SD, 8, 16)
    a.mfma('v_mfma_f32_32x32x16_bf16', SD, IF, MF, SD, 8, 16)
    a.mfma('v_mfma_f32_32x32x16_bf16', SD, IF+4, MF+4, SD, 8, 16)
    sym_out(p, SD, MF, IF, 0)
    a.raw('s_branch L_prodfin', kind='branch')
    a.label('L_prodrow')
    S(f's_sub_u32 s{S_G}, s{S_G}, 28'); S(f's_lshl_b32 s{S_G}, s{S_G}, 1')
    PR = 40; PA = 88
    S(f's_mul_i32 s{S_T2}, s{S_G}, 1352'); S(f's_add_u32 s{S_T2}, s{S_T2}, 35152')
    V(f'v_cmp_le_u32 vcc, 43, v{V_LANE}', [V_LANE], [], swrites=['vcc'])
    V(f'v_cndmask_b32 v{p[0]}, 0, 1, vcc', [], [p[0]], sreads=['vcc'])
    V(f'v_mul_u32_u24 v{p[2]}, 12, v{p[0]}', [p[0]], [p[2]])
    V(f'v_sub_u32 v{p[2]}, v{V_L16}, v{p[2]}', [V_L16, p[2]], [p[2]])
    V(f'v_min_u32 v{p[3]}, 21, v{V_LANE}', [V_LANE], [p[3]])
    V(f'v_lshlrev_b32 v{p[4]}, 4, v{p[3]}', [p[3]], [p[4]])
    for rr in range(2):
        a.vmem(f'buffer_load_dwordx4 {vr(PR+8*rr,4)}, v{p[2]}, s[{S_WC}:{S_WC+3}], s{S_T2} offen offset:{1352*rr}', [p[2]], R(PR+8*rr, 4))
        a.vmem(f'buffer_load_dwordx4 {vr(PR+8*rr+4,4)}, v{p[4]}, s[{S_WC}:{S_WC+3}], s{S_T2} offen offset:{1352*rr+1012}', [p[4]], R(PR+8*rr+4, 4))
    V(f'v_mul_u32_u24 v{p[7]}, {25*688}, v{p[0]}', [p[0]], [p[7]])
    V(f'v_add_u32 v{p[7]}, v{p[7]}, v{V_L16}', [p[7], V_L16], [p[7]])
    V(f'v_add_u32 v{p[8]}, {26*688+336}, v{p[4]}', [p[4]], [p[8]])
    S(f's_mul_i32 s{S_T1}, s{S_G}, 2521'); S(f's_lshr_b32 s{S_T1}, s{S_T1}, 16')
    for rr in range(2):
        so, se = 4 + 2*rr, 5 + 2*rr
        S(f's_mul_i32 s{S_T3}, s{S_T1}, 26'); S(f's_sub_u32 s{S_T0}, s{S_G}, s{S_T3}'); S(f's_add_u32 s{S_T0}, s{S_T0}, {rr}')
        rho_salu(S_T0, S_T3, S_T4)
        S(f's_mul_i32 s{S_T0}, s{S_T0}, 688'); S(f's_mul_i32 s{so}, s{S_T1}, {IMG}'); S(f's_add_u32 s{so}, s{so}, s{S_T0}'); S(f's_add_u32 s{so}, s{so}, {WS_IMG[1]}')
        S(f's_lshl_b32 s{se}, s{S_T1}, 5'); S(f's_add_u32 s{se}, s{se}, s{S_T3}'); S(f's_lshl_b32 s{se}, s{se}, 2'); S(f's_add_u32 s{se}, s{se}, {WS_EWT + 128}')
    a.raw('s_waitcnt vmcnt(0)', kind='wait')
    skipchk()
    for i in range(16): V(f'v_and_b32 v{PA+i}, s{S_K7FFF}, v{PR+i}', [PR+i], [PA+i])
    m = p[11]
    V(f'v_pk_max_u16 v{m}, v{PA}, v{PA+1}', R(PA, 2), [m])
    for i in range(2, 16, 2): V(f'v_pk_maximum3_f16 v{m}, v{m}, v{PA+i}, v{PA+i+1}', [m, PA+i, PA+i+1], [m])
    V(f'v_max_u16_sdwa v{m}, v{m}, v{m} dst_sel:DWORD dst_unused:UNUSED_PAD src0_sel:WORD_1 src1_sel:WORD_0', [m], [m], opsel=True)
    dpp_max(m)
    V(f'v_readlane_b32 s{S_T0}, v{m}, 63', [m], [], swrites=[S_T0], readlane=True)
    S(f's_lshr_b32 s{S_T0}, s{S_T0}, 7', sreads=[S_T0], swrites=[S_T0])
    S(f's_sub_i32 s{S_T0}, s{S_T0}, 30'); S(f's_max_i32 s{S_T0}, s{S_T0}, 0')
    S(f's_mul_i32 s{S_C}, s{S_T0}, 0x800080'); S(f's_sub_i32 s{S_T0}, s{S_T0}, 112')
    for i in range(16): V(f'v_pk_sub_u16 v{PA+i}, v{PA+i}, s{S_C} clamp', [PA+i], [PA+i])
    for i in range(16): V(f'v_lshlrev_b32 v{PA+i}, 3, v{PA+i}', [PA+i], [PA+i])
    for i in range(16): V(f'v_bfi_b32 v{PA+i}, s{S_K8000}, v{PR+i}, v{PA+i}', [PA+i, PR+i], [PA+i])
    V(f'v_mov_b32 v{p[9]}, s{S_T0}', [], [p[9]]); V(f'v_mov_b32 v{p[10]}, 0', [], [p[10]])
    for rr in range(2):
        a.vmem(f'buffer_store_dwordx4 {vr(PA+8*rr,4)}, v{p[7]}, s[{S_WS}:{S_WS+3}], s{4+2*rr} offen sc1', [p[7]] + R(PA+8*rr, 4), [], wide_store=R(PA+8*rr, 4))
    execn(22)
    for rr in range(2):
        a.vmem(f'buffer_store_dwordx4 {vr(PA+8*rr+4,4)}, v{p[8]}, s[{S_WS}:{S_WS+3}], s{4+2*rr} offen sc1', [p[8]] + R(PA+8*rr+4, 4), [], wide_store=R(PA+8*rr+4, 4))
    S('s_mov_b64 exec, 1')
    for rr in range(2):
        a.vmem(f'buffer_store_dword v{p[9]}, v{p[10]}, s[{S_WS}:{S_WS+3}], s{5+2*rr} offen sc1', [p[9], p[10]], [])
    a.raw('s_branch L_prodfin', kind='branch')
    a.label('L_prodv5')
    S(f's_sub_u32 s{S_T0}, s{S_G}, 68'); S(f's_cmp_ge_u32 s{S_T0}, 28'); S(f's_cselect_b32 s{S_T3}, 1, 0'); S(f's_mul_i32 s{S_T1}, s{S_T3}, 28'); S(f's_sub_u32 s{S_T0}, s{S_T0}, s{S_T1}')
    S(f's_cmp_ge_u32 s{S_T0}, 26'); a.raw('s_cbranch_scc1 L_noprod', kind='branch')
    LA = 40; LB = 44; AC = 48
    S(f's_mul_i32 s{S_T2}, s{S_T0}, 52'); S(f's_mul_i32 s{S_T1}, s{S_T3}, 35152'); S(f's_add_u32 s{S_T2}, s{S_T2}, s{S_T1}'); S(f's_add_u32 s{S_T2}, s{S_T2}, {4*35152}')
    V(f'v_lshrrev_b32 v{p[0]}, 2, v{V_LANE}', [V_LANE], [p[0]])
    V(f'v_and_b32 v{p[1]}, 3, v{V_LANE}', [V_LANE], [p[1]])
    V(f'v_mul_u32_u24 v{p[2]}, 0x548, v{p[0]}', [p[0]], [p[2]])
    V(f'v_lshl_add_u32 v{p[2]}, v{p[1]}, 4, v{p[2]}', [p[1], p[2]], [p[2]])
    a.vmem(f'buffer_load_dwordx4 {vr(LA,4)}, v{p[2]}, s[{S_WC}:{S_WC+3}], s{S_T2} offen', [p[2]], R(LA, 4))
    S(f's_add_u32 s{S_T2}, s{S_T2}, {16*1352}')
    a.vmem(f'buffer_load_dwordx4 {vr(LB,4)}, v{p[2]}, s[{S_WC}:{S_WC+3}], s{S_T2} offen', [p[2]], R(LB, 4))
    V(f'v_lshlrev_b32 v{p[3]}, 1, v{p[0]}', [p[0]], [p[3]])
    S(f's_mul_i32 s{S_T2}, s{S_T3}, 52')
    a.vmem(f'buffer_load_ushort v{p[4]}, v{p[3]}, s[{S_WCO}:{S_WCO+3}], s{S_T2} offen offset:208', [p[3]], [p[4]])
    a.vmem(f'buffer_load_ushort v{p[5]}, v{p[3]}, s[{S_WCO}:{S_WCO+3}], s{S_T2} offen offset:240', [p[3]], [p[5]])
    S(f's_lshl_b32 s{S_C}, s{S_T0}, 7'); S(f's_add_u32 s{S_C}, s{S_C}, {WS_V5R}')
    rho_salu(S_T0, S_T1, S_T4, clamp=False)
    S(f's_lshl_b32 s{S_T0}, s{S_T0}, 4'); S(f's_add_u32 s{S_T0}, s{S_T0}, {WS_V5F}')
    S(f's_cmp_eq_u32 s{S_T3}, 0'); S(f's_cselect_b32 s{S_T0}, s{S_T0}, s{S_C}'); S(f's_cselect_b32 s{S_T1}, 10, 4'); S(f's_movk_i32 s{S_T4}, 0x200'); S(f's_cselect_b32 s{S_T4}, s{S_T4}, 64')
    V(f'v_lshlrev_b32 v{p[6]}, s{S_T1}, v{p[1]}', [p[1]], [p[6]])
    V(f'v_add_u32 v{p[15]}, s{S_T4}, v{p[6]}', [p[6]], [p[15]])
    a.raw('s_waitcnt vmcnt(0)', kind='wait')
    skipchk()
    V(f'v_cmp_ne_u32 vcc, 3, v{p[1]}', [p[1]], [], swrites=['vcc'])
    for r in (1, 2, 3):
        V(f'v_cndmask_b32 v{LA+r}, 0, v{LA+r}, vcc', [LA+r], [LA+r], sreads=['vcc'])
        V(f'v_cndmask_b32 v{LB+r}, 0, v{LB+r}, vcc', [LB+r], [LB+r], sreads=['vcc'])
    V(f'v_lshlrev_b32 v{p[4]}, 16, v{p[4]}', [p[4]], [p[4]])
    V(f'v_lshlrev_b32 v{p[5]}, 16, v{p[5]}', [p[5]], [p[5]])
    V(f'v_cmp_gt_u32 vcc, 10, v{p[0]}', [p[0]], [], swrites=['vcc'])
    V(f'v_cndmask_b32 v{p[5]}, 0, v{p[5]}, vcc', [p[5]], [p[5]], sreads=['vcc'])
    for r in range(4):
        V(f'v_lshlrev_b32 v{p[7]}, 16, v{LA+r}', [LA+r], [p[7]])
        V(f'v_and_b32 v{p[8]}, 0xffff0000, v{LA+r}', [LA+r], [p[8]])
        V(f'v_lshlrev_b32 v{p[9]}, 16, v{LB+r}', [LB+r], [p[9]])
        V(f'v_and_b32 v{p[10]}, 0xffff0000, v{LB+r}', [LB+r], [p[10]])
        V(f'v_mul_f32 v{AC+2*r}, v{p[4]}, v{p[7]}', [p[4], p[7]], [AC+2*r])
        V(f'v_mul_f32 v{AC+2*r+1}, v{p[4]}, v{p[8]}', [p[4], p[8]], [AC+2*r+1])
        V(f'v_fmac_f32 v{AC+2*r}, v{p[5]}, v{p[9]}', [AC+2*r, p[5], p[9]], [AC+2*r])
        V(f'v_fmac_f32 v{AC+2*r+1}, v{p[5]}, v{p[10]}', [AC+2*r+1, p[5], p[10]], [AC+2*r+1])
    for d in (4, 8):
        for e in range(8):
            V(f'v_add_f32_dpp v{AC+e}, v{AC+e}, v{AC+e} row_ror:{d} row_mask:0xf bank_mask:0xf', [AC+e], [AC+e], dpp=True)
    for op in ('v_permlane16_swap_b32', 'v_permlane32_swap_b32'):
        for e in range(8): V(f'v_mov_b32 v{p[7+e]}, v{AC+e}', [AC+e], [p[7+e]])
        for e in range(8): V(f'{op} v{AC+e}, v{p[7+e]}', [AC+e, p[7+e]], [AC+e, p[7+e]], permlane=True)
        for e in range(8): V(f'v_add_f32 v{AC+e}, v{AC+e}, v{p[7+e]}', [AC+e, p[7+e]], [AC+e])
    for r in range(4):
        V(f'v_cvt_pk_bf16_f32 v{LA+r}, v{AC+2*r}, v{AC+2*r+1}', [AC+2*r, AC+2*r+1], [LA+r])
        V(f'v_lshlrev_b32 v{p[7]}, 16, v{LA+r}', [LA+r], [p[7]])
        V(f'v_and_b32 v{p[8]}, 0xffff0000, v{LA+r}', [LA+r], [p[8]])
        V(f'v_sub_f32 v{p[7]}, v{AC+2*r}, v{p[7]}', [AC+2*r, p[7]], [p[7]])
        V(f'v_sub_f32 v{p[8]}, v{AC+2*r+1}, v{p[8]}', [AC+2*r+1, p[8]], [p[8]])
        V(f'v_cvt_pk_bf16_f32 v{LB+r}, v{p[7]}, v{p[8]}', [p[7], p[8]], [LB+r])
    execn(4)
    a.vmem(f'buffer_store_dwordx4 {vr(LA,4)}, v{p[6]}, s[{S_WS}:{S_WS+3}], s{S_T0} offen sc1', [p[6]] + R(LA, 4), [], wide_store=R(LA, 4))
    a.vmem(f'buffer_store_dwordx4 {vr(LB,4)}, v{p[15]}, s[{S_WS}:{S_WS+3}], s{S_T0} offen sc1', [p[15]] + R(LB, 4), [], wide_store=R(LB, 4))
    a.label('L_prodfin')
    fullexec()
    a.raw('s_branch L_afterprod', kind='branch')
    a.cond_end()
    a.raw('s_waitcnt vmcnt(0)', kind='wait')
    V(f'v_mov_b32 v{t[1]}, 1', [], [t[1]]); S('s_mov_b64 exec, 1'); a.ds(f'ds_add_u32 v{V_SYNC}, v{t[1]} offset:24', [V_SYNC, t[1]]); fullexec()
    a.label('L_afterprod')
    a.vm = []
    a.raw('s_waitcnt lgkmcnt(0)', kind='wait'); a.lds = []
    a.nop(12)
    stamp('prod')
    def addr_setup():
        V(f'v_and_b32 v{t[0]}, 31, v{V_LANE}', [V_LANE], [t[0]])
        V(f'v_cmp_gt_u32 vcc, 28, v{t[0]}', [t[0]], [], swrites=['vcc'])
        V(f'v_addc_co_u32 v{t[4]}, vcc, 0, v{t[0]}, vcc', [t[0]], [t[4]], sreads=['vcc'], swrites=['vcc'])
        V(f'v_cmp_eq_u32 s[{S_MT}:{S_MT+1}], 28, v{t[0]}', [t[0]], [], swrites=[S_MT, S_MT+1])
        V(f'v_cndmask_b32 v{t[4]}, v{t[4]}, 0, s[{S_MT}:{S_MT+1}]', [t[4]], [t[4]], sreads=[S_MT])
        V(f'v_lshrrev_b32 v{t[1]}, 5, v{V_LANE}', [V_LANE], [t[1]])
        V(f'v_mad_u32_u24 v{t[4]}, v{t[1]}, 26, v{t[4]}', [t[1], t[4]], [t[4]])
        V(f'v_cmp_gt_u32 vcc, 25, v{t[0]}', [t[0]], [], swrites=['vcc'])
        S(f's_or_b64 vcc, vcc, s[{S_MT}:{S_MT+1}]', sreads=['vcc', S_MT])
        V(f'v_mov_b32 v{t[5]}, 0x40000', [], [t[5]])
        V(f'v_cndmask_b32 v{t[5]}, v{t[5]}, 0, vcc', [t[5]], [t[5]])
        S(f's_movk_i32 s{S_T0}, 0x2b0'); S(f's_movk_i32 s{S_T1}, 0x170')
        V(f'v_mad_u32_u24 v{V_AADDR[0]}, v{t[4]}, s{S_T0}, v{t[5]}', [t[4], t[5]], [V_AADDR[0]])
        V(f'v_add_u32 v{V_AADDR[1]}, {U[2]}, v{V_AADDR[0]}', [V_AADDR[0]], [V_AADDR[1]])
        V(f'v_mad_u32_u24 v{V_AADDR0}, v{t[4]}, s{S_T1}, v{t[5]}', [t[4], t[5]], [V_AADDR0])
        V(f'v_add_u32 v{V_AADDR0}, {I0B}, v{V_AADDR0}', [V_AADDR0], [V_AADDR0])
    V(f'v_and_b32 v{t[0]}, 31, v{V_LANE}', [V_LANE], [t[0]])
    V(f'v_lshlrev_b32 v{t[0]}, 2, v{t[0]}', [t[0]], [t[0]])
    S(f's_mul_i32 s{S_T0}, s{S_WAVE}, 1664'); S(f's_add_u32 s{S_T0}, s{S_T0}, {X16}')
    V(f'v_add_u32 v{V_TRADDR}, s{S_T0}, v{t[0]}', [t[0]], [V_TRADDR])
    V(f'v_lshrrev_b32 v{t[4]}, 4, v{V_LANE}', [V_LANE], [t[4]])
    V(f'v_lshrrev_b32 v{t[0]}, 2, v{V_LANE}', [V_LANE], [t[0]])
    V(f'v_mul_u32_u24 v{t[0]}, 224, v{t[0]}', [t[0]], [t[0]])
    V(f'v_and_b32 v{t[5]}, 3, v{V_LANE}', [V_LANE], [t[5]])
    V(f'v_lshl_add_u32 v{t[0]}, v{t[5]}, 3, v{t[0]}', [t[5], t[0]], [t[0]])
    V(f'v_mov_b32 v{V_DAADDR}, v{t[0]}', [t[0]], [V_DAADDR])
    V(f'v_add_u32 v{V_DBK}, 121600, v{V_DAADDR}', [V_DAADDR], [V_DBK])
    S(f's_lshl_b32 s{S_T1}, s{S_T0L}, 5'); S(f's_add_u32 s{S_T1}, s{S_T1}, {BW}')
    V(f'v_lshlrev_b32 v{t[4]}, 3, v{t[4]}', [t[4]], [t[4]])
    V(f'v_add_u32 v{V_BWADDR}, s{S_T1}, v{t[4]}', [t[4]], [V_BWADDR])
    V(f'v_mov_b32 v{V_SYNC}, {SYNC}', [], [V_SYNC])
    S(f's_lshl_b32 s{S_T0}, s{S_WAVE}, 2'); S(f's_add_u32 s{S_T0}, s{S_T0}, {SYNC + 32}')
    V(f'v_mov_b32 v{V_DONEA}, s{S_T0}', [], [V_DONEA])
    S(f's_cmp_gt_u32 s{S_WAVE}, 2')
    a.cond_begin('s_cbranch_scc1 L_nopw2', 'L_nopw2')
    V(f'v_lshlrev_b32 v{PWT}, 16, v{PWT}', [PWT], [PWT])
    V(f'v_lshlrev_b32 v{t[0]}, 2, v0', [0], [t[0]])
    V(f'v_add_u32 v{t[0]}, {POOLW}, v{t[0]}', [t[0]], [t[0]])
    V(f'v_cmp_gt_u32 vcc, 0xa0, v0', [0], [], swrites=['vcc'])
    S('s_mov_b64 exec, vcc', sreads=['vcc'])
    a.ds(f'ds_write_b32 v{t[0]}, v{PWT}', [t[0], PWT])
    fullexec()
    a.cond_end()
    a.wait_lds_all()
    S(f's_cmp_ge_u32 s{S_PID}, {NP2}')
    a.raw('s_cbranch_scc1 L_nocnt', kind='branch')
    a.raw('s_waitcnt vmcnt(0)', kind='wait')
    a.raw(f'v_mov_b32 v{VT1}, 1', kind='valu')
    S('s_mov_b64 exec, 1')
    a.raw(f'ds_add_rtn_u32 v{VT2}, v{V_SYNC}, v{VT1} offset:12', kind='ds')
    a.raw(f's_memrealtime s[{S_MT}:{S_MT+1}]')
    a.raw('s_waitcnt lgkmcnt(0)', kind='wait')
    a.raw(f'v_readfirstlane_b32 s{S_T0}, v{VT2}', kind='valu')
    a.raw('s_nop 0', kind='nop')
    S(f's_cmp_lg_u32 s{S_T0}, 3')
    a.raw('s_cbranch_scc1 L_nocnt', kind='branch')
    S(f's_mov_b32 s{S_T0}, 136'); S(f's_mov_b32 s{S_T1}, {NP0 - 1}'); S(f's_mov_b32 s{S_T2}, 0')
    S(f's_cmp_ge_u32 s{S_PID}, {NP0}'); S(f's_cselect_b32 s{S_T0}, 128, s{S_T0}'); S(f's_cselect_b32 s{S_T1}, {NP1 - NP0 - 1}, s{S_T1}'); S(f's_cselect_b32 s{S_T2}, 4, s{S_T2}')
    S(f's_cmp_ge_u32 s{S_PID}, {NP1}'); S(f's_cselect_b32 s{S_T0}, 64, s{S_T0}'); S(f's_cselect_b32 s{S_T1}, {NP2 - NP1 - 1}, s{S_T1}'); S(f's_cselect_b32 s{S_T2}, 8, s{S_T2}')
    a.raw(f'v_mov_b32 v{VT2}, s{S_T2}', kind='valu')
    a.raw(f'buffer_atomic_add v{VT1}, v{VT2}, s[{S_DBGF}:{S_DBGF+3}], 0 offen sc0 sc1', kind='vmem')
    a.raw('s_waitcnt vmcnt(0)', kind='wait')
    a.raw(f'v_readfirstlane_b32 s{S_T2}, v{VT1}', kind='valu')
    a.raw('s_nop 0', kind='nop')
    S(f's_cmp_lg_u32 s{S_T2}, s{S_T1}')
    a.raw('s_cbranch_scc1 L_nocnt', kind='branch')
    S(f's_or_b32 s{S_MT}, s{S_MT}, 1')
    a.raw(f'v_mov_b32 v{VT1}, s{S_MT}', kind='valu')
    a.raw(f'v_mov_b32 v{VT3}, s{S_T0}', kind='valu')
    a.raw(f'buffer_store_dword v{VT1}, v{VT3}, s[{S_DBGF}:{S_DBGF+3}], 0 offen sc1', kind='vmem')
    a.label('L_nocnt')
    fullexec()
    a.raw('s_setprio 0')
    S(f's_mov_b32 s{S_KN}, 0')
    stamp('setup')

    chk_n = [0]
    def rdy_fetch(off): a.ds(f'ds_read_b32 v{V_RDY}, v{V_SYNC} offset:{off}', [V_SYNC], [V_RDY])
    def rdy_check(nseq, off, fetched=False):
        if not fetched: rdy_fetch(off)
        i = chk_n[0]; chk_n[0] += 1
        V(f'v_readfirstlane_b32 s{S_T0}, v{V_RDY}', [V_RDY], [], swrites=[S_T0], readlane=True)
        S(f's_cmp_ge_u32 s{S_T0}, {nseq}', sreads=[S_T0])
        a.cond_begin(f's_cbranch_scc1 L_ok{i}', f'L_ok{i}')
        a.raw(f's_mov_b32 s{S_T1}, 0x100000', kind='salu')
        a.label(f'L_sp{i}')
        a.raw('s_sleep 1')
        a.raw(f'ds_read_b32 v{V_RDY}, v{V_SYNC} offset:{off}', kind='ds')
        a.raw(f's_sub_u32 s{S_T1}, s{S_T1}, 1', kind='salu')
        a.raw(f's_cbranch_scc1 L_ok{i}', kind='branch')
        a.raw('s_waitcnt lgkmcnt(0)', kind='wait')
        a.raw(f'v_readfirstlane_b32 s{S_T0}, v{V_RDY}', kind='valu')
        a.raw('s_nop 0', kind='nop')
        a.raw(f's_cmp_ge_u32 s{S_T0}, {nseq}', kind='salu')
        a.raw(f's_cbranch_scc0 L_sp{i}', kind='branch')
        a.cond_end()
    def cnt_check(nseq):
        i = chk_n[0]; chk_n[0] += 1
        S(f's_cmp_ge_u32 s{S_KN}, {nseq}')
        a.cond_begin(f's_cbranch_scc1 L_ok{i}', f'L_ok{i}')
        a.raw(f's_mov_b32 s{S_T1}, 0x100000', kind='salu')
        a.label(f'L_sp{i}')
        a.raw(f'ds_read_b32 v{V_RDY}, v{V_SYNC}', kind='ds')
        a.raw(f's_sub_u32 s{S_T1}, s{S_T1}, 1', kind='salu')
        a.raw(f's_cbranch_scc1 L_ok{i}', kind='branch')
        a.raw('s_waitcnt lgkmcnt(0)', kind='wait')
        a.raw(f'v_readfirstlane_b32 s{S_KN}, v{V_RDY}', kind='valu')
        a.raw('s_nop 0', kind='nop')
        a.raw(f's_cmp_ge_u32 s{S_KN}, {nseq}', kind='salu')
        a.raw(f's_cbranch_scc1 L_ok{i}', kind='branch')
        a.raw('s_sleep 1')
        a.raw(f's_branch L_sp{i}', kind='branch')
        a.cond_end()
    def release(stage):
        V(f'v_mov_b32 v{t[0]}, {stage}', [], [t[0]])
        a.ds(f'ds_write_b32 v{V_DONEA}, v{t[0]}', [V_DONEA, t[0]])

    def x0_ops():
        ops = []
        PB = PBT
        def rd():
            V(f'v_lshlrev_b32 v{V_ACC}, 16, v{V_ACC}', [V_ACC], [V_ACC])
            V(f'v_and_b32 v{t[0]}, 47, v{V_LANE}', [V_LANE], [t[0]])
            V(f'v_cmp_eq_u32 vcc, 0, v{t[0]}', [t[0]], [], swrites=['vcc'])
            V(f'v_cndmask_b32 v{V_ACC}, 0, v{V_ACC}, vcc', [V_ACC], [V_ACC], sreads=['vcc'])
        ops.append(rd)
        m = t[1]
        def c1():
            for v in range(13): V(f'v_and_b32 v{P16+v}, s{S_K7FFF}, v{PB+v}', [PB+v], [P16+v])
        ops.append(c1)
        def c2():
            V(f'v_pk_maximum3_f16 v{m}, v{P16}, v{P16+1}, v{P16+2}', R(P16, 3), [m])
            for v in range(3, 13, 2):
                V(f'v_pk_maximum3_f16 v{m}, v{m}, v{P16+v}, v{P16+v+1}', [m, P16+v, P16+v+1], [m])
            V(f'v_max_u16_sdwa v{m}, v{m}, v{m} dst_sel:DWORD dst_unused:UNUSED_PAD src0_sel:WORD_1 src1_sel:WORD_0', [m], [m], opsel=True)
            V(f'v_lshrrev_b32 v{m}, 7, v{m}', [m], [m])
            V(f'v_subrev_u32 v{m}, 21, v{m}', [m], [m])
            V(f'v_max_i32 v{m}, 0, v{m}', [m], [m])
            V(f'v_subrev_u32 v{V_EX}, 112, v{m}', [m], [V_EX])
            V(f'v_mul_u32_u24 v{m}, 0x800080, v{m}', [m], [m])
        ops.append(c2)
        ops.append(lambda: [V(f'v_pk_sub_u16 v{P16+v}, v{P16+v}, v{m} clamp', [P16+v, m], [P16+v]) for v in range(13)])
        ops.append(lambda: [V(f'v_lshlrev_b32 v{P16+v}, 3, v{P16+v}', [P16+v], [P16+v]) for v in range(13)])
        ops.append(lambda: [V(f'v_bfi_b32 v{P16+v}, s{S_K8000}, v{PB+v}, v{P16+v}', [P16+v, PB+v], [P16+v]) for v in range(13)])
        def qq():
            V(f'v_mov_b32 v{P16+13}, 0', [], [P16+13])
            V(f'v_mov_b32 v{t[2]}, 0x05040100', [], [t[2]])
            V(f'v_mov_b32 v{t[1]}, 0x07060302', [], [t[1]])
            V(f'v_cndmask_b32 v{t[2]}, v{t[2]}, v{t[1]}, s[{S_HI}:{S_HI+1}]', [t[2], t[1]], [t[2]])
            for q in range(7):
                V(f'v_perm_b32 v{XQ+q}, v{P16+2*q+1}, v{P16+2*q}, v{t[2]}', [P16+2*q+1, P16+2*q, t[2]], [XQ+q])
        ops.append(qq)
        def q2():
            V(f'v_lshlrev_b32 v{V_E}, 1, v{V_EX}', [V_EX], [V_E])
        ops.append(q2)
        return ops

    ACC = 40; DAB = [68, 96]; DBB = [124, 128]; IXR = 132; NDB = 2
    def dnn_bread(i):
        db = DBB[i % NDB]
        a.ds(f'ds_read_b64 {vr(db,2)}, v{IXR+2*i}', [IXR+2*i], R(db, 2))
        a.ds(f'ds_read_b64 {vr(db+2,2)}, v{IXR+2*i+1}', [IXR+2*i+1], R(db+2, 2))
        if i == 11: V(f'v_add_u32 v{V_DAADDR}, 57344, v{V_DAADDR}', [V_DAADDR], [V_DAADDR])
    def dnn_aread(i, q):
        da = DAB[i % NDB]
        hi = i < 3
        ad = V_DBK if hi else V_DAADDR; b0 = CADDR[i] - (121600 if hi else 0)
        if i >= 11: b0 -= 57344
        a.ds(f'ds_read_b64_tr_b16 {vr(da+4*q,2)}, v{ad} offset:{b0+32*q}', [ad], R(da+4*q, 2))
        a.ds(f'ds_read_b64_tr_b16 {vr(da+4*q+2,2)}, v{ad} offset:{b0+32*q+3584}', [ad], R(da+4*q+2, 2))
    def dnn_mf(i, q):
        a.mfma('v_mfma_f32_16x16x32_bf16', ACC+4*q, DAB[i % NDB]+4*q, DBB[i % NDB], ACC+4*q, 4, 4)
    def dnn_epilogue(xt):
        K1 = -2.0 * 1.4426950408889634 * 0.7978845608028654
        K2 = K1 * 0.044715
        acc = 124; K1R = 125; W2T = 96; TT = 68
        qs = list(range(0 if xt else 1, 7))
        S(f's_mov_b32 s{S_K2}, {fb(K2)}')
        for q in qs:
            a.ds(f'ds_read_b64 {vr(W2T+2*q,2)}, v{V_BWADDR} offset:{832+32*q}', [V_BWADDR], R(W2T+2*q, 2))
        V(f'v_mov_b32 v{K1R}, {fb(K1)}', [], [K1R])
        V(f'v_mov_b32 v{acc}, 0', [], [acc])
        xs = [ACC + 4*q + r for q in qs for r in range(4)]
        ts = [TT + 4*q + r for q in qs for r in range(4)]
        for x, tt in zip(xs, ts): V(f'v_mul_f32 v{tt}, v{x}, v{x}', [x], [tt])
        for x, tt in zip(xs, ts): V(f'v_fma_f32 v{tt}, v{tt}, s{S_K2}, v{K1R}', [tt, K1R], [tt])
        for x, tt in zip(xs, ts): V(f'v_mul_f32 v{tt}, v{tt}, v{x}', [tt, x], [tt])
        for x, tt in zip(xs, ts): V(f'v_exp_f32 v{tt}, v{tt}', [tt], [tt], trans=True)
        for x, tt in zip(xs, ts): V(f'v_add_f32 v{tt}, 1.0, v{tt}', [tt], [tt])
        for x, tt in zip(xs, ts): V(f'v_rcp_f32 v{tt}, v{tt}', [tt], [tt], trans=True)
        for x, tt in zip(xs, ts): V(f'v_mul_f32 v{tt}, v{tt}, v{x}', [tt, x], [tt])
        for q in qs:
            w = W2T + 2*q; x0_ = ACC + 4*q
            V(f'v_lshlrev_b32 v{x0_}, 16, v{w}', [w], [x0_])
            V(f'v_and_b32 v{x0_+1}, 0xffff0000, v{w}', [w], [x0_+1])
            V(f'v_lshlrev_b32 v{x0_+2}, 16, v{w+1}', [w+1], [x0_+2])
            V(f'v_and_b32 v{x0_+3}, 0xffff0000, v{w+1}', [w+1], [x0_+3])
        for x, tt in zip(xs, ts): V(f'v_fmac_f32 v{acc}, v{tt}, v{x}', [acc, tt, x], [acc])
        for op in ('v_permlane16_swap_b32', 'v_permlane32_swap_b32'):
            V(f'v_mov_b32 v{K1R}, v{acc}', [acc], [K1R])
            V(f'{op} v{acc}, v{K1R}', [acc, K1R], [acc, K1R], permlane=True)
            V(f'v_add_f32 v{acc}, v{acc}, v{K1R}', [acc, K1R], [acc])
        V(f'v_lshlrev_b32 v{t[0]}, 2, v{V_LANE}', [V_LANE], [t[0]])
        S(f's_and_b32 s{S_T0}, s{S_WAVE}, 3'); S(f's_lshl_b32 s{S_T0}, s{S_T0}, 6'); S(f's_add_u32 s{S_T0}, s{S_T0}, {PDL}')
        V(f'v_add_u32 v{t[0]}, s{S_T0}, v{t[0]}', [t[0]], [t[0]])
        V(f'v_mov_b32 v{t[1]}, 1', [], [t[1]])
        execn(16)
        a.ds(f'ds_write_b32 v{t[0]}, v{acc}', [t[0], acc])
        execn(1)
        a.ds(f'ds_add_u32 v{V_SYNC}, v{t[1]} offset:4', [V_SYNC, t[1]])
        fullexec()
    def u5_ops():
        ops = []
        def rd():
            V(f'v_add_u32 v{t[0]}, {V5F}, v{V_L16}', [V_L16], [t[0]])
            for k in range(4):
                a.ds(f'ds_read_b128 {vr(UA+4*k,4)}, v{t[0]} offset:{1024*k}', [t[0]], R(UA+4*k, 4))
            for k in range(4):
                a.ds(f'ds_read_b128 {vr(G+4*k,4)}, v{V_PWADDR} offset:{POOLW-EWT+128*3+16*k}', [V_PWADDR], R(G+4*k, 4))
        ops.append(rd)
        for k in range(4):
            def rb(k=k):
                for e in range(4 if k < 3 else 1):
                    a.ds(f'ds_read_b32 v{DB+e}, v{V_TRADDR} offset:{128*(4*k+e)}', [V_TRADDR], [DB+e])
            ops.append(rb)
            ops += [lambda: None] * 4
            if k == 3:
                def zz():
                    for r in (1, 2, 3): V(f'v_mov_b32 v{DB+r}, 0', [], [DB+r])
                ops.append(zz)
            ops.append(lambda k=k: a.mfma('v_mfma_f32_32x32x16_bf16', G, UA+4*k, DB, G, 8, 16))
            ops.append(lambda: None)
        return ops

    def boundary_ops(l):
        ops = []
        s_ = ZB[2]; mx = ZB[2]+1; my = ZB[2]+2
        W = PW if l < 4 else G
        for r in range(13):
            ops.append(lambda r=r: V(f'v_ldexp_f32 v{D+r}, v{D+r}, v{EW+r}', [D+r, EW+r], [D+r]))
        if l < 4:
            ops.append(lambda: V(f'v_max3_f32 v{mx}, |v{D}|, |v{D+1}|, |v{D+2}|', R(D, 3), [mx]))
            for r in range(3, 13, 2):
                ops.append(lambda r=r: V(f'v_max3_f32 v{mx}, |v{D+r}|, |v{D+r+1}|, v{mx}', [D+r, D+r+1, mx], [mx]))
            ops.append(lambda: V(f'v_mov_b32 v{my}, v{mx}', [mx], [my]))
        ops.append(lambda: V(f'v_mul_f32 v{s_}, v{D}, v{W}', [D, W], [s_]))
        ops.append(lambda: V(f'v_fmac_f32 v{s_}, v{D+1}, v{W+1}', [s_, D+1, W+1], [s_]))
        if l < 4:
            ops.append(lambda: V(f'v_permlane32_swap_b32 v{mx}, v{my}', [mx, my], [mx, my], permlane=True))
        ops.append(lambda: V(f'v_fmac_f32 v{s_}, v{D+2}, v{W+2}', [s_, D+2, W+2], [s_]))
        if l < 4:
            ops.append(lambda: V(f'v_max_f32 v{mx}, v{mx}, v{my}', [mx, my], [mx]))
            ops.append(lambda: V(f'v_frexp_exp_i32_f32 v{mx}, v{mx}', [mx], [mx]))
            ops.append(lambda: V(f'v_sub_u32 v{V_SH}, 8, v{mx}', [mx], [V_SH]))
        for r in range(3, 13):
            ops.append(lambda r=r: V(f'v_fmac_f32 v{s_}, v{D+r}, v{W+r}', [s_, D+r, W+r], [s_]))
        if l < 4:
            for r in range(13):
                ops.append(lambda r=r: V(f'v_ldexp_f32 v{D+r}, v{D+r}, v{V_SH}', [D+r, V_SH], [D+r]))
            for q in range(7):
                hi = D + 2*q + 1 if q < 6 else D + 12
                ops.append(lambda q=q, hi=hi: V(f'v_cvt_pk_f16_f32 v{XQ+q}, v{D+2*q}, v{hi}', [D+2*q, hi], [XQ+q]))
        ops.append(lambda: V(f'v_ldexp_f32 v{s_}, v{s_}, v{V_E}', [s_, V_E], [s_]))
        ops.append(lambda: V(f'v_add_f32 v{V_ACC}, v{V_ACC}, v{s_}', [V_ACC, s_], [V_ACC]))
        if l < 4:
            ops.append(lambda: V(f'v_sub_u32 v{V_E}, v{V_E}, v{V_SH}', [V_E, V_SH], [V_E]))
            ops.append(lambda: V(f'v_add_u32 v{V_E}, v{V_E}, v{V_EX}', [V_E, V_EX], [V_E]))
        if l == 0:
            ops.append(lambda: V(f'v_mov_b32 v{ZL+1}, 0', [], [ZL+1]))
            ops.append(lambda: V(f'v_mov_b32 v{ZL+2}, 0', [], [ZL+2]))
        return ops
    NK = [23, 43, 43, 43, 23]
    DT = 132
    ISLOT = [None, 0, 1, 2, 3]
    def a_read(l, k):
        b = AB[k % NAB]
        if l in (0, 4): ad = V_AADDR0; off = 16 * k
        else:
            sl = ISLOT[l]; ad = V_AADDR[sl >> 1]; off = IMG * (sl & 1) + 16 * k
        a.ds(f'ds_read_b128 {vr(b,4)}, v{ad} offset:{off}', [ad], R(b, 4))
    PAIRS0 = [(u, v) for u in range(13) for v in range(u, 13)]
    def zbuf(l, k):
        if k == NK[l] - 1: return ZL
        return ZB[k % 3]
    def z_ops(l, k):
        ops = []
        zb = zbuf(l, k)
        for e in range(4):
            q = 4 * k + e
            if l in (0, 4):
                if q >= 91: break
                i, v = PAIRS0[q]; src = (QH if i == v else XQ) + (i >> 1)
            else:
                if q >= 169: break
                i, v = divmod(q, 13); src = XQ + (i >> 1)
            o = i & 1
            ops.append(lambda zb=zb, e=e, src=src, v=v, o=o: V(f'v_pk_mul_f16 v{zb+e}, v{src}, v{P16+v} op_sel:[{o},0] op_sel_hi:[{o},1]', [src, P16+v], [zb+e]))
        return ops
    def pwrd(l):
        lst = {3: ((EW, 128 * 3),), 4: ((PW, 128 * 4),)}.get(l, ((PW, POOLW - EWT + 128 * l), (EW, 128 * l)))
        for base, off in lst:
            for k in range(3):
                a.ds(f'ds_read_b128 {vr(base+4*k,4)}, v{V_PWADDR} offset:{off+16*k}', [V_PWADDR], R(base+4*k, 4))
            a.ds(f'ds_read_b32 v{base+12}, v{V_PWADDR} offset:{off+48}', [V_PWADDR], [base+12])

    OX = 96
    V(f'v_bfe_u32 v{t[0]}, v{V_LANE}, 4, 1', [V_LANE], [t[0]])
    V(f'v_mul_u32_u24 v{t[0]}, 104, v{t[0]}', [t[0]], [t[0]])
    V(f'v_and_b32 v{t[1]}, 12, v{V_LANE}', [V_LANE], [t[1]])
    V(f'v_add_u32 v{t[0]}, v{t[0]}, v{t[1]}', [t[0], t[1]], [t[0]])
    S(f's_mul_i32 s{S_T0}, s{S_WAVE}, 208'); S(f's_add_u32 s{S_T0}, s{S_T0}, {IDXB}')
    V(f'v_add_u32 v{t[8]}, s{S_T0}, v{t[0]}', [t[0]], [t[8]])
    V(f'v_and_b32 v{t[6]}, 3, v{V_LANE}', [V_LANE], [t[6]])
    V(f'v_lshlrev_b32 v{t[6]}, 3, v{t[6]}', [t[6]], [t[6]])
    V(f'v_add_u32 v{t[6]}, {TAB}, v{t[6]}', [t[6]], [t[6]])
    V(f'v_lshrrev_b32 v{t[7]}, 4, v{V_LANE}', [V_LANE], [t[7]])
    V(f'v_lshlrev_b32 v{t[7]}, 3, v{t[7]}', [t[7]], [t[7]])
    V(f'v_add_u32 v{t[7]}, {TAB}, v{t[7]}', [t[7]], [t[7]])
    V(f'v_and_b32 v{t[9]}, 15, v{V_LANE}', [V_LANE], [t[9]])
    V(f'v_mul_u32_u24 v{t[9]}, 104, v{t[9]}', [t[9]], [t[9]])
    rdy_check(8, 24)
    stamp('tab')
    for q in range(7): a.ds(f'ds_read_b32 v{OX+q}, v{t[8]} offset:{16*q}', [t[8]], [OX+q])
    isB = f's_cmp_{"ge" if DG else "lt"}_u32 s{S_WAVE}, 4'
    isA = f's_cmp_{"lt" if DG else "ge"}_u32 s{S_WAVE}, 4'
    S(isA)
    a.cond_begin('s_cbranch_scc1 L_noix', 'L_noix')
    a.raw('s_setprio 3')
    S(f's_and_b32 s{S_T0}, s{S_WAVE}, 3'); S(f's_mul_i32 s{S_T0}, s{S_T0}, 1664'); S(f's_add_u32 s{S_T0}, s{S_T0}, {IDXB}')
    S(f's_add_u32 s{S_T2}, s{S_T0}, 104'); S(f's_lshl_b32 s{S_KO}, s{S_ROT}, 3'); S(f's_add_u32 s{S_KO}, s{S_KO}, s{S_T0}')
    for i in range(13):
        tt = t[2 + (i % 4)]
        V(f'v_add_u32 v{tt}, s{S_KO}, v{t[9]}', [t[9]], [tt])
        a.ds(f'ds_read_b64 {vr(IXR+2*i,2)}, v{tt}', [tt], R(IXR+2*i, 2))
        if i < 12:
            S(f's_add_u32 s{S_KO}, s{S_KO}, 8'); S(f's_cmp_eq_u32 s{S_KO}, s{S_T2}'); S(f's_cselect_b32 s{S_KO}, s{S_T0}, s{S_KO}')
    BT = 104
    for q in range(7):
        a.ds(f'ds_read_b64 {vr(BT+2*q,2)}, v{V_BWADDR} offset:{32*q}', [V_BWADDR], R(BT+2*q, 2))
    a.cond_end()
    for q in range(7):
        V(f'v_min_u32 v{OX+q}, 0x3e7, v{OX+q}', [OX+q], [OX+q])
        V(f'v_lshl_add_u32 v{OX+q}, v{OX+q}, 5, v{t[6]}', [OX+q, t[6]], [OX+q])
        a.ds(f'ds_read_b64_tr_b16 {vr(PBT+2*q,2)}, v{OX+q}', [OX+q], R(PBT+2*q, 2))
    for v in range(13): a.ds(f'ds_write_b32 v{V_TRADDR}, v{PBT+v} offset:{128*v}', [V_TRADDR, PBT+v])
    a.wait_lds_all()
    stamp('x0')
    S(isB)
    a.raw('s_cbranch_scc1 L_grpB', kind='branch')
    release(3)
    S(f's_cmp_lt_u32 s{S_PID}, {NPT0}'); a.raw('s_cbranch_scc1 L_x0prep', kind='branch')
    S(f's_cmp_ge_u32 s{S_PID}, {NPT}'); a.raw('s_cbranch_scc1 L_x0prep', kind='branch')
    p = [84 + i for i in range(16)]
    TD = 100; F1 = 116; F2 = 124; F3 = 132; TF = 140; TI = S_SET + 2
    S(f's_sub_u32 s{TI}, s{S_PID}, {NPT0}'); S(f's_lshl_b32 s{TI}, s{TI}, 2'); S(f's_and_b32 s{S_T4}, s{S_WAVE}, 3'); S(f's_add_u32 s{TI}, s{TI}, s{S_T4}')
    S(f's_mul_i32 s{S_T3}, s{S_T4}, 1664'); S(f's_add_u32 s{S_T3}, s{S_T3}, {SCR + 3328}')
    V(f'v_lshrrev_b32 v{p[0]}, 2, v{V_LANE}', [V_LANE], [p[0]])
    V(f'v_and_b32 v{p[1]}, 3, v{V_LANE}', [V_LANE], [p[1]])
    V(f'v_mul_u32_u24 v{p[2]}, 0x548, v{p[0]}', [p[0]], [p[2]])
    V(f'v_lshl_add_u32 v{p[2]}, v{p[1]}, 4, v{p[2]}', [p[1], p[2]], [p[2]])
    S(f's_min_u32 s{S_T2}, s{TI}, 25'); S(f's_mul_i32 s{S_T2}, s{S_T2}, 52'); S(f's_add_u32 s{S_T2}, s{S_T2}, {4*35152}')
    S(f's_mov_b32 m0, s{S_T3}', m0=True)
    a.vmem(f'buffer_load_dwordx4 v{p[2]}, s[{S_WC}:{S_WC+3}], s{S_T2} offen lds', [p[2]], [], dma=True)
    S(f's_add_u32 m0, s{S_T3}, 1024', m0=True); S(f's_add_u32 s{S_T2}, s{S_T2}, {16*1352}')
    execn(40)
    a.vmem(f'buffer_load_dwordx4 v{p[2]}, s[{S_WC}:{S_WC+3}], s{S_T2} offen lds', [p[2]], [], dma=True)
    fullexec()
    V(f'v_mov_b32 v{TF+2}, 0', [], [TF+2])
    S(f's_mov_b32 s{S_T0}, 0')
    a.label('L_tpoll')
    S('s_mov_b64 exec, 1')
    a.raw(f'buffer_load_dword v{TF}, v{TF+2}, s[{S_DBGF}:{S_DBGF+3}], 0 offen offset:64 sc1', kind='vmem')
    fullexec()
    S(f's_add_u32 s{S_T0}, s{S_T0}, 1')
    a.raw('s_waitcnt vmcnt(0)', kind='wait'); a.vm = []
    a.raw(f'v_readfirstlane_b32 s{S_T1}, v{TF}', kind='valu')
    a.raw('s_nop 0', kind='nop')
    S(f's_cmp_lg_u32 s{S_T1}, 0')
    a.raw('s_cbranch_scc1 L_tgo', kind='branch')
    a.raw(f's_sleep {PSLEEP}')
    S(f's_cmp_lt_u32 s{S_T0}, 0x40000')
    a.raw('s_cbranch_scc1 L_tpoll', kind='branch')
    a.label('L_tgo')
    S(f's_mul_i32 s{S_T2}, s{S_T4}, 832'); S(f's_add_u32 m0, s{S_T2}, {SCR}', m0=True); S(f's_add_u32 s{S_T2}, s{S_T2}, {WS_V5R}')
    execn(52)
    a.vmem(f'buffer_load_dwordx4 v{V_L16}, s[{S_WS}:{S_WS+3}], s{S_T2} offen sc1 lds', [V_L16], [], dma=True)
    fullexec()
    V(f'v_lshrrev_b32 v{p[3]}, 5, v{V_LANE}', [V_LANE], [p[3]])
    V(f'v_bfe_u32 v{p[4]}, v{V_LANE}, 2, 2', [V_LANE], [p[4]])
    V(f'v_lshl_add_u32 v{p[3]}, v{p[3]}, 3, v{p[4]}', [p[3], p[4]], [p[3]])
    V(f'v_bfe_u32 v{p[4]}, v{V_LANE}, 4, 1', [V_LANE], [p[4]])
    V(f'v_lshlrev_b32 v{p[4]}, 5, v{p[4]}', [p[4]], [p[4]])
    V(f'v_lshl_add_u32 v{p[4]}, v{p[1]}, 3, v{p[4]}', [p[1], p[4]], [p[4]])
    AW = [TF+3, TF+4, TF+5]; AV = [TF+6, TF+7, TF+8]
    V(f'v_lshl_add_u32 v{AW[0]}, v{p[3]}, 6, v{p[4]}', [p[3], p[4]], [AW[0]])
    V(f'v_add_u32 v{AW[0]}, s{S_T3}, v{AW[0]}', [AW[0]], [AW[0]])
    V(f'v_lshl_add_u32 v{AV[0]}, v{p[3]}, 7, v{p[4]}', [p[3], p[4]], [AV[0]])
    V(f'v_add_u32 v{AV[0]}, {SCR}, v{AV[0]}', [AV[0]], [AV[0]])
    V(f'v_mov_b32 v{p[5]}, 0x30000', [], [p[5]])
    for k_, lim in ((1, 10), (2, 6)):
        V(f'v_cmp_gt_u32 vcc, {lim}, v{p[3]}', [p[3]], [], swrites=['vcc'])
        V(f'v_cndmask_b32 v{AW[k_]}, v{p[5]}, v{AW[0]}, vcc', [p[5], AW[0]], [AW[k_]], sreads=['vcc'])
        V(f'v_cndmask_b32 v{AV[k_]}, v{p[5]}, v{AV[0]}, vcc', [p[5], AV[0]], [AV[k_]], sreads=['vcc'])
    V(f'v_and_b32 v{p[0]}, 31, v{V_LANE}', [V_LANE], [p[0]])
    V(f'v_lshrrev_b32 v{p[1]}, 5, v{V_LANE}', [V_LANE], [p[1]])
    S(f's_min_u32 s{S_C}, s{TI}, 25')
    sym_addr(p, S_C, WS_IMGT)
    S(f's_mov_b32 s{TI+1}, s{S_T0}'); S(f's_mov_b32 s{TI+2}, s{S_T1}')
    a.wait_vm_all()
    V(f'v_mov_b32 v{TF}, 1', [], [TF])
    execn(1)
    a.ds(f'ds_add_u32 v{V_SYNC}, v{TF} offset:16', [V_SYNC, TF])
    fullexec()
    for ks in range(2):
        for tt in range(2):
            ad = AW[0] if ks == 0 else AW[1 + tt]
            a.ds(f'ds_read_b64_tr_b16 {vr(F1+4*ks+2*tt,2)}, v{ad} offset:{(16*ks+4*tt)*64}', [ad], R(F1+4*ks+2*tt, 2))
    rdy_check(4, 16)
    for F, lo in ((F2, 0), (F3, 64)):
        for ks in range(2):
            for tt in range(2):
                ad = AV[0] if ks == 0 else AV[1 + tt]
                a.ds(f'ds_read_b64_tr_b16 {vr(F+4*ks+2*tt,2)}, v{ad} offset:{(16*ks+4*tt)*128+lo}', [ad], R(F+4*ks+2*tt, 2))
    first = True
    for F in (F2, F3):
        for ks in range(2):
            a.mfma('v_mfma_f32_32x32x16_bf16', TD, F1+4*ks, F+4*ks, None if first else TD, 8, 16); first = False
            a.mfma('v_mfma_f32_32x32x16_bf16', TD, F+4*ks, F1+4*ks, TD, 8, 16)
    S(f's_mov_b32 s{S_T0}, s{TI+1}'); S(f's_mov_b32 s{S_T1}, s{TI+2}')
    sym_out(p, TD, F1, F2, 4)
    a.raw('s_waitcnt vmcnt(0)', kind='wait'); a.vm = []
    a.raw(f'v_mov_b32 v{VT1}, 1', kind='valu')
    a.raw(f'ds_add_rtn_u32 v{VT2}, v{V_SYNC}, v{VT1} offset:20', kind='ds')
    a.raw('s_waitcnt lgkmcnt(0)', kind='wait'); a.lds = []
    a.raw(f'v_readfirstlane_b32 s{S_T0}, v{VT2}', kind='valu')
    a.raw('s_nop 0', kind='nop')
    S(f's_cmp_lg_u32 s{S_T0}, 3')
    a.raw('s_cbranch_scc1 L_tdone', kind='branch')
    a.raw(f'v_mov_b32 v{VT2}, s{S_SET}', kind='valu')
    a.raw(f'buffer_atomic_add v{VT1}, v{VT2}, s[{S_DBGF}:{S_DBGF+3}], 0 offen offset:12 sc0 sc1', kind='vmem')
    a.raw('s_waitcnt vmcnt(0)', kind='wait')
    a.raw(f'v_readfirstlane_b32 s{S_T2}, v{VT1}', kind='valu')
    a.raw(f'v_mov_b32 v{VT2}, 0', kind='valu')
    a.raw(f'v_mov_b32 v{VT1}, 1', kind='valu')
    S(f's_cmp_lg_u32 s{S_T2}, {NPT - NPT0 - 1}')
    a.raw('s_cbranch_scc1 L_tdone', kind='branch')
    a.raw(f'buffer_store_dword v{VT1}, v{VT2}, s[{S_DBGF}:{S_DBGF+3}], 0 offen offset:192 sc1', kind='vmem')
    a.label('L_tdone')
    fullexec()
    a.nop(4)
    a.raw('s_branch L_x0prep', kind='branch')
    a.label('L_grpB')
    for f in range(26):
        V(f'v_lshl_add_u32 v{IXR+f}, v{IXR+f}, 5, v{t[7]}', [IXR+f, t[7]], [IXR+f])
    for q in range(7):
        V(f'v_lshlrev_b32 v{ACC+4*q}, 16, v{BT+2*q}', [BT+2*q], [ACC+4*q])
        V(f'v_and_b32 v{ACC+4*q+1}, 0xffff0000, v{BT+2*q}', [BT+2*q], [ACC+4*q+1])
        V(f'v_lshlrev_b32 v{ACC+4*q+2}, 16, v{BT+2*q+1}', [BT+2*q+1], [ACC+4*q+2])
        V(f'v_and_b32 v{ACC+4*q+3}, 0xffff0000, v{BT+2*q+1}', [BT+2*q+1], [ACC+4*q+3])
    a.wait_lds_all()
    def dnn_loop(xt):
        CHK = {0: 3, 2: 5, 4: 7, 6: 9, 8: 11, 10: 13, 12: 14}
        qs = list(range(0 if xt else 1, 7))
        cnt_check(CHK[0]); dnn_bread(0)
        for q in qs: dnn_aread(0, q)
        for i in range(13):
            a.comment(f'======== DNN step {i} xt={xt}')
            if i + 1 < 13:
                if (i + 1) in CHK: cnt_check(CHK[i + 1])
                dnn_bread(i + 1)
            for q in qs:
                dnn_mf(i, q)
                if i + 1 < 13: dnn_aread(i + 1, q)
            if i in (2, 7, 12): release({2: 1, 7: 2, 12: 3}[i])
        if EPRIO is not None: a.raw(f's_setprio {EPRIO}')
        dnn_epilogue(xt)
        a.wait_lds_all(); a.nop(8)
    S(f's_cmp_ge_u32 s{S_Q}, 2')
    a.raw('s_cbranch_scc1 L_dnn0', kind='branch')
    dnn_loop(1)
    a.raw('s_branch L_dnnend', kind='branch')
    a.label('L_dnn0')
    dnn_loop(0)
    a.label('L_dnnend')
    for v in range(13): a.ds(f'ds_read_b32 v{PBT+v}, v{V_TRADDR} offset:{128*v}', [V_TRADDR], [PBT+v])
    a.wait_lds_all()
    a.label('L_x0prep')
    for o in x0_ops(): o()
    for q in range(7):
        V(f'v_pk_mul_f16 v{QH+q}, v{XQ+q}, s{S_HALF}', [XQ+q], [QH+q])
    addr_setup()
    V(f'v_lshrrev_b32 v{t[1]}, 5, v{V_LANE}', [V_LANE], [t[1]])
    V(f'v_lshlrev_b32 v{t[1]}, 6, v{t[1]}', [t[1]], [t[1]])
    V(f'v_add_u32 v{V_PWADDR}, {EWT}, v{t[1]}', [t[1]], [V_PWADDR])
    V(f'v_mov_b32 v{ZL+3}, 0', [], [ZL+3])
    stamp('dnn')
    if REP:
        a.wait_lds_all(); a.raw('s_memtime s[96:97]'); a.raw('s_memrealtime s[98:99]'); a.raw('s_waitcnt lgkmcnt(0)', kind='wait')
    S1 = DB; S2 = DB + 1
    for l in range(5):
        a.comment(f'======== layer {l}')
        stamp(f'L{l}')
        rdy_check({0: 1, 1: 2, 2: 3, 3: 4, 4: 6}[l], 8)
        for k in range(PFD): a_read(l, k)
        fq = []
        if l == 3:
            rdy_check(5, 8)
            u5 = u5_ops(); u5[0]()
            fq = u5[1:]
        if l == 4:
            V(f'v_mov_b32 v{t[0]}, 0x05040100', [], [t[0]])
            V(f'v_mov_b32 v{t[1]}, 0x07060302', [], [t[1]])
            V(f'v_cndmask_b32 v{t[0]}, v{t[0]}, v{t[1]}, s[{S_HI}:{S_HI+1}]', [t[0], t[1]], [t[0]])
            for q in range(7):
                V(f'v_perm_b32 v{XQ+q}, v{P16+2*q+1}, v{P16+2*q}, v{t[0]}', [P16+2*q+1, P16+2*q, t[0]], [XQ+q])
            for r in range(13): fq.append(lambda r=r: V(f'v_ldexp_f32 v{D+r}, v{D+r}, v{EW+r}', [D+r, EW+r], [D+r]))
            fq.append(lambda: V(f'v_mul_f32 v{S1}, v{D}, v{G}', [D, G], [S1]))
            for r in range(1, 13): fq.append(lambda r=r: V(f'v_fmac_f32 v{S1}, v{D+r}, v{G+r}', [S1, D+r, G+r], [S1]))
        for o in z_ops(l, 0): o()
        for o in z_ops(l, 1): o()
        if PRIO and not BPRIO and l < 4: a.raw('s_setprio 1')
        bpre = KPR and l >= KPR - 1
        if bpre and l < 4:
            S(isA); a.raw(f's_cbranch_scc1 L_kp{l}', kind='branch'); a.raw('s_setprio 3'); a.label(f'L_kp{l}')
        DD = DT if l == 4 else D
        for k in range(NK[l]):
            if k == NK[l] - 8: pwrd(l)
            zo = z_ops(l, k + 2) if k + 2 < NK[l] else []
            if k % 2 == 0 and k + 1 < NK[l]: a._wait_regs(R(AB[(k + 1) % NAB], 4))
            a.mfma('v_mfma_f32_32x32x16_f16', DD, AB[k % NAB], zbuf(l, k), DD if k > 0 else None, 8, 16)
            if k + PFD < NK[l]: a_read(l, k + PFD)
            for o in zo: o()
            if PRIO and not BPRIO and k == 2:
                if bpre:
                    S(isB); a.raw(f's_cbranch_scc1 L_kq{l}', kind='branch'); a.raw('s_setprio 2'); a.label(f'L_kq{l}')
                else: a.raw('s_setprio 2')
            if l == 4:
                for _ in range(2 if k >= 18 or k % 4 == 0 else 1):
                    if fq and k >= 1: fq.pop(0)()
            elif fq and k >= 4: fq.pop(0)()
        assert not fq
        if l == 0: release(4)
        if l < 3:
            if PRIO and not BPRIO: a.raw('s_setprio 0')
            for o in boundary_ops(l): o()
    stamp('fin')
    rdy_check(7, 8)
    V(f'v_bfe_u32 v{t[5]}, v{V_LANE}, 4, 1', [V_LANE], [t[5]])
    V(f'v_and_b32 v{t[6]}, 15, v{V_LANE}', [V_LANE], [t[6]])
    V(f'v_lshl_add_u32 v{t[5]}, v{t[6]}, 4, v{t[5]}', [t[5], t[6]], [t[5]])
    V(f'v_lshlrev_b32 v{t[5]}, 2, v{t[5]}', [t[5]], [t[5]])
    S(f's_lshl_b32 s{S_T0}, s{S_WAVE}, 3'); S(f's_add_u32 s{S_T0}, s{S_T0}, {PD}')
    V(f'v_add_u32 v{t[5]}, s{S_T0}, v{t[5]}', [t[5]], [t[5]])
    V(f'v_and_b32 v{t[6]}, 44, v{V_LANE}', [V_LANE], [t[6]])
    V(f'v_cmp_eq_u32 vcc, 0, v{t[6]}', [t[6]], [], swrites=['vcc'])
    V(f'v_mov_b32 v{t[6]}, 0x30000', [], [t[6]])
    V(f'v_cndmask_b32 v{t[5]}, v{t[6]}, v{t[5]}, vcc', [t[5], t[6]], [t[5]], sreads=['vcc'])
    a.ds(f'ds_read_b32 v{t[6]}, v{t[5]}', [t[5]], [t[6]])
    for r in range(13): V(f'v_lshl_add_u32 v{PW+r}, v{V_EX}, 1, v{PW+r}', [V_EX, PW+r], [PW+r])
    for r in range(13): V(f'v_ldexp_f32 v{DT+r}, v{DT+r}, v{PW+r}', [DT+r, PW+r], [DT+r])
    for r in range(13): V(f'v_fmac_f32 v{S1}, v{D+r}, v{DT+r}', [S1, D+r, DT+r], [S1])
    V(f'v_ldexp_f32 v{S1}, v{S1}, v{V_E}', [S1, V_E], [S1])
    V(f'v_add_f32 v{V_ACC}, v{V_ACC}, v{S1}', [V_ACC, S1], [V_ACC])
    A_ = V_ACC
    V(f'v_add_f32 v{A_}, v{A_}, v{t[6]}', [A_, t[6]], [A_])
    for d in (8, 4, 2, 1):
        V(f'v_add_f32_dpp v{A_}, v{A_}, v{A_} row_ror:{d} row_mask:0xf bank_mask:0xf', [A_], [A_], dpp=True)
    V(f'v_mov_b32 v{t[5]}, v{A_}', [A_], [t[5]])
    V(f'v_permlane32_swap_b32 v{A_}, v{t[5]}', [A_, t[5]], [A_, t[5]], permlane=True)
    V(f'v_add_f32 v{A_}, v{A_}, v{t[5]}', [A_, t[5]], [A_])
    V(f'v_cvt_pk_bf16_f32 v{A_}, v{A_}, v{A_}', [A_], [A_])
    V(f'v_lshrrev_b32 v{t[5]}, 3, v{V_LANE}', [V_LANE], [t[5]])
    S(f's_lshl_b32 s{S_T0}, s2, 5'); S(f's_lshl_b32 s{S_T1}, s{S_WAVE}, 2'); S(f's_add_u32 s{S_T0}, s{S_T0}, s{S_T1}')
    S('s_mov_b64 exec, 0x10001')
    a.vmem(f'buffer_store_short v{A_}, v{t[5]}, s[{S_OUT}:{S_OUT+3}], s{S_T0} offen', [A_, t[5]], [])
    if REP:
        a.raw('s_memtime s[100:101]'); a.raw('s_memrealtime s[4:5]'); a.raw('s_waitcnt lgkmcnt(0)', kind='wait')
        S(f's_cmp_lg_u32 s{S_WAVE}, 4'); a.raw('s_cbranch_scc1 L_norep', kind='branch')
        S('s_and_b32 s6, s2, 0xfc'); S('s_cmp_lg_u32 s6, 100'); a.raw('s_cbranch_scc1 L_norep', kind='branch')
        S('s_sub_u32 s96, s96, s92'); S('s_sub_u32 s98, s98, s94'); S('s_sub_u32 s100, s100, s92'); S('s_sub_u32 s4, s4, s94')
        V('v_mov_b32 v16, s96', [], [16]); V('v_mov_b32 v17, s98', [], [17]); V('v_mov_b32 v18, s100', [], [18]); V('v_mov_b32 v19, s4', [], [19])
        S('s_and_b32 s6, s2, 3'); S('s_lshl_b32 s6, s6, 4'); V('v_mov_b32 v20, s6', [], [20])
        S('s_mov_b64 exec, 1')
        a.vmem(f'buffer_store_dwordx4 v[16:19], v20, s[{S_DBGF}:{S_DBGF+3}], 0 offen', [16,17,18,19,20], [])
        a.label('L_norep')
    dbg_out()
    a.raw('s_endpgm')

    a.label('L_loader')
    a.lds = []; a.vm = []; a.valu_w = {}; a.mfma_w = {}; a.mfma_c = {}; a.trans_w = {}; a.store_src = {}; a.opsel_w = {}
    stamp_n[0] = 1
    names_c = a.stamp_names; a.stamp_names = []
    LF = 18; LFA = 19; LSY = 20; LDA = 21; LDV = 22; LT = 23; WO = 32; PF = 40; LN = 24; LG = 64
    if TOUCH:
        V(f'v_mov_b32 v{t[0]}, 0', [], [t[0]])
        S('s_mov_b64 exec, 1')
        S(f's_mov_b32 s{S_T0}, {WS_INB - 256}')
        a.vmem(f'buffer_load_dword v{PF}, v{t[0]}, s[{S_WS}:{S_WS+3}], s{S_T0} offen', [t[0]], [PF])
        if TOUCH == 1: a.vmem(f'buffer_load_dword v{PF+1}, v{t[0]}, s[{S_DBGF}:{S_DBGF+3}], 0 offen sc1', [t[0]], [PF+1])
        a.vmem(f'buffer_load_dword v{PF+2}, v{t[0]}, s[{S_OUT}:{S_OUT+3}], 0 offen', [t[0]], [PF+2])
        a.vmem(f'buffer_load_dword v{PF+3}, v{t[0]}, s[{S_W1}:{S_W1+3}], 0 offen', [t[0]], [PF+3])
        a.vmem(f'buffer_load_dword v{PF+4}, v{t[0]}, s[{S_TAB}:{S_TAB+3}], 0 offen', [t[0]], [PF+4])
        a.vmem(f'buffer_load_dword v{PF+5}, v{t[0]}, s[{S_B1}:{S_B1+3}], 0 offen', [t[0]], [PF+5])
        a.vmem(f'buffer_load_dword v{PF+6}, v{t[0]}, s[{S_W2}:{S_W2+3}], 0 offen', [t[0]], [PF+6])
        fullexec()
    if CPF:
        a.raw('s_getpc_b64 s[4:5]')
        a.label('L_pcref')
        S(f's_sub_u32 s4, s4, L_pcref-{NAME}_kernel'); S('s_subb_u32 s5, s5, 0')
        S(f's_lshr_b32 s{S_T0}, s2, 3'); S(f's_mul_i32 s{S_T0}, s{S_T0}, {CPF}')
        V(f'v_add_u32 v{t[0]}, s{S_T0}, v{V_L16}', [V_L16], [t[0]])
        V(f'v_add_u32 v{t[1]}, 1024, v{t[0]}', [t[0]], [t[1]])
        V(f'v_min_u32 v{t[0]}, L_end-{NAME}_kernel-16, v{t[0]}', [t[0]], [t[0]])
        V(f'v_min_u32 v{t[1]}, L_end-{NAME}_kernel-16, v{t[1]}', [t[1]], [t[1]])
        a.vmem(f'global_load_dwordx4 {vr(PF,4)}, v{t[0]}, s[4:5]', [t[0]], R(PF, 4))
        execn(max(1, (CPF - 1024) // 16))
        a.vmem(f'global_load_dwordx4 {vr(PF+4,4)}, v{t[1]}, s[4:5]', [t[1]], R(PF+4, 4))
        fullexec()
    S(f's_movk_i32 s{S_T0}, 4682')
    for k in range(7):
        V(f'v_add_u32 v{t[0]}, {64*k}, v{V_LANE}', [V_LANE], [t[0]])
        V(f'v_mul_u32_u24 v{t[1]}, s{S_T0}, v{t[0]}', [t[0]], [t[1]])
        V(f'v_lshrrev_b32 v{t[1]}, 16, v{t[1]}', [t[1]], [t[1]])
        V(f'v_mul_u32_u24 v{t[2]}, {832 - 224}, v{t[1]}', [t[1]], [t[2]])
        V(f'v_lshl_add_u32 v{WO+k}, v{t[0]}, 4, v{t[2]}', [t[0], t[2]], [WO+k])
    V(f'v_lshlrev_b32 v{LFA}, 2, v{V_LANE}', [V_LANE], [LFA])
    V(f'v_mov_b32 v{LSY}, {SYNC}', [], [LSY])
    V(f'v_and_b32 v{LDA}, 28, v{LFA}', [LFA], [LDA])
    V(f'v_add_u32 v{LDA}, {SYNC + 32}, v{LDA}', [LDA], [LDA])
    S(f's_mul_i32 s{S_KO}, s{S_ROT}, 26624'); S(f's_lshl_b32 s{S_T0}, s{S_T0L}, 5'); S(f's_add_u32 s{S_KO}, s{S_KO}, s{S_T0}')
    S(f's_add_u32 s{S_T3}, s{S_T0}, {13*26624}')
    def l_w1(i):
        for k in range(7):
            S(f's_mov_b32 m0, {CADDR[i] + 1024*k}', m0=True)
            a.vmem(f'buffer_load_dwordx4 v{WO+k}, s[{S_W1}:{S_W1+3}], s{S_KO} offen lds', [WO+k], [], tag=('c', i), dma=True)
        S(f's_add_u32 s{S_KO}, s{S_KO}, 26624'); S(f's_cmp_eq_u32 s{S_KO}, s{S_T3}'); S(f's_cselect_b32 s{S_T1}, {13*26624}, 0'); S(f's_sub_u32 s{S_KO}, s{S_KO}, s{S_T1}')
    def l_lin(tag, srd, src, dst, nbytes, sc=''):
        n = (nbytes + 1023) // 1024
        for pc in range(n):
            if pc % 4 == 0:
                S(f's_mov_b32 m0, {dst + 1024*pc}', m0=True)
                S(f's_mov_b32 s{S_T2}, {src + 1024*pc}')
            lanes = min(64, (nbytes - 1024*pc) // 16)
            if lanes < 64: execn(lanes)
            a.vmem(f'buffer_load_dwordx4 v{V_L16}, s[{srd}:{srd+3}], s{S_T2} offen offset:{1024*(pc%4)} {sc} lds', [V_L16], [], tag=tag, dma=True)
            if lanes < 64: fullexec()
    def publish(n, off):
        a.raw(f'v_mov_b32 v{LT}, {n}', kind='valu')
        a.raw(f'ds_write_b32 v{LSY}, v{LT} offset:{off}', kind='ds')
    def l_flag(lo, hi):
        mk = ((1 << hi) - 1) & ~((1 << lo) - 1)
        S(f's_mov_b64 exec, 0x{mk:x}')
        a.vmem(f'buffer_load_dword v{LF}, v{LFA}, s[{S_DBGF}:{S_DBGF+3}], 0 offen offset:128 sc1', [LFA], [LF])
        fullexec()
    def l_poll(lo, hi, lab, pre=None):
        mk = ((1 << hi) - 1) & ~((1 << lo) - 1)
        a._wait_regs([LF])
        S(f's_mov_b64 exec, 0x{mk:x}')
        S(f's_mov_b32 s{S_T0}, 0')
        a.label(f'L_poll{lab}')
        a.raw(f'v_cmp_eq_u32 vcc, 0, v{LF}', kind='valu')
        a.raw(f's_cbranch_vccz L_polldone{lab}', kind='branch')
        a.raw(f's_sleep {PSLEEP}')
        a.raw(f'buffer_load_dword v{LF}, v{LFA}, s[{S_DBGF}:{S_DBGF+3}], 0 offen offset:128 sc1', kind='vmem')
        S(f's_add_u32 s{S_T0}, s{S_T0}, 1')
        S(f's_cmp_lt_u32 s{S_T0}, 0x40000')
        a.raw('s_waitcnt vmcnt(0)', kind='wait')
        if pre: publish(pre[0], pre[1])
        a.raw(f's_cbranch_scc1 L_poll{lab}', kind='branch')
        a.label(f'L_polldone{lab}')
        fullexec()
    def l_wait_lds(addr, off, stage, lab, pre=None):
        a.raw(f's_mov_b32 s{S_T1}, 0x100000', kind='salu')
        a.label(f'L_dw{lab}')
        a.raw(f'ds_read_b32 v{LDV}, v{addr} offset:{off}', kind='ds')
        a.raw(f's_sub_u32 s{S_T1}, s{S_T1}, 1', kind='salu')
        a.raw(f's_cbranch_scc1 L_dn{lab}', kind='branch')
        a.raw('s_waitcnt lgkmcnt(0)', kind='wait')
        a.raw(f'v_cmp_gt_u32 vcc, {stage}, v{LDV}', kind='valu')
        a.raw(f's_cbranch_vccz L_dn{lab}', kind='branch')
        if pre:
            a.raw('s_waitcnt vmcnt(0)', kind='wait')
            publish(pre[0], pre[1])
        a.raw('s_sleep 1')
        a.raw(f's_branch L_dw{lab}', kind='branch')
        a.label(f'L_dn{lab}')
    a.raw('s_waitcnt lgkmcnt(0)', kind='wait')
    for i in range(13):
        l_w1(i)
        if i in (9, 11):
            a.wait_vm_tag(('c', i - 8)); publish(i - 6, 0)
    l_flag(2, 3)
    stamp('w1iss')
    for i in (5, 7, 9, 11, 12):
        a.wait_vm_tag(('c', i)); publish(i + 2, 0)
    l_poll(2, 3, 'k'); stamp('polled')
    l_flag(0, 1)
    S(f's_lshr_b32 s{S_T0}, s2, 3'); S(f's_mul_i32 s{S_T0}, s{S_T0}, 608')
    execn(38)
    a.vmem(f'buffer_load_dwordx4 {vr(PF+16,4)}, v{V_L16}, s[{S_WS}:{S_WS+3}], s{S_T0} offen sc1', [V_L16], R(PF+16, 4))
    fullexec()
    l_wait_lds(LDA, 0, 1, 'a')
    l_lin(('i', 0), S_WS, WS_IMG0, I0B, IMG0, 'sc1')
    l_lin(('i', 0), S_WS, WS_EWT, EWT, 128, 'sc1')
    l_poll(0, 1, 'a', pre=(1, 8))
    V(f'v_readlane_b32 s{S_T0}, v{LF}, 0', [LF], [], swrites=[S_T0], readlane=True)
    V(f'v_mov_b32 v{LN}, s{S_T0}', [], [LN], sreads=[S_T0])
    S(f's_lshr_b32 s{S_T0}, s2, 3'); S(f's_mul_i32 s{S_T0}, s{S_T0}, 3360'); S(f's_add_u32 s{S_T0}, s{S_T0}, {WS_IMG[1]}')
    for q in range(4):
        if q == 3: execn(18)
        a.vmem(f'buffer_load_dwordx4 {vr(PF+4*q,4)}, v{V_L16}, s[{S_WS}:{S_WS+3}], s{S_T0} offen offset:{1024*q} sc1', [V_L16], R(PF+4*q, 4))
    fullexec()
    l_lin(('i', 1), S_WS, WS_EWT + 128, EWT + 128, 384, 'sc1')
    l_wait_lds(LDA, 0, 2, 'b', pre=(1, 8))
    l_lin(('i', 1), S_WS, WS_IMG[1], U[0], 16384, 'sc1')
    a.wait_vm_tag(('i', 0)); publish(1, 8)
    l_lin(('i', 1), S_WS, WS_IMG[1] + 16384, U[0] + 16384, IMG - 16384, 'sc1')
    a.wait_vm_tag(('i', 1)); publish(2, 8); stamp('i1')
    l_wait_lds(LDA, 0, 3, 'c'); stamp('dnndone')
    l_lin(('i', 2), S_WS, WS_IMG[2], U[1], IMG, 'sc1')
    l_lin(('i', 3), S_WS, WS_IMG[3], U[2], IMG, 'sc1')
    a.wait_vm_tag(('i', 2)); publish(3, 8)
    a.wait_vm_tag(('i', 3)); publish(4, 8)
    l_wait_lds(LSY, 4, 4, 'd')
    V(f'v_lshlrev_b32 v{t[0]}, 3, v{V_LANE}', [V_LANE], [t[0]])
    V(f'v_add_u32 v{t[0]}, {PDL}, v{t[0]}', [t[0]], [t[0]])
    a.ds(f'ds_read_b64 {vr(LG+4,2)}, v{t[0]}', [t[0]], R(LG+4, 2))
    V(f'v_bfe_u32 v{t[1]}, v{V_LANE}, 3, 2', [V_LANE], [t[1]])
    V(f'v_add_u32 v{t[1]}, s{S_Q}, v{t[1]}', [t[1]], [t[1]])
    V(f'v_and_b32 v{t[1]}, 3, v{t[1]}', [t[1]], [t[1]])
    V(f'v_lshlrev_b32 v{t[1]}, 13, v{t[1]}', [t[1]], [t[1]])
    V(f'v_and_b32 v{t[2]}, 7, v{V_LANE}', [V_LANE], [t[2]])
    V(f'v_lshl_add_u32 v{t[1]}, v{t[2]}, 4, v{t[1]}', [t[2], t[1]], [t[1]])
    S(f's_lshl_b32 s{S_T0}, s{S_CB}, 10'); S(f's_lshl_b32 s{S_T1}, s{S_Q}, 7'); S(f's_add_u32 s{S_T0}, s{S_T0}, s{S_T1}'); S(f's_add_u32 s{S_T0}, s{S_T0}, {WS_INB}')
    V(f'v_mov_b32 v{LG}, v{LG+4}', [LG+4], [LG]); V(f'v_mov_b32 v{LG+1}, v{LN}', [LN], [LG+1])
    V(f'v_mov_b32 v{LG+2}, v{LG+5}', [LG+5], [LG+2]); V(f'v_mov_b32 v{LG+3}, v{LN}', [LN], [LG+3])
    execn(32)
    a.vmem(f'buffer_store_dwordx4 {vr(LG,4)}, v{t[1]}, s[{S_WS}:{S_WS+3}], s{S_T0} offen sc1', [t[1]] + R(LG, 4), [], wide_store=R(LG, 4))
    fullexec()
    l_lin('v5f', S_WS, WS_V5F, V5F, 4096, 'sc1')
    l_flag(16, 17)
    a.wait_vm_tag('v5f'); publish(5, 8)
    l_wait_lds(LDA, 0, 4, 'e')
    l_poll(16, 17, 'b')
    l_lin(('i', 4), S_WS, WS_IMGT, I0B, IMG0, 'sc1')
    l_lin(('i', 4), S_WS, WS_EWT + 512, EWT + 512, 128, 'sc1')
    a.wait_vm_all(); publish(6, 8); stamp('i5')
    S(f's_lshl_b32 s{S_T2}, s2, 10'); S(f's_add_u32 s{S_T2}, s{S_T2}, {WS_INB}')
    S(f's_mov_b32 s{S_T0}, 0')
    execn(32)
    a.label('L_inb')
    a.raw(f'buffer_load_dwordx4 {vr(LG+8,4)}, v{V_L16}, s[{S_WS}:{S_WS+3}], s{S_T2} offen sc1', kind='vmem')
    S(f's_add_u32 s{S_T0}, s{S_T0}, 1')
    a.raw('s_waitcnt vmcnt(0)', kind='wait')
    a.raw(f'v_cmp_ne_u32 vcc, v{LN}, v{LG+9}', kind='valu')
    a.raw(f'v_cmp_ne_u32 s[{S_MT}:{S_MT+1}], v{LN}, v{LG+11}', kind='valu')
    a.raw('s_nop 1', kind='nop')
    a.raw(f's_or_b64 vcc, vcc, s[{S_MT}:{S_MT+1}]', kind='salu')
    a.raw('s_cbranch_vccz L_inbok', kind='branch')
    a.raw(f's_sleep {PSLEEP}')
    S(f's_cmp_lt_u32 s{S_T0}, 0x40000')
    a.raw('s_cbranch_scc1 L_inb', kind='branch')
    a.label('L_inbok')
    V(f'v_mov_b32 v{LG+9}, v{LG+10}', [LG+10], [LG+9])
    V(f'v_lshlrev_b32 v{t[0]}, 3, v{V_LANE}', [V_LANE], [t[0]])
    V(f'v_add_u32 v{t[0]}, {PD}, v{t[0]}', [t[0]], [t[0]])
    a.ds(f'ds_write_b64 v{t[0]}, {vr(LG+8,2)}', [t[0], LG+8, LG+9])
    publish(7, 8)
    dbg_out()
    a.label('L_end')
    a.raw('s_endpgm')
    a.stamp_names = (names_c, a.stamp_names)
    return a

HEADER = open('cdna_kernels/' + NAME + '.s.ref').read().split('; Override launch geometry')[0]
def wrap(a):
    s = HEADER
    s += f'; @launch grid=(256,1,1) block=(576,1,1) lds={LDS_TOTAL}\n'
    s += '.amdgcn_target "amdgcn-amd-amdhsa--gfx950"\n.text\n'
    s += f'.globl {NAME}_kernel\n.p2align 8\n.type {NAME}_kernel,@function\n{NAME}_kernel:\n'
    s += a.text()
    s += f'''.section .rodata,"a"
.p2align 6
.amdhsa_kernel {NAME}_kernel
  .amdhsa_next_free_vgpr {NV}
  .amdhsa_next_free_sgpr 102
  .amdhsa_accum_offset {NV}
  .amdhsa_group_segment_fixed_size 0
  .amdhsa_kernarg_size 88
  .amdhsa_user_sgpr_count 2
  .amdhsa_user_sgpr_kernarg_segment_ptr 1
  .amdhsa_system_sgpr_workgroup_id_x 1
  .amdhsa_float_denorm_mode_32 3
.end_amdhsa_kernel
'''
    return s

if __name__ == '__main__':
    import argparse
    ap = argparse.ArgumentParser()
    ap.add_argument('out', nargs='?', default='cdna_kernels/' + NAME + '.s')
    ap.add_argument('--dbg', type=int, default=0)
    ap.add_argument('--prio', type=int, default=1)
    ap.add_argument('--splitepi', type=int, default=1)
    args = ap.parse_args()
    a = gen(debug=args.dbg, PRIO=args.prio, SPLITEPI=args.splitepi)
    open(args.out, 'w').write(wrap(a))
    print(a.count, 'lines', len(a.lines), a.stamp_names)
```

```python
import sys, struct
sys.path.insert(0, 'gen')
from asmfw import *

NAME = 'standalone__deep_cross_xdeepfm__recsys'
IMG = 35776; IMG0 = 19136
U = [IMG * i for i in range(4)]
CH = 7168
CADDR = [121600 + CH * i for i in range(3)] + [CH * i for i in range(10)]
TAB = 71680; IDXB = 103680; SCR = 110336
I0B = 143104 - IMG0
X16 = 143104
V5F = 156672; EWT = 160768; POOLW = 161408; BW = 162048
PDL = V5F
PD = BW
SYNC = 163712
LDS_TOTAL = 163776
WS_IMG0 = 0
WS_IMG = [None] + [19200 + IMG * i for i in range(4)]
WS_V5F = 19200 + 4 * IMG
WS_EWT = WS_V5F + 4096
WS_IMGT = WS_IMG[4]; WS_V5R = WS_EWT + 1024
WS_INB = 0x40000
WS_SIZE = WS_INB + 256 * 1024
NP0 = 7; NP1 = 24; NP2 = 31; NPT0 = 32; NPT = 39
S_IDX, S_TAB, S_WC, S_WCO, S_W1, S_B1, S_W2, S_BO, S_OUT, S_DBGF, S_WS = [24 + 4 * i for i in range(11)]
S_WAVE = 68; S_T0 = 69; S_T1 = 70; S_T2 = 71; S_T3 = 72; S_T4 = 73
S_HI = 74; S_C = 76; S_K7FFF = 77; S_K8000 = 78; S_Q = 79; S_K2 = 80; S_G = 81; S_HALF = 82
S_ROT = 83; S_MT = 84; S_PID = 86; S_CB = 87; S_XT = 88; S_T0L = 89; S_KO = 90; S_KN = 91; S_SET = 92; S_LAST = 93
SM = [4, 6, 8, 10, 12, 14, 16]
V_LANE = 1
V_T = list(range(2, 12))
V_STAMP = 12; V_E = 13; V_EX = 14; V_ACC = 15
P16 = 16; V_SH = 30; V_L16 = 31
XQ = 32; V_TRADDR = 39; D = 40
ZB = [56, 60, 64]; ZL = 68
AB = [72, 76, 80, 84, 4, 8]; NAB = 6; PFD = 5
PW = 88; EW = 102
V_PWADDR = 101; V_DBADDR = 115
DACC = 116; DA = 132; DB = 148
QH = 152
V_AADDR = [159, 160]; V_AADDR0 = 161; V_DAADDR = 162; V_DBK = 163; V_BWADDR = 164; V_SYNC = 165; V_RDY = 166; V_DONEA = 167
G = DACC; UA = DA
PBT = 68
VT1 = 158; VT2 = 159; VT3 = 160
DA2 = 88; DB2 = 104
NV = 168

import os
PX = int(os.environ.get('PX', '0'))
NL = int(os.environ.get('NL', '5'))
REP = int(os.environ.get('REP', '0'))
PSLEEP = int(os.environ.get('PSLEEP', '6'))
TOUCH = int(os.environ.get('TOUCH', '2'))
XP = os.environ.get('XP', '')
KNOP = int(os.environ.get('KNOP', '0'))
FINSTEP = int(os.environ.get('FINSTEP', '2'))
DG = int(os.environ.get('DG', '1'))
BPRIO = int(os.environ.get('BPRIO', '0'))
EPRIO = os.environ.get('EPRIO')
TABP = int(os.environ.get('TABP', '1'))
SETS = os.environ.get('SETS', '0')
LB0 = int(os.environ.get('LB0', '6'))
KPR = int(os.environ.get('KPR', '0'))
LBAR = int(os.environ.get('LBAR', '7'))
def fb(x): return '0x%08x' % struct.unpack('<I', struct.pack('<f', x))[0]

def gen(debug=None, PRIO=1, SPLITEPI=1, LPRE=24):
    a = Asm()
    V = a.valu; S = a.salu
    t = V_T
    stamp_n = [0]
    a.stamp_names = []
    def stamp(name=''):
        if not debug: return
        a.wait_lds_all()
        a.raw('s_memtime s[98:99]')
        a.raw('s_waitcnt lgkmcnt(0)', kind='wait')
        a.valu(f'v_writelane_b32 v{V_STAMP}, s98, {stamp_n[0]}', [], [V_STAMP])
        a.stamp_names.append(name)
        stamp_n[0] += 1
    def execn(n):
        if n <= 32: S(f's_mov_b64 exec, 0x{(1<<n)-1:x}')
        else: S(f's_mov_b32 exec_hi, 0x{(1<<(n-32))-1:x}')
    def fullexec(): S('s_mov_b64 exec, -1')
    def rawbar(): a.raw('s_barrier', kind='barrier')
    def dbg_out():
        if not debug: return
        fullexec()
        stamp('end')
        a.valu(f'v_writelane_b32 v{V_STAMP}, s100, 62', [], [V_STAMP])
        a.raw('s_memrealtime s[98:99]')
        a.raw('s_waitcnt lgkmcnt(0)', kind='wait')
        a.valu(f'v_writelane_b32 v{V_STAMP}, s98, 63', [], [V_STAMP])
        V(f'v_lshlrev_b32 v{t[0]}, 2, v0', [0], [t[0]])
        S(f's_mul_i32 s{S_T0}, s2, 2304'); S(f's_add_u32 s{S_T0}, s{S_T0}, 0x100000')
        a.vmem(f'buffer_store_dword v{V_STAMP}, v{t[0]}, s[{S_WS}:{S_WS+3}], s{S_T0} offen', [V_STAMP, t[0]], [])
    S('s_cmp_ge_u32 s2, 256')
    a.raw('s_cbranch_scc1 L_end', kind='branch')
    if debug:
        a.raw('s_memrealtime s[100:101]')
        stamp('start')
    if REP:
        a.raw('s_memtime s[92:93]'); a.raw('s_memrealtime s[94:95]')
    a.raw('s_load_dwordx16 s[4:19], s[0:1], 0')
    a.raw('s_load_dwordx4 s[20:23], s[0:1], 64')
    a.raw(f's_load_dwordx2 s[{S_WS}:{S_WS+1}], s[0:1], 80')
    V(f'v_and_b32 v{V_LANE}, 63, v0', [0], [V_LANE])
    V(f'v_lshrrev_b32 v{t[0]}, 6, v0', [0], [t[0]])
    V(f'v_readfirstlane_b32 s{S_WAVE}, v{t[0]}', [t[0]], [], swrites=[S_WAVE], readlane=True)
    V(f'v_lshlrev_b32 v{t[1]}, 2, v{V_LANE}', [V_LANE], [t[1]])
    V(f'v_add_u32 v{t[1]}, {SYNC}, v{t[1]}', [t[1]], [t[1]])
    V(f'v_mov_b32 v{t[2]}, 0', [], [t[2]])
    S(f's_cmp_lg_u32 s{S_WAVE}, 0', sreads=[S_WAVE])
    a.raw('s_cbranch_scc1 L_noinit', kind='branch')
    execn(16)
    a.raw(f'ds_write_b32 v{t[1]}, v{t[2]}', kind='ds')
    fullexec()
    a.label('L_noinit')
    S(f's_mov_b32 s{S_K7FFF}, 0x7fff7fff'); S(f's_mov_b32 s{S_K8000}, 0x80008000'); S(f's_mov_b32 s{S_HALF}, 0x38003800')
    S(f's_mov_b32 s{S_HI}, 0'); S(f's_mov_b32 s{S_HI+1}, -1')
    V(f'v_lshlrev_b32 v{V_L16}, 4, v{V_LANE}', [V_LANE], [V_L16])
    S(f's_lshr_b32 s{S_T0}, s2, 3'); S(f's_and_b32 s{S_Q}, s{S_T0}, 3'); S(f's_lshr_b32 s{S_T1}, s{S_T0}, 2')
    S(f's_lshr_b32 s{S_ROT}, s{S_T1}, 1'); S(f's_add_u32 s{S_ROT}, s{S_ROT}, s{S_T1}')
    S(f's_andn2_b32 s{S_CB}, s2, 0x18')
    S(f's_mov_b32 s{S_SET}, 0'); S(f's_and_b32 s{S_T1}, s2, 7'); S(f's_lshl_b32 s{S_PID}, s{S_T1}, 5'); S(f's_add_u32 s{S_PID}, s{S_PID}, s{S_T0}')
    S(f's_cmp_{"ge" if DG else "lt"}_u32 s{S_WAVE}, 4', sreads=[S_WAVE]); S(f's_cselect_b32 s{S_PID}, 255, s{S_PID}')
    S(f's_cmp_eq_u32 s{S_WAVE}, 8'); S(f's_cselect_b32 s{S_PID}, 255, s{S_PID}')
    S(f's_and_b32 s{S_G}, s{S_WAVE}, 3'); S(f's_lshl_b32 s{S_T1}, s{S_PID}, 2'); S(f's_add_u32 s{S_G}, s{S_G}, s{S_T1}')
    S(f's_min_u32 s{S_T0L}, s{S_Q}, 1'); S(f's_mul_i32 s{S_T1}, s{S_Q}, 6'); S(f's_add_u32 s{S_T0L}, s{S_T0L}, s{S_T1}')
    S(f's_cmp_lt_u32 s{S_WAVE}, 4'); S(f's_cselect_b32 s{S_XT}, 1, 0'); S(f's_cmp_lt_u32 s{S_Q}, 2'); S(f's_cselect_b32 s{S_XT}, s{S_XT}, 0')
    a.raw('s_waitcnt lgkmcnt(0)', kind='wait')
    rawbar()
    sizes = [425984, 32000, 210912, 312, 346112, 832, 832, 2, 8192, 256]
    srds = [S_IDX, S_TAB, S_WC, S_WCO, S_W1, S_B1, S_W2, S_BO, S_OUT, S_DBGF]
    for i in range(10):
        sb, sz = srds[i], sizes[i]
        S(f's_mov_b32 s{sb}, s{4+2*i}'); S(f's_and_b32 s{sb+1}, s{5+2*i}, 0xffff')
        S(f's_mov_b32 s{sb+2}, {sz}'); S(f's_mov_b32 s{sb+3}, 0x00020000')
    S(f's_and_b32 s{S_WS+1}, s{S_WS+1}, 0xffff'); S(f's_mov_b32 s{S_WS+2}, {0x1000000 if debug else WS_SIZE}'); S(f's_mov_b32 s{S_WS+3}, 0x00020000')
    S(f's_cmp_eq_u32 s{S_WAVE}, 8')
    a.raw('s_cbranch_scc1 L_loader', kind='branch')

    def dpp_max(m):
        for d in ('row_shr:1 row_mask:0xf', 'row_shr:2 row_mask:0xf', 'row_shr:4 row_mask:0xf', 'row_shr:8 row_mask:0xf', 'row_bcast:15 row_mask:0xa', 'row_bcast:31 row_mask:0xc'):
            V(f'v_max_u32_dpp v{m}, v{m}, v{m} {d} bank_mask:0xf', [m], [m], dpp=True)
    def rho_salu(sh, st1, st2, clamp=True):
        S(f's_cmp_ge_u32 s{sh}, 13'); S(f's_cselect_b32 s{st1}, 1, 0')
        S(f's_mul_i32 s{st2}, s{st1}, 13'); S(f's_sub_u32 s{sh}, s{sh}, s{st2}')
        S(f's_lshl_b32 s{st2}, s{st1}, 2')
        S(f's_lshl_b32 s{st1}, s{st1}, 4'); S(f's_add_u32 s{st1}, s{st1}, s{sh}')
        S(f's_add_u32 s{st2}, s{st2}, s{sh}'); S(f's_and_b32 s{sh}, s{sh}, 12'); S(f's_add_u32 s{sh}, s{sh}, s{st2}')
        if clamp: S(f's_add_u32 s{sh}, s{sh}, 1'); S(f's_cmp_eq_u32 s{sh}, 29'); S(f's_cselect_b32 s{sh}, 0, s{sh}')

    V(f'v_mov_b32 v{V_SYNC}, {SYNC}', [], [V_SYNC])
    S(f's_lshl_b32 s{S_T0}, s{S_WAVE}, 12'); S(f's_add_u32 m0, s{S_T0}, {TAB}', m0=True)
    for k in range(4):
        if k == 3:
            S(f's_cmp_eq_u32 s{S_WAVE}, 7'); S(f's_cselect_b64 exec, 0xffff, -1')
        a.vmem(f'buffer_load_dwordx4 v{V_L16}, s[{S_TAB}:{S_TAB+3}], s{S_T0} offen offset:{1024*k} lds', [V_L16], [], dma=True)
    S(f's_lshr_b32 s{S_T0}, s{S_WAVE}, 1'); S(f's_add_u32 s{S_T0}, s{S_T0}, s{S_Q}'); S(f's_and_b32 s{S_T0}, s{S_T0}, 3')
    S(f's_lshl_b32 s{S_T0}, s{S_T0}, 3'); S(f's_or_b32 s{S_T0}, s{S_T0}, s{S_CB}'); S(f's_lshl_b32 s{S_T0}, s{S_T0}, 1')
    S(f's_and_b32 s{S_T1}, s{S_WAVE}, 1'); S(f's_add_u32 s{S_T0}, s{S_T0}, s{S_T1}'); S(f's_mul_i32 s{S_T0}, s{S_T0}, 832')
    S(f's_mul_i32 s{S_T1}, s{S_WAVE}, 832'); S(f's_add_u32 m0, s{S_T1}, {IDXB}', m0=True)
    S('s_mov_b32 exec_lo, -1'); S('s_mov_b32 exec_hi, 0xfffff')
    a.vmem(f'buffer_load_dwordx4 v{V_L16}, s[{S_IDX}:{S_IDX+3}], s{S_T0} offen lds', [V_L16], [], dma=True)
    S(f's_cmp_lg_u32 s{S_WAVE}, 5'); a.cond_begin('s_cbranch_scc1 L_nb1', 'L_nb1')
    S(f's_mov_b32 m0, {BW}', m0=True)
    a.vmem(f'buffer_load_dwordx4 v{V_L16}, s[{S_B1}:{S_B1+3}], 0 offen lds', [V_L16], [], dma=True)
    S(f's_mov_b32 m0, {BW + 832}', m0=True)
    a.vmem(f'buffer_load_dwordx4 v{V_L16}, s[{S_W2}:{S_W2+3}], 0 offen lds', [V_L16], [], dma=True)
    a.cond_end()
    fullexec()
    PWT = 136; BIGR = 137
    V(f'v_mov_b32 v{BIGR}, 0x7f000000', [], [BIGR])
    V(f'v_lshrrev_b32 v{t[0]}, 4, v0', [0], [t[0]])
    V(f'v_and_b32 v{t[1]}, 15, v0', [0], [t[1]])
    V(f'v_mad_u32_u24 v{t[0]}, v{t[0]}, 13, v{t[1]}', [t[0], t[1]], [t[0]])
    V(f'v_lshlrev_b32 v{t[0]}, 1, v{t[0]}', [t[0]], [t[0]])
    V(f'v_cmp_gt_u32 vcc, 13, v{t[1]}', [t[1]], [], swrites=['vcc'])
    V(f'v_cndmask_b32 v{t[0]}, v{BIGR}, v{t[0]}, vcc', [BIGR, t[0]], [t[0]], sreads=['vcc'])
    S(f's_cmp_gt_u32 s{S_WAVE}, 2')
    a.cond_begin('s_cbranch_scc1 L_nopw', 'L_nopw')
    a.vmem(f'buffer_load_ushort v{PWT}, v{t[0]}, s[{S_WCO}:{S_WCO+3}], 0 offen', [t[0]], [PWT])
    a.cond_end()
    V(f'v_mov_b32 v{t[2]}, 0', [], [t[2]])
    a.vmem(f'buffer_load_ushort v{V_ACC}, v{t[2]}, s[{S_BO}:{S_BO+3}], 0 offen', [t[2]], [V_ACC])
    def sym_addr(p, srow, wsbase):
        V(f'v_lshrrev_b32 v{p[3]}, 1, v{p[0]}', [p[0]], [p[3]])
        V(f'v_and_b32 v{p[4]}, 1, v{p[0]}', [p[0]], [p[4]])
        V(f'v_subrev_u32 v{p[5]}, 1, v{p[3]}', [p[3]], [p[5]])
        V(f'v_mul_i32_i24 v{p[5]}, v{p[5]}, v{p[3]}', [p[5], p[3]], [p[5]])
        V(f'v_lshrrev_b32 v{p[5]}, 1, v{p[5]}', [p[5]], [p[5]])
        V(f'v_mul_u32_u24 v{p[6]}, 12, v{p[3]}', [p[3]], [p[6]])
        V(f'v_sub_u32 v{p[6]}, v{p[6]}, v{p[5]}', [p[6], p[5]], [p[6]])
        V(f'v_mul_u32_u24 v{p[5]}, 92, v{p[4]}', [p[4]], [p[5]])
        V(f'v_add_u32 v{p[6]}, v{p[6]}, v{p[5]}', [p[6], p[5]], [p[6]])
        V(f'v_lshl_add_u32 v{p[6]}, v{p[1]}, 1, v{p[6]}', [p[1], p[6]], [p[6]])
        V(f'v_lshlrev_b32 v{p[6]}, 2, v{p[6]}', [p[6]], [p[6]])
        V(f'v_add_u32 v{p[6]}, s{S_T3}, v{p[6]}', [p[6]], [p[6]])
        V(f'v_lshlrev_b32 v{p[5]}, 1, v{p[1]}', [p[1]], [p[5]])
        V(f'v_sub_u32 v{p[3]}, v{p[3]}, v{p[5]}', [p[3], p[5]], [p[3]])
        V(f'v_cmp_gt_u32 vcc, 26, v{p[0]}', [p[0]], [], swrites=['vcc'])
        V(f'v_mov_b32 v{p[5]}, 100', [], [p[5]])
        V(f'v_cndmask_b32 v{p[3]}, v{p[5]}, v{p[3]}, vcc', [p[5], p[3]], [p[3]], sreads=['vcc'])
        V(f'v_add_u32 v{p[8]}, s{S_T3}, v{V_L16}', [V_L16], [p[8]])
        V(f'v_cmp_le_u32 vcc, 23, v{V_LANE}', [V_LANE], [], swrites=['vcc'])
        V(f'v_cndmask_b32 v{p[9]}, 0, 1, vcc', [], [p[9]], sreads=['vcc'])
        S(f's_mov_b32 s{S_T0}, s{srow}')
        rho_salu(S_T0, S_T1, S_T4)
        V(f'v_mul_u32_u24 v{p[9]}, {25*368}, v{p[9]}', [p[9]], [p[9]])
        V(f'v_add_u32 v{p[9]}, v{p[9]}, v{V_L16}', [p[9], V_L16], [p[9]])
        S(f's_mul_i32 s{S_T0}, s{S_T0}, 368'); S(f's_add_u32 s{S_T0}, s{S_T0}, {wsbase}')

    def sym_out(p, SD, MF, IF, ewl):
        m = p[10]
        V(f'v_max3_f32 v{m}, |v{SD}|, |v{SD+1}|, |v{SD+2}|', R(SD, 3), [m])
        for r in range(3, 15, 2):
            V(f'v_max3_f32 v{m}, |v{SD+r}|, |v{SD+r+1}|, v{m}', [SD+r, SD+r+1, m], [m])
        dpp_max(m)
        V(f'v_frexp_exp_i32_f32 v{m}, v{m}', [m], [m])
        V(f'v_readlane_b32 s{S_T4}, v{m}, 63', [m], [], swrites=[S_T4], readlane=True)
        S(f's_sub_i32 s{S_C}, 15, s{S_T4}', sreads=[S_T4])
        S(f's_sub_i32 s{S_T4}, s{S_T4}, 15')
        for r in range(14): V(f'v_ldexp_f32 v{SD+r}, v{SD+r}, s{S_C}', [SD+r], [SD+r])
        for rp in range(7):
            V(f'v_cvt_pk_f16_f32 v{MF+rp}, v{SD+2*rp}, v{SD+2*rp+1}', [SD+2*rp, SD+2*rp+1], [MF+rp])
        V(f'v_mov_b32 v{p[7]}, 0', [], [p[7]])
        V(f'v_mov_b32 v{p[13]}, s{S_T3}', [], [p[13]])
        a.ds(f'ds_write_b32 v{p[13]}, v{p[7]} offset:364', [p[13], p[7]])
        a.ds(f'ds_write_b32 v{p[13]}, v{p[7]} offset:732', [p[13], p[7]])
        for rp in range(7):
            aa, bb = rp >> 1, rp & 1
            V(f'v_cmp_ge_i32 vcc, {4*aa+bb}, v{p[3]}', [p[3]], [], swrites=['vcc'])
            if aa == 3: S('s_mov_b32 vcc_hi, 0', sreads=['vcc'])
            S('s_mov_b64 exec, vcc', sreads=['vcc'])
            a.ds(f'ds_write_b32 v{p[6]}, v{MF+rp} offset:{4*(4*aa+bb)}', [p[6], MF+rp])
            fullexec()
        a.raw('s_waitcnt lgkmcnt(0)', kind='wait')
        a.ds(f'ds_read_b128 {vr(IF,4)}, v{p[8]}', [p[8]], R(IF, 4))
        execn(46)
        a.vmem(f'buffer_store_dwordx4 {vr(IF,4)}, v{p[9]}, s[{S_WS}:{S_WS+3}], s{S_T0} offen sc1', [p[9]] + R(IF, 4), [], wide_store=R(IF, 4))
        fullexec()
        S(f's_lshl_b32 s{S_T1}, s{S_T1}, 2'); S(f's_add_u32 s{S_T1}, s{S_T1}, {WS_EWT + 128 * ewl}')
        V(f'v_mov_b32 v{p[11]}, s{S_T4}', [], [p[11]]); V(f'v_mov_b32 v{p[12]}, s{S_T1}', [], [p[12]])
        S('s_mov_b64 exec, 1')
        a.vmem(f'buffer_store_dword v{p[11]}, v{p[12]}, s[{S_WS}:{S_WS+3}], 0 offen sc1', [p[11], p[12]], [])

    S(f's_cmp_ge_u32 s{S_PID}, {NP2}')
    a.cond_begin('s_cbranch_scc1 L_noprod', 'L_noprod')
    p = [72 + i for i in range(16)]
    def skipchk():
        a.raw('s_setprio 3')
        V(f'v_mov_b32 v{t[1]}, 1', [], [t[1]]); S('s_mov_b64 exec, 1'); a.ds(f'ds_add_u32 v{V_SYNC}, v{t[1]} offset:24', [V_SYNC, t[1]]); fullexec()
    S(f's_cmp_ge_u32 s{S_G}, 68'); a.raw('s_cbranch_scc1 L_prodv5', kind='branch')
    S(f's_cmp_ge_u32 s{S_G}, 67'); a.raw('s_cbranch_scc1 L_noprod', kind='branch')
    S(f's_cmp_ge_u32 s{S_G}, 28'); a.raw('s_cbranch_scc1 L_prodrow', kind='branch')
    S(f's_cmp_ge_u32 s{S_G}, 26'); a.raw('s_cbranch_scc1 L_noprod', kind='branch')
    MF = 116; IF = 124; SD = 40
    V(f'v_and_b32 v{p[0]}, 31, v{V_LANE}', [V_LANE], [p[0]])
    V(f'v_lshrrev_b32 v{p[1]}, 5, v{V_LANE}', [V_LANE], [p[1]])
    V(f'v_mul_u32_u24 v{p[2]}, 52, v{p[0]}', [p[0]], [p[2]])
    V(f'v_lshl_add_u32 v{p[2]}, v{p[1]}, 4, v{p[2]}', [p[1], p[2]], [p[2]])
    S(f's_mul_i32 s{S_T2}, s{S_G}, 1352')
    a.vmem(f'buffer_load_dwordx4 {vr(MF,4)}, v{p[2]}, s[{S_WC}:{S_WC+3}], s{S_T2} offen', [p[2]], R(MF, 4))
    a.vmem(f'buffer_load_dwordx4 {vr(MF+4,4)}, v{p[2]}, s[{S_WC}:{S_WC+3}], s{S_T2} offen offset:32', [p[2]], R(MF+4, 4))
    V(f'v_lshlrev_b32 v{p[3]}, 3, v{p[1]}', [p[1]], [p[3]])
    V(f'v_sub_u32 v{p[3]}, v{p[0]}, v{p[3]}', [p[0], p[3]], [p[3]])
    V(f'v_and_b32 v{p[4]}, 1, v{p[3]}', [p[3]], [p[4]])
    V(f'v_lshlrev_b32 v{p[4]}, 4, v{p[4]}', [p[4]], [p[4]])
    V(f'v_mov_b32 v{p[5]}, 0x3f80', [], [p[5]])
    V(f'v_lshlrev_b32 v{p[4]}, v{p[4]}, v{p[5]}', [p[4], p[5]], [p[4]])
    V(f'v_ashrrev_i32 v{p[3]}, 1, v{p[3]}', [p[3]], [p[3]])
    for ks in range(2):
        for r in range(4):
            V(f'v_cmp_eq_u32 vcc, {8*ks + r}, v{p[3]}', [p[3]], [], swrites=['vcc'])
            V(f'v_cndmask_b32 v{IF+4*ks+r}, 0, v{p[4]}, vcc', [p[4]], [IF+4*ks+r], sreads=['vcc'])
    S(f's_lshl_b32 s{S_T3}, s{S_WAVE}, 10'); S(f's_add_u32 s{S_T3}, s{S_T3}, {SCR}')
    sym_addr(p, S_G, WS_IMG0)
    a.raw('s_waitcnt vmcnt(0)', kind='wait')
    skipchk()
    a.mfma('v_mfma_f32_32x32x16_bf16', SD, MF, IF, None, 8, 16)
    a.mfma('v_mfma_f32_32x32x16_bf16', SD, MF+4, IF+4, SD, 8, 16)
    a.mfma('v_mfma_f32_32x32x16_bf16', SD, IF, MF, SD, 8, 16)
    a.mfma('v_mfma_f32_32x32x16_bf16', SD, IF+4, MF+4, SD, 8, 16)
    sym_out(p, SD, MF, IF, 0)
    a.raw('s_branch L_prodfin', kind='branch')
    a.label('L_prodrow')
    S(f's_sub_u32 s{S_G}, s{S_G}, 28'); S(f's_lshl_b32 s{S_G}, s{S_G}, 1')
    PR = 40; PA = 88
    S(f's_mul_i32 s{S_T2}, s{S_G}, 1352'); S(f's_add_u32 s{S_T2}, s{S_T2}, 35152')
    V(f'v_cmp_le_u32 vcc, 43, v{V_LANE}', [V_LANE], [], swrites=['vcc'])
    V(f'v_cndmask_b32 v{p[0]}, 0, 1, vcc', [], [p[0]], sreads=['vcc'])
    V(f'v_mul_u32_u24 v{p[2]}, 12, v{p[0]}', [p[0]], [p[2]])
    V(f'v_sub_u32 v{p[2]}, v{V_L16}, v{p[2]}', [V_L16, p[2]], [p[2]])
    V(f'v_min_u32 v{p[3]}, 21, v{V_LANE}', [V_LANE], [p[3]])
    V(f'v_lshlrev_b32 v{p[4]}, 4, v{p[3]}', [p[3]], [p[4]])
    for rr in range(2):
        a.vmem(f'buffer_load_dwordx4 {vr(PR+8*rr,4)}, v{p[2]}, s[{S_WC}:{S_WC+3}], s{S_T2} offen offset:{1352*rr}', [p[2]], R(PR+8*rr, 4))
        a.vmem(f'buffer_load_dwordx4 {vr(PR+8*rr+4,4)}, v{p[4]}, s[{S_WC}:{S_WC+3}], s{S_T2} offen offset:{1352*rr+1012}', [p[4]], R(PR+8*rr+4, 4))
    V(f'v_mul_u32_u24 v{p[7]}, {25*688}, v{p[0]}', [p[0]], [p[7]])
    V(f'v_add_u32 v{p[7]}, v{p[7]}, v{V_L16}', [p[7], V_L16], [p[7]])
    V(f'v_add_u32 v{p[8]}, {26*688+336}, v{p[4]}', [p[4]], [p[8]])
    S(f's_mul_i32 s{S_T1}, s{S_G}, 2521'); S(f's_lshr_b32 s{S_T1}, s{S_T1}, 16')
    for rr in range(2):
        so, se = 4 + 2*rr, 5 + 2*rr
        S(f's_mul_i32 s{S_T3}, s{S_T1}, 26'); S(f's_sub_u32 s{S_T0}, s{S_G}, s{S_T3}'); S(f's_add_u32 s{S_T0}, s{S_T0}, {rr}')
        rho_salu(S_T0, S_T3, S_T4)
        S(f's_mul_i32 s{S_T0}, s{S_T0}, 688'); S(f's_mul_i32 s{so}, s{S_T1}, {IMG}'); S(f's_add_u32 s{so}, s{so}, s{S_T0}'); S(f's_add_u32 s{so}, s{so}, {WS_IMG[1]}')
        S(f's_lshl_b32 s{se}, s{S_T1}, 5'); S(f's_add_u32 s{se}, s{se}, s{S_T3}'); S(f's_lshl_b32 s{se}, s{se}, 2'); S(f's_add_u32 s{se}, s{se}, {WS_EWT + 128}')
    a.raw('s_waitcnt vmcnt(0)', kind='wait')
    skipchk()
    for i in range(16): V(f'v_and_b32 v{PA+i}, s{S_K7FFF}, v{PR+i}', [PR+i], [PA+i])
    m = p[11]
    V(f'v_pk_max_u16 v{m}, v{PA}, v{PA+1}', R(PA, 2), [m])
    for i in range(2, 16, 2): V(f'v_pk_maximum3_f16 v{m}, v{m}, v{PA+i}, v{PA+i+1}', [m, PA+i, PA+i+1], [m])
    V(f'v_max_u16_sdwa v{m}, v{m}, v{m} dst_sel:DWORD dst_unused:UNUSED_PAD src0_sel:WORD_1 src1_sel:WORD_0', [m], [m], opsel=True)
    dpp_max(m)
    V(f'v_readlane_b32 s{S_T0}, v{m}, 63', [m], [], swrites=[S_T0], readlane=True)
    S(f's_lshr_b32 s{S_T0}, s{S_T0}, 7', sreads=[S_T0], swrites=[S_T0])
    S(f's_sub_i32 s{S_T0}, s{S_T0}, 30'); S(f's_max_i32 s{S_T0}, s{S_T0}, 0')
    S(f's_mul_i32 s{S_C}, s{S_T0}, 0x800080'); S(f's_sub_i32 s{S_T0}, s{S_T0}, 112')
    for i in range(16): V(f'v_pk_sub_u16 v{PA+i}, v{PA+i}, s{S_C} clamp', [PA+i], [PA+i])
    for i in range(16): V(f'v_lshlrev_b32 v{PA+i}, 3, v{PA+i}', [PA+i], [PA+i])
    for i in range(16): V(f'v_bfi_b32 v{PA+i}, s{S_K8000}, v{PR+i}, v{PA+i}', [PA+i, PR+i], [PA+i])
    V(f'v_mov_b32 v{p[9]}, s{S_T0}', [], [p[9]]); V(f'v_mov_b32 v{p[10]}, 0', [], [p[10]])
    for rr in range(2):
        a.vmem(f'buffer_store_dwordx4 {vr(PA+8*rr,4)}, v{p[7]}, s[{S_WS}:{S_WS+3}], s{4+2*rr} offen sc1', [p[7]] + R(PA+8*rr, 4), [], wide_store=R(PA+8*rr, 4))
    execn(22)
    for rr in range(2):
        a.vmem(f'buffer_store_dwordx4 {vr(PA+8*rr+4,4)}, v{p[8]}, s[{S_WS}:{S_WS+3}], s{4+2*rr} offen sc1', [p[8]] + R(PA+8*rr+4, 4), [], wide_store=R(PA+8*rr+4, 4))
    S('s_mov_b64 exec, 1')
    for rr in range(2):
        a.vmem(f'buffer_store_dword v{p[9]}, v{p[10]}, s[{S_WS}:{S_WS+3}], s{5+2*rr} offen sc1', [p[9], p[10]], [])
    a.raw('s_branch L_prodfin', kind='branch')
    a.label('L_prodv5')
    S(f's_sub_u32 s{S_T0}, s{S_G}, 68'); S(f's_cmp_ge_u32 s{S_T0}, 28'); S(f's_cselect_b32 s{S_T3}, 1, 0'); S(f's_mul_i32 s{S_T1}, s{S_T3}, 28'); S(f's_sub_u32 s{S_T0}, s{S_T0}, s{S_T1}')
    S(f's_cmp_ge_u32 s{S_T0}, 26'); a.raw('s_cbranch_scc1 L_noprod', kind='branch')
    LA = 40; LB = 44; AC = 48
    S(f's_mul_i32 s{S_T2}, s{S_T0}, 52'); S(f's_mul_i32 s{S_T1}, s{S_T3}, 35152'); S(f's_add_u32 s{S_T2}, s{S_T2}, s{S_T1}'); S(f's_add_u32 s{S_T2}, s{S_T2}, {4*35152}')
    V(f'v_lshrrev_b32 v{p[0]}, 2, v{V_LANE}', [V_LANE], [p[0]])
    V(f'v_and_b32 v{p[1]}, 3, v{V_LANE}', [V_LANE], [p[1]])
    V(f'v_mul_u32_u24 v{p[2]}, 0x548, v{p[0]}', [p[0]], [p[2]])
    V(f'v_lshl_add_u32 v{p[2]}, v{p[1]}, 4, v{p[2]}', [p[1], p[2]], [p[2]])
    a.vmem(f'buffer_load_dwordx4 {vr(LA,4)}, v{p[2]}, s[{S_WC}:{S_WC+3}], s{S_T2} offen', [p[2]], R(LA, 4))
    S(f's_add_u32 s{S_T2}, s{S_T2}, {16*1352}')
    a.vmem(f'buffer_load_dwordx4 {vr(LB,4)}, v{p[2]}, s[{S_WC}:{S_WC+3}], s{S_T2} offen', [p[2]], R(LB, 4))
    V(f'v_lshlrev_b32 v{p[3]}, 1, v{p[0]}', [p[0]], [p[3]])
    S(f's_mul_i32 s{S_T2}, s{S_T3}, 52')
    a.vmem(f'buffer_load_ushort v{p[4]}, v{p[3]}, s[{S_WCO}:{S_WCO+3}], s{S_T2} offen offset:208', [p[3]], [p[4]])
    a.vmem(f'buffer_load_ushort v{p[5]}, v{p[3]}, s[{S_WCO}:{S_WCO+3}], s{S_T2} offen offset:240', [p[3]], [p[5]])
    S(f's_lshl_b32 s{S_C}, s{S_T0}, 7'); S(f's_add_u32 s{S_C}, s{S_C}, {WS_V5R}')
    rho_salu(S_T0, S_T1, S_T4, clamp=False)
    S(f's_lshl_b32 s{S_T0}, s{S_T0}, 4'); S(f's_add_u32 s{S_T0}, s{S_T0}, {WS_V5F}')
    S(f's_cmp_eq_u32 s{S_T3}, 0'); S(f's_cselect_b32 s{S_T0}, s{S_T0}, s{S_C}'); S(f's_cselect_b32 s{S_T1}, 10, 4'); S(f's_movk_i32 s{S_T4}, 0x200'); S(f's_cselect_b32 s{S_T4}, s{S_T4}, 64')
    V(f'v_lshlrev_b32 v{p[6]}, s{S_T1}, v{p[1]}', [p[1]], [p[6]])
    V(f'v_add_u32 v{p[15]}, s{S_T4}, v{p[6]}', [p[6]], [p[15]])
    a.raw('s_waitcnt vmcnt(0)', kind='wait')
    skipchk()
    V(f'v_cmp_ne_u32 vcc, 3, v{p[1]}', [p[1]], [], swrites=['vcc'])
    for r in (1, 2, 3):
        V(f'v_cndmask_b32 v{LA+r}, 0, v{LA+r}, vcc', [LA+r], [LA+r], sreads=['vcc'])
        V(f'v_cndmask_b32 v{LB+r}, 0, v{LB+r}, vcc', [LB+r], [LB+r], sreads=['vcc'])
    V(f'v_lshlrev_b32 v{p[4]}, 16, v{p[4]}', [p[4]], [p[4]])
    V(f'v_lshlrev_b32 v{p[5]}, 16, v{p[5]}', [p[5]], [p[5]])
    V(f'v_cmp_gt_u32 vcc, 10, v{p[0]}', [p[0]], [], swrites=['vcc'])
    V(f'v_cndmask_b32 v{p[5]}, 0, v{p[5]}, vcc', [p[5]], [p[5]], sreads=['vcc'])
    for r in range(4):
        V(f'v_lshlrev_b32 v{p[7]}, 16, v{LA+r}', [LA+r], [p[7]])
        V(f'v_and_b32 v{p[8]}, 0xffff0000, v{LA+r}', [LA+r], [p[8]])
        V(f'v_lshlrev_b32 v{p[9]}, 16, v{LB+r}', [LB+r], [p[9]])
        V(f'v_and_b32 v{p[10]}, 0xffff0000, v{LB+r}', [LB+r], [p[10]])
        V(f'v_mul_f32 v{AC+2*r}, v{p[4]}, v{p[7]}', [p[4], p[7]], [AC+2*r])
        V(f'v_mul_f32 v{AC+2*r+1}, v{p[4]}, v{p[8]}', [p[4], p[8]], [AC+2*r+1])
        V(f'v_fmac_f32 v{AC+2*r}, v{p[5]}, v{p[9]}', [AC+2*r, p[5], p[9]], [AC+2*r])
        V(f'v_fmac_f32 v{AC+2*r+1}, v{p[5]}, v{p[10]}', [AC+2*r+1, p[5], p[10]], [AC+2*r+1])
    for d in (4, 8):
        for e in range(8):
            V(f'v_add_f32_dpp v{AC+e}, v{AC+e}, v{AC+e} row_ror:{d} row_mask:0xf bank_mask:0xf', [AC+e], [AC+e], dpp=True)
    for op in ('v_permlane16_swap_b32', 'v_permlane32_swap_b32'):
        for e in range(8): V(f'v_mov_b32 v{p[7+e]}, v{AC+e}', [AC+e], [p[7+e]])
        for e in range(8): V(f'{op} v{AC+e}, v{p[7+e]}', [AC+e, p[7+e]], [AC+e, p[7+e]], permlane=True)
        for e in range(8): V(f'v_add_f32 v{AC+e}, v{AC+e}, v{p[7+e]}', [AC+e, p[7+e]], [AC+e])
    for r in range(4):
        V(f'v_cvt_pk_bf16_f32 v{LA+r}, v{AC+2*r}, v{AC+2*r+1}', [AC+2*r, AC+2*r+1], [LA+r])
        V(f'v_lshlrev_b32 v{p[7]}, 16, v{LA+r}', [LA+r], [p[7]])
        V(f'v_and_b32 v{p[8]}, 0xffff0000, v{LA+r}', [LA+r], [p[8]])
        V(f'v_sub_f32 v{p[7]}, v{AC+2*r}, v{p[7]}', [AC+2*r, p[7]], [p[7]])
        V(f'v_sub_f32 v{p[8]}, v{AC+2*r+1}, v{p[8]}', [AC+2*r+1, p[8]], [p[8]])
        V(f'v_cvt_pk_bf16_f32 v{LB+r}, v{p[7]}, v{p[8]}', [p[7], p[8]], [LB+r])
    execn(4)
    a.vmem(f'buffer_store_dwordx4 {vr(LA,4)}, v{p[6]}, s[{S_WS}:{S_WS+3}], s{S_T0} offen sc1', [p[6]] + R(LA, 4), [], wide_store=R(LA, 4))
    a.vmem(f'buffer_store_dwordx4 {vr(LB,4)}, v{p[15]}, s[{S_WS}:{S_WS+3}], s{S_T0} offen sc1', [p[15]] + R(LB, 4), [], wide_store=R(LB, 4))
    a.label('L_prodfin')
    fullexec()
    a.raw('s_branch L_afterprod', kind='branch')
    a.cond_end()
    a.raw('s_waitcnt vmcnt(0)', kind='wait')
    V(f'v_mov_b32 v{t[1]}, 1', [], [t[1]]); S('s_mov_b64 exec, 1'); a.ds(f'ds_add_u32 v{V_SYNC}, v{t[1]} offset:24', [V_SYNC, t[1]]); fullexec()
    a.label('L_afterprod')
    a.vm = []
    a.raw('s_waitcnt lgkmcnt(0)', kind='wait'); a.lds = []
    a.nop(12)
    stamp('prod')
    def addr_setup():
        V(f'v_and_b32 v{t[0]}, 31, v{V_LANE}', [V_LANE], [t[0]])
        V(f'v_cmp_gt_u32 vcc, 28, v{t[0]}', [t[0]], [], swrites=['vcc'])
        V(f'v_addc_co_u32 v{t[4]}, vcc, 0, v{t[0]}, vcc', [t[0]], [t[4]], sreads=['vcc'], swrites=['vcc'])
        V(f'v_cmp_eq_u32 s[{S_MT}:{S_MT+1}], 28, v{t[0]}', [t[0]], [], swrites=[S_MT, S_MT+1])
        V(f'v_cndmask_b32 v{t[4]}, v{t[4]}, 0, s[{S_MT}:{S_MT+1}]', [t[4]], [t[4]], sreads=[S_MT])
        V(f'v_lshrrev_b32 v{t[1]}, 5, v{V_LANE}', [V_LANE], [t[1]])
        V(f'v_mad_u32_u24 v{t[4]}, v{t[1]}, 26, v{t[4]}', [t[1], t[4]], [t[4]])
        V(f'v_cmp_gt_u32 vcc, 25, v{t[0]}', [t[0]], [], swrites=['vcc'])
        S(f's_or_b64 vcc, vcc, s[{S_MT}:{S_MT+1}]', sreads=['vcc', S_MT])
        V(f'v_mov_b32 v{t[5]}, 0x40000', [], [t[5]])
        V(f'v_cndmask_b32 v{t[5]}, v{t[5]}, 0, vcc', [t[5]], [t[5]])
        S(f's_movk_i32 s{S_T0}, 0x2b0'); S(f's_movk_i32 s{S_T1}, 0x170')
        V(f'v_mad_u32_u24 v{V_AADDR[0]}, v{t[4]}, s{S_T0}, v{t[5]}', [t[4], t[5]], [V_AADDR[0]])
        V(f'v_add_u32 v{V_AADDR[1]}, {U[2]}, v{V_AADDR[0]}', [V_AADDR[0]], [V_AADDR[1]])
        V(f'v_mad_u32_u24 v{V_AADDR0}, v{t[4]}, s{S_T1}, v{t[5]}', [t[4], t[5]], [V_AADDR0])
        V(f'v_add_u32 v{V_AADDR0}, {I0B}, v{V_AADDR0}', [V_AADDR0], [V_AADDR0])
    V(f'v_and_b32 v{t[0]}, 31, v{V_LANE}', [V_LANE], [t[0]])
    V(f'v_lshlrev_b32 v{t[0]}, 2, v{t[0]}', [t[0]], [t[0]])
    S(f's_mul_i32 s{S_T0}, s{S_WAVE}, 1664'); S(f's_add_u32 s{S_T0}, s{S_T0}, {X16}')
    V(f'v_add_u32 v{V_TRADDR}, s{S_T0}, v{t[0]}', [t[0]], [V_TRADDR])
    V(f'v_lshrrev_b32 v{t[4]}, 4, v{V_LANE}', [V_LANE], [t[4]])
    V(f'v_lshrrev_b32 v{t[0]}, 2, v{V_LANE}', [V_LANE], [t[0]])
    V(f'v_mul_u32_u24 v{t[0]}, 224, v{t[0]}', [t[0]], [t[0]])
    V(f'v_and_b32 v{t[5]}, 3, v{V_LANE}', [V_LANE], [t[5]])
    V(f'v_lshl_add_u32 v{t[0]}, v{t[5]}, 3, v{t[0]}', [t[5], t[0]], [t[0]])
    V(f'v_mov_b32 v{V_DAADDR}, v{t[0]}', [t[0]], [V_DAADDR])
    V(f'v_add_u32 v{V_DBK}, 121600, v{V_DAADDR}', [V_DAADDR], [V_DBK])
    S(f's_lshl_b32 s{S_T1}, s{S_T0L}, 5'); S(f's_add_u32 s{S_T1}, s{S_T1}, {BW}')
    V(f'v_lshlrev_b32 v{t[4]}, 3, v{t[4]}', [t[4]], [t[4]])
    V(f'v_add_u32 v{V_BWADDR}, s{S_T1}, v{t[4]}', [t[4]], [V_BWADDR])
    V(f'v_mov_b32 v{V_SYNC}, {SYNC}', [], [V_SYNC])
    S(f's_lshl_b32 s{S_T0}, s{S_WAVE}, 2'); S(f's_add_u32 s{S_T0}, s{S_T0}, {SYNC + 32}')
    V(f'v_mov_b32 v{V_DONEA}, s{S_T0}', [], [V_DONEA])
    S(f's_cmp_gt_u32 s{S_WAVE}, 2')
    a.cond_begin('s_cbranch_scc1 L_nopw2', 'L_nopw2')
    V(f'v_lshlrev_b32 v{PWT}, 16, v{PWT}', [PWT], [PWT])
    V(f'v_lshlrev_b32 v{t[0]}, 2, v0', [0], [t[0]])
    V(f'v_add_u32 v{t[0]}, {POOLW}, v{t[0]}', [t[0]], [t[0]])
    V(f'v_cmp_gt_u32 vcc, 0xa0, v0', [0], [], swrites=['vcc'])
    S('s_mov_b64 exec, vcc', sreads=['vcc'])
    a.ds(f'ds_write_b32 v{t[0]}, v{PWT}', [t[0], PWT])
    fullexec()
    a.cond_end()
    a.wait_lds_all()
    S(f's_cmp_ge_u32 s{S_PID}, {NP2}')
    a.raw('s_cbranch_scc1 L_nocnt', kind='branch')
    a.raw('s_waitcnt vmcnt(0)', kind='wait')
    a.raw(f'v_mov_b32 v{VT1}, 1', kind='valu')
    S('s_mov_b64 exec, 1')
    a.raw(f'ds_add_rtn_u32 v{VT2}, v{V_SYNC}, v{VT1} offset:12', kind='ds')
    a.raw(f's_memrealtime s[{S_MT}:{S_MT+1}]')
    a.raw('s_waitcnt lgkmcnt(0)', kind='wait')
    a.raw(f'v_readfirstlane_b32 s{S_T0}, v{VT2}', kind='valu')
    a.raw('s_nop 0', kind='nop')
    S(f's_cmp_lg_u32 s{S_T0}, 3')
    a.raw('s_cbranch_scc1 L_nocnt', kind='branch')
    S(f's_mov_b32 s{S_T0}, 136'); S(f's_mov_b32 s{S_T1}, {NP0 - 1}'); S(f's_mov_b32 s{S_T2}, 0')
    S(f's_cmp_ge_u32 s{S_PID}, {NP0}'); S(f's_cselect_b32 s{S_T0}, 128, s{S_T0}'); S(f's_cselect_b32 s{S_T1}, {NP1 - NP0 - 1}, s{S_T1}'); S(f's_cselect_b32 s{S_T2}, 4, s{S_T2}')
    S(f's_cmp_ge_u32 s{S_PID}, {NP1}'); S(f's_cselect_b32 s{S_T0}, 64, s{S_T0}'); S(f's_cselect_b32 s{S_T1}, {NP2 - NP1 - 1}, s{S_T1}'); S(f's_cselect_b32 s{S_T2}, 8, s{S_T2}')
    a.raw(f'v_mov_b32 v{VT2}, s{S_T2}', kind='valu')
    a.raw(f'buffer_atomic_add v{VT1}, v{VT2}, s[{S_DBGF}:{S_DBGF+3}], 0 offen sc0 sc1', kind='vmem')
    a.raw('s_waitcnt vmcnt(0)', kind='wait')
    a.raw(f'v_readfirstlane_b32 s{S_T2}, v{VT1}', kind='valu')
    a.raw('s_nop 0', kind='nop')
    S(f's_cmp_lg_u32 s{S_T2}, s{S_T1}')
    a.raw('s_cbranch_scc1 L_nocnt', kind='branch')
    S(f's_or_b32 s{S_MT}, s{S_MT}, 1')
    a.raw(f'v_mov_b32 v{VT1}, s{S_MT}', kind='valu')
    a.raw(f'v_mov_b32 v{VT3}, s{S_T0}', kind='valu')
    a.raw(f'buffer_store_dword v{VT1}, v{VT3}, s[{S_DBGF}:{S_DBGF+3}], 0 offen sc1', kind='vmem')
    a.label('L_nocnt')
    fullexec()
    a.raw('s_setprio 0')
    S(f's_mov_b32 s{S_KN}, 0')
    stamp('setup')

    chk_n = [0]
    def rdy_fetch(off): a.ds(f'ds_read_b32 v{V_RDY}, v{V_SYNC} offset:{off}', [V_SYNC], [V_RDY])
    def rdy_check(nseq, off, fetched=False):
        if not fetched: rdy_fetch(off)
        i = chk_n[0]; chk_n[0] += 1
        V(f'v_readfirstlane_b32 s{S_T0}, v{V_RDY}', [V_RDY], [], swrites=[S_T0], readlane=True)
        S(f's_cmp_ge_u32 s{S_T0}, {nseq}', sreads=[S_T0])
        a.cond_begin(f's_cbranch_scc1 L_ok{i}', f'L_ok{i}')
        a.raw(f's_mov_b32 s{S_T1}, 0x100000', kind='salu')
        a.label(f'L_sp{i}')
        a.raw('s_sleep 1')
        a.raw(f'ds_read_b32 v{V_RDY}, v{V_SYNC} offset:{off}', kind='ds')
        a.raw(f's_sub_u32 s{S_T1}, s{S_T1}, 1', kind='salu')
        a.raw(f's_cbranch_scc1 L_ok{i}', kind='branch')
        a.raw('s_waitcnt lgkmcnt(0)', kind='wait')
        a.raw(f'v_readfirstlane_b32 s{S_T0}, v{V_RDY}', kind='valu')
        a.raw('s_nop 0', kind='nop')
        a.raw(f's_cmp_ge_u32 s{S_T0}, {nseq}', kind='salu')
        a.raw(f's_cbranch_scc0 L_sp{i}', kind='branch')
        a.cond_end()
    def cnt_check(nseq):
        i = chk_n[0]; chk_n[0] += 1
        S(f's_cmp_ge_u32 s{S_KN}, {nseq}')
        a.cond_begin(f's_cbranch_scc1 L_ok{i}', f'L_ok{i}')
        a.raw(f's_mov_b32 s{S_T1}, 0x100000', kind='salu')
        a.label(f'L_sp{i}')
        a.raw(f'ds_read_b32 v{V_RDY}, v{V_SYNC}', kind='ds')
        a.raw(f's_sub_u32 s{S_T1}, s{S_T1}, 1', kind='salu')
        a.raw(f's_cbranch_scc1 L_ok{i}', kind='branch')
        a.raw('s_waitcnt lgkmcnt(0)', kind='wait')
        a.raw(f'v_readfirstlane_b32 s{S_KN}, v{V_RDY}', kind='valu')
        a.raw('s_nop 0', kind='nop')
        a.raw(f's_cmp_ge_u32 s{S_KN}, {nseq}', kind='salu')
        a.raw(f's_cbranch_scc1 L_ok{i}', kind='branch')
        a.raw('s_sleep 1')
        a.raw(f's_branch L_sp{i}', kind='branch')
        a.cond_end()
    def release(stage):
        V(f'v_mov_b32 v{t[0]}, {stage}', [], [t[0]])
        a.ds(f'ds_write_b32 v{V_DONEA}, v{t[0]}', [V_DONEA, t[0]])

    def x0_ops():
        ops = []
        PB = PBT
        def rd():
            V(f'v_lshlrev_b32 v{V_ACC}, 16, v{V_ACC}', [V_ACC], [V_ACC])
            V(f'v_and_b32 v{t[0]}, 47, v{V_LANE}', [V_LANE], [t[0]])
            V(f'v_cmp_eq_u32 vcc, 0, v{t[0]}', [t[0]], [], swrites=['vcc'])
            V(f'v_cndmask_b32 v{V_ACC}, 0, v{V_ACC}, vcc', [V_ACC], [V_ACC], sreads=['vcc'])
        ops.append(rd)
        m = t[1]
        def c1():
            for v in range(13): V(f'v_and_b32 v{P16+v}, s{S_K7FFF}, v{PB+v}', [PB+v], [P16+v])
        ops.append(c1)
        def c2():
            V(f'v_pk_maximum3_f16 v{m}, v{P16}, v{P16+1}, v{P16+2}', R(P16, 3), [m])
            for v in range(3, 13, 2):
                V(f'v_pk_maximum3_f16 v{m}, v{m}, v{P16+v}, v{P16+v+1}', [m, P16+v, P16+v+1], [m])
            V(f'v_max_u16_sdwa v{m}, v{m}, v{m} dst_sel:DWORD dst_unused:UNUSED_PAD src0_sel:WORD_1 src1_sel:WORD_0', [m], [m], opsel=True)
            V(f'v_lshrrev_b32 v{m}, 7, v{m}', [m], [m])
            V(f'v_subrev_u32 v{m}, 21, v{m}', [m], [m])
            V(f'v_max_i32 v{m}, 0, v{m}', [m], [m])
            V(f'v_subrev_u32 v{V_EX}, 112, v{m}', [m], [V_EX])
            V(f'v_mul_u32_u24 v{m}, 0x800080, v{m}', [m], [m])
        ops.append(c2)
        ops.append(lambda: [V(f'v_pk_sub_u16 v{P16+v}, v{P16+v}, v{m} clamp', [P16+v, m], [P16+v]) for v in range(13)])
        ops.append(lambda: [V(f'v_lshlrev_b32 v{P16+v}, 3, v{P16+v}', [P16+v], [P16+v]) for v in range(13)])
        ops.append(lambda: [V(f'v_bfi_b32 v{P16+v}, s{S_K8000}, v{PB+v}, v{P16+v}', [P16+v, PB+v], [P16+v]) for v in range(13)])
        def qq():
            V(f'v_mov_b32 v{P16+13}, 0', [], [P16+13])
            V(f'v_mov_b32 v{t[2]}, 0x05040100', [], [t[2]])
            V(f'v_mov_b32 v{t[1]}, 0x07060302', [], [t[1]])
            V(f'v_cndmask_b32 v{t[2]}, v{t[2]}, v{t[1]}, s[{S_HI}:{S_HI+1}]', [t[2], t[1]], [t[2]])
            for q in range(7):
                V(f'v_perm_b32 v{XQ+q}, v{P16+2*q+1}, v{P16+2*q}, v{t[2]}', [P16+2*q+1, P16+2*q, t[2]], [XQ+q])
        ops.append(qq)
        def q2():
            V(f'v_lshlrev_b32 v{V_E}, 1, v{V_EX}', [V_EX], [V_E])
        ops.append(q2)
        return ops

    ACC = 40; DAB = [68, 96]; DBB = [124, 128]; IXR = 132; NDB = 2
    def dnn_bread(i):
        db = DBB[i % NDB]
        a.ds(f'ds_read_b64 {vr(db,2)}, v{IXR+2*i}', [IXR+2*i], R(db, 2))
        a.ds(f'ds_read_b64 {vr(db+2,2)}, v{IXR+2*i+1}', [IXR+2*i+1], R(db+2, 2))
        if i == 11: V(f'v_add_u32 v{V_DAADDR}, 57344, v{V_DAADDR}', [V_DAADDR], [V_DAADDR])
    def dnn_aread(i, q):
        da = DAB[i % NDB]
        hi = i < 3
        ad = V_DBK if hi else V_DAADDR; b0 = CADDR[i] - (121600 if hi else 0)
        if i >= 11: b0 -= 57344
        a.ds(f'ds_read_b64_tr_b16 {vr(da+4*q,2)}, v{ad} offset:{b0+32*q}', [ad], R(da+4*q, 2))
        a.ds(f'ds_read_b64_tr_b16 {vr(da+4*q+2,2)}, v{ad} offset:{b0+32*q+3584}', [ad], R(da+4*q+2, 2))
    def dnn_mf(i, q):
        a.mfma('v_mfma_f32_16x16x32_bf16', ACC+4*q, DAB[i % NDB]+4*q, DBB[i % NDB], ACC+4*q, 4, 4)
    def dnn_epilogue(xt):
        K1 = -2.0 * 1.4426950408889634 * 0.7978845608028654
        K2 = K1 * 0.044715
        acc = 124; K1R = 125; W2T = 96; TT = 68
        qs = list(range(0 if xt else 1, 7))
        S(f's_mov_b32 s{S_K2}, {fb(K2)}')
        for q in qs:
            a.ds(f'ds_read_b64 {vr(W2T+2*q,2)}, v{V_BWADDR} offset:{832+32*q}', [V_BWADDR], R(W2T+2*q, 2))
        V(f'v_mov_b32 v{K1R}, {fb(K1)}', [], [K1R])
        V(f'v_mov_b32 v{acc}, 0', [], [acc])
        xs = [ACC + 4*q + r for q in qs for r in range(4)]
        ts = [TT + 4*q + r for q in qs for r in range(4)]
        for x, tt in zip(xs, ts): V(f'v_mul_f32 v{tt}, v{x}, v{x}', [x], [tt])
        for x, tt in zip(xs, ts): V(f'v_fma_f32 v{tt}, v{tt}, s{S_K2}, v{K1R}', [tt, K1R], [tt])
        for x, tt in zip(xs, ts): V(f'v_mul_f32 v{tt}, v{tt}, v{x}', [tt, x], [tt])
        for x, tt in zip(xs, ts): V(f'v_exp_f32 v{tt}, v{tt}', [tt], [tt], trans=True)
        for x, tt in zip(xs, ts): V(f'v_add_f32 v{tt}, 1.0, v{tt}', [tt], [tt])
        for x, tt in zip(xs, ts): V(f'v_rcp_f32 v{tt}, v{tt}', [tt], [tt], trans=True)
        for x, tt in zip(xs, ts): V(f'v_mul_f32 v{tt}, v{tt}, v{x}', [tt, x], [tt])
        for q in qs:
            w = W2T + 2*q; x0_ = ACC + 4*q
            V(f'v_lshlrev_b32 v{x0_}, 16, v{w}', [w], [x0_])
            V(f'v_and_b32 v{x0_+1}, 0xffff0000, v{w}', [w], [x0_+1])
            V(f'v_lshlrev_b32 v{x0_+2}, 16, v{w+1}', [w+1], [x0_+2])
            V(f'v_and_b32 v{x0_+3}, 0xffff0000, v{w+1}', [w+1], [x0_+3])
        for x, tt in zip(xs, ts): V(f'v_fmac_f32 v{acc}, v{tt}, v{x}', [acc, tt, x], [acc])
        for op in ('v_permlane16_swap_b32', 'v_permlane32_swap_b32'):
            V(f'v_mov_b32 v{K1R}, v{acc}', [acc], [K1R])
            V(f'{op} v{acc}, v{K1R}', [acc, K1R], [acc, K1R], permlane=True)
            V(f'v_add_f32 v{acc}, v{acc}, v{K1R}', [acc, K1R], [acc])
        V(f'v_lshlrev_b32 v{t[0]}, 2, v{V_LANE}', [V_LANE], [t[0]])
        S(f's_and_b32 s{S_T0}, s{S_WAVE}, 3'); S(f's_lshl_b32 s{S_T0}, s{S_T0}, 6'); S(f's_add_u32 s{S_T0}, s{S_T0}, {PDL}')
        V(f'v_add_u32 v{t[0]}, s{S_T0}, v{t[0]}', [t[0]], [t[0]])
        V(f'v_mov_b32 v{t[1]}, 1', [], [t[1]])
        execn(16)
        a.ds(f'ds_write_b32 v{t[0]}, v{acc}', [t[0], acc])
        execn(1)
        a.ds(f'ds_add_u32 v{V_SYNC}, v{t[1]} offset:4', [V_SYNC, t[1]])
        fullexec()
    def u5_ops():
        ops = []
        def rd():
            V(f'v_add_u32 v{t[0]}, {V5F}, v{V_L16}', [V_L16], [t[0]])
            for k in range(4):
                a.ds(f'ds_read_b128 {vr(UA+4*k,4)}, v{t[0]} offset:{1024*k}', [t[0]], R(UA+4*k, 4))
            for k in range(4):
                a.ds(f'ds_read_b128 {vr(G+4*k,4)}, v{V_PWADDR} offset:{POOLW-EWT+128*3+16*k}', [V_PWADDR], R(G+4*k, 4))
        ops.append(rd)
        for k in range(4):
            def rb(k=k):
                for e in range(4 if k < 3 else 1):
                    a.ds(f'ds_read_b32 v{DB+e}, v{V_TRADDR} offset:{128*(4*k+e)}', [V_TRADDR], [DB+e])
            ops.append(rb)
            ops += [lambda: None] * 4
            if k == 3:
                def zz():
                    for r in (1, 2, 3): V(f'v_mov_b32 v{DB+r}, 0', [], [DB+r])
                ops.append(zz)
            ops.append(lambda k=k: a.mfma('v_mfma_f32_32x32x16_bf16', G, UA+4*k, DB, G, 8, 16))
            ops.append(lambda: None)
        return ops

    def boundary_ops(l):
        ops = []
        s_ = ZB[2]; mx = ZB[2]+1; my = ZB[2]+2
        W = PW if l < 4 else G
        for r in range(13):
            ops.append(lambda r=r: V(f'v_ldexp_f32 v{D+r}, v{D+r}, v{EW+r}', [D+r, EW+r], [D+r]))
        if l < 4:
            ops.append(lambda: V(f'v_max3_f32 v{mx}, |v{D}|, |v{D+1}|, |v{D+2}|', R(D, 3), [mx]))
            for r in range(3, 13, 2):
                ops.append(lambda r=r: V(f'v_max3_f32 v{mx}, |v{D+r}|, |v{D+r+1}|, v{mx}', [D+r, D+r+1, mx], [mx]))
            ops.append(lambda: V(f'v_mov_b32 v{my}, v{mx}', [mx], [my]))
        ops.append(lambda: V(f'v_mul_f32 v{s_}, v{D}, v{W}', [D, W], [s_]))
        ops.append(lambda: V(f'v_fmac_f32 v{s_}, v{D+1}, v{W+1}', [s_, D+1, W+1], [s_]))
        if l < 4:
            ops.append(lambda: V(f'v_permlane32_swap_b32 v{mx}, v{my}', [mx, my], [mx, my], permlane=True))
        ops.append(lambda: V(f'v_fmac_f32 v{s_}, v{D+2}, v{W+2}', [s_, D+2, W+2], [s_]))
        if l < 4:
            ops.append(lambda: V(f'v_max_f32 v{mx}, v{mx}, v{my}', [mx, my], [mx]))
            ops.append(lambda: V(f'v_frexp_exp_i32_f32 v{mx}, v{mx}', [mx], [mx]))
            ops.append(lambda: V(f'v_sub_u32 v{V_SH}, 8, v{mx}', [mx], [V_SH]))
        for r in range(3, 13):
            ops.append(lambda r=r: V(f'v_fmac_f32 v{s_}, v{D+r}, v{W+r}', [s_, D+r, W+r], [s_]))
        if l < 4:
            for r in range(13):
                ops.append(lambda r=r: V(f'v_ldexp_f32 v{D+r}, v{D+r}, v{V_SH}', [D+r, V_SH], [D+r]))
            for q in range(7):
                hi = D + 2*q + 1 if q < 6 else D + 12
                ops.append(lambda q=q, hi=hi: V(f'v_cvt_pk_f16_f32 v{XQ+q}, v{D+2*q}, v{hi}', [D+2*q, hi], [XQ+q]))
        ops.append(lambda: V(f'v_ldexp_f32 v{s_}, v{s_}, v{V_E}', [s_, V_E], [s_]))
        ops.append(lambda: V(f'v_add_f32 v{V_ACC}, v{V_ACC}, v{s_}', [V_ACC, s_], [V_ACC]))
        if l < 4:
            ops.append(lambda: V(f'v_sub_u32 v{V_E}, v{V_E}, v{V_SH}', [V_E, V_SH], [V_E]))
            ops.append(lambda: V(f'v_add_u32 v{V_E}, v{V_E}, v{V_EX}', [V_E, V_EX], [V_E]))
        if l == 0:
            ops.append(lambda: V(f'v_mov_b32 v{ZL+1}, 0', [], [ZL+1]))
            ops.append(lambda: V(f'v_mov_b32 v{ZL+2}, 0', [], [ZL+2]))
        return ops
    NK = [23, 43, 43, 43, 23]
    DT = 132
    ISLOT = [None, 0, 1, 2, 3]
    def a_read(l, k):
        b = AB[k % NAB]
        if l in (0, 4): ad = V_AADDR0; off = 16 * k
        else:
            sl = ISLOT[l]; ad = V_AADDR[sl >> 1]; off = IMG * (sl & 1) + 16 * k
        a.ds(f'ds_read_b128 {vr(b,4)}, v{ad} offset:{off}', [ad], R(b, 4))
    PAIRS0 = [(u, v) for u in range(13) for v in range(u, 13)]
    def zbuf(l, k):
        if k == NK[l] - 1: return ZL
        return ZB[k % 3]
    def z_ops(l, k):
        ops = []
        zb = zbuf(l, k)
        for e in range(4):
            q = 4 * k + e
            if l in (0, 4):
                if q >= 91: break
                i, v = PAIRS0[q]; src = (QH if i == v else XQ) + (i >> 1)
            else:
                if q >= 169: break
                i, v = divmod(q, 13); src = XQ + (i >> 1)
            o = i & 1
            ops.append(lambda zb=zb, e=e, src=src, v=v, o=o: V(f'v_pk_mul_f16 v{zb+e}, v{src}, v{P16+v} op_sel:[{o},0] op_sel_hi:[{o},1]', [src, P16+v], [zb+e]))
        return ops
    def pwrd(l):
        lst = {3: ((EW, 128 * 3),), 4: ((PW, 128 * 4),)}.get(l, ((PW, POOLW - EWT + 128 * l), (EW, 128 * l)))
        for base, off in lst:
            for k in range(3):
                a.ds(f'ds_read_b128 {vr(base+4*k,4)}, v{V_PWADDR} offset:{off+16*k}', [V_PWADDR], R(base+4*k, 4))
            a.ds(f'ds_read_b32 v{base+12}, v{V_PWADDR} offset:{off+48}', [V_PWADDR], [base+12])

    OX = 96
    V(f'v_bfe_u32 v{t[0]}, v{V_LANE}, 4, 1', [V_LANE], [t[0]])
    V(f'v_mul_u32_u24 v{t[0]}, 104, v{t[0]}', [t[0]], [t[0]])
    V(f'v_and_b32 v{t[1]}, 12, v{V_LANE}', [V_LANE], [t[1]])
    V(f'v_add_u32 v{t[0]}, v{t[0]}, v{t[1]}', [t[0], t[1]], [t[0]])
    S(f's_mul_i32 s{S_T0}, s{S_WAVE}, 208'); S(f's_add_u32 s{S_T0}, s{S_T0}, {IDXB}')
    V(f'v_add_u32 v{t[8]}, s{S_T0}, v{t[0]}', [t[0]], [t[8]])
    V(f'v_and_b32 v{t[6]}, 3, v{V_LANE}', [V_LANE], [t[6]])
    V(f'v_lshlrev_b32 v{t[6]}, 3, v{t[6]}', [t[6]], [t[6]])
    V(f'v_add_u32 v{t[6]}, {TAB}, v{t[6]}', [t[6]], [t[6]])
    V(f'v_lshrrev_b32 v{t[7]}, 4, v{V_LANE}', [V_LANE], [t[7]])
    V(f'v_lshlrev_b32 v{t[7]}, 3, v{t[7]}', [t[7]], [t[7]])
    V(f'v_add_u32 v{t[7]}, {TAB}, v{t[7]}', [t[7]], [t[7]])
    V(f'v_and_b32 v{t[9]}, 15, v{V_LANE}', [V_LANE], [t[9]])
    V(f'v_mul_u32_u24 v{t[9]}, 104, v{t[9]}', [t[9]], [t[9]])
    rdy_check(8, 24)
    stamp('tab')
    for q in range(7): a.ds(f'ds_read_b32 v{OX+q}, v{t[8]} offset:{16*q}', [t[8]], [OX+q])
    isB = f's_cmp_{"ge" if DG else "lt"}_u32 s{S_WAVE}, 4'
    isA = f's_cmp_{"lt" if DG else "ge"}_u32 s{S_WAVE}, 4'
    S(isA)
    a.cond_begin('s_cbranch_scc1 L_noix', 'L_noix')
    a.raw('s_setprio 3')
    S(f's_and_b32 s{S_T0}, s{S_WAVE}, 3'); S(f's_mul_i32 s{S_T0}, s{S_T0}, 1664'); S(f's_add_u32 s{S_T0}, s{S_T0}, {IDXB}')
    S(f's_add_u32 s{S_T2}, s{S_T0}, 104'); S(f's_lshl_b32 s{S_KO}, s{S_ROT}, 3'); S(f's_add_u32 s{S_KO}, s{S_KO}, s{S_T0}')
    for i in range(13):
        tt = t[2 + (i % 4)]
        V(f'v_add_u32 v{tt}, s{S_KO}, v{t[9]}', [t[9]], [tt])
        a.ds(f'ds_read_b64 {vr(IXR+2*i,2)}, v{tt}', [tt], R(IXR+2*i, 2))
        if i < 12:
            S(f's_add_u32 s{S_KO}, s{S_KO}, 8'); S(f's_cmp_eq_u32 s{S_KO}, s{S_T2}'); S(f's_cselect_b32 s{S_KO}, s{S_T0}, s{S_KO}')
    BT = 104
    for q in range(7):
        a.ds(f'ds_read_b64 {vr(BT+2*q,2)}, v{V_BWADDR} offset:{32*q}', [V_BWADDR], R(BT+2*q, 2))
    a.cond_end()
    for q in range(7):
        V(f'v_min_u32 v{OX+q}, 0x3e7, v{OX+q}', [OX+q], [OX+q])
        V(f'v_lshl_add_u32 v{OX+q}, v{OX+q}, 5, v{t[6]}', [OX+q, t[6]], [OX+q])
        a.ds(f'ds_read_b64_tr_b16 {vr(PBT+2*q,2)}, v{OX+q}', [OX+q], R(PBT+2*q, 2))
    for v in range(13): a.ds(f'ds_write_b32 v{V_TRADDR}, v{PBT+v} offset:{128*v}', [V_TRADDR, PBT+v])
    a.wait_lds_all()
    stamp('x0')
    S(isB)
    a.raw('s_cbranch_scc1 L_grpB', kind='branch')
    release(3)
    S(f's_cmp_lt_u32 s{S_PID}, {NPT0}'); a.raw('s_cbranch_scc1 L_x0prep', kind='branch')
    S(f's_cmp_ge_u32 s{S_PID}, {NPT}'); a.raw('s_cbranch_scc1 L_x0prep', kind='branch')
    p = [84 + i for i in range(16)]
    TD = 100; F1 = 116; F2 = 124; F3 = 132; TF = 140; TI = S_SET + 2
    S(f's_sub_u32 s{TI}, s{S_PID}, {NPT0}'); S(f's_lshl_b32 s{TI}, s{TI}, 2'); S(f's_and_b32 s{S_T4}, s{S_WAVE}, 3'); S(f's_add_u32 s{TI}, s{TI}, s{S_T4}')
    S(f's_mul_i32 s{S_T3}, s{S_T4}, 1664'); S(f's_add_u32 s{S_T3}, s{S_T3}, {SCR + 3328}')
    V(f'v_lshrrev_b32 v{p[0]}, 2, v{V_LANE}', [V_LANE], [p[0]])
    V(f'v_and_b32 v{p[1]}, 3, v{V_LANE}', [V_LANE], [p[1]])
    V(f'v_mul_u32_u24 v{p[2]}, 0x548, v{p[0]}', [p[0]], [p[2]])
    V(f'v_lshl_add_u32 v{p[2]}, v{p[1]}, 4, v{p[2]}', [p[1], p[2]], [p[2]])
    S(f's_min_u32 s{S_T2}, s{TI}, 25'); S(f's_mul_i32 s{S_T2}, s{S_T2}, 52'); S(f's_add_u32 s{S_T2}, s{S_T2}, {4*35152}')
    S(f's_mov_b32 m0, s{S_T3}', m0=True)
    a.vmem(f'buffer_load_dwordx4 v{p[2]}, s[{S_WC}:{S_WC+3}], s{S_T2} offen lds', [p[2]], [], dma=True)
    S(f's_add_u32 m0, s{S_T3}, 1024', m0=True); S(f's_add_u32 s{S_T2}, s{S_T2}, {16*1352}')
    execn(40)
    a.vmem(f'buffer_load_dwordx4 v{p[2]}, s[{S_WC}:{S_WC+3}], s{S_T2} offen lds', [p[2]], [], dma=True)
    fullexec()
    V(f'v_mov_b32 v{TF+2}, 0', [], [TF+2])
    S(f's_mov_b32 s{S_T0}, 0')
    a.label('L_tpoll')
    S('s_mov_b64 exec, 1')
    a.raw(f'buffer_load_dword v{TF}, v{TF+2}, s[{S_DBGF}:{S_DBGF+3}], 0 offen offset:64 sc1', kind='vmem')
    fullexec()
    S(f's_add_u32 s{S_T0}, s{S_T0}, 1')
    a.raw('s_waitcnt vmcnt(0)', kind='wait'); a.vm = []
    a.raw(f'v_readfirstlane_b32 s{S_T1}, v{TF}', kind='valu')
    a.raw('s_nop 0', kind='nop')
    S(f's_cmp_lg_u32 s{S_T1}, 0')
    a.raw('s_cbranch_scc1 L_tgo', kind='branch')
    a.raw(f's_sleep {PSLEEP}')
    S(f's_cmp_lt_u32 s{S_T0}, 0x40000')
    a.raw('s_cbranch_scc1 L_tpoll', kind='branch')
    a.label('L_tgo')
    S(f's_mul_i32 s{S_T2}, s{S_T4}, 832'); S(f's_add_u32 m0, s{S_T2}, {SCR}', m0=True); S(f's_add_u32 s{S_T2}, s{S_T2}, {WS_V5R}')
    execn(52)
    a.vmem(f'buffer_load_dwordx4 v{V_L16}, s[{S_WS}:{S_WS+3}], s{S_T2} offen sc1 lds', [V_L16], [], dma=True)
    fullexec()
    V(f'v_lshrrev_b32 v{p[3]}, 5, v{V_LANE}', [V_LANE], [p[3]])
    V(f'v_bfe_u32 v{p[4]}, v{V_LANE}, 2, 2', [V_LANE], [p[4]])
    V(f'v_lshl_add_u32 v{p[3]}, v{p[3]}, 3, v{p[4]}', [p[3], p[4]], [p[3]])
    V(f'v_bfe_u32 v{p[4]}, v{V_LANE}, 4, 1', [V_LANE], [p[4]])
    V(f'v_lshlrev_b32 v{p[4]}, 5, v{p[4]}', [p[4]], [p[4]])
    V(f'v_lshl_add_u32 v{p[4]}, v{p[1]}, 3, v{p[4]}', [p[1], p[4]], [p[4]])
    AW = [TF+3, TF+4, TF+5]; AV = [TF+6, TF+7, TF+8]
    V(f'v_lshl_add_u32 v{AW[0]}, v{p[3]}, 6, v{p[4]}', [p[3], p[4]], [AW[0]])
    V(f'v_add_u32 v{AW[0]}, s{S_T3}, v{AW[0]}', [AW[0]], [AW[0]])
    V(f'v_lshl_add_u32 v{AV[0]}, v{p[3]}, 7, v{p[4]}', [p[3], p[4]], [AV[0]])
    V(f'v_add_u32 v{AV[0]}, {SCR}, v{AV[0]}', [AV[0]], [AV[0]])
    V(f'v_mov_b32 v{p[5]}, 0x30000', [], [p[5]])
    for k_, lim in ((1, 10), (2, 6)):
        V(f'v_cmp_gt_u32 vcc, {lim}, v{p[3]}', [p[3]], [], swrites=['vcc'])
        V(f'v_cndmask_b32 v{AW[k_]}, v{p[5]}, v{AW[0]}, vcc', [p[5], AW[0]], [AW[k_]], sreads=['vcc'])
        V(f'v_cndmask_b32 v{AV[k_]}, v{p[5]}, v{AV[0]}, vcc', [p[5], AV[0]], [AV[k_]], sreads=['vcc'])
    V(f'v_and_b32 v{p[0]}, 31, v{V_LANE}', [V_LANE], [p[0]])
    V(f'v_lshrrev_b32 v{p[1]}, 5, v{V_LANE}', [V_LANE], [p[1]])
    S(f's_min_u32 s{S_C}, s{TI}, 25')
    sym_addr(p, S_C, WS_IMGT)
    S(f's_mov_b32 s{TI+1}, s{S_T0}'); S(f's_mov_b32 s{TI+2}, s{S_T1}')
    a.wait_vm_all()
    V(f'v_mov_b32 v{TF}, 1', [], [TF])
    execn(1)
    a.ds(f'ds_add_u32 v{V_SYNC}, v{TF} offset:16', [V_SYNC, TF])
    fullexec()
    for ks in range(2):
        for tt in range(2):
            ad = AW[0] if ks == 0 else AW[1 + tt]
            a.ds(f'ds_read_b64_tr_b16 {vr(F1+4*ks+2*tt,2)}, v{ad} offset:{(16*ks+4*tt)*64}', [ad], R(F1+4*ks+2*tt, 2))
    rdy_check(4, 16)
    for F, lo in ((F2, 0), (F3, 64)):
        for ks in range(2):
            for tt in range(2):
                ad = AV[0] if ks == 0 else AV[1 + tt]
                a.ds(f'ds_read_b64_tr_b16 {vr(F+4*ks+2*tt,2)}, v{ad} offset:{(16*ks+4*tt)*128+lo}', [ad], R(F+4*ks+2*tt, 2))
    first = True
    for F in (F2, F3):
        for ks in range(2):
            a.mfma('v_mfma_f32_32x32x16_bf16', TD, F1+4*ks, F+4*ks, None if first else TD, 8, 16); first = False
            a.mfma('v_mfma_f32_32x32x16_bf16', TD, F+4*ks, F1+4*ks, TD, 8, 16)
    S(f's_mov_b32 s{S_T0}, s{TI+1}'); S(f's_mov_b32 s{S_T1}, s{TI+2}')
    sym_out(p, TD, F1, F2, 4)
    a.raw('s_waitcnt vmcnt(0)', kind='wait'); a.vm = []
    a.raw(f'v_mov_b32 v{VT1}, 1', kind='valu')
    a.raw(f'ds_add_rtn_u32 v{VT2}, v{V_SYNC}, v{VT1} offset:20', kind='ds')
    a.raw('s_waitcnt lgkmcnt(0)', kind='wait'); a.lds = []
    a.raw(f'v_readfirstlane_b32 s{S_T0}, v{VT2}', kind='valu')
    a.raw('s_nop 0', kind='nop')
    S(f's_cmp_lg_u32 s{S_T0}, 3')
    a.raw('s_cbranch_scc1 L_tdone', kind='branch')
    a.raw(f'v_mov_b32 v{VT2}, s{S_SET}', kind='valu')
    a.raw(f'buffer_atomic_add v{VT1}, v{VT2}, s[{S_DBGF}:{S_DBGF+3}], 0 offen offset:12 sc0 sc1', kind='vmem')
    a.raw('s_waitcnt vmcnt(0)', kind='wait')
    a.raw(f'v_readfirstlane_b32 s{S_T2}, v{VT1}', kind='valu')
    a.raw(f'v_mov_b32 v{VT2}, 0', kind='valu')
    a.raw(f'v_mov_b32 v{VT1}, 1', kind='valu')
    S(f's_cmp_lg_u32 s{S_T2}, {NPT - NPT0 - 1}')
    a.raw('s_cbranch_scc1 L_tdone', kind='branch')
    a.raw(f'buffer_store_dword v{VT1}, v{VT2}, s[{S_DBGF}:{S_DBGF+3}], 0 offen offset:192 sc1', kind='vmem')
    a.label('L_tdone')
    fullexec()
    a.nop(4)
    a.raw('s_branch L_x0prep', kind='branch')
    a.label('L_grpB')
    for f in range(26):
        V(f'v_lshl_add_u32 v{IXR+f}, v{IXR+f}, 5, v{t[7]}', [IXR+f, t[7]], [IXR+f])
    for q in range(7):
        V(f'v_lshlrev_b32 v{ACC+4*q}, 16, v{BT+2*q}', [BT+2*q], [ACC+4*q])
        V(f'v_and_b32 v{ACC+4*q+1}, 0xffff0000, v{BT+2*q}', [BT+2*q], [ACC+4*q+1])
        V(f'v_lshlrev_b32 v{ACC+4*q+2}, 16, v{BT+2*q+1}', [BT+2*q+1], [ACC+4*q+2])
        V(f'v_and_b32 v{ACC+4*q+3}, 0xffff0000, v{BT+2*q+1}', [BT+2*q+1], [ACC+4*q+3])
    a.wait_lds_all()
    def dnn_loop(xt):
        CHK = {0: 3, 2: 5, 4: 7, 6: 9, 8: 11, 10: 13, 12: 14}
        qs = list(range(0 if xt else 1, 7))
        cnt_check(CHK[0]); dnn_bread(0)
        for q in qs: dnn_aread(0, q)
        for i in range(13):
            a.comment(f'======== DNN step {i} xt={xt}')
            if i + 1 < 13:
                if (i + 1) in CHK: cnt_check(CHK[i + 1])
                dnn_bread(i + 1)
            for q in qs:
                dnn_mf(i, q)
                if i + 1 < 13: dnn_aread(i + 1, q)
            if i in (2, 7, 12): release({2: 1, 7: 2, 12: 3}[i])
        if EPRIO is not None: a.raw(f's_setprio {EPRIO}')
        dnn_epilogue(xt)
        a.wait_lds_all(); a.nop(8)
    S(f's_cmp_ge_u32 s{S_Q}, 2')
    a.raw('s_cbranch_scc1 L_dnn0', kind='branch')
    dnn_loop(1)
    a.raw('s_branch L_dnnend', kind='branch')
    a.label('L_dnn0')
    dnn_loop(0)
    a.label('L_dnnend')
    for v in range(13): a.ds(f'ds_read_b32 v{PBT+v}, v{V_TRADDR} offset:{128*v}', [V_TRADDR], [PBT+v])
    a.wait_lds_all()
    a.label('L_x0prep')
    for o in x0_ops(): o()
    for q in range(7):
        V(f'v_pk_mul_f16 v{QH+q}, v{XQ+q}, s{S_HALF}', [XQ+q], [QH+q])
    addr_setup()
    V(f'v_lshrrev_b32 v{t[1]}, 5, v{V_LANE}', [V_LANE], [t[1]])
    V(f'v_lshlrev_b32 v{t[1]}, 6, v{t[1]}', [t[1]], [t[1]])
    V(f'v_add_u32 v{V_PWADDR}, {EWT}, v{t[1]}', [t[1]], [V_PWADDR])
    V(f'v_mov_b32 v{ZL+3}, 0', [], [ZL+3])
    stamp('dnn')
    if REP:
        a.wait_lds_all(); a.raw('s_memtime s[96:97]'); a.raw('s_memrealtime s[98:99]'); a.raw('s_waitcnt lgkmcnt(0)', kind='wait')
    S1 = DB; S2 = DB + 1
    for l in range(5):
        a.comment(f'======== layer {l}')
        stamp(f'L{l}')
        rdy_check({0: 1, 1: 2, 2: 3, 3: 4, 4: 6}[l], 8)
        for k in range(PFD): a_read(l, k)
        fq = []
        if l == 3:
            rdy_check(5, 8)
            u5 = u5_ops(); u5[0]()
            fq = u5[1:]
        if l == 4:
            V(f'v_mov_b32 v{t[0]}, 0x05040100', [], [t[0]])
            V(f'v_mov_b32 v{t[1]}, 0x07060302', [], [t[1]])
            V(f'v_cndmask_b32 v{t[0]}, v{t[0]}, v{t[1]}, s[{S_HI}:{S_HI+1}]', [t[0], t[1]], [t[0]])
            for q in range(7):
                V(f'v_perm_b32 v{XQ+q}, v{P16+2*q+1}, v{P16+2*q}, v{t[0]}', [P16+2*q+1, P16+2*q, t[0]], [XQ+q])
            for r in range(13): fq.append(lambda r=r: V(f'v_ldexp_f32 v{D+r}, v{D+r}, v{EW+r}', [D+r, EW+r], [D+r]))
            fq.append(lambda: V(f'v_mul_f32 v{S1}, v{D}, v{G}', [D, G], [S1]))
            for r in range(1, 13): fq.append(lambda r=r: V(f'v_fmac_f32 v{S1}, v{D+r}, v{G+r}', [S1, D+r, G+r], [S1]))
        for o in z_ops(l, 0): o()
        for o in z_ops(l, 1): o()
        if PRIO and not BPRIO and l < 4: a.raw('s_setprio 1')
        bpre = KPR and l >= KPR - 1
        if bpre and l < 4:
            S(isA); a.raw(f's_cbranch_scc1 L_kp{l}', kind='branch'); a.raw('s_setprio 3'); a.label(f'L_kp{l}')
        DD = DT if l == 4 else D
        for k in range(NK[l]):
            if k == NK[l] - 8: pwrd(l)
            zo = z_ops(l, k + 2) if k + 2 < NK[l] else []
            if k % 2 == 0 and k + 1 < NK[l]: a._wait_regs(R(AB[(k + 1) % NAB], 4))
            a.mfma('v_mfma_f32_32x32x16_f16', DD, AB[k % NAB], zbuf(l, k), DD if k > 0 else None, 8, 16)
            if k + PFD < NK[l]: a_read(l, k + PFD)
            for o in zo: o()
            if PRIO and not BPRIO and k == 2:
                if bpre:
                    S(isB); a.raw(f's_cbranch_scc1 L_kq{l}', kind='branch'); a.raw('s_setprio 2'); a.label(f'L_kq{l}')
                else: a.raw('s_setprio 2')
            if l == 4:
                for _ in range(2 if k >= 18 or k % 4 == 0 else 1):
                    if fq and k >= 1: fq.pop(0)()
            elif fq and k >= 4: fq.pop(0)()
        assert not fq
        if l == 0: release(4)
        if l < 3:
            if PRIO and not BPRIO: a.raw('s_setprio 0')
            for o in boundary_ops(l): o()
    stamp('fin')
    rdy_check(7, 8)
    V(f'v_bfe_u32 v{t[5]}, v{V_LANE}, 4, 1', [V_LANE], [t[5]])
    V(f'v_and_b32 v{t[6]}, 15, v{V_LANE}', [V_LANE], [t[6]])
    V(f'v_lshl_add_u32 v{t[5]}, v{t[6]}, 4, v{t[5]}', [t[5], t[6]], [t[5]])
    V(f'v_lshlrev_b32 v{t[5]}, 2, v{t[5]}', [t[5]], [t[5]])
    S(f's_lshl_b32 s{S_T0}, s{S_WAVE}, 3'); S(f's_add_u32 s{S_T0}, s{S_T0}, {PD}')
    V(f'v_add_u32 v{t[5]}, s{S_T0}, v{t[5]}', [t[5]], [t[5]])
    V(f'v_and_b32 v{t[6]}, 44, v{V_LANE}', [V_LANE], [t[6]])
    V(f'v_cmp_eq_u32 vcc, 0, v{t[6]}', [t[6]], [], swrites=['vcc'])
    V(f'v_mov_b32 v{t[6]}, 0x30000', [], [t[6]])
    V(f'v_cndmask_b32 v{t[5]}, v{t[6]}, v{t[5]}, vcc', [t[5], t[6]], [t[5]], sreads=['vcc'])
    a.ds(f'ds_read_b32 v{t[6]}, v{t[5]}', [t[5]], [t[6]])
    for r in range(13): V(f'v_lshl_add_u32 v{PW+r}, v{V_EX}, 1, v{PW+r}', [V_EX, PW+r], [PW+r])
    for r in range(13): V(f'v_ldexp_f32 v{DT+r}, v{DT+r}, v{PW+r}', [DT+r, PW+r], [DT+r])
    for r in range(13): V(f'v_fmac_f32 v{S1}, v{D+r}, v{DT+r}', [S1, D+r, DT+r], [S1])
    V(f'v_ldexp_f32 v{S1}, v{S1}, v{V_E}', [S1, V_E], [S1])
    V(f'v_add_f32 v{V_ACC}, v{V_ACC}, v{S1}', [V_ACC, S1], [V_ACC])
    A_ = V_ACC
    V(f'v_add_f32 v{A_}, v{A_}, v{t[6]}', [A_, t[6]], [A_])
    for d in (8, 4, 2, 1):
        V(f'v_add_f32_dpp v{A_}, v{A_}, v{A_} row_ror:{d} row_mask:0xf bank_mask:0xf', [A_], [A_], dpp=True)
    V(f'v_mov_b32 v{t[5]}, v{A_}', [A_], [t[5]])
    V(f'v_permlane32_swap_b32 v{A_}, v{t[5]}', [A_, t[5]], [A_, t[5]], permlane=True)
    V(f'v_add_f32 v{A_}, v{A_}, v{t[5]}', [A_, t[5]], [A_])
    V(f'v_cvt_pk_bf16_f32 v{A_}, v{A_}, v{A_}', [A_], [A_])
    V(f'v_lshrrev_b32 v{t[5]}, 3, v{V_LANE}', [V_LANE], [t[5]])
    S(f's_lshl_b32 s{S_T0}, s2, 5'); S(f's_lshl_b32 s{S_T1}, s{S_WAVE}, 2'); S(f's_add_u32 s{S_T0}, s{S_T0}, s{S_T1}')
    S('s_mov_b64 exec, 0x10001')
    a.vmem(f'buffer_store_short v{A_}, v{t[5]}, s[{S_OUT}:{S_OUT+3}], s{S_T0} offen', [A_, t[5]], [])
    if REP:
        a.raw('s_memtime s[100:101]'); a.raw('s_memrealtime s[4:5]'); a.raw('s_waitcnt lgkmcnt(0)', kind='wait')
        S(f's_cmp_lg_u32 s{S_WAVE}, 4'); a.raw('s_cbranch_scc1 L_norep', kind='branch')
        S('s_and_b32 s6, s2, 0xfc'); S('s_cmp_lg_u32 s6, 100'); a.raw('s_cbranch_scc1 L_norep', kind='branch')
        S('s_sub_u32 s96, s96, s92'); S('s_sub_u32 s98, s98, s94'); S('s_sub_u32 s100, s100, s92'); S('s_sub_u32 s4, s4, s94')
        V('v_mov_b32 v16, s96', [], [16]); V('v_mov_b32 v17, s98', [], [17]); V('v_mov_b32 v18, s100', [], [18]); V('v_mov_b32 v19, s4', [], [19])
        S('s_and_b32 s6, s2, 3'); S('s_lshl_b32 s6, s6, 4'); V('v_mov_b32 v20, s6', [], [20])
        S('s_mov_b64 exec, 1')
        a.vmem(f'buffer_store_dwordx4 v[16:19], v20, s[{S_DBGF}:{S_DBGF+3}], 0 offen', [16,17,18,19,20], [])
        a.label('L_norep')
    dbg_out()
    a.raw('s_endpgm')

    a.label('L_loader')
    a.lds = []; a.vm = []; a.valu_w = {}; a.mfma_w = {}; a.mfma_c = {}; a.trans_w = {}; a.store_src = {}; a.opsel_w = {}
    stamp_n[0] = 1
    names_c = a.stamp_names; a.stamp_names = []
    LF = 18; LFA = 19; LSY = 20; LDA = 21; LDV = 22; LT = 23; WO = 32; PF = 40; LN = 24; LG = 64
    if TOUCH:
        V(f'v_mov_b32 v{t[0]}, 0', [], [t[0]])
        S('s_mov_b64 exec, 1')
        S(f's_mov_b32 s{S_T0}, {WS_INB - 256}')
        a.vmem(f'buffer_load_dword v{PF}, v{t[0]}, s[{S_WS}:{S_WS+3}], s{S_T0} offen', [t[0]], [PF])
        if TOUCH == 1: a.vmem(f'buffer_load_dword v{PF+1}, v{t[0]}, s[{S_DBGF}:{S_DBGF+3}], 0 offen sc1', [t[0]], [PF+1])
        a.vmem(f'buffer_load_dword v{PF+2}, v{t[0]}, s[{S_OUT}:{S_OUT+3}], 0 offen', [t[0]], [PF+2])
        a.vmem(f'buffer_load_dword v{PF+3}, v{t[0]}, s[{S_W1}:{S_W1+3}], 0 offen', [t[0]], [PF+3])
        a.vmem(f'buffer_load_dword v{PF+4}, v{t[0]}, s[{S_TAB}:{S_TAB+3}], 0 offen', [t[0]], [PF+4])
        a.vmem(f'buffer_load_dword v{PF+5}, v{t[0]}, s[{S_B1}:{S_B1+3}], 0 offen', [t[0]], [PF+5])
        a.vmem(f'buffer_load_dword v{PF+6}, v{t[0]}, s[{S_W2}:{S_W2+3}], 0 offen', [t[0]], [PF+6])
        fullexec()
    S(f's_movk_i32 s{S_T0}, 4682')
    for k in range(7):
        V(f'v_add_u32 v{t[0]}, {64*k}, v{V_LANE}', [V_LANE], [t[0]])
        V(f'v_mul_u32_u24 v{t[1]}, s{S_T0}, v{t[0]}', [t[0]], [t[1]])
        V(f'v_lshrrev_b32 v{t[1]}, 16, v{t[1]}', [t[1]], [t[1]])
        V(f'v_mul_u32_u24 v{t[2]}, {832 - 224}, v{t[1]}', [t[1]], [t[2]])
        V(f'v_lshl_add_u32 v{WO+k}, v{t[0]}, 4, v{t[2]}', [t[0], t[2]], [WO+k])
    V(f'v_lshlrev_b32 v{LFA}, 2, v{V_LANE}', [V_LANE], [LFA])
    V(f'v_mov_b32 v{LSY}, {SYNC}', [], [LSY])
    V(f'v_and_b32 v{LDA}, 28, v{LFA}', [LFA], [LDA])
    V(f'v_add_u32 v{LDA}, {SYNC + 32}, v{LDA}', [LDA], [LDA])
    S(f's_mul_i32 s{S_KO}, s{S_ROT}, 26624'); S(f's_lshl_b32 s{S_T0}, s{S_T0L}, 5'); S(f's_add_u32 s{S_KO}, s{S_KO}, s{S_T0}')
    S(f's_add_u32 s{S_T3}, s{S_T0}, {13*26624}')
    def l_w1(i):
        for k in range(7):
            S(f's_mov_b32 m0, {CADDR[i] + 1024*k}', m0=True)
            a.vmem(f'buffer_load_dwordx4 v{WO+k}, s[{S_W1}:{S_W1+3}], s{S_KO} offen lds', [WO+k], [], tag=('c', i), dma=True)
        S(f's_add_u32 s{S_KO}, s{S_KO}, 26624'); S(f's_cmp_eq_u32 s{S_KO}, s{S_T3}'); S(f's_cselect_b32 s{S_T1}, {13*26624}, 0'); S(f's_sub_u32 s{S_KO}, s{S_KO}, s{S_T1}')
    def l_lin(tag, srd, src, dst, nbytes, sc=''):
        n = (nbytes + 1023) // 1024
        for pc in range(n):
            if pc % 4 == 0:
                S(f's_mov_b32 m0, {dst + 1024*pc}', m0=True)
                S(f's_mov_b32 s{S_T2}, {src + 1024*pc}')
            lanes = min(64, (nbytes - 1024*pc) // 16)
            if lanes < 64: execn(lanes)
            a.vmem(f'buffer_load_dwordx4 v{V_L16}, s[{srd}:{srd+3}], s{S_T2} offen offset:{1024*(pc%4)} {sc} lds', [V_L16], [], tag=tag, dma=True)
            if lanes < 64: fullexec()
    def publish(n, off):
        a.raw(f'v_mov_b32 v{LT}, {n}', kind='valu')
        a.raw(f'ds_write_b32 v{LSY}, v{LT} offset:{off}', kind='ds')
    def l_flag(lo, hi):
        mk = ((1 << hi) - 1) & ~((1 << lo) - 1)
        S(f's_mov_b64 exec, 0x{mk:x}')
        a.vmem(f'buffer_load_dword v{LF}, v{LFA}, s[{S_DBGF}:{S_DBGF+3}], 0 offen offset:128 sc1', [LFA], [LF])
        fullexec()
    def l_poll(lo, hi, lab, pre=None):
        mk = ((1 << hi) - 1) & ~((1 << lo) - 1)
        a._wait_regs([LF])
        S(f's_mov_b64 exec, 0x{mk:x}')
        S(f's_mov_b32 s{S_T0}, 0')
        a.label(f'L_poll{lab}')
        a.raw(f'v_cmp_eq_u32 vcc, 0, v{LF}', kind='valu')
        a.raw(f's_cbranch_vccz L_polldone{lab}', kind='branch')
        a.raw(f's_sleep {PSLEEP}')
        a.raw(f'buffer_load_dword v{LF}, v{LFA}, s[{S_DBGF}:{S_DBGF+3}], 0 offen offset:128 sc1', kind='vmem')
        S(f's_add_u32 s{S_T0}, s{S_T0}, 1')
        S(f's_cmp_lt_u32 s{S_T0}, 0x40000')
        a.raw('s_waitcnt vmcnt(0)', kind='wait')
        if pre: publish(pre[0], pre[1])
        a.raw(f's_cbranch_scc1 L_poll{lab}', kind='branch')
        a.label(f'L_polldone{lab}')
        fullexec()
    def l_wait_lds(addr, off, stage, lab, pre=None):
        a.raw(f's_mov_b32 s{S_T1}, 0x100000', kind='salu')
        a.label(f'L_dw{lab}')
        a.raw(f'ds_read_b32 v{LDV}, v{addr} offset:{off}', kind='ds')
        a.raw(f's_sub_u32 s{S_T1}, s{S_T1}, 1', kind='salu')
        a.raw(f's_cbranch_scc1 L_dn{lab}', kind='branch')
        a.raw('s_waitcnt lgkmcnt(0)', kind='wait')
        a.raw(f'v_cmp_gt_u32 vcc, {stage}, v{LDV}', kind='valu')
        a.raw(f's_cbranch_vccz L_dn{lab}', kind='branch')
        if pre:
            a.raw('s_waitcnt vmcnt(0)', kind='wait')
            publish(pre[0], pre[1])
        a.raw('s_sleep 1')
        a.raw(f's_branch L_dw{lab}', kind='branch')
        a.label(f'L_dn{lab}')
    a.raw('s_waitcnt lgkmcnt(0)', kind='wait')
    for i in range(13):
        l_w1(i)
        if i in (9, 11):
            a.wait_vm_tag(('c', i - 8)); publish(i - 6, 0)
    l_flag(2, 3)
    stamp('w1iss')
    for i in (5, 7, 9, 11, 12):
        a.wait_vm_tag(('c', i)); publish(i + 2, 0)
    l_poll(2, 3, 'k'); stamp('polled')
    l_flag(0, 1)
    S(f's_lshr_b32 s{S_T0}, s2, 3'); S(f's_mul_i32 s{S_T0}, s{S_T0}, 608')
    execn(38)
    a.vmem(f'buffer_load_dwordx4 {vr(PF+16,4)}, v{V_L16}, s[{S_WS}:{S_WS+3}], s{S_T0} offen sc1', [V_L16], R(PF+16, 4))
    fullexec()
    l_wait_lds(LDA, 0, 1, 'a')
    l_lin(('i', 0), S_WS, WS_IMG0, I0B, IMG0, 'sc1')
    l_lin(('i', 0), S_WS, WS_EWT, EWT, 128, 'sc1')
    l_poll(0, 1, 'a', pre=(1, 8))
    V(f'v_readlane_b32 s{S_T0}, v{LF}, 0', [LF], [], swrites=[S_T0], readlane=True)
    V(f'v_mov_b32 v{LN}, s{S_T0}', [], [LN], sreads=[S_T0])
    S(f's_lshr_b32 s{S_T0}, s2, 3'); S(f's_mul_i32 s{S_T0}, s{S_T0}, 3360'); S(f's_add_u32 s{S_T0}, s{S_T0}, {WS_IMG[1]}')
    for q in range(4):
        if q == 3: execn(18)
        a.vmem(f'buffer_load_dwordx4 {vr(PF+4*q,4)}, v{V_L16}, s[{S_WS}:{S_WS+3}], s{S_T0} offen offset:{1024*q} sc1', [V_L16], R(PF+4*q, 4))
    fullexec()
    l_lin(('i', 1), S_WS, WS_EWT + 128, EWT + 128, 384, 'sc1')
    l_wait_lds(LDA, 0, 2, 'b', pre=(1, 8))
    l_lin(('i', 1), S_WS, WS_IMG[1], U[0], 16384, 'sc1')
    a.wait_vm_tag(('i', 0)); publish(1, 8)
    l_lin(('i', 1), S_WS, WS_IMG[1] + 16384, U[0] + 16384, IMG - 16384, 'sc1')
    a.wait_vm_tag(('i', 1)); publish(2, 8); stamp('i1')
    l_wait_lds(LDA, 0, 3, 'c'); stamp('dnndone')
    l_lin(('i', 2), S_WS, WS_IMG[2], U[1], IMG, 'sc1')
    l_lin(('i', 3), S_WS, WS_IMG[3], U[2], IMG, 'sc1')
    a.wait_vm_tag(('i', 2)); publish(3, 8)
    a.wait_vm_tag(('i', 3)); publish(4, 8)
    l_wait_lds(LSY, 4, 4, 'd')
    V(f'v_lshlrev_b32 v{t[0]}, 3, v{V_LANE}', [V_LANE], [t[0]])
    V(f'v_add_u32 v{t[0]}, {PDL}, v{t[0]}', [t[0]], [t[0]])
    a.ds(f'ds_read_b64 {vr(LG+4,2)}, v{t[0]}', [t[0]], R(LG+4, 2))
    V(f'v_bfe_u32 v{t[1]}, v{V_LANE}, 3, 2', [V_LANE], [t[1]])
    V(f'v_add_u32 v{t[1]}, s{S_Q}, v{t[1]}', [t[1]], [t[1]])
    V(f'v_and_b32 v{t[1]}, 3, v{t[1]}', [t[1]], [t[1]])
    V(f'v_lshlrev_b32 v{t[1]}, 13, v{t[1]}', [t[1]], [t[1]])
    V(f'v_and_b32 v{t[2]}, 7, v{V_LANE}', [V_LANE], [t[2]])
    V(f'v_lshl_add_u32 v{t[1]}, v{t[2]}, 4, v{t[1]}', [t[2], t[1]], [t[1]])
    S(f's_lshl_b32 s{S_T0}, s{S_CB}, 10'); S(f's_lshl_b32 s{S_T1}, s{S_Q}, 7'); S(f's_add_u32 s{S_T0}, s{S_T0}, s{S_T1}'); S(f's_add_u32 s{S_T0}, s{S_T0}, {WS_INB}')
    V(f'v_mov_b32 v{LG}, v{LG+4}', [LG+4], [LG]); V(f'v_mov_b32 v{LG+1}, v{LN}', [LN], [LG+1])
    V(f'v_mov_b32 v{LG+2}, v{LG+5}', [LG+5], [LG+2]); V(f'v_mov_b32 v{LG+3}, v{LN}', [LN], [LG+3])
    execn(32)
    a.vmem(f'buffer_store_dwordx4 {vr(LG,4)}, v{t[1]}, s[{S_WS}:{S_WS+3}], s{S_T0} offen sc1', [t[1]] + R(LG, 4), [], wide_store=R(LG, 4))
    fullexec()
    l_lin('v5f', S_WS, WS_V5F, V5F, 4096, 'sc1')
    l_flag(16, 17)
    a.wait_vm_tag('v5f'); publish(5, 8)
    l_wait_lds(LDA, 0, 4, 'e')
    l_poll(16, 17, 'b')
    l_lin(('i', 4), S_WS, WS_IMGT, I0B, IMG0, 'sc1')
    l_lin(('i', 4), S_WS, WS_EWT + 512, EWT + 512, 128, 'sc1')
    a.wait_vm_all(); publish(6, 8); stamp('i5')
    S(f's_lshl_b32 s{S_T2}, s2, 10'); S(f's_add_u32 s{S_T2}, s{S_T2}, {WS_INB}')
    S(f's_mov_b32 s{S_T0}, 0')
    execn(32)
    a.label('L_inb')
    a.raw(f'buffer_load_dwordx4 {vr(LG+8,4)}, v{V_L16}, s[{S_WS}:{S_WS+3}], s{S_T2} offen sc1', kind='vmem')
    S(f's_add_u32 s{S_T0}, s{S_T0}, 1')
    a.raw('s_waitcnt vmcnt(0)', kind='wait')
    a.raw(f'v_cmp_ne_u32 vcc, v{LN}, v{LG+9}', kind='valu')
    a.raw(f'v_cmp_ne_u32 s[{S_MT}:{S_MT+1}], v{LN}, v{LG+11}', kind='valu')
    a.raw('s_nop 1', kind='nop')
    a.raw(f's_or_b64 vcc, vcc, s[{S_MT}:{S_MT+1}]', kind='salu')
    a.raw('s_cbranch_vccz L_inbok', kind='branch')
    a.raw(f's_sleep {PSLEEP}')
    S(f's_cmp_lt_u32 s{S_T0}, 0x40000')
    a.raw('s_cbranch_scc1 L_inb', kind='branch')
    a.label('L_inbok')
    V(f'v_mov_b32 v{LG+9}, v{LG+10}', [LG+10], [LG+9])
    V(f'v_lshlrev_b32 v{t[0]}, 3, v{V_LANE}', [V_LANE], [t[0]])
    V(f'v_add_u32 v{t[0]}, {PD}, v{t[0]}', [t[0]], [t[0]])
    a.ds(f'ds_write_b64 v{t[0]}, {vr(LG+8,2)}', [t[0], LG+8, LG+9])
    publish(7, 8)
    dbg_out()
    a.label('L_end')
    a.raw('s_endpgm')
    a.stamp_names = (names_c, a.stamp_names)
    return a

HEADER = open('cdna_kernels/' + NAME + '.s.ref').read().split('; Override launch geometry')[0]
def wrap(a):
    s = HEADER
    s += f'; @launch grid=(256,1,1) block=(576,1,1) lds={LDS_TOTAL}\n'
    s += '.amdgcn_target "amdgcn-amd-amdhsa--gfx950"\n.text\n'
    s += f'.globl {NAME}_kernel\n.p2align 8\n.type {NAME}_kernel,@function\n{NAME}_kernel:\n'
    s += a.text()
    s += f'''.section .rodata,"a"
.p2align 6
.amdhsa_kernel {NAME}_kernel
  .amdhsa_next_free_vgpr {NV}
  .amdhsa_next_free_sgpr 102
  .amdhsa_accum_offset {NV}
  .amdhsa_group_segment_fixed_size 0
  .amdhsa_kernarg_size 88
  .amdhsa_user_sgpr_count 2
  .amdhsa_user_sgpr_kernarg_segment_ptr 1
  .amdhsa_system_sgpr_workgroup_id_x 1
  .amdhsa_float_denorm_mode_32 3
.end_amdhsa_kernel
'''
    return s

if __name__ == '__main__':
    import argparse
    ap = argparse.ArgumentParser()
    ap.add_argument('out', nargs='?', default='cdna_kernels/' + NAME + '.s')
    ap.add_argument('--dbg', type=int, default=0)
    ap.add_argument('--prio', type=int, default=1)
    ap.add_argument('--splitepi', type=int, default=1)
    args = ap.parse_args()
    a = gen(debug=args.dbg, PRIO=args.prio, SPLITEPI=args.splitepi)
    open(args.out, 'w').write(wrap(a))
    print(a.count, 'lines', len(a.lines), a.stamp_names)
```

```python
import sys, struct
sys.path.insert(0, 'gen')
from asmfw import *

NAME = 'standalone__deep_cross_xdeepfm__recsys'
IMG = 35776; IMG0 = 19136
U = [IMG * i for i in range(4)]
CH = 7168
CADDR = [121600 + CH * i for i in range(3)] + [CH * i for i in range(10)]
TAB = 71680; IDXB = 103680; SCR = 110336
I0B = 143104 - IMG0
X16 = 143104
V5F = 156672; EWT = 160768; POOLW = 161408; BW = 162048
PDL = V5F
PD = BW
SYNC = 163712
LDS_TOTAL = 163776
WS_IMG0 = 0
WS_IMG = [None] + [19200 + IMG * i for i in range(4)]
WS_V5F = 19200 + 4 * IMG
WS_EWT = WS_V5F + 4096
WS_IMGT = WS_IMG[4]; WS_V5R = WS_EWT + 1024
WS_INB = 0x40000
WS_SIZE = WS_INB + 256 * 1024
NP0 = 7; NP1 = 24; NP2 = 31; NPT0 = 32; NPT = 39
S_IDX, S_TAB, S_WC, S_WCO, S_W1, S_B1, S_W2, S_BO, S_OUT, S_DBGF, S_WS = [24 + 4 * i for i in range(11)]
S_WAVE = 68; S_T0 = 69; S_T1 = 70; S_T2 = 71; S_T3 = 72; S_T4 = 73
S_HI = 74; S_C = 76; S_K7FFF = 77; S_K8000 = 78; S_Q = 79; S_K2 = 80; S_G = 81; S_HALF = 82
S_ROT = 83; S_MT = 84; S_PID = 86; S_CB = 87; S_XT = 88; S_T0L = 89; S_KO = 90; S_KN = 91; S_SET = 92; S_LAST = 93
SM = [4, 6, 8, 10, 12, 14, 16]
V_LANE = 1
V_T = list(range(2, 12))
V_STAMP = 12; V_E = 13; V_EX = 14; V_ACC = 15
P16 = 16; V_SH = 30; V_L16 = 31
XQ = 32; V_TRADDR = 39; D = 40
ZB = [56, 60, 64]; ZL = 68
AB = [72, 76, 80, 84, 4, 8]; NAB = 6; PFD = 5
PW = 88; EW = 102
V_PWADDR = 101; V_DBADDR = 115
DACC = 116; DA = 132; DB = 148
QH = 152
V_AADDR = [159, 160]; V_AADDR0 = 161; V_DAADDR = 162; V_DBK = 163; V_BWADDR = 164; V_SYNC = 165; V_RDY = 166; V_DONEA = 167
G = DACC; UA = DA
PBT = 68
VT1 = 158; VT2 = 159; VT3 = 160
DA2 = 88; DB2 = 104
NV = 168

import os
PX = int(os.environ.get('PX', '0'))
NL = int(os.environ.get('NL', '5'))
REP = int(os.environ.get('REP', '0'))
PSLEEP = int(os.environ.get('PSLEEP', '6'))
TOUCH = int(os.environ.get('TOUCH', '2'))
XP = os.environ.get('XP', '')
KNOP = int(os.environ.get('KNOP', '0'))
FINSTEP = int(os.environ.get('FINSTEP', '2'))
DG = int(os.environ.get('DG', '1'))
BPRIO = int(os.environ.get('BPRIO', '0'))
EPRIO = os.environ.get('EPRIO')
TABP = int(os.environ.get('TABP', '1'))
SETS = os.environ.get('SETS', '0')
LB0 = int(os.environ.get('LB0', '6'))
KPR = int(os.environ.get('KPR', '0'))
CPF = int(os.environ.get('CPF', '0'))
LBAR = int(os.environ.get('LBAR', '7'))
def fb(x): return '0x%08x' % struct.unpack('<I', struct.pack('<f', x))[0]

def gen(debug=None, PRIO=1, SPLITEPI=1, LPRE=24):
    a = Asm()
    V = a.valu; S = a.salu
    t = V_T
    stamp_n = [0]
    a.stamp_names = []
    def stamp(name=''):
        if not debug: return
        a.wait_lds_all()
        a.raw('s_memtime s[98:99]')
        a.raw('s_waitcnt lgkmcnt(0)', kind='wait')
        a.valu(f'v_writelane_b32 v{V_STAMP}, s98, {stamp_n[0]}', [], [V_STAMP])
        a.stamp_names.append(name)
        stamp_n[0] += 1
    def execn(n):
        if n <= 32: S(f's_mov_b64 exec, 0x{(1<<n)-1:x}')
        else: S(f's_mov_b32 exec_hi, 0x{(1<<(n-32))-1:x}')
    def fullexec(): S('s_mov_b64 exec, -1')
    def rawbar(): a.raw('s_barrier', kind='barrier')
    def dbg_out():
        if not debug: return
        fullexec()
        stamp('end')
        a.valu(f'v_writelane_b32 v{V_STAMP}, s100, 62', [], [V_STAMP])
        a.raw('s_memrealtime s[98:99]')
        a.raw('s_waitcnt lgkmcnt(0)', kind='wait')
        a.valu(f'v_writelane_b32 v{V_STAMP}, s98, 63', [], [V_STAMP])
        V(f'v_lshlrev_b32 v{t[0]}, 2, v0', [0], [t[0]])
        S(f's_mul_i32 s{S_T0}, s2, 2304'); S(f's_add_u32 s{S_T0}, s{S_T0}, 0x100000')
        a.vmem(f'buffer_store_dword v{V_STAMP}, v{t[0]}, s[{S_WS}:{S_WS+3}], s{S_T0} offen', [V_STAMP, t[0]], [])
    S('s_cmp_ge_u32 s2, 256')
    a.raw('s_cbranch_scc1 L_end', kind='branch')
    if debug:
        a.raw('s_memrealtime s[100:101]')
        stamp('start')
    if REP:
        a.raw('s_memtime s[92:93]'); a.raw('s_memrealtime s[94:95]')
    a.raw('s_load_dwordx16 s[4:19], s[0:1], 0')
    a.raw('s_load_dwordx4 s[20:23], s[0:1], 64')
    a.raw(f's_load_dwordx2 s[{S_WS}:{S_WS+1}], s[0:1], 80')
    V(f'v_and_b32 v{V_LANE}, 63, v0', [0], [V_LANE])
    V(f'v_lshrrev_b32 v{t[0]}, 6, v0', [0], [t[0]])
    V(f'v_readfirstlane_b32 s{S_WAVE}, v{t[0]}', [t[0]], [], swrites=[S_WAVE], readlane=True)
    V(f'v_lshlrev_b32 v{t[1]}, 2, v{V_LANE}', [V_LANE], [t[1]])
    V(f'v_add_u32 v{t[1]}, {SYNC}, v{t[1]}', [t[1]], [t[1]])
    V(f'v_mov_b32 v{t[2]}, 0', [], [t[2]])
    S(f's_cmp_lg_u32 s{S_WAVE}, 0', sreads=[S_WAVE])
    a.raw('s_cbranch_scc1 L_noinit', kind='branch')
    execn(16)
    a.raw(f'ds_write_b32 v{t[1]}, v{t[2]}', kind='ds')
    fullexec()
    a.label('L_noinit')
    S(f's_mov_b32 s{S_K7FFF}, 0x7fff7fff'); S(f's_mov_b32 s{S_K8000}, 0x80008000'); S(f's_mov_b32 s{S_HALF}, 0x38003800')
    S(f's_mov_b32 s{S_HI}, 0'); S(f's_mov_b32 s{S_HI+1}, -1')
    V(f'v_lshlrev_b32 v{V_L16}, 4, v{V_LANE}', [V_LANE], [V_L16])
    S(f's_lshr_b32 s{S_T0}, s2, 3'); S(f's_and_b32 s{S_Q}, s{S_T0}, 3'); S(f's_lshr_b32 s{S_T1}, s{S_T0}, 2')
    S(f's_lshr_b32 s{S_ROT}, s{S_T1}, 1'); S(f's_add_u32 s{S_ROT}, s{S_ROT}, s{S_T1}')
    S(f's_andn2_b32 s{S_CB}, s2, 0x18')
    S(f's_mov_b32 s{S_SET}, 0'); S(f's_and_b32 s{S_T1}, s2, 7'); S(f's_lshl_b32 s{S_PID}, s{S_T1}, 5'); S(f's_add_u32 s{S_PID}, s{S_PID}, s{S_T0}')
    S(f's_cmp_{"ge" if DG else "lt"}_u32 s{S_WAVE}, 4', sreads=[S_WAVE]); S(f's_cselect_b32 s{S_PID}, 255, s{S_PID}')
    S(f's_cmp_eq_u32 s{S_WAVE}, 8'); S(f's_cselect_b32 s{S_PID}, 255, s{S_PID}')
    S(f's_and_b32 s{S_G}, s{S_WAVE}, 3'); S(f's_lshl_b32 s{S_T1}, s{S_PID}, 2'); S(f's_add_u32 s{S_G}, s{S_G}, s{S_T1}')
    S(f's_min_u32 s{S_T0L}, s{S_Q}, 1'); S(f's_mul_i32 s{S_T1}, s{S_Q}, 6'); S(f's_add_u32 s{S_T0L}, s{S_T0L}, s{S_T1}')
    S(f's_cmp_lt_u32 s{S_WAVE}, 4'); S(f's_cselect_b32 s{S_XT}, 1, 0'); S(f's_cmp_lt_u32 s{S_Q}, 2'); S(f's_cselect_b32 s{S_XT}, s{S_XT}, 0')
    a.raw('s_waitcnt lgkmcnt(0)', kind='wait')
    rawbar()
    sizes = [425984, 32000, 210912, 312, 346112, 832, 832, 2, 8192, 256]
    srds = [S_IDX, S_TAB, S_WC, S_WCO, S_W1, S_B1, S_W2, S_BO, S_OUT, S_DBGF]
    for i in range(10):
        sb, sz = srds[i], sizes[i]
        S(f's_mov_b32 s{sb}, s{4+2*i}'); S(f's_and_b32 s{sb+1}, s{5+2*i}, 0xffff')
        S(f's_mov_b32 s{sb+2}, {sz}'); S(f's_mov_b32 s{sb+3}, 0x00020000')
    S(f's_and_b32 s{S_WS+1}, s{S_WS+1}, 0xffff'); S(f's_mov_b32 s{S_WS+2}, {0x1000000 if debug else WS_SIZE}'); S(f's_mov_b32 s{S_WS+3}, 0x00020000')
    S(f's_cmp_eq_u32 s{S_WAVE}, 8')
    a.raw('s_cbranch_scc1 L_loader', kind='branch')

    def dpp_max(m):
        for d in ('row_shr:1 row_mask:0xf', 'row_shr:2 row_mask:0xf', 'row_shr:4 row_mask:0xf', 'row_shr:8 row_mask:0xf', 'row_bcast:15 row_mask:0xa', 'row_bcast:31 row_mask:0xc'):
            V(f'v_max_u32_dpp v{m}, v{m}, v{m} {d} bank_mask:0xf', [m], [m], dpp=True)
    def rho_salu(sh, st1, st2, clamp=True):
        S(f's_cmp_ge_u32 s{sh}, 13'); S(f's_cselect_b32 s{st1}, 1, 0')
        S(f's_mul_i32 s{st2}, s{st1}, 13'); S(f's_sub_u32 s{sh}, s{sh}, s{st2}')
        S(f's_lshl_b32 s{st2}, s{st1}, 2')
        S(f's_lshl_b32 s{st1}, s{st1}, 4'); S(f's_add_u32 s{st1}, s{st1}, s{sh}')
        S(f's_add_u32 s{st2}, s{st2}, s{sh}'); S(f's_and_b32 s{sh}, s{sh}, 12'); S(f's_add_u32 s{sh}, s{sh}, s{st2}')
        if clamp: S(f's_add_u32 s{sh}, s{sh}, 1'); S(f's_cmp_eq_u32 s{sh}, 29'); S(f's_cselect_b32 s{sh}, 0, s{sh}')

    V(f'v_mov_b32 v{V_SYNC}, {SYNC}', [], [V_SYNC])
    S(f's_lshl_b32 s{S_T0}, s{S_WAVE}, 12'); S(f's_add_u32 m0, s{S_T0}, {TAB}', m0=True)
    for k in range(4):
        if k == 3:
            S(f's_cmp_eq_u32 s{S_WAVE}, 7'); S(f's_cselect_b64 exec, 0xffff, -1')
        a.vmem(f'buffer_load_dwordx4 v{V_L16}, s[{S_TAB}:{S_TAB+3}], s{S_T0} offen offset:{1024*k} lds', [V_L16], [], dma=True)
    S(f's_lshr_b32 s{S_T0}, s{S_WAVE}, 1'); S(f's_add_u32 s{S_T0}, s{S_T0}, s{S_Q}'); S(f's_and_b32 s{S_T0}, s{S_T0}, 3')
    S(f's_lshl_b32 s{S_T0}, s{S_T0}, 3'); S(f's_or_b32 s{S_T0}, s{S_T0}, s{S_CB}'); S(f's_lshl_b32 s{S_T0}, s{S_T0}, 1')
    S(f's_and_b32 s{S_T1}, s{S_WAVE}, 1'); S(f's_add_u32 s{S_T0}, s{S_T0}, s{S_T1}'); S(f's_mul_i32 s{S_T0}, s{S_T0}, 832')
    S(f's_mul_i32 s{S_T1}, s{S_WAVE}, 832'); S(f's_add_u32 m0, s{S_T1}, {IDXB}', m0=True)
    S('s_mov_b32 exec_lo, -1'); S('s_mov_b32 exec_hi, 0xfffff')
    a.vmem(f'buffer_load_dwordx4 v{V_L16}, s[{S_IDX}:{S_IDX+3}], s{S_T0} offen lds', [V_L16], [], dma=True)
    S(f's_cmp_lg_u32 s{S_WAVE}, 5'); a.cond_begin('s_cbranch_scc1 L_nb1', 'L_nb1')
    S(f's_mov_b32 m0, {BW}', m0=True)
    a.vmem(f'buffer_load_dwordx4 v{V_L16}, s[{S_B1}:{S_B1+3}], 0 offen lds', [V_L16], [], dma=True)
    S(f's_mov_b32 m0, {BW + 832}', m0=True)
    a.vmem(f'buffer_load_dwordx4 v{V_L16}, s[{S_W2}:{S_W2+3}], 0 offen lds', [V_L16], [], dma=True)
    a.cond_end()
    fullexec()
    PWT = 136; BIGR = 137
    V(f'v_mov_b32 v{BIGR}, 0x7f000000', [], [BIGR])
    V(f'v_lshrrev_b32 v{t[0]}, 4, v0', [0], [t[0]])
    V(f'v_and_b32 v{t[1]}, 15, v0', [0], [t[1]])
    V(f'v_mad_u32_u24 v{t[0]}, v{t[0]}, 13, v{t[1]}', [t[0], t[1]], [t[0]])
    V(f'v_lshlrev_b32 v{t[0]}, 1, v{t[0]}', [t[0]], [t[0]])
    V(f'v_cmp_gt_u32 vcc, 13, v{t[1]}', [t[1]], [], swrites=['vcc'])
    V(f'v_cndmask_b32 v{t[0]}, v{BIGR}, v{t[0]}, vcc', [BIGR, t[0]], [t[0]], sreads=['vcc'])
    S(f's_cmp_gt_u32 s{S_WAVE}, 2')
    a.cond_begin('s_cbranch_scc1 L_nopw', 'L_nopw')
    a.vmem(f'buffer_load_ushort v{PWT}, v{t[0]}, s[{S_WCO}:{S_WCO+3}], 0 offen', [t[0]], [PWT])
    a.cond_end()
    V(f'v_mov_b32 v{t[2]}, 0', [], [t[2]])
    a.vmem(f'buffer_load_ushort v{V_ACC}, v{t[2]}, s[{S_BO}:{S_BO+3}], 0 offen', [t[2]], [V_ACC])
    def sym_addr(p, srow, wsbase):
        V(f'v_lshrrev_b32 v{p[3]}, 1, v{p[0]}', [p[0]], [p[3]])
        V(f'v_and_b32 v{p[4]}, 1, v{p[0]}', [p[0]], [p[4]])
        V(f'v_subrev_u32 v{p[5]}, 1, v{p[3]}', [p[3]], [p[5]])
        V(f'v_mul_i32_i24 v{p[5]}, v{p[5]}, v{p[3]}', [p[5], p[3]], [p[5]])
        V(f'v_lshrrev_b32 v{p[5]}, 1, v{p[5]}', [p[5]], [p[5]])
        V(f'v_mul_u32_u24 v{p[6]}, 12, v{p[3]}', [p[3]], [p[6]])
        V(f'v_sub_u32 v{p[6]}, v{p[6]}, v{p[5]}', [p[6], p[5]], [p[6]])
        V(f'v_mul_u32_u24 v{p[5]}, 92, v{p[4]}', [p[4]], [p[5]])
        V(f'v_add_u32 v{p[6]}, v{p[6]}, v{p[5]}', [p[6], p[5]], [p[6]])
        V(f'v_lshl_add_u32 v{p[6]}, v{p[1]}, 1, v{p[6]}', [p[1], p[6]], [p[6]])
        V(f'v_lshlrev_b32 v{p[6]}, 2, v{p[6]}', [p[6]], [p[6]])
        V(f'v_add_u32 v{p[6]}, s{S_T3}, v{p[6]}', [p[6]], [p[6]])
        V(f'v_lshlrev_b32 v{p[5]}, 1, v{p[1]}', [p[1]], [p[5]])
        V(f'v_sub_u32 v{p[3]}, v{p[3]}, v{p[5]}', [p[3], p[5]], [p[3]])
        V(f'v_cmp_gt_u32 vcc, 26, v{p[0]}', [p[0]], [], swrites=['vcc'])
        V(f'v_mov_b32 v{p[5]}, 100', [], [p[5]])
        V(f'v_cndmask_b32 v{p[3]}, v{p[5]}, v{p[3]}, vcc', [p[5], p[3]], [p[3]], sreads=['vcc'])
        V(f'v_add_u32 v{p[8]}, s{S_T3}, v{V_L16}', [V_L16], [p[8]])
        V(f'v_cmp_le_u32 vcc, 23, v{V_LANE}', [V_LANE], [], swrites=['vcc'])
        V(f'v_cndmask_b32 v{p[9]}, 0, 1, vcc', [], [p[9]], sreads=['vcc'])
        S(f's_mov_b32 s{S_T0}, s{srow}')
        rho_salu(S_T0, S_T1, S_T4)
        V(f'v_mul_u32_u24 v{p[9]}, {25*368}, v{p[9]}', [p[9]], [p[9]])
        V(f'v_add_u32 v{p[9]}, v{p[9]}, v{V_L16}', [p[9], V_L16], [p[9]])
        S(f's_mul_i32 s{S_T0}, s{S_T0}, 368'); S(f's_add_u32 s{S_T0}, s{S_T0}, {wsbase}')

    def sym_out(p, SD, MF, IF, ewl):
        m = p[10]
        V(f'v_max3_f32 v{m}, |v{SD}|, |v{SD+1}|, |v{SD+2}|', R(SD, 3), [m])
        for r in range(3, 15, 2):
            V(f'v_max3_f32 v{m}, |v{SD+r}|, |v{SD+r+1}|, v{m}', [SD+r, SD+r+1, m], [m])
        dpp_max(m)
        V(f'v_frexp_exp_i32_f32 v{m}, v{m}', [m], [m])
        V(f'v_readlane_b32 s{S_T4}, v{m}, 63', [m], [], swrites=[S_T4], readlane=True)
        S(f's_sub_i32 s{S_C}, 15, s{S_T4}', sreads=[S_T4])
        S(f's_sub_i32 s{S_T4}, s{S_T4}, 15')
        for r in range(14): V(f'v_ldexp_f32 v{SD+r}, v{SD+r}, s{S_C}', [SD+r], [SD+r])
        for rp in range(7):
            V(f'v_cvt_pk_f16_f32 v{MF+rp}, v{SD+2*rp}, v{SD+2*rp+1}', [SD+2*rp, SD+2*rp+1], [MF+rp])
        V(f'v_mov_b32 v{p[7]}, 0', [], [p[7]])
        V(f'v_mov_b32 v{p[13]}, s{S_T3}', [], [p[13]])
        a.ds(f'ds_write_b32 v{p[13]}, v{p[7]} offset:364', [p[13], p[7]])
        a.ds(f'ds_write_b32 v{p[13]}, v{p[7]} offset:732', [p[13], p[7]])
        for rp in range(7):
            aa, bb = rp >> 1, rp & 1
            V(f'v_cmp_ge_i32 vcc, {4*aa+bb}, v{p[3]}', [p[3]], [], swrites=['vcc'])
            if aa == 3: S('s_mov_b32 vcc_hi, 0', sreads=['vcc'])
            S('s_mov_b64 exec, vcc', sreads=['vcc'])
            a.ds(f'ds_write_b32 v{p[6]}, v{MF+rp} offset:{4*(4*aa+bb)}', [p[6], MF+rp])
            fullexec()
        a.raw('s_waitcnt lgkmcnt(0)', kind='wait')
        a.ds(f'ds_read_b128 {vr(IF,4)}, v{p[8]}', [p[8]], R(IF, 4))
        execn(46)
        a.vmem(f'buffer_store_dwordx4 {vr(IF,4)}, v{p[9]}, s[{S_WS}:{S_WS+3}], s{S_T0} offen sc1', [p[9]] + R(IF, 4), [], wide_store=R(IF, 4))
        fullexec()
        S(f's_lshl_b32 s{S_T1}, s{S_T1}, 2'); S(f's_add_u32 s{S_T1}, s{S_T1}, {WS_EWT + 128 * ewl}')
        V(f'v_mov_b32 v{p[11]}, s{S_T4}', [], [p[11]]); V(f'v_mov_b32 v{p[12]}, s{S_T1}', [], [p[12]])
        S('s_mov_b64 exec, 1')
        a.vmem(f'buffer_store_dword v{p[11]}, v{p[12]}, s[{S_WS}:{S_WS+3}], 0 offen sc1', [p[11], p[12]], [])

    S(f's_cmp_ge_u32 s{S_PID}, {NP2}')
    a.cond_begin('s_cbranch_scc1 L_noprod', 'L_noprod')
    p = [72 + i for i in range(16)]
    def skipchk():
        a.raw('s_setprio 3')
        V(f'v_mov_b32 v{t[1]}, 1', [], [t[1]]); S('s_mov_b64 exec, 1'); a.ds(f'ds_add_u32 v{V_SYNC}, v{t[1]} offset:24', [V_SYNC, t[1]]); fullexec()
    S(f's_cmp_ge_u32 s{S_G}, 68'); a.raw('s_cbranch_scc1 L_prodv5', kind='branch')
    S(f's_cmp_ge_u32 s{S_G}, 67'); a.raw('s_cbranch_scc1 L_noprod', kind='branch')
    S(f's_cmp_ge_u32 s{S_G}, 28'); a.raw('s_cbranch_scc1 L_prodrow', kind='branch')
    S(f's_cmp_ge_u32 s{S_G}, 26'); a.raw('s_cbranch_scc1 L_noprod', kind='branch')
    MF = 116; IF = 124; SD = 40
    V(f'v_and_b32 v{p[0]}, 31, v{V_LANE}', [V_LANE], [p[0]])
    V(f'v_lshrrev_b32 v{p[1]}, 5, v{V_LANE}', [V_LANE], [p[1]])
    V(f'v_mul_u32_u24 v{p[2]}, 52, v{p[0]}', [p[0]], [p[2]])
    V(f'v_lshl_add_u32 v{p[2]}, v{p[1]}, 4, v{p[2]}', [p[1], p[2]], [p[2]])
    S(f's_mul_i32 s{S_T2}, s{S_G}, 1352')
    a.vmem(f'buffer_load_dwordx4 {vr(MF,4)}, v{p[2]}, s[{S_WC}:{S_WC+3}], s{S_T2} offen', [p[2]], R(MF, 4))
    a.vmem(f'buffer_load_dwordx4 {vr(MF+4,4)}, v{p[2]}, s[{S_WC}:{S_WC+3}], s{S_T2} offen offset:32', [p[2]], R(MF+4, 4))
    V(f'v_lshlrev_b32 v{p[3]}, 3, v{p[1]}', [p[1]], [p[3]])
    V(f'v_sub_u32 v{p[3]}, v{p[0]}, v{p[3]}', [p[0], p[3]], [p[3]])
    V(f'v_and_b32 v{p[4]}, 1, v{p[3]}', [p[3]], [p[4]])
    V(f'v_lshlrev_b32 v{p[4]}, 4, v{p[4]}', [p[4]], [p[4]])
    V(f'v_mov_b32 v{p[5]}, 0x3f80', [], [p[5]])
    V(f'v_lshlrev_b32 v{p[4]}, v{p[4]}, v{p[5]}', [p[4], p[5]], [p[4]])
    V(f'v_ashrrev_i32 v{p[3]}, 1, v{p[3]}', [p[3]], [p[3]])
    for ks in range(2):
        for r in range(4):
            V(f'v_cmp_eq_u32 vcc, {8*ks + r}, v{p[3]}', [p[3]], [], swrites=['vcc'])
            V(f'v_cndmask_b32 v{IF+4*ks+r}, 0, v{p[4]}, vcc', [p[4]], [IF+4*ks+r], sreads=['vcc'])
    S(f's_lshl_b32 s{S_T3}, s{S_WAVE}, 10'); S(f's_add_u32 s{S_T3}, s{S_T3}, {SCR}')
    sym_addr(p, S_G, WS_IMG0)
    a.raw('s_waitcnt vmcnt(0)', kind='wait')
    skipchk()
    a.mfma('v_mfma_f32_32x32x16_bf16', SD, MF, IF, None, 8, 16)
    a.mfma('v_mfma_f32_32x32x16_bf16', SD, MF+4, IF+4, SD, 8, 16)
    a.mfma('v_mfma_f32_32x32x16_bf16', SD, IF, MF, SD, 8, 16)
    a.mfma('v_mfma_f32_32x32x16_bf16', SD, IF+4, MF+4, SD, 8, 16)
    sym_out(p, SD, MF, IF, 0)
    a.raw('s_branch L_prodfin', kind='branch')
    a.label('L_prodrow')
    S(f's_sub_u32 s{S_G}, s{S_G}, 28'); S(f's_lshl_b32 s{S_G}, s{S_G}, 1')
    PR = 40; PA = 88
    S(f's_mul_i32 s{S_T2}, s{S_G}, 1352'); S(f's_add_u32 s{S_T2}, s{S_T2}, 35152')
    V(f'v_cmp_le_u32 vcc, 43, v{V_LANE}', [V_LANE], [], swrites=['vcc'])
    V(f'v_cndmask_b32 v{p[0]}, 0, 1, vcc', [], [p[0]], sreads=['vcc'])
    V(f'v_mul_u32_u24 v{p[2]}, 12, v{p[0]}', [p[0]], [p[2]])
    V(f'v_sub_u32 v{p[2]}, v{V_L16}, v{p[2]}', [V_L16, p[2]], [p[2]])
    V(f'v_min_u32 v{p[3]}, 21, v{V_LANE}', [V_LANE], [p[3]])
    V(f'v_lshlrev_b32 v{p[4]}, 4, v{p[3]}', [p[3]], [p[4]])
    for rr in range(2):
        a.vmem(f'buffer_load_dwordx4 {vr(PR+8*rr,4)}, v{p[2]}, s[{S_WC}:{S_WC+3}], s{S_T2} offen offset:{1352*rr}', [p[2]], R(PR+8*rr, 4))
        a.vmem(f'buffer_load_dwordx4 {vr(PR+8*rr+4,4)}, v{p[4]}, s[{S_WC}:{S_WC+3}], s{S_T2} offen offset:{1352*rr+1012}', [p[4]], R(PR+8*rr+4, 4))
    V(f'v_mul_u32_u24 v{p[7]}, {25*688}, v{p[0]}', [p[0]], [p[7]])
    V(f'v_add_u32 v{p[7]}, v{p[7]}, v{V_L16}', [p[7], V_L16], [p[7]])
    V(f'v_add_u32 v{p[8]}, {26*688+336}, v{p[4]}', [p[4]], [p[8]])
    S(f's_mul_i32 s{S_T1}, s{S_G}, 2521'); S(f's_lshr_b32 s{S_T1}, s{S_T1}, 16')
    for rr in range(2):
        so, se = 4 + 2*rr, 5 + 2*rr
        S(f's_mul_i32 s{S_T3}, s{S_T1}, 26'); S(f's_sub_u32 s{S_T0}, s{S_G}, s{S_T3}'); S(f's_add_u32 s{S_T0}, s{S_T0}, {rr}')
        rho_salu(S_T0, S_T3, S_T4)
        S(f's_mul_i32 s{S_T0}, s{S_T0}, 688'); S(f's_mul_i32 s{so}, s{S_T1}, {IMG}'); S(f's_add_u32 s{so}, s{so}, s{S_T0}'); S(f's_add_u32 s{so}, s{so}, {WS_IMG[1]}')
        S(f's_lshl_b32 s{se}, s{S_T1}, 5'); S(f's_add_u32 s{se}, s{se}, s{S_T3}'); S(f's_lshl_b32 s{se}, s{se}, 2'); S(f's_add_u32 s{se}, s{se}, {WS_EWT + 128}')
    a.raw('s_waitcnt vmcnt(0)', kind='wait')
    skipchk()
    for i in range(16): V(f'v_and_b32 v{PA+i}, s{S_K7FFF}, v{PR+i}', [PR+i], [PA+i])
    m = p[11]
    V(f'v_pk_max_u16 v{m}, v{PA}, v{PA+1}', R(PA, 2), [m])
    for i in range(2, 16, 2): V(f'v_pk_maximum3_f16 v{m}, v{m}, v{PA+i}, v{PA+i+1}', [m, PA+i, PA+i+1], [m])
    V(f'v_max_u16_sdwa v{m}, v{m}, v{m} dst_sel:DWORD dst_unused:UNUSED_PAD src0_sel:WORD_1 src1_sel:WORD_0', [m], [m], opsel=True)
    dpp_max(m)
    V(f'v_readlane_b32 s{S_T0}, v{m}, 63', [m], [], swrites=[S_T0], readlane=True)
    S(f's_lshr_b32 s{S_T0}, s{S_T0}, 7', sreads=[S_T0], swrites=[S_T0])
    S(f's_sub_i32 s{S_T0}, s{S_T0}, 30'); S(f's_max_i32 s{S_T0}, s{S_T0}, 0')
    S(f's_mul_i32 s{S_C}, s{S_T0}, 0x800080'); S(f's_sub_i32 s{S_T0}, s{S_T0}, 112')
    for i in range(16): V(f'v_pk_sub_u16 v{PA+i}, v{PA+i}, s{S_C} clamp', [PA+i], [PA+i])
    for i in range(16): V(f'v_lshlrev_b32 v{PA+i}, 3, v{PA+i}', [PA+i], [PA+i])
    for i in range(16): V(f'v_bfi_b32 v{PA+i}, s{S_K8000}, v{PR+i}, v{PA+i}', [PA+i, PR+i], [PA+i])
    V(f'v_mov_b32 v{p[9]}, s{S_T0}', [], [p[9]]); V(f'v_mov_b32 v{p[10]}, 0', [], [p[10]])
    for rr in range(2):
        a.vmem(f'buffer_store_dwordx4 {vr(PA+8*rr,4)}, v{p[7]}, s[{S_WS}:{S_WS+3}], s{4+2*rr} offen sc1', [p[7]] + R(PA+8*rr, 4), [], wide_store=R(PA+8*rr, 4))
    execn(22)
    for rr in range(2):
        a.vmem(f'buffer_store_dwordx4 {vr(PA+8*rr+4,4)}, v{p[8]}, s[{S_WS}:{S_WS+3}], s{4+2*rr} offen sc1', [p[8]] + R(PA+8*rr+4, 4), [], wide_store=R(PA+8*rr+4, 4))
    S('s_mov_b64 exec, 1')
    for rr in range(2):
        a.vmem(f'buffer_store_dword v{p[9]}, v{p[10]}, s[{S_WS}:{S_WS+3}], s{5+2*rr} offen sc1', [p[9], p[10]], [])
    a.raw('s_branch L_prodfin', kind='branch')
    a.label('L_prodv5')
    S(f's_sub_u32 s{S_T0}, s{S_G}, 68'); S(f's_cmp_ge_u32 s{S_T0}, 28'); S(f's_cselect_b32 s{S_T3}, 1, 0'); S(f's_mul_i32 s{S_T1}, s{S_T3}, 28'); S(f's_sub_u32 s{S_T0}, s{S_T0}, s{S_T1}')
    S(f's_cmp_ge_u32 s{S_T0}, 26'); a.raw('s_cbranch_scc1 L_noprod', kind='branch')
    LA = 40; LB = 44; AC = 48
    S(f's_mul_i32 s{S_T2}, s{S_T0}, 52'); S(f's_mul_i32 s{S_T1}, s{S_T3}, 35152'); S(f's_add_u32 s{S_T2}, s{S_T2}, s{S_T1}'); S(f's_add_u32 s{S_T2}, s{S_T2}, {4*35152}')
    V(f'v_lshrrev_b32 v{p[0]}, 2, v{V_LANE}', [V_LANE], [p[0]])
    V(f'v_and_b32 v{p[1]}, 3, v{V_LANE}', [V_LANE], [p[1]])
    V(f'v_mul_u32_u24 v{p[2]}, 0x548, v{p[0]}', [p[0]], [p[2]])
    V(f'v_lshl_add_u32 v{p[2]}, v{p[1]}, 4, v{p[2]}', [p[1], p[2]], [p[2]])
    a.vmem(f'buffer_load_dwordx4 {vr(LA,4)}, v{p[2]}, s[{S_WC}:{S_WC+3}], s{S_T2} offen', [p[2]], R(LA, 4))
    S(f's_add_u32 s{S_T2}, s{S_T2}, {16*1352}')
    a.vmem(f'buffer_load_dwordx4 {vr(LB,4)}, v{p[2]}, s[{S_WC}:{S_WC+3}], s{S_T2} offen', [p[2]], R(LB, 4))
    V(f'v_lshlrev_b32 v{p[3]}, 1, v{p[0]}', [p[0]], [p[3]])
    S(f's_mul_i32 s{S_T2}, s{S_T3}, 52')
    a.vmem(f'buffer_load_ushort v{p[4]}, v{p[3]}, s[{S_WCO}:{S_WCO+3}], s{S_T2} offen offset:208', [p[3]], [p[4]])
    a.vmem(f'buffer_load_ushort v{p[5]}, v{p[3]}, s[{S_WCO}:{S_WCO+3}], s{S_T2} offen offset:240', [p[3]], [p[5]])
    S(f's_lshl_b32 s{S_C}, s{S_T0}, 7'); S(f's_add_u32 s{S_C}, s{S_C}, {WS_V5R}')
    rho_salu(S_T0, S_T1, S_T4, clamp=False)
    S(f's_lshl_b32 s{S_T0}, s{S_T0}, 4'); S(f's_add_u32 s{S_T0}, s{S_T0}, {WS_V5F}')
    S(f's_cmp_eq_u32 s{S_T3}, 0'); S(f's_cselect_b32 s{S_T0}, s{S_T0}, s{S_C}'); S(f's_cselect_b32 s{S_T1}, 10, 4'); S(f's_movk_i32 s{S_T4}, 0x200'); S(f's_cselect_b32 s{S_T4}, s{S_T4}, 64')
    V(f'v_lshlrev_b32 v{p[6]}, s{S_T1}, v{p[1]}', [p[1]], [p[6]])
    V(f'v_add_u32 v{p[15]}, s{S_T4}, v{p[6]}', [p[6]], [p[15]])
    a.raw('s_waitcnt vmcnt(0)', kind='wait')
    skipchk()
    V(f'v_cmp_ne_u32 vcc, 3, v{p[1]}', [p[1]], [], swrites=['vcc'])
    for r in (1, 2, 3):
        V(f'v_cndmask_b32 v{LA+r}, 0, v{LA+r}, vcc', [LA+r], [LA+r], sreads=['vcc'])
        V(f'v_cndmask_b32 v{LB+r}, 0, v{LB+r}, vcc', [LB+r], [LB+r], sreads=['vcc'])
    V(f'v_lshlrev_b32 v{p[4]}, 16, v{p[4]}', [p[4]], [p[4]])
    V(f'v_lshlrev_b32 v{p[5]}, 16, v{p[5]}', [p[5]], [p[5]])
    V(f'v_cmp_gt_u32 vcc, 10, v{p[0]}', [p[0]], [], swrites=['vcc'])
    V(f'v_cndmask_b32 v{p[5]}, 0, v{p[5]}, vcc', [p[5]], [p[5]], sreads=['vcc'])
    for r in range(4):
        V(f'v_lshlrev_b32 v{p[7]}, 16, v{LA+r}', [LA+r], [p[7]])
        V(f'v_and_b32 v{p[8]}, 0xffff0000, v{LA+r}', [LA+r], [p[8]])
        V(f'v_lshlrev_b32 v{p[9]}, 16, v{LB+r}', [LB+r], [p[9]])
        V(f'v_and_b32 v{p[10]}, 0xffff0000, v{LB+r}', [LB+r], [p[10]])
        V(f'v_mul_f32 v{AC+2*r}, v{p[4]}, v{p[7]}', [p[4], p[7]], [AC+2*r])
        V(f'v_mul_f32 v{AC+2*r+1}, v{p[4]}, v{p[8]}', [p[4], p[8]], [AC+2*r+1])
        V(f'v_fmac_f32 v{AC+2*r}, v{p[5]}, v{p[9]}', [AC+2*r, p[5], p[9]], [AC+2*r])
        V(f'v_fmac_f32 v{AC+2*r+1}, v{p[5]}, v{p[10]}', [AC+2*r+1, p[5], p[10]], [AC+2*r+1])
    for d in (4, 8):
        for e in range(8):
            V(f'v_add_f32_dpp v{AC+e}, v{AC+e}, v{AC+e} row_ror:{d} row_mask:0xf bank_mask:0xf', [AC+e], [AC+e], dpp=True)
    for op in ('v_permlane16_swap_b32', 'v_permlane32_swap_b32'):
        for e in range(8): V(f'v_mov_b32 v{p[7+e]}, v{AC+e}', [AC+e], [p[7+e]])
        for e in range(8): V(f'{op} v{AC+e}, v{p[7+e]}', [AC+e, p[7+e]], [AC+e, p[7+e]], permlane=True)
        for e in range(8): V(f'v_add_f32 v{AC+e}, v{AC+e}, v{p[7+e]}', [AC+e, p[7+e]], [AC+e])
    for r in range(4):
        V(f'v_cvt_pk_bf16_f32 v{LA+r}, v{AC+2*r}, v{AC+2*r+1}', [AC+2*r, AC+2*r+1], [LA+r])
        V(f'v_lshlrev_b32 v{p[7]}, 16, v{LA+r}', [LA+r], [p[7]])
        V(f'v_and_b32 v{p[8]}, 0xffff0000, v{LA+r}', [LA+r], [p[8]])
        V(f'v_sub_f32 v{p[7]}, v{AC+2*r}, v{p[7]}', [AC+2*r, p[7]], [p[7]])
        V(f'v_sub_f32 v{p[8]}, v{AC+2*r+1}, v{p[8]}', [AC+2*r+1, p[8]], [p[8]])
        V(f'v_cvt_pk_bf16_f32 v{LB+r}, v{p[7]}, v{p[8]}', [p[7], p[8]], [LB+r])
    execn(4)
    a.vmem(f'buffer_store_dwordx4 {vr(LA,4)}, v{p[6]}, s[{S_WS}:{S_WS+3}], s{S_T0} offen sc1', [p[6]] + R(LA, 4), [], wide_store=R(LA, 4))
    a.vmem(f'buffer_store_dwordx4 {vr(LB,4)}, v{p[15]}, s[{S_WS}:{S_WS+3}], s{S_T0} offen sc1', [p[15]] + R(LB, 4), [], wide_store=R(LB, 4))
    a.label('L_prodfin')
    fullexec()
    a.raw('s_branch L_afterprod', kind='branch')
    a.cond_end()
    a.raw('s_waitcnt vmcnt(0)', kind='wait')
    V(f'v_mov_b32 v{t[1]}, 1', [], [t[1]]); S('s_mov_b64 exec, 1'); a.ds(f'ds_add_u32 v{V_SYNC}, v{t[1]} offset:24', [V_SYNC, t[1]]); fullexec()
    a.label('L_afterprod')
    a.vm = []
    a.raw('s_waitcnt lgkmcnt(0)', kind='wait'); a.lds = []
    a.nop(12)
    stamp('prod')
    def addr_setup():
        V(f'v_and_b32 v{t[0]}, 31, v{V_LANE}', [V_LANE], [t[0]])
        V(f'v_cmp_gt_u32 vcc, 28, v{t[0]}', [t[0]], [], swrites=['vcc'])
        V(f'v_addc_co_u32 v{t[4]}, vcc, 0, v{t[0]}, vcc', [t[0]], [t[4]], sreads=['vcc'], swrites=['vcc'])
        V(f'v_cmp_eq_u32 s[{S_MT}:{S_MT+1}], 28, v{t[0]}', [t[0]], [], swrites=[S_MT, S_MT+1])
        V(f'v_cndmask_b32 v{t[4]}, v{t[4]}, 0, s[{S_MT}:{S_MT+1}]', [t[4]], [t[4]], sreads=[S_MT])
        V(f'v_lshrrev_b32 v{t[1]}, 5, v{V_LANE}', [V_LANE], [t[1]])
        V(f'v_mad_u32_u24 v{t[4]}, v{t[1]}, 26, v{t[4]}', [t[1], t[4]], [t[4]])
        V(f'v_cmp_gt_u32 vcc, 25, v{t[0]}', [t[0]], [], swrites=['vcc'])
        S(f's_or_b64 vcc, vcc, s[{S_MT}:{S_MT+1}]', sreads=['vcc', S_MT])
        V(f'v_mov_b32 v{t[5]}, 0x40000', [], [t[5]])
        V(f'v_cndmask_b32 v{t[5]}, v{t[5]}, 0, vcc', [t[5]], [t[5]])
        S(f's_movk_i32 s{S_T0}, 0x2b0'); S(f's_movk_i32 s{S_T1}, 0x170')
        V(f'v_mad_u32_u24 v{V_AADDR[0]}, v{t[4]}, s{S_T0}, v{t[5]}', [t[4], t[5]], [V_AADDR[0]])
        V(f'v_add_u32 v{V_AADDR[1]}, {U[2]}, v{V_AADDR[0]}', [V_AADDR[0]], [V_AADDR[1]])
        V(f'v_mad_u32_u24 v{V_AADDR0}, v{t[4]}, s{S_T1}, v{t[5]}', [t[4], t[5]], [V_AADDR0])
        V(f'v_add_u32 v{V_AADDR0}, {I0B}, v{V_AADDR0}', [V_AADDR0], [V_AADDR0])
    V(f'v_and_b32 v{t[0]}, 31, v{V_LANE}', [V_LANE], [t[0]])
    V(f'v_lshlrev_b32 v{t[0]}, 2, v{t[0]}', [t[0]], [t[0]])
    S(f's_mul_i32 s{S_T0}, s{S_WAVE}, 1664'); S(f's_add_u32 s{S_T0}, s{S_T0}, {X16}')
    V(f'v_add_u32 v{V_TRADDR}, s{S_T0}, v{t[0]}', [t[0]], [V_TRADDR])
    V(f'v_lshrrev_b32 v{t[4]}, 4, v{V_LANE}', [V_LANE], [t[4]])
    V(f'v_lshrrev_b32 v{t[0]}, 2, v{V_LANE}', [V_LANE], [t[0]])
    V(f'v_mul_u32_u24 v{t[0]}, 224, v{t[0]}', [t[0]], [t[0]])
    V(f'v_and_b32 v{t[5]}, 3, v{V_LANE}', [V_LANE], [t[5]])
    V(f'v_lshl_add_u32 v{t[0]}, v{t[5]}, 3, v{t[0]}', [t[5], t[0]], [t[0]])
    V(f'v_mov_b32 v{V_DAADDR}, v{t[0]}', [t[0]], [V_DAADDR])
    V(f'v_add_u32 v{V_DBK}, 121600, v{V_DAADDR}', [V_DAADDR], [V_DBK])
    S(f's_lshl_b32 s{S_T1}, s{S_T0L}, 5'); S(f's_add_u32 s{S_T1}, s{S_T1}, {BW}')
    V(f'v_lshlrev_b32 v{t[4]}, 3, v{t[4]}', [t[4]], [t[4]])
    V(f'v_add_u32 v{V_BWADDR}, s{S_T1}, v{t[4]}', [t[4]], [V_BWADDR])
    V(f'v_mov_b32 v{V_SYNC}, {SYNC}', [], [V_SYNC])
    S(f's_lshl_b32 s{S_T0}, s{S_WAVE}, 2'); S(f's_add_u32 s{S_T0}, s{S_T0}, {SYNC + 32}')
    V(f'v_mov_b32 v{V_DONEA}, s{S_T0}', [], [V_DONEA])
    S(f's_cmp_gt_u32 s{S_WAVE}, 2')
    a.cond_begin('s_cbranch_scc1 L_nopw2', 'L_nopw2')
    V(f'v_lshlrev_b32 v{PWT}, 16, v{PWT}', [PWT], [PWT])
    V(f'v_lshlrev_b32 v{t[0]}, 2, v0', [0], [t[0]])
    V(f'v_add_u32 v{t[0]}, {POOLW}, v{t[0]}', [t[0]], [t[0]])
    V(f'v_cmp_gt_u32 vcc, 0xa0, v0', [0], [], swrites=['vcc'])
    S('s_mov_b64 exec, vcc', sreads=['vcc'])
    a.ds(f'ds_write_b32 v{t[0]}, v{PWT}', [t[0], PWT])
    fullexec()
    a.cond_end()
    a.wait_lds_all()
    S(f's_cmp_ge_u32 s{S_PID}, {NP2}')
    a.raw('s_cbranch_scc1 L_nocnt', kind='branch')
    a.raw('s_waitcnt vmcnt(0)', kind='wait')
    a.raw(f'v_mov_b32 v{VT1}, 1', kind='valu')
    S('s_mov_b64 exec, 1')
    a.raw(f'ds_add_rtn_u32 v{VT2}, v{V_SYNC}, v{VT1} offset:12', kind='ds')
    a.raw(f's_memrealtime s[{S_MT}:{S_MT+1}]')
    a.raw('s_waitcnt lgkmcnt(0)', kind='wait')
    a.raw(f'v_readfirstlane_b32 s{S_T0}, v{VT2}', kind='valu')
    a.raw('s_nop 0', kind='nop')
    S(f's_cmp_lg_u32 s{S_T0}, 3')
    a.raw('s_cbranch_scc1 L_nocnt', kind='branch')
    S(f's_mov_b32 s{S_T0}, 136'); S(f's_mov_b32 s{S_T1}, {NP0 - 1}'); S(f's_mov_b32 s{S_T2}, 0')
    S(f's_cmp_ge_u32 s{S_PID}, {NP0}'); S(f's_cselect_b32 s{S_T0}, 128, s{S_T0}'); S(f's_cselect_b32 s{S_T1}, {NP1 - NP0 - 1}, s{S_T1}'); S(f's_cselect_b32 s{S_T2}, 4, s{S_T2}')
    S(f's_cmp_ge_u32 s{S_PID}, {NP1}'); S(f's_cselect_b32 s{S_T0}, 64, s{S_T0}'); S(f's_cselect_b32 s{S_T1}, {NP2 - NP1 - 1}, s{S_T1}'); S(f's_cselect_b32 s{S_T2}, 8, s{S_T2}')
    a.raw(f'v_mov_b32 v{VT2}, s{S_T2}', kind='valu')
    a.raw(f'buffer_atomic_add v{VT1}, v{VT2}, s[{S_DBGF}:{S_DBGF+3}], 0 offen sc0 sc1', kind='vmem')
    a.raw('s_waitcnt vmcnt(0)', kind='wait')
    a.raw(f'v_readfirstlane_b32 s{S_T2}, v{VT1}', kind='valu')
    a.raw('s_nop 0', kind='nop')
    S(f's_cmp_lg_u32 s{S_T2}, s{S_T1}')
    a.raw('s_cbranch_scc1 L_nocnt', kind='branch')
    S(f's_or_b32 s{S_MT}, s{S_MT}, 1')
    a.raw(f'v_mov_b32 v{VT1}, s{S_MT}', kind='valu')
    a.raw(f'v_mov_b32 v{VT3}, s{S_T0}', kind='valu')
    a.raw(f'buffer_store_dword v{VT1}, v{VT3}, s[{S_DBGF}:{S_DBGF+3}], 0 offen sc1', kind='vmem')
    a.label('L_nocnt')
    fullexec()
    a.raw('s_setprio 0')
    S(f's_mov_b32 s{S_KN}, 0')
    stamp('setup')

    chk_n = [0]
    def rdy_fetch(off): a.ds(f'ds_read_b32 v{V_RDY}, v{V_SYNC} offset:{off}', [V_SYNC], [V_RDY])
    def rdy_check(nseq, off, fetched=False):
        if not fetched: rdy_fetch(off)
        i = chk_n[0]; chk_n[0] += 1
        V(f'v_readfirstlane_b32 s{S_T0}, v{V_RDY}', [V_RDY], [], swrites=[S_T0], readlane=True)
        S(f's_cmp_ge_u32 s{S_T0}, {nseq}', sreads=[S_T0])
        a.cond_begin(f's_cbranch_scc1 L_ok{i}', f'L_ok{i}')
        a.raw(f's_mov_b32 s{S_T1}, 0x100000', kind='salu')
        a.label(f'L_sp{i}')
        a.raw('s_sleep 1')
        a.raw(f'ds_read_b32 v{V_RDY}, v{V_SYNC} offset:{off}', kind='ds')
        a.raw(f's_sub_u32 s{S_T1}, s{S_T1}, 1', kind='salu')
        a.raw(f's_cbranch_scc1 L_ok{i}', kind='branch')
        a.raw('s_waitcnt lgkmcnt(0)', kind='wait')
        a.raw(f'v_readfirstlane_b32 s{S_T0}, v{V_RDY}', kind='valu')
        a.raw('s_nop 0', kind='nop')
        a.raw(f's_cmp_ge_u32 s{S_T0}, {nseq}', kind='salu')
        a.raw(f's_cbranch_scc0 L_sp{i}', kind='branch')
        a.cond_end()
    def cnt_check(nseq):
        i = chk_n[0]; chk_n[0] += 1
        S(f's_cmp_ge_u32 s{S_KN}, {nseq}')
        a.cond_begin(f's_cbranch_scc1 L_ok{i}', f'L_ok{i}')
        a.raw(f's_mov_b32 s{S_T1}, 0x100000', kind='salu')
        a.label(f'L_sp{i}')
        a.raw(f'ds_read_b32 v{V_RDY}, v{V_SYNC}', kind='ds')
        a.raw(f's_sub_u32 s{S_T1}, s{S_T1}, 1', kind='salu')
        a.raw(f's_cbranch_scc1 L_ok{i}', kind='branch')
        a.raw('s_waitcnt lgkmcnt(0)', kind='wait')
        a.raw(f'v_readfirstlane_b32 s{S_KN}, v{V_RDY}', kind='valu')
        a.raw('s_nop 0', kind='nop')
        a.raw(f's_cmp_ge_u32 s{S_KN}, {nseq}', kind='salu')
        a.raw(f's_cbranch_scc1 L_ok{i}', kind='branch')
        a.raw('s_sleep 1')
        a.raw(f's_branch L_sp{i}', kind='branch')
        a.cond_end()
    def release(stage):
        V(f'v_mov_b32 v{t[0]}, {stage}', [], [t[0]])
        a.ds(f'ds_write_b32 v{V_DONEA}, v{t[0]}', [V_DONEA, t[0]])

    def x0_ops():
        ops = []
        PB = PBT
        def rd():
            V(f'v_lshlrev_b32 v{V_ACC}, 16, v{V_ACC}', [V_ACC], [V_ACC])
            V(f'v_and_b32 v{t[0]}, 47, v{V_LANE}', [V_LANE], [t[0]])
            V(f'v_cmp_eq_u32 vcc, 0, v{t[0]}', [t[0]], [], swrites=['vcc'])
            V(f'v_cndmask_b32 v{V_ACC}, 0, v{V_ACC}, vcc', [V_ACC], [V_ACC], sreads=['vcc'])
        ops.append(rd)
        m = t[1]
        def c1():
            for v in range(13): V(f'v_and_b32 v{P16+v}, s{S_K7FFF}, v{PB+v}', [PB+v], [P16+v])
        ops.append(c1)
        def c2():
            V(f'v_pk_maximum3_f16 v{m}, v{P16}, v{P16+1}, v{P16+2}', R(P16, 3), [m])
            for v in range(3, 13, 2):
                V(f'v_pk_maximum3_f16 v{m}, v{m}, v{P16+v}, v{P16+v+1}', [m, P16+v, P16+v+1], [m])
            V(f'v_max_u16_sdwa v{m}, v{m}, v{m} dst_sel:DWORD dst_unused:UNUSED_PAD src0_sel:WORD_1 src1_sel:WORD_0', [m], [m], opsel=True)
            V(f'v_lshrrev_b32 v{m}, 7, v{m}', [m], [m])
            V(f'v_subrev_u32 v{m}, 21, v{m}', [m], [m])
            V(f'v_max_i32 v{m}, 0, v{m}', [m], [m])
            V(f'v_subrev_u32 v{V_EX}, 112, v{m}', [m], [V_EX])
            V(f'v_mul_u32_u24 v{m}, 0x800080, v{m}', [m], [m])
        ops.append(c2)
        ops.append(lambda: [V(f'v_pk_sub_u16 v{P16+v}, v{P16+v}, v{m} clamp', [P16+v, m], [P16+v]) for v in range(13)])
        ops.append(lambda: [V(f'v_lshlrev_b32 v{P16+v}, 3, v{P16+v}', [P16+v], [P16+v]) for v in range(13)])
        ops.append(lambda: [V(f'v_bfi_b32 v{P16+v}, s{S_K8000}, v{PB+v}, v{P16+v}', [P16+v, PB+v], [P16+v]) for v in range(13)])
        def qq():
            V(f'v_mov_b32 v{P16+13}, 0', [], [P16+13])
            V(f'v_mov_b32 v{t[2]}, 0x05040100', [], [t[2]])
            V(f'v_mov_b32 v{t[1]}, 0x07060302', [], [t[1]])
            V(f'v_cndmask_b32 v{t[2]}, v{t[2]}, v{t[1]}, s[{S_HI}:{S_HI+1}]', [t[2], t[1]], [t[2]])
            for q in range(7):
                V(f'v_perm_b32 v{XQ+q}, v{P16+2*q+1}, v{P16+2*q}, v{t[2]}', [P16+2*q+1, P16+2*q, t[2]], [XQ+q])
        ops.append(qq)
        def q2():
            V(f'v_lshlrev_b32 v{V_E}, 1, v{V_EX}', [V_EX], [V_E])
        ops.append(q2)
        return ops

    ACC = 40; DAB = [68, 96]; DBB = [124, 128]; IXR = 132; NDB = 2
    def dnn_bread(i):
        db = DBB[i % NDB]
        a.ds(f'ds_read_b64 {vr(db,2)}, v{IXR+2*i}', [IXR+2*i], R(db, 2))
        a.ds(f'ds_read_b64 {vr(db+2,2)}, v{IXR+2*i+1}', [IXR+2*i+1], R(db+2, 2))
        if i == 11: V(f'v_add_u32 v{V_DAADDR}, 57344, v{V_DAADDR}', [V_DAADDR], [V_DAADDR])
    def dnn_aread(i, q):
        da = DAB[i % NDB]
        hi = i < 3
        ad = V_DBK if hi else V_DAADDR; b0 = CADDR[i] - (121600 if hi else 0)
        if i >= 11: b0 -= 57344
        a.ds(f'ds_read_b64_tr_b16 {vr(da+4*q,2)}, v{ad} offset:{b0+32*q}', [ad], R(da+4*q, 2))
        a.ds(f'ds_read_b64_tr_b16 {vr(da+4*q+2,2)}, v{ad} offset:{b0+32*q+3584}', [ad], R(da+4*q+2, 2))
    def dnn_mf(i, q):
        a.mfma('v_mfma_f32_16x16x32_bf16', ACC+4*q, DAB[i % NDB]+4*q, DBB[i % NDB], ACC+4*q, 4, 4)
    def dnn_epilogue(xt):
        K1 = -2.0 * 1.4426950408889634 * 0.7978845608028654
        K2 = K1 * 0.044715
        acc = 124; K1R = 125; W2T = 96; TT = 68
        qs = list(range(0 if xt else 1, 7))
        S(f's_mov_b32 s{S_K2}, {fb(K2)}')
        for q in qs:
            a.ds(f'ds_read_b64 {vr(W2T+2*q,2)}, v{V_BWADDR} offset:{832+32*q}', [V_BWADDR], R(W2T+2*q, 2))
        V(f'v_mov_b32 v{K1R}, {fb(K1)}', [], [K1R])
        V(f'v_mov_b32 v{acc}, 0', [], [acc])
        xs = [ACC + 4*q + r for q in qs for r in range(4)]
        ts = [TT + 4*q + r for q in qs for r in range(4)]
        for x, tt in zip(xs, ts): V(f'v_mul_f32 v{tt}, v{x}, v{x}', [x], [tt])
        for x, tt in zip(xs, ts): V(f'v_fma_f32 v{tt}, v{tt}, s{S_K2}, v{K1R}', [tt, K1R], [tt])
        for x, tt in zip(xs, ts): V(f'v_mul_f32 v{tt}, v{tt}, v{x}', [tt, x], [tt])
        for x, tt in zip(xs, ts): V(f'v_exp_f32 v{tt}, v{tt}', [tt], [tt], trans=True)
        for x, tt in zip(xs, ts): V(f'v_add_f32 v{tt}, 1.0, v{tt}', [tt], [tt])
        for x, tt in zip(xs, ts): V(f'v_rcp_f32 v{tt}, v{tt}', [tt], [tt], trans=True)
        for x, tt in zip(xs, ts): V(f'v_mul_f32 v{tt}, v{tt}, v{x}', [tt, x], [tt])
        for q in qs:
            w = W2T + 2*q; x0_ = ACC + 4*q
            V(f'v_lshlrev_b32 v{x0_}, 16, v{w}', [w], [x0_])
            V(f'v_and_b32 v{x0_+1}, 0xffff0000, v{w}', [w], [x0_+1])
            V(f'v_lshlrev_b32 v{x0_+2}, 16, v{w+1}', [w+1], [x0_+2])
            V(f'v_and_b32 v{x0_+3}, 0xffff0000, v{w+1}', [w+1], [x0_+3])
        for x, tt in zip(xs, ts): V(f'v_fmac_f32 v{acc}, v{tt}, v{x}', [acc, tt, x], [acc])
        for op in ('v_permlane16_swap_b32', 'v_permlane32_swap_b32'):
            V(f'v_mov_b32 v{K1R}, v{acc}', [acc], [K1R])
            V(f'{op} v{acc}, v{K1R}', [acc, K1R], [acc, K1R], permlane=True)
            V(f'v_add_f32 v{acc}, v{acc}, v{K1R}', [acc, K1R], [acc])
        V(f'v_lshlrev_b32 v{t[0]}, 2, v{V_LANE}', [V_LANE], [t[0]])
        S(f's_and_b32 s{S_T0}, s{S_WAVE}, 3'); S(f's_lshl_b32 s{S_T0}, s{S_T0}, 6'); S(f's_add_u32 s{S_T0}, s{S_T0}, {PDL}')
        V(f'v_add_u32 v{t[0]}, s{S_T0}, v{t[0]}', [t[0]], [t[0]])
        V(f'v_mov_b32 v{t[1]}, 1', [], [t[1]])
        execn(16)
        a.ds(f'ds_write_b32 v{t[0]}, v{acc}', [t[0], acc])
        execn(1)
        a.ds(f'ds_add_u32 v{V_SYNC}, v{t[1]} offset:4', [V_SYNC, t[1]])
        fullexec()
    def u5_ops():
        ops = []
        def rd():
            V(f'v_add_u32 v{t[0]}, {V5F}, v{V_L16}', [V_L16], [t[0]])
            for k in range(4):
                a.ds(f'ds_read_b128 {vr(UA+4*k,4)}, v{t[0]} offset:{1024*k}', [t[0]], R(UA+4*k, 4))
            for k in range(4):
                a.ds(f'ds_read_b128 {vr(G+4*k,4)}, v{V_PWADDR} offset:{POOLW-EWT+128*3+16*k}', [V_PWADDR], R(G+4*k, 4))
        ops.append(rd)
        for k in range(4):
            def rb(k=k):
                for e in range(4 if k < 3 else 1):
                    a.ds(f'ds_read_b32 v{DB+e}, v{V_TRADDR} offset:{128*(4*k+e)}', [V_TRADDR], [DB+e])
            ops.append(rb)
            ops += [lambda: None] * 4
            if k == 3:
                def zz():
                    for r in (1, 2, 3): V(f'v_mov_b32 v{DB+r}, 0', [], [DB+r])
                ops.append(zz)
            ops.append(lambda k=k: a.mfma('v_mfma_f32_32x32x16_bf16', G, UA+4*k, DB, G, 8, 16))
            ops.append(lambda: None)
        return ops

    def boundary_ops(l):
        ops = []
        s_ = ZB[2]; mx = ZB[2]+1; my = ZB[2]+2
        W = PW if l < 4 else G
        for r in range(13):
            ops.append(lambda r=r: V(f'v_ldexp_f32 v{D+r}, v{D+r}, v{EW+r}', [D+r, EW+r], [D+r]))
        if l < 4:
            ops.append(lambda: V(f'v_max3_f32 v{mx}, |v{D}|, |v{D+1}|, |v{D+2}|', R(D, 3), [mx]))
            for r in range(3, 13, 2):
                ops.append(lambda r=r: V(f'v_max3_f32 v{mx}, |v{D+r}|, |v{D+r+1}|, v{mx}', [D+r, D+r+1, mx], [mx]))
            ops.append(lambda: V(f'v_mov_b32 v{my}, v{mx}', [mx], [my]))
        ops.append(lambda: V(f'v_mul_f32 v{s_}, v{D}, v{W}', [D, W], [s_]))
        ops.append(lambda: V(f'v_fmac_f32 v{s_}, v{D+1}, v{W+1}', [s_, D+1, W+1], [s_]))
        if l < 4:
            ops.append(lambda: V(f'v_permlane32_swap_b32 v{mx}, v{my}', [mx, my], [mx, my], permlane=True))
        ops.append(lambda: V(f'v_fmac_f32 v{s_}, v{D+2}, v{W+2}', [s_, D+2, W+2], [s_]))
        if l < 4:
            ops.append(lambda: V(f'v_max_f32 v{mx}, v{mx}, v{my}', [mx, my], [mx]))
            ops.append(lambda: V(f'v_frexp_exp_i32_f32 v{mx}, v{mx}', [mx], [mx]))
            ops.append(lambda: V(f'v_sub_u32 v{V_SH}, 8, v{mx}', [mx], [V_SH]))
        for r in range(3, 13):
            ops.append(lambda r=r: V(f'v_fmac_f32 v{s_}, v{D+r}, v{W+r}', [s_, D+r, W+r], [s_]))
        if l < 4:
            for r in range(13):
                ops.append(lambda r=r: V(f'v_ldexp_f32 v{D+r}, v{D+r}, v{V_SH}', [D+r, V_SH], [D+r]))
            for q in range(7):
                hi = D + 2*q + 1 if q < 6 else D + 12
                ops.append(lambda q=q, hi=hi: V(f'v_cvt_pk_f16_f32 v{XQ+q}, v{D+2*q}, v{hi}', [D+2*q, hi], [XQ+q]))
        ops.append(lambda: V(f'v_ldexp_f32 v{s_}, v{s_}, v{V_E}', [s_, V_E], [s_]))
        ops.append(lambda: V(f'v_add_f32 v{V_ACC}, v{V_ACC}, v{s_}', [V_ACC, s_], [V_ACC]))
        if l < 4:
            ops.append(lambda: V(f'v_sub_u32 v{V_E}, v{V_E}, v{V_SH}', [V_E, V_SH], [V_E]))
            ops.append(lambda: V(f'v_add_u32 v{V_E}, v{V_E}, v{V_EX}', [V_E, V_EX], [V_E]))
        if l == 0:
            ops.append(lambda: V(f'v_mov_b32 v{ZL+1}, 0', [], [ZL+1]))
            ops.append(lambda: V(f'v_mov_b32 v{ZL+2}, 0', [], [ZL+2]))
        return ops
    NK = [23, 43, 43, 43, 23]
    DT = 132
    ISLOT = [None, 0, 1, 2, 3]
    def a_read(l, k):
        b = AB[k % NAB]
        if l in (0, 4): ad = V_AADDR0; off = 16 * k
        else:
            sl = ISLOT[l]; ad = V_AADDR[sl >> 1]; off = IMG * (sl & 1) + 16 * k
        a.ds(f'ds_read_b128 {vr(b,4)}, v{ad} offset:{off}', [ad], R(b, 4))
    PAIRS0 = [(u, v) for u in range(13) for v in range(u, 13)]
    def zbuf(l, k):
        if k == NK[l] - 1: return ZL
        return ZB[k % 3]
    def z_ops(l, k):
        ops = []
        zb = zbuf(l, k)
        for e in range(4):
            q = 4 * k + e
            if l in (0, 4):
                if q >= 91: break
                i, v = PAIRS0[q]; src = (QH if i == v else XQ) + (i >> 1)
            else:
                if q >= 169: break
                i, v = divmod(q, 13); src = XQ + (i >> 1)
            o = i & 1
            ops.append(lambda zb=zb, e=e, src=src, v=v, o=o: V(f'v_pk_mul_f16 v{zb+e}, v{src}, v{P16+v} op_sel:[{o},0] op_sel_hi:[{o},1]', [src, P16+v], [zb+e]))
        return ops
    def pwrd(l):
        lst = {3: ((EW, 128 * 3),), 4: ((PW, 128 * 4),)}.get(l, ((PW, POOLW - EWT + 128 * l), (EW, 128 * l)))
        for base, off in lst:
            for k in range(3):
                a.ds(f'ds_read_b128 {vr(base+4*k,4)}, v{V_PWADDR} offset:{off+16*k}', [V_PWADDR], R(base+4*k, 4))
            a.ds(f'ds_read_b32 v{base+12}, v{V_PWADDR} offset:{off+48}', [V_PWADDR], [base+12])

    OX = 96
    V(f'v_bfe_u32 v{t[0]}, v{V_LANE}, 4, 1', [V_LANE], [t[0]])
    V(f'v_mul_u32_u24 v{t[0]}, 104, v{t[0]}', [t[0]], [t[0]])
    V(f'v_and_b32 v{t[1]}, 12, v{V_LANE}', [V_LANE], [t[1]])
    V(f'v_add_u32 v{t[0]}, v{t[0]}, v{t[1]}', [t[0], t[1]], [t[0]])
    S(f's_mul_i32 s{S_T0}, s{S_WAVE}, 208'); S(f's_add_u32 s{S_T0}, s{S_T0}, {IDXB}')
    V(f'v_add_u32 v{t[8]}, s{S_T0}, v{t[0]}', [t[0]], [t[8]])
    V(f'v_and_b32 v{t[6]}, 3, v{V_LANE}', [V_LANE], [t[6]])
    V(f'v_lshlrev_b32 v{t[6]}, 3, v{t[6]}', [t[6]], [t[6]])
    V(f'v_add_u32 v{t[6]}, {TAB}, v{t[6]}', [t[6]], [t[6]])
    V(f'v_lshrrev_b32 v{t[7]}, 4, v{V_LANE}', [V_LANE], [t[7]])
    V(f'v_lshlrev_b32 v{t[7]}, 3, v{t[7]}', [t[7]], [t[7]])
    V(f'v_add_u32 v{t[7]}, {TAB}, v{t[7]}', [t[7]], [t[7]])
    V(f'v_and_b32 v{t[9]}, 15, v{V_LANE}', [V_LANE], [t[9]])
    V(f'v_mul_u32_u24 v{t[9]}, 104, v{t[9]}', [t[9]], [t[9]])
    rdy_check(8, 24)
    stamp('tab')
    for q in range(7): a.ds(f'ds_read_b32 v{OX+q}, v{t[8]} offset:{16*q}', [t[8]], [OX+q])
    isB = f's_cmp_{"ge" if DG else "lt"}_u32 s{S_WAVE}, 4'
    isA = f's_cmp_{"lt" if DG else "ge"}_u32 s{S_WAVE}, 4'
    S(isA)
    a.cond_begin('s_cbranch_scc1 L_noix', 'L_noix')
    a.raw('s_setprio 3')
    S(f's_and_b32 s{S_T0}, s{S_WAVE}, 3'); S(f's_mul_i32 s{S_T0}, s{S_T0}, 1664'); S(f's_add_u32 s{S_T0}, s{S_T0}, {IDXB}')
    S(f's_add_u32 s{S_T2}, s{S_T0}, 104'); S(f's_lshl_b32 s{S_KO}, s{S_ROT}, 3'); S(f's_add_u32 s{S_KO}, s{S_KO}, s{S_T0}')
    for i in range(13):
        tt = t[2 + (i % 4)]
        V(f'v_add_u32 v{tt}, s{S_KO}, v{t[9]}', [t[9]], [tt])
        a.ds(f'ds_read_b64 {vr(IXR+2*i,2)}, v{tt}', [tt], R(IXR+2*i, 2))
        if i < 12:
            S(f's_add_u32 s{S_KO}, s{S_KO}, 8'); S(f's_cmp_eq_u32 s{S_KO}, s{S_T2}'); S(f's_cselect_b32 s{S_KO}, s{S_T0}, s{S_KO}')
    BT = 104
    for q in range(7):
        a.ds(f'ds_read_b64 {vr(BT+2*q,2)}, v{V_BWADDR} offset:{32*q}', [V_BWADDR], R(BT+2*q, 2))
    a.cond_end()
    for q in range(7):
        V(f'v_min_u32 v{OX+q}, 0x3e7, v{OX+q}', [OX+q], [OX+q])
        V(f'v_lshl_add_u32 v{OX+q}, v{OX+q}, 5, v{t[6]}', [OX+q, t[6]], [OX+q])
        a.ds(f'ds_read_b64_tr_b16 {vr(PBT+2*q,2)}, v{OX+q}', [OX+q], R(PBT+2*q, 2))
    for v in range(13): a.ds(f'ds_write_b32 v{V_TRADDR}, v{PBT+v} offset:{128*v}', [V_TRADDR, PBT+v])
    a.wait_lds_all()
    stamp('x0')
    S(isB)
    a.raw('s_cbranch_scc1 L_grpB', kind='branch')
    release(3)
    S(f's_cmp_lt_u32 s{S_PID}, {NPT0}'); a.raw('s_cbranch_scc1 L_x0prep', kind='branch')
    S(f's_cmp_ge_u32 s{S_PID}, {NPT}'); a.raw('s_cbranch_scc1 L_x0prep', kind='branch')
    p = [84 + i for i in range(16)]
    TD = 100; F1 = 116; F2 = 124; F3 = 132; TF = 140; TI = S_SET + 2
    S(f's_sub_u32 s{TI}, s{S_PID}, {NPT0}'); S(f's_lshl_b32 s{TI}, s{TI}, 2'); S(f's_and_b32 s{S_T4}, s{S_WAVE}, 3'); S(f's_add_u32 s{TI}, s{TI}, s{S_T4}')
    S(f's_mul_i32 s{S_T3}, s{S_T4}, 1664'); S(f's_add_u32 s{S_T3}, s{S_T3}, {SCR + 3328}')
    V(f'v_lshrrev_b32 v{p[0]}, 2, v{V_LANE}', [V_LANE], [p[0]])
    V(f'v_and_b32 v{p[1]}, 3, v{V_LANE}', [V_LANE], [p[1]])
    V(f'v_mul_u32_u24 v{p[2]}, 0x548, v{p[0]}', [p[0]], [p[2]])
    V(f'v_lshl_add_u32 v{p[2]}, v{p[1]}, 4, v{p[2]}', [p[1], p[2]], [p[2]])
    S(f's_min_u32 s{S_T2}, s{TI}, 25'); S(f's_mul_i32 s{S_T2}, s{S_T2}, 52'); S(f's_add_u32 s{S_T2}, s{S_T2}, {4*35152}')
    S(f's_mov_b32 m0, s{S_T3}', m0=True)
    a.vmem(f'buffer_load_dwordx4 v{p[2]}, s[{S_WC}:{S_WC+3}], s{S_T2} offen lds', [p[2]], [], dma=True)
    S(f's_add_u32 m0, s{S_T3}, 1024', m0=True); S(f's_add_u32 s{S_T2}, s{S_T2}, {16*1352}')
    execn(40)
    a.vmem(f'buffer_load_dwordx4 v{p[2]}, s[{S_WC}:{S_WC+3}], s{S_T2} offen lds', [p[2]], [], dma=True)
    fullexec()
    V(f'v_mov_b32 v{TF+2}, 0', [], [TF+2])
    S(f's_mov_b32 s{S_T0}, 0')
    a.label('L_tpoll')
    S('s_mov_b64 exec, 1')
    a.raw(f'buffer_load_dword v{TF}, v{TF+2}, s[{S_DBGF}:{S_DBGF+3}], 0 offen offset:64 sc1', kind='vmem')
    fullexec()
    S(f's_add_u32 s{S_T0}, s{S_T0}, 1')
    a.raw('s_waitcnt vmcnt(0)', kind='wait'); a.vm = []
    a.raw(f'v_readfirstlane_b32 s{S_T1}, v{TF}', kind='valu')
    a.raw('s_nop 0', kind='nop')
    S(f's_cmp_lg_u32 s{S_T1}, 0')
    a.raw('s_cbranch_scc1 L_tgo', kind='branch')
    a.raw(f's_sleep {PSLEEP}')
    S(f's_cmp_lt_u32 s{S_T0}, 0x40000')
    a.raw('s_cbranch_scc1 L_tpoll', kind='branch')
    a.label('L_tgo')
    S(f's_mul_i32 s{S_T2}, s{S_T4}, 832'); S(f's_add_u32 m0, s{S_T2}, {SCR}', m0=True); S(f's_add_u32 s{S_T2}, s{S_T2}, {WS_V5R}')
    execn(52)
    a.vmem(f'buffer_load_dwordx4 v{V_L16}, s[{S_WS}:{S_WS+3}], s{S_T2} offen sc1 lds', [V_L16], [], dma=True)
    fullexec()
    V(f'v_lshrrev_b32 v{p[3]}, 5, v{V_LANE}', [V_LANE], [p[3]])
    V(f'v_bfe_u32 v{p[4]}, v{V_LANE}, 2, 2', [V_LANE], [p[4]])
    V(f'v_lshl_add_u32 v{p[3]}, v{p[3]}, 3, v{p[4]}', [p[3], p[4]], [p[3]])
    V(f'v_bfe_u32 v{p[4]}, v{V_LANE}, 4, 1', [V_LANE], [p[4]])
    V(f'v_lshlrev_b32 v{p[4]}, 5, v{p[4]}', [p[4]], [p[4]])
    V(f'v_lshl_add_u32 v{p[4]}, v{p[1]}, 3, v{p[4]}', [p[1], p[4]], [p[4]])
    AW = [TF+3, TF+4, TF+5]; AV = [TF+6, TF+7, TF+8]
    V(f'v_lshl_add_u32 v{AW[0]}, v{p[3]}, 6, v{p[4]}', [p[3], p[4]], [AW[0]])
    V(f'v_add_u32 v{AW[0]}, s{S_T3}, v{AW[0]}', [AW[0]], [AW[0]])
    V(f'v_lshl_add_u32 v{AV[0]}, v{p[3]}, 7, v{p[4]}', [p[3], p[4]], [AV[0]])
    V(f'v_add_u32 v{AV[0]}, {SCR}, v{AV[0]}', [AV[0]], [AV[0]])
    V(f'v_mov_b32 v{p[5]}, 0x30000', [], [p[5]])
    for k_, lim in ((1, 10), (2, 6)):
        V(f'v_cmp_gt_u32 vcc, {lim}, v{p[3]}', [p[3]], [], swrites=['vcc'])
        V(f'v_cndmask_b32 v{AW[k_]}, v{p[5]}, v{AW[0]}, vcc', [p[5], AW[0]], [AW[k_]], sreads=['vcc'])
        V(f'v_cndmask_b32 v{AV[k_]}, v{p[5]}, v{AV[0]}, vcc', [p[5], AV[0]], [AV[k_]], sreads=['vcc'])
    V(f'v_and_b32 v{p[0]}, 31, v{V_LANE}', [V_LANE], [p[0]])
    V(f'v_lshrrev_b32 v{p[1]}, 5, v{V_LANE}', [V_LANE], [p[1]])
    S(f's_min_u32 s{S_C}, s{TI}, 25')
    sym_addr(p, S_C, WS_IMGT)
    S(f's_mov_b32 s{TI+1}, s{S_T0}'); S(f's_mov_b32 s{TI+2}, s{S_T1}')
    a.wait_vm_all()
    V(f'v_mov_b32 v{TF}, 1', [], [TF])
    execn(1)
    a.ds(f'ds_add_u32 v{V_SYNC}, v{TF} offset:16', [V_SYNC, TF])
    fullexec()
    for ks in range(2):
        for tt in range(2):
            ad = AW[0] if ks == 0 else AW[1 + tt]
            a.ds(f'ds_read_b64_tr_b16 {vr(F1+4*ks+2*tt,2)}, v{ad} offset:{(16*ks+4*tt)*64}', [ad], R(F1+4*ks+2*tt, 2))
    rdy_check(4, 16)
    for F, lo in ((F2, 0), (F3, 64)):
        for ks in range(2):
            for tt in range(2):
                ad = AV[0] if ks == 0 else AV[1 + tt]
                a.ds(f'ds_read_b64_tr_b16 {vr(F+4*ks+2*tt,2)}, v{ad} offset:{(16*ks+4*tt)*128+lo}', [ad], R(F+4*ks+2*tt, 2))
    first = True
    for F in (F2, F3):
        for ks in range(2):
            a.mfma('v_mfma_f32_32x32x16_bf16', TD, F1+4*ks, F+4*ks, None if first else TD, 8, 16); first = False
            a.mfma('v_mfma_f32_32x32x16_bf16', TD, F+4*ks, F1+4*ks, TD, 8, 16)
    S(f's_mov_b32 s{S_T0}, s{TI+1}'); S(f's_mov_b32 s{S_T1}, s{TI+2}')
    sym_out(p, TD, F1, F2, 4)
    a.raw('s_waitcnt vmcnt(0)', kind='wait'); a.vm = []
    a.raw(f'v_mov_b32 v{VT1}, 1', kind='valu')
    a.raw(f'ds_add_rtn_u32 v{VT2}, v{V_SYNC}, v{VT1} offset:20', kind='ds')
    a.raw('s_waitcnt lgkmcnt(0)', kind='wait'); a.lds = []
    a.raw(f'v_readfirstlane_b32 s{S_T0}, v{VT2}', kind='valu')
    a.raw('s_nop 0', kind='nop')
    S(f's_cmp_lg_u32 s{S_T0}, 3')
    a.raw('s_cbranch_scc1 L_tdone', kind='branch')
    a.raw(f'v_mov_b32 v{VT2}, s{S_SET}', kind='valu')
    a.raw(f'buffer_atomic_add v{VT1}, v{VT2}, s[{S_DBGF}:{S_DBGF+3}], 0 offen offset:12 sc0 sc1', kind='vmem')
    a.raw('s_waitcnt vmcnt(0)', kind='wait')
    a.raw(f'v_readfirstlane_b32 s{S_T2}, v{VT1}', kind='valu')
    a.raw(f'v_mov_b32 v{VT2}, 0', kind='valu')
    a.raw(f'v_mov_b32 v{VT1}, 1', kind='valu')
    S(f's_cmp_lg_u32 s{S_T2}, {NPT - NPT0 - 1}')
    a.raw('s_cbranch_scc1 L_tdone', kind='branch')
    a.raw(f'buffer_store_dword v{VT1}, v{VT2}, s[{S_DBGF}:{S_DBGF+3}], 0 offen offset:192 sc1', kind='vmem')
    a.label('L_tdone')
    fullexec()
    a.nop(4)
    a.raw('s_branch L_x0prep', kind='branch')
    a.label('L_grpB')
    for f in range(26):
        V(f'v_lshl_add_u32 v{IXR+f}, v{IXR+f}, 5, v{t[7]}', [IXR+f, t[7]], [IXR+f])
    for q in range(7):
        V(f'v_lshlrev_b32 v{ACC+4*q}, 16, v{BT+2*q}', [BT+2*q], [ACC+4*q])
        V(f'v_and_b32 v{ACC+4*q+1}, 0xffff0000, v{BT+2*q}', [BT+2*q], [ACC+4*q+1])
        V(f'v_lshlrev_b32 v{ACC+4*q+2}, 16, v{BT+2*q+1}', [BT+2*q+1], [ACC+4*q+2])
        V(f'v_and_b32 v{ACC+4*q+3}, 0xffff0000, v{BT+2*q+1}', [BT+2*q+1], [ACC+4*q+3])
    a.wait_lds_all()
    def dnn_loop(xt):
        CHK = {0: 3, 2: 5, 4: 7, 6: 9, 8: 11, 10: 13, 12: 14}
        qs = list(range(0 if xt else 1, 7))
        cnt_check(CHK[0]); dnn_bread(0)
        for q in qs: dnn_aread(0, q)
        for i in range(13):
            a.comment(f'======== DNN step {i} xt={xt}')
            if i + 1 < 13:
                if (i + 1) in CHK: cnt_check(CHK[i + 1])
                dnn_bread(i + 1)
            for q in qs:
                dnn_mf(i, q)
                if i + 1 < 13: dnn_aread(i + 1, q)
            if i in (2, 7, 12): release({2: 1, 7: 2, 12: 3}[i])
        if EPRIO is not None: a.raw(f's_setprio {EPRIO}')
        dnn_epilogue(xt)
        a.wait_lds_all(); a.nop(8)
    S(f's_cmp_ge_u32 s{S_Q}, 2')
    a.raw('s_cbranch_scc1 L_dnn0', kind='branch')
    dnn_loop(1)
    a.raw('s_branch L_dnnend', kind='branch')
    a.label('L_dnn0')
    dnn_loop(0)
    a.label('L_dnnend')
    for v in range(13): a.ds(f'ds_read_b32 v{PBT+v}, v{V_TRADDR} offset:{128*v}', [V_TRADDR], [PBT+v])
    a.wait_lds_all()
    a.label('L_x0prep')
    for o in x0_ops(): o()
    for q in range(7):
        V(f'v_pk_mul_f16 v{QH+q}, v{XQ+q}, s{S_HALF}', [XQ+q], [QH+q])
    addr_setup()
    V(f'v_lshrrev_b32 v{t[1]}, 5, v{V_LANE}', [V_LANE], [t[1]])
    V(f'v_lshlrev_b32 v{t[1]}, 6, v{t[1]}', [t[1]], [t[1]])
    V(f'v_add_u32 v{V_PWADDR}, {EWT}, v{t[1]}', [t[1]], [V_PWADDR])
    V(f'v_mov_b32 v{ZL+3}, 0', [], [ZL+3])
    stamp('dnn')
    if REP:
        a.wait_lds_all(); a.raw('s_memtime s[96:97]'); a.raw('s_memrealtime s[98:99]'); a.raw('s_waitcnt lgkmcnt(0)', kind='wait')
    S1 = DB; S2 = DB + 1
    for l in range(5):
        a.comment(f'======== layer {l}')
        stamp(f'L{l}')
        rdy_check({0: 1, 1: 2, 2: 3, 3: 4, 4: 6}[l], 8)
        for k in range(PFD): a_read(l, k)
        fq = []
        if l == 3:
            rdy_check(5, 8)
            u5 = u5_ops(); u5[0]()
            fq = u5[1:]
        if l == 4:
            V(f'v_mov_b32 v{t[0]}, 0x05040100', [], [t[0]])
            V(f'v_mov_b32 v{t[1]}, 0x07060302', [], [t[1]])
            V(f'v_cndmask_b32 v{t[0]}, v{t[0]}, v{t[1]}, s[{S_HI}:{S_HI+1}]', [t[0], t[1]], [t[0]])
            for q in range(7):
                V(f'v_perm_b32 v{XQ+q}, v{P16+2*q+1}, v{P16+2*q}, v{t[0]}', [P16+2*q+1, P16+2*q, t[0]], [XQ+q])
            for r in range(13): fq.append(lambda r=r: V(f'v_ldexp_f32 v{D+r}, v{D+r}, v{EW+r}', [D+r, EW+r], [D+r]))
            fq.append(lambda: V(f'v_mul_f32 v{S1}, v{D}, v{G}', [D, G], [S1]))
            for r in range(1, 13): fq.append(lambda r=r: V(f'v_fmac_f32 v{S1}, v{D+r}, v{G+r}', [S1, D+r, G+r], [S1]))
        for o in z_ops(l, 0): o()
        for o in z_ops(l, 1): o()
        if PRIO and not BPRIO and l < 4: a.raw('s_setprio 1')
        bpre = KPR and l >= KPR - 1
        if bpre and l < 4:
            S(isA); a.raw(f's_cbranch_scc1 L_kp{l}', kind='branch'); a.raw('s_setprio 3'); a.label(f'L_kp{l}')
        DD = DT if l == 4 else D
        for k in range(NK[l]):
            if k == NK[l] - 8: pwrd(l)
            zo = z_ops(l, k + 2) if k + 2 < NK[l] else []
            if k % 2 == 0 and k + 1 < NK[l]: a._wait_regs(R(AB[(k + 1) % NAB], 4))
            a.mfma('v_mfma_f32_32x32x16_f16', DD, AB[k % NAB], zbuf(l, k), DD if k > 0 else None, 8, 16)
            if k + PFD < NK[l]: a_read(l, k + PFD)
            for o in zo: o()
            if PRIO and not BPRIO and k == 2:
                if bpre:
                    S(isB); a.raw(f's_cbranch_scc1 L_kq{l}', kind='branch'); a.raw('s_setprio 2'); a.label(f'L_kq{l}')
                else: a.raw('s_setprio 2')
            if l == 4:
                for _ in range(2 if k >= 18 or k % 4 == 0 else 1):
                    if fq and k >= 1: fq.pop(0)()
            elif fq and k >= 4: fq.pop(0)()
        assert not fq
        if l == 0: release(4)
        if l < 3:
            if PRIO and not BPRIO: a.raw('s_setprio 0')
            for o in boundary_ops(l): o()
    if XP == 'big32':
        a.wait_lds_all(); a.nop(16)
        for k in range(200):
            a.mfma('v_mfma_f32_32x32x16_f16', 56, 72 + 4*(k % 4), 16 + 4*(k % 3), 56 if k else None, 8, 16)
        a.nop(16)
    if XP == 'big16':
        a.wait_lds_all(); a.nop(16)
        for k in range(400):
            a.mfma('v_mfma_f32_16x16x32_f16', 56 + 4*(k % 4), 72 + 4*(k % 4), 16 + 4*(k % 3), (56 + 4*(k % 4)) if k > 3 else None, 4, 4)
        a.nop(16)
    if XP == 'bigidle':
        for _ in range(12): a.raw('s_sleep 16')
    if XP == 'big32v':
        a.wait_lds_all(); a.nop(16)
        for k in range(200):
            a.mfma('v_mfma_f32_32x32x16_f16', 56, 72 + 4*(k % 4), 16 + 4*(k % 3), 56 if k else None, 8, 16)
            a.ds(f'ds_read_b128 v[{4+4*(k%2)}:{7+4*(k%2)}], v{V_AADDR[0]} offset:{16*(k%43)}', [V_AADDR[0]], [])
            for e in range(4): V(f'v_pk_mul_f16 v{32 + e}, v{16 + (k+e) % 13}, v{152 + e}', [16 + (k+e) % 13, 152 + e], [32 + e])
        a.wait_lds_all(); a.nop(16)
    stamp('fin')
    rdy_check(7, 8)
    V(f'v_bfe_u32 v{t[5]}, v{V_LANE}, 4, 1', [V_LANE], [t[5]])
    V(f'v_and_b32 v{t[6]}, 15, v{V_LANE}', [V_LANE], [t[6]])
    V(f'v_lshl_add_u32 v{t[5]}, v{t[6]}, 4, v{t[5]}', [t[5], t[6]], [t[5]])
    V(f'v_lshlrev_b32 v{t[5]}, 2, v{t[5]}', [t[5]], [t[5]])
    S(f's_lshl_b32 s{S_T0}, s{S_WAVE}, 3'); S(f's_add_u32 s{S_T0}, s{S_T0}, {PD}')
    V(f'v_add_u32 v{t[5]}, s{S_T0}, v{t[5]}', [t[5]], [t[5]])
    V(f'v_and_b32 v{t[6]}, 44, v{V_LANE}', [V_LANE], [t[6]])
    V(f'v_cmp_eq_u32 vcc, 0, v{t[6]}', [t[6]], [], swrites=['vcc'])
    V(f'v_mov_b32 v{t[6]}, 0x30000', [], [t[6]])
    V(f'v_cndmask_b32 v{t[5]}, v{t[6]}, v{t[5]}, vcc', [t[5], t[6]], [t[5]], sreads=['vcc'])
    a.ds(f'ds_read_b32 v{t[6]}, v{t[5]}', [t[5]], [t[6]])
    for r in range(13): V(f'v_lshl_add_u32 v{PW+r}, v{V_EX}, 1, v{PW+r}', [V_EX, PW+r], [PW+r])
    for r in range(13): V(f'v_ldexp_f32 v{DT+r}, v{DT+r}, v{PW+r}', [DT+r, PW+r], [DT+r])
    for r in range(13): V(f'v_fmac_f32 v{S1}, v{D+r}, v{DT+r}', [S1, D+r, DT+r], [S1])
    V(f'v_ldexp_f32 v{S1}, v{S1}, v{V_E}', [S1, V_E], [S1])
    V(f'v_add_f32 v{V_ACC}, v{V_ACC}, v{S1}', [V_ACC, S1], [V_ACC])
    A_ = V_ACC
    V(f'v_add_f32 v{A_}, v{A_}, v{t[6]}', [A_, t[6]], [A_])
    for d in (8, 4, 2, 1):
        V(f'v_add_f32_dpp v{A_}, v{A_}, v{A_} row_ror:{d} row_mask:0xf bank_mask:0xf', [A_], [A_], dpp=True)
    V(f'v_mov_b32 v{t[5]}, v{A_}', [A_], [t[5]])
    V(f'v_permlane32_swap_b32 v{A_}, v{t[5]}', [A_, t[5]], [A_, t[5]], permlane=True)
    V(f'v_add_f32 v{A_}, v{A_}, v{t[5]}', [A_, t[5]], [A_])
    V(f'v_cvt_pk_bf16_f32 v{A_}, v{A_}, v{A_}', [A_], [A_])
    V(f'v_lshrrev_b32 v{t[5]}, 3, v{V_LANE}', [V_LANE], [t[5]])
    S(f's_lshl_b32 s{S_T0}, s2, 5'); S(f's_lshl_b32 s{S_T1}, s{S_WAVE}, 2'); S(f's_add_u32 s{S_T0}, s{S_T0}, s{S_T1}')
    S('s_mov_b64 exec, 0x10001')
    a.vmem(f'buffer_store_short v{A_}, v{t[5]}, s[{S_OUT}:{S_OUT+3}], s{S_T0} offen', [A_, t[5]], [])
    if REP:
        a.raw('s_memtime s[100:101]'); a.raw('s_memrealtime s[4:5]'); a.raw('s_waitcnt lgkmcnt(0)', kind='wait')
        S(f's_cmp_lg_u32 s{S_WAVE}, 4'); a.raw('s_cbranch_scc1 L_norep', kind='branch')
        S('s_and_b32 s6, s2, 0xfc'); S('s_cmp_lg_u32 s6, 100'); a.raw('s_cbranch_scc1 L_norep', kind='branch')
        S('s_sub_u32 s96, s96, s92'); S('s_sub_u32 s98, s98, s94'); S('s_sub_u32 s100, s100, s92'); S('s_sub_u32 s4, s4, s94')
        V('v_mov_b32 v16, s96', [], [16]); V('v_mov_b32 v17, s98', [], [17]); V('v_mov_b32 v18, s100', [], [18]); V('v_mov_b32 v19, s4', [], [19])
        S('s_and_b32 s6, s2, 3'); S('s_lshl_b32 s6, s6, 4'); V('v_mov_b32 v20, s6', [], [20])
        S('s_mov_b64 exec, 1')
        a.vmem(f'buffer_store_dwordx4 v[16:19], v20, s[{S_DBGF}:{S_DBGF+3}], 0 offen', [16,17,18,19,20], [])
        a.label('L_norep')
    dbg_out()
    a.raw('s_endpgm')

    a.label('L_loader')
    a.lds = []; a.vm = []; a.valu_w = {}; a.mfma_w = {}; a.mfma_c = {}; a.trans_w = {}; a.store_src = {}; a.opsel_w = {}
    stamp_n[0] = 1
    names_c = a.stamp_names; a.stamp_names = []
    LF = 18; LFA = 19; LSY = 20; LDA = 21; LDV = 22; LT = 23; WO = 32; PF = 40; LN = 24; LG = 64
    if TOUCH:
        V(f'v_mov_b32 v{t[0]}, 0', [], [t[0]])
        S('s_mov_b64 exec, 1')
        S(f's_mov_b32 s{S_T0}, {WS_INB - 256}')
        a.vmem(f'buffer_load_dword v{PF}, v{t[0]}, s[{S_WS}:{S_WS+3}], s{S_T0} offen', [t[0]], [PF])
        if TOUCH == 1: a.vmem(f'buffer_load_dword v{PF+1}, v{t[0]}, s[{S_DBGF}:{S_DBGF+3}], 0 offen sc1', [t[0]], [PF+1])
        a.vmem(f'buffer_load_dword v{PF+2}, v{t[0]}, s[{S_OUT}:{S_OUT+3}], 0 offen', [t[0]], [PF+2])
        a.vmem(f'buffer_load_dword v{PF+3}, v{t[0]}, s[{S_W1}:{S_W1+3}], 0 offen', [t[0]], [PF+3])
        a.vmem(f'buffer_load_dword v{PF+4}, v{t[0]}, s[{S_TAB}:{S_TAB+3}], 0 offen', [t[0]], [PF+4])
        a.vmem(f'buffer_load_dword v{PF+5}, v{t[0]}, s[{S_B1}:{S_B1+3}], 0 offen', [t[0]], [PF+5])
        a.vmem(f'buffer_load_dword v{PF+6}, v{t[0]}, s[{S_W2}:{S_W2+3}], 0 offen', [t[0]], [PF+6])
        fullexec()
    if CPF:
        a.raw('s_getpc_b64 s[4:5]')
        a.label('L_pcref')
        S(f's_sub_u32 s4, s4, L_pcref-{NAME}_kernel'); S('s_subb_u32 s5, s5, 0')
        S(f's_lshr_b32 s{S_T0}, s2, 3'); S(f's_mul_i32 s{S_T0}, s{S_T0}, {CPF}')
        V(f'v_add_u32 v{t[0]}, s{S_T0}, v{V_L16}', [V_L16], [t[0]])
        V(f'v_add_u32 v{t[1]}, 1024, v{t[0]}', [t[0]], [t[1]])
        V(f'v_min_u32 v{t[0]}, L_end-{NAME}_kernel-16, v{t[0]}', [t[0]], [t[0]])
        V(f'v_min_u32 v{t[1]}, L_end-{NAME}_kernel-16, v{t[1]}', [t[1]], [t[1]])
        a.vmem(f'global_load_dwordx4 {vr(PF,4)}, v{t[0]}, s[4:5]', [t[0]], R(PF, 4))
        execn(max(1, (CPF - 1024) // 16))
        a.vmem(f'global_load_dwordx4 {vr(PF+4,4)}, v{t[1]}, s[4:5]', [t[1]], R(PF+4, 4))
        fullexec()
    S(f's_movk_i32 s{S_T0}, 4682')
    for k in range(7):
        V(f'v_add_u32 v{t[0]}, {64*k}, v{V_LANE}', [V_LANE], [t[0]])
        V(f'v_mul_u32_u24 v{t[1]}, s{S_T0}, v{t[0]}', [t[0]], [t[1]])
        V(f'v_lshrrev_b32 v{t[1]}, 16, v{t[1]}', [t[1]], [t[1]])
        V(f'v_mul_u32_u24 v{t[2]}, {832 - 224}, v{t[1]}', [t[1]], [t[2]])
        V(f'v_lshl_add_u32 v{WO+k}, v{t[0]}, 4, v{t[2]}', [t[0], t[2]], [WO+k])
    V(f'v_lshlrev_b32 v{LFA}, 2, v{V_LANE}', [V_LANE], [LFA])
    V(f'v_mov_b32 v{LSY}, {SYNC}', [], [LSY])
    V(f'v_and_b32 v{LDA}, 28, v{LFA}', [LFA], [LDA])
    V(f'v_add_u32 v{LDA}, {SYNC + 32}, v{LDA}', [LDA], [LDA])
    S(f's_mul_i32 s{S_KO}, s{S_ROT}, 26624'); S(f's_lshl_b32 s{S_T0}, s{S_T0L}, 5'); S(f's_add_u32 s{S_KO}, s{S_KO}, s{S_T0}')
    S(f's_add_u32 s{S_T3}, s{S_T0}, {13*26624}')
    def l_w1(i):
        for k in range(7):
            S(f's_mov_b32 m0, {CADDR[i] + 1024*k}', m0=True)
            a.vmem(f'buffer_load_dwordx4 v{WO+k}, s[{S_W1}:{S_W1+3}], s{S_KO} offen lds', [WO+k], [], tag=('c', i), dma=True)
        S(f's_add_u32 s{S_KO}, s{S_KO}, 26624'); S(f's_cmp_eq_u32 s{S_KO}, s{S_T3}'); S(f's_cselect_b32 s{S_T1}, {13*26624}, 0'); S(f's_sub_u32 s{S_KO}, s{S_KO}, s{S_T1}')
    def l_lin(tag, srd, src, dst, nbytes, sc=''):
        n = (nbytes + 1023) // 1024
        for pc in range(n):
            if pc % 4 == 0:
                S(f's_mov_b32 m0, {dst + 1024*pc}', m0=True)
                S(f's_mov_b32 s{S_T2}, {src + 1024*pc}')
            lanes = min(64, (nbytes - 1024*pc) // 16)
            if lanes < 64: execn(lanes)
            a.vmem(f'buffer_load_dwordx4 v{V_L16}, s[{srd}:{srd+3}], s{S_T2} offen offset:{1024*(pc%4)} {sc} lds', [V_L16], [], tag=tag, dma=True)
            if lanes < 64: fullexec()
    def publish(n, off):
        a.raw(f'v_mov_b32 v{LT}, {n}', kind='valu')
        a.raw(f'ds_write_b32 v{LSY}, v{LT} offset:{off}', kind='ds')
    def l_flag(lo, hi):
        mk = ((1 << hi) - 1) & ~((1 << lo) - 1)
        S(f's_mov_b64 exec, 0x{mk:x}')
        a.vmem(f'buffer_load_dword v{LF}, v{LFA}, s[{S_DBGF}:{S_DBGF+3}], 0 offen offset:128 sc1', [LFA], [LF])
        fullexec()
    def l_poll(lo, hi, lab, pre=None):
        mk = ((1 << hi) - 1) & ~((1 << lo) - 1)
        a._wait_regs([LF])
        S(f's_mov_b64 exec, 0x{mk:x}')
        S(f's_mov_b32 s{S_T0}, 0')
        a.label(f'L_poll{lab}')
        a.raw(f'v_cmp_eq_u32 vcc, 0, v{LF}', kind='valu')
        a.raw(f's_cbranch_vccz L_polldone{lab}', kind='branch')
        a.raw(f's_sleep {PSLEEP}')
        a.raw(f'buffer_load_dword v{LF}, v{LFA}, s[{S_DBGF}:{S_DBGF+3}], 0 offen offset:128 sc1', kind='vmem')
        S(f's_add_u32 s{S_T0}, s{S_T0}, 1')
        S(f's_cmp_lt_u32 s{S_T0}, 0x40000')
        a.raw('s_waitcnt vmcnt(0)', kind='wait')
        if pre: publish(pre[0], pre[1])
        a.raw(f's_cbranch_scc1 L_poll{lab}', kind='branch')
        a.label(f'L_polldone{lab}')
        fullexec()
    def l_wait_lds(addr, off, stage, lab, pre=None):
        a.raw(f's_mov_b32 s{S_T1}, 0x100000', kind='salu')
        a.label(f'L_dw{lab}')
        a.raw(f'ds_read_b32 v{LDV}, v{addr} offset:{off}', kind='ds')
        a.raw(f's_sub_u32 s{S_T1}, s{S_T1}, 1', kind='salu')
        a.raw(f's_cbranch_scc1 L_dn{lab}', kind='branch')
        a.raw('s_waitcnt lgkmcnt(0)', kind='wait')
        a.raw(f'v_cmp_gt_u32 vcc, {stage}, v{LDV}', kind='valu')
        a.raw(f's_cbranch_vccz L_dn{lab}', kind='branch')
        if pre:
            a.raw('s_waitcnt vmcnt(0)', kind='wait')
            publish(pre[0], pre[1])
        a.raw('s_sleep 1')
        a.raw(f's_branch L_dw{lab}', kind='branch')
        a.label(f'L_dn{lab}')
    a.raw('s_waitcnt lgkmcnt(0)', kind='wait')
    for i in range(13):
        l_w1(i)
        if i in (9, 11):
            a.wait_vm_tag(('c', i - 8)); publish(i - 6, 0)
    l_flag(2, 3)
    stamp('w1iss')
    for i in (5, 7, 9, 11, 12):
        a.wait_vm_tag(('c', i)); publish(i + 2, 0)
    l_poll(2, 3, 'k'); stamp('polled')
    l_flag(0, 1)
    S(f's_lshr_b32 s{S_T0}, s2, 3'); S(f's_mul_i32 s{S_T0}, s{S_T0}, 608')
    execn(38)
    a.vmem(f'buffer_load_dwordx4 {vr(PF+16,4)}, v{V_L16}, s[{S_WS}:{S_WS+3}], s{S_T0} offen sc1', [V_L16], R(PF+16, 4))
    fullexec()
    l_wait_lds(LDA, 0, 1, 'a')
    l_lin(('i', 0), S_WS, WS_IMG0, I0B, IMG0, 'sc1')
    l_lin(('i', 0), S_WS, WS_EWT, EWT, 128, 'sc1')
    l_poll(0, 1, 'a', pre=(1, 8))
    V(f'v_readlane_b32 s{S_T0}, v{LF}, 0', [LF], [], swrites=[S_T0], readlane=True)
    V(f'v_mov_b32 v{LN}, s{S_T0}', [], [LN], sreads=[S_T0])
    S(f's_lshr_b32 s{S_T0}, s2, 3'); S(f's_mul_i32 s{S_T0}, s{S_T0}, 3360'); S(f's_add_u32 s{S_T0}, s{S_T0}, {WS_IMG[1]}')
    for q in range(4):
        if q == 3: execn(18)
        a.vmem(f'buffer_load_dwordx4 {vr(PF+4*q,4)}, v{V_L16}, s[{S_WS}:{S_WS+3}], s{S_T0} offen offset:{1024*q} sc1', [V_L16], R(PF+4*q, 4))
    fullexec()
    l_lin(('i', 1), S_WS, WS_EWT + 128, EWT + 128, 384, 'sc1')
    l_wait_lds(LDA, 0, 2, 'b', pre=(1, 8))
    l_lin(('i', 1), S_WS, WS_IMG[1], U[0], 16384, 'sc1')
    a.wait_vm_tag(('i', 0)); publish(1, 8)
    l_lin(('i', 1), S_WS, WS_IMG[1] + 16384, U[0] + 16384, IMG - 16384, 'sc1')
    a.wait_vm_tag(('i', 1)); publish(2, 8); stamp('i1')
    l_wait_lds(LDA, 0, 3, 'c'); stamp('dnndone')
    l_lin(('i', 2), S_WS, WS_IMG[2], U[1], IMG, 'sc1')
    l_lin(('i', 3), S_WS, WS_IMG[3], U[2], IMG, 'sc1')
    a.wait_vm_tag(('i', 2)); publish(3, 8)
    a.wait_vm_tag(('i', 3)); publish(4, 8)
    l_wait_lds(LSY, 4, 4, 'd')
    V(f'v_lshlrev_b32 v{t[0]}, 3, v{V_LANE}', [V_LANE], [t[0]])
    V(f'v_add_u32 v{t[0]}, {PDL}, v{t[0]}', [t[0]], [t[0]])
    a.ds(f'ds_read_b64 {vr(LG+4,2)}, v{t[0]}', [t[0]], R(LG+4, 2))
    V(f'v_bfe_u32 v{t[1]}, v{V_LANE}, 3, 2', [V_LANE], [t[1]])
    V(f'v_add_u32 v{t[1]}, s{S_Q}, v{t[1]}', [t[1]], [t[1]])
    V(f'v_and_b32 v{t[1]}, 3, v{t[1]}', [t[1]], [t[1]])
    V(f'v_lshlrev_b32 v{t[1]}, 13, v{t[1]}', [t[1]], [t[1]])
    V(f'v_and_b32 v{t[2]}, 7, v{V_LANE}', [V_LANE], [t[2]])
    V(f'v_lshl_add_u32 v{t[1]}, v{t[2]}, 4, v{t[1]}', [t[2], t[1]], [t[1]])
    S(f's_lshl_b32 s{S_T0}, s{S_CB}, 10'); S(f's_lshl_b32 s{S_T1}, s{S_Q}, 7'); S(f's_add_u32 s{S_T0}, s{S_T0}, s{S_T1}'); S(f's_add_u32 s{S_T0}, s{S_T0}, {WS_INB}')
    V(f'v_mov_b32 v{LG}, v{LG+4}', [LG+4], [LG]); V(f'v_mov_b32 v{LG+1}, v{LN}', [LN], [LG+1])
    V(f'v_mov_b32 v{LG+2}, v{LG+5}', [LG+5], [LG+2]); V(f'v_mov_b32 v{LG+3}, v{LN}', [LN], [LG+3])
    execn(32)
    a.vmem(f'buffer_store_dwordx4 {vr(LG,4)}, v{t[1]}, s[{S_WS}:{S_WS+3}], s{S_T0} offen sc1', [t[1]] + R(LG, 4), [], wide_store=R(LG, 4))
    fullexec()
    l_lin('v5f', S_WS, WS_V5F, V5F, 4096, 'sc1')
    l_flag(16, 17)
    a.wait_vm_tag('v5f'); publish(5, 8)
    l_wait_lds(LDA, 0, 4, 'e')
    l_poll(16, 17, 'b')
    l_lin(('i', 4), S_WS, WS_IMGT, I0B, IMG0, 'sc1')
    l_lin(('i', 4), S_WS, WS_EWT + 512, EWT + 512, 128, 'sc1')
    a.wait_vm_all(); publish(6, 8); stamp('i5')
    S(f's_lshl_b32 s{S_T2}, s2, 10'); S(f's_add_u32 s{S_T2}, s{S_T2}, {WS_INB}')
    S(f's_mov_b32 s{S_T0}, 0')
    execn(32)
    a.label('L_inb')
    a.raw(f'buffer_load_dwordx4 {vr(LG+8,4)}, v{V_L16}, s[{S_WS}:{S_WS+3}], s{S_T2} offen sc1', kind='vmem')
    S(f's_add_u32 s{S_T0}, s{S_T0}, 1')
    a.raw('s_waitcnt vmcnt(0)', kind='wait')
    a.raw(f'v_cmp_ne_u32 vcc, v{LN}, v{LG+9}', kind='valu')
    a.raw(f'v_cmp_ne_u32 s[{S_MT}:{S_MT+1}], v{LN}, v{LG+11}', kind='valu')
    a.raw('s_nop 1', kind='nop')
    a.raw(f's_or_b64 vcc, vcc, s[{S_MT}:{S_MT+1}]', kind='salu')
    a.raw('s_cbranch_vccz L_inbok', kind='branch')
    a.raw(f's_sleep {PSLEEP}')
    S(f's_cmp_lt_u32 s{S_T0}, 0x40000')
    a.raw('s_cbranch_scc1 L_inb', kind='branch')
    a.label('L_inbok')
    V(f'v_mov_b32 v{LG+9}, v{LG+10}', [LG+10], [LG+9])
    V(f'v_lshlrev_b32 v{t[0]}, 3, v{V_LANE}', [V_LANE], [t[0]])
    V(f'v_add_u32 v{t[0]}, {PD}, v{t[0]}', [t[0]], [t[0]])
    a.ds(f'ds_write_b64 v{t[0]}, {vr(LG+8,2)}', [t[0], LG+8, LG+9])
    publish(7, 8)
    dbg_out()
    a.label('L_end')
    a.raw('s_endpgm')
    a.stamp_names = (names_c, a.stamp_names)
    return a

HEADER = open('cdna_kernels/' + NAME + '.s.ref').read().split('; Override launch geometry')[0]
def wrap(a):
    s = HEADER
    s += f'; @launch grid=(256,1,1) block=(576,1,1) lds={LDS_TOTAL}\n'
    s += '.amdgcn_target "amdgcn-amd-amdhsa--gfx950"\n.text\n'
    s += f'.globl {NAME}_kernel\n.p2align 8\n.type {NAME}_kernel,@function\n{NAME}_kernel:\n'
    s += a.text()
    s += f'''.section .rodata,"a"
.p2align 6
.amdhsa_kernel {NAME}_kernel
  .amdhsa_next_free_vgpr {NV}
  .amdhsa_next_free_sgpr 102
  .amdhsa_accum_offset {NV}
  .amdhsa_group_segment_fixed_size 0
  .amdhsa_kernarg_size 88
  .amdhsa_user_sgpr_count 2
  .amdhsa_user_sgpr_kernarg_segment_ptr 1
  .amdhsa_system_sgpr_workgroup_id_x 1
  .amdhsa_float_denorm_mode_32 3
.end_amdhsa_kernel
'''
    return s

if __name__ == '__main__':
    import argparse
    ap = argparse.ArgumentParser()
    ap.add_argument('out', nargs='?', default='cdna_kernels/' + NAME + '.s')
    ap.add_argument('--dbg', type=int, default=0)
    ap.add_argument('--prio', type=int, default=1)
    ap.add_argument('--splitepi', type=int, default=1)
    args = ap.parse_args()
    a = gen(debug=args.dbg, PRIO=args.prio, SPLITEPI=args.splitepi)
    open(args.out, 'w').write(wrap(a))
    print(a.count, 'lines', len(a.lines), a.stamp_names)
```
